```python
import torch

def _softmax(x, axis=-1):
    return torch.softmax(x, dim=axis)

def _gelu(x):
    return torch.nn.functional.gelu(x, approximate='tanh')

def _silu(x):
    return torch.nn.functional.silu(x)

def _sigmoid(x):
    return torch.sigmoid(x)

def _layernorm(x, axis=-1, eps=1e-05):
    m = x.mean(dim=axis, keepdim=True)
    v = x.var(dim=axis, keepdim=True, unbiased=False)
    return (x - m) / torch.sqrt(v + eps)

def _scatter_add(tgt, idx, src, axis=0):
    return tgt.clone().index_add_(axis, idx, src)

def _segment_sum(src, seg, n):
    out = torch.zeros((n,) + src.shape[1:], dtype=src.dtype)
    return out.index_add_(0, seg, src)

def _pad(x, pw):
    flat = tuple((v for pair in reversed(pw) for v in pair))
    return torch.nn.functional.pad(x, flat)
kernel_name = 'adaLN_cond__spectral_fnet__moe_arch_mod__prompt'

def setup_inputs():

    _w = lambda a: (lambda t: t.to(torch.bfloat16) if t.is_floating_point() else t)(torch.as_tensor(a))

    def _A_setup():
        B, S, D = (1, 2048, 512)
        ns = torch.arange(S)[:, None] * torch.arange(S)[None, :]
        nd = torch.arange(D)[:, None] * torch.arange(D)[None, :]
        Ws_re = torch.cos(-2.0 * torch.pi * ns / S).to(float)
        Ws_im = torch.sin(-2.0 * torch.pi * ns / S).to(float)
        Wd_re = torch.cos(-2.0 * torch.pi * nd / D).to(float)
        Wd_im = torch.sin(-2.0 * torch.pi * nd / D).to(float)
        return {'x': _w((lambda *s: torch.randn(*s, dtype=torch.bfloat16) * 0.05)(B, S, D)), 'dft_seq_re': _w(Ws_re), 'dft_seq_im': _w(Ws_im), 'dft_hid_re': _w(Wd_re), 'dft_hid_im': _w(Wd_im)}
    _A_in = _A_setup()

    def _B_setup():
        B, S, D, F, C = (1, 2048, 512, 1792, 2)
        return {'x': _w((lambda *s: torch.randn(*s, dtype=torch.bfloat16) * 0.05)(B, S, D)), 'w_r': _w((lambda *s: torch.randn(*s, dtype=torch.bfloat16) * 3.2)(D)), 'w_gate': _w((lambda *s: torch.randn(*s, dtype=torch.bfloat16) * 0.8)(D, F)), 'w_up': _w((lambda *s: torch.randn(*s, dtype=torch.bfloat16) * 0.8)(D, F)), 'w_down': _w((lambda *s: torch.randn(*s, dtype=torch.bfloat16) * 0.8)(F, D))}
    _B_in = _B_setup()
    return {'A_x': _A_in['x'], 'A_dft_seq_re': _A_in['dft_seq_re'], 'A_dft_seq_im': _A_in['dft_seq_im'], 'A_dft_hid_re': _A_in['dft_hid_re'], 'A_dft_hid_im': _A_in['dft_hid_im'], 'B_x': _B_in['x'], 'B_w_r': _B_in['w_r'], 'B_w_gate': _B_in['w_gate'], 'B_w_up': _B_in['w_up'], 'B_w_down': _B_in['w_down'], 'c': _w((lambda *s: torch.randn(*s, dtype=torch.bfloat16) * 0.1)(1, 512) * 8.0), 'w_mod': _w((lambda *s: torch.randn(*s, dtype=torch.bfloat16) * 0.1)(512, 6 * 512) * 512 ** (-0.5) * 8.0)}

def reference(A_x, A_dft_seq_re, A_dft_seq_im, A_dft_hid_re, A_dft_hid_im, B_x, B_w_r, B_w_gate, B_w_up, B_w_down, c, w_mod):

    def _A_ref(x, dft_seq_re, dft_seq_im, dft_hid_re, dft_hid_im):
        a = torch.einsum('bsd,ed->bse', x, dft_hid_re)
        b = torch.einsum('bsd,ed->bse', x, dft_hid_im)
        y = torch.einsum('ts,bse->bte', dft_seq_re, a) - torch.einsum('ts,bse->bte', dft_seq_im, b)
        return y

    def _B_ref(x, w_r, w_gate, w_up, w_down):
        B, S, D = x.shape
        C = 2
        r = x @ w_r
        idx = torch.argsort(-r, axis=-1)[:, :C]
        idx_e = (lambda x, n, axis: torch.repeat_interleave(x, n, dim=axis))(idx.reshape(B, C, 1), D, axis=2)
        x_sel = (lambda x, i, axis: torch.take_along_dim(x, i, dim=axis))(x, idx_e, axis=1)
        g = _silu(x_sel @ w_gate)
        u = x_sel @ w_up
        y = g * u @ w_down
        r_sel = _sigmoid((lambda x, i, axis: torch.take_along_dim(x, i, dim=axis))(r, idx, axis=1))
        y = y * r_sel.reshape(B, C, 1)
        b_off = (torch.arange(B) * S).reshape(B, 1)
        flat_idx = (idx + b_off).reshape(B * C)
        zero = (x * 0.0).reshape(B * S, D)
        upd = _scatter_add(zero, flat_idx, y.reshape(B * C, D), axis=0)
        return x + upd.reshape(B, S, D)
    x = A_x
    mod = (_silu(c) @ w_mod).reshape(c.shape[0], 6, 1, -1)
    sa, ca, ga, sb, cb, gb = (mod[:, 0].clone(), mod[:, 1].clone(), mod[:, 2].clone(), mod[:, 3].clone(), mod[:, 4].clone(), mod[:, 5].clone())
    h = _layernorm(x, axis=-1) * (1 + ca) + sa
    x = x + ga * _A_ref(h, A_dft_seq_re, A_dft_seq_im, A_dft_hid_re, A_dft_hid_im)
    h = _layernorm(x, axis=-1) * (1 + cb) + sb
    x = x + gb * _B_ref(h, B_w_r, B_w_gate, B_w_up, B_w_down)
    return x
```

```python
import re

TRANS = ("v_exp_f32", "v_log_f32", "v_rcp_f32", "v_rsq_f32", "v_sqrt_f32", "v_sin_f32", "v_cos_f32")
_R = re.compile(r"^(-|abs\()?(v|s|a)(?:(\d+)|\[(\d+):(\d+)\])\)?$")


def regs(tok):
    tok = tok.strip()
    if tok in ("vcc",):
        return {"vcc"}
    if tok in ("vcc_lo", "vcc_hi"):
        return {"vcc"}
    if tok in ("exec", "exec_lo", "exec_hi"):
        return {"exec"}
    if tok == "m0":
        return {"m0"}
    m = _R.match(tok)
    if not m:
        return set()
    k = m.group(2)
    if m.group(3) is not None:
        return {k + m.group(3)}
    return {k + str(i) for i in range(int(m.group(4)), int(m.group(5)) + 1)}


def split_ops(s):
    out, depth, cur = [], 0, ""
    for ch in s:
        if ch in "[(":
            depth += 1
        if ch in "])":
            depth -= 1
        if ch == "," and depth == 0:
            out.append(cur.strip())
            cur = ""
        else:
            cur += ch
    if cur.strip():
        out.append(cur.strip())
    return out


class Ins:
    def __init__(self, text):
        self.text = text
        t = text.split(";")[0].strip()
        parts = t.split(None, 1)
        self.mn = parts[0]
        rest = parts[1] if len(parts) > 1 else ""
        ops = split_ops(rest)
        self.mods = ""
        if ops:
            last = ops[-1].split(None, 1)
            if len(last) > 1 and not ops[-1].startswith(("vmcnt", "lgkmcnt", "hwreg")):
                ops[-1] = last[0]
                self.mods = last[1]
        self.ops = ops
        mn = self.mn
        self.w, self.r = set(), set()
        self.kind = "other"
        self.A = self.B = self.C = set()
        self.wide_store = set()
        if mn.startswith("v_mfma"):
            self.kind = "mfma"
            self.w = regs(ops[0])
            self.A, self.B, self.C = regs(ops[1]), regs(ops[2]), regs(ops[3])
            self.r = self.A | self.B | self.C
            self.passes = 8 if "32x32x16" in mn else 4
            assert "16x16x32" in mn or "32x32x16" in mn, mn
        elif mn.startswith("v_"):
            self.kind = "valu"
            base = mn.replace("_dpp", "").replace("_e32", "").replace("_e64", "").replace("_sdwa", "")
            self.base = base
            if base in ("v_swap_b32", "v_permlane32_swap_b32", "v_permlane16_swap_b32"):
                self.w = regs(ops[0]) | regs(ops[1])
                self.r = set(self.w)
            elif base == "v_nop":
                pass
            else:
                nd = 2 if base in ("v_add_co_u32", "v_addc_co_u32", "v_sub_co_u32", "v_subb_co_u32") else 1
                for o in ops[:nd]:
                    self.w |= regs(o)
                for o in ops[nd:]:
                    self.r |= regs(o)
                if base in ("v_fmac_f32", "v_dot2c_f32_bf16", "v_writelane_b32") or (
                    "_dpp" in mn and ("row_mask:0xf" not in self.mods or "bank_mask:0xf" not in self.mods or
                                      (("row_shl" in self.mods or "row_shr" in self.mods) and "bound_ctrl" not in self.mods))):
                    self.r |= regs(ops[0])
                if base == "v_cndmask_b32" and len(ops) == 3:
                    self.r.add("vcc")
            self.dpp = "_dpp" in mn
            self.trans = base in TRANS
            self.dl = base.startswith("v_dot")
            self.perm = base.startswith("v_permlane")
            self.rdlane = base in ("v_readlane_b32", "v_readfirstlane_b32")
        elif mn.startswith(("buffer_", "global_")):
            self.kind = "vmem"
            lds = re.search(r"\blds\b", self.mods) is not None
            self.lds = lds
            if "load" in mn and not lds:
                self.w = regs(ops[0])
                for o in ops[1:]:
                    self.r |= regs(o)
                if "d16" in mn:
                    self.r |= regs(ops[0])
            else:
                for o in ops:
                    self.r |= regs(o)
                if lds:
                    self.r.add("m0")
                if "atomic" in mn and "sc0" in self.mods:
                    self.w = regs(ops[0])
                if "store" in mn and ("x4" in mn or "x3" in mn):
                    self.wide_store = regs(ops[0] if mn.startswith("buffer") else ops[1])
        elif mn.startswith("ds_"):
            self.kind = "ds"
            if "read" in mn or "permute" in mn or "swizzle" in mn:
                self.w = regs(ops[0])
                for o in ops[1:]:
                    self.r |= regs(o)
            else:
                for o in ops:
                    self.r |= regs(o)
        elif mn.startswith(("s_load", "s_buffer_load", "s_memtime", "s_memrealtime")):
            self.kind = "smem"
            self.w = regs(ops[0])
            for o in ops[1:]:
                self.r |= regs(o)
        elif mn.startswith("s_"):
            self.kind = "salu"
            if mn.startswith(("s_cmp", "s_cbranch", "s_branch", "s_waitcnt", "s_barrier", "s_nop", "s_endpgm", "s_setprio", "s_sleep", "s_bitcmp", "s_setpc")):
                for o in ops:
                    self.r |= regs(o)
            else:
                self.w = regs(ops[0])
                for o in ops[1:]:
                    self.r |= regs(o)
                if "saveexec" in mn:
                    self.w.add("exec")
        else:
            raise ValueError("unknown instruction: " + text)

    def states(self):
        if self.mn == "s_nop":
            return int(self.ops[0], 0) + 1
        return 1


def need(p, c):
    n = 0
    vw = {x for x in p.w if x[0] in "va" and x != "vcc"}
    sw = p.w - vw
    if p.kind == "valu":
        if c.kind == "mfma" and vw & c.r:
            n = max(n, 3 if p.dl else 2)
        if c.kind == "mfma" and "exec" in p.w:
            n = max(n, 4)
        if c.kind == "valu":
            if p.trans and not c.trans and vw & c.r:
                n = max(n, 1)
            if c.dpp and vw & c.r:
                n = max(n, 2)
            if c.perm and vw & c.r:
                n = max(n, 2)
            if c.rdlane and vw & c.r:
                n = max(n, 1)
            if sw & c.r:
                n = max(n, 4 if c.base in ("v_readlane_b32", "v_writelane_b32") else 2)
            if "sdwa" in p.mn and vw & (c.r | c.w):
                n = max(n, 1)
            if p.dl and vw & (c.r | c.w):
                same = c.base == p.base
                ab = set()
                for o in c.ops[1:3]:
                    ab |= regs(o)
                if not same or vw & ab:
                    n = max(n, 3)
        elif p.dl and vw & (c.r | c.w):
            n = max(n, 3)
        if c.kind == "vmem" and sw & c.r:
            n = max(n, 5)
        if c.kind in ("salu", "smem") and sw & c.r:
            n = max(n, 1)
    if p.kind == "mfma":
        i = {4: 0, 8: 1}[p.passes]
        if c.kind == "mfma":
            if p.w & (c.A | c.B):
                n = max(n, (8, 12)[i])
            if p.w & c.C and not (p.w == c.C and p.passes == c.passes):
                n = max(n, (6, 10)[i])
            if p.w & c.w and not (p.w == c.C):
                n = max(n, (6, 10)[i])
        elif p.w & (c.r | c.w):
            n = max(n, (8, 12)[i])
        if c.kind == "valu" and p.C & c.w:
            n = max(n, (3, 7)[i])
    if p.kind == "vmem" and p.wide_store & c.w:
        n = max(n, 2 if c.kind == "valu" else 1)
    if p.kind == "salu" and "m0" in p.w and "m0" in c.r and c.kind == "vmem":
        n = max(n, 1)
    return n


class Asm:
    def __init__(self):
        self.lines = []
        self.hist = []
        self.vm = []
        self.lg = []
        self.nops = 0

    def raw(self, s):
        self.lines.append(s)

    def comment(self, s):
        self.lines.append("    ; " + s)

    def label(self, name, reset=False):
        self.lines.append(name + ":")
        if reset:
            self.hist, self.vm, self.lg = [], [], []

    def fork(self):
        return (list(self.hist), list(self.vm), list(self.lg))

    def join(self, st):
        self.hist, self.vm, self.lg = list(st[0]), list(st[1]), list(st[2])

    def __call__(self, text):
        for t in text.strip().split("\n"):
            t = t.strip()
            if not t:
                continue
            if t.startswith(";"):
                self.lines.append("    " + t)
                continue
            self.one(t)

    def one(self, text):
        if text.startswith("s_waitcnt") and any(o.kind == "smem" for o in self.lg):
            text = re.sub(r"lgkmcnt\(\d+\)", "lgkmcnt(0)", text)
        c = Ins(text)
        dist, pad = 0, 0
        for p in reversed(self.hist[-24:]):
            n = need(p, c)
            if n > dist:
                pad = max(pad, n - dist)
            dist += p.states()
            if dist >= 20:
                break
        while pad > 0:
            k = min(pad, 16)
            nop = Ins("s_nop %d" % (k - 1))
            self.lines.append("    " + nop.text)
            self.hist.append(nop)
            self.nops += k
            pad -= k
        touched = c.r | c.w
        for q, nm in ((self.vm, "vmcnt"), (self.lg, "lgkmcnt")):
            for o in q:
                if o.w & touched:
                    raise RuntimeError("missing %s wait: '%s' touches result of '%s'" % (nm, text, o.text))
        if c.mn == "s_waitcnt":
            s = text.split(";")[0]
            m = re.search(r"vmcnt\((\d+)\)", s)
            if m:
                n = int(m.group(1))
                self.vm = self.vm[len(self.vm) - n:] if n and len(self.vm) > n else ([] if n == 0 else self.vm)
            m = re.search(r"lgkmcnt\((\d+)\)", s)
            if m:
                n = int(m.group(1))
                if n == 0:
                    self.lg = []
                else:
                    assert not any(o.kind == "smem" for o in self.lg), "counted lgkmcnt with SMEM outstanding: " + text
                    if len(self.lg) > n:
                        self.lg = self.lg[len(self.lg) - n:]
        if c.kind == "vmem":
            self.vm.append(c)
            assert len(self.vm) <= 63
        if c.kind in ("ds", "smem"):
            self.lg.append(c)
        self.lines.append("    " + text)
        self.hist.append(c)

    def wait_vm_for(self, regtok):
        want = set()
        for t in regtok.split():
            want |= regs(t)
        idx = -1
        for i, o in enumerate(self.vm):
            if o.w & want:
                idx = i
        if idx >= 0:
            self.one("s_waitcnt vmcnt(%d)" % (len(self.vm) - 1 - idx))

    def wait_lg_for(self, regtok):
        want = set()
        for t in regtok.split():
            want |= regs(t)
        idx = -1
        for i, o in enumerate(self.lg):
            if o.w & want:
                idx = i
        if idx >= 0:
            n = len(self.lg) - 1 - idx
            if any(o.kind == "smem" for o in self.lg):
                n = 0
            self.one("s_waitcnt lgkmcnt(%d)" % min(n, 15))

    def text(self):
        return "\n".join(self.lines) + "\n"


def v(i, n=1):
    return "v%d" % i if n == 1 else "v[%d:%d]" % (i, i + n - 1)


def s(i, n=1):
    return "s%d" % i if n == 1 else "s[%d:%d]" % (i, i + n - 1)
```

```python
import sys, struct
from asmlib import Asm, v, s

NAME = "adaLN_cond__spectral_fnet__moe_arch_mod__prompt"
HEADER = open("cdna_kernels/%s.s.ref" % NAME).read().split("; Override launch geometry")[0]

WS_MOD = 0x0
WS_KEYS = 0x8000
WS_SEL = 0xC000
WS_PART = 0x100000
WS_INTER = 0x200000
WS_H2 = 0x400000
WS_SIZE = 0x600000
EPS = 1e-5


def f32(x):
    return "0x%08x" % struct.unpack("<I", struct.pack("<f", x))[0]


def srd(a, base, nbytes):
    a("s_mov_b32 %s, 0x%x" % (s(base + 2), nbytes))
    a("s_mov_b32 %s, 0x20000" % s(base + 3))


def kstart(a, name):
    a.raw(".text")
    a.raw(".globl %s" % name)
    a.raw(".p2align 8")
    a.raw(".type %s,@function" % name)
    a.label(name, reset=True)


def kdesc(name, vgpr, sgpr):
    acc = (vgpr + 3) // 4 * 4
    return """.section .rodata,"a"
.p2align 6
.amdhsa_kernel %s
  .amdhsa_next_free_vgpr %d
  .amdhsa_next_free_sgpr %d
  .amdhsa_accum_offset %d
  .amdhsa_group_segment_fixed_size 0
  .amdhsa_kernarg_size 120
  .amdhsa_user_sgpr_count 2
  .amdhsa_user_sgpr_kernarg_segment_ptr 1
  .amdhsa_system_sgpr_workgroup_id_x 1
.end_amdhsa_kernel
""" % (name, vgpr, sgpr, acc)


def wave_sum(a, regs_):
    for mod in ("row_ror:8 row_mask:0xf bank_mask:0xf", "row_ror:4 row_mask:0xf bank_mask:0xf",
                "row_ror:2 row_mask:0xf bank_mask:0xf", "row_ror:1 row_mask:0xf bank_mask:0xf",
                "row_bcast:15 row_mask:0xa bank_mask:0xf", "row_bcast:31 row_mask:0xc bank_mask:0xf"):
        for r in regs_:
            a("v_add_f32_dpp %s, %s, %s %s" % (v(r), v(r), v(r), mod))


def k1(a):
    kstart(a, "k1_kernel")
    a("s_cmp_ge_u32 s2, 224")
    a("s_cbranch_scc1 k1_end")
    a("s_load_dwordx2 s[12:13], s[0:1], 112")
    srd(a, 12, WS_SIZE)
    a("s_cmp_ge_u32 s2, 128")
    st = a.fork()
    a("s_cbranch_scc1 k1_mod")
    a("s_load_dwordx2 s[8:9], s[0:1], 0")
    srd(a, 8, 2048 * 1024)
    a("""
    s_and_b32 s3, s2, 7
    s_lshr_b32 s4, s2, 5
    s_lshl3_add_u32 s3, s4, s3            ; s2idx
    s_bfe_u32 s4, s2, 0x20003
    s_lshl_b32 s5, s3, 10
    """)
    for g in range(4):
        a("s_add_u32 s6, s4, %d" % g)
        a("s_and_b32 s6, s6, 3")
        a("s_lshl_b32 s6, s6, 8")
        a("s_add_u32 %s, s6, s5" % s(16 + g))
    a("""
    v_and_b32 v1, 15, v0                  ; m
    v_lshrrev_b32 v2, 6, v0               ; wave
    v_and_b32 v3, 0x30, v0                ; q*16
    v_lshl_add_u32 v4, v2, 4, v1          ; s1 = 16w+m
    v_lshl_or_b32 v5, v4, 15, v3
    s_waitcnt lgkmcnt(0)
    """)
    X = 16
    for i in range(16):
        a("buffer_load_dwordx4 %s, v5, s[8:11], %s offen offset:%d" % (v(X + 4 * i, 4), s(16 + i // 4), 64 * (i % 4)))
    WA = 80
    a("""
    v_mov_b32 v96, 0x3f803f80
    v_mov_b32 v97, v96
    v_mov_b32 v98, v96
    v_mov_b32 v99, v96
    v_and_b32 v6, 1, v2                   ; mp
    v_lshrrev_b32 v7, 1, v1
    v_lshl_add_u32 v7, v6, 4, v7          ; slot (mt=0)
    v_and_b32 v8, 1, v1                   ; c
    v_lshl_or_b32 v9, v7, 1, v8
    v_cmp_eq_u32 vcc, 1, v9
    v_add_u32 v10, 8, v7                  ; slot (mt=1)
    v_cvt_f32_u32 v8, v8
    v_cndmask_b32 v9, v7, 32, vcc
    v_mul_f32 v8, 0.25, v8
    """.replace("0.25", f32(0.25)))
    a("v_cndmask_b32 v11, v8, 0, vcc")
    a("v_cvt_f32_u32 v9, v9")
    a("v_cvt_f32_u32 v10, v10")
    a("v_cvt_f32_u32 v12, v3")
    a("v_mul_f32 v9, %s, v9" % f32(1 / 64))
    a("v_mul_f32 v10, %s, v10" % f32(1 / 64))
    a("v_mul_f32 v12, 0.5, v12                ; 8q")
    a("v_fma_f32 v11, v9, v12, v11")
    a("v_fma_f32 v8, v10, v12, v8")
    a("v_lshlrev_b32 v13, 31, v7")
    a("v_lshrrev_b32 v14, 16, v13")
    a("v_or_b32 v13, v13, v14")
    T = 108
    for mt, (base, step) in enumerate(((11, 9), (8, 10))):
        a("v_cos_f32 %s, %s" % (v(T), v(base)))
        for j in range(1, 8):
            a("v_add_f32 %s, %s, %s" % (v(base), v(base), v(step)))
            a("v_cos_f32 %s, %s" % (v(T + j), v(base)))
        for j in range(4):
            a("v_cvt_pk_bf16_f32 %s, %s, %s" % (v(WA + 8 * mt + j), v(T + 2 * j), v(T + 2 * j + 1)))
        for j in range(4):
            a("v_xor_b32 %s, v13, %s" % (v(WA + 8 * mt + 4 + j), v(WA + 8 * mt + j)))
    a("""
    s_mov_b32 s20, 0x22222222
    s_mov_b32 s21, s20
    s_mov_b32 s22, 0x44444444
    s_mov_b32 s23, s22
    s_mov_b32 s24, 0x88888888
    s_mov_b32 s25, s24
    v_lshrrev_b32 v8, 2, v1               ; m>>2
    v_lshl_add_u32 v9, v8, 4, v1
    v_lshlrev_b32 v9, 2, v9
    v_mul_u32_u24 v10, 272, v4
    v_add_u32 v10, v10, v3
    v_lshrrev_b32 v11, 1, v3              ; 8q
    v_add_u32 v11, v11, v8
    v_mul_u32_u24 v11, 272, v11
    v_and_b32 v12, 3, v0
    v_lshl_add_u32 v11, v12, 3, v11
    v_lshrrev_b32 v12, 7, v0              ; nb
    v_lshl_add_u32 v11, v12, 7, v11
    v_lshrrev_b32 v13, 3, v3              ; 2q
    v_lshl_add_u32 v13, v6, 4, v13
    v_lshlrev_b32 v13, 16, v13
    v_lshl_add_u32 v13, v12, 8, v13
    v_lshl_add_u32 v13, v1, 4, v13
    s_lshl_b32 s5, s3, 11
    s_lshl_b32 s6, s4, 9
    s_add_u32 s5, s5, s6
    """)
    a("s_add_u32 s26, s5, 0x%x" % WS_INTER)
    a("s_add_u32 s27, s26, 0x10000")
    a("s_add_u32 s28, s26, 0x80000")
    a("s_add_u32 s29, s26, 0x90000")
    U = 108
    for i in range(16):
        a("s_waitcnt vmcnt(%d)" % (15 - i))
        x = v(X + 4 * i, 4)
        a("v_mfma_f32_16x16x32_bf16 v[100:103], v[96:99], %s, %s" % (x, "0" if i == 0 else "v[100:103]"))
        a("v_mfma_f32_16x16x32_bf16 v[104:107], %s, %s, %s" % (x, x, "0" if i == 0 else "v[104:107]"))
        if 4 <= i < 12:
            for d in range(2 * (i - 4), 2 * (i - 4) + 2):
                a("v_lshlrev_b32 %s, 16, %s" % (v(U + 2 * d), v(X + d)))
                a("v_and_b32 %s, 0xffff0000, %s" % (v(U + 2 * d + 1), v(X + d)))
    a("v_mul_f32 v14, %s, v100                ; mean" % f32(1 / 512))
    a("v_cndmask_b32 v15, v104, v105, s[20:21]")
    a("v_cndmask_b32 v15, v15, v106, s[22:23]")
    a("v_cndmask_b32 v15, v15, v107, s[24:25]")
    a("ds_bpermute_b32 v15, v9, v15")
    a("v_mul_f32 v6, v14, v14")
    a("v_sub_f32 v6, %s, v6" % f32(EPS))
    a("s_waitcnt lgkmcnt(0)")
    a("v_fmac_f32 v6, %s, v15" % f32(1 / 512))
    a("v_rsq_f32 v6, v6")
    a("v_mul_f32 v7, v14, v6")
    for d in range(16):
        a("v_pk_fma_f32 %s, %s, v[6:7], v[6:7] op_sel:[0,0,1] op_sel_hi:[1,0,1] neg_lo:[0,0,1] neg_hi:[0,0,1]" % (v(U + 2 * d, 2), v(U + 2 * d, 2)))
        a("v_cvt_pk_bf16_f32 %s, %s, %s" % (v(X + d), v(U + 2 * d), v(U + 2 * d + 1)))
        if d % 4 == 3:
            a("ds_write_b128 v10, %s offset:%d" % (v(X + d - 3, 4), 64 * (d // 4)))
    a("s_waitcnt lgkmcnt(0)")
    a("s_barrier")
    B = 32
    for ks in range(2):
        for i in range(4):
            for hf in range(2):
                a("ds_read_b64_tr_b16 %s, v11 offset:%d" % (v(B + 16 * ks + 4 * i + 2 * hf, 2), ks * 32 * 272 + hf * 4 * 272 + i * 32))
    ACC = 108
    for ks in range(2):
        for i in range(4):
            a.wait_lg_for(v(B + 16 * ks + 4 * i, 4))
            for mt in range(2):
                acc = v(ACC + 16 * mt + 4 * i, 4)
                a("v_mfma_f32_16x16x32_bf16 %s, %s, %s, %s" % (acc, v(WA + 8 * mt + 4 * ks, 4), v(B + 16 * ks + 4 * i, 4), "0" if ks == 0 else acc))
    O = 64
    for i in range(4):
        for mt in range(2):
            for p in range(2):
                a("v_cvt_pk_bf16_f32 %s, %s, %s" % (v(O + 8 * mt + 4 * p + i), v(ACC + 16 * mt + 4 * i + 2 * p), v(ACC + 16 * mt + 4 * i + 2 * p + 1)))
    for mt in range(2):
        for p in range(2):
            a("buffer_store_dwordx4 %s, v13, s[12:15], %s offen" % (v(O + 8 * mt + 4 * p, 4), s(26 + 2 * mt + p)))
    a("s_endpgm")
    a.label("k1_mod")
    a.join(st)
    a("s_load_dwordx2 s[8:9], s[0:1], 88")
    a("s_load_dwordx2 s[16:17], s[0:1], 80")
    srd(a, 8, 512 * 6144)
    srd(a, 16, 1024)
    a("""
    s_sub_u32 s3, s2, 128
    s_and_b32 s4, s3, 7
    s_lshr_b32 s5, s3, 4
    s_lshl3_add_u32 s4, s5, s4
    s_bfe_u32 s5, s3, 0x10003
    s_lshl1_add_u32 s3, s4, s5
    s_lshl_b32 s20, s3, 6
    """)
    for i in range(1, 8):
        a("s_add_u32 %s, s20, %d" % (s(20 + i), 6144 * i))
    a("""
    v_lshrrev_b32 v1, 2, v0
    v_and_b32 v2, 3, v0
    v_mul_u32_u24 v3, 0xc000, v1
    v_lshl_add_u32 v3, v2, 4, v3
    v_lshlrev_b32 v4, 2, v0
    s_waitcnt lgkmcnt(0)
    buffer_load_dword v5, v4, s[16:19], 0 offen
    """)
    W = 16
    for i in range(8):
        a("buffer_load_dwordx4 %s, v3, s[8:11], %s offen" % (v(W + 4 * i, 4), s(20 + i)))
    a("""
    s_mov_b32 s28, 0x05040100
    s_mov_b32 s29, 0x07060302
    s_lshr_b32 s4, s3, 4
    s_and_b32 s5, s3, 15
    s_lshl_b32 s5, s5, 5
    v_and_b32 v6, 31, v0
    v_add_u32 v7, s5, v6                  ; e
    v_and_b32 v8, 0x1c0, v7
    v_and_b32 v9, 15, v7
    v_lshl_add_u32 v8, v9, 2, v8
    v_bfe_u32 v9, v7, 4, 2
    v_add_u32 v8, v8, v9
    v_and_b32 v9, 0x103, v7
    v_bfe_u32 v10, v7, 2, 2
    v_lshl_add_u32 v9, v10, 6, v9
    v_bfe_u32 v10, v7, 4, 4
    v_lshl_add_u32 v9, v10, 2, v9
    s_cmp_lt_u32 s4, 2
    s_cselect_b64 s[30:31], -1, 0
    v_cndmask_b32 v8, v9, v8, s[30:31]
    v_lshlrev_b32 v8, 2, v8
    s_lshl_b32 s6, s4, 11
    s_cmp_eq_u32 s4, 1
    s_cselect_b32 s7, 1.0, 0
    s_cmp_eq_u32 s4, 4
    s_cselect_b32 s7, 1.0, s7
    v_lshlrev_b32 v6, 2, v6
    v_lshrrev_b32 v9, 6, v0
    v_lshlrev_b32 v9, 7, v9
    v_lshl_add_u32 v9, v2, 5, v9
    v_bfe_u32 v10, v0, 4, 2
    v_lshl_add_u32 v9, v10, 3, v9
    """)
    for j in range(8):
        a("v_mov_b32 %s, 0" % v(48 + j))
    a("s_waitcnt vmcnt(8)")
    a("v_lshlrev_b32 v10, 16, v5")
    a("v_and_b32 v11, 0xffff0000, v5")
    a("v_mul_f32 v12, %s, v10" % f32(-1.4426950408889634))
    a("v_mul_f32 v13, %s, v11" % f32(-1.4426950408889634))
    a("""
    v_exp_f32 v12, v12
    v_exp_f32 v13, v13
    v_add_f32 v12, 1.0, v12
    v_add_f32 v13, 1.0, v13
    v_rcp_f32 v12, v12
    v_rcp_f32 v13, v13
    v_mul_f32 v10, v10, v12
    v_mul_f32 v11, v11, v13
    v_cvt_pk_bf16_f32 v5, v10, v11
    """)
    for p in range(4):
        a("v_mov_b32_dpp %s, v5 quad_perm:[%d,%d,%d,%d] row_mask:0xf bank_mask:0xf" % (v(12 + p), p, p, p, p))
    for p in range(4):
        a("s_waitcnt vmcnt(%d)" % (6 - 2 * p))
        for jj in range(4):
            a("v_perm_b32 %s, %s, %s, s28" % (v(56 + 2 * jj), v(W + 8 * p + 4 + jj), v(W + 8 * p + jj)))
            a("v_perm_b32 %s, %s, %s, s29" % (v(57 + 2 * jj), v(W + 8 * p + 4 + jj), v(W + 8 * p + jj)))
        for j in range(8):
            a("v_dot2c_f32_bf16 %s, %s, %s" % (v(48 + j), v(12 + p), v(56 + j)))
    for j in range(4):
        a("v_permlane32_swap_b32 %s, %s" % (v(48 + j), v(52 + j)))
    for j in range(4):
        a("v_add_f32 %s, %s, %s" % (v(48 + j), v(48 + j), v(52 + j)))
    for j in range(2):
        a("v_permlane16_swap_b32 %s, %s" % (v(48 + j), v(50 + j)))
    for j in range(2):
        a("v_add_f32 %s, %s, %s" % (v(48 + j), v(48 + j), v(50 + j)))
    for r in (8, 4):
        for j in range(2):
            a("v_add_f32_dpp %s, %s, %s row_ror:%d row_mask:0xf bank_mask:0xf" % (v(48 + j), v(48 + j), v(48 + j), r))
    a("""
    s_mov_b32 exec_lo, 0x000f000f
    s_mov_b32 exec_hi, 0x000f000f
    ds_write_b64 v9, v[48:49]
    s_mov_b64 exec, -1
    v_cmp_gt_u32 vcc, 32, v0
    s_waitcnt lgkmcnt(0)
    s_barrier
    s_and_saveexec_b64 s[32:33], vcc
    s_cbranch_execz k1_end
    ds_read2_b32 v[48:49], v6 offset0:0 offset1:32
    ds_read2_b32 v[50:51], v6 offset0:64 offset1:96
    s_waitcnt lgkmcnt(0)
    v_add_f32 v48, v48, v49
    v_add_f32 v50, v50, v51
    v_add_f32 v48, v48, v50
    v_cvt_pk_bf16_f32 v48, v48, v48
    v_and_b32 v48, 0xffff0000, v48
    v_add_f32 v48, s7, v48
    v_cvt_pk_bf16_f32 v48, v48, v48
    v_and_b32 v48, 0xffff0000, v48
    buffer_store_dword v48, v8, s[12:15], s6 offen
    """)
    a.label("k1_end")
    a("s_endpgm")
    return kdesc("k1_kernel", 140, 40)


LDS_VEC = 20480


def k2(a):
    kstart(a, "k2_kernel")
    a("s_cmp_ge_u32 s2, 256")
    a("s_cbranch_scc1 k2_end")
    a("s_load_dwordx2 s[12:13], s[0:1], 112")
    a("s_load_dwordx2 s[8:9], s[0:1], 0")
    a("s_load_dwordx2 s[16:17], s[0:1], 96")
    a("s_load_dwordx2 s[20:21], s[0:1], 48")
    srd(a, 12, WS_SIZE)
    a("""
    s_and_b32 s3, s2, 7
    s_lshr_b32 s4, s2, 6
    s_lshl3_add_u32 s3, s4, s3            ; slot
    s_lshl_b32 s24, s3, 16
    """)
    a("s_add_u32 s24, s24, 0x%x" % WS_INTER)
    a("""
    s_add_u32 s25, s24, 0x1000
    s_add_u32 s26, s24, 0x8000
    s_add_u32 s27, s24, 0x9000
    v_and_b32 v1, 15, v0                  ; n / m
    v_bfe_u32 v2, v0, 4, 2                ; q
    v_lshrrev_b32 v3, 6, v0               ; wave
    v_lshlrev_b32 v4, 4, v1
    v_lshl_add_u32 v4, v3, 8, v4          ; w*256 + n*16
    v_lshl_add_u32 v5, v2, 13, v4
    v_readfirstlane_b32 s28, v3
    s_waitcnt lgkmcnt(0)
    """)
    L = 16
    for ks in range(2):
        for r in range(4):
            a("buffer_load_dwordx4 %s, v5, s[12:15], %s offen offset:%d" % (v(L + 16 * ks + 4 * r, 4), s(24 + 2 * ks + r // 2), 2048 * (r % 2)))
    srd(a, 8, 2048 * 1024)
    srd(a, 16, 2048 * 1024)
    srd(a, 20, 1024)
    a("buffer_load_dwordx4 v[48:51], v4, s[12:15], 0 offen offset:%d   ; 1+ca" % (WS_MOD + 2048))
    a("buffer_load_dwordx4 v[52:55], v4, s[12:15], 0 offen offset:%d   ; sa" % WS_MOD)
    a("""
    s_bfe_u32 s4, s2, 0x10003             ; mirror
    s_bfe_u32 s5, s2, 0x20004             ; group of 8 output rows
    s_sub_u32 s6, 64, s3
    s_cmp_eq_u32 s3, 0
    s_cselect_b32 s6, 32, s6
    s_cmp_eq_u32 s4, 0
    s_cselect_b32 s6, s3, s6              ; k1
    s_cselect_b32 s7, %s, %s
    s_cselect_b32 s30, 0x0000ffff, 0xffff0000
    s_cmp_eq_u32 s3, 0
    s_cselect_b32 s7, 0, s7               ; psi
    s_lshl_b32 s5, s5, 9
    s_add_u32 s6, s6, s5                  ; first row
    s_lshl_b32 s29, s28, 6
    s_add_u32 s29, s29, s6                ; this wave's row
    s_lshl_b32 s31, s29, 10               ; row byte offset
    s_lshl_b32 s32, s28, 10
    """.replace("s_cselect_b32 s7, %s, %s", "s_mov_b32 s7, %s\ns_cselect_b32 s7, %s, s7" % (f32(0.25), f32(-0.25)))
       .replace("s_cselect_b32 s30, 0x0000ffff, 0xffff0000", "s_mov_b32 s30, 0xffff0000\ns_cselect_b32 s30, 0x0000ffff, s30"))
    a("s_add_u32 s33, s32, %d" % (WS_MOD + 4096))
    a("s_add_u32 s32, s32, %d" % LDS_VEC)
    a("""
    s_mov_b32 m0, s32
    v_and_b32 v6, 63, v0
    v_lshlrev_b32 v6, 4, v6               ; lane*16
    v_lshlrev_b32 v7, 5, v1
    v_lshl_add_u32 v7, v2, 3, v7          ; 32n + 8q
    buffer_load_dwordx4 v6, s[12:15], s33 offen lds
    buffer_load_dwordx2 v[56:57], v7, s[8:11], s31 offen
    buffer_load_dwordx2 v[58:59], v7, s[8:11], s31 offen offset:512
    buffer_load_dwordx2 v[60:61], v7, s[20:23], 0 offen
    buffer_load_dwordx2 v[62:63], v7, s[20:23], 0 offen offset:512
    """)
    SA = 64
    a("""
    v_lshrrev_b32 v8, 1, v1
    v_lshlrev_b32 v8, 6, v8
    v_add_u32 v8, s6, v8
    v_cvt_f32_u32 v8, v8
    v_and_b32 v9, 1, v1
    v_cvt_f32_u32 v10, v9
    v_cvt_f32_u32 v11, v2
    """)
    a("v_mul_f32 v8, %s, v8                   ; step" % f32(1 / 2048))
    a("v_mul_f32 v10, %s, v10" % f32(0.25))
    a("v_mul_f32 v11, 4.0, v11                ; 4q")
    a("v_fmac_f32 v10, v8, v11")
    for ks in range(2):
        for r in range(4):
            if r:
                a("v_add_f32 v10, v10, v8")
            elif ks:
                a("v_fmac_f32 v10, %s, v8" % f32(13.0))
            a("v_add_f32 v12, s7, v10")
            a("v_cos_f32 v13, v10")
            a("v_cos_f32 v12, v12")
            a("v_cvt_pk_bf16_f32 %s, v13, v12" % v(SA + 4 * ks + r))
    a("s_cmp_lg_u32 s3, 0")
    a("s_cbranch_scc1 k2_nomask")
    for i in range(8):
        a("v_and_b32 %s, s30, %s" % (v(SA + i), v(SA + i)))
    a.label("k2_nomask")
    FR, FI, TC, TS, G = 72, 76, 80, 88, 96
    a("v_cvt_f32_u32 v8, v1")
    a("v_mul_f32 v8, %s, v8                   ; n/512" % f32(1 / 512))
    a("v_mul_f32 v10, v8, v11")
    a("v_mul_f32 v11, %s, v8                  ; n/32" % f32(16.0))
    for j in range(4):
        if j:
            a("v_add_f32 v10, v10, v8")
        a("v_mul_f32 v12, %s, v10" % f32(32.0))
        a("v_mul_f32 v13, %s, v10" % f32(16.0))
        a("v_add_f32 v14, v10, v11")
        a("v_cos_f32 %s, v10" % v(TC + j))
        a("v_sin_f32 %s, v10" % v(TS + j))
        a("v_cos_f32 v15, v12")
        a("v_sin_f32 v12, v12")
        a("v_cos_f32 %s, v14" % v(TC + 4 + j))
        a("v_sin_f32 %s, v14" % v(TS + 4 + j))
        a("v_cos_f32 %s, v13" % v(112 + j))
        a("v_sin_f32 %s, v13" % v(116 + j))
        a("v_cvt_pk_bf16_f32 %s, v15, v12" % v(FR + j))
        a("v_cvt_pk_bf16_f32 %s, -v12, v15" % v(FI + j))
    for j in range(4):
        a("v_cvt_pk_bf16_f32 %s, %s, %s" % (v(G + j), v(112 + 2 * j), v(113 + 2 * j)))
    a("v_lshlrev_b32 v12, 31, v9")
    a("v_lshrrev_b32 v13, 16, v12")
    a("v_or_b32 v12, v12, v13")
    a("s_mov_b32 s34, 0x80000000")
    for j in range(4):
        a("v_xor_b32 %s, s34, %s" % (v(G + 4 + j), v(G + j)))
        a("v_xor_b32 %s, v12, %s" % (v(G + 8 + j), v(G + j)))
        a("v_xor_b32 %s, s34, %s" % (v(G + 12 + j), v(G + 8 + j)))
    a("""
    v_mul_u32_u24 v8, 80, v1
    v_mul_u32_u24 v9, 5120, v2
    v_lshl_add_u32 v9, v3, 3, v9
    v_add_u32 v9, v9, v8
    v_mul_u32_u24 v10, 2560, v3
    v_lshl_add_u32 v10, v2, 4, v10
    v_add_u32 v10, v10, v8
    v_or_b32 v11, s6, v2
    v_cmp_eq_u32 vcc, 0, v11
    v_mov_b32 v11, 0x45000000
    v_cndmask_b32 v11, 0, v11, vcc
    """)
    a("v_add_u32 v6, %d, v6" % LDS_VEC)
    ACC = 112
    for ks in range(2):
        a.wait_vm_for(v(L + 16 * ks, 16))
        for r in range(4):
            for i in range(r + 1, 4):
                a("v_swap_b32 %s, %s" % (v(L + 16 * ks + 4 * r + i), v(L + 16 * ks + 4 * i + r)))
        for i in range(4):
            acc = v(ACC + 4 * i, 4)
            a("v_mfma_f32_16x16x32_bf16 %s, %s, %s, %s" % (acc, v(SA + 4 * ks, 4), v(L + 16 * ks + 4 * i, 4), "0" if ks == 0 else acc))
    a.wait_vm_for("v[48:55]")
    for i in range(4):
        a("v_mul_f32 %s, v11, %s" % (v(52 + i), v(52 + i)))
    P = 16
    for i in range(4):
        c = ACC + 4 * i
        a("v_fma_f32 %s, %s, %s, %s" % (v(c), v(c), v(48 + i), v(52 + i)))
        for j in range(1, 4):
            a("v_mul_f32 %s, %s, %s" % (v(c + j), v(c + j), v(48 + i)))
        for tt in range(2):
            a("v_cvt_pk_bf16_f32 %s, %s, %s" % (v(P + 4 * tt + 2 * (i % 2) + i // 2), v(c + 2 * tt), v(c + 2 * tt + 1)))
    for tt in range(2):
        for h in range(2):
            a("ds_write_b64 v9, %s offset:%d" % (v(P + 4 * tt + 2 * h, 2), tt * 2560 + h * 1280))
    a("s_waitcnt vmcnt(4) lgkmcnt(0)")
    a("s_barrier")
    D = 24
    a("ds_read_b128 %s, v10" % v(D, 4))
    a("ds_read_b128 %s, v10 offset:1280" % v(D + 4, 4))
    VEC = 128
    for k in range(4):
        for g in range(2):
            a("ds_read_b128 %s, v6 offset:%d" % (v(VEC + 8 * k + 4 * g, 4), 2048 * k + 1024 * g))
    BR, BI = 32, 40
    for h in range(2):
        a.wait_lg_for(v(D + 4 * h, 4))
        a("v_mfma_f32_16x16x32_bf16 %s, %s, %s, 0" % (v(BR + 4 * h, 4), v(D + 4 * h, 4), v(FR, 4)))
        a("v_mfma_f32_16x16x32_bf16 %s, %s, %s, 0" % (v(BI + 4 * h, 4), v(D + 4 * h, 4), v(FI, 4)))
    a("s_waitcnt vmcnt(0)")
    XU, WU = 112, 120
    for d in range(4):
        a("v_lshlrev_b32 %s, 16, %s" % (v(XU + 2 * d), v(56 + d)))
        a("v_and_b32 %s, 0xffff0000, %s" % (v(XU + 2 * d + 1), v(56 + d)))
    A2 = 16
    Y = 64
    for h in range(2):
        for j in range(4):
            br, bi, tc, ts = v(BR + 4 * h + j), v(BI + 4 * h + j), v(TC + 4 * h + j), v(TS + 4 * h + j)
            a("v_mul_f32 %s, %s, %s" % (v(48 + j), br, tc))
            a("v_mul_f32 %s, %s, %s" % (v(52 + j), bi, tc))
            a("v_fmac_f32 %s, %s, %s" % (v(48 + j), bi, ts))
            a("v_fma_f32 %s, -%s, %s, %s" % (v(52 + j), br, ts, v(52 + j)))
        for k in range(4):
            a("v_cvt_pk_bf16_f32 %s, %s, %s" % (v(A2 + 4 * h + k), v(48 + 2 * k), v(49 + 2 * k)))
        for g in range(2):
            y = v(Y + 4 * g, 4)
            a("v_mfma_f32_16x16x32_bf16 %s, %s, %s, %s" % (y, v(A2 + 4 * h, 4), v(G + 8 * h + 4 * g, 4), "0" if h == 0 else y))
    for d in range(4):
        a("v_lshlrev_b32 %s, 16, %s" % (v(WU + 2 * d), v(60 + d)))
        a("v_and_b32 %s, 0xffff0000, %s" % (v(WU + 2 * d + 1), v(60 + d)))
    a("s_waitcnt lgkmcnt(0)")
    GA, SB, CB, GB = VEC, VEC + 8, VEC + 16, VEC + 24
    for e in range(8):
        a("v_fmac_f32 %s, %s, %s" % (v(XU + e), v(GA + e), v(Y + e)))
    a("v_add_f32 v8, %s, %s" % (v(XU), v(XU + 1)))
    a("v_mul_f32 v9, %s, %s" % (v(XU), v(XU)))
    a("v_fmac_f32 v9, %s, %s" % (v(XU + 1), v(XU + 1)))
    for e in range(2, 8):
        a("v_add_f32 v8, v8, %s" % v(XU + e))
        a("v_fmac_f32 v9, %s, %s" % (v(XU + e), v(XU + e)))
    wave_sum(a, [8, 9])
    a("v_readlane_b32 s36, v8, 63")
    a("v_readlane_b32 s37, v9, 63")
    a("v_mov_b32 v10, %s" % f32(1 / 512))
    a("v_mul_f32 v8, s36, v10                 ; mean")
    a("v_mul_f32 v9, v8, v8")
    a("v_sub_f32 v9, %s, v9" % f32(EPS))
    a("v_fmac_f32 v9, s37, v10")
    a("v_rsq_f32 v9, v9")
    a("v_mul_f32 v8, v8, v9")
    H = 32
    for e in range(8):
        a("v_fma_f32 %s, %s, v9, -v8" % (v(H + e), v(XU + e)))
    for e in range(8):
        a("v_fma_f32 %s, %s, %s, %s" % (v(H + e), v(H + e), v(CB + e), v(SB + e)))
    for e in range(8):
        a("v_fmac_f32 %s, %s, %s" % (v(XU + e), v(GB + e), v(H + e)))
    for d in range(4):
        a("v_cvt_pk_bf16_f32 %s, %s, %s" % (v(40 + d), v(XU + 2 * d), v(XU + 2 * d + 1)))
    a("buffer_store_dwordx2 v[40:41], v7, s[16:19], s31 offen")
    a("buffer_store_dwordx2 v[42:43], v7, s[16:19], s31 offen offset:512")
    a("v_mul_f32 v8, %s, %s" % (v(H), v(WU)))
    for e in range(1, 8):
        a("v_fmac_f32 v8, %s, %s" % (v(H + e), v(WU + e)))
    a("s_add_u32 s31, s31, 0x%x" % WS_H2)
    for d in range(4):
        a("v_cvt_pk_bf16_f32 %s, %s, %s" % (v(44 + d), v(H + 2 * d), v(H + 2 * d + 1)))
    a("buffer_store_dwordx2 v[44:45], v7, s[12:15], s31 offen")
    a("buffer_store_dwordx2 v[46:47], v7, s[12:15], s31 offen offset:512")
    wave_sum(a, [8])
    a("""
    v_ashrrev_i32 v9, 31, v8
    v_or_b32 v9, s34, v9
    v_xor_b32 v8, v8, v9
    v_and_b32 v8, 0xfffff800, v8
    v_or_b32 v8, s29, v8
    s_lshl_b32 s29, s29, 2
    """)
    a("s_add_u32 s29, s29, 0x%x" % WS_KEYS)
    a("""
    s_mov_b32 exec_lo, 0
    s_mov_b32 exec_hi, 0x80000000
    buffer_store_dword v8, off, s[12:15], s29
    """)
    a.label("k2_end")
    a("s_endpgm")
    return kdesc("k2_kernel", 160, 40)


def k3(a):
    kstart(a, "k3_kernel")
    a("s_cmp_ge_u32 s2, 224")
    a("s_cbranch_scc1 k3_end")
    a("s_load_dwordx2 s[12:13], s[0:1], 112")
    a("s_load_dwordx2 s[8:9], s[0:1], 56")
    a("s_load_dwordx2 s[16:17], s[0:1], 64")
    a("s_load_dwordx2 s[20:21], s[0:1], 72")
    srd(a, 12, WS_SIZE)
    srd(a, 8, 512 * 3584)
    srd(a, 16, 512 * 3584)
    srd(a, 20, 1792 * 1024)
    a("""
    s_and_b32 s3, s2, 7
    s_mul_i32 s3, s3, 28
    s_lshr_b32 s4, s2, 3
    s_add_u32 s3, s3, s4
    v_and_b32 v1, 63, v0                  ; lane
    v_lshrrev_b32 v2, 6, v0               ; wave
    v_lshlrev_b32 v3, 4, v1
    v_readfirstlane_b32 s5, v2
    v_lshl_add_u32 v4, v2, 7, v1
    v_mul_u32_u24 v4, 3584, v4
    s_lshl_b32 s6, s3, 4
    s_add_u32 s7, s6, 229376
    s_lshl_b32 s24, s5, 12
    s_mov_b32 m0, s24
    """)
    a("s_mov_b32 s25, 0x%x" % WS_KEYS)
    a("s_mov_b32 s26, 0x%x" % (WS_KEYS + 4096))
    a("s_waitcnt lgkmcnt(0)")
    K = 16
    for i in range(8):
        a("buffer_load_dwordx4 %s, v3, s[12:15], %s offen offset:%d" % (v(K + 4 * i, 4), s(25 + i // 4), 1024 * (i % 4)))
    a("""
    buffer_load_dwordx4 v4, s[8:11], s6 offen lds
    s_add_u32 m0, s24, 1024
    s_lshl_b32 s27, s3, 13
    buffer_load_dwordx4 v4, s[8:11], s7 offen lds
    s_add_u32 m0, s24, 2048
    s_add_u32 s28, s27, 4096
    buffer_load_dwordx4 v4, s[16:19], s6 offen lds
    s_add_u32 m0, s24, 3072
    v_lshlrev_b32 v5, 2, v0
    buffer_load_dwordx4 v4, s[16:19], s7 offen lds
    """)
    WD = 48
    for f in range(8):
        a("buffer_load_dword %s, v5, s[20:23], %s offen offset:%d" % (v(WD + f), s(27 + f // 4), 1024 * (f % 4)))
    a("""
    v_bfe_u32 v6, v0, 4, 2                ; q
    v_bfe_u32 v7, v0, 2, 2                ; r
    v_lshl_add_u32 v7, v6, 3, v7
    v_lshlrev_b32 v7, 4, v7
    v_and_b32 v8, 1, v0
    v_lshl_add_u32 v7, v8, 3, v7
    v_bfe_u32 v9, v0, 1, 1
    v_lshl_add_u32 v7, v9, 11, v7
    v_add_u32 v7, s24, v7
    v_lshlrev_b32 v9, 8, v2
    v_lshl_add_u32 v9, v6, 4, v9
    v_lshlrev_b32 v10, 8, v8
    v_lshl_add_u32 v10, v6, 6, v10
    v_lshl_add_u32 v10, v2, 2, v10
    v_add_u32 v10, 0x4000, v10
    v_bfe_u32 v11, v0, 3, 1
    v_lshlrev_b32 v11, 8, v11
    v_and_b32 v12, 7, v0
    v_lshl_add_u32 v11, v12, 4, v11
    v_add_u32 v11, 0x4000, v11
    v_cmp_eq_u32 s[30:31], 1, v8
    s_mov_b32 s32, 0x05040100
    s_mov_b32 s33, 0x07060302
    """)
    first = True
    for i in range(8):
        a.wait_vm_for(v(K + 4 * i, 4))
        b = K + 4 * i
        if first:
            a("v_max_u32 v12, %s, %s" % (v(b), v(b + 1)))
            a("v_min_u32 v13, %s, %s" % (v(b), v(b + 1)))
            a("v_med3_u32 v14, v12, %s, %s" % (v(b + 2), v(b + 3)))
            a("v_max3_u32 v12, v12, %s, %s" % (v(b + 2), v(b + 3)))
            a("v_max_u32 v13, v13, v14")
            first = False
        else:
            a("v_med3_u32 v14, v12, %s, %s" % (v(b), v(b + 1)))
            a("v_max3_u32 v12, v12, %s, %s" % (v(b), v(b + 1)))
            a("v_med3_u32 v15, v12, %s, %s" % (v(b + 2), v(b + 3)))
            a("v_max3_u32 v12, v12, %s, %s" % (v(b + 2), v(b + 3)))
            a("v_max3_u32 v13, v13, v14, v15")
    for mod in ("row_ror:8 row_mask:0xf bank_mask:0xf", "row_ror:4 row_mask:0xf bank_mask:0xf",
                "row_ror:2 row_mask:0xf bank_mask:0xf", "row_ror:1 row_mask:0xf bank_mask:0xf"):
        a("v_min_u32_dpp v14, v12, v12 %s" % mod)
        a("v_max_u32_dpp v13, v13, v13 %s" % mod)
        a("v_max_u32_dpp v12, v12, v12 %s" % mod)
        a("v_max_u32 v13, v13, v14")
    for r in range(4):
        a("v_readlane_b32 %s, v12, %d" % (s(36 + r), 16 * r))
        a("v_readlane_b32 %s, v13, %d" % (s(40 + r), 16 * r))
    a("""
    s_min_u32 s44, s36, s37
    s_max_u32 s36, s36, s37
    s_min_u32 s45, s38, s39
    s_max_u32 s38, s38, s39
    s_max_u32 s40, s40, s41
    s_max_u32 s42, s42, s43
    s_max_u32 s44, s44, s45
    s_max_u32 s40, s40, s42
    s_min_u32 s45, s36, s38
    s_max_u32 s36, s36, s38
    s_max_u32 s40, s40, s44
    s_max_u32 s37, s40, s45
    s_and_b32 s38, s36, 0x7ff
    s_and_b32 s39, s37, 0x7ff
    v_mov_b32 v12, s38
    v_mov_b32 v13, s39
    v_cndmask_b32 v12, v12, v13, s[30:31]
    v_lshl_add_u32 v9, v12, 10, v9
    """)
    a("s_mov_b32 s40, 0x%x" % WS_H2)
    HB = 16
    for ks in range(4):
        a("buffer_load_dwordx4 %s, v9, s[12:15], s40 offen offset:%d" % (v(HB + 4 * ks, 4), 64 * ks))
    a("s_waitcnt vmcnt(12)")
    WF = 32
    for ks in range(4):
        for hf in range(2):
            a("ds_read_b64_tr_b16 %s, v7 offset:%d" % (v(WF + 4 * ks + 2 * hf, 2), 512 * ks + 64 * hf))
    a("s_waitcnt vmcnt(4)")
    PW = 56
    for p in range(4):
        a("v_perm_b32 %s, %s, %s, s32" % (v(PW + 2 * p), v(WD + 2 * p + 1), v(WD + 2 * p)))
        a("v_perm_b32 %s, %s, %s, s33" % (v(PW + 2 * p + 1), v(WD + 2 * p + 1), v(WD + 2 * p)))
    for j in range(4):
        a("v_mov_b32 %s, 0" % v(68 + j))
    a("s_waitcnt lgkmcnt(0)")
    for ks in range(4):
        a.wait_vm_for(v(HB + 4 * ks, 4))
        a("v_mfma_f32_16x16x32_bf16 v[64:67], %s, %s, %s" % (v(WF + 4 * ks, 4), v(HB + 4 * ks, 4), "0" if ks == 0 else "v[64:67]"))
    a("""
    s_mov_b32 exec_lo, 0x00030003
    s_mov_b32 exec_hi, 0x00030003
    ds_write2_b32 v10, v64, v65 offset0:0 offset1:4
    ds_write2_b32 v10, v66, v67 offset0:8 offset1:12
    s_mov_b64 exec, -1
    s_waitcnt lgkmcnt(0)
    s_barrier
    ds_read_b128 v[16:19], v11
    ds_read_b128 v[20:23], v11 offset:128
    s_waitcnt lgkmcnt(1)
    v_add_f32 v16, v16, v17
    v_add_f32 v18, v18, v19
    v_add_f32 v16, v16, v18
    """)
    a("v_mul_f32 v17, %s, v16" % f32(-1.4426950408889634))
    a("""
    v_exp_f32 v17, v17
    s_waitcnt lgkmcnt(0)
    v_add_f32 v20, v20, v21
    v_add_f32 v17, 1.0, v17
    v_add_f32 v22, v22, v23
    v_rcp_f32 v17, v17
    v_add_f32 v20, v20, v22
    v_mul_f32 v16, v16, v20
    v_mul_f32 v16, v16, v17
    v_mov_b32_dpp v17, v16 quad_perm:[1,1,3,3] row_mask:0xf bank_mask:0xf
    v_cvt_pk_bf16_f32 v16, v16, v17
    """)
    for p in range(4):
        for r in range(2):
            for hl in range(2):
                a("v_dot2c_f32_bf16_dpp %s, v16, %s row_newbcast:%d row_mask:0xf bank_mask:0xf" % (v(68 + 2 * r + hl), v(PW + 2 * p + hl), 8 * r + 2 * p))
    a("v_lshlrev_b32 v5, 3, v0")
    a("s_lshl_b32 s41, s3, 12")
    a("s_add_u32 s41, s41, 0x%x" % WS_PART)
    a("buffer_store_dwordx2 v[68:69], v5, s[12:15], s41 offen")
    a("buffer_store_dwordx2 v[70:71], v5, s[12:15], s41 offen offset:2048")
    a("""
    s_or_b32 s42, s3, s5
    s_cmp_lg_u32 s42, 0
    s_cbranch_scc1 k3_end
    v_mov_b32 v12, s36
    v_mov_b32 v13, s37
    s_mov_b64 exec, 1
    """)
    a("s_mov_b32 s42, 0x%x" % WS_SEL)
    a("buffer_store_dwordx2 v[12:13], off, s[12:15], s42")
    a.label("k3_end")
    a("s_endpgm")
    return kdesc("k3_kernel", 72, 48)


def k4(a):
    kstart(a, "k4_kernel")
    a("s_cmp_ge_u32 s2, 256")
    a("s_cbranch_scc1 k4_end")
    a("s_load_dwordx2 s[12:13], s[0:1], 112")
    a("s_load_dwordx2 s[16:17], s[0:1], 96")
    srd(a, 12, WS_PART + 224 * 4096)
    srd(a, 16, 2048 * 1024)
    a("""
    s_and_b32 s3, s2, 7
    s_lshl_b32 s3, s3, 5
    s_lshr_b32 s4, s2, 3
    s_add_u32 s3, s3, s4
    s_lshl_b32 s4, s3, 4
    """)
    a("s_add_u32 s20, s4, 0x%x" % WS_PART)
    for i in range(1, 4):
        a("s_add_u32 %s, s20, 0x%x" % (s(20 + i), i * 64 * 4096))
    a("v_lshlrev_b32 v1, 12, v0")
    a("s_waitcnt lgkmcnt(0)")
    a("s_load_dwordx2 s[24:25], s[12:13], 0x%x" % WS_SEL)
    for i in range(4):
        a("buffer_load_dwordx4 %s, v1, s[12:15], %s offen" % (v(8 + 4 * i, 4), s(20 + i)))
    a("""
    s_and_b32 s5, s3, 127                 ; e/4
    s_lshr_b32 s6, s3, 7
    s_and_b32 s7, s5, 64
    s_lshl_b32 s7, s7, 2
    s_and_b32 s8, s5, 3
    s_lshl_b32 s8, s8, 6
    s_add_u32 s7, s7, s8
    s_and_b32 s8, s5, 60
    s_add_u32 s7, s7, s8
    s_lshl_b32 s7, s7, 2
    """)
    a("s_add_u32 s7, s7, %d" % (WS_MOD + 5 * 2048))
    a("""
    v_lshrrev_b32 v2, 4, v0
    v_lshlrev_b32 v3, 2, v2
    v_lshlrev_b32 v2, 1, v2
    buffer_load_dword v4, v3, s[12:15], s7 offen
    s_waitcnt lgkmcnt(0)
    s_cmp_eq_u32 s6, 0
    s_cselect_b32 s24, s24, s25
    s_and_b32 s25, s24, 0x7ff
    s_lshl_b32 s25, s25, 10
    s_lshl3_add_u32 s25, s5, s25
    buffer_load_ushort v5, v2, s[16:19], s25 offen
    s_and_b32 s24, s24, 0xfffff800
    s_ashr_i32 s26, s24, 31
    s_not_b32 s26, s26
    s_or_b32 s26, s26, 0x80000000
    s_xor_b32 s24, s24, s26
    """)
    a("v_mov_b32 v6, %s" % f32(-1.4426950408889634))
    a("""
    v_mul_f32 v6, s24, v6
    v_exp_f32 v6, v6
    v_add_f32 v6, 1.0, v6
    v_rcp_f32 v6, v6
    s_waitcnt vmcnt(4)
    v_pk_add_f32 v[8:9], v[8:9], v[12:13]
    v_pk_add_f32 v[10:11], v[10:11], v[14:15]
    s_waitcnt vmcnt(2)
    v_pk_add_f32 v[16:17], v[16:17], v[20:21]
    v_pk_add_f32 v[18:19], v[18:19], v[22:23]
    v_pk_add_f32 v[8:9], v[8:9], v[16:17]
    v_pk_add_f32 v[10:11], v[10:11], v[18:19]
    v_permlane32_swap_b32 v8, v10
    v_permlane32_swap_b32 v9, v11
    v_pk_add_f32 v[8:9], v[8:9], v[10:11]
    v_permlane16_swap_b32 v8, v9
    v_add_f32 v8, v8, v9
    """)
    for r in (8, 4, 2, 1):
        a("v_add_f32_dpp v8, v8, v8 row_ror:%d row_mask:0xf bank_mask:0xf" % r)
    a("""
    s_waitcnt vmcnt(0)
    v_mul_f32 v6, v6, v4
    v_lshlrev_b32 v5, 16, v5
    v_fmac_f32 v5, v8, v6
    v_cvt_pk_bf16_f32 v5, v5, v5
    s_mov_b32 exec_lo, 0x00010001
    s_mov_b32 exec_hi, 0x00010001
    buffer_store_short v5, v2, s[16:19], s25 offen
    """)
    a.label("k4_end")
    a("s_endpgm")
    return kdesc("k4_kernel", 24, 32)


def build():
    a = Asm()
    a.raw('.amdgcn_target "amdgcn-amd-amdhsa--gfx950"')
    descs = [k1(a), k2(a), k3(a), k4(a)]
    launches = """; @launch kernel=k1_kernel grid=(224,1,1) block=(256,1,1) lds=17408
; @launch kernel=k2_kernel grid=(256,1,1) block=(512,1,1) lds=28672
; @launch kernel=k3_kernel grid=(224,1,1) block=(256,1,1) lds=16896
; @launch kernel=k4_kernel grid=(256,1,1) block=(64,1,1) lds=0
"""
    return HEADER + launches + a.text() + "".join(descs)


if __name__ == "__main__":
    out = sys.argv[1] if len(sys.argv) > 1 else "cdna_kernels/%s.s" % NAME
    open(out, "w").write(build())
    print("wrote", out)
```

```python
import sys, struct
from asmlib import Asm, v, s

NAME = "adaLN_cond__spectral_fnet__moe_arch_mod__prompt"
HEADER = open("cdna_kernels/%s.s.ref" % NAME).read().split("; Override launch geometry")[0]

WS_MOD = 0x0
WS_KEYS = 0x8000
WS_SEL = 0xC000
WS_PART = 0x100000
WS_INTER = 0x200000
WS_H2 = 0x400000
WS_SIZE = 0x600000
EPS = 1e-5


def f32(x):
    return "0x%08x" % struct.unpack("<I", struct.pack("<f", x))[0]


STAMPS = "--stamps" in sys.argv
WS_STAMP = 0x600000
if STAMPS:
    WS_SIZE = 0x800000


PROBE = [int(x.split("=")[1]) for x in sys.argv if x.startswith("--probe=")]
PROBE = PROBE[0] if PROBE else None


def probe_kernel(a, nk):
    kstart(a, "kprobe_kernel")
    a("s_memrealtime s[30:31]")
    a("s_cmp_ge_u32 s2, 1")
    a("s_cbranch_scc1 kprobe_end")
    a("s_load_dwordx2 s[12:13], s[0:1], 112")
    a("s_waitcnt lgkmcnt(0)")
    a("s_load_dwordx8 s[16:23], s[12:13], 0x%x" % (WS_SEL + 64))
    a("s_waitcnt lgkmcnt(0)")
    a("s_mov_b32 %s, s30" % s(16 + nk))
    if PROBE == 0:
        a("s_mov_b32 s4, 0")
    elif PROBE <= nk:
        a("s_sub_u32 s4, %s, %s" % (s(16 + PROBE), s(16 + PROBE - 1)))
        a("s_lshl_b32 s4, s4, 1")
    else:
        a("s_sub_u32 s4, %s, s16" % s(16 + nk))
    a("s_min_u32 s4, s4, 8000")
    a("s_memrealtime s[30:31]")
    a("s_waitcnt lgkmcnt(0)")
    a.label("kprobe_loop")
    a("s_memrealtime s[32:33]")
    a("s_waitcnt lgkmcnt(0)")
    a("s_sub_u32 s5, s32, s30")
    a("s_cmp_lt_u32 s5, s4")
    a("s_cbranch_scc1 kprobe_loop")
    a.label("kprobe_end")
    a("s_endpgm")
    return kdesc("kprobe_kernel", 8, 40)


def stamp(a, i):
    if PROBE is not None and i == 0:
        a("s_memrealtime s[60:61]")
    if not STAMPS:
        return
    if i == 0:
        a("s_memrealtime s[60:61]")
        a("v_lshrrev_b32 v255, 6, v0")
        a("s_load_dwordx2 s[88:89], s[0:1], 112")
        a("s_mov_b32 s90, 0x%x" % WS_SIZE)
        a("s_mov_b32 s91, 0x20000")
        a("v_readfirstlane_b32 s92, v255")
        for k in range(1, 10):
            a("s_mov_b32 %s, 0" % s(64 + 2 * k))
    a("s_memtime %s" % s(64 + 2 * i, 2))


_pl = [0]


def stamp_end(a, kidx, last):
    if PROBE is not None:
        _pl[0] += 1
        a("s_cmp_lg_u32 s2, 0")
        a("s_cbranch_scc1 probe_skip%d" % _pl[0])
        a("s_mov_b64 s[62:63], exec")
        a("s_mov_b64 exec, 1")
        a("v_mov_b32 v1, s60")
        a("s_mov_b32 s61, 0x%x" % (WS_SEL + 64 + 4 * kidx))
        a("buffer_store_dword v1, off, s[12:15], s61")
        a("s_mov_b64 exec, s[62:63]")
        a.label("probe_skip%d" % _pl[0])
    if not STAMPS:
        return
    a("s_waitcnt vmcnt(0)")
    a("s_memtime %s" % s(64 + 2 * last, 2))
    a("s_memrealtime s[62:63]")
    a("s_mov_b64 exec, 1")
    a("s_lshl_b32 s93, s2, 3")
    a("s_add_u32 s93, s93, s92")
    a("s_lshl_b32 s93, s93, 6")
    a("s_add_u32 s93, s93, 0x%x" % (WS_STAMP + kidx * 0x20000))
    a("s_getreg_b32 s94, hwreg(HW_REG_XCC_ID)")
    a("s_waitcnt lgkmcnt(0)")
    a("v_mov_b32 v240, s60")
    a("v_mov_b32 v241, s62")
    for k in range(10):
        a("v_mov_b32 %s, %s" % (v(242 + k), s(64 + 2 * k)))
    a("v_mov_b32 v252, s94")
    for k in range(4):
        a("buffer_store_dwordx4 %s, off, s[88:91], s93 offset:%d" % (v(240 + 4 * k, 4), 16 * k))


def srd(a, base, nbytes):
    a("s_mov_b32 %s, 0x%x" % (s(base + 2), nbytes))
    a("s_mov_b32 %s, 0x20000" % s(base + 3))


def kstart(a, name):
    a.raw(".text")
    a.raw(".globl %s" % name)
    a.raw(".p2align 8")
    a.raw(".type %s,@function" % name)
    a.label(name, reset=True)


def kdesc(name, vgpr, sgpr):
    if STAMPS:
        vgpr, sgpr = 256, 100
    if PROBE is not None:
        sgpr = max(sgpr, 64)
    acc = (vgpr + 3) // 4 * 4
    return """.section .rodata,"a"
.p2align 6
.amdhsa_kernel %s
  .amdhsa_next_free_vgpr %d
  .amdhsa_next_free_sgpr %d
  .amdhsa_accum_offset %d
  .amdhsa_group_segment_fixed_size 0
  .amdhsa_kernarg_size 120
  .amdhsa_user_sgpr_count 2
  .amdhsa_user_sgpr_kernarg_segment_ptr 1
  .amdhsa_system_sgpr_workgroup_id_x 1
.end_amdhsa_kernel
""" % (name, vgpr, sgpr, acc)


def wave_sum(a, regs_):
    for mod in ("row_ror:8 row_mask:0xf bank_mask:0xf", "row_ror:4 row_mask:0xf bank_mask:0xf",
                "row_ror:2 row_mask:0xf bank_mask:0xf", "row_ror:1 row_mask:0xf bank_mask:0xf",
                "row_bcast:15 row_mask:0xa bank_mask:0xf", "row_bcast:31 row_mask:0xc bank_mask:0xf"):
        for r in regs_:
            a("v_add_f32_dpp %s, %s, %s %s" % (v(r), v(r), v(r), mod))


def k1(a):
    kstart(a, "k1_kernel")
    a("s_cmp_ge_u32 s2, 224")
    a("s_cbranch_scc1 k1_end")
    stamp(a, 0)
    a("s_load_dwordx2 s[12:13], s[0:1], 112")
    srd(a, 12, WS_SIZE)
    a("s_cmp_ge_u32 s2, 128")
    st = a.fork()
    a("s_cbranch_scc1 k1_mod")
    a("s_load_dwordx2 s[8:9], s[0:1], 0")
    srd(a, 8, 2048 * 1024)
    a("""
    s_and_b32 s3, s2, 7
    s_lshr_b32 s4, s2, 5
    s_lshl3_add_u32 s3, s4, s3            ; s2idx
    s_bfe_u32 s4, s2, 0x20003
    s_lshl_b32 s5, s3, 10
    """)
    for g in range(4):
        a("s_add_u32 s6, s4, %d" % g)
        a("s_and_b32 s6, s6, 3")
        a("s_lshl_b32 s6, s6, 8")
        a("s_add_u32 %s, s6, s5" % s(16 + g))
    a("""
    v_and_b32 v1, 15, v0                  ; m
    v_lshrrev_b32 v2, 6, v0               ; wave
    v_and_b32 v3, 0x30, v0                ; q*16
    v_lshl_add_u32 v4, v2, 4, v1          ; s1 = 16w+m
    v_lshl_or_b32 v5, v4, 15, v3
    s_waitcnt lgkmcnt(0)
    """)
    X = 16
    stamp(a, 1)
    for i in range(16):
        a("buffer_load_dwordx4 %s, v5, s[8:11], %s offen offset:%d" % (v(X + 4 * i, 4), s(16 + i // 4), 64 * (i % 4)))
    WA = 80
    a("""
    v_mov_b32 v96, 0x3f803f80
    v_mov_b32 v97, v96
    v_mov_b32 v98, v96
    v_mov_b32 v99, v96
    v_and_b32 v6, 1, v2                   ; mp
    v_lshrrev_b32 v7, 1, v1
    v_lshl_add_u32 v7, v6, 4, v7          ; slot (mt=0)
    v_and_b32 v8, 1, v1                   ; c
    v_lshl_or_b32 v9, v7, 1, v8
    v_cmp_eq_u32 vcc, 1, v9
    v_add_u32 v10, 8, v7                  ; slot (mt=1)
    v_cvt_f32_u32 v8, v8
    v_cndmask_b32 v9, v7, 32, vcc
    v_mul_f32 v8, 0.25, v8
    """.replace("0.25", f32(0.25)))
    a("v_cndmask_b32 v11, v8, 0, vcc")
    a("v_cvt_f32_u32 v9, v9")
    a("v_cvt_f32_u32 v10, v10")
    a("v_cvt_f32_u32 v12, v3")
    a("v_mul_f32 v9, %s, v9" % f32(1 / 64))
    a("v_mul_f32 v10, %s, v10" % f32(1 / 64))
    a("v_mul_f32 v12, 0.5, v12                ; 8q")
    a("v_fma_f32 v11, v9, v12, v11")
    a("v_fma_f32 v8, v10, v12, v8")
    a("v_lshlrev_b32 v13, 31, v7")
    a("v_lshrrev_b32 v14, 16, v13")
    a("v_or_b32 v13, v13, v14")
    T = 108
    for mt, (base, step) in enumerate(((11, 9), (8, 10))):
        a("v_cos_f32 %s, %s" % (v(T), v(base)))
        for j in range(1, 8):
            a("v_add_f32 %s, %s, %s" % (v(base), v(base), v(step)))
            a("v_cos_f32 %s, %s" % (v(T + j), v(base)))
        for j in range(4):
            a("v_cvt_pk_bf16_f32 %s, %s, %s" % (v(WA + 8 * mt + j), v(T + 2 * j), v(T + 2 * j + 1)))
        for j in range(4):
            a("v_xor_b32 %s, v13, %s" % (v(WA + 8 * mt + 4 + j), v(WA + 8 * mt + j)))
    a("""
    s_mov_b32 s20, 0x22222222
    s_mov_b32 s21, s20
    s_mov_b32 s22, 0x44444444
    s_mov_b32 s23, s22
    s_mov_b32 s24, 0x88888888
    s_mov_b32 s25, s24
    v_lshrrev_b32 v8, 2, v1               ; m>>2
    v_lshl_add_u32 v9, v8, 4, v1
    v_lshlrev_b32 v9, 2, v9
    v_mul_u32_u24 v10, 272, v4
    v_add_u32 v10, v10, v3
    v_lshrrev_b32 v11, 1, v3              ; 8q
    v_add_u32 v11, v11, v8
    v_mul_u32_u24 v11, 272, v11
    v_and_b32 v12, 3, v0
    v_lshl_add_u32 v11, v12, 3, v11
    v_lshrrev_b32 v12, 7, v0              ; nb
    v_lshl_add_u32 v11, v12, 7, v11
    v_lshrrev_b32 v13, 3, v3              ; 2q
    v_lshl_add_u32 v13, v6, 4, v13
    v_lshlrev_b32 v13, 16, v13
    v_lshl_add_u32 v13, v12, 8, v13
    v_lshl_add_u32 v13, v1, 4, v13
    s_lshl_b32 s5, s3, 11
    s_lshl_b32 s6, s4, 9
    s_add_u32 s5, s5, s6
    """)
    a("s_add_u32 s26, s5, 0x%x" % WS_INTER)
    a("s_add_u32 s27, s26, 0x10000")
    a("s_add_u32 s28, s26, 0x80000")
    a("s_add_u32 s29, s26, 0x90000")
    U = 108
    stamp(a, 2)
    for i in range(16):
        a("s_waitcnt vmcnt(%d)" % (15 - i))
        x = v(X + 4 * i, 4)
        if i == 0:
            stamp(a, 3)
        a("v_mfma_f32_16x16x32_bf16 v[100:103], v[96:99], %s, %s" % (x, "0" if i == 0 else "v[100:103]"))
        a("v_mfma_f32_16x16x32_bf16 v[104:107], %s, %s, %s" % (x, x, "0" if i == 0 else "v[104:107]"))
        if 4 <= i < 12:
            for d in range(2 * (i - 4), 2 * (i - 4) + 2):
                a("v_lshlrev_b32 %s, 16, %s" % (v(U + 2 * d), v(X + d)))
                a("v_and_b32 %s, 0xffff0000, %s" % (v(U + 2 * d + 1), v(X + d)))
    stamp(a, 4)
    a("v_mul_f32 v14, %s, v100                ; mean" % f32(1 / 512))
    a("v_cndmask_b32 v15, v104, v105, s[20:21]")
    a("v_cndmask_b32 v15, v15, v106, s[22:23]")
    a("v_cndmask_b32 v15, v15, v107, s[24:25]")
    a("ds_bpermute_b32 v15, v9, v15")
    a("v_mul_f32 v6, v14, v14")
    a("v_sub_f32 v6, %s, v6" % f32(EPS))
    a("s_waitcnt lgkmcnt(0)")
    a("v_fmac_f32 v6, %s, v15" % f32(1 / 512))
    a("v_rsq_f32 v6, v6")
    a("v_mul_f32 v7, v14, v6")
    for d in range(16):
        a("v_pk_fma_f32 %s, %s, v[6:7], v[6:7] op_sel:[0,0,1] op_sel_hi:[1,0,1] neg_lo:[0,0,1] neg_hi:[0,0,1]" % (v(U + 2 * d, 2), v(U + 2 * d, 2)))
        a("v_cvt_pk_bf16_f32 %s, %s, %s" % (v(X + d), v(U + 2 * d), v(U + 2 * d + 1)))
        if d % 4 == 3:
            a("ds_write_b128 v10, %s offset:%d" % (v(X + d - 3, 4), 64 * (d // 4)))
    a("s_waitcnt lgkmcnt(0)")
    stamp(a, 5)
    a("s_barrier")
    stamp(a, 6)
    B = 32
    for ks in range(2):
        for i in range(4):
            for hf in range(2):
                a("ds_read_b64_tr_b16 %s, v11 offset:%d" % (v(B + 16 * ks + 4 * i + 2 * hf, 2), ks * 32 * 272 + hf * 4 * 272 + i * 32))
    ACC = 108
    for ks in range(2):
        for i in range(4):
            a.wait_lg_for(v(B + 16 * ks + 4 * i, 4))
            for mt in range(2):
                acc = v(ACC + 16 * mt + 4 * i, 4)
                a("v_mfma_f32_16x16x32_bf16 %s, %s, %s, %s" % (acc, v(WA + 8 * mt + 4 * ks, 4), v(B + 16 * ks + 4 * i, 4), "0" if ks == 0 else acc))
    O = 64
    for i in range(4):
        for mt in range(2):
            for p in range(2):
                a("v_cvt_pk_bf16_f32 %s, %s, %s" % (v(O + 8 * mt + 4 * p + i), v(ACC + 16 * mt + 4 * i + 2 * p), v(ACC + 16 * mt + 4 * i + 2 * p + 1)))
    for mt in range(2):
        for p in range(2):
            a("buffer_store_dwordx4 %s, v13, s[12:15], %s offen" % (v(O + 8 * mt + 4 * p, 4), s(26 + 2 * mt + p)))
    stamp(a, 7)
    stamp_end(a, 0, 8)
    a("s_endpgm")
    a.label("k1_mod")
    a.join(st)
    a("s_load_dwordx2 s[8:9], s[0:1], 88")
    a("s_load_dwordx2 s[16:17], s[0:1], 80")
    srd(a, 8, 512 * 6144)
    srd(a, 16, 1024)
    a("""
    s_sub_u32 s3, s2, 128
    s_and_b32 s4, s3, 7
    s_lshr_b32 s5, s3, 4
    s_lshl3_add_u32 s4, s5, s4
    s_bfe_u32 s5, s3, 0x10003
    s_lshl1_add_u32 s3, s4, s5
    s_lshl_b32 s20, s3, 6
    """)
    for i in range(1, 8):
        a("s_add_u32 %s, s20, %d" % (s(20 + i), 6144 * i))
    a("""
    v_lshrrev_b32 v1, 2, v0
    v_and_b32 v2, 3, v0
    v_mul_u32_u24 v3, 0xc000, v1
    v_lshl_add_u32 v3, v2, 4, v3
    v_lshlrev_b32 v4, 2, v0
    s_waitcnt lgkmcnt(0)
    buffer_load_dword v5, v4, s[16:19], 0 offen
    """)
    W = 16
    stamp(a, 1)
    for i in range(8):
        a("buffer_load_dwordx4 %s, v3, s[8:11], %s offen" % (v(W + 4 * i, 4), s(20 + i)))
    a("""
    s_mov_b32 s28, 0x05040100
    s_mov_b32 s29, 0x07060302
    s_lshr_b32 s4, s3, 4
    s_and_b32 s5, s3, 15
    s_lshl_b32 s5, s5, 5
    v_and_b32 v6, 31, v0
    v_add_u32 v7, s5, v6                  ; e
    v_and_b32 v8, 0x1c0, v7
    v_and_b32 v9, 15, v7
    v_lshl_add_u32 v8, v9, 2, v8
    v_bfe_u32 v9, v7, 4, 2
    v_add_u32 v8, v8, v9
    v_and_b32 v9, 0x103, v7
    v_bfe_u32 v10, v7, 2, 2
    v_lshl_add_u32 v9, v10, 6, v9
    v_bfe_u32 v10, v7, 4, 4
    v_lshl_add_u32 v9, v10, 2, v9
    s_cmp_lt_u32 s4, 2
    s_cselect_b64 s[30:31], -1, 0
    v_cndmask_b32 v8, v9, v8, s[30:31]
    v_lshlrev_b32 v8, 2, v8
    s_lshl_b32 s6, s4, 11
    s_cmp_eq_u32 s4, 1
    s_cselect_b32 s7, 1.0, 0
    s_cmp_eq_u32 s4, 4
    s_cselect_b32 s7, 1.0, s7
    v_lshlrev_b32 v6, 2, v6
    v_lshrrev_b32 v9, 6, v0
    v_lshlrev_b32 v9, 7, v9
    v_lshl_add_u32 v9, v2, 5, v9
    v_bfe_u32 v10, v0, 4, 2
    v_lshl_add_u32 v9, v10, 3, v9
    """)
    for j in range(8):
        a("v_mov_b32 %s, 0" % v(48 + j))
    stamp(a, 2)
    a("s_waitcnt vmcnt(8)")
    stamp(a, 3)
    a("v_lshlrev_b32 v10, 16, v5")
    a("v_and_b32 v11, 0xffff0000, v5")
    a("v_mul_f32 v12, %s, v10" % f32(-1.4426950408889634))
    a("v_mul_f32 v13, %s, v11" % f32(-1.4426950408889634))
    a("""
    v_exp_f32 v12, v12
    v_exp_f32 v13, v13
    v_add_f32 v12, 1.0, v12
    v_add_f32 v13, 1.0, v13
    v_rcp_f32 v12, v12
    v_rcp_f32 v13, v13
    v_mul_f32 v10, v10, v12
    v_mul_f32 v11, v11, v13
    v_cvt_pk_bf16_f32 v5, v10, v11
    """)
    for p in range(4):
        a("v_mov_b32_dpp %s, v5 quad_perm:[%d,%d,%d,%d] row_mask:0xf bank_mask:0xf" % (v(12 + p), p, p, p, p))
    for p in range(4):
        a("s_waitcnt vmcnt(%d)" % (6 - 2 * p))
        for jj in range(4):
            a("v_perm_b32 %s, %s, %s, s28" % (v(56 + 2 * jj), v(W + 8 * p + 4 + jj), v(W + 8 * p + jj)))
            a("v_perm_b32 %s, %s, %s, s29" % (v(57 + 2 * jj), v(W + 8 * p + 4 + jj), v(W + 8 * p + jj)))
        for j in range(8):
            a("v_dot2c_f32_bf16 %s, %s, %s" % (v(48 + j), v(12 + p), v(56 + j)))
    stamp(a, 4)
    for j in range(4):
        a("v_permlane32_swap_b32 %s, %s" % (v(48 + j), v(52 + j)))
    for j in range(4):
        a("v_add_f32 %s, %s, %s" % (v(48 + j), v(48 + j), v(52 + j)))
    for j in range(2):
        a("v_permlane16_swap_b32 %s, %s" % (v(48 + j), v(50 + j)))
    for j in range(2):
        a("v_add_f32 %s, %s, %s" % (v(48 + j), v(48 + j), v(50 + j)))
    for r in (8, 4):
        for j in range(2):
            a("v_add_f32_dpp %s, %s, %s row_ror:%d row_mask:0xf bank_mask:0xf" % (v(48 + j), v(48 + j), v(48 + j), r))
    a("""
    s_mov_b32 exec_lo, 0x000f000f
    s_mov_b32 exec_hi, 0x000f000f
    ds_write_b64 v9, v[48:49]
    s_mov_b64 exec, -1
    v_cmp_gt_u32 vcc, 32, v0
    s_waitcnt lgkmcnt(0)
    s_barrier
    s_and_saveexec_b64 s[32:33], vcc
    s_cbranch_execz k1_end
    ds_read2_b32 v[48:49], v6 offset0:0 offset1:32
    ds_read2_b32 v[50:51], v6 offset0:64 offset1:96
    s_waitcnt lgkmcnt(0)
    v_add_f32 v48, v48, v49
    v_add_f32 v50, v50, v51
    v_add_f32 v48, v48, v50
    v_cvt_pk_bf16_f32 v48, v48, v48
    v_and_b32 v48, 0xffff0000, v48
    v_add_f32 v48, s7, v48
    v_cvt_pk_bf16_f32 v48, v48, v48
    v_and_b32 v48, 0xffff0000, v48
    buffer_store_dword v48, v8, s[12:15], s6 offen
    """)
    stamp(a, 7)
    stamp_end(a, 0, 8)
    a.label("k1_end")
    a("s_endpgm")
    return kdesc("k1_kernel", 140, 40)


LDS_VEC = 20480


def k2(a):
    kstart(a, "k2_kernel")
    a("s_cmp_ge_u32 s2, 256")
    a("s_cbranch_scc1 k2_end")
    stamp(a, 0)
    a("s_load_dwordx2 s[12:13], s[0:1], 112")
    a("s_load_dwordx2 s[8:9], s[0:1], 0")
    a("s_load_dwordx2 s[16:17], s[0:1], 96")
    a("s_load_dwordx2 s[20:21], s[0:1], 48")
    srd(a, 12, WS_SIZE)
    a("""
    s_and_b32 s3, s2, 7
    s_lshr_b32 s4, s2, 6
    s_lshl3_add_u32 s3, s4, s3            ; slot
    s_lshl_b32 s24, s3, 16
    """)
    a("s_add_u32 s24, s24, 0x%x" % WS_INTER)
    a("""
    s_add_u32 s25, s24, 0x1000
    s_add_u32 s26, s24, 0x8000
    s_add_u32 s27, s24, 0x9000
    v_and_b32 v1, 15, v0                  ; n / m
    v_bfe_u32 v2, v0, 4, 2                ; q
    v_lshrrev_b32 v3, 6, v0               ; wave
    v_lshlrev_b32 v4, 4, v1
    v_lshl_add_u32 v4, v3, 8, v4          ; w*256 + n*16
    v_lshl_add_u32 v5, v2, 13, v4
    v_readfirstlane_b32 s28, v3
    s_waitcnt lgkmcnt(0)
    """)
    L = 16
    stamp(a, 1)
    for ks in range(2):
        for r in range(4):
            a("buffer_load_dwordx4 %s, v5, s[12:15], %s offen offset:%d" % (v(L + 16 * ks + 4 * r, 4), s(24 + 2 * ks + r // 2), 2048 * (r % 2)))
    srd(a, 8, 2048 * 1024)
    srd(a, 16, 2048 * 1024)
    srd(a, 20, 1024)
    a("buffer_load_dwordx4 v[48:51], v4, s[12:15], 0 offen offset:%d   ; 1+ca" % (WS_MOD + 2048))
    a("buffer_load_dwordx4 v[52:55], v4, s[12:15], 0 offen offset:%d   ; sa" % WS_MOD)
    a("""
    s_bfe_u32 s4, s2, 0x10003             ; mirror
    s_bfe_u32 s5, s2, 0x20004             ; group of 8 output rows
    s_sub_u32 s6, 64, s3
    s_cmp_eq_u32 s3, 0
    s_cselect_b32 s6, 32, s6
    s_cmp_eq_u32 s4, 0
    s_cselect_b32 s6, s3, s6              ; k1
    s_cselect_b32 s7, %s, %s
    s_cselect_b32 s30, 0x0000ffff, 0xffff0000
    s_cmp_eq_u32 s3, 0
    s_cselect_b32 s7, 0, s7               ; psi
    s_lshl_b32 s5, s5, 9
    s_add_u32 s6, s6, s5                  ; first row
    s_lshl_b32 s29, s28, 6
    s_add_u32 s29, s29, s6                ; this wave's row
    s_lshl_b32 s31, s29, 10               ; row byte offset
    s_lshl_b32 s32, s28, 10
    """.replace("s_cselect_b32 s7, %s, %s", "s_mov_b32 s7, %s\ns_cselect_b32 s7, %s, s7" % (f32(0.25), f32(-0.25)))
       .replace("s_cselect_b32 s30, 0x0000ffff, 0xffff0000", "s_mov_b32 s30, 0xffff0000\ns_cselect_b32 s30, 0x0000ffff, s30"))
    a("s_add_u32 s33, s32, %d" % (WS_MOD + 4096))
    a("s_add_u32 s32, s32, %d" % LDS_VEC)
    a("""
    s_mov_b32 m0, s32
    v_and_b32 v6, 63, v0
    v_lshlrev_b32 v6, 4, v6               ; lane*16
    v_lshlrev_b32 v7, 5, v1
    v_lshl_add_u32 v7, v2, 3, v7          ; 32n + 8q
    buffer_load_dwordx4 v6, s[12:15], s33 offen lds
    buffer_load_dwordx2 v[56:57], v7, s[8:11], s31 offen
    buffer_load_dwordx2 v[58:59], v7, s[8:11], s31 offen offset:512
    buffer_load_dwordx2 v[60:61], v7, s[20:23], 0 offen
    buffer_load_dwordx2 v[62:63], v7, s[20:23], 0 offen offset:512
    """)
    SA = 64
    a("""
    v_lshrrev_b32 v8, 1, v1
    v_lshlrev_b32 v8, 6, v8
    v_add_u32 v8, s6, v8
    v_cvt_f32_u32 v8, v8
    v_and_b32 v9, 1, v1
    v_cvt_f32_u32 v10, v9
    v_cvt_f32_u32 v11, v2
    """)
    a("v_mul_f32 v8, %s, v8                   ; step" % f32(1 / 2048))
    a("v_mul_f32 v10, %s, v10" % f32(0.25))
    a("v_mul_f32 v11, 4.0, v11                ; 4q")
    a("v_fmac_f32 v10, v8, v11")
    for ks in range(2):
        for r in range(4):
            if r:
                a("v_add_f32 v10, v10, v8")
            elif ks:
                a("v_fmac_f32 v10, %s, v8" % f32(13.0))
            a("v_add_f32 v12, s7, v10")
            a("v_cos_f32 v13, v10")
            a("v_cos_f32 v12, v12")
            a("v_cvt_pk_bf16_f32 %s, v13, v12" % v(SA + 4 * ks + r))
    a("s_cmp_lg_u32 s3, 0")
    a("s_cbranch_scc1 k2_nomask")
    for i in range(8):
        a("v_and_b32 %s, s30, %s" % (v(SA + i), v(SA + i)))
    a.label("k2_nomask")
    FR, FI, TC, TS, G = 72, 76, 80, 88, 96
    a("v_cvt_f32_u32 v8, v1")
    a("v_mul_f32 v8, %s, v8                   ; n/512" % f32(1 / 512))
    a("v_mul_f32 v10, v8, v11")
    a("v_mul_f32 v11, %s, v8                  ; n/32" % f32(16.0))
    for j in range(4):
        if j:
            a("v_add_f32 v10, v10, v8")
        a("v_mul_f32 v12, %s, v10" % f32(32.0))
        a("v_mul_f32 v13, %s, v10" % f32(16.0))
        a("v_add_f32 v14, v10, v11")
        a("v_cos_f32 %s, v10" % v(TC + j))
        a("v_sin_f32 %s, v10" % v(TS + j))
        a("v_cos_f32 v15, v12")
        a("v_sin_f32 v12, v12")
        a("v_cos_f32 %s, v14" % v(TC + 4 + j))
        a("v_sin_f32 %s, v14" % v(TS + 4 + j))
        a("v_cos_f32 %s, v13" % v(112 + j))
        a("v_sin_f32 %s, v13" % v(116 + j))
        a("v_cvt_pk_bf16_f32 %s, v15, v12" % v(FR + j))
        a("v_cvt_pk_bf16_f32 %s, -v12, v15" % v(FI + j))
    for j in range(4):
        a("v_cvt_pk_bf16_f32 %s, %s, %s" % (v(G + j), v(112 + 2 * j), v(113 + 2 * j)))
    a("v_lshlrev_b32 v12, 31, v9")
    a("v_lshrrev_b32 v13, 16, v12")
    a("v_or_b32 v12, v12, v13")
    a("s_mov_b32 s34, 0x80000000")
    for j in range(4):
        a("v_xor_b32 %s, s34, %s" % (v(G + 4 + j), v(G + j)))
        a("v_xor_b32 %s, v12, %s" % (v(G + 8 + j), v(G + j)))
        a("v_xor_b32 %s, s34, %s" % (v(G + 12 + j), v(G + 8 + j)))
    a("""
    v_mul_u32_u24 v8, 80, v1
    v_mul_u32_u24 v9, 5120, v2
    v_lshl_add_u32 v9, v3, 3, v9
    v_add_u32 v9, v9, v8
    v_mul_u32_u24 v10, 2560, v3
    v_lshl_add_u32 v10, v2, 4, v10
    v_add_u32 v10, v10, v8
    v_or_b32 v11, s6, v2
    v_cmp_eq_u32 vcc, 0, v11
    v_mov_b32 v11, 0x45000000
    v_cndmask_b32 v11, 0, v11, vcc
    """)
    a("v_add_u32 v6, %d, v6" % LDS_VEC)
    ACC = 112
    stamp(a, 2)
    for ks in range(2):
        a.wait_vm_for(v(L + 16 * ks, 16))
        stamp(a, 3 + ks)
        for r in range(4):
            for i in range(r + 1, 4):
                a("v_swap_b32 %s, %s" % (v(L + 16 * ks + 4 * r + i), v(L + 16 * ks + 4 * i + r)))
        for i in range(4):
            acc = v(ACC + 4 * i, 4)
            a("v_mfma_f32_16x16x32_bf16 %s, %s, %s, %s" % (acc, v(SA + 4 * ks, 4), v(L + 16 * ks + 4 * i, 4), "0" if ks == 0 else acc))
    a.wait_vm_for("v[48:55]")
    for i in range(4):
        a("v_mul_f32 %s, v11, %s" % (v(52 + i), v(52 + i)))
    P = 16
    for i in range(4):
        c = ACC + 4 * i
        a("v_fma_f32 %s, %s, %s, %s" % (v(c), v(c), v(48 + i), v(52 + i)))
        for j in range(1, 4):
            a("v_mul_f32 %s, %s, %s" % (v(c + j), v(c + j), v(48 + i)))
        for tt in range(2):
            a("v_cvt_pk_bf16_f32 %s, %s, %s" % (v(P + 4 * tt + 2 * (i % 2) + i // 2), v(c + 2 * tt), v(c + 2 * tt + 1)))
    for tt in range(2):
        for h in range(2):
            a("ds_write_b64 v9, %s offset:%d" % (v(P + 4 * tt + 2 * h, 2), tt * 2560 + h * 1280))
    a("s_waitcnt vmcnt(4) lgkmcnt(0)")
    stamp(a, 5)
    a("s_barrier")
    stamp(a, 6)
    D = 24
    a("ds_read_b128 %s, v10" % v(D, 4))
    a("ds_read_b128 %s, v10 offset:1280" % v(D + 4, 4))
    VEC = 128
    for k in range(4):
        for g in range(2):
            a("ds_read_b128 %s, v6 offset:%d" % (v(VEC + 8 * k + 4 * g, 4), 2048 * k + 1024 * g))
    BR, BI = 32, 40
    for h in range(2):
        a.wait_lg_for(v(D + 4 * h, 4))
        a("v_mfma_f32_16x16x32_bf16 %s, %s, %s, 0" % (v(BR + 4 * h, 4), v(D + 4 * h, 4), v(FR, 4)))
        a("v_mfma_f32_16x16x32_bf16 %s, %s, %s, 0" % (v(BI + 4 * h, 4), v(D + 4 * h, 4), v(FI, 4)))
    a("s_waitcnt vmcnt(0)")
    XU, WU = 112, 120
    for d in range(4):
        a("v_lshlrev_b32 %s, 16, %s" % (v(XU + 2 * d), v(56 + d)))
        a("v_and_b32 %s, 0xffff0000, %s" % (v(XU + 2 * d + 1), v(56 + d)))
    A2 = 16
    Y = 64
    for h in range(2):
        for j in range(4):
            br, bi, tc, ts = v(BR + 4 * h + j), v(BI + 4 * h + j), v(TC + 4 * h + j), v(TS + 4 * h + j)
            a("v_mul_f32 %s, %s, %s" % (v(48 + j), br, tc))
            a("v_mul_f32 %s, %s, %s" % (v(52 + j), bi, tc))
            a("v_fmac_f32 %s, %s, %s" % (v(48 + j), bi, ts))
            a("v_fma_f32 %s, -%s, %s, %s" % (v(52 + j), br, ts, v(52 + j)))
        for k in range(4):
            a("v_cvt_pk_bf16_f32 %s, %s, %s" % (v(A2 + 4 * h + k), v(48 + 2 * k), v(49 + 2 * k)))
        for g in range(2):
            y = v(Y + 4 * g, 4)
            a("v_mfma_f32_16x16x32_bf16 %s, %s, %s, %s" % (y, v(A2 + 4 * h, 4), v(G + 8 * h + 4 * g, 4), "0" if h == 0 else y))
    for d in range(4):
        a("v_lshlrev_b32 %s, 16, %s" % (v(WU + 2 * d), v(60 + d)))
        a("v_and_b32 %s, 0xffff0000, %s" % (v(WU + 2 * d + 1), v(60 + d)))
    a("s_waitcnt lgkmcnt(0)")
    stamp(a, 7)
    GA, SB, CB, GB = VEC, VEC + 8, VEC + 16, VEC + 24
    for e in range(8):
        a("v_fmac_f32 %s, %s, %s" % (v(XU + e), v(GA + e), v(Y + e)))
    a("v_add_f32 v8, %s, %s" % (v(XU), v(XU + 1)))
    a("v_mul_f32 v9, %s, %s" % (v(XU), v(XU)))
    a("v_fmac_f32 v9, %s, %s" % (v(XU + 1), v(XU + 1)))
    for e in range(2, 8):
        a("v_add_f32 v8, v8, %s" % v(XU + e))
        a("v_fmac_f32 v9, %s, %s" % (v(XU + e), v(XU + e)))
    wave_sum(a, [8, 9])
    a("v_readlane_b32 s36, v8, 63")
    a("v_readlane_b32 s37, v9, 63")
    a("v_mov_b32 v10, %s" % f32(1 / 512))
    a("v_mul_f32 v8, s36, v10                 ; mean")
    a("v_mul_f32 v9, v8, v8")
    a("v_sub_f32 v9, %s, v9" % f32(EPS))
    a("v_fmac_f32 v9, s37, v10")
    a("v_rsq_f32 v9, v9")
    a("v_mul_f32 v8, v8, v9")
    H = 32
    for e in range(8):
        a("v_fma_f32 %s, %s, v9, -v8" % (v(H + e), v(XU + e)))
    for e in range(8):
        a("v_fma_f32 %s, %s, %s, %s" % (v(H + e), v(H + e), v(CB + e), v(SB + e)))
    for e in range(8):
        a("v_fmac_f32 %s, %s, %s" % (v(XU + e), v(GB + e), v(H + e)))
    for d in range(4):
        a("v_cvt_pk_bf16_f32 %s, %s, %s" % (v(40 + d), v(XU + 2 * d), v(XU + 2 * d + 1)))
    a("buffer_store_dwordx2 v[40:41], v7, s[16:19], s31 offen")
    a("buffer_store_dwordx2 v[42:43], v7, s[16:19], s31 offen offset:512")
    a("v_mul_f32 v8, %s, %s" % (v(H), v(WU)))
    for e in range(1, 8):
        a("v_fmac_f32 v8, %s, %s" % (v(H + e), v(WU + e)))
    a("s_add_u32 s31, s31, 0x%x" % WS_H2)
    for d in range(4):
        a("v_cvt_pk_bf16_f32 %s, %s, %s" % (v(44 + d), v(H + 2 * d), v(H + 2 * d + 1)))
    a("buffer_store_dwordx2 v[44:45], v7, s[12:15], s31 offen")
    a("buffer_store_dwordx2 v[46:47], v7, s[12:15], s31 offen offset:512")
    wave_sum(a, [8])
    a("""
    v_ashrrev_i32 v9, 31, v8
    v_or_b32 v9, s34, v9
    v_xor_b32 v8, v8, v9
    v_and_b32 v8, 0xfffff800, v8
    v_or_b32 v8, s29, v8
    s_lshl_b32 s29, s29, 2
    """)
    a("s_add_u32 s29, s29, 0x%x" % WS_KEYS)
    a("""
    s_mov_b32 exec_lo, 0
    s_mov_b32 exec_hi, 0x80000000
    buffer_store_dword v8, off, s[12:15], s29
    """)
    stamp(a, 8)
    stamp_end(a, 1, 9)
    a.label("k2_end")
    a("s_endpgm")
    return kdesc("k2_kernel", 160, 40)


def k3(a):
    kstart(a, "k3_kernel")
    a("s_cmp_ge_u32 s2, 224")
    a("s_cbranch_scc1 k3_end")
    stamp(a, 0)
    a("s_load_dwordx2 s[12:13], s[0:1], 112")
    a("s_load_dwordx2 s[8:9], s[0:1], 56")
    a("s_load_dwordx2 s[16:17], s[0:1], 64")
    a("s_load_dwordx2 s[20:21], s[0:1], 72")
    srd(a, 12, WS_SIZE)
    srd(a, 8, 512 * 3584)
    srd(a, 16, 512 * 3584)
    srd(a, 20, 1792 * 1024)
    a("""
    s_and_b32 s3, s2, 7
    s_mul_i32 s3, s3, 28
    s_lshr_b32 s4, s2, 3
    s_add_u32 s3, s3, s4
    v_and_b32 v1, 63, v0                  ; lane
    v_lshrrev_b32 v2, 6, v0               ; wave
    v_lshlrev_b32 v3, 4, v1
    v_readfirstlane_b32 s5, v2
    v_lshl_add_u32 v4, v2, 7, v1
    v_mul_u32_u24 v4, 3584, v4
    s_lshl_b32 s6, s3, 4
    s_add_u32 s7, s6, 229376
    s_lshl_b32 s24, s5, 12
    s_mov_b32 m0, s24
    """)
    a("s_mov_b32 s25, 0x%x" % WS_KEYS)
    a("s_mov_b32 s26, 0x%x" % (WS_KEYS + 4096))
    a("s_waitcnt lgkmcnt(0)")
    K = 16
    stamp(a, 1)
    for i in range(8):
        a("buffer_load_dwordx4 %s, v3, s[12:15], %s offen offset:%d" % (v(K + 4 * i, 4), s(25 + i // 4), 1024 * (i % 4)))
    a("""
    buffer_load_dwordx4 v4, s[8:11], s6 offen lds
    s_add_u32 m0, s24, 1024
    s_lshl_b32 s27, s3, 13
    buffer_load_dwordx4 v4, s[8:11], s7 offen lds
    s_add_u32 m0, s24, 2048
    s_add_u32 s28, s27, 4096
    buffer_load_dwordx4 v4, s[16:19], s6 offen lds
    s_add_u32 m0, s24, 3072
    v_lshlrev_b32 v5, 2, v0
    buffer_load_dwordx4 v4, s[16:19], s7 offen lds
    """)
    WD = 48
    for f in range(8):
        a("buffer_load_dword %s, v5, s[20:23], %s offen offset:%d" % (v(WD + f), s(27 + f // 4), 1024 * (f % 4)))
    a("""
    v_bfe_u32 v6, v0, 4, 2                ; q
    v_bfe_u32 v7, v0, 2, 2                ; r
    v_lshl_add_u32 v7, v6, 3, v7
    v_lshlrev_b32 v7, 4, v7
    v_and_b32 v8, 1, v0
    v_lshl_add_u32 v7, v8, 3, v7
    v_bfe_u32 v9, v0, 1, 1
    v_lshl_add_u32 v7, v9, 11, v7
    v_add_u32 v7, s24, v7
    v_lshlrev_b32 v9, 8, v2
    v_lshl_add_u32 v9, v6, 4, v9
    v_lshlrev_b32 v10, 8, v8
    v_lshl_add_u32 v10, v6, 6, v10
    v_lshl_add_u32 v10, v2, 2, v10
    v_add_u32 v10, 0x4000, v10
    v_bfe_u32 v11, v0, 3, 1
    v_lshlrev_b32 v11, 8, v11
    v_and_b32 v12, 7, v0
    v_lshl_add_u32 v11, v12, 4, v11
    v_add_u32 v11, 0x4000, v11
    v_cmp_eq_u32 s[30:31], 1, v8
    s_mov_b32 s32, 0x05040100
    s_mov_b32 s33, 0x07060302
    """)
    first = True
    for i in range(8):
        a.wait_vm_for(v(K + 4 * i, 4))
        b = K + 4 * i
        if i == 0:
            stamp(a, 2)
        if first:
            a("v_max_u32 v12, %s, %s" % (v(b), v(b + 1)))
            a("v_min_u32 v13, %s, %s" % (v(b), v(b + 1)))
            a("v_med3_u32 v14, v12, %s, %s" % (v(b + 2), v(b + 3)))
            a("v_max3_u32 v12, v12, %s, %s" % (v(b + 2), v(b + 3)))
            a("v_max_u32 v13, v13, v14")
            first = False
        else:
            a("v_med3_u32 v14, v12, %s, %s" % (v(b), v(b + 1)))
            a("v_max3_u32 v12, v12, %s, %s" % (v(b), v(b + 1)))
            a("v_med3_u32 v15, v12, %s, %s" % (v(b + 2), v(b + 3)))
            a("v_max3_u32 v12, v12, %s, %s" % (v(b + 2), v(b + 3)))
            a("v_max3_u32 v13, v13, v14, v15")
    for mod in ("row_ror:8 row_mask:0xf bank_mask:0xf", "row_ror:4 row_mask:0xf bank_mask:0xf",
                "row_ror:2 row_mask:0xf bank_mask:0xf", "row_ror:1 row_mask:0xf bank_mask:0xf"):
        a("v_min_u32_dpp v14, v12, v12 %s" % mod)
        a("v_max_u32_dpp v13, v13, v13 %s" % mod)
        a("v_max_u32_dpp v12, v12, v12 %s" % mod)
        a("v_max_u32 v13, v13, v14")
    for r in range(4):
        a("v_readlane_b32 %s, v12, %d" % (s(36 + r), 16 * r))
        a("v_readlane_b32 %s, v13, %d" % (s(40 + r), 16 * r))
    a("""
    s_min_u32 s44, s36, s37
    s_max_u32 s36, s36, s37
    s_min_u32 s45, s38, s39
    s_max_u32 s38, s38, s39
    s_max_u32 s40, s40, s41
    s_max_u32 s42, s42, s43
    s_max_u32 s44, s44, s45
    s_max_u32 s40, s40, s42
    s_min_u32 s45, s36, s38
    s_max_u32 s36, s36, s38
    s_max_u32 s40, s40, s44
    s_max_u32 s37, s40, s45
    s_and_b32 s38, s36, 0x7ff
    s_and_b32 s39, s37, 0x7ff
    v_mov_b32 v12, s38
    v_mov_b32 v13, s39
    v_cndmask_b32 v12, v12, v13, s[30:31]
    v_lshl_add_u32 v9, v12, 10, v9
    """)
    a("s_mov_b32 s40, 0x%x" % WS_H2)
    HB = 16
    stamp(a, 3)
    for ks in range(4):
        a("buffer_load_dwordx4 %s, v9, s[12:15], s40 offen offset:%d" % (v(HB + 4 * ks, 4), 64 * ks))
    a("s_waitcnt vmcnt(12)")
    WF = 32
    stamp(a, 4)
    for ks in range(4):
        for hf in range(2):
            a("ds_read_b64_tr_b16 %s, v7 offset:%d" % (v(WF + 4 * ks + 2 * hf, 2), 512 * ks + 64 * hf))
    a("s_waitcnt vmcnt(4)")
    PW = 56
    stamp(a, 5)
    for p in range(4):
        a("v_perm_b32 %s, %s, %s, s32" % (v(PW + 2 * p), v(WD + 2 * p + 1), v(WD + 2 * p)))
        a("v_perm_b32 %s, %s, %s, s33" % (v(PW + 2 * p + 1), v(WD + 2 * p + 1), v(WD + 2 * p)))
    for j in range(4):
        a("v_mov_b32 %s, 0" % v(68 + j))
    a("s_waitcnt lgkmcnt(0)")
    for ks in range(4):
        a.wait_vm_for(v(HB + 4 * ks, 4))
        a("v_mfma_f32_16x16x32_bf16 v[64:67], %s, %s, %s" % (v(WF + 4 * ks, 4), v(HB + 4 * ks, 4), "0" if ks == 0 else "v[64:67]"))
    stamp(a, 6)
    a("""
    s_mov_b32 exec_lo, 0x00030003
    s_mov_b32 exec_hi, 0x00030003
    ds_write2_b32 v10, v64, v65 offset0:0 offset1:4
    ds_write2_b32 v10, v66, v67 offset0:8 offset1:12
    s_mov_b64 exec, -1
    s_waitcnt lgkmcnt(0)
    s_barrier
    ds_read_b128 v[16:19], v11
    ds_read_b128 v[20:23], v11 offset:128
    s_waitcnt lgkmcnt(1)
    v_add_f32 v16, v16, v17
    v_add_f32 v18, v18, v19
    v_add_f32 v16, v16, v18
    """)
    a("v_mul_f32 v17, %s, v16" % f32(-1.4426950408889634))
    a("""
    v_exp_f32 v17, v17
    s_waitcnt lgkmcnt(0)
    v_add_f32 v20, v20, v21
    v_add_f32 v17, 1.0, v17
    v_add_f32 v22, v22, v23
    v_rcp_f32 v17, v17
    v_add_f32 v20, v20, v22
    v_mul_f32 v16, v16, v20
    v_mul_f32 v16, v16, v17
    v_mov_b32_dpp v17, v16 quad_perm:[1,1,3,3] row_mask:0xf bank_mask:0xf
    v_cvt_pk_bf16_f32 v16, v16, v17
    """)
    for p in range(4):
        for r in range(2):
            for hl in range(2):
                a("v_dot2c_f32_bf16_dpp %s, v16, %s row_newbcast:%d row_mask:0xf bank_mask:0xf" % (v(68 + 2 * r + hl), v(PW + 2 * p + hl), 8 * r + 2 * p))
    a("v_lshlrev_b32 v5, 3, v0")
    a("s_lshl_b32 s41, s3, 12")
    a("s_add_u32 s41, s41, 0x%x" % WS_PART)
    a("buffer_store_dwordx2 v[68:69], v5, s[12:15], s41 offen")
    a("buffer_store_dwordx2 v[70:71], v5, s[12:15], s41 offen offset:2048")
    stamp(a, 7)
    stamp_end(a, 2, 8)
    a("""
    s_or_b32 s42, s3, s5
    s_cmp_lg_u32 s42, 0
    s_cbranch_scc1 k3_end
    v_mov_b32 v12, s36
    v_mov_b32 v13, s37
    s_mov_b64 exec, 1
    """)
    a("s_mov_b32 s42, 0x%x" % WS_SEL)
    a("buffer_store_dwordx2 v[12:13], off, s[12:15], s42")
    a.label("k3_end")
    a("s_endpgm")
    return kdesc("k3_kernel", 72, 48)


def k4(a):
    kstart(a, "k4_kernel")
    a("s_cmp_ge_u32 s2, 256")
    a("s_cbranch_scc1 k4_end")
    stamp(a, 0)
    a("s_load_dwordx2 s[12:13], s[0:1], 112")
    a("s_load_dwordx2 s[16:17], s[0:1], 96")
    srd(a, 12, WS_PART + 224 * 4096)
    srd(a, 16, 2048 * 1024)
    a("""
    s_and_b32 s3, s2, 7
    s_lshl_b32 s3, s3, 5
    s_lshr_b32 s4, s2, 3
    s_add_u32 s3, s3, s4
    s_lshl_b32 s4, s3, 4
    """)
    a("s_add_u32 s20, s4, 0x%x" % WS_PART)
    for i in range(1, 4):
        a("s_add_u32 %s, s20, 0x%x" % (s(20 + i), i * 64 * 4096))
    a("v_lshlrev_b32 v1, 12, v0")
    a("s_waitcnt lgkmcnt(0)")
    stamp(a, 1)
    a("s_load_dwordx2 s[24:25], s[12:13], 0x%x" % WS_SEL)
    for i in range(4):
        a("buffer_load_dwordx4 %s, v1, s[12:15], %s offen" % (v(8 + 4 * i, 4), s(20 + i)))
    a("""
    s_and_b32 s5, s3, 127                 ; e/4
    s_lshr_b32 s6, s3, 7
    s_and_b32 s7, s5, 64
    s_lshl_b32 s7, s7, 2
    s_and_b32 s8, s5, 3
    s_lshl_b32 s8, s8, 6
    s_add_u32 s7, s7, s8
    s_and_b32 s8, s5, 60
    s_add_u32 s7, s7, s8
    s_lshl_b32 s7, s7, 2
    """)
    a("s_add_u32 s7, s7, %d" % (WS_MOD + 5 * 2048))
    a("""
    v_lshrrev_b32 v2, 4, v0
    v_lshlrev_b32 v3, 2, v2
    v_lshlrev_b32 v2, 1, v2
    buffer_load_dword v4, v3, s[12:15], s7 offen
    s_waitcnt lgkmcnt(0)
    s_cmp_eq_u32 s6, 0
    s_cselect_b32 s24, s24, s25
    s_and_b32 s25, s24, 0x7ff
    s_lshl_b32 s25, s25, 10
    s_lshl3_add_u32 s25, s5, s25
    buffer_load_ushort v5, v2, s[16:19], s25 offen
    s_and_b32 s24, s24, 0xfffff800
    s_ashr_i32 s26, s24, 31
    s_not_b32 s26, s26
    s_or_b32 s26, s26, 0x80000000
    s_xor_b32 s24, s24, s26
    """)
    stamp(a, 2)
    a("v_mov_b32 v6, %s" % f32(-1.4426950408889634))
    a("""
    v_mul_f32 v6, s24, v6
    v_exp_f32 v6, v6
    v_add_f32 v6, 1.0, v6
    v_rcp_f32 v6, v6
    s_waitcnt vmcnt(4)
    v_pk_add_f32 v[8:9], v[8:9], v[12:13]
    v_pk_add_f32 v[10:11], v[10:11], v[14:15]
    s_waitcnt vmcnt(2)
    v_pk_add_f32 v[16:17], v[16:17], v[20:21]
    v_pk_add_f32 v[18:19], v[18:19], v[22:23]
    v_pk_add_f32 v[8:9], v[8:9], v[16:17]
    v_pk_add_f32 v[10:11], v[10:11], v[18:19]
    v_permlane32_swap_b32 v8, v10
    v_permlane32_swap_b32 v9, v11
    v_pk_add_f32 v[8:9], v[8:9], v[10:11]
    v_permlane16_swap_b32 v8, v9
    v_add_f32 v8, v8, v9
    """)
    stamp(a, 3)
    for r in (8, 4, 2, 1):
        a("v_add_f32_dpp v8, v8, v8 row_ror:%d row_mask:0xf bank_mask:0xf" % r)
    a("""
    s_waitcnt vmcnt(0)
    v_mul_f32 v6, v6, v4
    v_lshlrev_b32 v5, 16, v5
    v_fmac_f32 v5, v8, v6
    v_cvt_pk_bf16_f32 v5, v5, v5
    s_mov_b32 exec_lo, 0x00010001
    s_mov_b32 exec_hi, 0x00010001
    buffer_store_short v5, v2, s[16:19], s25 offen
    """)
    stamp(a, 4)
    stamp_end(a, 3, 5)
    a.label("k4_end")
    a("s_endpgm")
    return kdesc("k4_kernel", 24, 32)


def build():
    a = Asm()
    a.raw('.amdgcn_target "amdgcn-amd-amdhsa--gfx950"')
    descs = [k1(a), k2(a), k3(a), k4(a)]
    launches = """; @launch kernel=k1_kernel grid=(224,1,1) block=(256,1,1) lds=17408
; @launch kernel=k2_kernel grid=(256,1,1) block=(512,1,1) lds=28672
; @launch kernel=k3_kernel grid=(224,1,1) block=(256,1,1) lds=16896
; @launch kernel=k4_kernel grid=(256,1,1) block=(64,1,1) lds=0
"""
    if PROBE is not None:
        descs.append(probe_kernel(a, 4))
        launches += "; @launch kernel=kprobe_kernel grid=(1,1,1) block=(64,1,1) lds=0\n"
    return HEADER + launches + a.text() + "".join(descs)


if __name__ == "__main__":
    out = sys.argv[1] if len(sys.argv) > 1 and sys.argv[1].endswith(".s") else "cdna_kernels/%s.s" % NAME
    open(out, "w").write(build())
    print("wrote", out)
```

```python
import sys, struct
from asmlib import Asm, v, s

NAME = "adaLN_cond__spectral_fnet__moe_arch_mod__prompt"
KN = NAME + "_kernel"
HEADER = open("cdna_kernels/%s.s.ref" % NAME).read().split("; Override launch geometry")[0]


def opt(name, default):
    for x in sys.argv:
        if x.startswith("--%s=" % name):
            return int(x.split("=")[1], 0)
    return default


STAMPS = "--stamps" in sys.argv
PROBE = opt("probe", -1)
FSTRIDE = opt("fstride", 128)
SLEEP = opt("sleep", -1)

WS_MOD = 0x0
WS_GEN = 0x3000
WS_SEL = 0x3400
WS_KEYS = 0x4000
WS_DONE = 0x6000
WS_MFLAG = 0x8000
WS_FLAG = 0x20000
WS_PART = 0x80000
WS_INTER = 0x200000
WS_H2 = 0x400000
WS_SIZE = 0x600000
WS_STAMP = 0x600000
if STAMPS:
    WS_SIZE = 0x800000
EPS = 1e-5
TAGC = 0x9E3779B9
SPIN = 1 << 16

LDS_U = 98304
LDS_VEC = LDS_U + 20480
LDS_KEY = LDS_VEC + 8192
LDS_RED = LDS_U
LDS_OUT = LDS_U
LDS_TOTAL = LDS_KEY + 64


def f32(x):
    return "0x%08x" % struct.unpack("<I", struct.pack("<f", x))[0]


def srd(a, base, nbytes):
    a("s_mov_b32 %s, 0x%x" % (s(base + 2), nbytes))
    a("s_mov_b32 %s, 0x20000" % s(base + 3))


NST = 14


def stamp(a, i):
    if PROBE >= 0 and i == 0:
        a("s_memrealtime s[96:97]")
    if not STAMPS:
        return
    if i == 0:
        a("s_memrealtime s[96:97]")
        for k in range(1, NST):
            a("s_mov_b32 %s, 0" % s(64 + 2 * k))
    a("s_memtime %s" % s(64 + 2 * i, 2))


def stamp_end(a):
    if not STAMPS:
        return
    a("s_waitcnt vmcnt(0)")
    a("s_memtime %s" % s(64 + 2 * (NST - 1), 2))
    a("s_memrealtime s[98:99]")
    a("s_mov_b64 exec, 1")
    a("s_lshl_b32 s93, s2, 3")
    a("s_add_u32 s93, s93, s5")
    a("s_lshl_b32 s93, s93, 6")
    a("s_add_u32 s93, s93, 0x%x" % WS_STAMP)
    a("s_waitcnt lgkmcnt(0)")
    a("v_mov_b32 v16, s96")
    a("v_mov_b32 v17, s98")
    for k in range(NST):
        a("v_mov_b32 %s, %s" % (v(18 + k), s(64 + 2 * k)))
    for k in range(4):
        a("buffer_store_dwordx4 %s, off, s[12:15], s93 offset:%d" % (v(16 + 4 * k, 4), 16 * k))


ROR = ["row_ror:%d row_mask:0xf bank_mask:0xf" % r for r in (8, 4, 2, 1)]
BC = ["row_bcast:15 row_mask:0xa bank_mask:0xf", "row_bcast:31 row_mask:0xc bank_mask:0xf"]


def dpp_sum(a, regs_, mods):
    for mod in mods:
        for r in regs_:
            a("v_add_f32_dpp %s, %s, %s %s" % (v(r), v(r), v(r), mod))


def poll_tail(a, label, cnt):
    a("s_cbranch_scc1 %s_ok" % label)
    if SLEEP >= 0:
        a("s_sleep %d" % SLEEP)
    a("s_sub_u32 %s, %s, 1" % (cnt, cnt))
    a("s_cbranch_scc0 %s" % label)
    a.label(label + "_ok")


def build():
    a = Asm()
    a.raw('.amdgcn_target "amdgcn-amd-amdhsa--gfx950"')
    a.raw(".text")
    a.raw(".globl %s" % KN)
    a.raw(".p2align 8")
    a.raw(".type %s,@function" % KN)
    a.label(KN, reset=True)
    a("s_cmp_ge_u32 s2, 256")
    a("s_cbranch_scc1 L_end")
    stamp(a, 0)
    for sreg, off in ((8, 0), (12, 112), (20, 88), (24, 80), (28, 56), (36, 64), (40, 72), (16, 96), (32, 48)):
        a("s_load_dwordx2 %s, s[0:1], %d" % (s(sreg, 2), off))
    a("""
    v_lshrrev_b32 v3, 6, v0               ; wave
    v_and_b32 v1, 15, v0                  ; n
    v_bfe_u32 v2, v0, 4, 2                ; q
    v_readfirstlane_b32 s5, v3
    s_and_b32 s3, s2, 7                   ; x
    s_lshr_b32 s4, s2, 3                  ; y
    """)
    srd(a, 8, 2048 * 1024)
    srd(a, 12, WS_SIZE)
    a("s_cmp_ge_u32 s4, 16")
    st0 = a.fork()
    a("s_cbranch_scc1 L_p1_notdft")
    a("""
    s_lshr_b32 s6, s4, 2
    s_lshl3_add_u32 s6, s6, s3            ; s2 index
    s_and_b32 s7, s4, 3
    s_lshl_b32 s44, s6, 10
    """)
    for g in range(4):
        a("s_add_u32 s45, s7, %d" % g)
        a("s_and_b32 s45, s45, 3")
        a("s_lshl_b32 s45, s45, 8")
        a("s_add_u32 %s, s45, s44" % s(48 + g))
    a("""
    v_lshl_add_u32 v4, v3, 3, v2
    v_lshlrev_b32 v5, 4, v1
    v_lshl_or_b32 v6, v4, 15, v5
    v_add_u32 v7, 0x20000, v6
    s_waitcnt lgkmcnt(0)
    """)
    stamp(a, 1)
    X = 16
    for i in range(4):
        for g in range(2):
            a("buffer_load_dwordx4 %s, %s, s[8:11], %s offen" % (v(X + 16 * g + 4 * i, 4), v(6 + g), s(48 + i)))
    a("s_branch L_consts")
    a.label("L_p1_notdft")
    a.join(st0)
    a("s_cmp_ge_u32 s4, 22")
    st1 = a.fork()
    a("s_cbranch_scc1 L_p1_notmod")
    srd(a, 20, 512 * 6144)
    srd(a, 24, 1024)
    a("""
    s_sub_u32 s6, s2, 128
    s_lshl_b32 s48, s6, 7
    """)
    for i in range(1, 8):
        a("s_add_u32 %s, s48, %d" % (s(48 + i), 6144 * i))
    a("""
    v_lshrrev_b32 v4, 3, v0
    v_and_b32 v5, 7, v0
    v_mul_u32_u24 v6, 0xc000, v4
    v_lshl_add_u32 v6, v5, 4, v6
    v_and_b32 v7, 3, v0
    v_lshlrev_b32 v7, 2, v7
    v_lshl_add_u32 v7, v4, 4, v7
    s_waitcnt lgkmcnt(0)
    """)
    stamp(a, 1)
    a("buffer_load_dword v8, v7, s[24:27], 0 offen")
    W = 16
    for i in range(8):
        a("buffer_load_dwordx4 %s, v6, s[20:23], %s offen" % (v(W + 4 * i, 4), s(48 + i)))
    a("s_branch L_consts")
    a.label("L_p1_notmod")
    a.join(st1)
    a("s_waitcnt lgkmcnt(0)")
    a("s_cmp_ge_u32 s4, 29")
    a("s_cbranch_scc1 L_consts")
    srd(a, 28, 512 * 3584)
    srd(a, 36, 512 * 3584)
    srd(a, 40, 1792 * 1024)
    a("""
    s_mul_i32 s6, s3, 7
    s_add_u32 s6, s6, s4
    s_sub_u32 s6, s6, 22
    s_and_b32 s44, s5, 1
    s_lshl_b32 s44, s44, 7
    s_lshr_b32 s45, s5, 1
    s_lshl2_add_u32 s44, s45, s44
    v_bfe_u32 v4, v0, 2, 2
    v_lshl_add_u32 v4, v2, 4, v4
    v_add_u32 v4, s44, v4
    v_mul_u32_u24 v4, 3584, v4
    v_and_b32 v5, 3, v0
    v_lshl_add_u32 v4, v5, 4, v4
    s_lshl_b32 s48, s6, 6
    s_mul_i32 s7, s5, 12288
    s_mov_b32 m0, s7
    """)
    a("s_add_u32 s49, s48, %d" % (64 * 3584))
    a("s_add_u32 s50, s48, %d" % (256 * 3584))
    a("s_add_u32 s51, s48, %d" % (320 * 3584))
    stamp(a, 1)
    for mi, sr in enumerate((28, 36)):
        for i in range(4):
            a("buffer_load_dwordx4 v4, %s, %s offen lds" % (s(sr, 4), s(48 + i)))
            a("s_add_u32 m0, m0, 1024")
    a("""
    v_bfe_u32 v5, v0, 3, 3
    v_lshlrev_b32 v5, 10, v5
    v_and_b32 v6, 7, v0
    v_lshl_add_u32 v5, v6, 4, v5
    v_lshl_add_u32 v5, v3, 7, v5
    s_lshl_b32 s48, s6, 15
    """)
    for i in range(4):
        a("buffer_load_dwordx4 v5, s[40:43], s48 offen lds")
        if i < 3:
            a("s_add_u32 m0, m0, 1024")
            a("s_add_u32 s48, s48, 8192")
    a("""
    v_mov_b32 v6, -1
    v_mov_b32 v7, -1
    v_lshlrev_b32 v5, 3, v0
    s_lshl_b32 s48, s6, 12
    """)
    a("s_add_u32 s46, s48, 0x%x" % WS_PART)
    a("buffer_store_dwordx2 v[6:7], v5, s[12:15], s46 offen sc1")
    a.label("L_consts", reset=True)
    a("s_load_dword s47, s[12:13], 0x%x" % WS_GEN)
    FR, FI, TC, TS, G, SA = 200, 204, 208, 216, 224, 240
    a("v_cvt_f32_u32 v9, v1")
    a("v_cvt_f32_u32 v11, v2")
    a("v_mul_f32 v9, %s, v9                   ; n/512" % f32(1 / 512))
    a("v_mul_f32 v248, 4.0, v11               ; 4q")
    a("v_mul_f32 v10, v9, v248")
    a("v_mul_f32 v11, %s, v9                  ; n/32" % f32(16.0))
    for j in range(4):
        if j:
            a("v_add_f32 v10, v10, v9")
        a("v_mul_f32 v12, %s, v10" % f32(32.0))
        a("v_mul_f32 v13, %s, v10" % f32(16.0))
        a("v_add_f32 v14, v10, v11")
        a("v_cos_f32 %s, v10" % v(TC + j))
        a("v_sin_f32 %s, v10" % v(TS + j))
        a("v_cos_f32 v15, v12")
        a("v_sin_f32 v12, v12")
        a("v_cos_f32 %s, v14" % v(TC + 4 + j))
        a("v_sin_f32 %s, v14" % v(TS + 4 + j))
        a("v_cos_f32 %s, v13" % v(SA + j))
        a("v_sin_f32 %s, v13" % v(SA + 4 + j))
        a("v_cvt_pk_bf16_f32 %s, v15, v12" % v(FR + j))
        a("v_cvt_pk_bf16_f32 %s, -v12, v15" % v(FI + j))
    for j in range(4):
        a("v_cvt_pk_bf16_f32 %s, %s, %s" % (v(G + j), v(SA + 2 * j), v(SA + 1 + 2 * j)))
    a("v_lshlrev_b32 v12, 31, v1")
    a("v_lshrrev_b32 v13, 16, v12")
    a("v_or_b32 v12, v12, v13")
    a("s_mov_b32 s63, 0x80000000")
    for j in range(4):
        a("v_xor_b32 %s, s63, %s" % (v(G + 4 + j), v(G + j)))
        a("v_xor_b32 %s, v12, %s" % (v(G + 8 + j), v(G + j)))
        a("v_xor_b32 %s, s63, %s" % (v(G + 12 + j), v(G + 8 + j)))
    srd(a, 16, 2048 * 1024)
    srd(a, 32, 1024)
    a("s_waitcnt lgkmcnt(0)")
    a("s_add_u32 s47, s47, 0x%x               ; hand-off tag of this launch" % TAGC)
    a("v_mov_b32 v249, s47")
    stamp(a, 2)
    a("s_cmp_ge_u32 s4, 16")
    a("s_cbranch_scc1 L_p1c_notdft")
    for i in range(4):
        for g in range(2):
            a.vm.append(__import__("asmlib").Ins("buffer_load_dwordx4 %s, v6, s[8:11], 0 offen" % v(X + 16 * g + 4 * i, 4)))
    WA = 48
    a("""
    v_and_b32 v8, 3, v3                   ; M tile
    v_lshrrev_b32 v9, 1, v1
    v_lshl_add_u32 v9, v8, 3, v9          ; slot
    v_and_b32 v10, 1, v1
    v_lshl_or_b32 v11, v9, 1, v10
    v_cmp_eq_u32 vcc, 1, v11
    v_cvt_f32_u32 v10, v10
    v_lshlrev_b32 v13, 31, v9
    v_cndmask_b32 v11, v9, 32, vcc
    """)
    a("v_mul_f32 v10, %s, v10" % f32(0.25))
    a("v_cvt_f32_u32 v11, v11")
    a("v_cndmask_b32 v10, v10, 0, vcc")
    a("v_mul_f32 v11, %s, v11" % f32(1 / 64))
    a("v_add_f32 v12, v248, v248              ; 8q")
    a("v_fmac_f32 v10, v11, v12")
    a("v_lshrrev_b32 v14, 16, v13")
    a("v_or_b32 v13, v13, v14")
    T = 56
    a("v_cos_f32 %s, v10" % v(T))
    for j in range(1, 8):
        a("v_add_f32 v10, v10, v11")
        a("v_cos_f32 %s, v10" % v(T + j))
    for j in range(4):
        a("v_cvt_pk_bf16_f32 %s, %s, %s" % (v(WA + j), v(T + 2 * j), v(T + 2 * j + 1)))
    for j in range(4):
        a("v_xor_b32 %s, v13, %s" % (v(WA + 4 + j), v(WA + j)))
    a("""
    v_mul_u32_u24 v10, 272, v4
    v_add_u32 v10, v10, v5
    v_lshrrev_b32 v11, 2, v1
    v_lshl_add_u32 v11, v2, 3, v11
    v_mul_u32_u24 v11, 272, v11
    v_and_b32 v12, 3, v0
    v_lshl_add_u32 v11, v12, 3, v11
    v_lshrrev_b32 v12, 8, v0
    v_lshl_add_u32 v11, v12, 7, v11
    v_lshlrev_b32 v13, 1, v2
    v_lshl_add_u32 v13, v8, 3, v13
    v_lshlrev_b32 v13, 16, v13
    v_lshl_add_u32 v13, v12, 8, v13
    v_add_u32 v13, v13, v5
    s_lshl_b32 s44, s6, 11
    s_lshl_b32 s45, s7, 9
    s_add_u32 s44, s44, s45
    s_mov_b32 s52, 0x3f803f80
    v_mov_b32 v56, 0
    v_mov_b32 v57, 0
    v_mov_b32 v58, 0
    v_mov_b32 v59, 0
    """)
    a("s_add_u32 s44, s44, 0x%x" % WS_INTER)
    a("s_add_u32 s45, s44, 0x10000")
    a("""
    s_and_b32 s53, s5, 3
    s_lshl_b32 s53, s53, 3
    s_lshl1_add_u32 s53, s7, s53
    s_lshr_b32 s54, s5, 2
    s_add_u32 s53, s53, s54
    s_lshl_b32 s53, s53, 5
    s_add_u32 s53, s53, s6
    """)
    a("s_mul_i32 s53, s53, %d" % FSTRIDE)
    a("s_add_u32 s53, s53, 0x%x" % WS_FLAG)
    U = 64
    for i in range(4):
        for g in range(2):
            a.wait_vm_for(v(X + 16 * g + 4 * i, 4))
            if i == 0 and g == 0:
                stamp(a, 3)
            for d in range(4):
                x = v(X + 16 * g + 4 * i + d)
                a("v_dot2c_f32_bf16 %s, s52, %s" % (v(56 + g), x))
                a("v_dot2c_f32_bf16 %s, %s, %s" % (v(58 + g), x, x))
            if i == 0:
                for d in range(4):
                    a("v_lshlrev_b32 %s, 16, %s" % (v(U + 8 * g + 2 * d), v(X + 16 * g + d)))
                    a("v_and_b32 %s, 0xffff0000, %s" % (v(U + 8 * g + 2 * d + 1), v(X + 16 * g + d)))
    stamp(a, 4)
    dpp_sum(a, [56, 57, 58, 59], ROR)
    for g in range(2):
        a("v_mul_f32 %s, %s, %s" % (v(56 + g), f32(1 / 512), v(56 + g)))
    for g in range(2):
        a("v_mul_f32 %s, %s, %s" % (v(60 + 2 * g), v(56 + g), v(56 + g)))
    for g in range(2):
        a("v_sub_f32 %s, %s, %s" % (v(60 + 2 * g), f32(EPS), v(60 + 2 * g)))
    for g in range(2):
        a("v_fmac_f32 %s, %s, %s" % (v(60 + 2 * g), f32(1 / 512), v(58 + g)))
    for g in range(2):
        a("v_rsq_f32 %s, %s" % (v(60 + 2 * g), v(60 + 2 * g)))
    for g in range(2):
        a("v_mul_f32 %s, %s, %s" % (v(61 + 2 * g), v(56 + g), v(60 + 2 * g)))
    for g in range(2):
        for e in range(8):
            a("v_fma_f32 %s, %s, %s, -%s" % (v(U + 8 * g + e), v(U + 8 * g + e), v(60 + 2 * g), v(61 + 2 * g)))
        for d in range(4):
            a("v_cvt_pk_bf16_f32 %s, %s, %s" % (v(X + 16 * g + d), v(U + 8 * g + 2 * d), v(U + 8 * g + 2 * d + 1)))
        a("ds_write_b128 v10, %s offset:%d" % (v(X + 16 * g, 4), 4 * 272 * g))
    a("s_waitcnt lgkmcnt(0)")
    a("s_barrier")
    stamp(a, 5)
    B = 64
    for ks in range(2):
        for i in range(4):
            for hf in range(2):
                a("ds_read_b64_tr_b16 %s, v11 offset:%d" % (v(B + 16 * ks + 4 * i + 2 * hf, 2), ks * 32 * 272 + hf * 4 * 272 + i * 32))
    ACC = 96
    for ks in range(2):
        for i in range(4):
            a.wait_lg_for(v(B + 16 * ks + 4 * i, 4))
            acc = v(ACC + 4 * i, 4)
            a("v_mfma_f32_16x16x32_bf16 %s, %s, %s, %s" % (acc, v(WA + 4 * ks, 4), v(B + 16 * ks + 4 * i, 4), "0" if ks == 0 else acc))
    O = 16
    for i in range(4):
        for p in range(2):
            a("v_cvt_pk_bf16_f32 %s, %s, %s" % (v(O + 4 * p + i), v(ACC + 4 * i + 2 * p), v(ACC + 4 * i + 2 * p + 1)))
    for p in range(2):
        a("buffer_store_dwordx4 %s, v13, s[12:15], %s offen sc1" % (v(O + 4 * p, 4), s(44 + p)))
    a("s_branch L_p1_publish")
    a.label("L_p1c_notdft", reset=True)
    a("s_mov_b32 s53, -1")
    a("s_cmp_ge_u32 s4, 22")
    a("s_cbranch_scc1 L_p1_publish")
    a.vm.append(__import__("asmlib").Ins("buffer_load_dword v8, v7, s[24:27], 0 offen"))
    for i in range(8):
        a.vm.append(__import__("asmlib").Ins("buffer_load_dwordx4 %s, v6, s[20:23], 0 offen" % v(W + 4 * i, 4)))
    a("""
    s_mov_b32 s44, 0x05040100
    s_mov_b32 s45, 0x07060302
    s_lshr_b32 s48, s6, 3
    s_and_b32 s49, s6, 7
    s_lshl_b32 s49, s49, 6
    v_add_u32 v7, s49, v0                 ; e (wave 0)
    v_and_b32 v9, 0x1c0, v7
    v_lshl_add_u32 v9, v1, 2, v9
    v_add_u32 v9, v9, v2
    v_and_b32 v10, 0x103, v7
    v_bfe_u32 v11, v7, 2, 2
    v_lshl_add_u32 v10, v11, 6, v10
    v_bfe_u32 v11, v7, 4, 4
    v_lshl_add_u32 v10, v11, 2, v10
    s_cmp_lt_u32 s48, 2
    s_cselect_b64 s[50:51], -1, 0
    v_cndmask_b32 v9, v10, v9, s[50:51]
    v_lshlrev_b32 v9, 2, v9
    s_lshl_b32 s49, s48, 11
    s_cmp_eq_u32 s48, 1
    s_cselect_b32 s50, 1.0, 0
    s_cmp_eq_u32 s48, 4
    s_cselect_b32 s50, 1.0, s50
    v_lshlrev_b32 v6, 2, v0
    v_lshlrev_b32 v10, 8, v3
    v_lshl_add_u32 v10, v5, 5, v10
    v_lshl_add_u32 v10, v2, 3, v10
    """)
    for j in range(8):
        a("v_mov_b32 %s, 0" % v(48 + j))
    a("s_waitcnt vmcnt(8)")
    stamp(a, 3)
    a("v_lshlrev_b32 v11, 16, v8")
    a("v_and_b32 v12, 0xffff0000, v8")
    a("v_mul_f32 v13, %s, v11" % f32(-1.4426950408889634))
    a("v_mul_f32 v14, %s, v12" % f32(-1.4426950408889634))
    a("""
    v_exp_f32 v13, v13
    v_exp_f32 v14, v14
    v_add_f32 v13, 1.0, v13
    v_add_f32 v14, 1.0, v14
    v_rcp_f32 v13, v13
    v_rcp_f32 v14, v14
    v_mul_f32 v11, v11, v13
    v_mul_f32 v12, v12, v14
    v_cvt_pk_bf16_f32 v8, v11, v12
    """)
    for p in range(4):
        a("v_mov_b32_dpp %s, v8 quad_perm:[%d,%d,%d,%d] row_mask:0xf bank_mask:0xf" % (v(12 + p), p, p, p, p))
    for p in range(4):
        a("s_waitcnt vmcnt(%d)" % (6 - 2 * p))
        for jj in range(4):
            a("v_perm_b32 %s, %s, %s, s44" % (v(56 + 2 * jj), v(W + 8 * p + 4 + jj), v(W + 8 * p + jj)))
            a("v_perm_b32 %s, %s, %s, s45" % (v(57 + 2 * jj), v(W + 8 * p + 4 + jj), v(W + 8 * p + jj)))
        for j in range(8):
            a("v_dot2c_f32_bf16 %s, %s, %s" % (v(48 + j), v(12 + p), v(56 + j)))
    stamp(a, 4)
    for j in range(4):
        a("v_permlane32_swap_b32 %s, %s" % (v(48 + j), v(52 + j)))
    for j in range(4):
        a("v_add_f32 %s, %s, %s" % (v(48 + j), v(48 + j), v(52 + j)))
    for j in range(2):
        a("v_permlane16_swap_b32 %s, %s" % (v(48 + j), v(50 + j)))
    for j in range(2):
        a("v_add_f32 %s, %s, %s" % (v(48 + j), v(48 + j), v(50 + j)))
    dpp_sum(a, [48, 49], ROR[:1])
    a("""
    s_mov_b32 exec_lo, 0x00ff00ff
    s_mov_b32 exec_hi, 0x00ff00ff
    ds_write_b64 v10, v[48:49]
    s_mov_b64 exec, -1
    s_waitcnt lgkmcnt(0)
    s_barrier
    """)
    stamp(a, 5)
    a("""
    s_cmp_lg_u32 s5, 0
    s_cbranch_scc1 L_p1_publish
    ds_read2st64_b32 v[48:49], v6 offset0:0 offset1:1
    ds_read2st64_b32 v[50:51], v6 offset0:2 offset1:3
    ds_read2st64_b32 v[52:53], v6 offset0:4 offset1:5
    ds_read2st64_b32 v[54:55], v6 offset0:6 offset1:7
    s_lshl_b32 s53, s6, 7
    """)
    a("s_add_u32 s53, s53, 0x%x" % WS_MFLAG)
    a("""
    s_waitcnt lgkmcnt(0)
    v_add_f32 v48, v48, v49
    v_add_f32 v50, v50, v51
    v_add_f32 v52, v52, v53
    v_add_f32 v54, v54, v55
    v_add_f32 v48, v48, v50
    v_add_f32 v52, v52, v54
    v_add_f32 v48, v48, v52
    v_cvt_pk_bf16_f32 v48, v48, v48
    v_and_b32 v48, 0xffff0000, v48
    v_add_f32 v48, s50, v48
    v_cvt_pk_bf16_f32 v48, v48, v48
    v_and_b32 v48, 0xffff0000, v48
    buffer_store_dword v48, v9, s[12:15], s49 offen sc1
    """)
    a.label("L_p1_publish", reset=True)
    stamp(a, 6)
    a("""
    s_lshr_b32 s44, s4, 3
    s_lshl3_add_u32 s44, s44, s3          ; slot
    s_and_b32 s45, s4, 1                  ; mirror
    s_bfe_u32 s48, s4, 0x20001
    s_sub_u32 s49, 64, s44
    s_cmp_eq_u32 s44, 0
    s_cselect_b32 s49, 32, s49
    s_cmp_eq_u32 s45, 0
    s_cselect_b32 s49, s44, s49           ; k1
    """)
    a("s_mov_b32 s50, %s" % f32(0.25))
    a("s_cselect_b32 s50, %s, s50" % f32(-0.25))
    a("""
    s_mov_b32 s51, 0xffff0000
    s_cselect_b32 s51, 0x0000ffff, s51
    s_cmp_eq_u32 s44, 0
    s_cselect_b32 s50, 0, s50
    s_cselect_b32 s51, s51, -1
    s_lshl_b32 s48, s48, 9
    s_add_u32 s49, s49, s48
    v_lshrrev_b32 v8, 1, v1
    v_lshlrev_b32 v8, 6, v8
    v_add_u32 v8, s49, v8
    v_cvt_f32_u32 v8, v8
    v_and_b32 v9, 1, v1
    v_cvt_f32_u32 v10, v9
    """)
    a("v_mul_f32 v8, %s, v8" % f32(1 / 2048))
    a("v_mul_f32 v10, %s, v10" % f32(0.25))
    a("v_fmac_f32 v10, v8, v248")
    for ks in range(2):
        for r in range(4):
            if r:
                a("v_add_f32 v10, v10, v8")
            elif ks:
                a("v_fmac_f32 v10, %s, v8" % f32(13.0))
            a("v_add_f32 v12, s50, v10")
            a("v_cos_f32 v13, v10")
            a("v_cos_f32 v12, v12")
            if ks or r:
                k = SA + 4 * ks + r - 1
                a("v_and_b32 %s, s51, %s" % (v(k), v(k)))
            a("v_cvt_pk_bf16_f32 %s, v13, v12" % v(SA + 4 * ks + r))
    a("v_and_b32 %s, s51, %s" % (v(SA + 7), v(SA + 7)))
    a("""
    s_cmp_eq_u32 s53, -1
    s_cbranch_scc1 L_noflag
    s_waitcnt vmcnt(0)
    s_mov_b64 exec, 1
    buffer_store_dword v249, off, s[12:15], s53 sc1
    s_mov_b64 exec, -1
    """)
    a.label("L_noflag")
    stamp(a, 7)
    a("""
    s_lshl_b32 s56, s5, 6
    s_add_u32 s56, s56, s49
    s_lshl_b32 s57, s56, 10
    v_lshlrev_b32 v7, 5, v1
    v_lshl_add_u32 v7, v2, 3, v7          ; 32n + 8q
    buffer_load_dwordx2 v[56:57], v7, s[8:11], s57 offen
    buffer_load_dwordx2 v[58:59], v7, s[8:11], s57 offen offset:512
    buffer_load_dwordx2 v[60:61], v7, s[32:35], 0 offen
    buffer_load_dwordx2 v[62:63], v7, s[32:35], 0 offen offset:512
    v_and_b32 v6, 63, v0                  ; lane
    s_lshr_b32 s52, s4, 3
    s_lshl3_add_u32 s52, s52, s5
    s_lshl_b32 s52, s52, 5
    v_add_u32 v8, s52, v6
    """)
    a("v_mul_u32_u24 v8, %d, v8" % FSTRIDE)
    a("v_add_u32 v8, 0x%x, v8" % WS_FLAG)
    a("""
    s_lshl_b32 s52, s5, 2
    s_sub_u32 s52, s52, 18
    v_add_u32 v9, s52, v6                 ; lanes 34..37 -> 16+4w+0..3
    v_and_b32 v10, 1, v0
    v_lshl_add_u32 v10, v10, 3, v3        ; lanes 32, 33 -> w, 8+w
    v_cmp_gt_u32 vcc, 34, v6
    v_cndmask_b32 v9, v9, v10, vcc
    v_lshlrev_b32 v9, 7, v9
    """)
    a("v_add_u32 v9, 0x%x, v9" % WS_MFLAG)
    a("""
    v_cmp_gt_u32 vcc, 32, v6
    v_cndmask_b32 v8, v9, v8, vcc
    v_lshlrev_b32 v4, 4, v1
    v_lshl_add_u32 v4, v3, 8, v4          ; w*256 + n*16
    v_lshl_add_u32 v5, v2, 13, v4
    v_lshlrev_b32 v6, 4, v6               ; lane*16
    s_lshl_b32 s58, s44, 16
    """)
    a("s_add_u32 s58, s58, 0x%x" % WS_INTER)
    a("""
    s_add_u32 s59, s58, 0x1000
    s_add_u32 s60, s58, 0x8000
    s_add_u32 s61, s58, 0x9000
    s_lshl_b32 s62, s5, 10
    """)
    a("s_add_u32 s55, s62, %d" % (WS_MOD + 4096))
    a("s_mov_b32 s54, %d" % SPIN)
    a("s_mov_b32 exec_hi, 0x3f")
    a.label("L_poll1")
    a("buffer_load_dword v9, v8, s[12:15], 0 offen sc1")
    a("s_waitcnt vmcnt(0)")
    a("v_cmp_ne_u32 vcc, v9, v249")
    a("s_and_b64 exec, exec, vcc")
    a("s_cmp_eq_u64 exec, 0")
    poll_tail(a, "L_poll1", "s54")
    a("s_mov_b64 exec, -1")
    stamp(a, 8)
    L = 16
    for ks in range(2):
        for r in range(4):
            a("buffer_load_dwordx4 %s, v5, s[12:15], %s offen offset:%d sc1" % (v(L + 16 * ks + 4 * r, 4), s(58 + 2 * ks + r // 2), 2048 * (r % 2)))
    a("buffer_load_dwordx4 v[48:51], v4, s[12:15], 0 offen offset:%d sc1" % (WS_MOD + 2048))
    a("buffer_load_dwordx4 v[52:55], v4, s[12:15], 0 offen offset:%d sc1" % WS_MOD)
    a("buffer_load_dwordx4 v[64:67], v6, s[12:15], s55 offen sc1")
    a("""
    v_mul_u32_u24 v8, 80, v1
    v_mul_u32_u24 v9, 5120, v2
    v_lshl_add_u32 v9, v3, 3, v9
    v_add_u32 v9, v9, v8
    v_mul_u32_u24 v12, 2560, v3
    v_lshl_add_u32 v10, v2, 4, v12
    v_add_u32 v10, v10, v8
    v_or_b32 v11, s49, v2
    v_cmp_eq_u32 vcc, 0, v11
    v_mov_b32 v11, 0x45000000
    v_cndmask_b32 v11, 0, v11, vcc
    """)
    a("v_add_u32 v9, %d, v9                   ; U write address" % LDS_U)
    a("v_add_u32 v10, %d, v10                 ; U read address" % LDS_U)
    a("v_add_u32 v13, %d, v6                  ; vector read address" % LDS_VEC)
    a("v_add_u32 v14, s62, v13")
    a("v_add_u32 v12, %d, v12" % LDS_OUT)
    a("v_add_u32 v15, v12, v6")
    a("v_add_u32 v12, v12, v7")
    XU, WU = 112, 120
    for d in range(4):
        a("v_lshlrev_b32 %s, 16, %s" % (v(XU + 2 * d), v(56 + d)))
        a("v_and_b32 %s, 0xffff0000, %s" % (v(XU + 2 * d + 1), v(56 + d)))
        a("v_lshlrev_b32 %s, 16, %s" % (v(WU + 2 * d), v(60 + d)))
        a("v_and_b32 %s, 0xffff0000, %s" % (v(WU + 2 * d + 1), v(60 + d)))
    ACC = 96
    for ks in range(2):
        a.wait_vm_for(v(L + 16 * ks, 16))
        if ks == 1:
            stamp(a, 9)
        for r in range(4):
            for i in range(r + 1, 4):
                a("v_swap_b32 %s, %s" % (v(L + 16 * ks + 4 * r + i), v(L + 16 * ks + 4 * i + r)))
        for i in range(4):
            acc = v(ACC + 4 * i, 4)
            a("v_mfma_f32_16x16x32_bf16 %s, %s, %s, %s" % (acc, v(SA + 4 * ks, 4), v(L + 16 * ks + 4 * i, 4), "0" if ks == 0 else acc))
    a("s_waitcnt vmcnt(0)")
    a("ds_write_b128 v14, v[64:67]")
    for i in range(4):
        a("v_mul_f32 %s, v11, %s" % (v(52 + i), v(52 + i)))
    P = 16
    for i in range(4):
        c = ACC + 4 * i
        a("v_fma_f32 %s, %s, %s, %s" % (v(c), v(c), v(48 + i), v(52 + i)))
        for j in range(1, 4):
            a("v_mul_f32 %s, %s, %s" % (v(c + j), v(c + j), v(48 + i)))
        for tt in range(2):
            a("v_cvt_pk_bf16_f32 %s, %s, %s" % (v(P + 4 * tt + 2 * (i % 2) + i // 2), v(c + 2 * tt), v(c + 2 * tt + 1)))
    for tt in range(2):
        for h in range(2):
            a("ds_write_b64 v9, %s offset:%d" % (v(P + 4 * tt + 2 * h, 2), tt * 2560 + h * 1280))
    a("s_waitcnt lgkmcnt(0)")
    a("s_barrier")
    D = 24
    a("ds_read_b128 %s, v10" % v(D, 4))
    a("ds_read_b128 %s, v10 offset:1280" % v(D + 4, 4))
    VEC = 128
    for k in range(4):
        for g in range(2):
            a("ds_read_b128 %s, v13 offset:%d" % (v(VEC + 8 * k + 4 * g, 4), 2048 * k + 1024 * g))
    BR, BI = 32, 40
    for h in range(2):
        a.wait_lg_for(v(D + 4 * h, 4))
        a("v_mfma_f32_16x16x32_bf16 %s, %s, %s, 0" % (v(BR + 4 * h, 4), v(D + 4 * h, 4), v(FR, 4)))
        a("v_mfma_f32_16x16x32_bf16 %s, %s, %s, 0" % (v(BI + 4 * h, 4), v(D + 4 * h, 4), v(FI, 4)))
    A2 = 16
    Y = 64
    for h in range(2):
        for j in range(4):
            br, bi, tc, ts = v(BR + 4 * h + j), v(BI + 4 * h + j), v(TC + 4 * h + j), v(TS + 4 * h + j)
            a("v_mul_f32 %s, %s, %s" % (v(48 + j), br, tc))
            a("v_mul_f32 %s, %s, %s" % (v(52 + j), bi, tc))
            a("v_fmac_f32 %s, %s, %s" % (v(48 + j), bi, ts))
            a("v_fma_f32 %s, -%s, %s, %s" % (v(52 + j), br, ts, v(52 + j)))
        for k in range(4):
            a("v_cvt_pk_bf16_f32 %s, %s, %s" % (v(A2 + 4 * h + k), v(48 + 2 * k), v(49 + 2 * k)))
        for g in range(2):
            y = v(Y + 4 * g, 4)
            a("v_mfma_f32_16x16x32_bf16 %s, %s, %s, %s" % (y, v(A2 + 4 * h, 4), v(G + 8 * h + 4 * g, 4), "0" if h == 0 else y))
    a("s_add_u32 s58, s57, 0x%x" % WS_H2)
    a("v_mov_b32 v10, %s" % f32(1 / 512))
    a("s_waitcnt lgkmcnt(0)")
    GA, SB, CB, GB = VEC, VEC + 8, VEC + 16, VEC + 24
    for e in range(8):
        a("v_fmac_f32 %s, %s, %s" % (v(XU + e), v(GA + e), v(Y + e)))
    a("v_add_f32 v8, %s, %s" % (v(XU), v(XU + 1)))
    a("v_mul_f32 v9, %s, %s" % (v(XU), v(XU)))
    a("v_fmac_f32 v9, %s, %s" % (v(XU + 1), v(XU + 1)))
    for e in range(2, 8):
        a("v_add_f32 v8, v8, %s" % v(XU + e))
        a("v_fmac_f32 v9, %s, %s" % (v(XU + e), v(XU + e)))
    dpp_sum(a, [8, 9], ROR + BC)
    a("v_readlane_b32 s60, v8, 63")
    a("v_readlane_b32 s61, v9, 63")
    a("v_mul_f32 v8, s60, v10                 ; mean")
    a("v_mul_f32 v9, v8, v8")
    a("v_sub_f32 v9, %s, v9" % f32(EPS))
    a("v_fmac_f32 v9, s61, v10")
    a("v_rsq_f32 v9, v9")
    a("v_mul_f32 v8, v8, v9")
    H = 32
    for e in range(8):
        a("v_fma_f32 %s, %s, v9, -v8" % (v(H + e), v(XU + e)))
    for e in range(8):
        a("v_fma_f32 %s, %s, %s, %s" % (v(H + e), v(H + e), v(CB + e), v(SB + e)))
    for d in range(4):
        a("v_cvt_pk_bf16_f32 %s, %s, %s" % (v(44 + d), v(H + 2 * d), v(H + 2 * d + 1)))
    a("buffer_store_dwordx4 v[44:47], v6, s[12:15], s58 offen sc1")
    a("v_mul_f32 v8, %s, %s" % (v(H), v(WU)))
    for e in range(1, 8):
        a("v_fmac_f32 v8, %s, %s" % (v(H + e), v(WU + e)))
    mods = ROR + BC
    for k, mod in enumerate(mods):
        a("v_add_f32_dpp v8, v8, v8 %s" % mod)
        for e in ((0, 1), (2, 3), (4, 5), (6, 7), (), ())[k]:
            a("v_fmac_f32 %s, %s, %s" % (v(XU + e), v(GB + e), v(H + e)))
        if k >= 4:
            for d in (2 * (k - 4), 2 * (k - 4) + 1):
                a("v_cvt_pk_bf16_f32 %s, %s, %s" % (v(40 + d), v(XU + 2 * d), v(XU + 2 * d + 1)))
    a("""
    v_ashrrev_i32 v9, 31, v8
    v_or_b32 v9, s63, v9
    v_xor_b32 v8, v8, v9
    v_and_b32 v8, 0xfffff800, v8
    v_or_b32 v8, s56, v8
    v_lshlrev_b32 v9, 2, v3
    s_mov_b32 exec_lo, 0
    s_mov_b32 exec_hi, 0x80000000
    """)
    a("ds_write_b32 v9, v8 offset:%d" % LDS_KEY if LDS_KEY < 65536 else "v_add_u32 v9, %d, v9\nds_write_b32 v9, v8" % LDS_KEY)
    a("""
    s_mov_b64 exec, -1
    ds_write_b64 v12, v[40:41]
    ds_write_b64 v12, v[42:43] offset:512
    """)
    a("v_mov_b32 v9, %d" % LDS_KEY)
    a("""
    ds_read_b128 v[40:43], v15
    s_waitcnt vmcnt(0) lgkmcnt(0)
    """)
    stamp(a, 10)
    a("""
    s_barrier
    s_cmp_lg_u32 s5, 0
    s_cbranch_scc1 L_nokey
    ds_read_b128 v[16:19], v9
    ds_read_b128 v[20:23], v9 offset:16
    s_lshl_b32 s58, s2, 4
    v_mov_b32 v25, v249
    v_mov_b32 v27, v249
    """)
    a("s_add_u32 s58, s58, 0x%x" % WS_KEYS)
    a("""
    s_waitcnt lgkmcnt(0)
    v_max_u32 v24, v16, v17
    v_min_u32 v26, v16, v17
    v_med3_u32 v28, v24, v18, v19
    v_max3_u32 v24, v24, v18, v19
    v_med3_u32 v29, v24, v20, v21
    v_max3_u32 v24, v24, v20, v21
    v_max3_u32 v26, v26, v28, v29
    v_med3_u32 v28, v24, v22, v23
    v_max3_u32 v24, v24, v22, v23
    v_max_u32 v26, v26, v28
    s_mov_b64 exec, 1
    buffer_store_dwordx4 v[24:27], off, s[12:15], s58 sc1
    s_mov_b64 exec, -1
    """)
    a.label("L_nokey")
    a("buffer_store_dwordx4 v[40:43], v6, s[16:19], s57 offen sc1")
    a("s_lshl_b32 s58, s56, 2")
    a("s_add_u32 s58, s58, 0x%x" % WS_DONE)
    a("s_sub_u32 s59, s4, 22")
    a("s_cmp_lt_u32 s59, 7")
    stf = a.fork()
    a("s_cbranch_scc1 L_ffn")
    a("""
    s_waitcnt vmcnt(0)
    s_mov_b64 exec, 1
    buffer_store_dword v249, off, s[12:15], s58 sc1
    s_mov_b64 exec, -1
    s_lshl_b32 s59, s5, 8
    s_add_u32 s59, s59, s2
    s_cmp_ge_u32 s59, 64
    s_cbranch_scc1 L_done
    """)
    a("""
    s_lshl3_add_u32 s44, s3, s4
    s_lshl_b32 s45, s3, 7
    """)
    a("s_add_u32 s45, s45, 0x%x" % WS_SEL)
    a("""
    s_lshr_b32 s48, s44, 2
    s_lshl_b32 s48, s48, 5                ; 64w + 32*pair
    s_and_b32 s49, s44, 3
    s_lshl2_add_u32 s48, s49, s48
    v_and_b32 v4, 3, v0
    v_lshrrev_b32 v5, 1, v2
    v_lshl_add_u32 v5, v5, 4, v4
    v_add_u32 v5, s48, v5
    v_and_b32 v8, 0x103, v5
    v_bfe_u32 v9, v5, 2, 2
    v_lshl_add_u32 v8, v9, 6, v8
    v_bfe_u32 v9, v5, 4, 4
    v_lshl_add_u32 v8, v9, 2, v8
    v_lshlrev_b32 v8, 2, v8
    """)
    a("v_add_u32 v8, %d, v8" % (LDS_VEC + 3 * 2048))
    a("""
    ds_read_b32 v8, v8                    ; gb[e]
    v_bfe_u32 v9, v0, 2, 4
    v_lshlrev_b32 v9, 12, v9
    v_lshl_add_u32 v9, v4, 4, v9
    s_lshl_b32 s48, s44, 6
    v_and_b32 v10, 1, v2
    v_cmp_eq_u32 s[50:51], 1, v10
    """)
    a("s_add_u32 s48, s48, 0x%x" % WS_PART)
    a("s_add_u32 s49, s48, 0x10000")
    a("s_add_u32 s52, s48, 0x20000")
    a("s_add_u32 s53, s48, 0x30000")
    a("s_mov_b32 s54, %d" % SPIN)
    a.label("L_poll_sel")
    a("""
    buffer_load_dwordx4 v[16:19], off, s[12:15], s45 sc1
    s_waitcnt vmcnt(0)
    v_cmp_eq_u32 vcc, v17, v249
    v_cmp_eq_u32 s[60:61], v19, v249
    s_and_b64 vcc, vcc, s[60:61]
    s_cmp_eq_u64 vcc, -1
    """)
    poll_tail(a, "L_poll_sel", "s54")
    stamp(a, 11)
    a("""
    v_cndmask_b32 v16, v16, v18, s[50:51]
    v_and_b32 v17, 0x7ff, v16
    v_lshlrev_b32 v18, 2, v17
    v_lshlrev_b32 v17, 10, v17
    v_lshl_add_u32 v17, v5, 1, v17
    """)
    a("s_mov_b32 s55, 0x%x" % WS_DONE)
    a("s_mov_b32 s54, %d" % SPIN)
    a.label("L_poll_done")
    a("""
    buffer_load_dword v19, v18, s[12:15], s55 offen sc1
    s_waitcnt vmcnt(0)
    v_cmp_eq_u32 vcc, v19, v249
    s_cmp_eq_u64 vcc, -1
    """)
    poll_tail(a, "L_poll_done", "s54")
    a("""
    buffer_load_ushort v20, v17, s[16:19], 0 offen sc1
    v_and_b32 v16, 0xfffff800, v16
    v_ashrrev_i32 v19, 31, v16
    v_not_b32 v19, v19
    v_or_b32 v19, s63, v19
    v_xor_b32 v16, v16, v19
    """)
    a("v_mul_f32 v16, %s, v16" % f32(-1.4426950408889634))
    a("""
    v_exp_f32 v16, v16
    v_add_f32 v16, 1.0, v16
    v_rcp_f32 v16, v16
    s_waitcnt lgkmcnt(0)
    v_mul_f32 v16, v16, v8
    v_mov_b32 v36, 0
    v_mov_b32 v37, 0
    v_mov_b32 v38, 0
    v_mov_b32 v39, 0
    """)
    a("s_mov_b32 s54, %d" % SPIN)
    a.label("L_poll_part")
    a("""
    buffer_load_dwordx4 v[24:27], v9, s[12:15], s48 offen sc1
    buffer_load_dwordx4 v[28:31], v9, s[12:15], s49 offen sc1
    buffer_load_dwordx4 v[32:35], v9, s[12:15], s52 offen sc1
    s_mov_b32 exec_hi, 0
    buffer_load_dwordx4 v[36:39], v9, s[12:15], s53 offen sc1
    s_mov_b32 exec_hi, -1
    s_waitcnt vmcnt(0)
    v_max3_u32 v40, v24, v25, v26
    v_max3_u32 v41, v27, v28, v29
    v_max3_u32 v42, v30, v31, v32
    v_max3_u32 v43, v33, v34, v35
    v_max3_u32 v40, v40, v36, v37
    v_max3_u32 v41, v41, v38, v39
    v_max3_u32 v40, v40, v41, v42
    v_max_u32 v40, v40, v43
    v_cmp_eq_u32 vcc, -1, v40
    s_cmp_eq_u64 vcc, 0
    """)
    poll_tail(a, "L_poll_part", "s54")
    stamp(a, 12)
    a("""
    v_pk_add_f32 v[24:25], v[24:25], v[28:29]
    v_pk_add_f32 v[26:27], v[26:27], v[30:31]
    v_pk_add_f32 v[32:33], v[32:33], v[36:37]
    v_pk_add_f32 v[34:35], v[34:35], v[38:39]
    v_pk_add_f32 v[24:25], v[24:25], v[32:33]
    v_pk_add_f32 v[26:27], v[26:27], v[34:35]
    v_permlane32_swap_b32 v24, v26
    v_permlane32_swap_b32 v25, v27
    v_pk_add_f32 v[24:25], v[24:25], v[26:27]
    v_permlane16_swap_b32 v24, v25
    v_add_f32 v24, v24, v25
    """)
    a("v_lshlrev_b32 v20, 16, v20")
    dpp_sum(a, [24], ROR[:2])
    a("""
    v_fmac_f32 v20, v24, v16
    v_cvt_pk_bf16_f32 v20, v20, v20
    s_mov_b32 exec_lo, 0x000f000f
    s_mov_b32 exec_hi, 0x000f000f
    buffer_store_short v20, v17, s[16:19], 0 offen sc1
    s_cmp_lg_u32 s2, 0
    s_cbranch_scc1 L_done
    s_mov_b64 exec, 1
    """)
    a("s_mov_b32 s55, 0x%x" % WS_GEN)
    a("buffer_store_dword v249, off, s[12:15], s55 sc1")
    if PROBE >= 0:
        a("s_waitcnt vmcnt(0)")
        a("s_memrealtime s[98:99]")
        a("s_waitcnt lgkmcnt(0)")
        a("s_sub_u32 s60, s98, s96")
        a("s_mul_i32 s60, s60, %d" % PROBE)
        a("s_min_u32 s60, s60, 8000")
        a.label("L_probe")
        a("s_memrealtime s[96:97]")
        a("s_waitcnt lgkmcnt(0)")
        a("s_sub_u32 s61, s96, s98")
        a("s_cmp_lt_u32 s61, s60")
        a("s_cbranch_scc1 L_probe")
    a("s_branch L_done")
    a.label("L_ffn")
    a.join(stf)
    K = 16
    a("s_mov_b32 s55, 0x%x" % WS_KEYS)
    a("s_mov_b32 s54, %d" % SPIN)
    for i in range(4):
        a("buffer_load_dwordx4 %s, v6, s[12:15], s55 offen offset:%d sc1" % (v(K + 4 * i, 4), 1024 * i))
    WF, WD = 64, 96
    a("""
    s_mul_i32 s7, s5, 12288
    v_bfe_u32 v4, v0, 2, 4                ; 4q + r
    v_and_b32 v5, 3, v0
    v_lshlrev_b32 v5, 3, v5
    v_lshl_add_u32 v8, v4, 6, v5
    v_add_u32 v8, s7, v8
    v_bfe_u32 v9, v0, 2, 2
    v_lshl_add_u32 v9, v2, 3, v9
    v_lshl_add_u32 v9, v9, 7, v5
    v_add_u32 v9, s7, v9
    """)
    for kk in range(2):
        for mt in range(4):
            for hf in range(2):
                a("ds_read_b64_tr_b16 %s, v8 offset:%d" % (v(WF + 16 * kk + 4 * mt + 2 * hf, 2), (mt // 2) * 4096 + hf * 2048 + kk * 1024 + (mt % 2) * 32))
    for t in range(4):
        for hf in range(2):
            a("ds_read_b64_tr_b16 %s, v9 offset:%d" % (v(WD + 4 * t + 2 * hf, 2), 8192 + hf * 512 + t * 32))
    a("""
    v_and_b32 v10, 1, v0
    v_cmp_eq_u32 s[50:51], 1, v10
    v_lshlrev_b32 v11, 7, v3
    v_lshl_add_u32 v11, v2, 4, v11
    v_lshlrev_b32 v12, 11, v10
    v_lshl_add_u32 v13, v2, 7, v12
    v_lshl_add_u32 v13, v3, 2, v13
    v_lshrrev_b32 v14, 1, v1
    v_lshl_add_u32 v14, v2, 3, v14
    v_lshl_add_u32 v14, v14, 5, v12
    """)
    a("v_add_u32 v13, %d, v13                 ; partial write address" % LDS_RED)
    a("v_add_u32 v14, %d, v14                 ; partial read address" % LDS_RED)
    a("""
    v_lshlrev_b32 v15, 9, v3
    v_lshl_add_u32 v15, v1, 4, v15
    s_waitcnt vmcnt(0)
    s_mov_b64 exec, 1
    buffer_store_dword v249, off, s[12:15], s58 sc1
    s_mov_b64 exec, -1
    s_branch L_poll_keys_chk
    """)
    a.label("L_poll_keys", reset=True)
    for i in range(4):
        a("buffer_load_dwordx4 %s, v6, s[12:15], s55 offen offset:%d sc1" % (v(K + 4 * i, 4), 1024 * i))
    a("s_waitcnt vmcnt(0)")
    a.label("L_poll_keys_chk")
    a("""
    v_min3_u32 v32, v17, v19, v21
    v_max3_u32 v33, v17, v19, v21
    v_min3_u32 v32, v32, v23, v25
    v_max3_u32 v33, v33, v23, v25
    v_min3_u32 v32, v32, v27, v29
    v_max3_u32 v33, v33, v27, v29
    v_min_u32 v32, v32, v31
    v_max_u32 v33, v33, v31
    v_cmp_eq_u32 vcc, v32, v249
    v_cmp_eq_u32 s[60:61], v33, v249
    s_and_b64 vcc, vcc, s[60:61]
    s_cmp_eq_u64 vcc, -1
    """)
    poll_tail(a, "L_poll_keys", "s54")
    stamp(a, 11)
    a("""
    v_med3_u32 v34, v16, v20, v24
    v_max3_u32 v32, v16, v20, v24
    v_max3_u32 v33, v18, v22, v26
    v_min_u32 v35, v32, v28
    v_max_u32 v32, v32, v28
    v_max3_u32 v33, v33, v30, v34
    v_max_u32 v33, v33, v35
    """)
    for mod in ROR:
        a("v_min_u32_dpp v34, v32, v32 %s" % mod)
        a("v_max_u32_dpp v33, v33, v33 %s" % mod)
        a("v_max_u32_dpp v32, v32, v32 %s" % mod)
        a("v_max_u32 v33, v33, v34")
    for mod in BC:
        a("v_min_u32_dpp v34, v32, v32 %s" % mod)
        a("v_max_u32_dpp v33, v33, v33 %s" % mod)
        a("v_max_u32_dpp v32, v32, v32 %s" % mod)
        a("v_max_u32 v33, v33, v34")
    a("""
    v_readlane_b32 s60, v32, 63
    v_readlane_b32 s61, v33, 63
    v_mov_b32 v32, s60
    v_mov_b32 v34, s61
    v_cndmask_b32 v36, v32, v34, s[50:51]
    v_and_b32 v36, 0x7ff, v36
    v_lshl_add_u32 v11, v36, 10, v11
    """)
    a("s_mov_b32 s55, 0x%x" % WS_H2)
    a("""
    buffer_load_dwordx4 v[16:19], v11, s[12:15], s55 offen sc1
    buffer_load_dwordx4 v[20:23], v11, s[12:15], s55 offen offset:64 sc1
    s_lshl_b32 s59, s59, 3
    s_or_b32 s59, s59, s5
    s_cmp_lg_u32 s59, 0
    s_cbranch_scc1 L_nosel
    v_mov_b32 v33, v249
    v_mov_b32 v35, v249
    s_lshl_b32 s59, s3, 7
    """)
    a("s_add_u32 s59, s59, 0x%x" % WS_SEL)
    a("""
    s_mov_b64 exec, 1
    buffer_store_dwordx4 v[32:35], off, s[12:15], s59 sc1
    s_mov_b64 exec, -1
    """)
    a.label("L_nosel")
    a("s_waitcnt vmcnt(0) lgkmcnt(0)")
    stamp(a, 12)
    C = 40
    for kk in range(2):
        for mt in range(4):
            c = v(C + 4 * mt, 4)
            a("v_mfma_f32_16x16x32_bf16 %s, %s, %s, %s" % (c, v(WF + 16 * kk + 4 * mt, 4), v(16 + 4 * kk, 4), "0" if kk == 0 else c))
    a("s_mov_b32 exec_lo, 0x00030003")
    a("s_mov_b32 exec_hi, 0x00030003")
    for mt in range(4):
        if mt == 2:
            a("v_add_u32 v13, 1024, v13")
        for jp in range(2):
            o = (mt % 2) * 128 + 16 * jp
            a("ds_write2_b32 v13, %s, %s offset0:%d offset1:%d" % (v(C + 4 * mt + 2 * jp), v(C + 4 * mt + 2 * jp + 1), o, o + 8))
    a("""
    s_mov_b64 exec, -1
    s_waitcnt lgkmcnt(0)
    s_barrier
    ds_read_b128 v[16:19], v14
    ds_read_b128 v[20:23], v14 offset:16
    ds_read_b128 v[24:27], v14 offset:1024
    ds_read_b128 v[28:31], v14 offset:1040
    s_waitcnt lgkmcnt(2)
    v_pk_add_f32 v[16:17], v[16:17], v[18:19]
    v_pk_add_f32 v[20:21], v[20:21], v[22:23]
    v_pk_add_f32 v[16:17], v[16:17], v[20:21]
    v_add_f32 v16, v16, v17
    """)
    a("v_mul_f32 v17, %s, v16" % f32(-1.4426950408889634))
    a("""
    v_exp_f32 v17, v17
    s_waitcnt lgkmcnt(0)
    v_pk_add_f32 v[24:25], v[24:25], v[26:27]
    v_add_f32 v17, 1.0, v17
    v_pk_add_f32 v[28:29], v[28:29], v[30:31]
    v_rcp_f32 v17, v17
    v_pk_add_f32 v[24:25], v[24:25], v[28:29]
    v_add_f32 v24, v24, v25
    v_mul_f32 v16, v16, v17
    v_mul_f32 v16, v16, v24
    v_mov_b32_dpp v17, v16 row_ror:14 row_mask:0xf bank_mask:0xf
    v_cvt_pk_bf16_f32 v20, v16, v17
    v_mov_b32_dpp v21, v20 row_ror:12 row_mask:0xf bank_mask:0xf
    v_mov_b32_dpp v22, v20 row_ror:8 row_mask:0xf bank_mask:0xf
    v_mov_b32_dpp v23, v20 row_ror:4 row_mask:0xf bank_mask:0xf
    """)
    for t in range(4):
        a("v_mfma_f32_16x16x32_bf16 %s, v[20:23], %s, 0" % (v(C + 4 * t, 4), v(WD + 4 * t, 4)))
    a("""
    s_mov_b64 exec, 0xffff
    v_mov_b32 v42, v44
    v_mov_b32 v43, v45
    buffer_store_dwordx4 v[40:43], v15, s[12:15], s46 offen sc1
    v_mov_b32 v50, v52
    v_mov_b32 v51, v53
    buffer_store_dwordx4 v[48:51], v15, s[12:15], s46 offen offset:256 sc1
    """)
    a.label("L_done", reset=True)
    stamp_end(a)
    a.label("L_end")
    a("s_endpgm")
    desc = """.section .rodata,"a"
.p2align 6
.amdhsa_kernel %s
  .amdhsa_next_free_vgpr 256
  .amdhsa_next_free_sgpr 100
  .amdhsa_accum_offset 256
  .amdhsa_group_segment_fixed_size 0
  .amdhsa_kernarg_size 120
  .amdhsa_user_sgpr_count 2
  .amdhsa_user_sgpr_kernarg_segment_ptr 1
  .amdhsa_system_sgpr_workgroup_id_x 1
.end_amdhsa_kernel
""" % KN
    return HEADER + "; @launch grid=(256,1,1) block=(512,1,1) lds=%d\n" % LDS_TOTAL + a.text() + desc


if __name__ == "__main__":
    out = sys.argv[1] if len(sys.argv) > 1 and sys.argv[1].endswith(".s") else "v2.s"
    open(out, "w").write(build())
    print("wrote", out)
```

```python
import sys, struct
from asmlib import Asm, Ins, v, s

NAME = "adaLN_cond__spectral_fnet__moe_arch_mod__prompt"
KN = NAME + "_kernel"
HEADER = open("cdna_kernels/%s.s.ref" % NAME).read().split("; Override launch geometry")[0]


def opt(name, default):
    for x in sys.argv:
        if x.startswith("--%s=" % name):
            return int(x.split("=")[1], 0)
    return default


STAMPS = "--stamps" in sys.argv
PROBE = opt("probe", -1)
HINT = opt("hint", 0)
KSTR = opt("kstr", 64)
NOFFN = opt("noffn", 0)
NOCAND = opt("nocand", 0)
ROT = opt("rot", 1)
HELP = opt("help", 1)
DRY = opt("dry", 0)
PDELAY = opt("pdelay", 0)
T64 = opt("t64", 1)
NEARLY = opt("nearly", 4)
PITCH = 288
CPF = opt("cpf", 0)
POIS = opt("pois", 0)
EARLYC = opt("earlyc", 0)

WS_MOD = 0x0
WS_GEN = 0x3000
WS_SEL = 0x3400
WS_FLAG = 0x8000
WS_KEYS = 0x10000
WS_PART = 0x80000
WS_CAND = 0x100000
WS_INTER = 0x200000
WS_SIZE = 0x400000
WS_STAMP = 0x600000
if STAMPS:
    WS_SIZE = 0x800000
EPS = 1e-5
TAGC = 0x9E3779B9
SPIN = 1 << 15

LDS_U = 98304
LDS_VEC = LDS_U + 20480
LDS_KEY = LDS_VEC + 8192
LDS_KEY2 = LDS_KEY + 32
LDS_RED = LDS_KEY + 64
LDS_OUT = LDS_U
LDS_TOTAL = LDS_RED + 4096

FR, FI, TC, TS, G, SA = 200, 204, 208, 216, 224, 240
VQ4, VTAG = 248, 249


def f32(x):
    return "0x%08x" % struct.unpack("<I", struct.pack("<f", x))[0]


def srd(a, base, nbytes):
    a("s_mov_b32 %s, 0x%x" % (s(base + 2), nbytes))
    a("s_mov_b32 %s, 0x20000" % s(base + 3))


NST = 14


def stamp(a, i):
    if PROBE >= 0 and i == 0:
        a("s_memrealtime s[96:97]")
    if not STAMPS:
        return
    if i == 0:
        a("s_memrealtime s[96:97]")
        for k in range(1, NST):
            a("s_mov_b32 %s, 0" % s(64 + 2 * k))
    a("s_memtime %s" % s(64 + 2 * i, 2))


def stamp_end(a):
    if not STAMPS:
        return
    a("s_waitcnt vmcnt(0)")
    a("s_memtime %s" % s(64 + 2 * (NST - 1), 2))
    a("s_memrealtime s[98:99]")
    a("s_mov_b64 exec, 1")
    a("s_lshl_b32 s93, s2, 3")
    a("s_add_u32 s93, s93, s5")
    a("s_lshl_b32 s93, s93, 6")
    a("s_add_u32 s93, s93, 0x%x" % WS_STAMP)
    a("s_waitcnt lgkmcnt(0)")
    a("v_mov_b32 v16, s96")
    a("v_mov_b32 v17, s98")
    for k in range(NST):
        a("v_mov_b32 %s, %s" % (v(18 + k), s(64 + 2 * k)))
    for k in range(4):
        a("buffer_store_dwordx4 %s, off, s[12:15], s93 offset:%d" % (v(16 + 4 * k, 4), 16 * k))


ROR = ["row_ror:%d row_mask:0xf bank_mask:0xf" % r for r in (8, 4, 2, 1)]
BC = ["row_bcast:15 row_mask:0xa bank_mask:0xf", "row_bcast:31 row_mask:0xc bank_mask:0xf"]


def dpp_sum(a, regs_, mods):
    for mod in mods:
        for r in regs_:
            a("v_add_f32_dpp %s, %s, %s %s" % (v(r), v(r), v(r), mod))


def poll_tail(a, label, cnt):
    a("s_cbranch_scc1 %s_ok" % label)
    a("s_sub_u32 %s, %s, 1" % (cnt, cnt))
    a("s_cbranch_scc0 %s" % label)
    a.label(label + "_ok")


def hidden_consts(a, t0):
    t = [v(t0 + i) for i in range(15)]
    a("v_cvt_f32_u32 %s, v1" % t[0])
    a("v_mul_f32 %s, %s, %s" % (t[0], f32(1 / 512), t[0]))
    a("v_mul_f32 %s, %s, %s" % (t[1], t[0], v(VQ4)))
    a("v_mul_f32 %s, %s, %s" % (t[2], f32(16.0), t[0]))
    for j in range(4):
        if j:
            a("v_add_f32 %s, %s, %s" % (t[1], t[1], t[0]))
        a("v_mul_f32 %s, %s, %s" % (t[3], f32(32.0), t[1]))
        a("v_mul_f32 %s, %s, %s" % (t[4], f32(16.0), t[1]))
        a("v_add_f32 %s, %s, %s" % (t[5], t[1], t[2]))
        a("v_cos_f32 %s, %s" % (v(TC + j), t[1]))
        a("v_sin_f32 %s, %s" % (v(TS + j), t[1]))
        a("v_cos_f32 %s, %s" % (t[6], t[3]))
        a("v_sin_f32 %s, %s" % (t[3], t[3]))
        a("v_cos_f32 %s, %s" % (v(TC + 4 + j), t[5]))
        a("v_sin_f32 %s, %s" % (v(TS + 4 + j), t[5]))
        a("v_cos_f32 %s, %s" % (t[7 + j], t[4]))
        a("v_sin_f32 %s, %s" % (t[11 + j], t[4]))
        a("v_cvt_pk_bf16_f32 %s, %s, %s" % (v(FR + j), t[6], t[3]))
        a("v_cvt_pk_bf16_f32 %s, -%s, %s" % (v(FI + j), t[3], t[6]))
    for j in range(4):
        a("v_cvt_pk_bf16_f32 %s, %s, %s" % (v(G + j), t[7 + 2 * j], t[8 + 2 * j]))
    a("v_lshlrev_b32 %s, 31, v1" % t[3])
    a("v_lshrrev_b32 %s, 16, %s" % (t[4], t[3]))
    a("v_or_b32 %s, %s, %s" % (t[3], t[3], t[4]))
    for j in range(4):
        a("v_xor_b32 %s, s63, %s" % (v(G + 4 + j), v(G + j)))
        a("v_xor_b32 %s, %s, %s" % (v(G + 8 + j), t[3], v(G + j)))
        a("v_xor_b32 %s, s63, %s" % (v(G + 12 + j), v(G + 8 + j)))


def code_prefetch(a):
    if not CPF:
        return
    a("s_cmp_lt_u32 s2, 232")
    a("s_cbranch_scc1 L_cpf")
    a("s_getpc_b64 s[60:61]")
    a.label("L_cpf_pc")
    a("v_lshlrev_b32 v192, 7, v0")
    a("v_min_u32 v192, L_end-L_cpf_pc, v192")
    a("v_mov_b32 v193, 0")
    a("v_lshl_add_u64 v[192:193], v[192:193], 0, s[60:61]")
    n = len(a.vm)
    a("global_load_dword v196, v[192:193], off")
    del a.vm[n:]
    a.label("L_cpf")


def stage(a):
    a("s_mov_b64 s[32:33], s[18:19]")
    a("s_mov_b64 s[36:37], s[20:21]")
    a("s_mov_b64 s[40:41], s[22:23]")
    srd(a, 32, 512 * 3584)
    srd(a, 36, 512 * 3584)
    srd(a, 40, 1792 * 1024)
    a("""
    s_and_b32 s44, s5, 1
    s_lshl_b32 s44, s44, 7
    s_lshr_b32 s48, s5, 1
    s_lshl2_add_u32 s44, s48, s44
    v_bfe_u32 v4, v0, 2, 2
    v_lshl_add_u32 v4, v2, 4, v4
    v_add_u32 v4, s44, v4
    v_mul_u32_u24 v4, 3584, v4
    v_and_b32 v5, 3, v0
    v_lshl_add_u32 v4, v5, 4, v4
    s_lshl_b32 s48, s6, 6
    s_mul_i32 m0, s5, 12288
    """)
    a("s_add_u32 s49, s48, %d" % (64 * 3584))
    a("s_add_u32 s50, s48, %d" % (256 * 3584))
    a("s_add_u32 s51, s48, %d" % (320 * 3584))
    for sr in (32, 36):
        for i in range(4):
            a("buffer_load_dwordx4 v4, %s, %s offen lds" % (s(sr, 4), s(48 + i)))
            a("s_add_u32 m0, m0, 1024")
    a("""
    v_bfe_u32 v5, v0, 3, 3
    v_lshlrev_b32 v5, 10, v5
    v_and_b32 v4, 7, v0
    v_lshl_add_u32 v5, v4, 4, v5
    v_lshl_add_u32 v5, v3, 7, v5
    s_lshl_b32 s48, s6, 15
    """)
    for i in range(4):
        a("buffer_load_dwordx4 v5, s[40:43], s48 offen lds")
        if i < 3:
            a("s_add_u32 m0, m0, 1024")
            a("s_add_u32 s48, s48, 8192")


def touch_setup(a):
    a("""
    s_cmp_eq_u32 s5, 5
    s_cselect_b64 s[32:33], s[18:19], s[20:21]
    s_cmp_eq_u32 s5, 7
    s_cselect_b64 s[32:33], s[22:23], s[32:33]
    s_mov_b32 s34, 0x1c0000
    s_mov_b32 s35, 0x20000
    s_movk_i32 s36, 3584
    s_cselect_b32 s36, 1024, s36
    s_mul_i32 s37, s3, 448
    %s
    s_mul_i32 s38, s4, 57344
    s_add_u32 s37, s37, s38
    s_add_u32 s37, s37, 28672
    s_lshl_b32 s38, s3, 5
    s_add_u32 s38, s38, s4
    s_mul_i32 s38, s38, 7168
    s_add_u32 s38, s38, 512
    s_cmp_eq_u32 s5, 7
    s_cselect_b32 s37, s38, s37
    s_cmp_lt_u32 s5, 5
    s_cselect_b32 s37, 0x7fff0000, s37
    v_bfe_u32 v198, v0, %d, 3
    v_mul_u32_u24 v198, s36, v198
    v_and_b32 v197, %d, v0
    v_lshl_add_u32 v198, v197, %d, v198
    """ % (("s_nop 0", 3, 7, 6) if T64 else ("s_and_b32 s37, s37, 0xffffff80", 2, 3, 7)))


def get_tag(a):
    a("s_waitcnt lgkmcnt(0)")
    a("s_add_u32 s47, s47, 0x%x               ; hand-off tag of this launch" % TAGC)
    a("v_mov_b32 %s, s47" % v(VTAG))


def flag_store(a):
    a("s_lshl_b32 s53, s2, 7")
    a("s_add_u32 s53, s53, 0x%x" % WS_FLAG)
    a("s_mov_b64 exec, 1")
    a("buffer_store_dword %s, off, s[12:15], s53 sc1" % v(VTAG))
    a("s_mov_b64 exec, -1")


def build():
    a = Asm()
    a.raw('.amdgcn_target "amdgcn-amd-amdhsa--gfx950"')
    a.raw(".text")
    a.raw(".globl %s" % KN)
    a.raw(".p2align 8")
    a.raw(".type %s,@function" % KN)
    a.label(KN, reset=True)
    a("s_cmp_ge_u32 s2, 256")
    a("s_cbranch_scc1 L_end")
    stamp(a, 0)
    a("s_load_dwordx2 s[8:9], s[0:1], 0")
    a("s_load_dwordx2 s[12:13], s[0:1], 112")
    a("s_load_dwordx16 s[16:31], s[0:1], 48")
    code_prefetch(a)
    a("""
    v_lshrrev_b32 v3, 6, v0               ; wave
    v_and_b32 v1, 15, v0                  ; n
    v_bfe_u32 v2, v0, 4, 2                ; q
    v_readfirstlane_b32 s5, v3
    s_and_b32 s3, s2, 7                   ; x
    s_lshr_b32 s4, s2, 3                  ; y
    v_and_b32 v250, 63, v0
    v_lshlrev_b32 v250, 4, v250           ; lane*16
    v_mov_b32 v252, -1
    v_mov_b32 v253, -1
    v_mov_b32 v254, -1
    v_mov_b32 v255, -1
    s_mov_b32 s63, 0x80000000
    """)
    a("v_cvt_f32_u32 %s, v2" % v(VQ4))
    srd(a, 8, 2048 * 1024)
    srd(a, 12, WS_SIZE)
    a("v_mul_f32 %s, 4.0, %s" % (v(VQ4), v(VQ4)))
    a("""
    s_lshl_b32 s62, s5, 10
    s_lshl_b32 s45, s2, 12
    s_add_u32 s45, s45, s62
    """)
    a("s_add_u32 s45, s45, 0x%x" % WS_CAND)
    a("s_cmp_lt_u32 s5, %d" % (0 if NOCAND else 4))
    a("s_cselect_b32 s45, s45, 0x7fff0000")
    a("s_cmp_ge_u32 s4, 16")
    st0 = a.fork()
    a("s_cbranch_scc1 L_p1_notdft")
    a("""
    s_lshr_b32 s6, s4, 2
    s_lshl3_add_u32 s6, s6, s3            ; s2 index
    s_and_b32 s7, s4, 3
    s_lshl_b32 s44, s6, 10
    """)
    for g in range(4):
        a("s_add_u32 s46, s7, %d" % g)
        a("s_and_b32 s46, s46, 3")
        a("s_lshl_b32 s46, s46, 8")
        a("s_add_u32 %s, s46, s44" % s(48 + g))
    a("""
    %s
    s_and_b32 s46, s46, 7
    s_lshl_b32 s46, s46, 3
    v_add_u32 v4, s46, v2                 ; s1 = 8*((w+2*slice)&7) + q (+4 for the second group)
    v_lshlrev_b32 v5, 4, v1
    v_lshl_or_b32 v6, v4, 15, v5
    v_add_u32 v7, 0x20000, v6
    """ % ("s_lshl1_add_u32 s46, s7, s5" if ROT else "s_mov_b32 s46, s5"))
    a("s_waitcnt lgkmcnt(0)")
    stamp(a, 1)
    X = 16
    for i in range(4):
        for g in range(2):
            a("buffer_load_dwordx4 %s, %s, s[8:11], %s offen" % (v(X + 16 * g + 4 * i, 4), v(6 + g), s(48 + i)))
    a("s_branch L_dft")
    dft_state = a.fork()
    mark_dft = len(a.lines)
    a.label("L_dft")
    a("s_load_dword s47, s[12:13], 0x%x" % WS_GEN)
    a("""
    v_and_b32 v8, 3, v3                   ; M tile
    v_lshrrev_b32 v12, 8, v0
    v_lshlrev_b32 v13, 1, v2
    v_lshl_add_u32 v13, v8, 3, v13
    v_lshlrev_b32 v13, 16, v13
    v_lshl_add_u32 v13, v12, 8, v13
    v_add_u32 v13, v13, v5
    s_lshl_b32 s54, s6, 11
    s_lshl_b32 s55, s7, 9
    s_add_u32 s54, s54, s55
    """)
    a("s_add_u32 s54, s54, 0x%x" % WS_INTER)
    a("s_add_u32 s55, s54, 0x10000")
    def poison():
        a("buffer_store_dwordx4 v[252:255], v13, s[12:15], s54 offen sc1")
        a("buffer_store_dwordx4 v[252:255], v13, s[12:15], s55 offen sc1")
        a("buffer_store_dwordx4 v[252:255], v250, s[12:15], s45 offen sc1")
    if POIS == 0:
        poison()
    WA = 48
    a("""
    v_lshrrev_b32 v9, 1, v1
    v_lshl_add_u32 v9, v8, 3, v9          ; slot
    v_and_b32 v10, 1, v1
    v_lshl_or_b32 v11, v9, 1, v10
    v_cmp_eq_u32 vcc, 1, v11
    v_cvt_f32_u32 v10, v10
    v_lshlrev_b32 v15, 31, v9
    v_cndmask_b32 v11, v9, 32, vcc
    """)
    a("v_mul_f32 v10, %s, v10" % f32(0.25))
    a("v_cvt_f32_u32 v11, v11")
    a("v_cndmask_b32 v10, v10, 0, vcc")
    a("v_mul_f32 v11, %s, v11" % f32(1 / 64))
    a("v_fmac_f32 v10, v11, %s" % v(VQ4))
    a("v_lshrrev_b32 v14, 16, v15")
    a("v_or_b32 v15, v15, v14")
    T = 56
    a("v_cos_f32 %s, v10" % v(T))
    for j in range(1, 8):
        a("v_add_f32 v10, v10, v11" if j != 4 else "v_fmac_f32 v10, %s, v11" % f32(13.0))
        a("v_cos_f32 %s, v10" % v(T + j))
    for j in range(4):
        a("v_cvt_pk_bf16_f32 %s, %s, %s" % (v(WA + j), v(T + 2 * j), v(T + 2 * j + 1)))
    for j in range(4):
        a("v_xor_b32 %s, v15, %s" % (v(WA + 4 + j), v(WA + j)))
    a("""
    v_mul_u32_u24 v10, 288, v4
    v_add_u32 v10, v10, v5
    v_bfe_u32 v11, v0, 2, 4
    v_mul_u32_u24 v11, 288, v11
    v_and_b32 v14, 3, v0
    v_lshl_add_u32 v11, v14, 3, v11
    v_lshl_add_u32 v11, v12, 7, v11
    s_mov_b32 s52, 0x3f803f80
    v_mov_b32 v56, 0
    v_mov_b32 v57, 0
    v_mov_b32 v58, 0
    v_mov_b32 v59, 0
    """)
    if EARLYC:
        hidden_consts(a, 100)
    stamp(a, 2)
    U = 64
    for i in range(4):
        for g in range(2):
            a.wait_vm_for(v(X + 16 * g + 4 * i, 4))
            if i == 0 and g == 0:
                stamp(a, 3)
            if (POIS == 1 and i == 0 and g == 0) or (POIS == 2 and i == 2 and g == 0) or (POIS == 3 and i == 3 and g == 1):
                poison()
            for d in range(4):
                x = v(X + 16 * g + 4 * i + d)
                a("v_dot2c_f32_bf16 %s, s52, %s" % (v(56 + g), x))
                a("v_dot2c_f32_bf16 %s, %s, %s" % (v(58 + g), x, x))
            if i == 0:
                for d in range(4):
                    a("v_lshlrev_b32 %s, 16, %s" % (v(U + 8 * g + 2 * d), v(X + 16 * g + d)))
                    a("v_and_b32 %s, 0xffff0000, %s" % (v(U + 8 * g + 2 * d + 1), v(X + 16 * g + d)))
    stamp(a, 4)
    dpp_sum(a, [56, 57, 58, 59], ROR)
    for g in range(2):
        a("v_mul_f32 %s, %s, %s" % (v(56 + g), f32(1 / 512), v(56 + g)))
    for g in range(2):
        a("v_mul_f32 %s, %s, %s" % (v(60 + 2 * g), v(56 + g), v(56 + g)))
    for g in range(2):
        a("v_sub_f32 %s, %s, %s" % (v(60 + 2 * g), f32(EPS), v(60 + 2 * g)))
    for g in range(2):
        a("v_fmac_f32 %s, %s, %s" % (v(60 + 2 * g), f32(1 / 512), v(58 + g)))
    for g in range(2):
        a("v_rsq_f32 %s, %s" % (v(60 + 2 * g), v(60 + 2 * g)))
    for g in range(2):
        a("v_mul_f32 %s, %s, %s" % (v(61 + 2 * g), v(56 + g), v(60 + 2 * g)))
    for g in range(2):
        for e in range(8):
            a("v_fma_f32 %s, %s, %s, -%s" % (v(U + 8 * g + e), v(U + 8 * g + e), v(60 + 2 * g), v(61 + 2 * g)))
        for d in range(4):
            a("v_cvt_pk_bf16_f32 %s, %s, %s" % (v(X + 16 * g + d), v(U + 8 * g + 2 * d), v(U + 8 * g + 2 * d + 1)))
        a("ds_write_b128 v10, %s offset:%d" % (v(X + 16 * g, 4), 4 * PITCH * g))
    a("s_waitcnt vmcnt(0)")
    get_tag(a)
    a("s_barrier")
    stamp(a, 5)
    B = 64
    for ks in range(2):
        for i in range(4):
            for hf in range(2):
                a("ds_read_b64_tr_b16 %s, v11 offset:%d" % (v(B + 16 * ks + 4 * i + 2 * hf, 2), ks * 32 * PITCH + hf * 16 * PITCH + i * 32))
    if HINT == 0:
        a("s_cmp_lg_u32 s5, 0")
        a("s_cbranch_scc1 L_nohint0")
        flag_store(a)
        a.label("L_nohint0")
    ACC = 96
    for ks in range(2):
        for i in range(4):
            a.wait_lg_for(v(B + 16 * ks + 4 * i, 4))
            acc = v(ACC + 4 * i, 4)
            a("v_mfma_f32_16x16x32_bf16 %s, %s, %s, %s" % (acc, v(WA + 4 * ks, 4), v(B + 16 * ks + 4 * i, 4), "0" if ks == 0 else acc))
    O = 16
    for i in range(4):
        for p in range(2):
            a("v_cvt_pk_bf16_f32 %s, %s, %s" % (v(O + 4 * p + i), v(ACC + 4 * i + 2 * p), v(ACC + 4 * i + 2 * p + 1)))
    for p in range(2):
        a("buffer_store_dwordx4 %s, v13, s[12:15], %s offen sc1" % (v(O + 4 * p, 4), s(54 + p)))
    tgt = "L_p2_sconst" if EARLYC else "L_p2"
    if HINT == 1:
        a("s_cmp_lg_u32 s5, 0")
        a("s_cbranch_scc1 %s" % tgt)
        flag_store(a)
    a("s_branch %s" % tgt)
    dft_block = a.lines[mark_dft:]
    del a.lines[mark_dft:]
    a.label("L_p1_notdft")
    a.join(st0)
    a("s_cmp_ge_u32 s4, 22")
    st1 = a.fork()
    a("s_cbranch_scc1 L_p1_notmod")
    srd(a, 36, 512 * 6144)
    srd(a, 32, 1024)
    a("""
    s_sub_u32 s6, s2, 128
    s_lshl_b32 s48, s6, 7
    """)
    for i in range(1, 8):
        a("s_add_u32 %s, s48, %d" % (s(48 + i), 6144 * i))
    a("""
    v_lshrrev_b32 v4, 3, v0
    v_and_b32 v5, 7, v0
    v_mul_u32_u24 v6, 0xc000, v4
    v_lshl_add_u32 v6, v5, 4, v6
    v_and_b32 v7, 3, v0
    v_lshlrev_b32 v7, 2, v7
    v_lshl_add_u32 v7, v4, 4, v7
    s_waitcnt lgkmcnt(0)
    """)
    a("s_mov_b64 s[36:37], s[26:27]")
    a("s_mov_b64 s[32:33], s[24:25]")
    stamp(a, 1)
    a("buffer_load_dword v8, v7, s[32:35], 0 offen")
    W = 16
    for i in range(8):
        a("buffer_load_dwordx4 %s, v6, s[36:39], %s offen" % (v(W + 4 * i, 4), s(48 + i)))
    a("s_branch L_mod")
    mark_mod = len(a.lines)
    a.label("L_mod")
    a("s_load_dword s47, s[12:13], 0x%x" % WS_GEN)
    a("""
    s_mov_b32 s44, 0x05040100
    s_mov_b32 s46, 0x07060302
    s_lshr_b32 s48, s6, 3
    s_and_b32 s49, s6, 7
    s_lshl_b32 s49, s49, 6
    v_add_u32 v7, s49, v0                 ; e (wave 0)
    v_and_b32 v9, 0x1c0, v7
    v_lshl_add_u32 v9, v1, 2, v9
    v_add_u32 v9, v9, v2
    v_and_b32 v10, 0x103, v7
    v_bfe_u32 v11, v7, 2, 2
    v_lshl_add_u32 v10, v11, 6, v10
    v_bfe_u32 v11, v7, 4, 4
    v_lshl_add_u32 v10, v11, 2, v10
    s_cmp_lt_u32 s48, 2
    s_cselect_b64 s[50:51], -1, 0
    v_cndmask_b32 v9, v10, v9, s[50:51]
    v_lshlrev_b32 v9, 2, v9
    s_lshl_b32 s49, s48, 11
    s_cmp_eq_u32 s5, 0
    s_cselect_b32 s49, s49, 0x7fff0000
    buffer_store_dword v252, v9, s[12:15], s49 offen sc1
    buffer_store_dwordx4 v[252:255], v250, s[12:15], s45 offen sc1
    s_cmp_eq_u32 s48, 1
    s_cselect_b32 s50, 1.0, 0
    s_cmp_eq_u32 s48, 4
    s_cselect_b32 s50, 1.0, s50
    v_lshlrev_b32 v6, 2, v0
    v_lshlrev_b32 v10, 8, v3
    v_lshl_add_u32 v10, v5, 5, v10
    v_lshl_add_u32 v10, v2, 3, v10
    """)
    for j in range(8):
        a("v_mov_b32 %s, 0" % v(48 + j))
    stamp(a, 2)
    a.wait_vm_for("v8")
    stamp(a, 3)
    a("v_lshlrev_b32 v11, 16, v8")
    a("v_and_b32 v12, 0xffff0000, v8")
    a("v_mul_f32 v13, %s, v11" % f32(-1.4426950408889634))
    a("v_mul_f32 v14, %s, v12" % f32(-1.4426950408889634))
    a("""
    v_exp_f32 v13, v13
    v_exp_f32 v14, v14
    v_add_f32 v13, 1.0, v13
    v_add_f32 v14, 1.0, v14
    v_rcp_f32 v13, v13
    v_rcp_f32 v14, v14
    v_mul_f32 v11, v11, v13
    v_mul_f32 v12, v12, v14
    v_cvt_pk_bf16_f32 v8, v11, v12
    """)
    for p in range(4):
        a("v_mov_b32_dpp %s, v8 quad_perm:[%d,%d,%d,%d] row_mask:0xf bank_mask:0xf" % (v(12 + p), p, p, p, p))
    for p in range(4):
        a.wait_vm_for(v(W + 8 * p, 8))
        for jj in range(4):
            a("v_perm_b32 %s, %s, %s, s44" % (v(56 + 2 * jj), v(W + 8 * p + 4 + jj), v(W + 8 * p + jj)))
            a("v_perm_b32 %s, %s, %s, s46" % (v(57 + 2 * jj), v(W + 8 * p + 4 + jj), v(W + 8 * p + jj)))
        for j in range(8):
            a("v_dot2c_f32_bf16 %s, %s, %s" % (v(48 + j), v(12 + p), v(56 + j)))
    stamp(a, 4)
    for j in range(4):
        a("v_permlane32_swap_b32 %s, %s" % (v(48 + j), v(52 + j)))
    for j in range(4):
        a("v_add_f32 %s, %s, %s" % (v(48 + j), v(48 + j), v(52 + j)))
    for j in range(2):
        a("v_permlane16_swap_b32 %s, %s" % (v(48 + j), v(50 + j)))
    for j in range(2):
        a("v_add_f32 %s, %s, %s" % (v(48 + j), v(48 + j), v(50 + j)))
    dpp_sum(a, [48, 49], ROR[:1])
    a("""
    s_mov_b32 exec_lo, 0x00ff00ff
    s_mov_b32 exec_hi, 0x00ff00ff
    ds_write_b64 v10, v[48:49]
    s_mov_b64 exec, -1
    s_waitcnt vmcnt(0)
    """)
    get_tag(a)
    a("s_barrier")
    stamp(a, 5)
    a("""
    s_cmp_lg_u32 s5, 0
    s_cbranch_scc1 L_p2
    ds_read2st64_b32 v[48:49], v6 offset0:0 offset1:1
    ds_read2st64_b32 v[50:51], v6 offset0:2 offset1:3
    ds_read2st64_b32 v[52:53], v6 offset0:4 offset1:5
    ds_read2st64_b32 v[54:55], v6 offset0:6 offset1:7
    s_waitcnt lgkmcnt(0)
    v_add_f32 v48, v48, v49
    v_add_f32 v50, v50, v51
    v_add_f32 v52, v52, v53
    v_add_f32 v54, v54, v55
    v_add_f32 v48, v48, v50
    v_add_f32 v52, v52, v54
    v_add_f32 v48, v48, v52
    v_cvt_pk_bf16_f32 v48, v48, v48
    v_and_b32 v48, 0xffff0000, v48
    v_add_f32 v48, s50, v48
    v_cvt_pk_bf16_f32 v48, v48, v48
    v_and_b32 v48, 0xffff0000, v48
    buffer_store_dword v48, v9, s[12:15], s49 offen sc1
    """)
    flag_store(a)
    a("s_branch L_p2")
    mod_block = a.lines[mark_mod:]
    del a.lines[mark_mod:]
    a.label("L_p1_notmod")
    a.join(st1)
    a("s_cmp_ge_u32 s4, 29")
    st2 = a.fork()
    a("s_cbranch_scc0 L_p1_stage")
    srd(a, 36, 512 * 6144)
    a("""
    s_sub_u32 s6, s4, 29
    s_lshl_b32 s6, s6, 11
    s_lshl_b32 s7, s3, 7
    s_add_u32 s6, s6, s7
    s_add_u32 s6, s6, 0x180000
    v_lshrrev_b32 v4, 1, v0
    v_mul_u32_u24 v4, 6144, v4
    v_and_b32 v5, 1, v0
    v_lshl_add_u32 v4, v5, 10, v4
    s_waitcnt lgkmcnt(0)
    s_mov_b64 s[36:37], s[26:27]
    """)
    a("s_load_dword s47, s[12:13], 0x%x" % WS_GEN)
    if HELP:
        a("buffer_load_dword v196, v4, s[36:39], s6 offen")
    a("s_branch L_p1_idle")
    a.label("L_p1_stage")
    a.join(st2)
    a("""
    s_mul_i32 s6, s3, 7
    s_add_u32 s6, s6, s4
    s_sub_u32 s6, s6, 22
    s_lshl_b32 s46, s6, 12
    """)
    a("s_add_u32 s46, s46, 0x%x               ; partial-sum slab" % WS_PART)
    a("s_add_u32 s48, s46, s62")
    a("s_sub_u32 s48, s48, 4096")
    a("s_cmp_lt_u32 s5, 4")
    a("s_cselect_b32 s45, s45, s48")
    a("s_waitcnt lgkmcnt(0)")
    a("s_load_dword s47, s[12:13], 0x%x" % WS_GEN)
    a("s_cmp_ge_u32 s5, %d" % NEARLY)
    a("s_cbranch_scc1 L_p1_idle")
    stamp(a, 1)
    stage(a)
    a.label("L_p1_idle")
    a("buffer_store_dwordx4 v[252:255], v250, s[12:15], s45 offen sc1")
    get_tag(a)
    a("s_branch L_p2")
    a.lines += mod_block + dft_block[:-1] + ([dft_block[-1]] if EARLYC else [])
    a.label("L_p2", reset=True)
    if EARLYC:
        hidden_consts(a, 100)
        a.label("L_p2_sconst", reset=True)
    stamp(a, 6)
    srd(a, 28, 2048 * 1024)
    a("s_mov_b64 s[24:25], s[16:17]")
    srd(a, 24, 1024)
    a("""
    s_lshr_b32 s44, s4, 3
    s_lshl3_add_u32 s44, s44, s3          ; slot
    s_and_b32 s45, s4, 1                  ; mirror
    s_bfe_u32 s48, s4, 0x20001
    s_sub_u32 s49, 64, s44
    s_cmp_eq_u32 s44, 0
    s_cselect_b32 s49, 32, s49
    s_cmp_eq_u32 s45, 0
    s_cselect_b32 s49, s44, s49           ; k1
    """)
    a("s_mov_b32 s50, %s" % f32(0.25))
    a("s_cselect_b32 s50, %s, s50" % f32(-0.25))
    a("""
    s_mov_b32 s51, 0xffff0000
    s_cselect_b32 s51, 0x0000ffff, s51
    s_cmp_eq_u32 s44, 0
    s_cselect_b32 s50, 0, s50
    s_cselect_b32 s51, s51, -1
    s_lshl_b32 s48, s48, 9
    s_add_u32 s49, s49, s48
    s_lshl_b32 s56, s5, 6
    s_add_u32 s56, s56, s49
    s_lshl_b32 s57, s56, 10
    v_lshlrev_b32 v7, 5, v1
    v_lshl_add_u32 v7, v2, 3, v7          ; 32n + 8q
    buffer_load_dwordx2 v[56:57], v7, s[8:11], s57 offen
    buffer_load_dwordx2 v[58:59], v7, s[8:11], s57 offen offset:512
    buffer_load_dwordx2 v[60:61], v7, s[24:27], 0 offen
    buffer_load_dwordx2 v[62:63], v7, s[24:27], 0 offen offset:512
    v_lshrrev_b32 v8, 1, v1
    v_lshlrev_b32 v8, 6, v8
    v_add_u32 v8, s49, v8
    v_cvt_f32_u32 v8, v8
    v_and_b32 v9, 1, v1
    v_cvt_f32_u32 v10, v9
    """)
    a("v_mul_f32 v8, %s, v8" % f32(1 / 2048))
    a("v_mul_f32 v10, %s, v10" % f32(0.25))
    a("v_fmac_f32 v10, v8, %s" % v(VQ4))
    for ks in range(2):
        for r in range(4):
            if r:
                a("v_add_f32 v10, v10, v8")
            elif ks:
                a("v_fmac_f32 v10, %s, v8" % f32(13.0))
            a("v_add_f32 v12, s50, v10")
            a("v_cos_f32 v13, v10")
            a("v_cos_f32 v12, v12")
            if ks or r:
                k = SA + 4 * ks + r - 1
                a("v_and_b32 %s, s51, %s" % (v(k), v(k)))
            a("v_cvt_pk_bf16_f32 %s, v13, v12" % v(SA + 4 * ks + r))
    a("v_and_b32 %s, s51, %s" % (v(SA + 7), v(SA + 7)))
    a("""
    %s
    s_and_b32 s52, s52, 7                 ; column block of this wave
    s_lshl_b32 s53, s52, 8
    v_lshlrev_b32 v4, 4, v1
    v_add_u32 v4, s53, v4                 ; cb*256 + n*16
    v_lshl_add_u32 v5, v2, 13, v4
    s_lshl_b32 s58, s44, 16
    s_lshl_b32 s53, s52, 3
    """ % ("s_add_u32 s52, s5, s4" if ROT else "s_mov_b32 s52, s5"))
    a("s_add_u32 s58, s58, 0x%x" % WS_INTER)
    a("""
    s_add_u32 s59, s58, 0x1000
    s_add_u32 s60, s58, 0x8000
    s_add_u32 s61, s58, 0x9000
    v_mul_u32_u24 v8, 80, v1
    v_mul_u32_u24 v9, 5120, v2
    v_add3_u32 v9, v9, s53, v8
    v_mul_u32_u24 v12, 2560, v3
    v_lshl_add_u32 v10, v2, 4, v12
    v_add_u32 v10, v10, v8
    v_or_b32 v11, s49, v2
    v_cmp_eq_u32 vcc, 0, v11
    v_mov_b32 v11, 0x45000000
    v_cndmask_b32 v11, 0, v11, vcc
    """)
    a("s_add_u32 s55, s62, %d" % (WS_MOD + 4096))
    a("v_add_u32 v9, %d, v9                   ; U write address" % LDS_U)
    a("v_add_u32 v10, %d, v10                 ; U read address" % LDS_U)
    a("v_add_u32 v13, %d, v250                ; vector read address" % LDS_VEC)
    a("v_add_u32 v14, s62, v13")
    a("v_add_u32 v12, %d, v12" % LDS_OUT)
    a("v_add_u32 v15, v12, v250")
    a("v_add_u32 v12, v12, v7")
    if NEARLY < 8:
        touch_setup(a)
    stamp(a, 7)
    a("s_mov_b32 s54, %d" % SPIN)
    a("v_lshlrev_b32 v8, 7, v0")
    a("v_cmp_gt_u32 s[50:51], 176, v0") if False else a("v_cmp_gt_u32 vcc, 176, v0")
    a("s_mov_b32 s52, 0x%x" % WS_FLAG)
    a("s_mov_b64 s[50:51], vcc")
    if not EARLYC:
        a("s_cmp_ge_u32 s5, 3")
        a("s_cbranch_scc1 L_nopoll0")
        a("s_mov_b64 exec, s[50:51]")
        a("buffer_load_dword v6, v8, s[12:15], s52 offen sc1")
        a("s_mov_b64 exec, -1")
        a.label("L_nopoll0")
        hidden_consts(a, 160)
    a("s_cmp_ge_u32 s5, 3")
    a("s_cbranch_scc1 L_poll1_ok")
    a("s_mov_b64 exec, s[50:51]")
    if not EARLYC:
        a("s_branch L_poll1_chk")
        a.vm = [o for o in a.vm if "v6" not in o.w]
    a.label("L_poll1")
    a("buffer_load_dword v6, v8, s[12:15], s52 offen sc1")
    a.label("L_poll1_chk")
    a("s_waitcnt vmcnt(0)")
    a("v_cmp_ne_u32 vcc, v6, %s" % v(VTAG))
    a("s_and_b64 exec, exec, vcc")
    a("s_cmp_eq_u64 exec, 0")
    poll_tail(a, "L_poll1", "s54")
    a("s_mov_b64 exec, -1")
    a("s_mov_b32 s54, %d" % SPIN)
    a("s_waitcnt vmcnt(0)")
    XU, WU = 112, 120
    for d in range(4):
        a("v_lshlrev_b32 %s, 16, %s" % (v(XU + 2 * d), v(56 + d)))
        a("v_and_b32 %s, 0xffff0000, %s" % (v(XU + 2 * d + 1), v(56 + d)))
    a("s_barrier")
    stamp(a, 8)
    L = 16
    a.label("L_inter")
    for ks in range(2):
        for r in range(4):
            a("buffer_load_dwordx4 %s, v5, s[12:15], %s offen offset:%d sc1" % (v(L + 16 * ks + 4 * r, 4), s(58 + 2 * ks + r // 2), 2048 * (r % 2)))
    a("buffer_load_dwordx4 v[48:51], v4, s[12:15], 0 offen offset:%d sc1" % (WS_MOD + 2048))
    a("buffer_load_dwordx4 v[52:55], v4, s[12:15], 0 offen offset:%d sc1" % WS_MOD)
    a("buffer_load_dwordx4 v[64:67], v250, s[12:15], s55 offen sc1")
    if NEARLY < 8:
        if not T64:
            a("s_mov_b32 exec_hi, 0")
        a("buffer_load_dword v197, v198, s[32:35], s37 offen")
        if not T64:
            a("s_mov_b32 exec_hi, -1")
    for d in range(4):
        a("v_lshlrev_b32 %s, 16, %s" % (v(WU + 2 * d), v(60 + d)))
        a("v_and_b32 %s, 0xffff0000, %s" % (v(WU + 2 * d + 1), v(60 + d)))
    ACC = 96
    for ks in range(2):
        a.wait_vm_for(v(L + 16 * ks, 16))
        if ks == 1:
            stamp(a, 9)
        for r in range(4):
            for i in range(r + 1, 4):
                a("v_swap_b32 %s, %s" % (v(L + 16 * ks + 4 * r + i), v(L + 16 * ks + 4 * i + r)))
        for i in range(4):
            acc = v(ACC + 4 * i, 4)
            a("v_mfma_f32_16x16x32_bf16 %s, %s, %s, %s" % (acc, v(SA + 4 * ks, 4), v(L + 16 * ks + 4 * i, 4), "0" if ks == 0 else acc))
        b = L + 16 * ks
        if ks == 0:
            a("v_max3_u32 v6, %s, %s, %s" % (v(b), v(b + 1), v(b + 2)))
            a("v_max_u32 v6, v6, %s" % v(b + 3))
        else:
            a("v_max3_u32 v6, v6, %s, %s" % (v(b), v(b + 1)))
            a("v_max3_u32 v6, v6, %s, %s" % (v(b + 2), v(b + 3)))
    a.wait_vm_for("v[64:67]")
    a("""
    ds_write_b128 v14, v[64:67]
    v_max3_u32 v8, v48, v49, v50
    v_max3_u32 v6, v6, v51, v52
    v_max3_u32 v8, v8, v53, v54
    v_max3_u32 v6, v6, v55, v64
    v_max3_u32 v8, v8, v65, v66
    v_max3_u32 v6, v6, v8, v67
    v_cmp_eq_u32 vcc, -1, v6
    s_cmp_eq_u64 vcc, 0
    """)
    poll_tail(a, "L_inter", "s54")
    for i in range(4):
        a("v_mul_f32 %s, v11, %s" % (v(52 + i), v(52 + i)))
    P = 16
    for i in range(4):
        c = ACC + 4 * i
        a("v_fma_f32 %s, %s, %s, %s" % (v(c), v(c), v(48 + i), v(52 + i)))
        for j in range(1, 4):
            a("v_mul_f32 %s, %s, %s" % (v(c + j), v(c + j), v(48 + i)))
        for tt in range(2):
            a("v_cvt_pk_bf16_f32 %s, %s, %s" % (v(P + 4 * tt + 2 * (i % 2) + i // 2), v(c + 2 * tt), v(c + 2 * tt + 1)))
    for tt in range(2):
        for h in range(2):
            a("ds_write_b64 v9, %s offset:%d" % (v(P + 4 * tt + 2 * h, 2), tt * 2560 + h * 1280))
    a("s_waitcnt lgkmcnt(0)")
    a("s_barrier")
    D = 24
    a("ds_read_b128 %s, v10" % v(D, 4))
    a("ds_read_b128 %s, v10 offset:1280" % v(D + 4, 4))
    VEC = 128
    for k in range(4):
        for g in range(2):
            a("ds_read_b128 %s, v13 offset:%d" % (v(VEC + 8 * k + 4 * g, 4), 2048 * k + 1024 * g))
    BR, BI = 32, 40
    for h in range(2):
        a.wait_lg_for(v(D + 4 * h, 4))
        a("v_mfma_f32_16x16x32_bf16 %s, %s, %s, 0" % (v(BR + 4 * h, 4), v(D + 4 * h, 4), v(FR, 4)))
        a("v_mfma_f32_16x16x32_bf16 %s, %s, %s, 0" % (v(BI + 4 * h, 4), v(D + 4 * h, 4), v(FI, 4)))
    A2 = 16
    Y = 64
    for h in range(2):
        for j in range(4):
            br, bi, tc, ts = v(BR + 4 * h + j), v(BI + 4 * h + j), v(TC + 4 * h + j), v(TS + 4 * h + j)
            a("v_mul_f32 %s, %s, %s" % (v(48 + j), br, tc))
            a("v_mul_f32 %s, %s, %s" % (v(52 + j), bi, tc))
            a("v_fmac_f32 %s, %s, %s" % (v(48 + j), bi, ts))
            a("v_fma_f32 %s, -%s, %s, %s" % (v(52 + j), br, ts, v(52 + j)))
        for k in range(4):
            a("v_cvt_pk_bf16_f32 %s, %s, %s" % (v(A2 + 4 * h + k), v(48 + 2 * k), v(49 + 2 * k)))
        for g in range(2):
            y = v(Y + 4 * g, 4)
            a("v_mfma_f32_16x16x32_bf16 %s, %s, %s, %s" % (y, v(A2 + 4 * h, 4), v(G + 8 * h + 4 * g, 4), "0" if h == 0 else y))
    a("v_mov_b32 v10, %s" % f32(1 / 512))
    a("s_lshl_b32 s56, s2, 4")
    a("s_lshl1_add_u32 s56, s5, s56")
    a("v_lshlrev_b32 v11, 2, v3")
    a("v_add_u32 v11, %d, v11" % LDS_KEY)
    a("v_mov_b32 v13, %d" % LDS_KEY)
    a("s_waitcnt lgkmcnt(0)")
    GA, SB, CB, GB = VEC, VEC + 8, VEC + 16, VEC + 24
    for e in range(8):
        a("v_fmac_f32 %s, %s, %s" % (v(XU + e), v(GA + e), v(Y + e)))
    a("v_add_f32 v8, %s, %s" % (v(XU), v(XU + 1)))
    a("v_mul_f32 v9, %s, %s" % (v(XU), v(XU)))
    a("v_fmac_f32 v9, %s, %s" % (v(XU + 1), v(XU + 1)))
    for e in range(2, 8):
        a("v_add_f32 v8, v8, %s" % v(XU + e))
        a("v_fmac_f32 v9, %s, %s" % (v(XU + e), v(XU + e)))
    dpp_sum(a, [8, 9], ROR + BC)
    a("v_readlane_b32 s60, v8, 63")
    a("v_readlane_b32 s61, v9, 63")
    a("v_mul_f32 v8, s60, v10                 ; mean")
    a("v_mul_f32 v9, v8, v8")
    a("v_sub_f32 v9, %s, v9" % f32(EPS))
    a("v_fmac_f32 v9, s61, v10")
    a("v_rsq_f32 v9, v9")
    a("v_mul_f32 v8, v8, v9")
    H = 32
    for e in range(8):
        a("v_fma_f32 %s, %s, v9, -v8" % (v(H + e), v(XU + e)))
    for e in range(8):
        a("v_fma_f32 %s, %s, %s, %s" % (v(H + e), v(H + e), v(CB + e), v(SB + e)))
    a("v_mul_f32 v8, %s, %s" % (v(H), v(WU)))
    for e in range(1, 8):
        a("v_fmac_f32 v8, %s, %s" % (v(H + e), v(WU + e)))
    mods = ROR + BC
    for k, mod in enumerate(mods):
        a("v_add_f32_dpp v8, v8, v8 %s" % mod)
        for e in ((0, 1), (2, 3), (4, 5), (6, 7), (), ())[k]:
            a("v_fmac_f32 %s, %s, %s" % (v(XU + e), v(GB + e), v(H + e)))
        if k >= 4:
            for d in (2 * (k - 4), 2 * (k - 4) + 1):
                a("v_cvt_pk_bf16_f32 %s, %s, %s" % (v(40 + d), v(XU + 2 * d), v(XU + 2 * d + 1)))
    a("""
    v_ashrrev_i32 v9, 31, v8
    v_or_b32 v9, s63, v9
    v_xor_b32 v8, v8, v9
    v_and_b32 v8, 0xfffff000, v8
    v_or_b32 v8, s56, v8
    s_mov_b32 exec_lo, 0
    s_mov_b32 exec_hi, 0x80000000
    ds_write_b32 v11, v8
    s_mov_b64 exec, -1
    v_readlane_b32 s56, v8, 63
    s_waitcnt lgkmcnt(0)
    """)
    stamp(a, 10)
    a("""
    s_barrier
    ds_read_b128 v[16:19], v13
    ds_read_b128 v[20:23], v13 offset:16
    ds_write_b64 v12, v[40:41]
    ds_write_b64 v12, v[42:43] offset:512
    ds_read_b128 v[40:43], v15
    """)
    for d in range(4):
        a("v_cvt_pk_bf16_f32 %s, %s, %s" % (v(44 + d), v(H + 2 * d), v(H + 2 * d + 1)))
    a("v_mov_b32 v25, %s" % v(VTAG))
    a("v_mov_b32 v27, %s" % v(VTAG))
    a("s_mul_i32 s58, s2, %d" % KSTR)
    a("s_add_u32 s58, s58, 0x%x" % WS_KEYS)
    a("s_lshl_b32 s59, s2, 12")
    a("s_add_u32 s59, s59, 0x%x" % WS_CAND)
    a("""
    s_waitcnt lgkmcnt(3)
    v_max_u32 v24, v16, v17
    v_min_u32 v26, v16, v17
    v_med3_u32 v28, v24, v18, v19
    v_max3_u32 v24, v24, v18, v19
    v_med3_u32 v29, v24, v20, v21
    v_max3_u32 v24, v24, v20, v21
    v_max3_u32 v26, v26, v28, v29
    v_med3_u32 v28, v24, v22, v23
    v_max3_u32 v24, v24, v22, v23
    v_max_u32 v26, v26, v28
    v_readfirstlane_b32 s60, v24
    v_readfirstlane_b32 s61, v26
    v_or_b32 v26, 1, v26
    s_cmp_lg_u32 s56, s60
    s_cbranch_scc1 L_notfirst
    s_mov_b64 exec, 1
    buffer_store_dwordx4 v[24:27], off, s[12:15], s58 sc1
    s_mov_b64 exec, -1
    s_branch L_cand
    """)
    a.label("L_notfirst")
    a("""
    s_cmp_lg_u32 s56, s61
    s_cbranch_scc1 L_notcand
    s_or_b32 s56, s56, 1
    s_add_u32 s59, s59, 2048
    """)
    a.label("L_cand")
    a("""
    buffer_store_dwordx4 v[44:47], v250, s[12:15], s59 offen sc1
    s_waitcnt lgkmcnt(0)
    buffer_store_dwordx4 v[40:43], v250, s[12:15], s59 offen offset:1024 sc1
    s_branch L_tail
    """)
    a.label("L_notcand")
    a("""
    s_mov_b32 s56, 0
    s_waitcnt lgkmcnt(0)
    buffer_store_dwordx4 v[40:43], v250, s[28:31], s57 offen
    """)
    a.label("L_tail", reset=True)
    a("s_sub_u32 s59, s4, 22")
    a("s_cmp_lt_u32 s59, 7")
    a("s_cbranch_scc1 L_ffn")
    a("""
    s_lshl_b32 s59, s5, 8
    s_add_u32 s59, s59, s2
    s_cmp_lt_u32 s59, 64
    s_cselect_b32 s59, 1, 0
    s_or_b32 s60, s59, s56
    s_cmp_eq_u32 s60, 0
    s_cbranch_scc1 L_done
    s_lshl_b32 s45, s3, 7
    """)
    a("s_add_u32 s45, s45, 0x%x" % WS_SEL)
    a("s_cmp_eq_u32 s59, 0")
    a("s_cbranch_scc1 L_sel_go")
    a("""
    s_lshl3_add_u32 s44, s3, s4
    s_lshr_b32 s48, s44, 2
    s_lshl_b32 s48, s48, 5
    s_and_b32 s49, s44, 3
    s_lshl2_add_u32 s48, s49, s48
    v_and_b32 v4, 3, v0
    v_lshrrev_b32 v5, 1, v2
    v_lshl_add_u32 v5, v5, 4, v4
    v_add_u32 v5, s48, v5
    v_and_b32 v8, 0x103, v5
    v_bfe_u32 v9, v5, 2, 2
    v_lshl_add_u32 v8, v9, 6, v8
    v_bfe_u32 v9, v5, 4, 4
    v_lshl_add_u32 v8, v9, 2, v8
    v_lshlrev_b32 v8, 2, v8
    """)
    a("v_add_u32 v8, %d, v8" % (LDS_VEC + 3 * 2048))
    a("""
    ds_read_b32 v8, v8                    ; gb[e]
    v_bfe_u32 v9, v0, 2, 4
    v_lshlrev_b32 v9, 12, v9
    v_lshl_add_u32 v9, v4, 4, v9
    s_lshl_b32 s48, s44, 6
    v_and_b32 v10, 1, v2
    v_cmp_eq_u32 s[50:51], 1, v10
    v_mov_b32 v36, 0
    v_mov_b32 v37, 0
    v_mov_b32 v38, 0
    v_mov_b32 v39, 0
    """)
    a("s_add_u32 s48, s48, 0x%x" % WS_PART)
    a("s_add_u32 s49, s48, 0x10000")
    a("s_add_u32 s52, s48, 0x20000")
    a("s_add_u32 s53, s48, 0x30000")
    a("s_waitcnt lgkmcnt(0)")
    a.label("L_sel_go")
    a("s_mov_b32 s54, %d" % SPIN)
    a.label("L_poll_sel")
    a("buffer_load_dwordx4 v[16:19], off, s[12:15], s45 sc1")
    a("s_waitcnt vmcnt(0)")
    a("v_cmp_eq_u32 vcc, v17, %s" % v(VTAG))
    a("v_cmp_eq_u32 s[60:61], v19, %s" % v(VTAG))
    a("s_and_b64 vcc, vcc, s[60:61]")
    a("s_cmp_eq_u64 vcc, -1")
    poll_tail(a, "L_poll_sel", "s54")
    stamp(a, 11)
    a("""
    v_readfirstlane_b32 s60, v16
    v_readfirstlane_b32 s61, v18
    s_cmp_eq_u32 s59, 0
    s_cbranch_scc1 L_late_out
    v_cndmask_b32 v16, v16, v18, s[50:51]
    v_bfe_u32 v17, v16, 4, 8
    v_and_b32 v18, 1, v16
    v_lshlrev_b32 v19, 12, v17
    v_lshl_add_u32 v19, v18, 11, v19
    v_lshl_add_u32 v19, v5, 1, v19
    """)
    a("s_mov_b32 s55, 0x%x" % (WS_CAND + 1024))
    a("s_mov_b32 s54, %d" % SPIN)
    a.label("L_poll_base")
    a("""
    buffer_load_ushort v20, v19, s[12:15], s55 offen sc1
    v_and_b32 v21, 7, v17
    v_lshrrev_b32 v22, 6, v17
    v_lshl_add_u32 v21, v22, 3, v21       ; slot
    v_sub_u32 v22, 64, v21
    v_cmp_eq_u32 vcc, 0, v21
    v_cndmask_b32 v22, v22, 32, vcc
    v_and_b32 v23, 8, v17
    v_cmp_eq_u32 vcc, 0, v23
    v_cndmask_b32 v21, v22, v21, vcc      ; k1
    v_bfe_u32 v22, v17, 4, 2
    v_lshl_add_u32 v21, v22, 9, v21
    v_bfe_u32 v22, v16, 1, 3
    v_lshl_add_u32 v21, v22, 6, v21
    v_lshlrev_b32 v21, 10, v21
    v_lshl_add_u32 v21, v5, 1, v21
    v_and_b32 v22, 0xfffff000, v16
    v_ashrrev_i32 v23, 31, v22
    v_not_b32 v23, v23
    v_or_b32 v23, s63, v23
    v_xor_b32 v22, v22, v23
    """)
    a("v_mul_f32 v22, %s, v22" % f32(-1.4426950408889634))
    a("""
    v_exp_f32 v22, v22
    v_add_f32 v22, 1.0, v22
    v_rcp_f32 v22, v22
    v_mul_f32 v22, v22, v8
    s_waitcnt vmcnt(0)
    v_cmp_eq_u32 vcc, 0xffff, v20
    s_cmp_eq_u64 vcc, 0
    """)
    poll_tail(a, "L_poll_base", "s54")
    a("s_mov_b32 s54, %d" % SPIN)
    if PDELAY:
        a("s_sleep %d" % PDELAY)
    a.label("L_poll_part")
    a("""
    buffer_load_dwordx4 v[24:27], v9, s[12:15], s48 offen sc1
    buffer_load_dwordx4 v[28:31], v9, s[12:15], s49 offen sc1
    buffer_load_dwordx4 v[32:35], v9, s[12:15], s52 offen sc1
    s_mov_b32 exec_hi, 0
    buffer_load_dwordx4 v[36:39], v9, s[12:15], s53 offen sc1
    s_mov_b32 exec_hi, -1
    s_waitcnt vmcnt(0)
    v_max3_u32 v48, v24, v28, v32
    v_max_u32 v48, v48, v36
    v_cmp_eq_u32 vcc, -1, v48
    s_cmp_eq_u64 vcc, 0
    """)
    poll_tail(a, "L_poll_part", "s54")
    stamp(a, 12)
    a("""
    v_pk_add_f32 v[24:25], v[24:25], v[28:29]
    v_pk_add_f32 v[26:27], v[26:27], v[30:31]
    v_pk_add_f32 v[32:33], v[32:33], v[36:37]
    v_pk_add_f32 v[34:35], v[34:35], v[38:39]
    v_pk_add_f32 v[24:25], v[24:25], v[32:33]
    v_pk_add_f32 v[26:27], v[26:27], v[34:35]
    v_permlane32_swap_b32 v24, v26
    v_permlane32_swap_b32 v25, v27
    v_pk_add_f32 v[24:25], v[24:25], v[26:27]
    v_permlane16_swap_b32 v24, v25
    v_add_f32 v24, v24, v25
    """)
    a("v_lshlrev_b32 v20, 16, v20")
    dpp_sum(a, [24], ROR[:2])
    a("""
    v_fmac_f32 v20, v24, v22
    v_cvt_pk_bf16_f32 v20, v20, v20
    s_mov_b32 exec_lo, 0x000f000f
    s_mov_b32 exec_hi, 0x000f000f
    buffer_store_short v20, v21, s[28:31], 0 offen
    s_mov_b64 exec, -1
    s_cmp_lg_u32 s2, 0
    s_cbranch_scc1 L_late_out
    s_mov_b64 exec, 1
    """)
    a("s_mov_b32 s55, 0x%x" % WS_GEN)
    a("buffer_store_dword %s, off, s[12:15], s55" % v(VTAG))
    a("s_mov_b64 exec, -1")
    if PROBE >= 0:
        a("s_waitcnt vmcnt(0)")
        a("s_memrealtime s[98:99]")
        a("s_waitcnt lgkmcnt(0)")
        a("s_sub_u32 s94, s98, s96")
        a("s_mul_i32 s94, s94, %d" % PROBE)
        a("s_min_u32 s94, s94, 8000")
        a.label("L_probe")
        a("s_memrealtime s[96:97]")
        a("s_waitcnt lgkmcnt(0)")
        a("s_sub_u32 s95, s96, s98")
        a("s_cmp_lt_u32 s95, s94")
        a("s_cbranch_scc1 L_probe")
    a("s_branch L_late_out")
    a.label("L_ffn", reset=True)
    WF, WD = 64, 96
    if NEARLY < 8:
        a("s_cmp_lt_u32 s5, %d" % NEARLY)
        a("s_cbranch_scc1 L_staged")
        stage(a)
        a("s_waitcnt vmcnt(0)")
        stamp(a, 2)
        a.label("L_staged")
    a("s_mov_b32 s55, 0x%x" % WS_KEYS)
    a("s_mov_b32 s54, %d" % SPIN)
    a("v_mul_u32_u24 v6, %d, v0" % KSTR)
    a("""
    s_mul_i32 s7, s5, 12288
    v_bfe_u32 v4, v0, 2, 4                ; 4q + r
    v_and_b32 v5, 3, v0
    v_lshlrev_b32 v5, 3, v5
    v_lshl_add_u32 v8, v4, 6, v5
    v_add_u32 v8, s7, v8
    v_bfe_u32 v9, v0, 2, 2
    v_lshl_add_u32 v9, v2, 3, v9
    v_lshl_add_u32 v9, v9, 7, v5
    v_add_u32 v9, s7, v9
    """)
    for kk in range(2):
        for mt in range(4):
            for hf in range(2):
                a("ds_read_b64_tr_b16 %s, v8 offset:%d" % (v(WF + 16 * kk + 4 * mt + 2 * hf, 2), (mt // 2) * 4096 + hf * 2048 + kk * 1024 + (mt % 2) * 32))
    for t in range(4):
        for hf in range(2):
            a("ds_read_b64_tr_b16 %s, v9 offset:%d" % (v(WD + 4 * t + 2 * hf, 2), 8192 + hf * 512 + t * 32))
    a("""
    v_and_b32 v10, 1, v0
    v_cmp_eq_u32 s[50:51], 1, v10
    v_lshlrev_b32 v11, 7, v3
    v_lshl_add_u32 v11, v2, 4, v11
    v_lshlrev_b32 v12, 6, v10
    v_lshl_add_u32 v13, v2, 4, v12
    v_lshl_add_u32 v13, v3, 9, v13
    v_and_b32 v14, 30, v0
    v_lshl_add_u32 v14, v14, 1, v12
    v_and_b32 v12, 32, v0
    v_lshl_add_u32 v14, v12, 2, v14
    """)
    a("v_add_u32 v13, %d, v13                 ; partial write address" % LDS_RED)
    a("v_add_u32 v14, %d, v14                 ; partial read address" % LDS_RED)
    a("""
    v_lshlrev_b32 v15, 9, v3
    v_lshl_add_u32 v15, v1, 4, v15
    v_lshlrev_b32 v7, 3, v3
    """)
    a("v_add_u32 v7, %d, v7" % LDS_KEY2)
    a("v_mov_b32 v4, %d" % LDS_KEY2)
    if DRY:
        a("s_mov_b32 s53, 0x7fff0000")
        a("s_waitcnt lgkmcnt(0)")
        a("s_branch L_ffn_compute")
        a.label("L_ffn_real", reset=True)
    a("s_mov_b32 s53, s46")
    a("s_cmp_ge_u32 s5, 4")
    a("s_cbranch_scc1 L_keys_done")
    a.label("L_poll_keys")
    a("buffer_load_dwordx4 v[16:19], v6, s[12:15], s55 offen sc1")
    a("s_waitcnt vmcnt(0)")
    a("v_cmp_ne_u32 vcc, v17, %s" % v(VTAG))
    a("v_cmp_ne_u32 s[60:61], v19, %s" % v(VTAG))
    a("s_or_b64 vcc, vcc, s[60:61]")
    a("s_and_b64 exec, exec, vcc")
    a("s_cmp_eq_u64 exec, 0")
    poll_tail(a, "L_poll_keys", "s54")
    a("s_mov_b64 exec, -1")
    for mod in ROR + BC:
        a("v_min_u32_dpp v19, v16, v16 %s" % mod)
        a("v_max_u32_dpp v18, v18, v18 %s" % mod)
        a("v_max_u32_dpp v16, v16, v16 %s" % mod)
        a("v_max_u32 v18, v18, v19")
    a("""
    s_mov_b32 exec_lo, 0
    s_mov_b32 exec_hi, 0x80000000
    ds_write2_b32 v7, v16, v18 offset0:0 offset1:1
    s_mov_b64 exec, -1
    """)
    a.label("L_keys_done")
    a("s_waitcnt lgkmcnt(0)")
    a("s_barrier")
    stamp(a, 11)
    a("""
    ds_read_b128 v[16:19], v4
    ds_read_b128 v[20:23], v4 offset:16
    """)
    a("s_mov_b32 s55, 0x%x" % WS_CAND)
    a("s_mov_b32 s54, %d" % SPIN)
    a("""
    s_waitcnt lgkmcnt(0)
    v_med3_u32 v36, v16, v18, v20
    v_max3_u32 v32, v16, v18, v20
    v_max3_u32 v34, v17, v19, v21
    v_min_u32 v37, v32, v22
    v_max_u32 v32, v32, v22
    v_max3_u32 v34, v34, v23, v36
    v_max_u32 v34, v34, v37
    v_cndmask_b32 v36, v32, v34, s[50:51]
    v_bfe_u32 v37, v36, 4, 8
    v_and_b32 v36, 1, v36
    v_lshl_add_u32 v11, v37, 12, v11
    v_lshl_add_u32 v11, v36, 11, v11
    """)
    a.label("L_poll_h2")
    a("""
    buffer_load_dwordx4 v[16:19], v11, s[12:15], s55 offen sc1
    buffer_load_dwordx4 v[20:23], v11, s[12:15], s55 offen offset:64 sc1
    v_readfirstlane_b32 s60, v32
    v_readfirstlane_b32 s61, v34
    s_lshl_b32 s52, s59, 3
    s_or_b32 s52, s52, s5
    s_cmp_lg_u32 s52, 0
    s_cbranch_scc1 L_nosel
    """)
    a("v_mov_b32 v33, %s" % v(VTAG))
    a("v_mov_b32 v35, %s" % v(VTAG))
    a("s_lshl_b32 s52, s3, 7")
    a("s_add_u32 s52, s52, 0x%x" % WS_SEL)
    a("""
    s_mov_b64 exec, 1
    buffer_store_dwordx4 v[32:35], off, s[12:15], s52 sc1
    s_mov_b64 exec, -1
    s_waitcnt vmcnt(1)
    s_branch L_h2chk
    """)
    a.label("L_nosel")
    a("s_waitcnt vmcnt(0)")
    a.label("L_h2chk")
    a("""
    v_max_u32 v36, v16, v20
    v_cmp_eq_u32 vcc, -1, v36
    s_cmp_eq_u64 vcc, 0
    """)
    poll_tail(a, "L_poll_h2", "s54")
    stamp(a, 12)
    a.label("L_ffn_compute")
    C = 48
    for kk in range(2):
        for mt in range(4):
            c = v(C + 4 * mt, 4)
            a("v_mfma_f32_16x16x32_bf16 %s, %s, %s, %s" % (c, v(WF + 16 * kk + 4 * mt, 4), v(16 + 4 * kk, 4), "0" if kk == 0 else c))
    a("s_mov_b32 exec_lo, 0x00030003")
    a("s_mov_b32 exec_hi, 0x00030003")
    for mt in range(4):
        a("ds_write_b128 v13, %s offset:%d" % (v(C + 4 * mt, 4), 128 * mt))
    a("""
    s_mov_b64 exec, -1
    s_waitcnt lgkmcnt(0)
    """)
    stamp(a, 4)
    a("s_barrier")
    stamp(a, 5)
    a("""
    ds_read2st64_b32 v[16:17], v14 offset0:0 offset1:2
    ds_read2st64_b32 v[18:19], v14 offset0:4 offset1:6
    ds_read2st64_b32 v[20:21], v14 offset0:8 offset1:10
    ds_read2st64_b32 v[22:23], v14 offset0:12 offset1:14
    ds_read2st64_b32 v[24:25], v14 offset0:1 offset1:3
    ds_read2st64_b32 v[26:27], v14 offset0:5 offset1:7
    ds_read2st64_b32 v[28:29], v14 offset0:9 offset1:11
    ds_read2st64_b32 v[30:31], v14 offset0:13 offset1:15
    s_waitcnt lgkmcnt(4)
    v_pk_add_f32 v[16:17], v[16:17], v[18:19]
    v_pk_add_f32 v[20:21], v[20:21], v[22:23]
    v_pk_add_f32 v[16:17], v[16:17], v[20:21]
    v_add_f32 v16, v16, v17
    """)
    a("v_mul_f32 v17, %s, v16" % f32(-1.4426950408889634))
    a("""
    v_exp_f32 v17, v17
    s_waitcnt lgkmcnt(0)
    v_pk_add_f32 v[24:25], v[24:25], v[26:27]
    v_add_f32 v17, 1.0, v17
    v_pk_add_f32 v[28:29], v[28:29], v[30:31]
    v_rcp_f32 v17, v17
    v_pk_add_f32 v[24:25], v[24:25], v[28:29]
    v_add_f32 v24, v24, v25
    v_mul_f32 v16, v16, v17
    v_mul_f32 v16, v16, v24
    v_mov_b32_dpp v17, v16 row_ror:14 row_mask:0xf bank_mask:0xf
    v_cvt_pk_bf16_f32 v20, v16, v17
    v_mov_b32_dpp v21, v20 row_ror:12 row_mask:0xf bank_mask:0xf
    v_mov_b32_dpp v22, v20 row_ror:8 row_mask:0xf bank_mask:0xf
    v_mov_b32_dpp v23, v20 row_ror:4 row_mask:0xf bank_mask:0xf
    """)
    for t in range(4):
        a("v_mfma_f32_16x16x32_bf16 %s, v[20:23], %s, 0" % (v(C + 4 * t, 4), v(WD + 4 * t, 4)))
    a("""
    s_mov_b64 exec, 0xffff
    v_mov_b32 v50, v52
    v_mov_b32 v51, v53
    buffer_store_dwordx4 v[48:51], v15, s[12:15], s53 offen sc1
    v_mov_b32 v58, v60
    v_mov_b32 v59, v61
    buffer_store_dwordx4 v[56:59], v15, s[12:15], s53 offen offset:256 sc1
    s_mov_b64 exec, -1
    """)
    if DRY:
        a("s_cmp_lg_u32 s53, s46")
        a("s_cbranch_scc1 L_ffn_real")
    stamp(a, 3)
    a.label("L_late_out", reset=True)
    a("""
    s_cmp_eq_u32 s56, 0
    s_cbranch_scc1 L_done
    s_cmp_eq_u32 s56, s60
    s_cbranch_scc1 L_done
    s_cmp_eq_u32 s56, s61
    s_cbranch_scc1 L_done
    buffer_store_dwordx4 v[40:43], v250, s[28:31], s57 offen
    """)
    a.label("L_done", reset=True)
    stamp_end(a)
    a.label("L_end")
    a("s_endpgm")
    desc = """.section .rodata,"a"
.p2align 6
.amdhsa_kernel %s
  .amdhsa_next_free_vgpr 256
  .amdhsa_next_free_sgpr 100
  .amdhsa_accum_offset 256
  .amdhsa_group_segment_fixed_size 0
  .amdhsa_kernarg_size 120
  .amdhsa_user_sgpr_count 2
  .amdhsa_user_sgpr_kernarg_segment_ptr 1
  .amdhsa_system_sgpr_workgroup_id_x 1
.end_amdhsa_kernel
""" % KN
    return HEADER + "; @launch grid=(256,1,1) block=(512,1,1) lds=%d\n" % LDS_TOTAL + a.text() + desc


if __name__ == "__main__":
    out = sys.argv[1] if len(sys.argv) > 1 and sys.argv[1].endswith(".s") else "v3.s"
    open(out, "w").write(build())
    print("wrote", out)
```

```python
import sys, struct
from asmlib import Asm, Ins, v, s

NAME = "adaLN_cond__spectral_fnet__moe_arch_mod__prompt"
KN = NAME + "_kernel"
HEADER = open("cdna_kernels/%s.s.ref" % NAME).read().split("; Override launch geometry")[0]


def opt(name, default):
    for x in sys.argv:
        if x.startswith("--%s=" % name):
            return int(x.split("=")[1], 0)
    return default


STAMPS = "--stamps" in sys.argv
PROBE = opt("probe", -1)
HINT = opt("hint", 0)
KSTR = opt("kstr", 64)
NOFFN = opt("noffn", 0)
NOCAND = opt("nocand", 0)
ROT = opt("rot", 1)
HELP = opt("help", 1)
DRY = opt("dry", 0)
PDELAY = opt("pdelay", 0)
T64 = opt("t64", 1)
NEARLY = opt("nearly", 4)
PITCH = 288
CPF = opt("cpf", 0)
POIS = opt("pois", 0)
EARLYC = opt("earlyc", 0)

WS_MOD = 0x0
WS_GEN = 0x3000
WS_SEL = 0x3400
WS_FLAG = 0x8000
WS_KEYS = 0x10000
WS_PART = 0x80000
WS_CAND = 0x100000
WS_INTER = 0x200000
WS_SIZE = 0x400000
WS_STAMP = 0x600000
if STAMPS:
    WS_SIZE = 0x800000
EPS = 1e-5
TAGC = 0x9E3779B9
SPIN = 1 << 15

LDS_U = 98304
LDS_VEC = LDS_U + 20480
LDS_KEY = LDS_VEC + 8192
LDS_KEY2 = LDS_KEY + 32
LDS_RED = LDS_KEY + 64
LDS_OUT = LDS_U
LDS_TOTAL = LDS_RED + 4096

FR, FI, TC, TS, G, SA = 200, 204, 208, 216, 224, 240
VQ4, VTAG = 248, 249


def f32(x):
    return "0x%08x" % struct.unpack("<I", struct.pack("<f", x))[0]


def srd(a, base, nbytes):
    a("s_mov_b32 %s, 0x%x" % (s(base + 2), nbytes))
    a("s_mov_b32 %s, 0x20000" % s(base + 3))


NST = 14


def stamp(a, i):
    if PROBE >= 0 and i == 0:
        a("s_memrealtime s[96:97]")
    if PROBE == i:
        a("s_memrealtime s[92:93]")
    if not STAMPS:
        return
    if i == 0:
        a("s_memrealtime s[96:97]")
        for k in range(1, NST):
            a("s_mov_b32 %s, 0" % s(64 + 2 * k))
    a("s_memtime %s" % s(64 + 2 * i, 2))


def stamp_end(a):
    if not STAMPS:
        return
    a("s_waitcnt vmcnt(0)")
    a("s_memtime %s" % s(64 + 2 * (NST - 1), 2))
    a("s_memrealtime s[98:99]")
    a("s_mov_b64 exec, 1")
    a("s_lshl_b32 s93, s2, 3")
    a("s_add_u32 s93, s93, s5")
    a("s_lshl_b32 s93, s93, 6")
    a("s_add_u32 s93, s93, 0x%x" % WS_STAMP)
    a("s_waitcnt lgkmcnt(0)")
    a("v_mov_b32 v16, s96")
    a("v_mov_b32 v17, s98")
    for k in range(NST):
        a("v_mov_b32 %s, %s" % (v(18 + k), s(64 + 2 * k)))
    for k in range(4):
        a("buffer_store_dwordx4 %s, off, s[12:15], s93 offset:%d" % (v(16 + 4 * k, 4), 16 * k))


ROR = ["row_ror:%d row_mask:0xf bank_mask:0xf" % r for r in (8, 4, 2, 1)]
BC = ["row_bcast:15 row_mask:0xa bank_mask:0xf", "row_bcast:31 row_mask:0xc bank_mask:0xf"]


def dpp_sum(a, regs_, mods):
    for mod in mods:
        for r in regs_:
            a("v_add_f32_dpp %s, %s, %s %s" % (v(r), v(r), v(r), mod))


def poll_tail(a, label, cnt):
    a("s_cbranch_scc1 %s_ok" % label)
    a("s_sub_u32 %s, %s, 1" % (cnt, cnt))
    a("s_cbranch_scc0 %s" % label)
    a.label(label + "_ok")


def hidden_consts(a, t0):
    t = [v(t0 + i) for i in range(15)]
    a("v_cvt_f32_u32 %s, v1" % t[0])
    a("v_mul_f32 %s, %s, %s" % (t[0], f32(1 / 512), t[0]))
    a("v_mul_f32 %s, %s, %s" % (t[1], t[0], v(VQ4)))
    a("v_mul_f32 %s, %s, %s" % (t[2], f32(16.0), t[0]))
    for j in range(4):
        if j:
            a("v_add_f32 %s, %s, %s" % (t[1], t[1], t[0]))
        a("v_mul_f32 %s, %s, %s" % (t[3], f32(32.0), t[1]))
        a("v_mul_f32 %s, %s, %s" % (t[4], f32(16.0), t[1]))
        a("v_add_f32 %s, %s, %s" % (t[5], t[1], t[2]))
        a("v_cos_f32 %s, %s" % (v(TC + j), t[1]))
        a("v_sin_f32 %s, %s" % (v(TS + j), t[1]))
        a("v_cos_f32 %s, %s" % (t[6], t[3]))
        a("v_sin_f32 %s, %s" % (t[3], t[3]))
        a("v_cos_f32 %s, %s" % (v(TC + 4 + j), t[5]))
        a("v_sin_f32 %s, %s" % (v(TS + 4 + j), t[5]))
        a("v_cos_f32 %s, %s" % (t[7 + j], t[4]))
        a("v_sin_f32 %s, %s" % (t[11 + j], t[4]))
        a("v_cvt_pk_bf16_f32 %s, %s, %s" % (v(FR + j), t[6], t[3]))
        a("v_cvt_pk_bf16_f32 %s, -%s, %s" % (v(FI + j), t[3], t[6]))
    for j in range(4):
        a("v_cvt_pk_bf16_f32 %s, %s, %s" % (v(G + j), t[7 + 2 * j], t[8 + 2 * j]))
    a("v_lshlrev_b32 %s, 31, v1" % t[3])
    a("v_lshrrev_b32 %s, 16, %s" % (t[4], t[3]))
    a("v_or_b32 %s, %s, %s" % (t[3], t[3], t[4]))
    for j in range(4):
        a("v_xor_b32 %s, s63, %s" % (v(G + 4 + j), v(G + j)))
        a("v_xor_b32 %s, %s, %s" % (v(G + 8 + j), t[3], v(G + j)))
        a("v_xor_b32 %s, s63, %s" % (v(G + 12 + j), v(G + 8 + j)))


def code_prefetch(a):
    if not CPF:
        return
    a("s_cmp_lt_u32 s2, 232")
    a("s_cbranch_scc1 L_cpf")
    a("s_getpc_b64 s[60:61]")
    a.label("L_cpf_pc")
    a("v_lshlrev_b32 v192, 7, v0")
    a("v_min_u32 v192, L_end-L_cpf_pc, v192")
    a("v_mov_b32 v193, 0")
    a("v_lshl_add_u64 v[192:193], v[192:193], 0, s[60:61]")
    n = len(a.vm)
    a("global_load_dword v196, v[192:193], off")
    del a.vm[n:]
    a.label("L_cpf")


def stage(a):
    a("s_mov_b64 s[32:33], s[18:19]")
    a("s_mov_b64 s[36:37], s[20:21]")
    a("s_mov_b64 s[40:41], s[22:23]")
    srd(a, 32, 512 * 3584)
    srd(a, 36, 512 * 3584)
    srd(a, 40, 1792 * 1024)
    a("""
    s_and_b32 s44, s5, 1
    s_lshl_b32 s44, s44, 7
    s_lshr_b32 s48, s5, 1
    s_lshl2_add_u32 s44, s48, s44
    v_bfe_u32 v4, v0, 2, 2
    v_lshl_add_u32 v4, v2, 4, v4
    v_add_u32 v4, s44, v4
    v_mul_u32_u24 v4, 3584, v4
    v_and_b32 v5, 3, v0
    v_lshl_add_u32 v4, v5, 4, v4
    s_lshl_b32 s48, s6, 6
    s_mul_i32 m0, s5, 12288
    """)
    a("s_add_u32 s49, s48, %d" % (64 * 3584))
    a("s_add_u32 s50, s48, %d" % (256 * 3584))
    a("s_add_u32 s51, s48, %d" % (320 * 3584))
    for sr in (32, 36):
        for i in range(4):
            a("buffer_load_dwordx4 v4, %s, %s offen lds" % (s(sr, 4), s(48 + i)))
            a("s_add_u32 m0, m0, 1024")
    a("""
    v_bfe_u32 v5, v0, 3, 3
    v_lshlrev_b32 v5, 10, v5
    v_and_b32 v4, 7, v0
    v_lshl_add_u32 v5, v4, 4, v5
    v_lshl_add_u32 v5, v3, 7, v5
    s_lshl_b32 s48, s6, 15
    """)
    for i in range(4):
        a("buffer_load_dwordx4 v5, s[40:43], s48 offen lds")
        if i < 3:
            a("s_add_u32 m0, m0, 1024")
            a("s_add_u32 s48, s48, 8192")


def touch_setup(a):
    a("""
    s_cmp_eq_u32 s5, 5
    s_cselect_b64 s[32:33], s[18:19], s[20:21]
    s_cmp_eq_u32 s5, 7
    s_cselect_b64 s[32:33], s[22:23], s[32:33]
    s_mov_b32 s34, 0x1c0000
    s_mov_b32 s35, 0x20000
    s_movk_i32 s36, 3584
    s_cselect_b32 s36, 1024, s36
    s_mul_i32 s37, s3, 448
    %s
    s_mul_i32 s38, s4, 57344
    s_add_u32 s37, s37, s38
    s_add_u32 s37, s37, 28672
    s_lshl_b32 s38, s3, 5
    s_add_u32 s38, s38, s4
    s_mul_i32 s38, s38, 7168
    s_add_u32 s38, s38, 512
    s_cmp_eq_u32 s5, 7
    s_cselect_b32 s37, s38, s37
    s_cmp_lt_u32 s5, 5
    s_cselect_b32 s37, 0x7fff0000, s37
    v_bfe_u32 v198, v0, %d, 3
    v_mul_u32_u24 v198, s36, v198
    v_and_b32 v197, %d, v0
    v_lshl_add_u32 v198, v197, %d, v198
    """ % (("s_nop 0", 3, 7, 6) if T64 else ("s_and_b32 s37, s37, 0xffffff80", 2, 3, 7)))


def get_tag(a):
    a("s_waitcnt lgkmcnt(0)")
    a("s_add_u32 s47, s47, 0x%x               ; hand-off tag of this launch" % TAGC)
    a("v_mov_b32 %s, s47" % v(VTAG))


def flag_store(a):
    a("s_lshl_b32 s53, s2, 7")
    a("s_add_u32 s53, s53, 0x%x" % WS_FLAG)
    a("s_mov_b64 exec, 1")
    a("buffer_store_dword %s, off, s[12:15], s53 sc1" % v(VTAG))
    a("s_mov_b64 exec, -1")


def build():
    a = Asm()
    a.raw('.amdgcn_target "amdgcn-amd-amdhsa--gfx950"')
    a.raw(".text")
    a.raw(".globl %s" % KN)
    a.raw(".p2align 8")
    a.raw(".type %s,@function" % KN)
    a.label(KN, reset=True)
    a("s_cmp_ge_u32 s2, 256")
    a("s_cbranch_scc1 L_end")
    stamp(a, 0)
    a("s_load_dwordx2 s[8:9], s[0:1], 0")
    a("s_load_dwordx2 s[12:13], s[0:1], 112")
    a("s_load_dwordx16 s[16:31], s[0:1], 48")
    code_prefetch(a)
    a("""
    v_lshrrev_b32 v3, 6, v0               ; wave
    v_and_b32 v1, 15, v0                  ; n
    v_bfe_u32 v2, v0, 4, 2                ; q
    v_readfirstlane_b32 s5, v3
    s_and_b32 s3, s2, 7                   ; x
    s_lshr_b32 s4, s2, 3                  ; y
    v_and_b32 v250, 63, v0
    v_lshlrev_b32 v250, 4, v250           ; lane*16
    v_mov_b32 v252, -1
    v_mov_b32 v253, -1
    v_mov_b32 v254, -1
    v_mov_b32 v255, -1
    s_mov_b32 s63, 0x80000000
    """)
    a("v_cvt_f32_u32 %s, v2" % v(VQ4))
    srd(a, 8, 2048 * 1024)
    srd(a, 12, WS_SIZE)
    a("v_mul_f32 %s, 4.0, %s" % (v(VQ4), v(VQ4)))
    a("""
    s_lshl_b32 s62, s5, 10
    s_lshl_b32 s45, s2, 12
    s_add_u32 s45, s45, s62
    """)
    a("s_add_u32 s45, s45, 0x%x" % WS_CAND)
    a("s_cmp_lt_u32 s5, %d" % (0 if NOCAND else 4))
    a("s_cselect_b32 s45, s45, 0x7fff0000")
    a("s_cmp_ge_u32 s4, 16")
    st0 = a.fork()
    a("s_cbranch_scc1 L_p1_notdft")
    a("""
    s_lshr_b32 s6, s4, 2
    s_lshl3_add_u32 s6, s6, s3            ; s2 index
    s_and_b32 s7, s4, 3
    s_lshl_b32 s44, s6, 10
    """)
    for g in range(4):
        a("s_add_u32 s46, s7, %d" % g)
        a("s_and_b32 s46, s46, 3")
        a("s_lshl_b32 s46, s46, 8")
        a("s_add_u32 %s, s46, s44" % s(48 + g))
    a("""
    %s
    s_and_b32 s46, s46, 7
    s_lshl_b32 s46, s46, 3
    v_add_u32 v4, s46, v2                 ; s1 = 8*((w+2*slice)&7) + q (+4 for the second group)
    v_lshlrev_b32 v5, 4, v1
    v_lshl_or_b32 v6, v4, 15, v5
    v_add_u32 v7, 0x20000, v6
    """ % ("s_lshl1_add_u32 s46, s7, s5" if ROT else "s_mov_b32 s46, s5"))
    a("s_waitcnt lgkmcnt(0)")
    stamp(a, 1)
    X = 16
    for i in range(4):
        for g in range(2):
            a("buffer_load_dwordx4 %s, %s, s[8:11], %s offen" % (v(X + 16 * g + 4 * i, 4), v(6 + g), s(48 + i)))
    a("s_branch L_dft")
    dft_state = a.fork()
    mark_dft = len(a.lines)
    a.label("L_dft")
    a("s_load_dword s47, s[12:13], 0x%x" % WS_GEN)
    a("""
    v_and_b32 v8, 3, v3                   ; M tile
    v_lshrrev_b32 v12, 8, v0
    v_lshlrev_b32 v13, 1, v2
    v_lshl_add_u32 v13, v8, 3, v13
    v_lshlrev_b32 v13, 16, v13
    v_lshl_add_u32 v13, v12, 8, v13
    v_add_u32 v13, v13, v5
    s_lshl_b32 s54, s6, 11
    s_lshl_b32 s55, s7, 9
    s_add_u32 s54, s54, s55
    """)
    a("s_add_u32 s54, s54, 0x%x" % WS_INTER)
    a("s_add_u32 s55, s54, 0x10000")
    def poison():
        a("buffer_store_dwordx4 v[252:255], v13, s[12:15], s54 offen sc1")
        a("buffer_store_dwordx4 v[252:255], v13, s[12:15], s55 offen sc1")
        a("buffer_store_dwordx4 v[252:255], v250, s[12:15], s45 offen sc1")
    if POIS == 0:
        poison()
    WA = 48
    a("""
    v_lshrrev_b32 v9, 1, v1
    v_lshl_add_u32 v9, v8, 3, v9          ; slot
    v_and_b32 v10, 1, v1
    v_lshl_or_b32 v11, v9, 1, v10
    v_cmp_eq_u32 vcc, 1, v11
    v_cvt_f32_u32 v10, v10
    v_lshlrev_b32 v15, 31, v9
    v_cndmask_b32 v11, v9, 32, vcc
    """)
    a("v_mul_f32 v10, %s, v10" % f32(0.25))
    a("v_cvt_f32_u32 v11, v11")
    a("v_cndmask_b32 v10, v10, 0, vcc")
    a("v_mul_f32 v11, %s, v11" % f32(1 / 64))
    a("v_fmac_f32 v10, v11, %s" % v(VQ4))
    a("v_lshrrev_b32 v14, 16, v15")
    a("v_or_b32 v15, v15, v14")
    T = 56
    a("v_cos_f32 %s, v10" % v(T))
    for j in range(1, 8):
        a("v_add_f32 v10, v10, v11" if j != 4 else "v_fmac_f32 v10, %s, v11" % f32(13.0))
        a("v_cos_f32 %s, v10" % v(T + j))
    for j in range(4):
        a("v_cvt_pk_bf16_f32 %s, %s, %s" % (v(WA + j), v(T + 2 * j), v(T + 2 * j + 1)))
    for j in range(4):
        a("v_xor_b32 %s, v15, %s" % (v(WA + 4 + j), v(WA + j)))
    a("""
    v_mul_u32_u24 v10, 288, v4
    v_add_u32 v10, v10, v5
    v_bfe_u32 v11, v0, 2, 4
    v_mul_u32_u24 v11, 288, v11
    v_and_b32 v14, 3, v0
    v_lshl_add_u32 v11, v14, 3, v11
    v_lshl_add_u32 v11, v12, 7, v11
    s_mov_b32 s52, 0x3f803f80
    v_mov_b32 v56, 0
    v_mov_b32 v57, 0
    v_mov_b32 v58, 0
    v_mov_b32 v59, 0
    """)
    if EARLYC:
        hidden_consts(a, 100)
    stamp(a, 2)
    U = 64
    for i in range(4):
        for g in range(2):
            a.wait_vm_for(v(X + 16 * g + 4 * i, 4))
            if i == 0 and g == 0:
                stamp(a, 3)
            if (POIS == 1 and i == 0 and g == 0) or (POIS == 2 and i == 2 and g == 0) or (POIS == 3 and i == 3 and g == 1):
                poison()
            for d in range(4):
                x = v(X + 16 * g + 4 * i + d)
                a("v_dot2c_f32_bf16 %s, s52, %s" % (v(56 + g), x))
                a("v_dot2c_f32_bf16 %s, %s, %s" % (v(58 + g), x, x))
            if i == 0:
                for d in range(4):
                    a("v_lshlrev_b32 %s, 16, %s" % (v(U + 8 * g + 2 * d), v(X + 16 * g + d)))
                    a("v_and_b32 %s, 0xffff0000, %s" % (v(U + 8 * g + 2 * d + 1), v(X + 16 * g + d)))
    stamp(a, 4)
    dpp_sum(a, [56, 57, 58, 59], ROR)
    for g in range(2):
        a("v_mul_f32 %s, %s, %s" % (v(56 + g), f32(1 / 512), v(56 + g)))
    for g in range(2):
        a("v_mul_f32 %s, %s, %s" % (v(60 + 2 * g), v(56 + g), v(56 + g)))
    for g in range(2):
        a("v_sub_f32 %s, %s, %s" % (v(60 + 2 * g), f32(EPS), v(60 + 2 * g)))
    for g in range(2):
        a("v_fmac_f32 %s, %s, %s" % (v(60 + 2 * g), f32(1 / 512), v(58 + g)))
    for g in range(2):
        a("v_rsq_f32 %s, %s" % (v(60 + 2 * g), v(60 + 2 * g)))
    for g in range(2):
        a("v_mul_f32 %s, %s, %s" % (v(61 + 2 * g), v(56 + g), v(60 + 2 * g)))
    for g in range(2):
        for e in range(8):
            a("v_fma_f32 %s, %s, %s, -%s" % (v(U + 8 * g + e), v(U + 8 * g + e), v(60 + 2 * g), v(61 + 2 * g)))
        for d in range(4):
            a("v_cvt_pk_bf16_f32 %s, %s, %s" % (v(X + 16 * g + d), v(U + 8 * g + 2 * d), v(U + 8 * g + 2 * d + 1)))
        a("ds_write_b128 v10, %s offset:%d" % (v(X + 16 * g, 4), 4 * PITCH * g))
    a("s_waitcnt vmcnt(0)")
    get_tag(a)
    a("s_barrier")
    stamp(a, 5)
    B = 64
    for ks in range(2):
        for i in range(4):
            for hf in range(2):
                a("ds_read_b64_tr_b16 %s, v11 offset:%d" % (v(B + 16 * ks + 4 * i + 2 * hf, 2), ks * 32 * PITCH + hf * 16 * PITCH + i * 32))
    if HINT == 0:
        a("s_cmp_lg_u32 s5, 0")
        a("s_cbranch_scc1 L_nohint0")
        flag_store(a)
        a.label("L_nohint0")
    ACC = 96
    for ks in range(2):
        for i in range(4):
            a.wait_lg_for(v(B + 16 * ks + 4 * i, 4))
            acc = v(ACC + 4 * i, 4)
            a("v_mfma_f32_16x16x32_bf16 %s, %s, %s, %s" % (acc, v(WA + 4 * ks, 4), v(B + 16 * ks + 4 * i, 4), "0" if ks == 0 else acc))
    O = 16
    for i in range(4):
        for p in range(2):
            a("v_cvt_pk_bf16_f32 %s, %s, %s" % (v(O + 4 * p + i), v(ACC + 4 * i + 2 * p), v(ACC + 4 * i + 2 * p + 1)))
    for p in range(2):
        a("buffer_store_dwordx4 %s, v13, s[12:15], %s offen sc1" % (v(O + 4 * p, 4), s(54 + p)))
    tgt = "L_p2_sconst" if EARLYC else "L_p2"
    if HINT == 1:
        a("s_cmp_lg_u32 s5, 0")
        a("s_cbranch_scc1 %s" % tgt)
        flag_store(a)
    a("s_branch %s" % tgt)
    dft_block = a.lines[mark_dft:]
    del a.lines[mark_dft:]
    a.label("L_p1_notdft")
    a.join(st0)
    a("s_cmp_ge_u32 s4, 22")
    st1 = a.fork()
    a("s_cbranch_scc1 L_p1_notmod")
    srd(a, 36, 512 * 6144)
    srd(a, 32, 1024)
    a("""
    s_sub_u32 s6, s2, 128
    s_lshl_b32 s48, s6, 7
    """)
    for i in range(1, 8):
        a("s_add_u32 %s, s48, %d" % (s(48 + i), 6144 * i))
    a("""
    v_lshrrev_b32 v4, 3, v0
    v_and_b32 v5, 7, v0
    v_mul_u32_u24 v6, 0xc000, v4
    v_lshl_add_u32 v6, v5, 4, v6
    v_and_b32 v7, 3, v0
    v_lshlrev_b32 v7, 2, v7
    v_lshl_add_u32 v7, v4, 4, v7
    s_waitcnt lgkmcnt(0)
    """)
    a("s_mov_b64 s[36:37], s[26:27]")
    a("s_mov_b64 s[32:33], s[24:25]")
    stamp(a, 1)
    a("buffer_load_dword v8, v7, s[32:35], 0 offen")
    W = 16
    for i in range(8):
        a("buffer_load_dwordx4 %s, v6, s[36:39], %s offen" % (v(W + 4 * i, 4), s(48 + i)))
    a("s_branch L_mod")
    mark_mod = len(a.lines)
    a.label("L_mod")
    a("s_load_dword s47, s[12:13], 0x%x" % WS_GEN)
    a("""
    s_mov_b32 s44, 0x05040100
    s_mov_b32 s46, 0x07060302
    s_lshr_b32 s48, s6, 3
    s_and_b32 s49, s6, 7
    s_lshl_b32 s49, s49, 6
    v_add_u32 v7, s49, v0                 ; e (wave 0)
    v_and_b32 v9, 0x1c0, v7
    v_lshl_add_u32 v9, v1, 2, v9
    v_add_u32 v9, v9, v2
    v_and_b32 v10, 0x103, v7
    v_bfe_u32 v11, v7, 2, 2
    v_lshl_add_u32 v10, v11, 6, v10
    v_bfe_u32 v11, v7, 4, 4
    v_lshl_add_u32 v10, v11, 2, v10
    s_cmp_lt_u32 s48, 2
    s_cselect_b64 s[50:51], -1, 0
    v_cndmask_b32 v9, v10, v9, s[50:51]
    v_lshlrev_b32 v9, 2, v9
    s_lshl_b32 s49, s48, 11
    s_cmp_eq_u32 s5, 0
    s_cselect_b32 s49, s49, 0x7fff0000
    buffer_store_dword v252, v9, s[12:15], s49 offen sc1
    buffer_store_dwordx4 v[252:255], v250, s[12:15], s45 offen sc1
    s_cmp_eq_u32 s48, 1
    s_cselect_b32 s50, 1.0, 0
    s_cmp_eq_u32 s48, 4
    s_cselect_b32 s50, 1.0, s50
    v_lshlrev_b32 v6, 2, v0
    v_lshlrev_b32 v10, 8, v3
    v_lshl_add_u32 v10, v5, 5, v10
    v_lshl_add_u32 v10, v2, 3, v10
    """)
    for j in range(8):
        a("v_mov_b32 %s, 0" % v(48 + j))
    stamp(a, 2)
    a.wait_vm_for("v8")
    stamp(a, 3)
    a("v_lshlrev_b32 v11, 16, v8")
    a("v_and_b32 v12, 0xffff0000, v8")
    a("v_mul_f32 v13, %s, v11" % f32(-1.4426950408889634))
    a("v_mul_f32 v14, %s, v12" % f32(-1.4426950408889634))
    a("""
    v_exp_f32 v13, v13
    v_exp_f32 v14, v14
    v_add_f32 v13, 1.0, v13
    v_add_f32 v14, 1.0, v14
    v_rcp_f32 v13, v13
    v_rcp_f32 v14, v14
    v_mul_f32 v11, v11, v13
    v_mul_f32 v12, v12, v14
    v_cvt_pk_bf16_f32 v8, v11, v12
    """)
    for p in range(4):
        a("v_mov_b32_dpp %s, v8 quad_perm:[%d,%d,%d,%d] row_mask:0xf bank_mask:0xf" % (v(12 + p), p, p, p, p))
    for p in range(4):
        a.wait_vm_for(v(W + 8 * p, 8))
        for jj in range(4):
            a("v_perm_b32 %s, %s, %s, s44" % (v(56 + 2 * jj), v(W + 8 * p + 4 + jj), v(W + 8 * p + jj)))
            a("v_perm_b32 %s, %s, %s, s46" % (v(57 + 2 * jj), v(W + 8 * p + 4 + jj), v(W + 8 * p + jj)))
        for j in range(8):
            a("v_dot2c_f32_bf16 %s, %s, %s" % (v(48 + j), v(12 + p), v(56 + j)))
    stamp(a, 4)
    for j in range(4):
        a("v_permlane32_swap_b32 %s, %s" % (v(48 + j), v(52 + j)))
    for j in range(4):
        a("v_add_f32 %s, %s, %s" % (v(48 + j), v(48 + j), v(52 + j)))
    for j in range(2):
        a("v_permlane16_swap_b32 %s, %s" % (v(48 + j), v(50 + j)))
    for j in range(2):
        a("v_add_f32 %s, %s, %s" % (v(48 + j), v(48 + j), v(50 + j)))
    dpp_sum(a, [48, 49], ROR[:1])
    a("""
    s_mov_b32 exec_lo, 0x00ff00ff
    s_mov_b32 exec_hi, 0x00ff00ff
    ds_write_b64 v10, v[48:49]
    s_mov_b64 exec, -1
    s_waitcnt vmcnt(0)
    """)
    get_tag(a)
    a("s_barrier")
    stamp(a, 5)
    a("""
    s_cmp_lg_u32 s5, 0
    s_cbranch_scc1 L_p2
    ds_read2st64_b32 v[48:49], v6 offset0:0 offset1:1
    ds_read2st64_b32 v[50:51], v6 offset0:2 offset1:3
    ds_read2st64_b32 v[52:53], v6 offset0:4 offset1:5
    ds_read2st64_b32 v[54:55], v6 offset0:6 offset1:7
    s_waitcnt lgkmcnt(0)
    v_add_f32 v48, v48, v49
    v_add_f32 v50, v50, v51
    v_add_f32 v52, v52, v53
    v_add_f32 v54, v54, v55
    v_add_f32 v48, v48, v50
    v_add_f32 v52, v52, v54
    v_add_f32 v48, v48, v52
    v_cvt_pk_bf16_f32 v48, v48, v48
    v_and_b32 v48, 0xffff0000, v48
    v_add_f32 v48, s50, v48
    v_cvt_pk_bf16_f32 v48, v48, v48
    v_and_b32 v48, 0xffff0000, v48
    buffer_store_dword v48, v9, s[12:15], s49 offen sc1
    """)
    flag_store(a)
    a("s_branch L_p2")
    mod_block = a.lines[mark_mod:]
    del a.lines[mark_mod:]
    a.label("L_p1_notmod")
    a.join(st1)
    a("s_cmp_ge_u32 s4, 29")
    st2 = a.fork()
    a("s_cbranch_scc0 L_p1_stage")
    srd(a, 36, 512 * 6144)
    a("""
    s_sub_u32 s6, s4, 29
    s_lshl_b32 s6, s6, 11
    s_lshl_b32 s7, s3, 7
    s_add_u32 s6, s6, s7
    s_add_u32 s6, s6, 0x180000
    v_lshrrev_b32 v4, 1, v0
    v_mul_u32_u24 v4, 6144, v4
    v_and_b32 v5, 1, v0
    v_lshl_add_u32 v4, v5, 10, v4
    s_waitcnt lgkmcnt(0)
    s_mov_b64 s[36:37], s[26:27]
    """)
    a("s_load_dword s47, s[12:13], 0x%x" % WS_GEN)
    if HELP:
        a("buffer_load_dword v196, v4, s[36:39], s6 offen")
    a("s_branch L_p1_idle")
    a.label("L_p1_stage")
    a.join(st2)
    a("""
    s_mul_i32 s6, s3, 7
    s_add_u32 s6, s6, s4
    s_sub_u32 s6, s6, 22
    s_lshl_b32 s46, s6, 12
    """)
    a("s_add_u32 s46, s46, 0x%x               ; partial-sum slab" % WS_PART)
    a("s_add_u32 s48, s46, s62")
    a("s_sub_u32 s48, s48, 4096")
    a("s_cmp_lt_u32 s5, 4")
    a("s_cselect_b32 s45, s45, s48")
    a("s_waitcnt lgkmcnt(0)")
    a("s_load_dword s47, s[12:13], 0x%x" % WS_GEN)
    a("s_cmp_ge_u32 s5, %d" % NEARLY)
    a("s_cbranch_scc1 L_p1_idle")
    stamp(a, 1)
    stage(a)
    a.label("L_p1_idle")
    a("buffer_store_dwordx4 v[252:255], v250, s[12:15], s45 offen sc1")
    get_tag(a)
    a("s_branch L_p2")
    a.lines += mod_block + dft_block[:-1] + ([dft_block[-1]] if EARLYC else [])
    a.label("L_p2", reset=True)
    if EARLYC:
        hidden_consts(a, 100)
        a.label("L_p2_sconst", reset=True)
    stamp(a, 6)
    srd(a, 28, 2048 * 1024)
    a("s_mov_b64 s[24:25], s[16:17]")
    srd(a, 24, 1024)
    a("""
    s_lshr_b32 s44, s4, 3
    s_lshl3_add_u32 s44, s44, s3          ; slot
    s_and_b32 s45, s4, 1                  ; mirror
    s_bfe_u32 s48, s4, 0x20001
    s_sub_u32 s49, 64, s44
    s_cmp_eq_u32 s44, 0
    s_cselect_b32 s49, 32, s49
    s_cmp_eq_u32 s45, 0
    s_cselect_b32 s49, s44, s49           ; k1
    """)
    a("s_mov_b32 s50, %s" % f32(0.25))
    a("s_cselect_b32 s50, %s, s50" % f32(-0.25))
    a("""
    s_mov_b32 s51, 0xffff0000
    s_cselect_b32 s51, 0x0000ffff, s51
    s_cmp_eq_u32 s44, 0
    s_cselect_b32 s50, 0, s50
    s_cselect_b32 s51, s51, -1
    s_lshl_b32 s48, s48, 9
    s_add_u32 s49, s49, s48
    s_lshl_b32 s56, s5, 6
    s_add_u32 s56, s56, s49
    s_lshl_b32 s57, s56, 10
    v_lshlrev_b32 v7, 5, v1
    v_lshl_add_u32 v7, v2, 3, v7          ; 32n + 8q
    buffer_load_dwordx2 v[56:57], v7, s[8:11], s57 offen
    buffer_load_dwordx2 v[58:59], v7, s[8:11], s57 offen offset:512
    buffer_load_dwordx2 v[60:61], v7, s[24:27], 0 offen
    buffer_load_dwordx2 v[62:63], v7, s[24:27], 0 offen offset:512
    v_lshrrev_b32 v8, 1, v1
    v_lshlrev_b32 v8, 6, v8
    v_add_u32 v8, s49, v8
    v_cvt_f32_u32 v8, v8
    v_and_b32 v9, 1, v1
    v_cvt_f32_u32 v10, v9
    """)
    a("v_mul_f32 v8, %s, v8" % f32(1 / 2048))
    a("v_mul_f32 v10, %s, v10" % f32(0.25))
    a("v_fmac_f32 v10, v8, %s" % v(VQ4))
    for ks in range(2):
        for r in range(4):
            if r:
                a("v_add_f32 v10, v10, v8")
            elif ks:
                a("v_fmac_f32 v10, %s, v8" % f32(13.0))
            a("v_add_f32 v12, s50, v10")
            a("v_cos_f32 v13, v10")
            a("v_cos_f32 v12, v12")
            if ks or r:
                k = SA + 4 * ks + r - 1
                a("v_and_b32 %s, s51, %s" % (v(k), v(k)))
            a("v_cvt_pk_bf16_f32 %s, v13, v12" % v(SA + 4 * ks + r))
    a("v_and_b32 %s, s51, %s" % (v(SA + 7), v(SA + 7)))
    a("""
    %s
    s_and_b32 s52, s52, 7                 ; column block of this wave
    s_lshl_b32 s53, s52, 8
    v_lshlrev_b32 v4, 4, v1
    v_add_u32 v4, s53, v4                 ; cb*256 + n*16
    v_lshl_add_u32 v5, v2, 13, v4
    s_lshl_b32 s58, s44, 16
    s_lshl_b32 s53, s52, 3
    """ % ("s_add_u32 s52, s5, s4" if ROT else "s_mov_b32 s52, s5"))
    a("s_add_u32 s58, s58, 0x%x" % WS_INTER)
    a("""
    s_add_u32 s59, s58, 0x1000
    s_add_u32 s60, s58, 0x8000
    s_add_u32 s61, s58, 0x9000
    v_mul_u32_u24 v8, 80, v1
    v_mul_u32_u24 v9, 5120, v2
    v_add3_u32 v9, v9, s53, v8
    v_mul_u32_u24 v12, 2560, v3
    v_lshl_add_u32 v10, v2, 4, v12
    v_add_u32 v10, v10, v8
    v_or_b32 v11, s49, v2
    v_cmp_eq_u32 vcc, 0, v11
    v_mov_b32 v11, 0x45000000
    v_cndmask_b32 v11, 0, v11, vcc
    """)
    a("s_add_u32 s55, s62, %d" % (WS_MOD + 4096))
    a("v_add_u32 v9, %d, v9                   ; U write address" % LDS_U)
    a("v_add_u32 v10, %d, v10                 ; U read address" % LDS_U)
    a("v_add_u32 v13, %d, v250                ; vector read address" % LDS_VEC)
    a("v_add_u32 v14, s62, v13")
    a("v_add_u32 v12, %d, v12" % LDS_OUT)
    a("v_add_u32 v15, v12, v250")
    a("v_add_u32 v12, v12, v7")
    if NEARLY < 8:
        touch_setup(a)
    stamp(a, 7)
    a("s_mov_b32 s54, %d" % SPIN)
    a("v_lshlrev_b32 v8, 7, v0")
    a("v_cmp_gt_u32 s[50:51], 176, v0") if False else a("v_cmp_gt_u32 vcc, 176, v0")
    a("s_mov_b32 s52, 0x%x" % WS_FLAG)
    a("s_mov_b64 s[50:51], vcc")
    if not EARLYC:
        a("s_cmp_ge_u32 s5, 3")
        a("s_cbranch_scc1 L_nopoll0")
        a("s_mov_b64 exec, s[50:51]")
        a("buffer_load_dword v6, v8, s[12:15], s52 offen sc1")
        a("s_mov_b64 exec, -1")
        a.label("L_nopoll0")
        hidden_consts(a, 160)
    a("s_cmp_ge_u32 s5, 3")
    a("s_cbranch_scc1 L_poll1_ok")
    a("s_mov_b64 exec, s[50:51]")
    if not EARLYC:
        a("s_branch L_poll1_chk")
        a.vm = [o for o in a.vm if "v6" not in o.w]
    a.label("L_poll1")
    a("buffer_load_dword v6, v8, s[12:15], s52 offen sc1")
    a.label("L_poll1_chk")
    a("s_waitcnt vmcnt(0)")
    a("v_cmp_ne_u32 vcc, v6, %s" % v(VTAG))
    a("s_and_b64 exec, exec, vcc")
    a("s_cmp_eq_u64 exec, 0")
    poll_tail(a, "L_poll1", "s54")
    a("s_mov_b64 exec, -1")
    a("s_mov_b32 s54, %d" % SPIN)
    a("s_waitcnt vmcnt(0)")
    XU, WU = 112, 120
    for d in range(4):
        a("v_lshlrev_b32 %s, 16, %s" % (v(XU + 2 * d), v(56 + d)))
        a("v_and_b32 %s, 0xffff0000, %s" % (v(XU + 2 * d + 1), v(56 + d)))
    a("s_barrier")
    stamp(a, 8)
    L = 16
    a.label("L_inter")
    for ks in range(2):
        for r in range(4):
            a("buffer_load_dwordx4 %s, v5, s[12:15], %s offen offset:%d sc1" % (v(L + 16 * ks + 4 * r, 4), s(58 + 2 * ks + r // 2), 2048 * (r % 2)))
    a("buffer_load_dwordx4 v[48:51], v4, s[12:15], 0 offen offset:%d sc1" % (WS_MOD + 2048))
    a("buffer_load_dwordx4 v[52:55], v4, s[12:15], 0 offen offset:%d sc1" % WS_MOD)
    a("buffer_load_dwordx4 v[64:67], v250, s[12:15], s55 offen sc1")
    if NEARLY < 8:
        if not T64:
            a("s_mov_b32 exec_hi, 0")
        a("buffer_load_dword v197, v198, s[32:35], s37 offen")
        if not T64:
            a("s_mov_b32 exec_hi, -1")
    for d in range(4):
        a("v_lshlrev_b32 %s, 16, %s" % (v(WU + 2 * d), v(60 + d)))
        a("v_and_b32 %s, 0xffff0000, %s" % (v(WU + 2 * d + 1), v(60 + d)))
    ACC = 96
    for ks in range(2):
        a.wait_vm_for(v(L + 16 * ks, 16))
        if ks == 1:
            stamp(a, 9)
        for r in range(4):
            for i in range(r + 1, 4):
                a("v_swap_b32 %s, %s" % (v(L + 16 * ks + 4 * r + i), v(L + 16 * ks + 4 * i + r)))
        for i in range(4):
            acc = v(ACC + 4 * i, 4)
            a("v_mfma_f32_16x16x32_bf16 %s, %s, %s, %s" % (acc, v(SA + 4 * ks, 4), v(L + 16 * ks + 4 * i, 4), "0" if ks == 0 else acc))
        b = L + 16 * ks
        if ks == 0:
            a("v_max3_u32 v6, %s, %s, %s" % (v(b), v(b + 1), v(b + 2)))
            a("v_max_u32 v6, v6, %s" % v(b + 3))
        else:
            a("v_max3_u32 v6, v6, %s, %s" % (v(b), v(b + 1)))
            a("v_max3_u32 v6, v6, %s, %s" % (v(b + 2), v(b + 3)))
    a.wait_vm_for("v[64:67]")
    a("""
    ds_write_b128 v14, v[64:67]
    v_max3_u32 v8, v48, v49, v50
    v_max3_u32 v6, v6, v51, v52
    v_max3_u32 v8, v8, v53, v54
    v_max3_u32 v6, v6, v55, v64
    v_max3_u32 v8, v8, v65, v66
    v_max3_u32 v6, v6, v8, v67
    v_cmp_eq_u32 vcc, -1, v6
    s_cmp_eq_u64 vcc, 0
    """)
    poll_tail(a, "L_inter", "s54")
    for i in range(4):
        a("v_mul_f32 %s, v11, %s" % (v(52 + i), v(52 + i)))
    P = 16
    for i in range(4):
        c = ACC + 4 * i
        a("v_fma_f32 %s, %s, %s, %s" % (v(c), v(c), v(48 + i), v(52 + i)))
        for j in range(1, 4):
            a("v_mul_f32 %s, %s, %s" % (v(c + j), v(c + j), v(48 + i)))
        for tt in range(2):
            a("v_cvt_pk_bf16_f32 %s, %s, %s" % (v(P + 4 * tt + 2 * (i % 2) + i // 2), v(c + 2 * tt), v(c + 2 * tt + 1)))
    for tt in range(2):
        for h in range(2):
            a("ds_write_b64 v9, %s offset:%d" % (v(P + 4 * tt + 2 * h, 2), tt * 2560 + h * 1280))
    a("s_waitcnt lgkmcnt(0)")
    a("s_barrier")
    D = 24
    a("ds_read_b128 %s, v10" % v(D, 4))
    a("ds_read_b128 %s, v10 offset:1280" % v(D + 4, 4))
    VEC = 128
    for k in range(4):
        for g in range(2):
            a("ds_read_b128 %s, v13 offset:%d" % (v(VEC + 8 * k + 4 * g, 4), 2048 * k + 1024 * g))
    BR, BI = 32, 40
    for h in range(2):
        a.wait_lg_for(v(D + 4 * h, 4))
        a("v_mfma_f32_16x16x32_bf16 %s, %s, %s, 0" % (v(BR + 4 * h, 4), v(D + 4 * h, 4), v(FR, 4)))
        a("v_mfma_f32_16x16x32_bf16 %s, %s, %s, 0" % (v(BI + 4 * h, 4), v(D + 4 * h, 4), v(FI, 4)))
    A2 = 16
    Y = 64
    for h in range(2):
        for j in range(4):
            br, bi, tc, ts = v(BR + 4 * h + j), v(BI + 4 * h + j), v(TC + 4 * h + j), v(TS + 4 * h + j)
            a("v_mul_f32 %s, %s, %s" % (v(48 + j), br, tc))
            a("v_mul_f32 %s, %s, %s" % (v(52 + j), bi, tc))
            a("v_fmac_f32 %s, %s, %s" % (v(48 + j), bi, ts))
            a("v_fma_f32 %s, -%s, %s, %s" % (v(52 + j), br, ts, v(52 + j)))
        for k in range(4):
            a("v_cvt_pk_bf16_f32 %s, %s, %s" % (v(A2 + 4 * h + k), v(48 + 2 * k), v(49 + 2 * k)))
        for g in range(2):
            y = v(Y + 4 * g, 4)
            a("v_mfma_f32_16x16x32_bf16 %s, %s, %s, %s" % (y, v(A2 + 4 * h, 4), v(G + 8 * h + 4 * g, 4), "0" if h == 0 else y))
    a("v_mov_b32 v10, %s" % f32(1 / 512))
    a("s_lshl_b32 s56, s2, 4")
    a("s_lshl1_add_u32 s56, s5, s56")
    a("v_lshlrev_b32 v11, 2, v3")
    a("v_add_u32 v11, %d, v11" % LDS_KEY)
    a("v_mov_b32 v13, %d" % LDS_KEY)
    a("s_waitcnt lgkmcnt(0)")
    GA, SB, CB, GB = VEC, VEC + 8, VEC + 16, VEC + 24
    for e in range(8):
        a("v_fmac_f32 %s, %s, %s" % (v(XU + e), v(GA + e), v(Y + e)))
    a("v_add_f32 v8, %s, %s" % (v(XU), v(XU + 1)))
    a("v_mul_f32 v9, %s, %s" % (v(XU), v(XU)))
    a("v_fmac_f32 v9, %s, %s" % (v(XU + 1), v(XU + 1)))
    for e in range(2, 8):
        a("v_add_f32 v8, v8, %s" % v(XU + e))
        a("v_fmac_f32 v9, %s, %s" % (v(XU + e), v(XU + e)))
    dpp_sum(a, [8, 9], ROR + BC)
    a("v_readlane_b32 s60, v8, 63")
    a("v_readlane_b32 s61, v9, 63")
    a("v_mul_f32 v8, s60, v10                 ; mean")
    a("v_mul_f32 v9, v8, v8")
    a("v_sub_f32 v9, %s, v9" % f32(EPS))
    a("v_fmac_f32 v9, s61, v10")
    a("v_rsq_f32 v9, v9")
    a("v_mul_f32 v8, v8, v9")
    H = 32
    for e in range(8):
        a("v_fma_f32 %s, %s, v9, -v8" % (v(H + e), v(XU + e)))
    for e in range(8):
        a("v_fma_f32 %s, %s, %s, %s" % (v(H + e), v(H + e), v(CB + e), v(SB + e)))
    a("v_mul_f32 v8, %s, %s" % (v(H), v(WU)))
    for e in range(1, 8):
        a("v_fmac_f32 v8, %s, %s" % (v(H + e), v(WU + e)))
    mods = ROR + BC
    for k, mod in enumerate(mods):
        a("v_add_f32_dpp v8, v8, v8 %s" % mod)
        for e in ((0, 1), (2, 3), (4, 5), (6, 7), (), ())[k]:
            a("v_fmac_f32 %s, %s, %s" % (v(XU + e), v(GB + e), v(H + e)))
        if k >= 4:
            for d in (2 * (k - 4), 2 * (k - 4) + 1):
                a("v_cvt_pk_bf16_f32 %s, %s, %s" % (v(40 + d), v(XU + 2 * d), v(XU + 2 * d + 1)))
    a("""
    v_ashrrev_i32 v9, 31, v8
    v_or_b32 v9, s63, v9
    v_xor_b32 v8, v8, v9
    v_and_b32 v8, 0xfffff000, v8
    v_or_b32 v8, s56, v8
    s_mov_b32 exec_lo, 0
    s_mov_b32 exec_hi, 0x80000000
    ds_write_b32 v11, v8
    s_mov_b64 exec, -1
    v_readlane_b32 s56, v8, 63
    s_waitcnt lgkmcnt(0)
    """)
    stamp(a, 10)
    a("""
    s_barrier
    ds_read_b128 v[16:19], v13
    ds_read_b128 v[20:23], v13 offset:16
    ds_write_b64 v12, v[40:41]
    ds_write_b64 v12, v[42:43] offset:512
    ds_read_b128 v[40:43], v15
    """)
    for d in range(4):
        a("v_cvt_pk_bf16_f32 %s, %s, %s" % (v(44 + d), v(H + 2 * d), v(H + 2 * d + 1)))
    a("v_mov_b32 v25, %s" % v(VTAG))
    a("v_mov_b32 v27, %s" % v(VTAG))
    a("s_mul_i32 s58, s2, %d" % KSTR)
    a("s_add_u32 s58, s58, 0x%x" % WS_KEYS)
    a("s_lshl_b32 s59, s2, 12")
    a("s_add_u32 s59, s59, 0x%x" % WS_CAND)
    a("""
    s_waitcnt lgkmcnt(3)
    v_max_u32 v24, v16, v17
    v_min_u32 v26, v16, v17
    v_med3_u32 v28, v24, v18, v19
    v_max3_u32 v24, v24, v18, v19
    v_med3_u32 v29, v24, v20, v21
    v_max3_u32 v24, v24, v20, v21
    v_max3_u32 v26, v26, v28, v29
    v_med3_u32 v28, v24, v22, v23
    v_max3_u32 v24, v24, v22, v23
    v_max_u32 v26, v26, v28
    v_readfirstlane_b32 s60, v24
    v_readfirstlane_b32 s61, v26
    v_or_b32 v26, 1, v26
    s_cmp_lg_u32 s56, s60
    s_cbranch_scc1 L_notfirst
    s_mov_b64 exec, 1
    buffer_store_dwordx4 v[24:27], off, s[12:15], s58 sc1
    s_mov_b64 exec, -1
    s_branch L_cand
    """)
    a.label("L_notfirst")
    a("""
    s_cmp_lg_u32 s56, s61
    s_cbranch_scc1 L_notcand
    s_or_b32 s56, s56, 1
    s_add_u32 s59, s59, 2048
    """)
    a.label("L_cand")
    a("""
    buffer_store_dwordx4 v[44:47], v250, s[12:15], s59 offen sc1
    s_waitcnt lgkmcnt(0)
    buffer_store_dwordx4 v[40:43], v250, s[12:15], s59 offen offset:1024 sc1
    s_branch L_tail
    """)
    a.label("L_notcand")
    a("""
    s_mov_b32 s56, 0
    s_waitcnt lgkmcnt(0)
    buffer_store_dwordx4 v[40:43], v250, s[28:31], s57 offen
    """)
    a.label("L_tail", reset=True)
    a("s_sub_u32 s59, s4, 22")
    a("s_cmp_lt_u32 s59, 7")
    a("s_cbranch_scc1 L_ffn")
    a("""
    s_lshl_b32 s59, s5, 8
    s_add_u32 s59, s59, s2
    s_cmp_lt_u32 s59, 64
    s_cselect_b32 s59, 1, 0
    s_or_b32 s60, s59, s56
    s_cmp_eq_u32 s60, 0
    s_cbranch_scc1 L_done
    s_lshl_b32 s45, s3, 7
    """)
    a("s_add_u32 s45, s45, 0x%x" % WS_SEL)
    a("s_cmp_eq_u32 s59, 0")
    a("s_cbranch_scc1 L_sel_go")
    a("""
    s_lshl3_add_u32 s44, s3, s4
    s_lshr_b32 s48, s44, 2
    s_lshl_b32 s48, s48, 5
    s_and_b32 s49, s44, 3
    s_lshl2_add_u32 s48, s49, s48
    v_and_b32 v4, 3, v0
    v_lshrrev_b32 v5, 1, v2
    v_lshl_add_u32 v5, v5, 4, v4
    v_add_u32 v5, s48, v5
    v_and_b32 v8, 0x103, v5
    v_bfe_u32 v9, v5, 2, 2
    v_lshl_add_u32 v8, v9, 6, v8
    v_bfe_u32 v9, v5, 4, 4
    v_lshl_add_u32 v8, v9, 2, v8
    v_lshlrev_b32 v8, 2, v8
    """)
    a("v_add_u32 v8, %d, v8" % (LDS_VEC + 3 * 2048))
    a("""
    ds_read_b32 v8, v8                    ; gb[e]
    v_bfe_u32 v9, v0, 2, 4
    v_lshlrev_b32 v9, 12, v9
    v_lshl_add_u32 v9, v4, 4, v9
    s_lshl_b32 s48, s44, 6
    v_and_b32 v10, 1, v2
    v_cmp_eq_u32 s[50:51], 1, v10
    v_mov_b32 v36, 0
    v_mov_b32 v37, 0
    v_mov_b32 v38, 0
    v_mov_b32 v39, 0
    """)
    a("s_add_u32 s48, s48, 0x%x" % WS_PART)
    a("s_add_u32 s49, s48, 0x10000")
    a("s_add_u32 s52, s48, 0x20000")
    a("s_add_u32 s53, s48, 0x30000")
    a("s_waitcnt lgkmcnt(0)")
    a.label("L_sel_go")
    a("s_mov_b32 s54, %d" % SPIN)
    a.label("L_poll_sel")
    a("buffer_load_dwordx4 v[16:19], off, s[12:15], s45 sc1")
    a("s_waitcnt vmcnt(0)")
    a("v_cmp_eq_u32 vcc, v17, %s" % v(VTAG))
    a("v_cmp_eq_u32 s[60:61], v19, %s" % v(VTAG))
    a("s_and_b64 vcc, vcc, s[60:61]")
    a("s_cmp_eq_u64 vcc, -1")
    poll_tail(a, "L_poll_sel", "s54")
    stamp(a, 11)
    a("""
    v_readfirstlane_b32 s60, v16
    v_readfirstlane_b32 s61, v18
    s_cmp_eq_u32 s59, 0
    s_cbranch_scc1 L_late_out
    v_cndmask_b32 v16, v16, v18, s[50:51]
    v_bfe_u32 v17, v16, 4, 8
    v_and_b32 v18, 1, v16
    v_lshlrev_b32 v19, 12, v17
    v_lshl_add_u32 v19, v18, 11, v19
    v_lshl_add_u32 v19, v5, 1, v19
    """)
    a("s_mov_b32 s55, 0x%x" % (WS_CAND + 1024))
    a("s_mov_b32 s54, %d" % SPIN)
    a.label("L_poll_base")
    a("""
    buffer_load_ushort v20, v19, s[12:15], s55 offen sc1
    v_and_b32 v21, 7, v17
    v_lshrrev_b32 v22, 6, v17
    v_lshl_add_u32 v21, v22, 3, v21       ; slot
    v_sub_u32 v22, 64, v21
    v_cmp_eq_u32 vcc, 0, v21
    v_cndmask_b32 v22, v22, 32, vcc
    v_and_b32 v23, 8, v17
    v_cmp_eq_u32 vcc, 0, v23
    v_cndmask_b32 v21, v22, v21, vcc      ; k1
    v_bfe_u32 v22, v17, 4, 2
    v_lshl_add_u32 v21, v22, 9, v21
    v_bfe_u32 v22, v16, 1, 3
    v_lshl_add_u32 v21, v22, 6, v21
    v_lshlrev_b32 v21, 10, v21
    v_lshl_add_u32 v21, v5, 1, v21
    v_and_b32 v22, 0xfffff000, v16
    v_ashrrev_i32 v23, 31, v22
    v_not_b32 v23, v23
    v_or_b32 v23, s63, v23
    v_xor_b32 v22, v22, v23
    """)
    a("v_mul_f32 v22, %s, v22" % f32(-1.4426950408889634))
    a("""
    v_exp_f32 v22, v22
    v_add_f32 v22, 1.0, v22
    v_rcp_f32 v22, v22
    v_mul_f32 v22, v22, v8
    s_waitcnt vmcnt(0)
    v_cmp_eq_u32 vcc, 0xffff, v20
    s_cmp_eq_u64 vcc, 0
    """)
    poll_tail(a, "L_poll_base", "s54")
    a("s_mov_b32 s54, %d" % SPIN)
    if PDELAY:
        a("s_sleep %d" % PDELAY)
    a.label("L_poll_part")
    a("""
    buffer_load_dwordx4 v[24:27], v9, s[12:15], s48 offen sc1
    buffer_load_dwordx4 v[28:31], v9, s[12:15], s49 offen sc1
    buffer_load_dwordx4 v[32:35], v9, s[12:15], s52 offen sc1
    s_mov_b32 exec_hi, 0
    buffer_load_dwordx4 v[36:39], v9, s[12:15], s53 offen sc1
    s_mov_b32 exec_hi, -1
    s_waitcnt vmcnt(0)
    v_max3_u32 v48, v24, v28, v32
    v_max_u32 v48, v48, v36
    v_cmp_eq_u32 vcc, -1, v48
    s_cmp_eq_u64 vcc, 0
    """)
    poll_tail(a, "L_poll_part", "s54")
    stamp(a, 12)
    a("""
    v_pk_add_f32 v[24:25], v[24:25], v[28:29]
    v_pk_add_f32 v[26:27], v[26:27], v[30:31]
    v_pk_add_f32 v[32:33], v[32:33], v[36:37]
    v_pk_add_f32 v[34:35], v[34:35], v[38:39]
    v_pk_add_f32 v[24:25], v[24:25], v[32:33]
    v_pk_add_f32 v[26:27], v[26:27], v[34:35]
    v_permlane32_swap_b32 v24, v26
    v_permlane32_swap_b32 v25, v27
    v_pk_add_f32 v[24:25], v[24:25], v[26:27]
    v_permlane16_swap_b32 v24, v25
    v_add_f32 v24, v24, v25
    """)
    a("v_lshlrev_b32 v20, 16, v20")
    dpp_sum(a, [24], ROR[:2])
    a("""
    v_fmac_f32 v20, v24, v22
    v_cvt_pk_bf16_f32 v20, v20, v20
    s_mov_b32 exec_lo, 0x000f000f
    s_mov_b32 exec_hi, 0x000f000f
    buffer_store_short v20, v21, s[28:31], 0 offen
    s_mov_b64 exec, -1
    s_cmp_lg_u32 s2, 0
    s_cbranch_scc1 L_late_out
    s_mov_b64 exec, 1
    """)
    a("s_mov_b32 s55, 0x%x" % WS_GEN)
    a("buffer_store_dword %s, off, s[12:15], s55" % v(VTAG))
    a("s_mov_b64 exec, -1")
    if PROBE >= 0:
        a("s_waitcnt vmcnt(0)")
        a("s_memrealtime s[98:99]")
        a("s_waitcnt lgkmcnt(0)")
        a("s_sub_u32 s94, %s, s96" % ("s98" if PROBE == 13 else "s92"))
        a("s_mul_i32 s94, s94, 2")
        a("s_min_u32 s94, s94, 8000")
        a.label("L_probe")
        a("s_memrealtime s[96:97]")
        a("s_waitcnt lgkmcnt(0)")
        a("s_sub_u32 s95, s96, s98")
        a("s_cmp_lt_u32 s95, s94")
        a("s_cbranch_scc1 L_probe")
    a("s_branch L_late_out")
    a.label("L_ffn", reset=True)
    WF, WD = 64, 96
    if NEARLY < 8:
        a("s_cmp_lt_u32 s5, %d" % NEARLY)
        a("s_cbranch_scc1 L_staged")
        stage(a)
        a("s_waitcnt vmcnt(0)")
        stamp(a, 2)
        a.label("L_staged")
    a("s_mov_b32 s55, 0x%x" % WS_KEYS)
    a("s_mov_b32 s54, %d" % SPIN)
    a("v_mul_u32_u24 v6, %d, v0" % KSTR)
    a("""
    s_mul_i32 s7, s5, 12288
    v_bfe_u32 v4, v0, 2, 4                ; 4q + r
    v_and_b32 v5, 3, v0
    v_lshlrev_b32 v5, 3, v5
    v_lshl_add_u32 v8, v4, 6, v5
    v_add_u32 v8, s7, v8
    v_bfe_u32 v9, v0, 2, 2
    v_lshl_add_u32 v9, v2, 3, v9
    v_lshl_add_u32 v9, v9, 7, v5
    v_add_u32 v9, s7, v9
    """)
    for kk in range(2):
        for mt in range(4):
            for hf in range(2):
                a("ds_read_b64_tr_b16 %s, v8 offset:%d" % (v(WF + 16 * kk + 4 * mt + 2 * hf, 2), (mt // 2) * 4096 + hf * 2048 + kk * 1024 + (mt % 2) * 32))
    for t in range(4):
        for hf in range(2):
            a("ds_read_b64_tr_b16 %s, v9 offset:%d" % (v(WD + 4 * t + 2 * hf, 2), 8192 + hf * 512 + t * 32))
    a("""
    v_and_b32 v10, 1, v0
    v_cmp_eq_u32 s[50:51], 1, v10
    v_lshlrev_b32 v11, 7, v3
    v_lshl_add_u32 v11, v2, 4, v11
    v_lshlrev_b32 v12, 6, v10
    v_lshl_add_u32 v13, v2, 4, v12
    v_lshl_add_u32 v13, v3, 9, v13
    v_and_b32 v14, 30, v0
    v_lshl_add_u32 v14, v14, 1, v12
    v_and_b32 v12, 32, v0
    v_lshl_add_u32 v14, v12, 2, v14
    """)
    a("v_add_u32 v13, %d, v13                 ; partial write address" % LDS_RED)
    a("v_add_u32 v14, %d, v14                 ; partial read address" % LDS_RED)
    a("""
    v_lshlrev_b32 v15, 9, v3
    v_lshl_add_u32 v15, v1, 4, v15
    v_lshlrev_b32 v7, 3, v3
    """)
    a("v_add_u32 v7, %d, v7" % LDS_KEY2)
    a("v_mov_b32 v4, %d" % LDS_KEY2)
    if DRY:
        a("s_mov_b32 s53, 0x7fff0000")
        a("s_waitcnt lgkmcnt(0)")
        a("s_branch L_ffn_compute")
        a.label("L_ffn_real", reset=True)
    a("s_mov_b32 s53, s46")
    a("s_cmp_ge_u32 s5, 4")
    a("s_cbranch_scc1 L_keys_done")
    a.label("L_poll_keys")
    a("buffer_load_dwordx4 v[16:19], v6, s[12:15], s55 offen sc1")
    a("s_waitcnt vmcnt(0)")
    a("v_cmp_ne_u32 vcc, v17, %s" % v(VTAG))
    a("v_cmp_ne_u32 s[60:61], v19, %s" % v(VTAG))
    a("s_or_b64 vcc, vcc, s[60:61]")
    a("s_and_b64 exec, exec, vcc")
    a("s_cmp_eq_u64 exec, 0")
    poll_tail(a, "L_poll_keys", "s54")
    a("s_mov_b64 exec, -1")
    for mod in ROR + BC:
        a("v_min_u32_dpp v19, v16, v16 %s" % mod)
        a("v_max_u32_dpp v18, v18, v18 %s" % mod)
        a("v_max_u32_dpp v16, v16, v16 %s" % mod)
        a("v_max_u32 v18, v18, v19")
    a("""
    s_mov_b32 exec_lo, 0
    s_mov_b32 exec_hi, 0x80000000
    ds_write2_b32 v7, v16, v18 offset0:0 offset1:1
    s_mov_b64 exec, -1
    """)
    a.label("L_keys_done")
    a("s_waitcnt lgkmcnt(0)")
    a("s_barrier")
    stamp(a, 11)
    a("""
    ds_read_b128 v[16:19], v4
    ds_read_b128 v[20:23], v4 offset:16
    """)
    a("s_mov_b32 s55, 0x%x" % WS_CAND)
    a("s_mov_b32 s54, %d" % SPIN)
    a("""
    s_waitcnt lgkmcnt(0)
    v_med3_u32 v36, v16, v18, v20
    v_max3_u32 v32, v16, v18, v20
    v_max3_u32 v34, v17, v19, v21
    v_min_u32 v37, v32, v22
    v_max_u32 v32, v32, v22
    v_max3_u32 v34, v34, v23, v36
    v_max_u32 v34, v34, v37
    v_cndmask_b32 v36, v32, v34, s[50:51]
    v_bfe_u32 v37, v36, 4, 8
    v_and_b32 v36, 1, v36
    v_lshl_add_u32 v11, v37, 12, v11
    v_lshl_add_u32 v11, v36, 11, v11
    """)
    a.label("L_poll_h2")
    a("""
    buffer_load_dwordx4 v[16:19], v11, s[12:15], s55 offen sc1
    buffer_load_dwordx4 v[20:23], v11, s[12:15], s55 offen offset:64 sc1
    v_readfirstlane_b32 s60, v32
    v_readfirstlane_b32 s61, v34
    s_lshl_b32 s52, s59, 3
    s_or_b32 s52, s52, s5
    s_cmp_lg_u32 s52, 0
    s_cbranch_scc1 L_nosel
    """)
    a("v_mov_b32 v33, %s" % v(VTAG))
    a("v_mov_b32 v35, %s" % v(VTAG))
    a("s_lshl_b32 s52, s3, 7")
    a("s_add_u32 s52, s52, 0x%x" % WS_SEL)
    a("""
    s_mov_b64 exec, 1
    buffer_store_dwordx4 v[32:35], off, s[12:15], s52 sc1
    s_mov_b64 exec, -1
    s_waitcnt vmcnt(1)
    s_branch L_h2chk
    """)
    a.label("L_nosel")
    a("s_waitcnt vmcnt(0)")
    a.label("L_h2chk")
    a("""
    v_max_u32 v36, v16, v20
    v_cmp_eq_u32 vcc, -1, v36
    s_cmp_eq_u64 vcc, 0
    """)
    poll_tail(a, "L_poll_h2", "s54")
    stamp(a, 12)
    a.label("L_ffn_compute")
    C = 48
    for kk in range(2):
        for mt in range(4):
            c = v(C + 4 * mt, 4)
            a("v_mfma_f32_16x16x32_bf16 %s, %s, %s, %s" % (c, v(WF + 16 * kk + 4 * mt, 4), v(16 + 4 * kk, 4), "0" if kk == 0 else c))
    a("s_mov_b32 exec_lo, 0x00030003")
    a("s_mov_b32 exec_hi, 0x00030003")
    for mt in range(4):
        a("ds_write_b128 v13, %s offset:%d" % (v(C + 4 * mt, 4), 128 * mt))
    a("""
    s_mov_b64 exec, -1
    s_waitcnt lgkmcnt(0)
    """)
    stamp(a, 4)
    a("s_barrier")
    stamp(a, 5)
    a("""
    ds_read2st64_b32 v[16:17], v14 offset0:0 offset1:2
    ds_read2st64_b32 v[18:19], v14 offset0:4 offset1:6
    ds_read2st64_b32 v[20:21], v14 offset0:8 offset1:10
    ds_read2st64_b32 v[22:23], v14 offset0:12 offset1:14
    ds_read2st64_b32 v[24:25], v14 offset0:1 offset1:3
    ds_read2st64_b32 v[26:27], v14 offset0:5 offset1:7
    ds_read2st64_b32 v[28:29], v14 offset0:9 offset1:11
    ds_read2st64_b32 v[30:31], v14 offset0:13 offset1:15
    s_waitcnt lgkmcnt(4)
    v_pk_add_f32 v[16:17], v[16:17], v[18:19]
    v_pk_add_f32 v[20:21], v[20:21], v[22:23]
    v_pk_add_f32 v[16:17], v[16:17], v[20:21]
    v_add_f32 v16, v16, v17
    """)
    a("v_mul_f32 v17, %s, v16" % f32(-1.4426950408889634))
    a("""
    v_exp_f32 v17, v17
    s_waitcnt lgkmcnt(0)
    v_pk_add_f32 v[24:25], v[24:25], v[26:27]
    v_add_f32 v17, 1.0, v17
    v_pk_add_f32 v[28:29], v[28:29], v[30:31]
    v_rcp_f32 v17, v17
    v_pk_add_f32 v[24:25], v[24:25], v[28:29]
    v_add_f32 v24, v24, v25
    v_mul_f32 v16, v16, v17
    v_mul_f32 v16, v16, v24
    v_mov_b32_dpp v17, v16 row_ror:14 row_mask:0xf bank_mask:0xf
    v_cvt_pk_bf16_f32 v20, v16, v17
    v_mov_b32_dpp v21, v20 row_ror:12 row_mask:0xf bank_mask:0xf
    v_mov_b32_dpp v22, v20 row_ror:8 row_mask:0xf bank_mask:0xf
    v_mov_b32_dpp v23, v20 row_ror:4 row_mask:0xf bank_mask:0xf
    """)
    for t in range(4):
        a("v_mfma_f32_16x16x32_bf16 %s, v[20:23], %s, 0" % (v(C + 4 * t, 4), v(WD + 4 * t, 4)))
    a("""
    s_mov_b64 exec, 0xffff
    v_mov_b32 v50, v52
    v_mov_b32 v51, v53
    buffer_store_dwordx4 v[48:51], v15, s[12:15], s53 offen sc1
    v_mov_b32 v58, v60
    v_mov_b32 v59, v61
    buffer_store_dwordx4 v[56:59], v15, s[12:15], s53 offen offset:256 sc1
    s_mov_b64 exec, -1
    """)
    if DRY:
        a("s_cmp_lg_u32 s53, s46")
        a("s_cbranch_scc1 L_ffn_real")
    stamp(a, 3)
    a.label("L_late_out", reset=True)
    a("""
    s_cmp_eq_u32 s56, 0
    s_cbranch_scc1 L_done
    s_cmp_eq_u32 s56, s60
    s_cbranch_scc1 L_done
    s_cmp_eq_u32 s56, s61
    s_cbranch_scc1 L_done
    buffer_store_dwordx4 v[40:43], v250, s[28:31], s57 offen
    """)
    a.label("L_done", reset=True)
    stamp_end(a)
    a.label("L_end")
    a("s_endpgm")
    desc = """.section .rodata,"a"
.p2align 6
.amdhsa_kernel %s
  .amdhsa_next_free_vgpr 256
  .amdhsa_next_free_sgpr 100
  .amdhsa_accum_offset 256
  .amdhsa_group_segment_fixed_size 0
  .amdhsa_kernarg_size 120
  .amdhsa_user_sgpr_count 2
  .amdhsa_user_sgpr_kernarg_segment_ptr 1
  .amdhsa_system_sgpr_workgroup_id_x 1
.end_amdhsa_kernel
""" % KN
    return HEADER + "; @launch grid=(256,1,1) block=(512,1,1) lds=%d\n" % LDS_TOTAL + a.text() + desc


if __name__ == "__main__":
    out = sys.argv[1] if len(sys.argv) > 1 and sys.argv[1].endswith(".s") else "v3.s"
    open(out, "w").write(build())
    print("wrote", out)
```

```python
import sys, struct
from asmlib import Asm, Ins, v, s

NAME = "adaLN_cond__spectral_fnet__moe_arch_mod__prompt"
KN = NAME + "_kernel"
HEADER = open("cdna_kernels/%s.s.ref" % NAME).read().split("; Override launch geometry")[0]


def opt(name, default):
    for x in sys.argv:
        if x.startswith("--%s=" % name):
            return int(x.split("=")[1], 0)
    return default


STAMPS = "--stamps" in sys.argv
PROBE = opt("probe", -1)
HINT = opt("hint", 0)
KSTR = opt("kstr", 64)
NOFFN = opt("noffn", 0)
NOCAND = opt("nocand", 0)
ROT = opt("rot", 1)
HELP = opt("help", 1)
DRY = opt("dry", 0)
PDELAY = opt("pdelay", 0)
T64 = opt("t64", 1)
NEARLY = opt("nearly", 4)
PITCH = 288
CPF = opt("cpf", 0)
POIS = opt("pois", 0)
EARLYC = opt("earlyc", 0)

WS_MOD = 0x0
WS_GEN = 0x3000
WS_SEL = 0x3400
WS_FLAG = 0x8000
WS_KEYS = 0x10000
WS_PART = 0x80000
WS_CAND = 0x100000
WS_INTER = 0x200000
WS_SIZE = 0x400000
WS_STAMP = 0x600000
if STAMPS:
    WS_SIZE = 0x800000
EPS = 1e-5
TAGC = 0x9E3779B9
SPIN = 1 << 15

LDS_U = 98304
LDS_VEC = LDS_U + 20480
LDS_KEY = LDS_VEC + 8192
LDS_KEY2 = LDS_KEY + 32
LDS_RED = LDS_KEY + 64
LDS_OUT = LDS_U
LDS_TOTAL = LDS_RED + 4096

FR, FI, TC, TS, G, SA = 200, 204, 208, 216, 224, 240
VQ4, VTAG = 248, 249


def f32(x):
    return "0x%08x" % struct.unpack("<I", struct.pack("<f", x))[0]


def srd(a, base, nbytes):
    a("s_mov_b32 %s, 0x%x" % (s(base + 2), nbytes))
    a("s_mov_b32 %s, 0x20000" % s(base + 3))


NST = 14


def stamp(a, i):
    if PROBE >= 0 and i == 0:
        a("s_memrealtime s[96:97]")
    if PROBE == i:
        a("s_memrealtime s[92:93]")
    if not STAMPS:
        return
    if i == 0:
        a("s_memrealtime s[96:97]")
        for k in range(1, NST):
            a("s_mov_b32 %s, 0" % s(64 + 2 * k))
    a("s_memtime %s" % s(64 + 2 * i, 2))


def stamp_end(a):
    if not STAMPS:
        return
    a("s_waitcnt vmcnt(0)")
    a("s_memtime %s" % s(64 + 2 * (NST - 1), 2))
    a("s_memrealtime s[98:99]")
    a("s_mov_b64 exec, 1")
    a("s_lshl_b32 s93, s2, 3")
    a("s_add_u32 s93, s93, s5")
    a("s_lshl_b32 s93, s93, 6")
    a("s_add_u32 s93, s93, 0x%x" % WS_STAMP)
    a("s_waitcnt lgkmcnt(0)")
    a("v_mov_b32 v16, s96")
    a("v_mov_b32 v17, s98")
    for k in range(NST):
        a("v_mov_b32 %s, %s" % (v(18 + k), s(64 + 2 * k)))
    for k in range(4):
        a("buffer_store_dwordx4 %s, off, s[12:15], s93 offset:%d" % (v(16 + 4 * k, 4), 16 * k))


ROR = ["row_ror:%d row_mask:0xf bank_mask:0xf" % r for r in (8, 4, 2, 1)]
BC = ["row_bcast:15 row_mask:0xa bank_mask:0xf", "row_bcast:31 row_mask:0xc bank_mask:0xf"]


def dpp_sum(a, regs_, mods):
    for mod in mods:
        for r in regs_:
            a("v_add_f32_dpp %s, %s, %s %s" % (v(r), v(r), v(r), mod))


def poll_tail(a, label, cnt):
    a("s_cbranch_scc1 %s_ok" % label)
    a("s_sub_u32 %s, %s, 1" % (cnt, cnt))
    a("s_cbranch_scc0 %s" % label)
    a.label(label + "_ok")


def hidden_consts(a, t0):
    t = [v(t0 + i) for i in range(15)]
    a("v_cvt_f32_u32 %s, v1" % t[0])
    a("v_mul_f32 %s, %s, %s" % (t[0], f32(1 / 512), t[0]))
    a("v_mul_f32 %s, %s, %s" % (t[1], t[0], v(VQ4)))
    a("v_mul_f32 %s, %s, %s" % (t[2], f32(16.0), t[0]))
    for j in range(4):
        if j:
            a("v_add_f32 %s, %s, %s" % (t[1], t[1], t[0]))
        a("v_mul_f32 %s, %s, %s" % (t[3], f32(32.0), t[1]))
        a("v_mul_f32 %s, %s, %s" % (t[4], f32(16.0), t[1]))
        a("v_add_f32 %s, %s, %s" % (t[5], t[1], t[2]))
        a("v_cos_f32 %s, %s" % (v(TC + j), t[1]))
        a("v_sin_f32 %s, %s" % (v(TS + j), t[1]))
        a("v_cos_f32 %s, %s" % (t[6], t[3]))
        a("v_sin_f32 %s, %s" % (t[3], t[3]))
        a("v_cos_f32 %s, %s" % (v(TC + 4 + j), t[5]))
        a("v_sin_f32 %s, %s" % (v(TS + 4 + j), t[5]))
        a("v_cos_f32 %s, %s" % (t[7 + j], t[4]))
        a("v_sin_f32 %s, %s" % (t[11 + j], t[4]))
        a("v_cvt_pk_bf16_f32 %s, %s, %s" % (v(FR + j), t[6], t[3]))
        a("v_cvt_pk_bf16_f32 %s, -%s, %s" % (v(FI + j), t[3], t[6]))
    for j in range(4):
        a("v_cvt_pk_bf16_f32 %s, %s, %s" % (v(G + j), t[7 + 2 * j], t[8 + 2 * j]))
    a("v_lshlrev_b32 %s, 31, v1" % t[3])
    a("v_lshrrev_b32 %s, 16, %s" % (t[4], t[3]))
    a("v_or_b32 %s, %s, %s" % (t[3], t[3], t[4]))
    for j in range(4):
        a("v_xor_b32 %s, s63, %s" % (v(G + 4 + j), v(G + j)))
        a("v_xor_b32 %s, %s, %s" % (v(G + 8 + j), t[3], v(G + j)))
        a("v_xor_b32 %s, s63, %s" % (v(G + 12 + j), v(G + 8 + j)))


def code_prefetch(a):
    if not CPF:
        return
    a("s_cmp_lt_u32 s2, 232")
    a("s_cbranch_scc1 L_cpf")
    a("s_getpc_b64 s[60:61]")
    a.label("L_cpf_pc")
    a("v_lshlrev_b32 v192, 7, v0")
    a("v_min_u32 v192, L_end-L_cpf_pc, v192")
    a("v_mov_b32 v193, 0")
    a("v_lshl_add_u64 v[192:193], v[192:193], 0, s[60:61]")
    n = len(a.vm)
    a("global_load_dword v196, v[192:193], off")
    del a.vm[n:]
    a.label("L_cpf")


def stage(a):
    a("s_mov_b64 s[32:33], s[18:19]")
    a("s_mov_b64 s[36:37], s[20:21]")
    a("s_mov_b64 s[40:41], s[22:23]")
    srd(a, 32, 512 * 3584)
    srd(a, 36, 512 * 3584)
    srd(a, 40, 1792 * 1024)
    a("""
    s_and_b32 s44, s5, 1
    s_lshl_b32 s44, s44, 7
    s_lshr_b32 s48, s5, 1
    s_lshl2_add_u32 s44, s48, s44
    v_bfe_u32 v4, v0, 2, 2
    v_lshl_add_u32 v4, v2, 4, v4
    v_add_u32 v4, s44, v4
    v_mul_u32_u24 v4, 3584, v4
    v_and_b32 v5, 3, v0
    v_lshl_add_u32 v4, v5, 4, v4
    s_lshl_b32 s48, s6, 6
    s_mul_i32 m0, s5, 12288
    """)
    a("s_add_u32 s49, s48, %d" % (64 * 3584))
    a("s_add_u32 s50, s48, %d" % (256 * 3584))
    a("s_add_u32 s51, s48, %d" % (320 * 3584))
    for sr in (32, 36):
        for i in range(4):
            a("buffer_load_dwordx4 v4, %s, %s offen lds" % (s(sr, 4), s(48 + i)))
            a("s_add_u32 m0, m0, 1024")
    a("""
    v_bfe_u32 v5, v0, 3, 3
    v_lshlrev_b32 v5, 10, v5
    v_and_b32 v4, 7, v0
    v_lshl_add_u32 v5, v4, 4, v5
    v_lshl_add_u32 v5, v3, 7, v5
    s_lshl_b32 s48, s6, 15
    """)
    for i in range(4):
        a("buffer_load_dwordx4 v5, s[40:43], s48 offen lds")
        if i < 3:
            a("s_add_u32 m0, m0, 1024")
            a("s_add_u32 s48, s48, 8192")


def touch_setup(a):
    a("""
    s_cmp_eq_u32 s5, 5
    s_cselect_b64 s[32:33], s[18:19], s[20:21]
    s_cmp_eq_u32 s5, 7
    s_cselect_b64 s[32:33], s[22:23], s[32:33]
    s_mov_b32 s34, 0x1c0000
    s_mov_b32 s35, 0x20000
    s_movk_i32 s36, 3584
    s_cselect_b32 s36, 1024, s36
    s_mul_i32 s37, s3, 448
    %s
    s_mul_i32 s38, s4, 57344
    s_add_u32 s37, s37, s38
    s_add_u32 s37, s37, 28672
    s_lshl_b32 s38, s3, 5
    s_add_u32 s38, s38, s4
    s_mul_i32 s38, s38, 7168
    s_add_u32 s38, s38, 512
    s_cmp_eq_u32 s5, 7
    s_cselect_b32 s37, s38, s37
    s_cmp_lt_u32 s5, 5
    s_cselect_b32 s37, 0x7fff0000, s37
    v_bfe_u32 v198, v0, %d, 3
    v_mul_u32_u24 v198, s36, v198
    v_and_b32 v197, %d, v0
    v_lshl_add_u32 v198, v197, %d, v198
    """ % (("s_nop 0", 3, 7, 6) if T64 else ("s_and_b32 s37, s37, 0xffffff80", 2, 3, 7)))


def get_tag(a):
    a("s_waitcnt lgkmcnt(0)")
    a("s_add_u32 s47, s47, 0x%x               ; hand-off tag of this launch" % TAGC)
    a("v_mov_b32 %s, s47" % v(VTAG))


def flag_store(a):
    a("s_lshl_b32 s53, s2, 7")
    a("s_add_u32 s53, s53, 0x%x" % WS_FLAG)
    a("s_mov_b64 exec, 1")
    a("buffer_store_dword %s, off, s[12:15], s53 sc1" % v(VTAG))
    a("s_mov_b64 exec, -1")


def build():
    a = Asm()
    a.raw('.amdgcn_target "amdgcn-amd-amdhsa--gfx950"')
    a.raw(".text")
    a.raw(".globl %s" % KN)
    a.raw(".p2align 8")
    a.raw(".type %s,@function" % KN)
    a.label(KN, reset=True)
    a("s_cmp_ge_u32 s2, 256")
    a("s_cbranch_scc1 L_end")
    stamp(a, 0)
    a("s_load_dwordx2 s[8:9], s[0:1], 0")
    a("s_load_dwordx2 s[12:13], s[0:1], 112")
    a("s_load_dwordx16 s[16:31], s[0:1], 48")
    code_prefetch(a)
    a("""
    v_lshrrev_b32 v3, 6, v0               ; wave
    v_and_b32 v1, 15, v0                  ; n
    v_bfe_u32 v2, v0, 4, 2                ; q
    v_readfirstlane_b32 s5, v3
    s_and_b32 s3, s2, 7                   ; x
    s_lshr_b32 s4, s2, 3                  ; y
    v_and_b32 v250, 63, v0
    v_lshlrev_b32 v250, 4, v250           ; lane*16
    v_mov_b32 v252, -1
    v_mov_b32 v253, -1
    v_mov_b32 v254, -1
    v_mov_b32 v255, -1
    s_mov_b32 s63, 0x80000000
    """)
    a("v_cvt_f32_u32 %s, v2" % v(VQ4))
    srd(a, 8, 2048 * 1024)
    srd(a, 12, WS_SIZE)
    a("v_mul_f32 %s, 4.0, %s" % (v(VQ4), v(VQ4)))
    a("""
    s_lshl_b32 s62, s5, 10
    s_lshl_b32 s45, s2, 12
    s_add_u32 s45, s45, s62
    """)
    a("s_add_u32 s45, s45, 0x%x" % WS_CAND)
    a("s_cmp_lt_u32 s5, %d" % (0 if NOCAND else 4))
    a("s_cselect_b32 s45, s45, 0x7fff0000")
    a("s_cmp_ge_u32 s4, 16")
    st0 = a.fork()
    a("s_cbranch_scc1 L_p1_notdft")
    a("""
    s_lshr_b32 s6, s4, 2
    s_lshl3_add_u32 s6, s6, s3            ; s2 index
    s_and_b32 s7, s4, 3
    s_lshl_b32 s44, s6, 10
    """)
    for g in range(4):
        a("s_add_u32 s46, s7, %d" % g)
        a("s_and_b32 s46, s46, 3")
        a("s_lshl_b32 s46, s46, 8")
        a("s_add_u32 %s, s46, s44" % s(48 + g))
    a("""
    %s
    s_and_b32 s46, s46, 7
    s_lshl_b32 s46, s46, 3
    v_add_u32 v4, s46, v2                 ; s1 = 8*((w+2*slice)&7) + q (+4 for the second group)
    v_lshlrev_b32 v5, 4, v1
    v_lshl_or_b32 v6, v4, 15, v5
    v_add_u32 v7, 0x20000, v6
    """ % ("s_lshl1_add_u32 s46, s7, s5" if ROT else "s_mov_b32 s46, s5"))
    a("s_waitcnt lgkmcnt(0)")
    stamp(a, 1)
    X = 16
    for i in range(4):
        for g in range(2):
            a("buffer_load_dwordx4 %s, %s, s[8:11], %s offen" % (v(X + 16 * g + 4 * i, 4), v(6 + g), s(48 + i)))
    a("s_branch L_dft")
    dft_state = a.fork()
    mark_dft = len(a.lines)
    a.label("L_dft")
    a("s_load_dword s47, s[12:13], 0x%x" % WS_GEN)
    a("""
    v_and_b32 v8, 3, v3                   ; M tile
    v_lshrrev_b32 v12, 8, v0
    v_lshlrev_b32 v13, 1, v2
    v_lshl_add_u32 v13, v8, 3, v13
    v_lshlrev_b32 v13, 16, v13
    v_lshl_add_u32 v13, v12, 8, v13
    v_add_u32 v13, v13, v5
    s_lshl_b32 s54, s6, 11
    s_lshl_b32 s55, s7, 9
    s_add_u32 s54, s54, s55
    """)
    a("s_add_u32 s54, s54, 0x%x" % WS_INTER)
    a("s_add_u32 s55, s54, 0x10000")
    def poison():
        a("buffer_store_dwordx4 v[252:255], v13, s[12:15], s54 offen sc1")
        a("buffer_store_dwordx4 v[252:255], v13, s[12:15], s55 offen sc1")
        a("buffer_store_dwordx4 v[252:255], v250, s[12:15], s45 offen sc1")
    if POIS == 0:
        poison()
    WA = 48
    a("""
    v_lshrrev_b32 v9, 1, v1
    v_lshl_add_u32 v9, v8, 3, v9          ; slot
    v_and_b32 v10, 1, v1
    v_lshl_or_b32 v11, v9, 1, v10
    v_cmp_eq_u32 vcc, 1, v11
    v_cvt_f32_u32 v10, v10
    v_lshlrev_b32 v15, 31, v9
    v_cndmask_b32 v11, v9, 32, vcc
    """)
    a("v_mul_f32 v10, %s, v10" % f32(0.25))
    a("v_cvt_f32_u32 v11, v11")
    a("v_cndmask_b32 v10, v10, 0, vcc")
    a("v_mul_f32 v11, %s, v11" % f32(1 / 64))
    a("v_fmac_f32 v10, v11, %s" % v(VQ4))
    a("v_lshrrev_b32 v14, 16, v15")
    a("v_or_b32 v15, v15, v14")
    T = 56
    a("v_cos_f32 %s, v10" % v(T))
    for j in range(1, 8):
        a("v_add_f32 v10, v10, v11" if j != 4 else "v_fmac_f32 v10, %s, v11" % f32(13.0))
        a("v_cos_f32 %s, v10" % v(T + j))
    for j in range(4):
        a("v_cvt_pk_bf16_f32 %s, %s, %s" % (v(WA + j), v(T + 2 * j), v(T + 2 * j + 1)))
    for j in range(4):
        a("v_xor_b32 %s, v15, %s" % (v(WA + 4 + j), v(WA + j)))
    a("""
    v_mul_u32_u24 v10, 288, v4
    v_add_u32 v10, v10, v5
    v_bfe_u32 v11, v0, 2, 4
    v_mul_u32_u24 v11, 288, v11
    v_and_b32 v14, 3, v0
    v_lshl_add_u32 v11, v14, 3, v11
    v_lshl_add_u32 v11, v12, 7, v11
    s_mov_b32 s52, 0x3f803f80
    v_mov_b32 v56, 0
    v_mov_b32 v57, 0
    v_mov_b32 v58, 0
    v_mov_b32 v59, 0
    """)
    if EARLYC:
        hidden_consts(a, 100)
    stamp(a, 2)
    U = 64
    for i in range(4):
        for g in range(2):
            a.wait_vm_for(v(X + 16 * g + 4 * i, 4))
            if i == 0 and g == 0:
                stamp(a, 3)
            if (POIS == 1 and i == 0 and g == 0) or (POIS == 2 and i == 2 and g == 0) or (POIS == 3 and i == 3 and g == 1):
                poison()
            for d in range(4):
                x = v(X + 16 * g + 4 * i + d)
                a("v_dot2c_f32_bf16 %s, s52, %s" % (v(56 + g), x))
                a("v_dot2c_f32_bf16 %s, %s, %s" % (v(58 + g), x, x))
            if i == 0:
                for d in range(4):
                    a("v_lshlrev_b32 %s, 16, %s" % (v(U + 8 * g + 2 * d), v(X + 16 * g + d)))
                    a("v_and_b32 %s, 0xffff0000, %s" % (v(U + 8 * g + 2 * d + 1), v(X + 16 * g + d)))
    stamp(a, 4)
    dpp_sum(a, [56, 57, 58, 59], ROR)
    for g in range(2):
        a("v_mul_f32 %s, %s, %s" % (v(56 + g), f32(1 / 512), v(56 + g)))
    for g in range(2):
        a("v_mul_f32 %s, %s, %s" % (v(60 + 2 * g), v(56 + g), v(56 + g)))
    for g in range(2):
        a("v_sub_f32 %s, %s, %s" % (v(60 + 2 * g), f32(EPS), v(60 + 2 * g)))
    for g in range(2):
        a("v_fmac_f32 %s, %s, %s" % (v(60 + 2 * g), f32(1 / 512), v(58 + g)))
    for g in range(2):
        a("v_rsq_f32 %s, %s" % (v(60 + 2 * g), v(60 + 2 * g)))
    for g in range(2):
        a("v_mul_f32 %s, %s, %s" % (v(61 + 2 * g), v(56 + g), v(60 + 2 * g)))
    for g in range(2):
        for e in range(8):
            a("v_fma_f32 %s, %s, %s, -%s" % (v(U + 8 * g + e), v(U + 8 * g + e), v(60 + 2 * g), v(61 + 2 * g)))
        for d in range(4):
            a("v_cvt_pk_bf16_f32 %s, %s, %s" % (v(X + 16 * g + d), v(U + 8 * g + 2 * d), v(U + 8 * g + 2 * d + 1)))
        a("ds_write_b128 v10, %s offset:%d" % (v(X + 16 * g, 4), 4 * PITCH * g))
    a("s_waitcnt vmcnt(0)")
    get_tag(a)
    a("s_barrier")
    stamp(a, 5)
    B = 64
    for ks in range(2):
        for i in range(4):
            for hf in range(2):
                a("ds_read_b64_tr_b16 %s, v11 offset:%d" % (v(B + 16 * ks + 4 * i + 2 * hf, 2), ks * 32 * PITCH + hf * 16 * PITCH + i * 32))
    if HINT == 0:
        a("s_cmp_lg_u32 s5, 0")
        a("s_cbranch_scc1 L_nohint0")
        flag_store(a)
        a.label("L_nohint0")
    ACC = 96
    for ks in range(2):
        for i in range(4):
            a.wait_lg_for(v(B + 16 * ks + 4 * i, 4))
            acc = v(ACC + 4 * i, 4)
            a("v_mfma_f32_16x16x32_bf16 %s, %s, %s, %s" % (acc, v(WA + 4 * ks, 4), v(B + 16 * ks + 4 * i, 4), "0" if ks == 0 else acc))
    O = 16
    for i in range(4):
        for p in range(2):
            a("v_cvt_pk_bf16_f32 %s, %s, %s" % (v(O + 4 * p + i), v(ACC + 4 * i + 2 * p), v(ACC + 4 * i + 2 * p + 1)))
    for p in range(2):
        a("buffer_store_dwordx4 %s, v13, s[12:15], %s offen sc1" % (v(O + 4 * p, 4), s(54 + p)))
    tgt = "L_p2_sconst" if EARLYC else "L_p2"
    if HINT == 1:
        a("s_cmp_lg_u32 s5, 0")
        a("s_cbranch_scc1 %s" % tgt)
        flag_store(a)
    a("s_branch %s" % tgt)
    dft_block = a.lines[mark_dft:]
    del a.lines[mark_dft:]
    a.label("L_p1_notdft")
    a.join(st0)
    a("s_cmp_ge_u32 s4, 22")
    st1 = a.fork()
    a("s_cbranch_scc1 L_p1_notmod")
    srd(a, 36, 512 * 6144)
    srd(a, 32, 1024)
    a("""
    s_sub_u32 s6, s2, 128
    s_lshl_b32 s48, s6, 7
    """)
    for i in range(1, 8):
        a("s_add_u32 %s, s48, %d" % (s(48 + i), 6144 * i))
    a("""
    v_lshrrev_b32 v4, 3, v0
    v_and_b32 v5, 7, v0
    v_mul_u32_u24 v6, 0xc000, v4
    v_lshl_add_u32 v6, v5, 4, v6
    v_and_b32 v7, 3, v0
    v_lshlrev_b32 v7, 2, v7
    v_lshl_add_u32 v7, v4, 4, v7
    s_waitcnt lgkmcnt(0)
    """)
    a("s_mov_b64 s[36:37], s[26:27]")
    a("s_mov_b64 s[32:33], s[24:25]")
    stamp(a, 1)
    a("buffer_load_dword v8, v7, s[32:35], 0 offen")
    W = 16
    for i in range(8):
        a("buffer_load_dwordx4 %s, v6, s[36:39], %s offen" % (v(W + 4 * i, 4), s(48 + i)))
    a("s_branch L_mod")
    mark_mod = len(a.lines)
    a.label("L_mod")
    a("s_load_dword s47, s[12:13], 0x%x" % WS_GEN)
    a("""
    s_mov_b32 s44, 0x05040100
    s_mov_b32 s46, 0x07060302
    s_lshr_b32 s48, s6, 3
    s_and_b32 s49, s6, 7
    s_lshl_b32 s49, s49, 6
    v_add_u32 v7, s49, v0                 ; e (wave 0)
    v_and_b32 v9, 0x1c0, v7
    v_lshl_add_u32 v9, v1, 2, v9
    v_add_u32 v9, v9, v2
    v_and_b32 v10, 0x103, v7
    v_bfe_u32 v11, v7, 2, 2
    v_lshl_add_u32 v10, v11, 6, v10
    v_bfe_u32 v11, v7, 4, 4
    v_lshl_add_u32 v10, v11, 2, v10
    s_cmp_lt_u32 s48, 2
    s_cselect_b64 s[50:51], -1, 0
    v_cndmask_b32 v9, v10, v9, s[50:51]
    v_lshlrev_b32 v9, 2, v9
    s_lshl_b32 s49, s48, 11
    s_cmp_eq_u32 s5, 0
    s_cselect_b32 s49, s49, 0x7fff0000
    buffer_store_dword v252, v9, s[12:15], s49 offen sc1
    buffer_store_dwordx4 v[252:255], v250, s[12:15], s45 offen sc1
    s_cmp_eq_u32 s48, 1
    s_cselect_b32 s50, 1.0, 0
    s_cmp_eq_u32 s48, 4
    s_cselect_b32 s50, 1.0, s50
    v_lshlrev_b32 v6, 2, v0
    v_lshlrev_b32 v10, 8, v3
    v_lshl_add_u32 v10, v5, 5, v10
    v_lshl_add_u32 v10, v2, 3, v10
    """)
    for j in range(8):
        a("v_mov_b32 %s, 0" % v(48 + j))
    stamp(a, 2)
    a.wait_vm_for("v8")
    stamp(a, 3)
    a("v_lshlrev_b32 v11, 16, v8")
    a("v_and_b32 v12, 0xffff0000, v8")
    a("v_mul_f32 v13, %s, v11" % f32(-1.4426950408889634))
    a("v_mul_f32 v14, %s, v12" % f32(-1.4426950408889634))
    a("""
    v_exp_f32 v13, v13
    v_exp_f32 v14, v14
    v_add_f32 v13, 1.0, v13
    v_add_f32 v14, 1.0, v14
    v_rcp_f32 v13, v13
    v_rcp_f32 v14, v14
    v_mul_f32 v11, v11, v13
    v_mul_f32 v12, v12, v14
    v_cvt_pk_bf16_f32 v8, v11, v12
    """)
    for p in range(4):
        a("v_mov_b32_dpp %s, v8 quad_perm:[%d,%d,%d,%d] row_mask:0xf bank_mask:0xf" % (v(12 + p), p, p, p, p))
    for p in range(4):
        a.wait_vm_for(v(W + 8 * p, 8))
        for jj in range(4):
            a("v_perm_b32 %s, %s, %s, s44" % (v(56 + 2 * jj), v(W + 8 * p + 4 + jj), v(W + 8 * p + jj)))
            a("v_perm_b32 %s, %s, %s, s46" % (v(57 + 2 * jj), v(W + 8 * p + 4 + jj), v(W + 8 * p + jj)))
        for j in range(8):
            a("v_dot2c_f32_bf16 %s, %s, %s" % (v(48 + j), v(12 + p), v(56 + j)))
    stamp(a, 4)
    for j in range(4):
        a("v_permlane32_swap_b32 %s, %s" % (v(48 + j), v(52 + j)))
    for j in range(4):
        a("v_add_f32 %s, %s, %s" % (v(48 + j), v(48 + j), v(52 + j)))
    for j in range(2):
        a("v_permlane16_swap_b32 %s, %s" % (v(48 + j), v(50 + j)))
    for j in range(2):
        a("v_add_f32 %s, %s, %s" % (v(48 + j), v(48 + j), v(50 + j)))
    dpp_sum(a, [48, 49], ROR[:1])
    a("""
    s_mov_b32 exec_lo, 0x00ff00ff
    s_mov_b32 exec_hi, 0x00ff00ff
    ds_write_b64 v10, v[48:49]
    s_mov_b64 exec, -1
    s_waitcnt vmcnt(0)
    """)
    get_tag(a)
    a("s_barrier")
    stamp(a, 5)
    a("""
    s_cmp_lg_u32 s5, 0
    s_cbranch_scc1 L_p2
    ds_read2st64_b32 v[48:49], v6 offset0:0 offset1:1
    ds_read2st64_b32 v[50:51], v6 offset0:2 offset1:3
    ds_read2st64_b32 v[52:53], v6 offset0:4 offset1:5
    ds_read2st64_b32 v[54:55], v6 offset0:6 offset1:7
    s_waitcnt lgkmcnt(0)
    v_add_f32 v48, v48, v49
    v_add_f32 v50, v50, v51
    v_add_f32 v52, v52, v53
    v_add_f32 v54, v54, v55
    v_add_f32 v48, v48, v50
    v_add_f32 v52, v52, v54
    v_add_f32 v48, v48, v52
    v_cvt_pk_bf16_f32 v48, v48, v48
    v_and_b32 v48, 0xffff0000, v48
    v_add_f32 v48, s50, v48
    v_cvt_pk_bf16_f32 v48, v48, v48
    v_and_b32 v48, 0xffff0000, v48
    buffer_store_dword v48, v9, s[12:15], s49 offen sc1
    """)
    flag_store(a)
    a("s_branch L_p2")
    mod_block = a.lines[mark_mod:]
    del a.lines[mark_mod:]
    a.label("L_p1_notmod")
    a.join(st1)
    srd(a, 36, 512 * 6144)
    a("""
    s_sub_u32 s59, s4, 22
    s_lshl3_add_u32 s7, s59, s5
    s_mul_i32 s7, s7, 0x6000
    s_lshl_b32 s44, s3, 7
    s_add_u32 s7, s7, s44
    s_add_u32 s7, s7, 0x120000
    s_add_u32 s44, s7, 4096
    v_mul_u32_u24 v4, 6144, v2
    v_bfe_u32 v5, v0, 3, 1
    v_lshl_add_u32 v4, v5, 10, v4
    v_and_b32 v5, 7, v0
    v_lshl_add_u32 v4, v5, 4, v4
    s_waitcnt lgkmcnt(0)
    s_mov_b64 s[36:37], s[26:27]
    """)
    if HELP:
        a("buffer_load_dwordx4 v[180:183], v4, s[36:39], s7 offen")
        a("buffer_load_dwordx4 v[184:187], v4, s[36:39], s7 offen offset:2048")
        a("buffer_load_dwordx4 v[188:191], v4, s[36:39], s44 offen")
    a("s_load_dword s47, s[12:13], 0x%x" % WS_GEN)
    a("s_cmp_ge_u32 s4, 29")
    a("s_cbranch_scc1 L_p1_idle")
    a("""
    s_mul_i32 s6, s3, 7
    s_add_u32 s6, s6, s59
    s_lshl_b32 s46, s6, 12
    """)
    a("s_add_u32 s46, s46, 0x%x               ; partial-sum slab" % WS_PART)
    a("s_add_u32 s48, s46, s62")
    a("s_sub_u32 s48, s48, 4096")
    a("s_cmp_lt_u32 s5, 4")
    a("s_cselect_b32 s45, s45, s48")
    if HELP:
        a("s_barrier")
    a("s_cmp_ge_u32 s5, %d" % NEARLY)
    a("s_cbranch_scc1 L_p1_idle")
    stamp(a, 1)
    stage(a)
    a.label("L_p1_idle")
    a("buffer_store_dwordx4 v[252:255], v250, s[12:15], s45 offen sc1")
    get_tag(a)
    a("s_branch L_p2")
    a.lines += mod_block + dft_block[:-1] + ([dft_block[-1]] if EARLYC else [])
    a.label("L_p2", reset=True)
    if EARLYC:
        hidden_consts(a, 100)
        a.label("L_p2_sconst", reset=True)
    stamp(a, 6)
    srd(a, 28, 2048 * 1024)
    a("s_mov_b64 s[24:25], s[16:17]")
    srd(a, 24, 1024)
    a("""
    s_lshr_b32 s44, s4, 3
    s_lshl3_add_u32 s44, s44, s3          ; slot
    s_and_b32 s45, s4, 1                  ; mirror
    s_bfe_u32 s48, s4, 0x20001
    s_sub_u32 s49, 64, s44
    s_cmp_eq_u32 s44, 0
    s_cselect_b32 s49, 32, s49
    s_cmp_eq_u32 s45, 0
    s_cselect_b32 s49, s44, s49           ; k1
    """)
    a("s_mov_b32 s50, %s" % f32(0.25))
    a("s_cselect_b32 s50, %s, s50" % f32(-0.25))
    a("""
    s_mov_b32 s51, 0xffff0000
    s_cselect_b32 s51, 0x0000ffff, s51
    s_cmp_eq_u32 s44, 0
    s_cselect_b32 s50, 0, s50
    s_cselect_b32 s51, s51, -1
    s_lshl_b32 s48, s48, 9
    s_add_u32 s49, s49, s48
    s_lshl_b32 s56, s5, 6
    s_add_u32 s56, s56, s49
    s_lshl_b32 s57, s56, 10
    v_lshlrev_b32 v7, 5, v1
    v_lshl_add_u32 v7, v2, 3, v7          ; 32n + 8q
    buffer_load_dwordx2 v[56:57], v7, s[8:11], s57 offen
    buffer_load_dwordx2 v[58:59], v7, s[8:11], s57 offen offset:512
    buffer_load_dwordx2 v[60:61], v7, s[24:27], 0 offen
    buffer_load_dwordx2 v[62:63], v7, s[24:27], 0 offen offset:512
    v_lshrrev_b32 v8, 1, v1
    v_lshlrev_b32 v8, 6, v8
    v_add_u32 v8, s49, v8
    v_cvt_f32_u32 v8, v8
    v_and_b32 v9, 1, v1
    v_cvt_f32_u32 v10, v9
    """)
    a("v_mul_f32 v8, %s, v8" % f32(1 / 2048))
    a("v_mul_f32 v10, %s, v10" % f32(0.25))
    a("v_fmac_f32 v10, v8, %s" % v(VQ4))
    for ks in range(2):
        for r in range(4):
            if r:
                a("v_add_f32 v10, v10, v8")
            elif ks:
                a("v_fmac_f32 v10, %s, v8" % f32(13.0))
            a("v_add_f32 v12, s50, v10")
            a("v_cos_f32 v13, v10")
            a("v_cos_f32 v12, v12")
            if ks or r:
                k = SA + 4 * ks + r - 1
                a("v_and_b32 %s, s51, %s" % (v(k), v(k)))
            a("v_cvt_pk_bf16_f32 %s, v13, v12" % v(SA + 4 * ks + r))
    a("v_and_b32 %s, s51, %s" % (v(SA + 7), v(SA + 7)))
    a("""
    %s
    s_and_b32 s52, s52, 7                 ; column block of this wave
    s_lshl_b32 s53, s52, 8
    v_lshlrev_b32 v4, 4, v1
    v_add_u32 v4, s53, v4                 ; cb*256 + n*16
    v_lshl_add_u32 v5, v2, 13, v4
    s_lshl_b32 s58, s44, 16
    s_lshl_b32 s53, s52, 3
    """ % ("s_add_u32 s52, s5, s4" if ROT else "s_mov_b32 s52, s5"))
    a("s_add_u32 s58, s58, 0x%x" % WS_INTER)
    a("""
    s_add_u32 s59, s58, 0x1000
    s_add_u32 s60, s58, 0x8000
    s_add_u32 s61, s58, 0x9000
    v_mul_u32_u24 v8, 80, v1
    v_mul_u32_u24 v9, 5120, v2
    v_add3_u32 v9, v9, s53, v8
    v_mul_u32_u24 v12, 2560, v3
    v_lshl_add_u32 v10, v2, 4, v12
    v_add_u32 v10, v10, v8
    v_or_b32 v11, s49, v2
    v_cmp_eq_u32 vcc, 0, v11
    v_mov_b32 v11, 0x45000000
    v_cndmask_b32 v11, 0, v11, vcc
    """)
    a("s_add_u32 s55, s62, %d" % (WS_MOD + 4096))
    a("v_add_u32 v9, %d, v9                   ; U write address" % LDS_U)
    a("v_add_u32 v10, %d, v10                 ; U read address" % LDS_U)
    a("v_add_u32 v13, %d, v250                ; vector read address" % LDS_VEC)
    a("v_add_u32 v14, s62, v13")
    a("v_add_u32 v12, %d, v12" % LDS_OUT)
    a("v_add_u32 v15, v12, v250")
    a("v_add_u32 v12, v12, v7")
    if NEARLY < 8:
        touch_setup(a)
    stamp(a, 7)
    a("s_mov_b32 s54, %d" % SPIN)
    a("v_lshlrev_b32 v8, 7, v0")
    a("v_cmp_gt_u32 s[50:51], 176, v0") if False else a("v_cmp_gt_u32 vcc, 176, v0")
    a("s_mov_b32 s52, 0x%x" % WS_FLAG)
    a("s_mov_b64 s[50:51], vcc")
    if not EARLYC:
        a("s_cmp_ge_u32 s5, 3")
        a("s_cbranch_scc1 L_nopoll0")
        a("s_mov_b64 exec, s[50:51]")
        a("buffer_load_dword v6, v8, s[12:15], s52 offen sc1")
        a("s_mov_b64 exec, -1")
        a.label("L_nopoll0")
        hidden_consts(a, 160)
    a("s_cmp_ge_u32 s5, 3")
    a("s_cbranch_scc1 L_poll1_ok")
    a("s_mov_b64 exec, s[50:51]")
    if not EARLYC:
        a("s_branch L_poll1_chk")
        a.vm = [o for o in a.vm if "v6" not in o.w]
    a.label("L_poll1")
    a("buffer_load_dword v6, v8, s[12:15], s52 offen sc1")
    a.label("L_poll1_chk")
    a("s_waitcnt vmcnt(0)")
    a("v_cmp_ne_u32 vcc, v6, %s" % v(VTAG))
    a("s_and_b64 exec, exec, vcc")
    a("s_cmp_eq_u64 exec, 0")
    poll_tail(a, "L_poll1", "s54")
    a("s_mov_b64 exec, -1")
    a("s_mov_b32 s54, %d" % SPIN)
    a("s_waitcnt vmcnt(0)")
    XU, WU = 112, 120
    for d in range(4):
        a("v_lshlrev_b32 %s, 16, %s" % (v(XU + 2 * d), v(56 + d)))
        a("v_and_b32 %s, 0xffff0000, %s" % (v(XU + 2 * d + 1), v(56 + d)))
    a("s_barrier")
    stamp(a, 8)
    L = 16
    a.label("L_inter")
    for ks in range(2):
        for r in range(4):
            a("buffer_load_dwordx4 %s, v5, s[12:15], %s offen offset:%d sc1" % (v(L + 16 * ks + 4 * r, 4), s(58 + 2 * ks + r // 2), 2048 * (r % 2)))
    a("buffer_load_dwordx4 v[48:51], v4, s[12:15], 0 offen offset:%d sc1" % (WS_MOD + 2048))
    a("buffer_load_dwordx4 v[52:55], v4, s[12:15], 0 offen offset:%d sc1" % WS_MOD)
    a("buffer_load_dwordx4 v[64:67], v250, s[12:15], s55 offen sc1")
    for d in range(4):
        a("v_lshlrev_b32 %s, 16, %s" % (v(WU + 2 * d), v(60 + d)))
        a("v_and_b32 %s, 0xffff0000, %s" % (v(WU + 2 * d + 1), v(60 + d)))
    ACC = 96
    for ks in range(2):
        a.wait_vm_for(v(L + 16 * ks, 16))
        if ks == 1:
            stamp(a, 9)
        for r in range(4):
            for i in range(r + 1, 4):
                a("v_swap_b32 %s, %s" % (v(L + 16 * ks + 4 * r + i), v(L + 16 * ks + 4 * i + r)))
        for i in range(4):
            acc = v(ACC + 4 * i, 4)
            a("v_mfma_f32_16x16x32_bf16 %s, %s, %s, %s" % (acc, v(SA + 4 * ks, 4), v(L + 16 * ks + 4 * i, 4), "0" if ks == 0 else acc))
        b = L + 16 * ks
        if ks == 0:
            a("v_max3_u32 v6, %s, %s, %s" % (v(b), v(b + 1), v(b + 2)))
            a("v_max_u32 v6, v6, %s" % v(b + 3))
        else:
            a("v_max3_u32 v6, v6, %s, %s" % (v(b), v(b + 1)))
            a("v_max3_u32 v6, v6, %s, %s" % (v(b + 2), v(b + 3)))
    a.wait_vm_for("v[64:67]")
    a("""
    ds_write_b128 v14, v[64:67]
    v_max3_u32 v8, v48, v49, v50
    v_max3_u32 v6, v6, v51, v52
    v_max3_u32 v8, v8, v53, v54
    v_max3_u32 v6, v6, v55, v64
    v_max3_u32 v8, v8, v65, v66
    v_max3_u32 v6, v6, v8, v67
    v_cmp_eq_u32 vcc, -1, v6
    s_cmp_eq_u64 vcc, 0
    """)
    poll_tail(a, "L_inter", "s54")
    for i in range(4):
        a("v_mul_f32 %s, v11, %s" % (v(52 + i), v(52 + i)))
    P = 16
    for i in range(4):
        c = ACC + 4 * i
        a("v_fma_f32 %s, %s, %s, %s" % (v(c), v(c), v(48 + i), v(52 + i)))
        for j in range(1, 4):
            a("v_mul_f32 %s, %s, %s" % (v(c + j), v(c + j), v(48 + i)))
        for tt in range(2):
            a("v_cvt_pk_bf16_f32 %s, %s, %s" % (v(P + 4 * tt + 2 * (i % 2) + i // 2), v(c + 2 * tt), v(c + 2 * tt + 1)))
    for tt in range(2):
        for h in range(2):
            a("ds_write_b64 v9, %s offset:%d" % (v(P + 4 * tt + 2 * h, 2), tt * 2560 + h * 1280))
    a("s_waitcnt lgkmcnt(0)")
    a("s_barrier")
    D = 24
    a("ds_read_b128 %s, v10" % v(D, 4))
    a("ds_read_b128 %s, v10 offset:1280" % v(D + 4, 4))
    if NEARLY < 8:
        if not T64:
            a("s_mov_b32 exec_hi, 0")
        a("buffer_load_dword v197, v198, s[32:35], s37 offen")
        if not T64:
            a("s_mov_b32 exec_hi, -1")
    VEC = 128
    for k in range(4):
        for g in range(2):
            a("ds_read_b128 %s, v13 offset:%d" % (v(VEC + 8 * k + 4 * g, 4), 2048 * k + 1024 * g))
    BR, BI = 32, 40
    for h in range(2):
        a.wait_lg_for(v(D + 4 * h, 4))
        a("v_mfma_f32_16x16x32_bf16 %s, %s, %s, 0" % (v(BR + 4 * h, 4), v(D + 4 * h, 4), v(FR, 4)))
        a("v_mfma_f32_16x16x32_bf16 %s, %s, %s, 0" % (v(BI + 4 * h, 4), v(D + 4 * h, 4), v(FI, 4)))
    A2 = 16
    Y = 64
    for h in range(2):
        for j in range(4):
            br, bi, tc, ts = v(BR + 4 * h + j), v(BI + 4 * h + j), v(TC + 4 * h + j), v(TS + 4 * h + j)
            a("v_mul_f32 %s, %s, %s" % (v(48 + j), br, tc))
            a("v_mul_f32 %s, %s, %s" % (v(52 + j), bi, tc))
            a("v_fmac_f32 %s, %s, %s" % (v(48 + j), bi, ts))
            a("v_fma_f32 %s, -%s, %s, %s" % (v(52 + j), br, ts, v(52 + j)))
        for k in range(4):
            a("v_cvt_pk_bf16_f32 %s, %s, %s" % (v(A2 + 4 * h + k), v(48 + 2 * k), v(49 + 2 * k)))
        for g in range(2):
            y = v(Y + 4 * g, 4)
            a("v_mfma_f32_16x16x32_bf16 %s, %s, %s, %s" % (y, v(A2 + 4 * h, 4), v(G + 8 * h + 4 * g, 4), "0" if h == 0 else y))
    a("v_mov_b32 v10, %s" % f32(1 / 512))
    a("s_lshl_b32 s56, s2, 4")
    a("s_lshl1_add_u32 s56, s5, s56")
    a("v_lshlrev_b32 v11, 2, v3")
    a("v_add_u32 v11, %d, v11" % LDS_KEY)
    a("v_mov_b32 v13, %d" % LDS_KEY)
    a("s_waitcnt lgkmcnt(0)")
    GA, SB, CB, GB = VEC, VEC + 8, VEC + 16, VEC + 24
    for e in range(8):
        a("v_fmac_f32 %s, %s, %s" % (v(XU + e), v(GA + e), v(Y + e)))
    a("v_add_f32 v8, %s, %s" % (v(XU), v(XU + 1)))
    a("v_mul_f32 v9, %s, %s" % (v(XU), v(XU)))
    a("v_fmac_f32 v9, %s, %s" % (v(XU + 1), v(XU + 1)))
    for e in range(2, 8):
        a("v_add_f32 v8, v8, %s" % v(XU + e))
        a("v_fmac_f32 v9, %s, %s" % (v(XU + e), v(XU + e)))
    dpp_sum(a, [8, 9], ROR + BC)
    a("v_readlane_b32 s60, v8, 63")
    a("v_readlane_b32 s61, v9, 63")
    a("v_mul_f32 v8, s60, v10                 ; mean")
    a("v_mul_f32 v9, v8, v8")
    a("v_sub_f32 v9, %s, v9" % f32(EPS))
    a("v_fmac_f32 v9, s61, v10")
    a("v_rsq_f32 v9, v9")
    a("v_mul_f32 v8, v8, v9")
    H = 32
    for e in range(8):
        a("v_fma_f32 %s, %s, v9, -v8" % (v(H + e), v(XU + e)))
    for e in range(8):
        a("v_fma_f32 %s, %s, %s, %s" % (v(H + e), v(H + e), v(CB + e), v(SB + e)))
    a("v_mul_f32 v8, %s, %s" % (v(H), v(WU)))
    for e in range(1, 8):
        a("v_fmac_f32 v8, %s, %s" % (v(H + e), v(WU + e)))
    mods = ROR + BC
    for k, mod in enumerate(mods):
        a("v_add_f32_dpp v8, v8, v8 %s" % mod)
        for e in ((0, 1), (2, 3), (4, 5), (6, 7), (), ())[k]:
            a("v_fmac_f32 %s, %s, %s" % (v(XU + e), v(GB + e), v(H + e)))
        if k >= 4:
            for d in (2 * (k - 4), 2 * (k - 4) + 1):
                a("v_cvt_pk_bf16_f32 %s, %s, %s" % (v(40 + d), v(XU + 2 * d), v(XU + 2 * d + 1)))
    a("""
    v_ashrrev_i32 v9, 31, v8
    v_or_b32 v9, s63, v9
    v_xor_b32 v8, v8, v9
    v_and_b32 v8, 0xfffff000, v8
    v_or_b32 v8, s56, v8
    s_mov_b32 exec_lo, 0
    s_mov_b32 exec_hi, 0x80000000
    ds_write_b32 v11, v8
    s_mov_b64 exec, -1
    v_readlane_b32 s56, v8, 63
    s_waitcnt lgkmcnt(0)
    """)
    stamp(a, 10)
    a("""
    s_barrier
    ds_read_b128 v[16:19], v13
    ds_read_b128 v[20:23], v13 offset:16
    ds_write_b64 v12, v[40:41]
    ds_write_b64 v12, v[42:43] offset:512
    ds_read_b128 v[40:43], v15
    """)
    for d in range(4):
        a("v_cvt_pk_bf16_f32 %s, %s, %s" % (v(44 + d), v(H + 2 * d), v(H + 2 * d + 1)))
    a("v_mov_b32 v25, %s" % v(VTAG))
    a("v_mov_b32 v27, %s" % v(VTAG))
    a("s_mul_i32 s58, s2, %d" % KSTR)
    a("s_add_u32 s58, s58, 0x%x" % WS_KEYS)
    a("s_lshl_b32 s59, s2, 12")
    a("s_add_u32 s59, s59, 0x%x" % WS_CAND)
    a("""
    s_waitcnt lgkmcnt(3)
    v_max_u32 v24, v16, v17
    v_min_u32 v26, v16, v17
    v_med3_u32 v28, v24, v18, v19
    v_max3_u32 v24, v24, v18, v19
    v_med3_u32 v29, v24, v20, v21
    v_max3_u32 v24, v24, v20, v21
    v_max3_u32 v26, v26, v28, v29
    v_med3_u32 v28, v24, v22, v23
    v_max3_u32 v24, v24, v22, v23
    v_max_u32 v26, v26, v28
    v_readfirstlane_b32 s60, v24
    v_readfirstlane_b32 s61, v26
    v_or_b32 v26, 1, v26
    s_cmp_lg_u32 s56, s60
    s_cbranch_scc1 L_notfirst
    s_mov_b64 exec, 1
    buffer_store_dwordx4 v[24:27], off, s[12:15], s58 sc1
    s_mov_b64 exec, -1
    s_branch L_cand
    """)
    a.label("L_notfirst")
    a("""
    s_cmp_lg_u32 s56, s61
    s_cbranch_scc1 L_notcand
    s_or_b32 s56, s56, 1
    s_add_u32 s59, s59, 2048
    """)
    a.label("L_cand")
    a("""
    buffer_store_dwordx4 v[44:47], v250, s[12:15], s59 offen sc1
    s_waitcnt lgkmcnt(0)
    buffer_store_dwordx4 v[40:43], v250, s[12:15], s59 offen offset:1024 sc1
    s_branch L_tail
    """)
    a.label("L_notcand")
    a("""
    s_mov_b32 s56, 0
    s_waitcnt lgkmcnt(0)
    buffer_store_dwordx4 v[40:43], v250, s[28:31], s57 offen
    """)
    a.label("L_tail", reset=True)
    a("s_sub_u32 s59, s4, 22")
    a("s_cmp_lt_u32 s59, 7")
    a("s_cbranch_scc1 L_ffn")
    a("""
    s_lshl_b32 s59, s5, 8
    s_add_u32 s59, s59, s2
    s_cmp_lt_u32 s59, 64
    s_cselect_b32 s59, 1, 0
    s_or_b32 s60, s59, s56
    s_cmp_eq_u32 s60, 0
    s_cbranch_scc1 L_done
    s_lshl_b32 s45, s3, 7
    """)
    a("s_add_u32 s45, s45, 0x%x" % WS_SEL)
    a("s_cmp_eq_u32 s59, 0")
    a("s_cbranch_scc1 L_sel_go")
    a("""
    s_lshl3_add_u32 s44, s3, s4
    s_lshr_b32 s48, s44, 2
    s_lshl_b32 s48, s48, 5
    s_and_b32 s49, s44, 3
    s_lshl2_add_u32 s48, s49, s48
    v_and_b32 v4, 3, v0
    v_lshrrev_b32 v5, 1, v2
    v_lshl_add_u32 v5, v5, 4, v4
    v_add_u32 v5, s48, v5
    v_and_b32 v8, 0x103, v5
    v_bfe_u32 v9, v5, 2, 2
    v_lshl_add_u32 v8, v9, 6, v8
    v_bfe_u32 v9, v5, 4, 4
    v_lshl_add_u32 v8, v9, 2, v8
    v_lshlrev_b32 v8, 2, v8
    """)
    a("v_add_u32 v8, %d, v8" % (LDS_VEC + 3 * 2048))
    a("""
    ds_read_b32 v8, v8                    ; gb[e]
    v_bfe_u32 v9, v0, 2, 4
    v_lshlrev_b32 v9, 12, v9
    v_lshl_add_u32 v9, v4, 4, v9
    s_lshl_b32 s48, s44, 6
    v_and_b32 v10, 1, v2
    v_cmp_eq_u32 s[50:51], 1, v10
    v_mov_b32 v36, 0
    v_mov_b32 v37, 0
    v_mov_b32 v38, 0
    v_mov_b32 v39, 0
    """)
    a("s_add_u32 s48, s48, 0x%x" % WS_PART)
    a("s_add_u32 s49, s48, 0x10000")
    a("s_add_u32 s52, s48, 0x20000")
    a("s_add_u32 s53, s48, 0x30000")
    a("s_waitcnt lgkmcnt(0)")
    a.label("L_sel_go")
    a("s_mov_b32 s54, %d" % SPIN)
    a.label("L_poll_sel")
    a("buffer_load_dwordx4 v[16:19], off, s[12:15], s45 sc1")
    a("s_waitcnt vmcnt(0)")
    a("v_cmp_eq_u32 vcc, v17, %s" % v(VTAG))
    a("v_cmp_eq_u32 s[60:61], v19, %s" % v(VTAG))
    a("s_and_b64 vcc, vcc, s[60:61]")
    a("s_cmp_eq_u64 vcc, -1")
    poll_tail(a, "L_poll_sel", "s54")
    stamp(a, 11)
    a("""
    v_readfirstlane_b32 s60, v16
    v_readfirstlane_b32 s61, v18
    s_cmp_eq_u32 s59, 0
    s_cbranch_scc1 L_late_out
    v_cndmask_b32 v16, v16, v18, s[50:51]
    v_bfe_u32 v17, v16, 4, 8
    v_and_b32 v18, 1, v16
    v_lshlrev_b32 v19, 12, v17
    v_lshl_add_u32 v19, v18, 11, v19
    v_lshl_add_u32 v19, v5, 1, v19
    """)
    a("s_mov_b32 s55, 0x%x" % (WS_CAND + 1024))
    a("s_mov_b32 s54, %d" % SPIN)
    a.label("L_poll_base")
    a("""
    buffer_load_ushort v20, v19, s[12:15], s55 offen sc1
    v_and_b32 v21, 7, v17
    v_lshrrev_b32 v22, 6, v17
    v_lshl_add_u32 v21, v22, 3, v21       ; slot
    v_sub_u32 v22, 64, v21
    v_cmp_eq_u32 vcc, 0, v21
    v_cndmask_b32 v22, v22, 32, vcc
    v_and_b32 v23, 8, v17
    v_cmp_eq_u32 vcc, 0, v23
    v_cndmask_b32 v21, v22, v21, vcc      ; k1
    v_bfe_u32 v22, v17, 4, 2
    v_lshl_add_u32 v21, v22, 9, v21
    v_bfe_u32 v22, v16, 1, 3
    v_lshl_add_u32 v21, v22, 6, v21
    v_lshlrev_b32 v21, 10, v21
    v_lshl_add_u32 v21, v5, 1, v21
    v_and_b32 v22, 0xfffff000, v16
    v_ashrrev_i32 v23, 31, v22
    v_not_b32 v23, v23
    v_or_b32 v23, s63, v23
    v_xor_b32 v22, v22, v23
    """)
    a("v_mul_f32 v22, %s, v22" % f32(-1.4426950408889634))
    a("""
    v_exp_f32 v22, v22
    v_add_f32 v22, 1.0, v22
    v_rcp_f32 v22, v22
    v_mul_f32 v22, v22, v8
    s_waitcnt vmcnt(0)
    v_cmp_eq_u32 vcc, 0xffff, v20
    s_cmp_eq_u64 vcc, 0
    """)
    poll_tail(a, "L_poll_base", "s54")
    a("s_mov_b32 s54, %d" % SPIN)
    if PDELAY:
        a("s_sleep %d" % PDELAY)
    a.label("L_poll_part")
    a("""
    buffer_load_dwordx4 v[24:27], v9, s[12:15], s48 offen sc1
    buffer_load_dwordx4 v[28:31], v9, s[12:15], s49 offen sc1
    buffer_load_dwordx4 v[32:35], v9, s[12:15], s52 offen sc1
    s_mov_b32 exec_hi, 0
    buffer_load_dwordx4 v[36:39], v9, s[12:15], s53 offen sc1
    s_mov_b32 exec_hi, -1
    s_waitcnt vmcnt(0)
    v_max3_u32 v48, v24, v28, v32
    v_max_u32 v48, v48, v36
    v_cmp_eq_u32 vcc, -1, v48
    s_cmp_eq_u64 vcc, 0
    """)
    poll_tail(a, "L_poll_part", "s54")
    stamp(a, 12)
    a("""
    v_pk_add_f32 v[24:25], v[24:25], v[28:29]
    v_pk_add_f32 v[26:27], v[26:27], v[30:31]
    v_pk_add_f32 v[32:33], v[32:33], v[36:37]
    v_pk_add_f32 v[34:35], v[34:35], v[38:39]
    v_pk_add_f32 v[24:25], v[24:25], v[32:33]
    v_pk_add_f32 v[26:27], v[26:27], v[34:35]
    v_permlane32_swap_b32 v24, v26
    v_permlane32_swap_b32 v25, v27
    v_pk_add_f32 v[24:25], v[24:25], v[26:27]
    v_permlane16_swap_b32 v24, v25
    v_add_f32 v24, v24, v25
    """)
    a("v_lshlrev_b32 v20, 16, v20")
    dpp_sum(a, [24], ROR[:2])
    a("""
    v_fmac_f32 v20, v24, v22
    v_cvt_pk_bf16_f32 v20, v20, v20
    s_mov_b32 exec_lo, 0x000f000f
    s_mov_b32 exec_hi, 0x000f000f
    buffer_store_short v20, v21, s[28:31], 0 offen
    s_mov_b64 exec, -1
    s_cmp_lg_u32 s2, 0
    s_cbranch_scc1 L_late_out
    s_mov_b64 exec, 1
    """)
    a("s_mov_b32 s55, 0x%x" % WS_GEN)
    a("buffer_store_dword %s, off, s[12:15], s55" % v(VTAG))
    a("s_mov_b64 exec, -1")
    if PROBE >= 0:
        a("s_waitcnt vmcnt(0)")
        a("s_memrealtime s[98:99]")
        a("s_waitcnt lgkmcnt(0)")
        a("s_sub_u32 s94, %s, s96" % ("s98" if PROBE == 13 else "s92"))
        a("s_mul_i32 s94, s94, 2")
        a("s_min_u32 s94, s94, 8000")
        a.label("L_probe")
        a("s_memrealtime s[96:97]")
        a("s_waitcnt lgkmcnt(0)")
        a("s_sub_u32 s95, s96, s98")
        a("s_cmp_lt_u32 s95, s94")
        a("s_cbranch_scc1 L_probe")
    a("s_branch L_late_out")
    a.label("L_ffn", reset=True)
    WF, WD = 64, 96
    if NEARLY < 8:
        a("s_cmp_lt_u32 s5, %d" % NEARLY)
        a("s_cbranch_scc1 L_staged")
        stage(a)
        a.label("L_staged")
    a("s_mov_b32 s55, 0x%x" % WS_KEYS)
    a("s_mov_b32 s54, %d" % SPIN)
    a("v_mul_u32_u24 v6, %d, v0" % KSTR)
    a("""
    s_mul_i32 s7, s5, 12288
    v_bfe_u32 v4, v0, 2, 4                ; 4q + r
    v_and_b32 v5, 3, v0
    v_lshlrev_b32 v5, 3, v5
    v_lshl_add_u32 v8, v4, 6, v5
    v_add_u32 v8, s7, v8
    v_bfe_u32 v9, v0, 2, 2
    v_lshl_add_u32 v9, v2, 3, v9
    v_lshl_add_u32 v9, v9, 7, v5
    v_add_u32 v9, s7, v9
    """)
    def frag_reads():
        for kk in range(2):
            for mt in range(4):
                for hf in range(2):
                    a("ds_read_b64_tr_b16 %s, v8 offset:%d" % (v(WF + 16 * kk + 4 * mt + 2 * hf, 2), (mt // 2) * 4096 + hf * 2048 + kk * 1024 + (mt % 2) * 32))
        for t in range(4):
            for hf in range(2):
                a("ds_read_b64_tr_b16 %s, v9 offset:%d" % (v(WD + 4 * t + 2 * hf, 2), 8192 + hf * 512 + t * 32))
    a("s_cmp_ge_u32 s5, %d" % NEARLY)
    a("s_cbranch_scc1 L_nofrag")
    frag_reads()
    a.label("L_nofrag")
    a("v_mov_b32 v33, %s" % v(VTAG))
    a("v_mov_b32 v35, %s" % v(VTAG))
    a("s_lshl_b32 s52, s3, 7")
    a("s_add_u32 s52, s52, 0x%x" % WS_SEL)
    a("s_or_b32 s53, s59, s5")
    a("s_cselect_b32 s52, 0x7fff0000, s52")
    a("""
    v_and_b32 v10, 1, v0
    v_cmp_eq_u32 s[50:51], 1, v10
    v_lshlrev_b32 v11, 7, v3
    v_lshl_add_u32 v11, v2, 4, v11
    v_lshlrev_b32 v12, 6, v10
    v_lshl_add_u32 v13, v2, 4, v12
    v_lshl_add_u32 v13, v3, 9, v13
    v_and_b32 v14, 30, v0
    v_lshl_add_u32 v14, v14, 1, v12
    v_and_b32 v12, 32, v0
    v_lshl_add_u32 v14, v12, 2, v14
    """)
    a("v_add_u32 v13, %d, v13                 ; partial write address" % LDS_RED)
    a("v_add_u32 v14, %d, v14                 ; partial read address" % LDS_RED)
    a("""
    v_lshlrev_b32 v15, 9, v3
    v_lshl_add_u32 v15, v1, 4, v15
    v_lshlrev_b32 v7, 3, v3
    """)
    a("v_add_u32 v7, %d, v7" % LDS_KEY2)
    a("v_mov_b32 v4, %d" % LDS_KEY2)
    if DRY:
        a("s_mov_b32 s53, 0x7fff0000")
        a("s_waitcnt lgkmcnt(0)")
        a("s_branch L_ffn_compute")
        a.label("L_ffn_real", reset=True)
    a("s_mov_b32 s53, s46")
    a("s_cmp_ge_u32 s5, 4")
    a("s_cbranch_scc1 L_keys_done")
    a.label("L_poll_keys")
    a("buffer_load_dwordx4 v[16:19], v6, s[12:15], s55 offen sc1")
    a("s_waitcnt vmcnt(0)")
    a("v_cmp_ne_u32 vcc, v17, %s" % v(VTAG))
    a("v_cmp_ne_u32 s[60:61], v19, %s" % v(VTAG))
    a("s_or_b64 vcc, vcc, s[60:61]")
    a("s_and_b64 exec, exec, vcc")
    a("s_cmp_eq_u64 exec, 0")
    poll_tail(a, "L_poll_keys", "s54")
    a("s_mov_b64 exec, -1")
    for mod in ROR + BC:
        a("v_min_u32_dpp v19, v16, v16 %s" % mod)
        a("v_max_u32_dpp v18, v18, v18 %s" % mod)
        a("v_max_u32_dpp v16, v16, v16 %s" % mod)
        a("v_max_u32 v18, v18, v19")
    a("""
    s_mov_b32 exec_lo, 0
    s_mov_b32 exec_hi, 0x80000000
    ds_write2_b32 v7, v16, v18 offset0:0 offset1:1
    s_mov_b64 exec, -1
    """)
    a.label("L_keys_done")
    a("s_waitcnt lgkmcnt(0)")
    a("s_barrier")
    stamp(a, 11)
    a("""
    ds_read_b128 v[16:19], v4
    ds_read_b128 v[20:23], v4 offset:16
    """)
    a("s_mov_b32 s55, 0x%x" % WS_CAND)
    a("s_mov_b32 s54, %d" % SPIN)
    a("""
    s_waitcnt lgkmcnt(0)
    v_med3_u32 v36, v16, v18, v20
    v_max3_u32 v32, v16, v18, v20
    v_max3_u32 v34, v17, v19, v21
    v_min_u32 v37, v32, v22
    v_max_u32 v32, v32, v22
    v_max3_u32 v34, v34, v23, v36
    v_max_u32 v34, v34, v37
    v_cndmask_b32 v36, v32, v34, s[50:51]
    v_bfe_u32 v37, v36, 4, 8
    v_and_b32 v36, 1, v36
    v_lshl_add_u32 v11, v37, 12, v11
    v_lshl_add_u32 v11, v36, 11, v11
    """)
    a.label("L_poll_h2")
    a("""
    buffer_load_dwordx4 v[16:19], v11, s[12:15], s55 offen sc1
    buffer_load_dwordx4 v[20:23], v11, s[12:15], s55 offen offset:64 sc1
    s_mov_b64 exec, 1
    buffer_store_dwordx4 v[32:35], off, s[12:15], s52 sc1
    s_mov_b64 exec, -1
    v_readfirstlane_b32 s60, v32
    v_readfirstlane_b32 s61, v34
    """)
    if NEARLY < 8:
        a("s_cmp_lt_u32 s5, %d" % NEARLY)
        a("s_cbranch_scc1 L_frags_done")
        a("s_waitcnt vmcnt(3)")
        stamp(a, 2)
        frag_reads()
        a.label("L_frags_done")
    a("s_waitcnt vmcnt(1) lgkmcnt(0)")
    a("""
    v_max_u32 v36, v16, v20
    v_cmp_eq_u32 vcc, -1, v36
    s_cmp_eq_u64 vcc, 0
    """)
    poll_tail(a, "L_poll_h2", "s54")
    stamp(a, 12)
    a.label("L_ffn_compute")
    C = 48
    for kk in range(2):
        for mt in range(4):
            c = v(C + 4 * mt, 4)
            a("v_mfma_f32_16x16x32_bf16 %s, %s, %s, %s" % (c, v(WF + 16 * kk + 4 * mt, 4), v(16 + 4 * kk, 4), "0" if kk == 0 else c))
    a("s_mov_b32 exec_lo, 0x00030003")
    a("s_mov_b32 exec_hi, 0x00030003")
    for mt in range(4):
        a("ds_write_b128 v13, %s offset:%d" % (v(C + 4 * mt, 4), 128 * mt))
    a("""
    s_mov_b64 exec, -1
    s_waitcnt lgkmcnt(0)
    """)
    stamp(a, 4)
    a("s_barrier")
    stamp(a, 5)
    a("""
    ds_read2st64_b32 v[16:17], v14 offset0:0 offset1:2
    ds_read2st64_b32 v[18:19], v14 offset0:4 offset1:6
    ds_read2st64_b32 v[20:21], v14 offset0:8 offset1:10
    ds_read2st64_b32 v[22:23], v14 offset0:12 offset1:14
    ds_read2st64_b32 v[24:25], v14 offset0:1 offset1:3
    ds_read2st64_b32 v[26:27], v14 offset0:5 offset1:7
    ds_read2st64_b32 v[28:29], v14 offset0:9 offset1:11
    ds_read2st64_b32 v[30:31], v14 offset0:13 offset1:15
    s_waitcnt lgkmcnt(4)
    v_pk_add_f32 v[16:17], v[16:17], v[18:19]
    v_pk_add_f32 v[20:21], v[20:21], v[22:23]
    v_pk_add_f32 v[16:17], v[16:17], v[20:21]
    v_add_f32 v16, v16, v17
    """)
    a("v_mul_f32 v17, %s, v16" % f32(-1.4426950408889634))
    a("""
    v_exp_f32 v17, v17
    s_waitcnt lgkmcnt(0)
    v_pk_add_f32 v[24:25], v[24:25], v[26:27]
    v_add_f32 v17, 1.0, v17
    v_pk_add_f32 v[28:29], v[28:29], v[30:31]
    v_rcp_f32 v17, v17
    v_pk_add_f32 v[24:25], v[24:25], v[28:29]
    v_add_f32 v24, v24, v25
    v_mul_f32 v16, v16, v17
    v_mul_f32 v16, v16, v24
    v_mov_b32_dpp v17, v16 row_ror:14 row_mask:0xf bank_mask:0xf
    v_cvt_pk_bf16_f32 v20, v16, v17
    v_mov_b32_dpp v21, v20 row_ror:12 row_mask:0xf bank_mask:0xf
    v_mov_b32_dpp v22, v20 row_ror:8 row_mask:0xf bank_mask:0xf
    v_mov_b32_dpp v23, v20 row_ror:4 row_mask:0xf bank_mask:0xf
    """)
    for t in range(4):
        a("v_mfma_f32_16x16x32_bf16 %s, v[20:23], %s, 0" % (v(C + 4 * t, 4), v(WD + 4 * t, 4)))
    a("""
    s_mov_b64 exec, 0xffff
    v_mov_b32 v50, v52
    v_mov_b32 v51, v53
    buffer_store_dwordx4 v[48:51], v15, s[12:15], s53 offen sc1
    v_mov_b32 v58, v60
    v_mov_b32 v59, v61
    buffer_store_dwordx4 v[56:59], v15, s[12:15], s53 offen offset:256 sc1
    s_mov_b64 exec, -1
    """)
    if DRY:
        a("s_cmp_lg_u32 s53, s46")
        a("s_cbranch_scc1 L_ffn_real")
    stamp(a, 3)
    a.label("L_late_out", reset=True)
    a("""
    s_cmp_eq_u32 s56, 0
    s_cbranch_scc1 L_done
    s_cmp_eq_u32 s56, s60
    s_cbranch_scc1 L_done
    s_cmp_eq_u32 s56, s61
    s_cbranch_scc1 L_done
    buffer_store_dwordx4 v[40:43], v250, s[28:31], s57 offen
    """)
    a.label("L_done", reset=True)
    stamp_end(a)
    a.label("L_end")
    a("s_endpgm")
    desc = """.section .rodata,"a"
.p2align 6
.amdhsa_kernel %s
  .amdhsa_next_free_vgpr 256
  .amdhsa_next_free_sgpr 100
  .amdhsa_accum_offset 256
  .amdhsa_group_segment_fixed_size 0
  .amdhsa_kernarg_size 120
  .amdhsa_user_sgpr_count 2
  .amdhsa_user_sgpr_kernarg_segment_ptr 1
  .amdhsa_system_sgpr_workgroup_id_x 1
.end_amdhsa_kernel
""" % KN
    return HEADER + "; @launch grid=(256,1,1) block=(512,1,1) lds=%d\n" % LDS_TOTAL + a.text() + desc


if __name__ == "__main__":
    out = sys.argv[1] if len(sys.argv) > 1 and sys.argv[1].endswith(".s") else "v3.s"
    open(out, "w").write(build())
    print("wrote", out)
```

```python
import sys, struct
from asmlib import Asm, Ins, v, s

NAME = "adaLN_cond__spectral_fnet__moe_arch_mod__prompt"
KN = NAME + "_kernel"
HEADER = open("cdna_kernels/%s.s.ref" % NAME).read().split("; Override launch geometry")[0]


def opt(name, default):
    for x in sys.argv:
        if x.startswith("--%s=" % name):
            return int(x.split("=")[1], 0)
    return default


STAMPS = "--stamps" in sys.argv
PROBE = opt("probe", -1)
HINT = opt("hint", 0)
KSTR = opt("kstr", 64)
NOFFN = opt("noffn", 0)
NOCAND = opt("nocand", 0)
ROT = opt("rot", 1)
HELP = opt("help", 2)
DRY = opt("dry", 0)
PDELAY = opt("pdelay", 0)
KDELAY = opt("kdelay", 0)
FLATE = opt("flate", 0)
SELPOS = opt("selpos", 1)
T64 = opt("t64", 1)
NEARLY = opt("nearly", 4)
PITCH = 288
CPF = opt("cpf", 0)
PK = opt("pk", 1)
LPOLL = opt("lpoll", 1)
POIS = opt("pois", 4)
SW = opt("sw", 4)
EARLYC = opt("earlyc", 0)

WS_MOD = 0x0
WS_GEN = 0x3000
WS_SEL = 0x3400
WS_FLAG = 0x8000
WS_KEYS = 0x10000
WS_PART = 0x80000
WS_CAND = 0x100000
WS_INTER = 0x200000
WS_SIZE = 0x400000
WS_STAMP = 0x600000
if STAMPS:
    WS_SIZE = 0x800000
EPS = 1e-5
TAGC = 0x9E3779B9
SPIN = 1 << 15

LDS_U = 98304
LDS_VEC = LDS_U + 20480
LDS_KEY = LDS_VEC + 8192
LDS_KEY2 = LDS_KEY + 32
LDS_RED = LDS_KEY + 64
LDS_OUT = LDS_U
LDS_TOTAL = LDS_RED + 4096

FR, FI, TC, TS, G, SA = 200, 204, 208, 216, 224, 240
VQ4, VTAG = 248, 249


def f32(x):
    return "0x%08x" % struct.unpack("<I", struct.pack("<f", x))[0]


def srd(a, base, nbytes):
    a("s_mov_b32 %s, 0x%x" % (s(base + 2), nbytes))
    a("s_mov_b32 %s, 0x20000" % s(base + 3))


NST = 14


def stamp(a, i):
    if PROBE >= 0 and i == 0:
        a("s_memrealtime s[96:97]")
    if PROBE == i:
        a("s_memrealtime s[92:93]")
    if not STAMPS:
        return
    if i == 0:
        a("s_memrealtime s[96:97]")
        for k in range(1, NST):
            a("s_mov_b32 %s, 0" % s(64 + 2 * k))
    a("s_memtime %s" % s(64 + 2 * i, 2))


def stamp_end(a):
    if not STAMPS:
        return
    a("s_waitcnt vmcnt(0)")
    a("s_memtime %s" % s(64 + 2 * (NST - 1), 2))
    a("s_memrealtime s[98:99]")
    a("s_mov_b64 exec, 1")
    a("s_lshl_b32 s93, s2, 3")
    a("s_add_u32 s93, s93, s5")
    a("s_lshl_b32 s93, s93, 6")
    a("s_add_u32 s93, s93, 0x%x" % WS_STAMP)
    a("s_waitcnt lgkmcnt(0)")
    a("v_mov_b32 v16, s96")
    a("v_mov_b32 v17, s98")
    for k in range(NST):
        a("v_mov_b32 %s, %s" % (v(18 + k), s(64 + 2 * k)))
    for k in range(4):
        a("buffer_store_dwordx4 %s, off, s[12:15], s93 offset:%d" % (v(16 + 4 * k, 4), 16 * k))


ROR = ["row_ror:%d row_mask:0xf bank_mask:0xf" % r for r in (8, 4, 2, 1)]
BC = ["row_bcast:15 row_mask:0xa bank_mask:0xf", "row_bcast:31 row_mask:0xc bank_mask:0xf"]


def dpp_sum(a, regs_, mods):
    for mod in mods:
        for r in regs_:
            a("v_add_f32_dpp %s, %s, %s %s" % (v(r), v(r), v(r), mod))


def poll_tail(a, label, cnt):
    a("s_cbranch_scc1 %s_ok" % label)
    a("s_sub_u32 %s, %s, 1" % (cnt, cnt))
    a("s_cbranch_scc0 %s" % label)
    a.label(label + "_ok")


def hidden_consts(a, t0):
    t = [v(t0 + i) for i in range(15)]
    a("v_cvt_f32_u32 %s, v1" % t[0])
    a("v_mul_f32 %s, %s, %s" % (t[0], f32(1 / 512), t[0]))
    a("v_mul_f32 %s, %s, %s" % (t[1], t[0], v(VQ4)))
    a("v_mul_f32 %s, %s, %s" % (t[2], f32(16.0), t[0]))
    for j in range(4):
        if j:
            a("v_add_f32 %s, %s, %s" % (t[1], t[1], t[0]))
        a("v_mul_f32 %s, %s, %s" % (t[3], f32(32.0), t[1]))
        a("v_mul_f32 %s, %s, %s" % (t[4], f32(16.0), t[1]))
        a("v_add_f32 %s, %s, %s" % (t[5], t[1], t[2]))
        a("v_cos_f32 %s, %s" % (v(TC + j), t[1]))
        a("v_sin_f32 %s, %s" % (v(TS + j), t[1]))
        a("v_cos_f32 %s, %s" % (t[6], t[3]))
        a("v_sin_f32 %s, %s" % (t[3], t[3]))
        a("v_cos_f32 %s, %s" % (v(TC + 4 + j), t[5]))
        a("v_sin_f32 %s, %s" % (v(TS + 4 + j), t[5]))
        a("v_cos_f32 %s, %s" % (t[7 + j], t[4]))
        a("v_sin_f32 %s, %s" % (t[11 + j], t[4]))
        a("v_cvt_pk_bf16_f32 %s, %s, %s" % (v(FR + j), t[6], t[3]))
        a("v_cvt_pk_bf16_f32 %s, -%s, %s" % (v(FI + j), t[3], t[6]))
    for j in range(4):
        a("v_cvt_pk_bf16_f32 %s, %s, %s" % (v(G + j), t[7 + 2 * j], t[8 + 2 * j]))
    a("v_lshlrev_b32 %s, 31, v1" % t[3])
    a("v_lshrrev_b32 %s, 16, %s" % (t[4], t[3]))
    a("v_or_b32 %s, %s, %s" % (t[3], t[3], t[4]))
    for j in range(4):
        a("v_xor_b32 %s, s63, %s" % (v(G + 4 + j), v(G + j)))
        a("v_xor_b32 %s, %s, %s" % (v(G + 8 + j), t[3], v(G + j)))
        a("v_xor_b32 %s, s63, %s" % (v(G + 12 + j), v(G + 8 + j)))


def code_prefetch(a):
    if not CPF:
        return
    a("s_cmp_lt_u32 s2, 232")
    a("s_cbranch_scc1 L_cpf")
    a("s_getpc_b64 s[60:61]")
    a.label("L_cpf_pc")
    a("v_lshlrev_b32 v192, 7, v0")
    a("v_min_u32 v192, L_end-L_cpf_pc, v192")
    a("v_mov_b32 v193, 0")
    a("v_lshl_add_u64 v[192:193], v[192:193], 0, s[60:61]")
    n = len(a.vm)
    a("global_load_dword v196, v[192:193], off")
    del a.vm[n:]
    a.label("L_cpf")


def stage(a):
    a("s_mov_b64 s[32:33], s[18:19]")
    a("s_mov_b64 s[36:37], s[20:21]")
    a("s_mov_b64 s[40:41], s[22:23]")
    srd(a, 32, 512 * 3584)
    srd(a, 36, 512 * 3584)
    srd(a, 40, 1792 * 1024)
    a("""
    s_and_b32 s44, s5, 1
    s_lshl_b32 s44, s44, 7
    s_lshr_b32 s48, s5, 1
    s_lshl2_add_u32 s44, s48, s44
    v_bfe_u32 v4, v0, 2, 2
    v_lshl_add_u32 v4, v2, 4, v4
    v_add_u32 v4, s44, v4
    v_mul_u32_u24 v4, 3584, v4
    v_and_b32 v5, 3, v0
    v_lshl_add_u32 v4, v5, 4, v4
    s_lshl_b32 s48, s6, 6
    s_mul_i32 m0, s5, 12288
    """)
    a("s_add_u32 s49, s48, %d" % (64 * 3584))
    a("s_add_u32 s50, s48, %d" % (256 * 3584))
    a("s_add_u32 s51, s48, %d" % (320 * 3584))
    for sr in (32, 36):
        for i in range(4):
            a("buffer_load_dwordx4 v4, %s, %s offen lds" % (s(sr, 4), s(48 + i)))
            a("s_add_u32 m0, m0, 1024")
    a("""
    v_bfe_u32 v5, v0, 3, 3
    v_lshlrev_b32 v5, 10, v5
    v_and_b32 v4, 7, v0
    v_lshl_add_u32 v5, v4, 4, v5
    v_lshl_add_u32 v5, v3, 7, v5
    s_lshl_b32 s48, s6, 15
    """)
    for i in range(4):
        a("buffer_load_dwordx4 v5, s[40:43], s48 offen lds")
        if i < 3:
            a("s_add_u32 m0, m0, 1024")
            a("s_add_u32 s48, s48, 8192")


def touch_setup(a):
    a("""
    s_cmp_eq_u32 s5, 5
    s_cselect_b64 s[32:33], s[18:19], s[20:21]
    s_cmp_eq_u32 s5, 7
    s_cselect_b64 s[32:33], s[22:23], s[32:33]
    s_mov_b32 s34, 0x1c0000
    s_mov_b32 s35, 0x20000
    s_movk_i32 s36, 3584
    s_cselect_b32 s36, 1024, s36
    s_mul_i32 s37, s3, 448
    %s
    s_mul_i32 s38, s4, 57344
    s_add_u32 s37, s37, s38
    s_add_u32 s37, s37, 28672
    s_lshl_b32 s38, s3, 5
    s_add_u32 s38, s38, s4
    s_mul_i32 s38, s38, 7168
    s_add_u32 s38, s38, 512
    s_cmp_eq_u32 s5, 7
    s_cselect_b32 s37, s38, s37
    s_cmp_lt_u32 s5, 5
    s_cselect_b32 s37, 0x7fff0000, s37
    v_bfe_u32 v198, v0, %d, 3
    v_mul_u32_u24 v198, s36, v198
    v_and_b32 v197, %d, v0
    v_lshl_add_u32 v198, v197, %d, v198
    """ % (("s_nop 0", 3, 7, 6) if T64 else ("s_and_b32 s37, s37, 0xffffff80", 2, 3, 7)))


def setup(a):
    a.label("L_setup", reset=True)
    a("""
    s_lshr_b32 s60, s4, 3
    s_lshl3_add_u32 s60, s60, s3          ; slot
    s_sub_u32 s61, 64, s60
    s_cmp_eq_u32 s60, 0
    s_cselect_b32 s61, 32, s61
    s_bitcmp0_b32 s4, 0
    s_cselect_b32 s61, s60, s61           ; k1
    """)
    a("s_mov_b32 s94, %s" % f32(0.25))
    a("s_cselect_b32 s94, %s, s94" % f32(-0.25))
    a("""
    s_mov_b32 s95, 0xffff0000
    s_cselect_b32 s95, 0x0000ffff, s95
    s_cmp_eq_u32 s60, 0
    s_cselect_b32 s94, 0, s94
    s_cselect_b32 s95, s95, -1
    s_bfe_u32 vcc_lo, s4, 0x20001
    s_lshl_b32 vcc_lo, vcc_lo, 9
    s_add_u32 s61, s61, vcc_lo
    v_lshrrev_b32 v160, 1, v1
    v_lshlrev_b32 v160, 6, v160
    v_add_u32 v160, s61, v160
    v_cvt_f32_u32 v160, v160
    v_and_b32 v161, 1, v1
    v_cvt_f32_u32 v161, v161
    """)
    a("v_mul_f32 v160, %s, v160" % f32(1 / 2048))
    a("v_mul_f32 v161, %s, v161" % f32(0.25))
    a("v_fmac_f32 v161, v160, %s" % v(VQ4))
    for ks in range(2):
        for r in range(4):
            if r:
                a("v_add_f32 v161, v161, v160")
            elif ks:
                a("v_fmac_f32 v161, %s, v160" % f32(13.0))
            a("v_add_f32 v162, s94, v161")
            a("v_cos_f32 v163, v161")
            a("v_cos_f32 v162, v162")
            if ks or r:
                k = SA + 4 * ks + r - 1
                a("v_and_b32 %s, s95, %s" % (v(k), v(k)))
            a("v_cvt_pk_bf16_f32 %s, v163, v162" % v(SA + 4 * ks + r))
    a("v_and_b32 %s, s95, %s" % (v(SA + 7), v(SA + 7)))
    hidden_consts(a, 160)
    a("s_waitcnt lgkmcnt(0)")
    a("s_setpc_b64 s[100:101]")


def get_tag(a):
    a("s_waitcnt lgkmcnt(0)")
    a("s_add_u32 s47, s47, 0x%x               ; hand-off tag of this launch" % TAGC)
    a("v_mov_b32 %s, s47" % v(VTAG))


def flag_store(a, wave0=False):
    a("s_lshl_b32 s53, s2, 7")
    a("s_add_u32 s53, s53, 0x%x" % WS_FLAG)
    if wave0:
        a("s_cmp_eq_u32 s5, 0")
        a("s_cselect_b32 s53, s53, 0x7fff0000")
    a("s_mov_b64 exec, 1")
    a("buffer_store_dword %s, off, s[12:15], s53 sc1" % v(VTAG))
    a("s_mov_b64 exec, -1")


def build():
    a = Asm()
    a.raw('.amdgcn_target "amdgcn-amd-amdhsa--gfx950"')
    a.raw(".text")
    a.raw(".globl %s" % KN)
    a.raw(".p2align 8")
    a.raw(".type %s,@function" % KN)
    a.label(KN, reset=True)
    a("s_cmp_ge_u32 s2, 256")
    a("s_cbranch_scc1 L_end")
    stamp(a, 0)
    a("s_load_dwordx2 s[8:9], s[0:1], 0")
    a("s_load_dwordx2 s[12:13], s[0:1], 112")
    a("s_load_dwordx16 s[16:31], s[0:1], 48")
    code_prefetch(a)
    a("""
    v_lshrrev_b32 v3, 6, v0               ; wave
    v_and_b32 v1, 15, v0                  ; n
    v_bfe_u32 v2, v0, 4, 2                ; q
    v_readfirstlane_b32 s5, v3
    s_and_b32 s3, s2, 7                   ; x
    s_lshr_b32 s4, s2, 3                  ; y
    v_and_b32 v250, 63, v0
    v_lshlrev_b32 v250, 4, v250           ; lane*16
    v_mov_b32 v252, -1
    v_mov_b32 v253, -1
    v_mov_b32 v254, -1
    v_mov_b32 v255, -1
    s_mov_b32 s63, 0x80000000
    """)
    a("v_cvt_f32_u32 %s, v2" % v(VQ4))
    srd(a, 8, 2048 * 1024)
    srd(a, 12, WS_SIZE)
    a("v_mul_f32 %s, 4.0, %s" % (v(VQ4), v(VQ4)))
    a("""
    s_lshl_b32 s62, s5, 10
    s_lshl_b32 s45, s2, 12
    s_add_u32 s45, s45, s62
    """)
    a("s_add_u32 s45, s45, 0x%x" % WS_CAND)
    a("s_cmp_lt_u32 s5, %d" % (0 if NOCAND else 4))
    a("s_cselect_b32 s45, s45, 0x7fff0000")
    a("s_cmp_lt_u32 s5, %d" % SW)
    a("s_cbranch_scc1 L_issue")
    a("s_call_b64 s[100:101], L_setup")
    a.label("L_issue")
    a("s_cmp_ge_u32 s4, 16")
    st0 = a.fork()
    a("s_cbranch_scc1 L_p1_notdft")
    a("""
    s_lshr_b32 s6, s4, 2
    s_lshl3_add_u32 s6, s6, s3            ; s2 index
    s_and_b32 s7, s4, 3
    s_lshl_b32 s44, s6, 10
    """)
    for g in range(4):
        a("s_add_u32 s46, s7, %d" % g)
        a("s_and_b32 s46, s46, 3")
        a("s_lshl_b32 s46, s46, 8")
        a("s_add_u32 %s, s46, s44" % s(48 + g))
    a("""
    %s
    s_and_b32 s46, s46, 7
    s_lshl_b32 s46, s46, 3
    v_add_u32 v4, s46, v2                 ; s1 = 8*((w+2*slice)&7) + q (+4 for the second group)
    v_lshlrev_b32 v5, 4, v1
    v_lshl_or_b32 v6, v4, 15, v5
    v_add_u32 v7, 0x20000, v6
    """ % ("s_lshl1_add_u32 s46, s7, s5" if ROT else "s_mov_b32 s46, s5"))
    a("s_waitcnt lgkmcnt(0)")
    stamp(a, 1)
    X = 16
    for i in range(4):
        for g in range(2):
            a("buffer_load_dwordx4 %s, %s, s[8:11], %s offen" % (v(X + 16 * g + 4 * i, 4), v(6 + g), s(48 + i)))
    a("s_load_dword s47, s[12:13], 0x%x" % WS_GEN)
    a("s_cmp_ge_u32 s5, %d" % SW)
    a("s_cbranch_scc1 L_dft")
    a("s_call_b64 s[100:101], L_setup")
    a("s_branch L_dft")
    dft_state = a.fork()
    mark_dft = len(a.lines)
    a.label("L_dft")
    a("""
    v_and_b32 v8, 3, v3                   ; M tile
    v_lshrrev_b32 v12, 8, v0
    v_lshlrev_b32 v13, 1, v2
    v_lshl_add_u32 v13, v8, 3, v13
    v_lshlrev_b32 v13, 16, v13
    v_lshl_add_u32 v13, v12, 8, v13
    v_add_u32 v13, v13, v5
    s_lshl_b32 s54, s6, 11
    s_lshl_b32 s55, s7, 9
    s_add_u32 s54, s54, s55
    """)
    a("s_add_u32 s54, s54, 0x%x" % WS_INTER)
    a("s_add_u32 s55, s54, 0x10000")
    def poison():
        a("buffer_store_dwordx4 v[252:255], v13, s[12:15], s54 offen sc1")
        a("buffer_store_dwordx4 v[252:255], v13, s[12:15], s55 offen sc1")
    if POIS == 4:
        a("s_barrier")
    if POIS in (0, 4):
        poison()
    WA = 48
    a("""
    v_lshrrev_b32 v9, 1, v1
    v_lshl_add_u32 v9, v8, 3, v9          ; slot
    v_and_b32 v10, 1, v1
    v_lshl_or_b32 v11, v9, 1, v10
    v_cmp_eq_u32 vcc, 1, v11
    v_cvt_f32_u32 v10, v10
    v_lshlrev_b32 v15, 31, v9
    v_cndmask_b32 v11, v9, 32, vcc
    """)
    a("v_mul_f32 v10, %s, v10" % f32(0.25))
    a("v_cvt_f32_u32 v11, v11")
    a("v_cndmask_b32 v10, v10, 0, vcc")
    a("v_mul_f32 v11, %s, v11" % f32(1 / 64))
    a("v_fmac_f32 v10, v11, %s" % v(VQ4))
    a("v_lshrrev_b32 v14, 16, v15")
    a("v_or_b32 v15, v15, v14")
    T = 56
    a("v_cos_f32 %s, v10" % v(T))
    for j in range(1, 8):
        a("v_add_f32 v10, v10, v11" if j != 4 else "v_fmac_f32 v10, %s, v11" % f32(13.0))
        a("v_cos_f32 %s, v10" % v(T + j))
    for j in range(4):
        a("v_cvt_pk_bf16_f32 %s, %s, %s" % (v(WA + j), v(T + 2 * j), v(T + 2 * j + 1)))
    for j in range(4):
        a("v_xor_b32 %s, v15, %s" % (v(WA + 4 + j), v(WA + j)))
    a("""
    v_mul_u32_u24 v10, 288, v4
    v_add_u32 v10, v10, v5
    v_bfe_u32 v11, v0, 2, 4
    v_mul_u32_u24 v11, 288, v11
    v_and_b32 v14, 3, v0
    v_lshl_add_u32 v11, v14, 3, v11
    v_lshl_add_u32 v11, v12, 7, v11
    s_mov_b32 s52, 0x3f803f80
    v_mov_b32 v56, 0
    v_mov_b32 v57, 0
    v_mov_b32 v58, 0
    v_mov_b32 v59, 0
    """)
    if EARLYC:
        hidden_consts(a, 100)
    stamp(a, 2)
    U = 64
    for i in range(4):
        for g in range(2):
            a.wait_vm_for(v(X + 16 * g + 4 * i, 4))
            if i == 0 and g == 0:
                stamp(a, 3)
            if (POIS == 1 and i == 0 and g == 0) or (POIS == 2 and i == 2 and g == 0) or (POIS == 3 and i == 3 and g == 1):
                poison()
            for d in range(4):
                x = v(X + 16 * g + 4 * i + d)
                a("v_dot2c_f32_bf16 %s, s52, %s" % (v(56 + g), x))
                a("v_dot2c_f32_bf16 %s, %s, %s" % (v(58 + g), x, x))
            if i == 0:
                for d in range(4):
                    a("v_lshlrev_b32 %s, 16, %s" % (v(U + 8 * g + 2 * d), v(X + 16 * g + d)))
                    a("v_and_b32 %s, 0xffff0000, %s" % (v(U + 8 * g + 2 * d + 1), v(X + 16 * g + d)))
    stamp(a, 4)
    dpp_sum(a, [56, 57, 58, 59], ROR)
    for g in range(2):
        a("v_mul_f32 %s, %s, %s" % (v(56 + g), f32(1 / 512), v(56 + g)))
    for g in range(2):
        a("v_mul_f32 %s, %s, %s" % (v(60 + 2 * g), v(56 + g), v(56 + g)))
    for g in range(2):
        a("v_sub_f32 %s, %s, %s" % (v(60 + 2 * g), f32(EPS), v(60 + 2 * g)))
    for g in range(2):
        a("v_fmac_f32 %s, %s, %s" % (v(60 + 2 * g), f32(1 / 512), v(58 + g)))
    for g in range(2):
        a("v_rsq_f32 %s, %s" % (v(60 + 2 * g), v(60 + 2 * g)))
    for g in range(2):
        a("v_mul_f32 %s, %s, %s" % (v(61 + 2 * g), v(56 + g), v(60 + 2 * g)))
    for g in range(2):
        for e in range(8):
            a("v_fma_f32 %s, %s, %s, -%s" % (v(U + 8 * g + e), v(U + 8 * g + e), v(60 + 2 * g), v(61 + 2 * g)))
        for d in range(4):
            a("v_cvt_pk_bf16_f32 %s, %s, %s" % (v(X + 16 * g + d), v(U + 8 * g + 2 * d), v(U + 8 * g + 2 * d + 1)))
        a("ds_write_b128 v10, %s offset:%d" % (v(X + 16 * g, 4), 4 * PITCH * g))
    a("s_waitcnt vmcnt(0)")
    get_tag(a)
    a("s_barrier")
    stamp(a, 5)
    B = 64
    for ks in range(2):
        for i in range(4):
            for hf in range(2):
                a("ds_read_b64_tr_b16 %s, v11 offset:%d" % (v(B + 16 * ks + 4 * i + 2 * hf, 2), ks * 32 * PITCH + hf * 16 * PITCH + i * 32))
    if HINT == 0:
        a("s_cmp_lg_u32 s5, 0")
        a("s_cbranch_scc1 L_nohint0")
        flag_store(a)
        a.label("L_nohint0")
    ACC = 96
    for ks in range(2):
        for i in range(4):
            a.wait_lg_for(v(B + 16 * ks + 4 * i, 4))
            acc = v(ACC + 4 * i, 4)
            a("v_mfma_f32_16x16x32_bf16 %s, %s, %s, %s" % (acc, v(WA + 4 * ks, 4), v(B + 16 * ks + 4 * i, 4), "0" if ks == 0 else acc))
    O = 16
    for i in range(4):
        for p in range(2):
            a("v_cvt_pk_bf16_f32 %s, %s, %s" % (v(O + 4 * p + i), v(ACC + 4 * i + 2 * p), v(ACC + 4 * i + 2 * p + 1)))
    for p in range(2):
        a("buffer_store_dwordx4 %s, v13, s[12:15], %s offen sc1" % (v(O + 4 * p, 4), s(54 + p)))
    tgt = "L_p2_sconst" if EARLYC else "L_p2"
    if HINT == 1:
        a("s_cmp_lg_u32 s5, 0")
        a("s_cbranch_scc1 %s" % tgt)
        flag_store(a)
    a("s_branch %s" % tgt)
    dft_block = a.lines[mark_dft:]
    del a.lines[mark_dft:]
    a.label("L_p1_notdft")
    a.join(st0)
    a("s_cmp_ge_u32 s4, 22")
    st1 = a.fork()
    a("s_cbranch_scc1 L_p1_notmod")
    srd(a, 36, 512 * 6144)
    srd(a, 32, 1024)
    a("""
    s_sub_u32 s6, s2, 128
    s_lshl_b32 s48, s6, 7
    """)
    for i in range(1, 8):
        a("s_add_u32 %s, s48, %d" % (s(48 + i), 6144 * i))
    a("""
    v_lshrrev_b32 v4, 3, v0
    v_and_b32 v5, 7, v0
    v_mul_u32_u24 v6, 0xc000, v4
    v_lshl_add_u32 v6, v5, 4, v6
    v_and_b32 v7, 3, v0
    v_lshlrev_b32 v7, 2, v7
    v_lshl_add_u32 v7, v4, 4, v7
    s_and_b32 s44, s6, 7
    s_lshl_b32 s44, s44, 6
    v_add_u32 v8, s44, v0                 ; e (wave 0)
    v_and_b32 v9, 0x1c0, v8
    v_lshl_add_u32 v9, v1, 2, v9
    v_add_u32 v9, v9, v2
    v_and_b32 v10, 0x103, v8
    v_bfe_u32 v11, v8, 2, 2
    v_lshl_add_u32 v10, v11, 6, v10
    v_bfe_u32 v11, v8, 4, 4
    v_lshl_add_u32 v10, v11, 2, v10
    s_cmp_lt_u32 s6, 16
    s_cselect_b64 s[56:57], -1, 0
    v_cndmask_b32 v9, v10, v9, s[56:57]
    v_lshlrev_b32 v9, 2, v9
    s_lshr_b32 s58, s6, 3
    s_lshl_b32 s58, s58, 11
    s_cmp_eq_u32 s5, 0
    s_cselect_b32 s58, s58, 0x7fff0000
    s_waitcnt lgkmcnt(0)
    """)
    a("s_mov_b64 s[36:37], s[26:27]")
    a("s_mov_b64 s[32:33], s[24:25]")
    stamp(a, 1)
    a("buffer_store_dword v252, v9, s[12:15], s58 offen sc1")
    a("buffer_load_dword v8, v7, s[32:35], 0 offen")
    W = 16
    for i in range(8):
        a("buffer_load_dwordx4 %s, v6, s[36:39], %s offen" % (v(W + 4 * i, 4), s(48 + i)))
    a("s_load_dword s47, s[12:13], 0x%x" % WS_GEN)
    a("s_cmp_ge_u32 s5, %d" % SW)
    a("s_cbranch_scc1 L_mod")
    a("s_call_b64 s[100:101], L_setup")
    a("s_branch L_mod")
    mark_mod = len(a.lines)
    a.label("L_mod")
    a("""
    s_mov_b32 s44, 0x05040100
    s_mov_b32 s46, 0x07060302
    s_lshr_b32 s48, s6, 3
    s_cmp_eq_u32 s48, 1
    s_cselect_b32 s50, 1.0, 0
    s_cmp_eq_u32 s48, 4
    s_cselect_b32 s50, 1.0, s50
    v_lshlrev_b32 v6, 2, v0
    v_lshlrev_b32 v10, 8, v3
    v_lshl_add_u32 v10, v5, 5, v10
    v_lshl_add_u32 v10, v2, 3, v10
    """)
    for j in range(8):
        a("v_mov_b32 %s, 0" % v(48 + j))
    stamp(a, 2)
    a.wait_vm_for("v8")
    get_tag(a)
    flag_store(a, True)
    stamp(a, 3)
    a("v_lshlrev_b32 v11, 16, v8")
    a("v_and_b32 v12, 0xffff0000, v8")
    a("v_mul_f32 v13, %s, v11" % f32(-1.4426950408889634))
    a("v_mul_f32 v14, %s, v12" % f32(-1.4426950408889634))
    a("""
    v_exp_f32 v13, v13
    v_exp_f32 v14, v14
    v_add_f32 v13, 1.0, v13
    v_add_f32 v14, 1.0, v14
    v_rcp_f32 v13, v13
    v_rcp_f32 v14, v14
    v_mul_f32 v11, v11, v13
    v_mul_f32 v12, v12, v14
    v_cvt_pk_bf16_f32 v8, v11, v12
    """)
    for p in range(4):
        a("v_mov_b32_dpp %s, v8 quad_perm:[%d,%d,%d,%d] row_mask:0xf bank_mask:0xf" % (v(12 + p), p, p, p, p))
    for p in range(4):
        a.wait_vm_for(v(W + 8 * p, 8))
        for jj in range(4):
            a("v_perm_b32 %s, %s, %s, s44" % (v(56 + 2 * jj), v(W + 8 * p + 4 + jj), v(W + 8 * p + jj)))
            a("v_perm_b32 %s, %s, %s, s46" % (v(57 + 2 * jj), v(W + 8 * p + 4 + jj), v(W + 8 * p + jj)))
        for j in range(8):
            a("v_dot2c_f32_bf16 %s, %s, %s" % (v(48 + j), v(12 + p), v(56 + j)))
    stamp(a, 4)
    for j in range(4):
        a("v_permlane32_swap_b32 %s, %s" % (v(48 + j), v(52 + j)))
    for j in range(4):
        a("v_add_f32 %s, %s, %s" % (v(48 + j), v(48 + j), v(52 + j)))
    for j in range(2):
        a("v_permlane16_swap_b32 %s, %s" % (v(48 + j), v(50 + j)))
    for j in range(2):
        a("v_add_f32 %s, %s, %s" % (v(48 + j), v(48 + j), v(50 + j)))
    dpp_sum(a, [48, 49], ROR[:1])
    a("""
    s_mov_b32 exec_lo, 0x00ff00ff
    s_mov_b32 exec_hi, 0x00ff00ff
    ds_write_b64 v10, v[48:49]
    s_mov_b64 exec, -1
    s_waitcnt lgkmcnt(0)
    """)
    a("s_barrier")
    stamp(a, 5)
    a("""
    s_cmp_lg_u32 s5, 0
    s_cbranch_scc1 L_p2
    ds_read2st64_b32 v[48:49], v6 offset0:0 offset1:1
    ds_read2st64_b32 v[50:51], v6 offset0:2 offset1:3
    ds_read2st64_b32 v[52:53], v6 offset0:4 offset1:5
    ds_read2st64_b32 v[54:55], v6 offset0:6 offset1:7
    s_waitcnt lgkmcnt(0)
    v_add_f32 v48, v48, v49
    v_add_f32 v50, v50, v51
    v_add_f32 v52, v52, v53
    v_add_f32 v54, v54, v55
    v_add_f32 v48, v48, v50
    v_add_f32 v52, v52, v54
    v_add_f32 v48, v48, v52
    v_cvt_pk_bf16_f32 v48, v48, v48
    v_and_b32 v48, 0xffff0000, v48
    v_add_f32 v48, s50, v48
    v_cvt_pk_bf16_f32 v48, v48, v48
    v_and_b32 v48, 0xffff0000, v48
    buffer_store_dword v48, v9, s[12:15], s58 offen sc1
    """)
    a("s_branch L_p2")
    mod_block = a.lines[mark_mod:]
    del a.lines[mark_mod:]
    a.label("L_p1_notmod")
    a.join(st1)
    srd(a, 36, 512 * 6144)
    a("""
    s_sub_u32 s59, s4, 22
    s_lshl3_add_u32 s7, s59, s5
    s_mul_i32 s7, s7, 0x6000
    s_lshl_b32 s44, s3, 7
    s_add_u32 s7, s7, s44
    s_add_u32 s7, s7, 0x120000
    s_add_u32 s44, s7, 4096
    v_mul_u32_u24 v4, 6144, v2
    v_bfe_u32 v5, v0, 3, 1
    v_lshl_add_u32 v4, v5, 10, v4
    v_and_b32 v5, 7, v0
    v_lshl_add_u32 v4, v5, 4, v4
    s_waitcnt lgkmcnt(0)
    s_mov_b64 s[36:37], s[26:27]
    """)
    if HELP == 2:
        a("s_cmp_lt_u32 s4, 29")
        a("s_cbranch_scc1 L_nohelp")
    if HELP:
        a("buffer_load_dwordx4 v[180:183], v4, s[36:39], s7 offen")
        a("buffer_load_dwordx4 v[184:187], v4, s[36:39], s7 offen offset:2048")
        a("buffer_load_dwordx4 v[188:191], v4, s[36:39], s44 offen")
    a.label("L_nohelp")
    a("s_load_dword s47, s[12:13], 0x%x" % WS_GEN)
    a("s_cmp_ge_u32 s4, 29")
    a("s_cbranch_scc1 L_p1_idle")
    a("""
    s_mul_i32 s6, s3, 7
    s_add_u32 s6, s6, s59
    s_lshl_b32 s46, s6, 12
    """)
    a("s_add_u32 s46, s46, 0x%x               ; partial-sum slab" % WS_PART)
    a("s_add_u32 s48, s46, s62")
    a("s_sub_u32 s48, s48, 4096")
    a("s_cmp_lt_u32 s5, 4")
    a("s_cselect_b32 s45, s45, s48")
    if HELP == 1:
        a("s_barrier")
    a("s_cmp_ge_u32 s5, %d" % NEARLY)
    a("s_cbranch_scc1 L_p1_idle")
    stamp(a, 1)
    stage(a)
    a.label("L_p1_idle")
    get_tag(a)
    a("s_cmp_ge_u32 s5, %d" % SW)
    a("s_cbranch_scc1 L_p2")
    a("s_call_b64 s[100:101], L_setup")
    a("s_branch L_p2")
    setup(a)
    a.lines += mod_block + dft_block[:-1] + ([dft_block[-1]] if EARLYC else [])
    a.label("L_p2", reset=True)
    if EARLYC:
        hidden_consts(a, 100)
        a.label("L_p2_sconst", reset=True)
    stamp(a, 6)
    a("buffer_store_dwordx4 v[252:255], v250, s[12:15], s45 offen sc1")
    srd(a, 28, 2048 * 1024)
    a("s_mov_b64 s[24:25], s[16:17]")
    srd(a, 24, 1024)
    a("""
    s_lshl_b32 s56, s5, 6
    s_add_u32 s56, s56, s61
    s_lshl_b32 s57, s56, 10
    s_mov_b32 s44, s60
    s_mov_b32 s49, s61
    v_lshlrev_b32 v7, 5, v1
    v_lshl_add_u32 v7, v2, 3, v7          ; 32n + 8q
    buffer_load_dwordx2 v[56:57], v7, s[8:11], s57 offen
    buffer_load_dwordx2 v[58:59], v7, s[8:11], s57 offen offset:512
    buffer_load_dwordx2 v[60:61], v7, s[24:27], 0 offen
    buffer_load_dwordx2 v[62:63], v7, s[24:27], 0 offen offset:512
    """)
    a("""
    %s
    s_and_b32 s52, s52, 7                 ; column block of this wave
    s_lshl_b32 s53, s52, 8
    v_lshlrev_b32 v4, 4, v1
    v_add_u32 v4, s53, v4                 ; cb*256 + n*16
    v_lshl_add_u32 v5, v2, 13, v4
    s_lshl_b32 s58, s44, 16
    s_lshl_b32 s53, s52, 3
    """ % ("s_add_u32 s52, s5, s4" if ROT else "s_mov_b32 s52, s5"))
    a("s_add_u32 s58, s58, 0x%x" % WS_INTER)
    a("""
    s_add_u32 s59, s58, 0x1000
    s_add_u32 s60, s58, 0x8000
    s_add_u32 s61, s58, 0x9000
    v_mul_u32_u24 v8, 80, v1
    v_mul_u32_u24 v9, 5120, v2
    v_add3_u32 v9, v9, s53, v8
    v_mul_u32_u24 v12, 2560, v3
    v_lshl_add_u32 v10, v2, 4, v12
    v_add_u32 v10, v10, v8
    v_or_b32 v11, s49, v2
    v_cmp_eq_u32 vcc, 0, v11
    v_mov_b32 v11, 0x45000000
    v_cndmask_b32 v11, 0, v11, vcc
    """)
    a("s_add_u32 s55, s62, %d" % (WS_MOD + 4096))
    a("v_add_u32 v9, %d, v9                   ; U write address" % LDS_U)
    a("v_add_u32 v10, %d, v10                 ; U read address" % LDS_U)
    a("v_add_u32 v13, %d, v250                ; vector read address" % LDS_VEC)
    a("v_add_u32 v14, s62, v13")
    a("v_add_u32 v12, %d, v12" % LDS_OUT)
    a("v_add_u32 v15, v12, v250")
    a("v_add_u32 v12, v12, v7")
    if NEARLY < 8:
        touch_setup(a)
    stamp(a, 7)
    a("s_mov_b32 s54, %d" % SPIN)
    a("v_lshlrev_b32 v8, 7, v0")
    a("v_cmp_gt_u32 s[50:51], 176, v0") if False else a("v_cmp_gt_u32 vcc, 176, v0")
    a("s_mov_b32 s52, 0x%x" % WS_FLAG)
    a("s_mov_b64 s[50:51], vcc")
    a("s_cmp_ge_u32 s5, 3")
    a("s_cbranch_scc1 L_poll1_ok")
    a("s_mov_b64 exec, s[50:51]")
    a.label("L_poll1")
    a("buffer_load_dword v6, v8, s[12:15], s52 offen sc1")
    a.label("L_poll1_chk")
    a("s_waitcnt vmcnt(0)")
    a("v_cmp_ne_u32 vcc, v6, %s" % v(VTAG))
    a("s_and_b64 exec, exec, vcc")
    a("s_cmp_eq_u64 exec, 0")
    poll_tail(a, "L_poll1", "s54")
    a("s_mov_b64 exec, -1")
    a("s_mov_b32 s54, %d" % SPIN)
    XU, WU = 112, 120
    a("s_barrier")
    stamp(a, 8)
    L = 16
    a.label("L_inter")
    for ks in range(2):
        for r in range(4):
            a("buffer_load_dwordx4 %s, v5, s[12:15], %s offen offset:%d sc1" % (v(L + 16 * ks + 4 * r, 4), s(58 + 2 * ks + r // 2), 2048 * (r % 2)))
    def mod_loads():
        a("buffer_load_dwordx4 v[48:51], v4, s[12:15], 0 offen offset:%d sc1" % (WS_MOD + 2048))
        a("buffer_load_dwordx4 v[52:55], v4, s[12:15], 0 offen offset:%d sc1" % WS_MOD)
        a("buffer_load_dwordx4 v[64:67], v250, s[12:15], s55 offen sc1")
    mod_loads()
    a("s_waitcnt vmcnt(11)")
    for d in range(4):
        a("v_lshlrev_b32 %s, 16, %s" % (v(XU + 2 * d), v(56 + d)))
        a("v_and_b32 %s, 0xffff0000, %s" % (v(XU + 2 * d + 1), v(56 + d)))
        a("v_lshlrev_b32 %s, 16, %s" % (v(WU + 2 * d), v(60 + d)))
        a("v_and_b32 %s, 0xffff0000, %s" % (v(WU + 2 * d + 1), v(60 + d)))
    ACC = 96
    for ks in range(2):
        a.wait_vm_for(v(L + 16 * ks, 16))
        if ks == 1:
            stamp(a, 9)
        TT = 68 if ks == 0 else 16
        b = L + 16 * ks
        if PK:
            for i in range(4):
                for hp in range(2):
                    o = i & 1
                    a("v_pk_mov_b32 %s, %s, %s op_sel:[%d,%d]" % (v(TT + 4 * i + 2 * hp, 2), v(b + 8 * hp + (i & 2), 2), v(b + 8 * hp + 4 + (i & 2), 2), o, o))
            b = TT
        else:
            for r in range(4):
                for i in range(r + 1, 4):
                    a("v_swap_b32 %s, %s" % (v(L + 16 * ks + 4 * r + i), v(L + 16 * ks + 4 * i + r)))
        for i in range(4):
            acc = v(ACC + 4 * i, 4)
            a("v_mfma_f32_16x16x32_bf16 %s, %s, %s, %s" % (acc, v(SA + 4 * ks, 4), v(b + 4 * i, 4), "0" if ks == 0 else acc))
        if ks == 0:
            a("v_max3_u32 v6, %s, %s, %s" % (v(b), v(b + 1), v(b + 2)))
            a("v_max_u32 v6, v6, %s" % v(b + 3))
        else:
            a("v_max3_u32 v6, v6, %s, %s" % (v(b), v(b + 1)))
            a("v_max3_u32 v6, v6, %s, %s" % (v(b + 2), v(b + 3)))
    a("v_cmp_eq_u32 vcc, -1, v6")
    a("s_waitcnt vmcnt(0)")
    a("s_cmp_eq_u64 vcc, 0")
    poll_tail(a, "L_inter", "s54")
    a("s_mov_b32 s54, %d" % SPIN)
    a("s_branch L_modv_chk")
    a.label("L_modv")
    mod_loads()
    a("s_waitcnt vmcnt(0)")
    a.label("L_modv_chk")
    a("""
    ds_write_b128 v14, v[64:67]
    v_max3_u32 v8, v48, v49, v50
    v_max3_u32 v6, v51, v52, v53
    v_max3_u32 v8, v8, v54, v55
    v_max3_u32 v6, v6, v64, v65
    v_max3_u32 v8, v8, v66, v67
    v_max_u32 v6, v6, v8
    v_cmp_eq_u32 vcc, -1, v6
    s_cmp_eq_u64 vcc, 0
    """)
    poll_tail(a, "L_modv", "s54")
    for i in range(4):
        a("v_mul_f32 %s, v11, %s" % (v(52 + i), v(52 + i)))
    P = 32
    for i in range(4):
        c = ACC + 4 * i
        a("v_fma_f32 %s, %s, %s, %s" % (v(c), v(c), v(48 + i), v(52 + i)))
        if PK:
            a("v_mul_f32 %s, %s, %s" % (v(c + 1), v(c + 1), v(48 + i)))
            a("v_pk_mul_f32 %s, %s, %s op_sel:[0,%d] op_sel_hi:[1,%d]" % (v(c + 2, 2), v(c + 2, 2), v(48 + (i & 2), 2), i & 1, i & 1))
        else:
            for j in range(1, 4):
                a("v_mul_f32 %s, %s, %s" % (v(c + j), v(c + j), v(48 + i)))
        for tt in range(2):
            a("v_cvt_pk_bf16_f32 %s, %s, %s" % (v(P + 4 * tt + 2 * (i % 2) + i // 2), v(c + 2 * tt), v(c + 2 * tt + 1)))
    for tt in range(2):
        for h in range(2):
            a("ds_write_b64 v9, %s offset:%d" % (v(P + 4 * tt + 2 * h, 2), tt * 2560 + h * 1280))
    a("s_waitcnt lgkmcnt(0)")
    a("s_barrier")
    D = 24
    a("ds_read_b128 %s, v10" % v(D, 4))
    a("ds_read_b128 %s, v10 offset:1280" % v(D + 4, 4))
    if NEARLY < 8:
        if not T64:
            a("s_mov_b32 exec_hi, 0")
        a("buffer_load_dword v197, v198, s[32:35], s37 offen")
        if not T64:
            a("s_mov_b32 exec_hi, -1")
    VEC = 128
    for k in range(4):
        for g in range(2):
            a("ds_read_b128 %s, v13 offset:%d" % (v(VEC + 8 * k + 4 * g, 4), 2048 * k + 1024 * g))
    BR, BI = 32, 40
    for h in range(2):
        a.wait_lg_for(v(D + 4 * h, 4))
        a("v_mfma_f32_16x16x32_bf16 %s, %s, %s, 0" % (v(BR + 4 * h, 4), v(D + 4 * h, 4), v(FR, 4)))
        a("v_mfma_f32_16x16x32_bf16 %s, %s, %s, 0" % (v(BI + 4 * h, 4), v(D + 4 * h, 4), v(FI, 4)))
    A2 = 16
    Y = 64
    for h in range(2):
        for j in range(0, 4, 2) if PK else ():
            br, bi, tc, ts = v(BR + 4 * h + j, 2), v(BI + 4 * h + j, 2), v(TC + 4 * h + j, 2), v(TS + 4 * h + j, 2)
            a("v_pk_mul_f32 %s, %s, %s" % (v(48 + j, 2), br, tc))
            a("v_pk_mul_f32 %s, %s, %s" % (v(52 + j, 2), bi, tc))
            a("v_pk_fma_f32 %s, %s, %s, %s" % (v(48 + j, 2), bi, ts, v(48 + j, 2)))
            a("v_pk_fma_f32 %s, %s, %s, %s neg_lo:[1,0,0] neg_hi:[1,0,0]" % (v(52 + j, 2), br, ts, v(52 + j, 2)))
        for j in range(4) if not PK else ():
            br, bi, tc, ts = v(BR + 4 * h + j), v(BI + 4 * h + j), v(TC + 4 * h + j), v(TS + 4 * h + j)
            a("v_mul_f32 %s, %s, %s" % (v(48 + j), br, tc))
            a("v_mul_f32 %s, %s, %s" % (v(52 + j), bi, tc))
            a("v_fmac_f32 %s, %s, %s" % (v(48 + j), bi, ts))
            a("v_fma_f32 %s, -%s, %s, %s" % (v(52 + j), br, ts, v(52 + j)))
        for k in range(4):
            a("v_cvt_pk_bf16_f32 %s, %s, %s" % (v(A2 + 4 * h + k), v(48 + 2 * k), v(49 + 2 * k)))
        for g in range(2):
            y = v(Y + 4 * g, 4)
            a("v_mfma_f32_16x16x32_bf16 %s, %s, %s, %s" % (y, v(A2 + 4 * h, 4), v(G + 8 * h + 4 * g, 4), "0" if h == 0 else y))
    a("v_mov_b32 v10, %s" % f32(1 / 512))
    a("s_lshl_b32 s56, s2, 4")
    a("s_lshl1_add_u32 s56, s5, s56")
    a("v_lshlrev_b32 v11, 2, v3")
    a("v_add_u32 v11, %d, v11" % LDS_KEY)
    a("v_mov_b32 v13, %d" % LDS_KEY)
    a("s_waitcnt lgkmcnt(0)")
    GA, SB, CB, GB = VEC, VEC + 8, VEC + 16, VEC + 24
    H = 32
    mods = ROR + BC
    if PK:
        for e in range(0, 8, 2):
            a("v_pk_fma_f32 %s, %s, %s, %s" % (v(XU + e, 2), v(GA + e, 2), v(Y + e, 2), v(XU + e, 2)))
        a("v_pk_add_f32 v[48:49], %s, %s" % (v(XU, 2), v(XU + 2, 2)))
        a("v_pk_mul_f32 v[50:51], %s, %s" % (v(XU, 2), v(XU, 2)))
        a("v_pk_add_f32 v[52:53], %s, %s" % (v(XU + 4, 2), v(XU + 6, 2)))
        a("v_pk_fma_f32 v[50:51], %s, %s, v[50:51]" % (v(XU + 2, 2), v(XU + 2, 2)))
        a("v_pk_add_f32 v[48:49], v[48:49], v[52:53]")
        a("v_pk_fma_f32 v[50:51], %s, %s, v[50:51]" % (v(XU + 4, 2), v(XU + 4, 2)))
        a("v_add_f32 v8, v48, v49")
        a("v_pk_fma_f32 v[50:51], %s, %s, v[50:51]" % (v(XU + 6, 2), v(XU + 6, 2)))
        a("v_add_f32 v9, v50, v51")
        dpp_sum(a, [8, 9], mods)
        a("v_readlane_b32 s60, v8, 63")
        a("v_readlane_b32 s61, v9, 63")
        a("v_mul_f32 v9, s60, v10                 ; mean")
        a("v_mul_f32 v8, v9, v9")
        a("v_sub_f32 v8, %s, v8" % f32(EPS))
        a("v_fmac_f32 v8, s61, v10")
        a("v_rsq_f32 v8, v8")
        a("v_mul_f32 v9, v9, v8")
        for e in range(0, 8, 2):
            a("v_pk_fma_f32 %s, %s, v[8:9], v[8:9] op_sel:[0,0,1] op_sel_hi:[1,0,1] neg_lo:[0,0,1] neg_hi:[0,0,1]" % (v(H + e, 2), v(XU + e, 2)))
        for e in range(0, 8, 2):
            a("v_pk_fma_f32 %s, %s, %s, %s" % (v(H + e, 2), v(H + e, 2), v(CB + e, 2), v(SB + e, 2)))
        a("v_pk_mul_f32 v[48:49], %s, %s" % (v(H, 2), v(WU, 2)))
        for e in range(2, 8, 2):
            a("v_pk_fma_f32 v[48:49], %s, %s, v[48:49]" % (v(H + e, 2), v(WU + e, 2)))
        a("v_add_f32 v8, v48, v49")
        fill = ["v_pk_fma_f32 %s, %s, %s, %s" % (v(XU + e, 2), v(GB + e, 2), v(H + e, 2), v(XU + e, 2)) for e in range(0, 8, 2)]
        fill += ["v_cvt_pk_bf16_f32 %s, %s, %s" % (v(40 + d), v(XU + 2 * d), v(XU + 2 * d + 1)) for d in range(4)]
        fill += ["v_cvt_pk_bf16_f32 %s, %s, %s" % (v(44 + d), v(H + 2 * d), v(H + 2 * d + 1)) for d in range(4)]
        for k, mod in enumerate(mods):
            a(fill[2 * k])
            a(fill[2 * k + 1])
            a("v_add_f32_dpp v8, v8, v8 %s" % mod)
    else:
        for e in range(8):
            a("v_fmac_f32 %s, %s, %s" % (v(XU + e), v(GA + e), v(Y + e)))
        a("v_add_f32 v8, %s, %s" % (v(XU), v(XU + 1)))
        a("v_mul_f32 v9, %s, %s" % (v(XU), v(XU)))
        a("v_fmac_f32 v9, %s, %s" % (v(XU + 1), v(XU + 1)))
        for e in range(2, 8):
            a("v_add_f32 v8, v8, %s" % v(XU + e))
            a("v_fmac_f32 v9, %s, %s" % (v(XU + e), v(XU + e)))
        dpp_sum(a, [8, 9], ROR + BC)
        a("v_readlane_b32 s60, v8, 63")
        a("v_readlane_b32 s61, v9, 63")
        a("v_mul_f32 v8, s60, v10                 ; mean")
        a("v_mul_f32 v9, v8, v8")
        a("v_sub_f32 v9, %s, v9" % f32(EPS))
        a("v_fmac_f32 v9, s61, v10")
        a("v_rsq_f32 v9, v9")
        a("v_mul_f32 v8, v8, v9")
        H = 32
        for e in range(8):
            a("v_fma_f32 %s, %s, v9, -v8" % (v(H + e), v(XU + e)))
        for e in range(8):
            a("v_fma_f32 %s, %s, %s, %s" % (v(H + e), v(H + e), v(CB + e), v(SB + e)))
        a("v_mul_f32 v8, %s, %s" % (v(H), v(WU)))
        for e in range(1, 8):
            a("v_fmac_f32 v8, %s, %s" % (v(H + e), v(WU + e)))
        mods = ROR + BC
        for k, mod in enumerate(mods):
            a("v_add_f32_dpp v8, v8, v8 %s" % mod)
            for e in ((0, 1), (2, 3), (4, 5), (6, 7), (), ())[k]:
                a("v_fmac_f32 %s, %s, %s" % (v(XU + e), v(GB + e), v(H + e)))
            if k >= 4:
                for d in (2 * (k - 4), 2 * (k - 4) + 1):
                    a("v_cvt_pk_bf16_f32 %s, %s, %s" % (v(40 + d), v(XU + 2 * d), v(XU + 2 * d + 1)))

    a("""
    v_ashrrev_i32 v9, 31, v8
    v_or_b32 v9, s63, v9
    v_xor_b32 v8, v8, v9
    v_and_b32 v8, 0xfffff000, v8
    v_or_b32 v8, s56, v8
    s_mov_b32 exec_lo, 0
    s_mov_b32 exec_hi, 0x80000000
    ds_write_b32 v11, v8
    s_mov_b64 exec, -1
    v_readlane_b32 s56, v8, 63
    s_waitcnt lgkmcnt(0)
    """)
    stamp(a, 10)
    a("""
    s_barrier
    ds_read_b128 v[16:19], v13
    ds_read_b128 v[20:23], v13 offset:16
    ds_write_b64 v12, v[40:41]
    ds_write_b64 v12, v[42:43] offset:512
    ds_read_b128 v[40:43], v15
    """)
    for d in range(4) if not PK else ():
        a("v_cvt_pk_bf16_f32 %s, %s, %s" % (v(44 + d), v(H + 2 * d), v(H + 2 * d + 1)))
    a("v_mov_b32 v25, %s" % v(VTAG))
    a("v_mov_b32 v27, %s" % v(VTAG))
    a("s_mul_i32 s58, s2, %d" % KSTR)
    a("s_add_u32 s58, s58, 0x%x" % WS_KEYS)
    a("s_lshl_b32 s59, s2, 12")
    a("s_add_u32 s59, s59, 0x%x" % WS_CAND)
    a("""
    s_waitcnt lgkmcnt(3)
    v_max_u32 v24, v16, v17
    v_min_u32 v26, v16, v17
    v_med3_u32 v28, v24, v18, v19
    v_max3_u32 v24, v24, v18, v19
    v_med3_u32 v29, v24, v20, v21
    v_max3_u32 v24, v24, v20, v21
    v_max3_u32 v26, v26, v28, v29
    v_med3_u32 v28, v24, v22, v23
    v_max3_u32 v24, v24, v22, v23
    v_max_u32 v26, v26, v28
    v_readfirstlane_b32 s60, v24
    v_readfirstlane_b32 s61, v26
    v_or_b32 v26, 1, v26
    s_cmp_lg_u32 s56, s60
    s_cbranch_scc1 L_notfirst
    s_mov_b64 exec, 1
    buffer_store_dwordx4 v[24:27], off, s[12:15], s58 sc1
    s_mov_b64 exec, -1
    s_branch L_cand
    """)
    a.label("L_notfirst")
    a("""
    s_cmp_lg_u32 s56, s61
    s_cbranch_scc1 L_notcand
    s_or_b32 s56, s56, 1
    s_add_u32 s59, s59, 2048
    """)
    a.label("L_cand")
    a("""
    buffer_store_dwordx4 v[44:47], v250, s[12:15], s59 offen sc1
    s_waitcnt lgkmcnt(0)
    buffer_store_dwordx4 v[40:43], v250, s[12:15], s59 offen offset:1024 sc1
    s_branch L_tail
    """)
    a.label("L_notcand")
    a("""
    s_mov_b32 s56, 0
    s_waitcnt lgkmcnt(0)
    buffer_store_dwordx4 v[40:43], v250, s[28:31], s57 offen
    """)
    a.label("L_tail", reset=True)
    a("s_sub_u32 s59, s4, 22")
    a("s_cmp_lt_u32 s59, 7")
    a("s_cbranch_scc1 L_ffn")
    a("""
    s_lshl_b32 s59, s5, 8
    s_add_u32 s59, s59, s2
    s_cmp_lt_u32 s59, 64
    s_cselect_b32 s59, 1, 0
    s_or_b32 s60, s59, s56
    s_cmp_eq_u32 s60, 0
    s_cbranch_scc1 L_done
    s_lshl_b32 s45, s3, 7
    """)
    a("s_add_u32 s45, s45, 0x%x" % WS_SEL)
    a("s_cmp_eq_u32 s59, 0")
    a("s_cbranch_scc1 L_sel_go")
    a("""
    s_lshl3_add_u32 s44, s3, s4
    s_lshr_b32 s48, s44, 2
    s_lshl_b32 s48, s48, 5
    s_and_b32 s49, s44, 3
    s_lshl2_add_u32 s48, s49, s48
    v_and_b32 v4, 3, v0
    v_lshrrev_b32 v5, 1, v2
    v_lshl_add_u32 v5, v5, 4, v4
    v_add_u32 v5, s48, v5
    v_and_b32 v8, 0x103, v5
    v_bfe_u32 v9, v5, 2, 2
    v_lshl_add_u32 v8, v9, 6, v8
    v_bfe_u32 v9, v5, 4, 4
    v_lshl_add_u32 v8, v9, 2, v8
    v_lshlrev_b32 v8, 2, v8
    """)
    a("v_add_u32 v8, %d, v8" % (LDS_VEC + 3 * 2048))
    a("""
    ds_read_b32 v8, v8                    ; gb[e]
    v_bfe_u32 v9, v0, 2, 4
    v_lshlrev_b32 v9, 12, v9
    v_lshl_add_u32 v9, v4, 4, v9
    s_lshl_b32 s48, s44, 6
    v_and_b32 v10, 1, v2
    v_cmp_eq_u32 s[50:51], 1, v10
    v_mov_b32 v36, 0
    v_mov_b32 v37, 0
    v_mov_b32 v38, 0
    v_mov_b32 v39, 0
    """)
    a("s_add_u32 s48, s48, 0x%x" % WS_PART)
    a("s_add_u32 s49, s48, 0x10000")
    a("s_add_u32 s52, s48, 0x20000")
    a("s_add_u32 s53, s48, 0x30000")
    a("s_waitcnt lgkmcnt(0)")
    a.label("L_sel_go")
    a("s_mov_b32 s54, %d" % SPIN)
    a.label("L_poll_sel")
    a("buffer_load_dwordx4 v[16:19], off, s[12:15], s45 sc1")
    a("s_waitcnt vmcnt(0)")
    a("v_cmp_eq_u32 vcc, v17, %s" % v(VTAG))
    a("v_cmp_eq_u32 s[60:61], v19, %s" % v(VTAG))
    a("s_and_b64 vcc, vcc, s[60:61]")
    a("s_cmp_eq_u64 vcc, -1")
    poll_tail(a, "L_poll_sel", "s54")
    stamp(a, 11)
    a("""
    v_readfirstlane_b32 s60, v16
    v_readfirstlane_b32 s61, v18
    s_cmp_eq_u32 s59, 0
    s_cbranch_scc1 L_late_out
    v_cndmask_b32 v16, v16, v18, s[50:51]
    v_bfe_u32 v17, v16, 4, 8
    v_and_b32 v18, 1, v16
    v_lshlrev_b32 v19, 12, v17
    v_lshl_add_u32 v19, v18, 11, v19
    v_lshl_add_u32 v19, v5, 1, v19
    """)
    a("s_mov_b32 s55, 0x%x" % (WS_CAND + 1024))
    a("s_mov_b32 s54, %d" % SPIN)
    a.label("L_poll_base")
    a("""
    buffer_load_ushort v20, v19, s[12:15], s55 offen sc1
    v_and_b32 v21, 7, v17
    v_lshrrev_b32 v22, 6, v17
    v_lshl_add_u32 v21, v22, 3, v21       ; slot
    v_sub_u32 v22, 64, v21
    v_cmp_eq_u32 vcc, 0, v21
    v_cndmask_b32 v22, v22, 32, vcc
    v_and_b32 v23, 8, v17
    v_cmp_eq_u32 vcc, 0, v23
    v_cndmask_b32 v21, v22, v21, vcc      ; k1
    v_bfe_u32 v22, v17, 4, 2
    v_lshl_add_u32 v21, v22, 9, v21
    v_bfe_u32 v22, v16, 1, 3
    v_lshl_add_u32 v21, v22, 6, v21
    v_lshlrev_b32 v21, 10, v21
    v_lshl_add_u32 v21, v5, 1, v21
    v_and_b32 v22, 0xfffff000, v16
    v_ashrrev_i32 v23, 31, v22
    v_not_b32 v23, v23
    v_or_b32 v23, s63, v23
    v_xor_b32 v22, v22, v23
    """)
    a("v_mul_f32 v22, %s, v22" % f32(-1.4426950408889634))
    a("""
    v_exp_f32 v22, v22
    v_add_f32 v22, 1.0, v22
    v_rcp_f32 v22, v22
    v_mul_f32 v22, v22, v8
    s_waitcnt vmcnt(0)
    v_cmp_eq_u32 vcc, 0xffff, v20
    s_cmp_eq_u64 vcc, 0
    """)
    poll_tail(a, "L_poll_base", "s54")
    a("s_mov_b32 s54, %d" % SPIN)
    if PDELAY:
        a("s_sleep %d" % PDELAY)
    a.label("L_poll_part")
    a("""
    buffer_load_dwordx4 v[24:27], v9, s[12:15], s48 offen sc1
    buffer_load_dwordx4 v[28:31], v9, s[12:15], s49 offen sc1
    buffer_load_dwordx4 v[32:35], v9, s[12:15], s52 offen sc1
    s_mov_b32 exec_hi, 0
    buffer_load_dwordx4 v[36:39], v9, s[12:15], s53 offen sc1
    s_mov_b32 exec_hi, -1
    s_waitcnt vmcnt(0)
    v_max3_u32 v48, v24, v28, v32
    v_max_u32 v48, v48, v36
    v_cmp_eq_u32 vcc, -1, v48
    s_cmp_eq_u64 vcc, 0
    """)
    poll_tail(a, "L_poll_part", "s54")
    stamp(a, 12)
    a("""
    v_pk_add_f32 v[24:25], v[24:25], v[28:29]
    v_pk_add_f32 v[26:27], v[26:27], v[30:31]
    v_pk_add_f32 v[32:33], v[32:33], v[36:37]
    v_pk_add_f32 v[34:35], v[34:35], v[38:39]
    v_pk_add_f32 v[24:25], v[24:25], v[32:33]
    v_pk_add_f32 v[26:27], v[26:27], v[34:35]
    v_permlane32_swap_b32 v24, v26
    v_permlane32_swap_b32 v25, v27
    v_pk_add_f32 v[24:25], v[24:25], v[26:27]
    v_permlane16_swap_b32 v24, v25
    v_add_f32 v24, v24, v25
    """)
    a("v_lshlrev_b32 v20, 16, v20")
    dpp_sum(a, [24], ROR[:2])
    a("""
    v_fmac_f32 v20, v24, v22
    v_cvt_pk_bf16_f32 v20, v20, v20
    s_mov_b32 exec_lo, 0x000f000f
    s_mov_b32 exec_hi, 0x000f000f
    buffer_store_short v20, v21, s[28:31], 0 offen
    s_mov_b64 exec, -1
    s_cmp_lg_u32 s2, 0
    s_cbranch_scc1 L_late_out
    s_mov_b64 exec, 1
    """)
    a("s_mov_b32 s55, 0x%x" % WS_GEN)
    a("buffer_store_dword %s, off, s[12:15], s55" % v(VTAG))
    a("s_mov_b64 exec, -1")
    if PROBE >= 0:
        a("s_waitcnt vmcnt(0)")
        a("s_memrealtime s[98:99]")
        a("s_waitcnt lgkmcnt(0)")
        a("s_sub_u32 s94, %s, s96" % ("s98" if PROBE == 13 else "s92"))
        a("s_mul_i32 s94, s94, 2")
        a("s_min_u32 s94, s94, 8000")
        a.label("L_probe")
        a("s_memrealtime s[96:97]")
        a("s_waitcnt lgkmcnt(0)")
        a("s_sub_u32 s95, s96, s98")
        a("s_cmp_lt_u32 s95, s94")
        a("s_cbranch_scc1 L_probe")
    a("s_branch L_late_out")
    a.label("L_ffn", reset=True)
    WF, WD = 64, 96
    if NEARLY < 8:
        a("s_cmp_lt_u32 s5, %d" % NEARLY)
        a("s_cbranch_scc1 L_staged")
        stage(a)
        a.label("L_staged")
    a("s_mov_b32 s55, 0x%x" % WS_KEYS)
    a("s_mov_b32 s54, %d" % SPIN)
    a("v_and_b32 v6, 255, v0")
    a("v_mul_u32_u24 v6, %d, v6" % KSTR)
    a("""
    s_mul_i32 s7, s5, 12288
    v_bfe_u32 v4, v0, 2, 4                ; 4q + r
    v_and_b32 v5, 3, v0
    v_lshlrev_b32 v5, 3, v5
    v_lshl_add_u32 v8, v4, 6, v5
    v_add_u32 v8, s7, v8
    v_bfe_u32 v9, v0, 2, 2
    v_lshl_add_u32 v9, v2, 3, v9
    v_lshl_add_u32 v9, v9, 7, v5
    v_add_u32 v9, s7, v9
    """)
    def frag_reads():
        for kk in range(2):
            for mt in range(4):
                for hf in range(2):
                    a("ds_read_b64_tr_b16 %s, v8 offset:%d" % (v(WF + 16 * kk + 4 * mt + 2 * hf, 2), (mt // 2) * 4096 + hf * 2048 + kk * 1024 + (mt % 2) * 32))
        for t in range(4):
            for hf in range(2):
                a("ds_read_b64_tr_b16 %s, v9 offset:%d" % (v(WD + 4 * t + 2 * hf, 2), 8192 + hf * 512 + t * 32))
    a("s_cmp_ge_u32 s5, %d" % NEARLY)
    a("s_cbranch_scc1 L_nofrag")
    frag_reads()
    a.label("L_nofrag")
    a("v_mov_b32 v33, %s" % v(VTAG))
    a("v_mov_b32 v35, %s" % v(VTAG))
    a("s_lshl_b32 s52, s3, 7")
    a("s_add_u32 s52, s52, 0x%x" % WS_SEL)
    a("s_or_b32 s53, s59, s5")
    a("s_cselect_b32 s52, 0x7fff0000, s52")
    a("""
    v_and_b32 v10, 1, v0
    v_cmp_eq_u32 s[50:51], 1, v10
    v_lshlrev_b32 v11, 7, v3
    v_lshl_add_u32 v11, v2, 4, v11
    v_lshlrev_b32 v12, 6, v10
    v_lshl_add_u32 v13, v2, 4, v12
    v_lshl_add_u32 v13, v3, 9, v13
    v_and_b32 v14, 30, v0
    v_lshl_add_u32 v14, v14, 1, v12
    v_and_b32 v12, 32, v0
    v_lshl_add_u32 v14, v12, 2, v14
    """)
    a("v_add_u32 v13, %d, v13                 ; partial write address" % LDS_RED)
    a("v_add_u32 v14, %d, v14                 ; partial read address" % LDS_RED)
    a("""
    v_lshlrev_b32 v15, 9, v3
    v_lshl_add_u32 v15, v1, 4, v15
    v_and_b32 v7, 3, v3
    v_lshlrev_b32 v7, 3, v7
    """)
    a("v_add_u32 v7, %d, v7" % LDS_KEY2)
    a("v_mov_b32 v4, %d" % LDS_KEY2)
    if DRY:
        a("s_mov_b32 s53, 0x7fff0000")
        a("s_waitcnt lgkmcnt(0)")
        a("s_branch L_ffn_compute")
        a.label("L_ffn_real", reset=True)
    a("s_mov_b32 s53, s46")
    a("s_cmp_lt_u32 s5, 4" if LPOLL else "s_cmp_ge_u32 s5, 4")
    a("s_cbranch_scc1 L_keys_done")
    if KDELAY:
        a("s_sleep %d" % KDELAY)
    a.label("L_poll_keys")
    a("buffer_load_dwordx4 v[16:19], v6, s[12:15], s55 offen sc1")
    a("s_waitcnt vmcnt(0)")
    a("v_cmp_ne_u32 vcc, v17, %s" % v(VTAG))
    a("v_cmp_ne_u32 s[60:61], v19, %s" % v(VTAG))
    a("s_or_b64 vcc, vcc, s[60:61]")
    a("s_and_b64 exec, exec, vcc")
    a("s_cmp_eq_u64 exec, 0")
    poll_tail(a, "L_poll_keys", "s54")
    a("s_mov_b64 exec, -1")
    for mod in ROR + BC:
        a("v_min_u32_dpp v19, v16, v16 %s" % mod)
        a("v_max_u32_dpp v18, v18, v18 %s" % mod)
        a("v_max_u32_dpp v16, v16, v16 %s" % mod)
        a("v_max_u32 v18, v18, v19")
    a("""
    s_mov_b32 exec_lo, 0
    s_mov_b32 exec_hi, 0x80000000
    ds_write2_b32 v7, v16, v18 offset0:0 offset1:1
    s_mov_b64 exec, -1
    """)
    a.label("L_keys_done")
    a("s_waitcnt lgkmcnt(0)")
    a("s_barrier")
    stamp(a, 11)
    a("""
    ds_read_b128 v[16:19], v4
    ds_read_b128 v[20:23], v4 offset:16
    """)
    a("s_mov_b32 s55, 0x%x" % WS_CAND)
    a("s_mov_b32 s54, %d" % SPIN)
    a("""
    s_waitcnt lgkmcnt(0)
    v_med3_u32 v36, v16, v18, v20
    v_max3_u32 v32, v16, v18, v20
    v_max3_u32 v34, v17, v19, v21
    v_min_u32 v37, v32, v22
    v_max_u32 v32, v32, v22
    v_max3_u32 v34, v34, v23, v36
    v_max_u32 v34, v34, v37
    v_cndmask_b32 v36, v32, v34, s[50:51]
    v_bfe_u32 v37, v36, 4, 8
    v_and_b32 v36, 1, v36
    v_lshl_add_u32 v11, v37, 12, v11
    v_lshl_add_u32 v11, v36, 11, v11
    """)
    a.label("L_poll_h2")
    a("""
    buffer_load_dwordx4 v[16:19], v11, s[12:15], s55 offen sc1
    buffer_load_dwordx4 v[20:23], v11, s[12:15], s55 offen offset:64 sc1
    """)
    def announce():
        a("s_mov_b64 exec, 1")
        a("buffer_store_dwordx4 v[32:35], off, s[12:15], s52 sc1")
        a("s_mov_b64 exec, -1")
    if SELPOS == 0:
        announce()
    a("""
    v_readfirstlane_b32 s60, v32
    v_readfirstlane_b32 s61, v34
    """)
    if NEARLY < 8:
        a("s_cmp_lt_u32 s5, %d" % NEARLY)
        a("s_cbranch_scc1 L_frags_done")
        a("s_waitcnt vmcnt(%d)" % (3 if SELPOS == 0 else 2))
        stamp(a, 2)
        frag_reads()
        a.label("L_frags_done")
    a("s_waitcnt vmcnt(%d) lgkmcnt(0)" % (1 if SELPOS == 0 else 0))
    a("""
    v_max_u32 v36, v16, v20
    v_cmp_eq_u32 vcc, -1, v36
    s_cmp_eq_u64 vcc, 0
    """)
    poll_tail(a, "L_poll_h2", "s54")
    stamp(a, 12)
    a.label("L_ffn_compute")
    C = 48
    for kk in range(2):
        for mt in range(4):
            c = v(C + 4 * mt, 4)
            a("v_mfma_f32_16x16x32_bf16 %s, %s, %s, %s" % (c, v(WF + 16 * kk + 4 * mt, 4), v(16 + 4 * kk, 4), "0" if kk == 0 else c))
    if SELPOS == 1:
        announce()
    a("s_mov_b32 exec_lo, 0x00030003")
    a("s_mov_b32 exec_hi, 0x00030003")
    for mt in range(4):
        a("ds_write_b128 v13, %s offset:%d" % (v(C + 4 * mt, 4), 128 * mt))
    a("""
    s_mov_b64 exec, -1
    s_waitcnt lgkmcnt(0)
    """)
    stamp(a, 4)
    a("s_barrier")
    stamp(a, 5)
    a("""
    ds_read2st64_b32 v[16:17], v14 offset0:0 offset1:2
    ds_read2st64_b32 v[18:19], v14 offset0:4 offset1:6
    ds_read2st64_b32 v[20:21], v14 offset0:8 offset1:10
    ds_read2st64_b32 v[22:23], v14 offset0:12 offset1:14
    ds_read2st64_b32 v[24:25], v14 offset0:1 offset1:3
    ds_read2st64_b32 v[26:27], v14 offset0:5 offset1:7
    ds_read2st64_b32 v[28:29], v14 offset0:9 offset1:11
    ds_read2st64_b32 v[30:31], v14 offset0:13 offset1:15
    """)
    if SELPOS == 2:
        announce()
    a("""
    s_waitcnt lgkmcnt(4)
    v_pk_add_f32 v[16:17], v[16:17], v[18:19]
    v_pk_add_f32 v[20:21], v[20:21], v[22:23]
    v_pk_add_f32 v[16:17], v[16:17], v[20:21]
    v_add_f32 v16, v16, v17
    """)
    a("v_mul_f32 v17, %s, v16" % f32(-1.4426950408889634))
    a("""
    v_exp_f32 v17, v17
    s_waitcnt lgkmcnt(0)
    v_pk_add_f32 v[24:25], v[24:25], v[26:27]
    v_add_f32 v17, 1.0, v17
    v_pk_add_f32 v[28:29], v[28:29], v[30:31]
    v_rcp_f32 v17, v17
    v_pk_add_f32 v[24:25], v[24:25], v[28:29]
    v_add_f32 v24, v24, v25
    v_mul_f32 v16, v16, v17
    v_mul_f32 v16, v16, v24
    v_mov_b32_dpp v17, v16 row_ror:14 row_mask:0xf bank_mask:0xf
    v_cvt_pk_bf16_f32 v20, v16, v17
    v_mov_b32_dpp v21, v20 row_ror:12 row_mask:0xf bank_mask:0xf
    v_mov_b32_dpp v22, v20 row_ror:8 row_mask:0xf bank_mask:0xf
    v_mov_b32_dpp v23, v20 row_ror:4 row_mask:0xf bank_mask:0xf
    """)
    for t in range(4):
        a("v_mfma_f32_16x16x32_bf16 %s, v[20:23], %s, 0" % (v(C + 4 * t, 4), v(WD + 4 * t, 4)))
    a("""
    s_mov_b64 exec, 0xffff
    v_mov_b32 v50, v52
    v_mov_b32 v51, v53
    buffer_store_dwordx4 v[48:51], v15, s[12:15], s53 offen sc1
    v_mov_b32 v58, v60
    v_mov_b32 v59, v61
    buffer_store_dwordx4 v[56:59], v15, s[12:15], s53 offen offset:256 sc1
    s_mov_b64 exec, -1
    """)
    if DRY:
        a("s_cmp_lg_u32 s53, s46")
        a("s_cbranch_scc1 L_ffn_real")
    stamp(a, 3)
    a.label("L_late_out", reset=True)
    a("""
    s_cmp_eq_u32 s56, 0
    s_cbranch_scc1 L_done
    s_cmp_eq_u32 s56, s60
    s_cbranch_scc1 L_done
    s_cmp_eq_u32 s56, s61
    s_cbranch_scc1 L_done
    buffer_store_dwordx4 v[40:43], v250, s[28:31], s57 offen
    """)
    a.label("L_done", reset=True)
    stamp_end(a)
    a.label("L_end")
    a("s_endpgm")
    desc = """.section .rodata,"a"
.p2align 6
.amdhsa_kernel %s
  .amdhsa_next_free_vgpr 256
  .amdhsa_next_free_sgpr 102
  .amdhsa_accum_offset 256
  .amdhsa_group_segment_fixed_size 0
  .amdhsa_kernarg_size 120
  .amdhsa_user_sgpr_count 2
  .amdhsa_user_sgpr_kernarg_segment_ptr 1
  .amdhsa_system_sgpr_workgroup_id_x 1
.end_amdhsa_kernel
""" % KN
    return HEADER + "; @launch grid=(256,1,1) block=(512,1,1) lds=%d\n" % LDS_TOTAL + a.text() + desc


if __name__ == "__main__":
    out = sys.argv[1] if len(sys.argv) > 1 and sys.argv[1].endswith(".s") else "v3.s"
    open(out, "w").write(build())
    print("wrote", out)
```

```python
import sys, struct
from asmlib import Asm, Ins, v, s

NAME = "adaLN_cond__spectral_fnet__moe_arch_mod__prompt"
KN = NAME + "_kernel"
HEADER = open("cdna_kernels/%s.s.ref" % NAME).read().split("; Override launch geometry")[0]


def opt(name, default):
    for x in sys.argv:
        if x.startswith("--%s=" % name):
            return int(x.split("=")[1], 0)
    return default


STAMPS = "--stamps" in sys.argv
PROBE = opt("probe", -1)
KSH = opt("ksh", 6)
FSH = opt("fsh", 8)
HELP = opt("help", 1)
POIS = opt("pois", 4)
FDEL = opt("fdel", 0)
SW = opt("sw", 4)
PRE = opt("pre", 3)
CPOS = opt("cpos", 0)
CPF = opt("cpf", 1)
TOUCH = opt("touch", 1)

WS_MOD = 0x0
WS_GEN = 0x3000
WS_SEL = 0x3400
WS_PRE = 0x3800
WS_FLAG = 0x8000
WS_KEYS = 0x40000
WS_PART = 0x80000
WS_CAND = 0x100000
WS_INTER = 0x200000
WS_SIZE = 0x400000
WS_STAMP = 0x600000
if STAMPS:
    WS_SIZE = 0x800000
EPS = 1e-5
TAGC = 0x9E3779B9
SPIN = 1 << 15
OOB = 0x7fff0000
PITCH = 288
XWG = 232

LDS_U = 20480
LDS_VEC = LDS_U + 20480
LDS_KEY = LDS_VEC + 8192
LDS_RED = 98304
LDS_KEY2 = LDS_RED + 4096
LDS_TOTAL = LDS_KEY2 + 64

FR, FI, TC, TS, G, SA = 200, 204, 208, 216, 224, 240
VQ4, VTAG, VL16 = 248, 249, 250
LOG2E = 1.4426950408889634


def f32(x):
    return "0x%08x" % struct.unpack("<I", struct.pack("<f", x))[0]


def srd(a, base, nbytes):
    a("s_mov_b32 %s, 0x%x" % (s(base + 2), nbytes))
    a("s_mov_b32 %s, 0x20000" % s(base + 3))


NST = 14


def stamp(a, i):
    if PROBE >= 0 and i == 0:
        a("s_memrealtime s[96:97]")
    if PROBE == i:
        a("s_memrealtime s[92:93]")
    if not STAMPS:
        return
    if i == 0:
        a("s_memrealtime s[96:97]")
        for k in range(1, NST):
            a("s_mov_b32 %s, 0" % s(64 + 2 * k))
    a("s_memtime %s" % s(64 + 2 * i, 2))


def stamp_end(a):
    if not STAMPS:
        return
    a("s_waitcnt vmcnt(0)")
    a("s_memtime %s" % s(64 + 2 * (NST - 1), 2))
    a("s_memrealtime s[98:99]")
    a("s_mov_b64 exec, 1")
    a("s_lshl_b32 s93, s2, 3")
    a("s_add_u32 s93, s93, s5")
    a("s_lshl_b32 s93, s93, 6")
    a("s_add_u32 s93, s93, 0x%x" % WS_STAMP)
    a("s_waitcnt lgkmcnt(0)")
    a("v_mov_b32 v16, s96")
    a("v_mov_b32 v17, s98")
    for k in range(NST):
        a("v_mov_b32 %s, %s" % (v(18 + k), s(64 + 2 * k)))
    for k in range(4):
        a("buffer_store_dwordx4 %s, off, s[12:15], s93 offset:%d" % (v(16 + 4 * k, 4), 16 * k))


ROR = ["row_ror:%d row_mask:0xf bank_mask:0xf" % r for r in (8, 4, 2, 1)]
BC = ["row_bcast:15 row_mask:0xa bank_mask:0xf", "row_bcast:31 row_mask:0xc bank_mask:0xf"]


def dpp_sum(a, regs_, mods):
    for mod in mods:
        for r in regs_:
            a("v_add_f32_dpp %s, %s, %s %s" % (v(r), v(r), v(r), mod))


def poll_tail(a, label, cnt="s54"):
    a("s_cbranch_scc1 %s_ok" % label)
    a("s_sub_u32 %s, %s, 1" % (cnt, cnt))
    a("s_cbranch_scc0 %s" % label)
    a.label(label + "_ok")


def setup(a):
    a.label("L_setup", reset=True)
    a("""
    s_lshr_b32 s60, s59, 5
    s_lshl3_add_u32 s60, s60, s3
    s_and_b32 s60, s60, 31
    s_bfe_u32 s61, s59, 0x20003
    s_lshl_b32 s61, s61, 9
    s_add_u32 s61, s61, s60
    s_sub_u32 s94, s61, 992
    s_cmp_ge_u32 s61, 1024
    s_cselect_b32 s94, s94, s61
    s_mov_b32 s95, 0xffff0000
    s_cselect_b32 s95, s95, 0x0000ffff
    s_cmp_eq_u32 s60, 0
    s_cselect_b32 s61, s94, s61
    s_cselect_b32 s95, s95, -1
    """)
    a("s_cselect_b32 s94, 0, %s" % f32(-0.25))
    a("""
    s_cmp_eq_u32 s59, 128
    s_cselect_b32 s61, 1024, s61
    v_lshrrev_b32 v160, 1, v1
    v_lshlrev_b32 v160, 6, v160
    v_add_u32 v160, s61, v160
    v_cvt_f32_u32 v160, v160
    v_and_b32 v161, 1, v1
    v_cvt_f32_u32 v161, v161
    """)
    a("v_mul_f32 v160, %s, v160" % f32(1 / 2048))
    a("v_mul_f32 v161, %s, v161" % f32(0.25))
    a("v_fmac_f32 v161, v160, %s" % v(VQ4))
    for ks in range(2):
        for r in range(4):
            if r:
                a("v_add_f32 v161, v161, v160")
            elif ks:
                a("v_fmac_f32 v161, %s, v160" % f32(13.0))
            a("v_add_f32 v162, s94, v161")
            a("v_cos_f32 v163, v161")
            a("v_cos_f32 v162, v162")
            if ks or r:
                k = SA + 4 * ks + r - 1
                a("v_and_b32 %s, s95, %s" % (v(k), v(k)))
            a("v_cvt_pk_bf16_f32 %s, v163, v162" % v(SA + 4 * ks + r))
    a("v_and_b32 %s, s95, %s" % (v(SA + 7), v(SA + 7)))
    t = [v(160 + i) for i in range(15)]
    a("v_cvt_f32_u32 %s, v1" % t[0])
    a("v_mul_f32 %s, %s, %s" % (t[0], f32(1 / 512), t[0]))
    a("v_mul_f32 %s, %s, %s" % (t[1], t[0], v(VQ4)))
    a("v_mul_f32 %s, %s, %s" % (t[2], f32(16.0), t[0]))
    for j in range(4):
        if j:
            a("v_add_f32 %s, %s, %s" % (t[1], t[1], t[0]))
        a("v_mul_f32 %s, %s, %s" % (t[3], f32(32.0), t[1]))
        a("v_mul_f32 %s, %s, %s" % (t[4], f32(16.0), t[1]))
        a("v_add_f32 %s, %s, %s" % (t[5], t[1], t[2]))
        a("v_cos_f32 %s, %s" % (v(TC + j), t[1]))
        a("v_sin_f32 %s, %s" % (v(TS + j), t[1]))
        a("v_cos_f32 %s, %s" % (t[6], t[3]))
        a("v_sin_f32 %s, %s" % (t[3], t[3]))
        a("v_cos_f32 %s, %s" % (v(TC + 4 + j), t[5]))
        a("v_sin_f32 %s, %s" % (v(TS + 4 + j), t[5]))
        a("v_cos_f32 %s, %s" % (t[7 + j], t[4]))
        a("v_sin_f32 %s, %s" % (t[11 + j], t[4]))
        a("v_cvt_pk_bf16_f32 %s, %s, %s" % (v(FR + j), t[6], t[3]))
        a("v_cvt_pk_bf16_f32 %s, -%s, %s" % (v(FI + j), t[3], t[6]))
    for j in range(4):
        a("v_cvt_pk_bf16_f32 %s, %s, %s" % (v(G + j), t[7 + 2 * j], t[8 + 2 * j]))
    a("v_lshlrev_b32 %s, 31, v1" % t[3])
    a("v_lshrrev_b32 %s, 16, %s" % (t[4], t[3]))
    a("v_or_b32 %s, %s, %s" % (t[3], t[3], t[4]))
    for j in range(4):
        a("v_xor_b32 %s, s63, %s" % (v(G + 4 + j), v(G + j)))
        a("v_xor_b32 %s, %s, %s" % (v(G + 8 + j), t[3], v(G + j)))
        a("v_xor_b32 %s, s63, %s" % (v(G + 12 + j), v(G + 8 + j)))
    a("s_waitcnt lgkmcnt(0)")
    a("s_setpc_b64 s[100:101]")


def get_tag(a):
    a("s_waitcnt lgkmcnt(0)")
    a("s_add_u32 s47, s47, 0x%x               ; hand-off tag of this launch" % TAGC)
    a("v_mov_b32 %s, s47" % v(VTAG))


def flag_store(a):
    a("s_lshl_b32 s53, s2, %d" % FSH)
    a("s_add_u32 s53, s53, 0x%x" % WS_FLAG)
    a("s_cmp_eq_u32 s5, 0")
    a("s_cselect_b32 s53, s53, 0x%x" % OOB)
    a("s_mov_b64 exec, 1")
    a("buffer_store_dword %s, off, s[12:15], s53 sc1" % v(VTAG))
    a("s_mov_b64 exec, -1")


def build():
    a = Asm()
    a.raw('.amdgcn_target "amdgcn-amd-amdhsa--gfx950"')
    a.raw(".text")
    a.raw(".globl %s" % KN)
    a.raw(".p2align 8")
    a.raw(".type %s,@function" % KN)
    a.label(KN, reset=True)
    a("s_cmp_ge_u32 s2, 256")
    a("s_cbranch_scc1 L_end")
    stamp(a, 0)
    a("s_load_dwordx2 s[8:9], s[0:1], 0")
    a("s_load_dwordx2 s[12:13], s[0:1], 112")
    a("s_load_dwordx16 s[16:31], s[0:1], 48")
    if CPF:
        a("s_getpc_b64 s[60:61]")
        a.label("L_cpf_pc")
        a("v_lshlrev_b32 v192, %d, v0" % (7 if CPF == 1 else 6))
        a("v_cmp_gt_u32 vcc, L_end-L_cpf_pc, v192")
        a("v_mov_b32 v193, 0")
        a("v_lshl_add_u64 v[192:193], v[192:193], 0, s[60:61]")
        a("s_and_saveexec_b64 s[60:61], vcc")
        a("s_cbranch_execz L_cpf")
        n = len(a.vm)
        a("global_load_dword v198, v[192:193], off")
        del a.vm[n:]
        a.label("L_cpf")
        a("s_mov_b64 exec, -1")
    a("""
    v_lshrrev_b32 v3, 6, v0               ; wave
    v_and_b32 v1, 15, v0                  ; n
    v_bfe_u32 v2, v0, 4, 2                ; q
    v_readfirstlane_b32 s5, v3
    s_and_b32 s3, s2, 7                   ; x
    s_lshr_b32 s4, s2, 3                  ; y
    v_and_b32 v250, 63, v0
    v_lshlrev_b32 v250, 4, v250           ; lane*16
    v_mov_b32 v252, -1
    v_mov_b32 v253, -1
    v_mov_b32 v254, -1
    v_mov_b32 v255, -1
    s_mov_b32 s63, 0x80000000
    """)
    a("v_cvt_f32_u32 %s, v2" % v(VQ4))
    srd(a, 8, 2048 * 1024)
    srd(a, 12, WS_SIZE)
    a("v_mul_f32 %s, 4.0, %s" % (v(VQ4), v(VQ4)))
    a("s_lshl_b32 s62, s5, 10")
    a("s_cmp_ge_u32 s4, 16")
    st0 = a.fork()
    a("s_cbranch_scc1 L_notdft")
    a("""
    s_mov_b32 s59, s2
    s_lshr_b32 s6, s4, 2
    s_lshl3_add_u32 s6, s6, s3            ; s2 index
    s_and_b32 s7, s4, 3
    v_lshlrev_b32 v5, 4, v1
    """)

    def store_addr():
        a("""
        v_and_b32 v8, 3, v3                   ; M tile
        v_lshlrev_b32 v13, 1, v2
        v_lshl_add_u32 v13, v8, 3, v13
        v_lshl_add_u32 v13, v13, 16, v5
        s_lshl_b32 s54, s6, 11
        s_lshl_b32 s55, s7, 9
        s_add_u32 s54, s54, s55
        """)
        a("s_add_u32 s54, s54, 0x%x" % WS_INTER)
        a("s_add_u32 s55, s54, 0x10000")
    a("s_cmp_lt_u32 s5, %d" % SW)
    stx = a.fork()
    a("s_cbranch_scc1 L_issue")
    if POIS >= 5:
        assert SW == 4
        store_addr()
        if POIS == 5:
            a("s_waitcnt lgkmcnt(0)")
        else:
            a("s_call_b64 s[100:101], L_setup")
            a.lg = []
        for o in (0, 256):
            a("buffer_store_dwordx4 v[252:255], v13, s[12:15], s54 offen offset:%d sc1" % o)
            a("buffer_store_dwordx4 v[252:255], v13, s[12:15], s55 offen offset:%d sc1" % o)
    if POIS != 6:
        a("s_call_b64 s[100:101], L_setup")
    a.label("L_issue")
    a.join(stx)
    a("s_lshl_b32 s44, s6, 10")
    for g in range(4):
        a("s_add_u32 s46, s7, %d" % g)
        a("s_and_b32 s46, s46, 3")
        a("s_lshl_b32 s46, s46, 8")
        a("s_add_u32 %s, s46, s44" % s(48 + g))
    a("""
    s_lshl1_add_u32 s46, s7, s5
    s_and_b32 s46, s46, 7
    s_lshl_b32 s46, s46, 3
    v_add_u32 v4, s46, v2
    v_lshl_or_b32 v6, v4, 15, v5
    v_add_u32 v7, 0x20000, v6
    s_waitcnt lgkmcnt(0)
    """)
    stamp(a, 1)
    X = 16
    for i in range(4):
        for g in range(2):
            a("buffer_load_dwordx4 %s, %s, s[8:11], %s offen" % (v(X + 16 * g + 4 * i, 4), v(6 + g), s(48 + i)))
    a("s_load_dword s47, s[12:13], 0x%x" % WS_GEN)
    a("s_cmp_ge_u32 s5, %d" % SW)
    a("s_cbranch_scc1 L_dft")
    a("s_call_b64 s[100:101], L_setup")
    a("s_branch L_dft")
    mark = len(a.lines)
    a.label("L_dft")
    store_addr()
    a("v_lshrrev_b32 v12, 8, v0")
    a("v_lshl_add_u32 v13, v12, 8, v13")
    if POIS == 4:
        a("s_barrier")
    if POIS < 5:
        a("buffer_store_dwordx4 v[252:255], v13, s[12:15], s54 offen sc1")
        a("buffer_store_dwordx4 v[252:255], v13, s[12:15], s55 offen sc1")
    WA = 48
    a("""
    v_lshrrev_b32 v9, 1, v1
    v_lshl_add_u32 v9, v8, 3, v9          ; slot
    v_and_b32 v10, 1, v1
    v_lshl_or_b32 v11, v9, 1, v10
    v_cmp_eq_u32 vcc, 1, v11
    v_cvt_f32_u32 v10, v10
    v_lshlrev_b32 v15, 31, v9
    v_cndmask_b32 v11, v9, 32, vcc
    """)
    a("v_mul_f32 v10, %s, v10" % f32(0.25))
    a("v_cvt_f32_u32 v11, v11")
    a("v_cndmask_b32 v10, v10, 0, vcc")
    a("v_mul_f32 v11, %s, v11" % f32(1 / 64))
    a("v_fmac_f32 v10, v11, %s" % v(VQ4))
    a("v_lshrrev_b32 v14, 16, v15")
    a("v_or_b32 v15, v15, v14")
    T = 56
    a("v_cos_f32 %s, v10" % v(T))
    for j in range(1, 8):
        a("v_add_f32 v10, v10, v11" if j != 4 else "v_fmac_f32 v10, %s, v11" % f32(13.0))
        a("v_cos_f32 %s, v10" % v(T + j))
    for j in range(4):
        a("v_cvt_pk_bf16_f32 %s, %s, %s" % (v(WA + j), v(T + 2 * j), v(T + 2 * j + 1)))
    for j in range(4):
        a("v_xor_b32 %s, v15, %s" % (v(WA + 4 + j), v(WA + j)))
    a("""
    v_mul_u32_u24 v10, 288, v4
    v_add_u32 v10, v10, v5
    v_bfe_u32 v11, v0, 2, 4
    v_mul_u32_u24 v11, 288, v11
    v_and_b32 v14, 3, v0
    v_lshl_add_u32 v11, v14, 3, v11
    v_lshl_add_u32 v11, v12, 7, v11
    s_mov_b32 s52, 0x3f803f80
    v_mov_b32 v56, 0
    v_mov_b32 v57, 0
    v_mov_b32 v58, 0
    v_mov_b32 v59, 0
    """)
    stamp(a, 2)
    U = 64
    for i in range(4):
        for g in range(2):
            a.wait_vm_for(v(X + 16 * g + 4 * i, 4))
            if i == 0 and g == 0:
                stamp(a, 3)
            for d in range(4):
                x = v(X + 16 * g + 4 * i + d)
                a("v_dot2c_f32_bf16 %s, s52, %s" % (v(56 + g), x))
                a("v_dot2c_f32_bf16 %s, %s, %s" % (v(58 + g), x, x))
            if i == 0:
                for d in range(4):
                    a("v_lshlrev_b32 %s, 16, %s" % (v(U + 8 * g + 2 * d), v(X + 16 * g + d)))
                    a("v_and_b32 %s, 0xffff0000, %s" % (v(U + 8 * g + 2 * d + 1), v(X + 16 * g + d)))
    stamp(a, 4)
    dpp_sum(a, [56, 57, 58, 59], ROR)
    for g in range(2):
        a("v_mul_f32 %s, %s, %s" % (v(56 + g), f32(1 / 512), v(56 + g)))
    for g in range(2):
        a("v_mul_f32 %s, %s, %s" % (v(60 + 2 * g), v(56 + g), v(56 + g)))
    for g in range(2):
        a("v_sub_f32 %s, %s, %s" % (v(60 + 2 * g), f32(EPS), v(60 + 2 * g)))
    for g in range(2):
        a("v_fmac_f32 %s, %s, %s" % (v(60 + 2 * g), f32(1 / 512), v(58 + g)))
    for g in range(2):
        a("v_rsq_f32 %s, %s" % (v(60 + 2 * g), v(60 + 2 * g)))
    for g in range(2):
        a("v_mul_f32 %s, %s, %s" % (v(61 + 2 * g), v(56 + g), v(60 + 2 * g)))
    for g in range(2):
        p = v(60 + 2 * g, 2)
        for d in range(4):
            u = v(U + 8 * g + 2 * d, 2)
            a("v_pk_fma_f32 %s, %s, %s, %s op_sel:[0,0,1] op_sel_hi:[1,0,1] neg_lo:[0,0,1] neg_hi:[0,0,1]" % (u, u, p, p))
        for d in range(4):
            a("v_cvt_pk_bf16_f32 %s, %s, %s" % (v(X + 16 * g + d), v(U + 8 * g + 2 * d), v(U + 8 * g + 2 * d + 1)))
        a("ds_write_b128 v10, %s offset:%d" % (v(X + 16 * g, 4), 4 * PITCH * g))
    a("s_waitcnt vmcnt(0)")
    get_tag(a)
    a("s_barrier")
    stamp(a, 5)
    B = 64
    for ks in range(2):
        for i in range(4):
            for hf in range(2):
                a("ds_read_b64_tr_b16 %s, v11 offset:%d" % (v(B + 16 * ks + 4 * i + 2 * hf, 2), ks * 32 * PITCH + hf * 16 * PITCH + i * 32))
    flag_store(a)
    ACC = 96
    for ks in range(2):
        for i in range(4):
            a.wait_lg_for(v(B + 16 * ks + 4 * i, 4))
            acc = v(ACC + 4 * i, 4)
            a("v_mfma_f32_16x16x32_bf16 %s, %s, %s, %s" % (acc, v(WA + 4 * ks, 4), v(B + 16 * ks + 4 * i, 4), "0" if ks == 0 else acc))
    O = 16
    for i in range(4):
        for p in range(2):
            a("v_cvt_pk_bf16_f32 %s, %s, %s" % (v(O + 4 * p + i), v(ACC + 4 * i + 2 * p), v(ACC + 4 * i + 2 * p + 1)))
    for p in range(2):
        a("buffer_store_dwordx4 %s, v13, s[12:15], %s offen sc1" % (v(O + 4 * p, 4), s(54 + p)))
    dft_block = a.lines[mark:]
    del a.lines[mark:]
    a.label("L_notdft")
    a.join(st0)
    srd(a, 36, 512 * 6144)
    a("s_cmp_ge_u32 s4, 22")
    st1 = a.fork()
    a("s_cbranch_scc1 L_notmod")
    srd(a, 32, 1024)
    a("""
    s_sub_u32 s6, s2, 128
    s_lshl_b32 s48, s6, 7
    """)
    for i in range(1, 8):
        a("s_add_u32 %s, s48, %d" % (s(48 + i), 6144 * i))
    a("""
    v_lshrrev_b32 v4, 3, v0
    v_and_b32 v5, 7, v0
    v_mul_u32_u24 v6, 0xc000, v4
    v_lshl_add_u32 v6, v5, 4, v6
    v_and_b32 v7, 3, v0
    v_lshlrev_b32 v7, 2, v7
    v_lshl_add_u32 v7, v4, 4, v7
    s_and_b32 s44, s6, 7
    s_lshl_b32 s44, s44, 6
    v_add_u32 v8, s44, v0                 ; e (wave 0)
    v_and_b32 v9, 0x1c0, v8
    v_lshl_add_u32 v9, v1, 2, v9
    v_add_u32 v9, v9, v2
    v_and_b32 v10, 0x103, v8
    v_bfe_u32 v11, v8, 2, 2
    v_lshl_add_u32 v10, v11, 6, v10
    v_bfe_u32 v11, v8, 4, 4
    v_lshl_add_u32 v10, v11, 2, v10
    s_cmp_lt_u32 s6, 16
    s_cselect_b64 s[56:57], -1, 0
    v_cndmask_b32 v9, v10, v9, s[56:57]
    v_lshlrev_b32 v9, 2, v9
    s_lshr_b32 s58, s6, 3
    s_lshl_b32 s58, s58, 11
    s_cmp_eq_u32 s5, 0
    s_cselect_b32 s58, s58, 0x7fff0000
    s_waitcnt lgkmcnt(0)
    s_mov_b64 s[36:37], s[26:27]
    s_mov_b64 s[32:33], s[24:25]
    """)
    stamp(a, 1)
    a("buffer_store_dword v252, v9, s[12:15], s58 offen sc1")
    a("buffer_load_dword v8, v7, s[32:35], 0 offen")
    W = 16
    for i in range(8):
        a("buffer_load_dwordx4 %s, v6, s[36:39], %s offen" % (v(W + 4 * i, 4), s(48 + i)))
    a("s_load_dword s47, s[12:13], 0x%x" % WS_GEN)
    a("s_branch L_mod")
    mark = len(a.lines)
    a.label("L_mod")
    a("""
    s_mov_b32 s44, 0x05040100
    s_mov_b32 s46, 0x07060302
    s_lshr_b32 s48, s6, 3
    s_cmp_eq_u32 s48, 1
    s_cselect_b32 s50, 1.0, 0
    s_cmp_eq_u32 s48, 4
    s_cselect_b32 s50, 1.0, s50
    v_lshlrev_b32 v6, 2, v0
    v_lshlrev_b32 v10, 8, v3
    v_lshl_add_u32 v10, v5, 5, v10
    v_lshl_add_u32 v10, v2, 3, v10
    """)
    for j in range(8):
        a("v_mov_b32 %s, 0" % v(48 + j))
    stamp(a, 2)
    a.wait_vm_for("v8")
    get_tag(a)
    flag_store(a)
    stamp(a, 3)
    a("v_lshlrev_b32 v11, 16, v8")
    a("v_and_b32 v12, 0xffff0000, v8")
    a("v_mul_f32 v13, %s, v11" % f32(-LOG2E))
    a("v_mul_f32 v14, %s, v12" % f32(-LOG2E))
    a("""
    v_exp_f32 v13, v13
    v_exp_f32 v14, v14
    v_add_f32 v13, 1.0, v13
    v_add_f32 v14, 1.0, v14
    v_rcp_f32 v13, v13
    v_rcp_f32 v14, v14
    v_mul_f32 v11, v11, v13
    v_mul_f32 v12, v12, v14
    v_cvt_pk_bf16_f32 v8, v11, v12
    """)
    for p in range(4):
        a("v_mov_b32_dpp %s, v8 quad_perm:[%d,%d,%d,%d] row_mask:0xf bank_mask:0xf" % (v(12 + p), p, p, p, p))
    for p in range(4):
        a.wait_vm_for(v(W + 8 * p, 8))
        for jj in range(4):
            a("v_perm_b32 %s, %s, %s, s44" % (v(56 + 2 * jj), v(W + 8 * p + 4 + jj), v(W + 8 * p + jj)))
            a("v_perm_b32 %s, %s, %s, s46" % (v(57 + 2 * jj), v(W + 8 * p + 4 + jj), v(W + 8 * p + jj)))
        for j in range(8):
            a("v_dot2c_f32_bf16 %s, %s, %s" % (v(48 + j), v(12 + p), v(56 + j)))
    stamp(a, 4)
    for j in range(4):
        a("v_permlane32_swap_b32 %s, %s" % (v(48 + j), v(52 + j)))
    for j in range(4):
        a("v_add_f32 %s, %s, %s" % (v(48 + j), v(48 + j), v(52 + j)))
    for j in range(2):
        a("v_permlane16_swap_b32 %s, %s" % (v(48 + j), v(50 + j)))
    for j in range(2):
        a("v_add_f32 %s, %s, %s" % (v(48 + j), v(48 + j), v(50 + j)))
    dpp_sum(a, [48, 49], ROR[:1])
    a("""
    s_mov_b32 exec_lo, 0x00ff00ff
    s_mov_b32 exec_hi, 0x00ff00ff
    ds_write_b64 v10, v[48:49]
    s_mov_b64 exec, -1
    s_waitcnt lgkmcnt(0)
    s_barrier
    """)
    stamp(a, 5)
    a("""
    s_cmp_lg_u32 s5, 0
    s_cbranch_scc1 L_mod_end
    ds_read2st64_b32 v[48:49], v6 offset0:0 offset1:1
    ds_read2st64_b32 v[50:51], v6 offset0:2 offset1:3
    ds_read2st64_b32 v[52:53], v6 offset0:4 offset1:5
    ds_read2st64_b32 v[54:55], v6 offset0:6 offset1:7
    s_waitcnt lgkmcnt(0)
    v_add_f32 v48, v48, v49
    v_add_f32 v50, v50, v51
    v_add_f32 v52, v52, v53
    v_add_f32 v54, v54, v55
    v_add_f32 v48, v48, v50
    v_add_f32 v52, v52, v54
    v_add_f32 v48, v48, v52
    v_cvt_pk_bf16_f32 v48, v48, v48
    v_and_b32 v48, 0xffff0000, v48
    v_add_f32 v48, s50, v48
    v_cvt_pk_bf16_f32 v48, v48, v48
    v_and_b32 v48, 0xffff0000, v48
    buffer_store_dword v48, v9, s[12:15], s58 offen sc1
    """)
    stamp(a, 6)
    a.label("L_mod_end")
    if TOUCH:
        a("s_barrier")
        a("s_sub_u32 s44, s4, 16")
        a("s_lshl3_add_u32 s44, s44, s5")
        a("s_movk_i32 s45, 48")
        a.label("L_touch")
        a("""
        v_bfe_u32 v4, v0, 3, 3
        v_and_b32 v5, 7, v0
        v_lshlrev_b32 v5, 6, v5
        s_mov_b32 s34, 0x1c0000
        s_mov_b32 s35, 0x20000
        """)
        for k in range(2):
            a("""
            s_and_b32 s46, s44, 31
            s_mul_i32 s48, s3, 448
            s_mul_i32 s49, s46, 57344
            s_add_u32 s48, s48, s49
            s_add_u32 s48, s48, 28672
            s_lshl_b32 s49, s3, 5
            s_add_u32 s49, s49, s46
            s_mul_i32 s49, s49, 7168
            s_add_u32 s49, s49, 512
            s_cmp_lt_u32 s44, 32
            s_cselect_b64 s[32:33], s[18:19], s[20:21]
            s_movk_i32 s50, 3584
            s_cmp_ge_u32 s44, 64
            s_cselect_b64 s[32:33], s[22:23], s[32:33]
            s_cselect_b32 s50, 1024, s50
            s_cselect_b32 s48, s49, s48
            v_mad_u32_u24 v6, v4, s50, v5
            s_add_u32 s44, s44, s45
            """)
            a("buffer_load_dword %s, v6, s[32:35], s48 offen" % v(196 + k))
    a("s_branch L_done")
    mod_block = a.lines[mark:]
    del a.lines[mark:]
    a.label("L_notmod")
    a.join(st1)
    a("""
    s_sub_u32 s58, s4, 22
    s_lshl3_add_u32 s7, s58, s5
    s_mul_i32 s7, s7, 0x6000
    s_lshl_b32 s44, s3, 7
    s_add_u32 s7, s7, s44
    s_add_u32 s7, s7, 0x120000
    s_add_u32 s44, s7, 4096
    v_mul_u32_u24 v4, 6144, v2
    v_bfe_u32 v5, v0, 3, 1
    v_lshl_add_u32 v4, v5, 10, v4
    v_and_b32 v5, 7, v0
    v_lshl_add_u32 v4, v5, 4, v4
    s_waitcnt lgkmcnt(0)
    s_mov_b64 s[36:37], s[26:27]
    """)
    if HELP == 2:
        a("s_cmp_lt_u32 s4, 29")
        a("s_cbranch_scc1 L_nohelp")
    if HELP:
        a("buffer_load_dwordx4 v[180:183], v4, s[36:39], s7 offen")
        a("buffer_load_dwordx4 v[184:187], v4, s[36:39], s7 offen offset:2048")
        a("buffer_load_dwordx4 v[188:191], v4, s[36:39], s44 offen")
    a.label("L_nohelp")
    a("s_load_dword s47, s[12:13], 0x%x" % WS_GEN)
    if FDEL == 1:
        a("s_waitcnt vmcnt(0)")
    if FDEL == 2:
        a("s_waitcnt lgkmcnt(0)")
        a("s_add_u32 s48, s47, 0x%x" % TAGC)
        a("s_lshl_b32 s49, s3, %d" % FSH)
        a("s_add_u32 s49, s49, 0x%x" % WS_FLAG)
        a("s_mov_b32 s54, %d" % SPIN)
        a.label("L_fdel")
        a("buffer_load_dword v17, off, s[12:15], s49 sc1")
        a("s_waitcnt vmcnt(0)")
        a("v_cmp_eq_u32 vcc, s48, v17")
        a("s_cmp_eq_u64 vcc, -1")
        poll_tail(a, "L_fdel")
    a("s_cmp_lt_u32 s4, 29")
    a("s_cbranch_scc1 L_ffn")
    if TOUCH:
        a("s_lshl3_add_u32 s44, s58, s5")
        a("s_sub_u32 s44, s44, 8")
        a("s_movk_i32 s45, 24")
    a("s_cmp_lg_u32 s2, %d" % XWG)
    a("s_cbranch_scc1 %s" % ("L_touch" if TOUCH else "L_done"))
    a("s_movk_i32 s59, 128")
    a("s_call_b64 s[100:101], L_setup")
    get_tag(a)
    a("s_branch L_p2")
    setup(a)
    a.lines += mod_block + dft_block
    a.label("L_p2", reset=True)
    stamp(a, 6)
    a("""
    s_lshl_b32 s45, s59, 12
    s_add_u32 s44, s45, s62
    """)
    a("s_add_u32 s45, s45, 0x%x               ; candidate slots of this workgroup" % WS_CAND)
    a("s_add_u32 s44, s44, 0x%x" % WS_CAND)
    a("s_cmp_lt_u32 s5, 4")
    a("s_cselect_b32 s44, s44, 0x%x" % OOB)
    if CPOS == 0:
        a("buffer_store_dwordx4 v[252:255], v250, s[12:15], s44 offen sc1")
    srd(a, 28, 2048 * 1024)
    a("s_mov_b64 s[24:25], s[16:17]")
    srd(a, 24, 1024)
    a("""
    s_lshl_b32 s56, s5, 6
    s_add_u32 s56, s56, s61
    s_sub_u32 s57, 2048, s56
    s_lshl_b32 s50, s57, 10
    s_lshl_b32 s49, s56, 10
    v_lshlrev_b32 v7, 5, v1
    v_lshl_add_u32 v7, v2, 3, v7          ; 32n + 8q
    buffer_load_dwordx2 v[56:57], v7, s[8:11], s49 offen
    buffer_load_dwordx2 v[58:59], v7, s[8:11], s49 offen offset:512
    buffer_load_dwordx2 v[84:85], v7, s[8:11], s50 offen
    buffer_load_dwordx2 v[86:87], v7, s[8:11], s50 offen offset:512
    buffer_load_dwordx2 v[60:61], v7, s[24:27], 0 offen
    buffer_load_dwordx2 v[62:63], v7, s[24:27], 0 offen offset:512
    s_lshl1_add_u32 s52, s4, s5
    s_and_b32 s52, s52, 7
    s_lshl_b32 s53, s52, 8
    v_lshlrev_b32 v4, 4, v1
    v_add_u32 v4, s53, v4                 ; cb*256 + n*16
    v_lshl_add_u32 v5, v2, 13, v4
    s_lshl_b32 s40, s60, 16
    s_lshl_b32 s53, s52, 3
    """)
    a("s_add_u32 s40, s40, 0x%x" % WS_INTER)
    a("""
    s_add_u32 s41, s40, 0x1000
    s_add_u32 s42, s40, 0x8000
    s_add_u32 s43, s40, 0x9000
    v_mul_u32_u24 v8, 80, v1
    v_mul_u32_u24 v9, 5120, v2
    v_add3_u32 v9, v9, s53, v8
    v_mul_u32_u24 v12, 2560, v3
    v_lshl_add_u32 v10, v2, 4, v8
    v_or_b32 v11, s61, v2
    v_cmp_eq_u32 vcc, 0, v11
    v_mov_b32 v11, 0x45000000
    v_cndmask_b32 v11, 0, v11, vcc
    """)
    a("s_add_u32 s55, s62, %d" % (WS_MOD + 4096))
    a("v_add_u32 v9, %d, v9                   ; U write address" % LDS_U)
    a("v_add_u32 v12, %d, v12" % LDS_U)
    a("v_sub_u32 v176, v12, v10")
    a("v_add_u32 v176, %d, v176               ; mirrored read address" % (15 * 80 + 52))
    a("v_add_u32 v10, v10, v12")
    a("v_add_u32 v177, 31, v1")
    a("v_and_b32 v177, 31, v177")
    a("v_mad_u32_u24 v177, v177, 80, v12" if False else "v_mul_u32_u24 v177, 80, v177")
    a("v_add3_u32 v177, v177, v12, 64")
    a("v_add_u32 v13, %d, v250                ; vector read address" % LDS_VEC)
    a("v_add_u32 v14, s62, v13")
    a("v_add_u32 v15, v12, v250")
    a("v_add_u32 v12, v12, v7")
    a("""
    s_lshl_b32 s46, s59, 5
    s_lshl2_add_u32 s46, s5, s46
    s_mov_b32 s38, 0xffffe000
    s_mov_b32 s39, 0xffffe000
    s_cmp_eq_u32 s56, 0
    s_cselect_b32 s39, 0, s39
    s_cmp_lg_u32 s59, 128
    s_cbranch_scc1 L_live
    s_mov_b32 s39, 0
    s_cmp_eq_u32 s5, 0
    s_cselect_b32 s38, s38, 0
    """)
    a.label("L_live")
    a("s_cmp_eq_u32 s38, 0")
    a("s_cselect_b32 s49, 0x%x, s49" % OOB)
    a("s_cselect_b32 s36, 0, s46")
    a("s_add_u32 s37, s46, 2")
    a("s_cmp_eq_u32 s39, 0")
    a("s_cselect_b32 s50, 0x%x, s50" % OOB)
    a("s_cselect_b32 s37, 0, s37")
    a("s_lshl_b32 s51, s3, 7")
    a("s_add_u32 s51, s51, 0x%x" % WS_PRE)
    a("s_or_b32 s53, s4, s5")
    a("s_cselect_b32 s51, 0x%x, s51" % OOB)
    stamp(a, 7)
    a("s_mov_b32 s54, %d" % SPIN)
    a("s_cmp_ge_u32 s5, 3")
    a("s_cbranch_scc1 L_poll1_ok")
    a("v_lshlrev_b32 v8, %d, v0" % FSH)
    a("v_cmp_gt_u32 vcc, 176, v0")
    a("s_mov_b32 s52, 0x%x" % WS_FLAG)
    a("s_mov_b64 exec, vcc")
    a.label("L_poll1")
    a("buffer_load_dword v6, v8, s[12:15], s52 offen sc1")
    a("s_waitcnt vmcnt(0)")
    a("v_cmp_ne_u32 vcc, v6, %s" % v(VTAG))
    a("s_and_b64 exec, exec, vcc")
    a("s_cmp_eq_u64 exec, 0")
    poll_tail(a, "L_poll1")
    a("s_mov_b64 exec, -1")
    a("s_mov_b32 s54, %d" % SPIN)
    a("s_barrier")
    stamp(a, 8)
    L = 16
    XU, WU, XM = 112, 120, 160
    a.label("L_inter")
    for ks in range(2):
        for r in range(4):
            a("buffer_load_dwordx4 %s, v5, s[12:15], %s offen offset:%d sc1" % (v(L + 16 * ks + 4 * r, 4), s(40 + 2 * ks + r // 2), 2048 * (r % 2)))

    def mod_loads():
        a("buffer_load_dwordx4 v[48:51], v4, s[12:15], 0 offen offset:%d sc1" % (WS_MOD + 2048))
        a("buffer_load_dwordx4 v[52:55], v4, s[12:15], 0 offen offset:%d sc1" % WS_MOD)
        a("buffer_load_dwordx4 v[64:67], v250, s[12:15], s55 offen sc1")
    mod_loads()
    a("s_waitcnt vmcnt(11)")
    for dst, src in ((XU, 56), (XM, 84), (WU, 60)):
        for d in range(4):
            a("v_lshlrev_b32 %s, 16, %s" % (v(dst + 2 * d), v(src + d)))
            a("v_and_b32 %s, 0xffff0000, %s" % (v(dst + 2 * d + 1), v(src + d)))
    ACC = 96
    for ks in range(2):
        a.wait_vm_for(v(L + 16 * ks, 16))
        if ks == 1:
            stamp(a, 9)
        TT = 68 if ks == 0 else 16
        b = L + 16 * ks
        for i in range(4):
            for hp in range(2):
                o = i & 1
                a("v_pk_mov_b32 %s, %s, %s op_sel:[%d,%d]" % (v(TT + 4 * i + 2 * hp, 2), v(b + 8 * hp + (i & 2), 2), v(b + 8 * hp + 4 + (i & 2), 2), o, o))
        b = TT
        for i in range(4):
            acc = v(ACC + 4 * i, 4)
            a("v_mfma_f32_16x16x32_bf16 %s, %s, %s, %s" % (acc, v(SA + 4 * ks, 4), v(b + 4 * i, 4), "0" if ks == 0 else acc))
        if ks == 0:
            a("v_max3_u32 v6, %s, %s, %s" % (v(b), v(b + 1), v(b + 2)))
            a("v_max_u32 v6, v6, %s" % v(b + 3))
        else:
            a("v_max3_u32 v6, v6, %s, %s" % (v(b), v(b + 1)))
            a("v_max3_u32 v6, v6, %s, %s" % (v(b + 2), v(b + 3)))
    a("v_cmp_eq_u32 vcc, -1, v6")
    a("s_waitcnt vmcnt(0)")
    a("s_cmp_eq_u64 vcc, 0")
    poll_tail(a, "L_inter")
    a("s_mov_b32 s54, %d" % SPIN)
    a("s_branch L_modv_chk")
    a.label("L_modv")
    mod_loads()
    a("s_waitcnt vmcnt(0)")
    a.label("L_modv_chk")
    a("""
    ds_write_b128 v14, v[64:67]
    v_max3_u32 v8, v48, v49, v50
    v_max3_u32 v6, v51, v52, v53
    v_max3_u32 v8, v8, v54, v55
    v_max3_u32 v6, v6, v64, v65
    v_max3_u32 v8, v8, v66, v67
    v_max_u32 v6, v6, v8
    v_cmp_eq_u32 vcc, -1, v6
    s_cmp_eq_u64 vcc, 0
    """)
    poll_tail(a, "L_modv")
    for i in range(4):
        a("v_mul_f32 %s, v11, %s" % (v(52 + i), v(52 + i)))
    P = 32
    for i in range(4):
        c = ACC + 4 * i
        a("v_fma_f32 %s, %s, %s, %s" % (v(c), v(c), v(48 + i), v(52 + i)))
        a("v_mul_f32 %s, %s, %s" % (v(c + 1), v(c + 1), v(48 + i)))
        a("v_pk_mul_f32 %s, %s, %s op_sel:[0,%d] op_sel_hi:[1,%d]" % (v(c + 2, 2), v(c + 2, 2), v(48 + (i & 2), 2), i & 1, i & 1))
        for tt in range(2):
            a("v_cvt_pk_bf16_f32 %s, %s, %s" % (v(P + 4 * tt + 2 * (i % 2) + i // 2), v(c + 2 * tt), v(c + 2 * tt + 1)))
    for tt in range(2):
        for h in range(2):
            a("ds_write_b64 v9, %s offset:%d" % (v(P + 4 * tt + 2 * h, 2), tt * 2560 + h * 1280))
    a("s_waitcnt lgkmcnt(0)")
    a("s_barrier")
    D = 24
    a("ds_read_b128 %s, v10" % v(D, 4))
    a("ds_read_b128 %s, v10 offset:1280" % v(D + 4, 4))
    def notice():
        a("s_mov_b64 exec, 1")
        a("buffer_store_dword %s, off, s[12:15], s51 sc1" % v(VTAG))
        a("s_mov_b64 exec, -1")
    if PRE == 1:
        notice()
    if CPOS == 1:
        a("buffer_store_dwordx4 v[252:255], v250, s[12:15], s44 offen sc1")
    VEC = 128
    for k in range(4):
        for g in range(2):
            a("ds_read_b128 %s, v13 offset:%d" % (v(VEC + 8 * k + 4 * g, 4), 2048 * k + 1024 * g))
    BR, BI = 32, 40
    for h in range(2):
        a.wait_lg_for(v(D + 4 * h, 4))
        a("v_mfma_f32_16x16x32_bf16 %s, %s, %s, 0" % (v(BR + 4 * h, 4), v(D + 4 * h, 4), v(FR, 4)))
        a("v_mfma_f32_16x16x32_bf16 %s, %s, %s, 0" % (v(BI + 4 * h, 4), v(D + 4 * h, 4), v(FI, 4)))
    A2 = 16
    Y, YM = 64, 72
    for h in range(2):
        for j in range(0, 4, 2):
            br, bi, tc, ts = v(BR + 4 * h + j, 2), v(BI + 4 * h + j, 2), v(TC + 4 * h + j, 2), v(TS + 4 * h + j, 2)
            a("v_pk_mul_f32 %s, %s, %s" % (v(48 + j, 2), br, tc))
            a("v_pk_mul_f32 %s, %s, %s" % (v(52 + j, 2), bi, tc))
            a("v_pk_fma_f32 %s, %s, %s, %s" % (v(48 + j, 2), bi, ts, v(48 + j, 2)))
            a("v_pk_fma_f32 %s, %s, %s, %s neg_lo:[1,0,0] neg_hi:[1,0,0]" % (v(52 + j, 2), br, ts, v(52 + j, 2)))
        for k in range(4):
            a("v_cvt_pk_bf16_f32 %s, %s, %s" % (v(A2 + 4 * h + k), v(48 + 2 * k), v(49 + 2 * k)))
        for g in range(2):
            y = v(Y + 4 * g, 4)
            a("v_mfma_f32_16x16x32_bf16 %s, %s, %s, %s" % (y, v(A2 + 4 * h, 4), v(G + 8 * h + 4 * g, 4), "0" if h == 0 else y))
    if PRE == 2:
        notice()
    a("v_mov_b32 v6, %s" % f32(1 / 512))
    a("v_lshlrev_b32 v11, 3, v3")
    a("v_add_u32 v11, %d, v11" % LDS_KEY)
    a("v_mov_b32 v13, %d" % LDS_KEY)
    a("ds_write_b128 v10, %s" % v(Y, 4))
    a("ds_write_b128 v10, %s offset:1280" % v(Y + 4, 4))
    a("s_mov_b64 exec, 0xffff")
    a("ds_write_b32 v177, %s" % v(Y))
    a("ds_write_b32 v10, %s offset:%d" % (v(Y + 4), 1280 - 16))
    a("s_mov_b64 exec, -1")
    for g in range(2):
        o = 320 * (1 - g)
        base = "v176"
        if o > 252:
            a("v_add_u32 v178, 1280, v176")
            base, o = "v178", 0
        a("ds_read2_b32 %s, %s offset0:%d offset1:%d" % (v(YM + 4 * g, 2), base, o + 3, o + 2))
        a("ds_read2_b32 %s, %s offset0:%d offset1:%d" % (v(YM + 4 * g + 2, 2), base, o + 1, o))
    GA, SB, CB, GB = VEC, VEC + 8, VEC + 16, VEC + 24
    H, HM = 32, 88
    rows = ((XU, Y, H, 8, 48), (XM, YM, HM, 80, 168))
    for ri, (xx, yy, hh, sp, tp) in enumerate(rows):
        a.wait_lg_for(v(VEC, 32) if ri == 0 else v(YM, 8))
        for e in range(0, 8, 2):
            a("v_pk_fma_f32 %s, %s, %s, %s" % (v(xx + e, 2), v(GA + e, 2), v(yy + e, 2), v(xx + e, 2)))
        a("v_pk_add_f32 %s, %s, %s" % (v(tp, 2), v(xx, 2), v(xx + 2, 2)))
        a("v_pk_mul_f32 %s, %s, %s" % (v(tp + 2, 2), v(xx, 2), v(xx, 2)))
        a("v_pk_add_f32 %s, %s, %s" % (v(tp + 4, 2), v(xx + 4, 2), v(xx + 6, 2)))
        a("v_pk_fma_f32 %s, %s, %s, %s" % (v(tp + 2, 2), v(xx + 2, 2), v(xx + 2, 2), v(tp + 2, 2)))
        a("v_pk_add_f32 %s, %s, %s" % (v(tp, 2), v(tp, 2), v(tp + 4, 2)))
        a("v_pk_fma_f32 %s, %s, %s, %s" % (v(tp + 2, 2), v(xx + 4, 2), v(xx + 4, 2), v(tp + 2, 2)))
        a("v_add_f32 %s, %s, %s" % (v(sp), v(tp), v(tp + 1)))
        a("v_pk_fma_f32 %s, %s, %s, %s" % (v(tp + 2, 2), v(xx + 6, 2), v(xx + 6, 2), v(tp + 2, 2)))
        a("v_add_f32 %s, %s, %s" % (v(sp + 1), v(tp + 2), v(tp + 3)))
    a("v_permlane32_swap_b32 v8, v80")
    a("v_permlane32_swap_b32 v9, v81")
    a("v_pk_add_f32 v[8:9], v[8:9], v[80:81]")
    a("v_permlane16_swap_b32 v8, v9")
    a("v_add_f32 v8, v8, v9")
    dpp_sum(a, [8], ROR)
    if PRE == 3:
        notice()
    for r in range(4):
        a("v_readlane_b32 %s, v8, %d" % (s(32 + r), 16 * r))
    for ri, (xx, yy, hh, sp, tp) in enumerate(rows):
        a("v_mul_f32 %s, %s, v6" % (v(sp + 1), s(32 + 2 * ri)))
    for ri, (xx, yy, hh, sp, tp) in enumerate(rows):
        a("v_mul_f32 %s, %s, %s" % (v(sp), v(sp + 1), v(sp + 1)))
    for ri, (xx, yy, hh, sp, tp) in enumerate(rows):
        a("v_sub_f32 %s, %s, %s" % (v(sp), f32(EPS), v(sp)))
    for ri, (xx, yy, hh, sp, tp) in enumerate(rows):
        a("v_fmac_f32 %s, %s, v6" % (v(sp), s(33 + 2 * ri)))
    for ri, (xx, yy, hh, sp, tp) in enumerate(rows):
        a("v_rsq_f32 %s, %s" % (v(sp), v(sp)))
    for ri, (xx, yy, hh, sp, tp) in enumerate(rows):
        a("v_mul_f32 %s, %s, %s" % (v(sp + 1), v(sp + 1), v(sp)))
    for ri, (xx, yy, hh, sp, tp) in enumerate(rows):
        p = v(sp, 2)
        for e in range(0, 8, 2):
            a("v_pk_fma_f32 %s, %s, %s, %s op_sel:[0,0,1] op_sel_hi:[1,0,1] neg_lo:[0,0,1] neg_hi:[0,0,1]" % (v(hh + e, 2), v(xx + e, 2), p, p))
        for e in range(0, 8, 2):
            a("v_pk_fma_f32 %s, %s, %s, %s" % (v(hh + e, 2), v(hh + e, 2), v(CB + e, 2), v(SB + e, 2)))
        a("v_pk_mul_f32 %s, %s, %s" % (v(tp, 2), v(hh, 2), v(WU, 2)))
        for e in range(2, 8, 2):
            a("v_pk_fma_f32 %s, %s, %s, %s" % (v(tp, 2), v(hh + e, 2), v(WU + e, 2), v(tp, 2)))
        a("v_add_f32 %s, %s, %s" % (v(8 + ri), v(tp), v(tp + 1)))
    fill = ["v_pk_fma_f32 %s, %s, %s, %s" % (v(xx + e, 2), v(GB + e, 2), v(hh + e, 2), v(xx + e, 2)) for (xx, yy, hh, sp, tp) in rows for e in range(0, 8, 2)]
    a("v_mov_b32 v80, s38")
    a("v_mov_b32 v81, s36")
    a("v_permlane32_swap_b32 v8, v9")
    a("v_add_f32 v8, v8, v9")
    a("s_mov_b32 exec_lo, 0")
    a("v_mov_b32 v80, s39")
    a("v_mov_b32 v81, s37")
    a("v_add_u32 v11, 4, v11")
    a("s_mov_b32 exec_lo, -1")
    for k, mod in enumerate(ROR + BC[:1]):
        a("v_add_f32_dpp v8, v8, v8 %s" % mod)
        if k < 4:
            a(fill[2 * k])
            a(fill[2 * k + 1])
    a("""
    v_ashrrev_i32 v9, 31, v8
    v_or_b32 v9, s63, v9
    v_xor_b32 v8, v8, v9
    v_and_or_b32 v8, v8, v80, v81
    s_mov_b32 exec_lo, 0x80000000
    s_mov_b32 exec_hi, 0x80000000
    ds_write_b32 v11, v8
    s_mov_b64 exec, -1
    v_readlane_b32 s56, v8, 31
    v_readlane_b32 s57, v8, 63
    """)
    if PRE == 4:
        notice()
    a("s_waitcnt vmcnt(0) lgkmcnt(0)" if CPOS == 1 else "s_waitcnt lgkmcnt(0)")
    stamp(a, 10)
    a("s_barrier")
    for k in range(4):
        a("ds_read_b128 %s, v13 offset:%d" % (v(16 + 4 * k, 4), 16 * k))
    OUT, OUTM, HP, HPM = 40, 44, 48, 52
    for (dst, src) in ((OUT, XU), (OUTM, XM)):
        for d in range(4):
            a("v_cvt_pk_bf16_f32 %s, %s, %s" % (v(dst + d), v(src + 2 * d), v(src + 2 * d + 1)))
    a("v_mov_b32 v57, %s" % v(VTAG))
    a("v_mov_b32 v59, %s" % v(VTAG))
    a("s_lshl_b32 s58, s59, %d" % KSH)
    a("s_add_u32 s58, s58, 0x%x" % WS_KEYS)
    a("s_waitcnt lgkmcnt(0)")
    a("v_max_u32 v56, v16, v17")
    a("v_min_u32 v58, v16, v17")
    for k in range(18, 30, 4):
        a("v_med3_u32 v60, v56, %s, %s" % (v(k), v(k + 1)))
        a("v_max3_u32 v56, v56, %s, %s" % (v(k), v(k + 1)))
        a("v_med3_u32 v61, v56, %s, %s" % (v(k + 2), v(k + 3)))
        a("v_max3_u32 v56, v56, %s, %s" % (v(k + 2), v(k + 3)))
        a("v_max3_u32 v58, v58, v60, v61")
    a("""
    v_med3_u32 v60, v56, v30, v31
    v_max3_u32 v56, v56, v30, v31
    v_max_u32 v58, v58, v60
    v_readfirstlane_b32 s60, v56
    v_readfirstlane_b32 s61, v58
    v_or_b32 v58, 1, v58
    s_cmp_eq_u32 s5, 0
    """)
    a("s_cselect_b32 s58, s58, 0x%x" % OOB)
    a("""
    s_mov_b64 exec, 1
    buffer_store_dwordx4 v[56:59], off, s[12:15], s58 sc1
    s_mov_b64 exec, -1
    ds_write_b64 v12, v[40:41]
    ds_write_b64 v12, v[42:43] offset:512
    ds_write_b64 v12, v[44:45] offset:1024
    ds_write_b64 v12, v[46:47] offset:1536
    ds_read_b128 v[40:43], v15
    ds_read_b128 v[44:47], v15 offset:1024
    """)
    for (dst, src) in ((HP, H), (HPM, HM)):
        for d in range(4):
            a("v_cvt_pk_bf16_f32 %s, %s, %s" % (v(dst + d), v(src + 2 * d), v(src + 2 * d + 1)))
    a("s_max_u32 s61, s61, 1")
    a("s_waitcnt lgkmcnt(0)")
    for ri, (key, off, o, hp) in enumerate((("s56", "s49", OUT, HP), ("s57", "s50", OUTM, HPM))):
        a("s_mov_b32 s58, s45")
        a("s_cmp_eq_u32 %s, s60" % key)
        a("s_cbranch_scc1 L_cand%d" % ri)
        a("s_add_u32 s58, s45, 2048")
        a("s_cmp_eq_u32 %s, s61" % key)
        a("s_cselect_b32 s53, 1, 0")
        a("s_or_b32 %s, %s, s53" % (key, key))
        a("s_cmp_eq_u32 s53, 1")
        a("s_cbranch_scc1 L_cand%d" % ri)
        a("s_mov_b32 %s, 0" % key)
        a("buffer_store_dwordx4 %s, v250, s[28:31], %s offen" % (v(o, 4), off))
        a("s_branch L_next%d" % ri)
        a.label("L_cand%d" % ri)
        a("buffer_store_dwordx4 %s, v250, s[12:15], s58 offen sc1" % v(hp, 4))
        a("buffer_store_dwordx4 %s, v250, s[12:15], s58 offen offset:1024 sc1" % v(o, 4))
        a.label("L_next%d" % ri)
    a.label("L_tail", reset=True)
    a("""
    s_lshl_b32 s59, s5, 8
    s_add_u32 s59, s59, s2
    s_cmp_lt_u32 s59, 64
    s_cselect_b32 s59, 1, 0
    s_or_b32 s60, s59, s56
    s_or_b32 s60, s60, s57
    s_cbranch_scc0 L_done
    s_lshl_b32 s45, s3, 7
    """)
    a("s_add_u32 s45, s45, 0x%x" % WS_SEL)
    a("s_cmp_eq_u32 s59, 0")
    a("s_cbranch_scc1 L_sel_go")
    a("""
    s_lshl3_add_u32 s44, s3, s4
    s_lshr_b32 s48, s44, 2
    s_lshl_b32 s48, s48, 5
    s_and_b32 s46, s44, 3
    s_lshl2_add_u32 s48, s46, s48
    v_and_b32 v4, 3, v0
    v_lshrrev_b32 v5, 1, v2
    v_lshl_add_u32 v5, v5, 4, v4
    v_add_u32 v5, s48, v5
    v_and_b32 v8, 0x103, v5
    v_bfe_u32 v9, v5, 2, 2
    v_lshl_add_u32 v8, v9, 6, v8
    v_bfe_u32 v9, v5, 4, 4
    v_lshl_add_u32 v8, v9, 2, v8
    v_lshlrev_b32 v8, 2, v8
    """)
    a("ds_read_b32 v8, v8 offset:%d           ; gb[e]" % (LDS_VEC + 3 * 2048))
    a("""
    v_bfe_u32 v9, v0, 2, 4
    v_lshlrev_b32 v9, 12, v9
    v_lshl_add_u32 v9, v4, 4, v9
    s_lshl_b32 s40, s44, 6
    v_and_b32 v10, 1, v2
    v_cmp_eq_u32 s[52:53], 1, v10
    v_mov_b32 v36, 0
    v_mov_b32 v37, 0
    v_mov_b32 v38, 0
    v_mov_b32 v39, 0
    """)
    a("s_add_u32 s40, s40, 0x%x" % WS_PART)
    a("s_add_u32 s41, s40, 0x10000")
    a("s_add_u32 s42, s40, 0x20000")
    a("s_add_u32 s43, s40, 0x30000")
    a("s_waitcnt lgkmcnt(0)")
    a.label("L_sel_go")
    a("s_mov_b32 s54, %d" % SPIN)
    a.label("L_poll_sel")
    a("buffer_load_dwordx4 v[16:19], off, s[12:15], s45 sc1")
    a("s_waitcnt vmcnt(0)")
    a("v_cmp_eq_u32 vcc, v17, %s" % v(VTAG))
    a("v_cmp_eq_u32 s[60:61], v19, %s" % v(VTAG))
    a("s_and_b64 vcc, vcc, s[60:61]")
    a("s_cmp_eq_u64 vcc, -1")
    poll_tail(a, "L_poll_sel")
    stamp(a, 11)
    a("""
    v_readfirstlane_b32 s60, v16
    v_readfirstlane_b32 s61, v18
    s_cmp_eq_u32 s59, 0
    s_cbranch_scc1 L_late_out
    v_cndmask_b32 v16, v16, v18, s[52:53]
    v_bfe_u32 v17, v16, 5, 8
    v_and_b32 v18, 1, v16
    v_lshlrev_b32 v19, 12, v17
    v_lshl_add_u32 v19, v18, 11, v19
    v_lshl_add_u32 v19, v5, 1, v19
    """)
    a("s_mov_b32 s55, 0x%x" % (WS_CAND + 1024))
    a("s_mov_b32 s54, %d" % SPIN)
    a.label("L_poll_base")
    a("""
    buffer_load_ushort v20, v19, s[12:15], s55 offen sc1
    v_and_b32 v21, 7, v17
    v_bfe_u32 v22, v17, 5, 2
    v_lshl_add_u32 v21, v22, 3, v21       ; slot
    v_bfe_u32 v22, v17, 3, 2
    v_lshl_add_u32 v22, v22, 9, v21
    v_subrev_u32 v23, 992, v22
    v_cmp_eq_u32 vcc, 0, v21
    v_cndmask_b32 v23, v22, v23, vcc
    v_cmp_gt_u32 vcc, 1024, v22
    v_cndmask_b32 v21, v23, v22, vcc
    v_lshrrev_b32 v22, 7, v17
    v_lshl_add_u32 v21, v22, 10, v21
    v_bfe_u32 v22, v16, 2, 3
    v_lshl_add_u32 v21, v22, 6, v21
    v_sub_u32 v22, 2048, v21
    v_and_b32 v23, 2, v16
    v_cmp_eq_u32 vcc, 0, v23
    v_cndmask_b32 v21, v22, v21, vcc
    v_lshlrev_b32 v21, 10, v21
    v_lshl_add_u32 v21, v5, 1, v21
    v_and_b32 v22, 0xffffe000, v16
    v_ashrrev_i32 v23, 31, v22
    v_not_b32 v23, v23
    v_or_b32 v23, s63, v23
    v_xor_b32 v22, v22, v23
    """)
    a("v_mul_f32 v22, %s, v22" % f32(-LOG2E))
    a("""
    v_exp_f32 v22, v22
    v_add_f32 v22, 1.0, v22
    v_rcp_f32 v22, v22
    v_mul_f32 v22, v22, v8
    s_waitcnt vmcnt(0)
    v_cmp_eq_u32 vcc, 0xffff, v20
    s_cmp_eq_u64 vcc, 0
    """)
    poll_tail(a, "L_poll_base")
    a("s_mov_b32 s54, %d" % SPIN)
    a.label("L_poll_part")
    a("""
    buffer_load_dwordx4 v[24:27], v9, s[12:15], s40 offen sc1
    buffer_load_dwordx4 v[28:31], v9, s[12:15], s41 offen sc1
    buffer_load_dwordx4 v[32:35], v9, s[12:15], s42 offen sc1
    s_mov_b32 exec_hi, 0
    buffer_load_dwordx4 v[36:39], v9, s[12:15], s43 offen sc1
    s_mov_b32 exec_hi, -1
    s_waitcnt vmcnt(0)
    v_max3_u32 v48, v24, v28, v32
    v_max_u32 v48, v48, v36
    v_cmp_eq_u32 vcc, -1, v48
    s_cmp_eq_u64 vcc, 0
    """)
    poll_tail(a, "L_poll_part")
    stamp(a, 12)
    a("""
    v_pk_add_f32 v[24:25], v[24:25], v[28:29]
    v_pk_add_f32 v[26:27], v[26:27], v[30:31]
    v_pk_add_f32 v[32:33], v[32:33], v[36:37]
    v_pk_add_f32 v[34:35], v[34:35], v[38:39]
    v_pk_add_f32 v[24:25], v[24:25], v[32:33]
    v_pk_add_f32 v[26:27], v[26:27], v[34:35]
    v_permlane32_swap_b32 v24, v26
    v_permlane32_swap_b32 v25, v27
    v_pk_add_f32 v[24:25], v[24:25], v[26:27]
    v_permlane16_swap_b32 v24, v25
    v_add_f32 v24, v24, v25
    v_lshlrev_b32 v20, 16, v20
    """)
    dpp_sum(a, [24], ROR[:2])
    a("""
    v_fmac_f32 v20, v24, v22
    v_cvt_pk_bf16_f32 v20, v20, v20
    s_mov_b32 exec_lo, 0x000f000f
    s_mov_b32 exec_hi, 0x000f000f
    buffer_store_short v20, v21, s[28:31], 0 offen
    s_mov_b64 exec, -1
    s_cmp_lg_u32 s2, 0
    s_cbranch_scc1 L_late_out
    s_mov_b64 exec, 1
    """)
    a("s_mov_b32 s55, 0x%x" % WS_GEN)
    a("buffer_store_dword %s, off, s[12:15], s55" % v(VTAG))
    a("s_mov_b64 exec, -1")
    if PROBE >= 0:
        a("s_waitcnt vmcnt(0)")
        a("s_memrealtime s[98:99]")
        a("s_waitcnt lgkmcnt(0)")
        a("s_sub_u32 s94, %s, s96" % ("s98" if PROBE == 13 else "s92"))
        a("s_mul_i32 s94, s94, 2")
        a("s_min_u32 s94, s94, 8000")
        a.label("L_probe")
        a("s_memrealtime s[96:97]")
        a("s_waitcnt lgkmcnt(0)")
        a("s_sub_u32 s95, s96, s98")
        a("s_cmp_lt_u32 s95, s94")
        a("s_cbranch_scc1 L_probe")
    a.label("L_late_out", reset=True)
    for ri, (key, off, o) in enumerate((("s56", "s49", OUT), ("s57", "s50", OUTM))):
        nxt = "L_late1" if ri == 0 else "L_done"
        a("s_cmp_eq_u32 %s, 0" % key)
        a("s_cbranch_scc1 %s" % nxt)
        a("s_cmp_eq_u32 %s, s60" % key)
        a("s_cbranch_scc1 %s" % nxt)
        a("s_cmp_eq_u32 %s, s61" % key)
        a("s_cbranch_scc1 %s" % nxt)
        a("buffer_store_dwordx4 %s, v250, s[28:31], %s offen" % (v(o, 4), off))
        if ri == 0:
            a.label("L_late1")
    a("s_branch L_done")
    a.label("L_ffn", reset=True)
    a.lg.append(Ins("s_load_dword s47, s[12:13], 0"))
    if HELP == 1:
        a("s_barrier")
    a("""
    s_mul_i32 s6, s3, 7
    s_add_u32 s6, s6, s58
    s_lshl_b32 s46, s6, 12
    """)
    a("s_add_u32 s46, s46, 0x%x               ; partial-sum slab" % WS_PART)
    a("s_add_u32 s45, s46, s62")
    a("s_cmp_lt_u32 s5, 4")
    a("s_cselect_b32 s45, s45, 0x%x" % OOB)
    a("s_mov_b64 s[32:33], s[18:19]")
    a("s_mov_b64 s[36:37], s[20:21]")
    a("s_mov_b64 s[40:41], s[22:23]")
    srd(a, 32, 512 * 3584)
    srd(a, 36, 512 * 3584)
    srd(a, 40, 1792 * 1024)
    a("""
    s_and_b32 s44, s5, 1
    s_lshl_b32 s44, s44, 7
    s_lshr_b32 s48, s5, 1
    s_lshl2_add_u32 s44, s48, s44
    v_bfe_u32 v4, v0, 2, 2
    v_lshl_add_u32 v4, v2, 4, v4
    v_add_u32 v4, s44, v4
    v_mul_u32_u24 v4, 3584, v4
    v_and_b32 v5, 3, v0
    v_lshl_add_u32 v4, v5, 4, v4
    s_lshl_b32 s48, s6, 6
    s_mul_i32 s7, s5, 12288
    s_mov_b32 m0, s7
    """)
    a("s_add_u32 s49, s48, %d" % (64 * 3584))
    a("s_add_u32 s50, s48, %d" % (256 * 3584))
    a("s_add_u32 s51, s48, %d" % (320 * 3584))
    stamp(a, 1)
    a("buffer_store_dwordx4 v[252:255], v250, s[12:15], s45 offen sc1")
    for sr in (32, 36):
        for i in range(4):
            a("buffer_load_dwordx4 v4, %s, %s offen lds" % (s(sr, 4), s(48 + i)))
            a("s_add_u32 m0, m0, 1024")
    a("""
    v_bfe_u32 v5, v0, 3, 3
    v_lshlrev_b32 v5, 10, v5
    v_and_b32 v4, 7, v0
    v_lshl_add_u32 v5, v4, 4, v5
    v_lshl_add_u32 v5, v3, 7, v5
    s_lshl_b32 s48, s6, 15
    """)
    for i in range(4):
        a("buffer_load_dwordx4 v5, s[40:43], s48 offen lds")
        if i < 3:
            a("s_add_u32 m0, m0, 1024")
            a("s_add_u32 s48, s48, 8192")
    get_tag(a)
    WF, WD = 64, 96
    a("v_lshlrev_b32 v6, %d, v0" % KSH)
    a("""
    v_bfe_u32 v4, v0, 2, 4                ; 4q + r
    v_and_b32 v5, 3, v0
    v_lshlrev_b32 v5, 3, v5
    v_lshl_add_u32 v8, v4, 6, v5
    v_add_u32 v8, s7, v8
    v_bfe_u32 v9, v0, 2, 2
    v_lshl_add_u32 v9, v2, 3, v9
    v_lshl_add_u32 v9, v9, 7, v5
    v_add_u32 v9, s7, v9
    """)
    a("v_mov_b32 v33, %s" % v(VTAG))
    a("v_mov_b32 v35, %s" % v(VTAG))
    a("""
    v_and_b32 v10, 1, v0
    v_cmp_eq_u32 s[50:51], 1, v10
    v_lshlrev_b32 v11, 7, v3
    v_lshl_add_u32 v11, v2, 4, v11
    v_lshlrev_b32 v12, 6, v10
    v_lshl_add_u32 v13, v2, 4, v12
    v_lshl_add_u32 v13, v3, 9, v13
    v_and_b32 v14, 30, v0
    v_lshl_add_u32 v14, v14, 1, v12
    v_and_b32 v12, 32, v0
    v_lshl_add_u32 v14, v12, 2, v14
    """)
    a("v_add_u32 v13, %d, v13                 ; partial write address" % LDS_RED)
    a("v_add_u32 v14, %d, v14                 ; partial read address" % LDS_RED)
    a("""
    v_lshlrev_b32 v15, 9, v3
    v_lshl_add_u32 v15, v1, 4, v15
    v_lshlrev_b32 v7, 3, v3
    v_mov_b32 v16, 0
    v_mov_b32 v18, 0
    """)
    a("v_add_u32 v7, %d, v7" % LDS_KEY2)
    a("v_mov_b32 v4, %d" % LDS_KEY2)
    a("s_waitcnt vmcnt(0)")
    stamp(a, 2)
    for kk in range(2):
        for mt in range(4):
            for hf in range(2):
                a("ds_read_b64_tr_b16 %s, v8 offset:%d" % (v(WF + 16 * kk + 4 * mt + 2 * hf, 2), (mt // 2) * 4096 + hf * 2048 + kk * 1024 + (mt % 2) * 32))
    for t in range(4):
        for hf in range(2):
            a("ds_read_b64_tr_b16 %s, v9 offset:%d" % (v(WD + 4 * t + 2 * hf, 2), 8192 + hf * 512 + t * 32))
    a("s_barrier")
    a("s_lshl_b32 s53, s6, %d" % KSH)
    a("s_add_u32 s53, s53, 0x%x" % (WS_KEYS + (129 << KSH)))
    a("s_cmp_eq_u32 s5, 0")
    a("s_cselect_b32 s53, s53, 0x%x" % OOB)
    a("v_mov_b32 v32, 0")
    a("v_mov_b32 v34, 0")
    a("s_mov_b64 exec, 1")
    a("buffer_store_dwordx4 v[32:35], off, s[12:15], s53 sc1")
    a("s_mov_b64 exec, -1")
    a("s_lshl_b32 s52, s3, 7")
    a("s_add_u32 s55, s52, 0x%x" % WS_PRE)
    a("s_add_u32 s52, s52, 0x%x" % WS_SEL)
    a("s_or_b32 s53, s58, s5")
    a("s_cselect_b32 s52, 0x%x, s52           ; one announcing wave per group" % OOB)
    a("s_cmp_ge_u32 s5, 3")
    a("s_cbranch_scc1 L_keys_done")
    a("s_mov_b32 s54, %d" % SPIN)
    if PRE:
        a.label("L_poll_pre")
        a("buffer_load_dword v17, off, s[12:15], s55 sc1")
        a("s_waitcnt vmcnt(0)")
        a("v_cmp_eq_u32 vcc, v17, %s" % v(VTAG))
        a("s_cmp_eq_u64 vcc, -1")
        poll_tail(a, "L_poll_pre")
        a("s_mov_b32 s54, %d" % SPIN)
    stamp(a, 10)
    a("v_cmp_gt_u32 vcc, 185, v0")
    a("s_mov_b32 s55, 0x%x" % WS_KEYS)
    a("s_mov_b64 exec, vcc")
    a.label("L_poll_keys")
    a("buffer_load_dwordx4 v[16:19], v6, s[12:15], s55 offen sc1")
    a("s_waitcnt vmcnt(0)")
    a("v_cmp_ne_u32 vcc, v17, %s" % v(VTAG))
    a("v_cmp_ne_u32 s[60:61], v19, %s" % v(VTAG))
    a("s_or_b64 vcc, vcc, s[60:61]")
    a("s_and_b64 exec, exec, vcc")
    a("s_cmp_eq_u64 exec, 0")
    poll_tail(a, "L_poll_keys")
    a("s_mov_b64 exec, -1")
    for mod in ROR + BC:
        a("v_min_u32_dpp v19, v16, v16 %s" % mod)
        a("v_max_u32_dpp v18, v18, v18 %s" % mod)
        a("v_max_u32_dpp v16, v16, v16 %s" % mod)
        a("v_max_u32 v18, v18, v19")
    a("""
    s_mov_b32 exec_lo, 0
    s_mov_b32 exec_hi, 0x80000000
    ds_write2_b32 v7, v16, v18 offset0:0 offset1:1
    s_mov_b64 exec, -1
    """)
    a.label("L_keys_done")
    a("s_waitcnt lgkmcnt(0)")
    a("s_barrier")
    stamp(a, 11)
    a("ds_read_b128 v[16:19], v4")
    a("ds_read_b64 v[20:21], v4 offset:16")
    a("s_mov_b32 s55, 0x%x" % WS_CAND)
    a("s_mov_b32 s54, %d" % SPIN)
    a("""
    s_waitcnt lgkmcnt(0)
    v_med3_u32 v36, v16, v18, v20
    v_max3_u32 v32, v16, v18, v20
    v_max3_u32 v34, v17, v19, v21
    v_max_u32 v34, v34, v36
    v_cndmask_b32 v36, v32, v34, s[50:51]
    v_bfe_u32 v37, v36, 5, 8
    v_and_b32 v36, 1, v36
    v_lshl_add_u32 v11, v37, 12, v11
    v_lshl_add_u32 v11, v36, 11, v11
    """)
    a.label("L_poll_h2")
    a("""
    buffer_load_dwordx4 v[16:19], v11, s[12:15], s55 offen sc1
    buffer_load_dwordx4 v[20:23], v11, s[12:15], s55 offen offset:64 sc1
    s_waitcnt vmcnt(0)
    v_max_u32 v36, v16, v20
    v_cmp_eq_u32 vcc, -1, v36
    s_cmp_eq_u64 vcc, 0
    """)
    poll_tail(a, "L_poll_h2")
    stamp(a, 12)
    C = 48
    for kk in range(2):
        for mt in range(4):
            c = v(C + 4 * mt, 4)
            a("v_mfma_f32_16x16x32_bf16 %s, %s, %s, %s" % (c, v(WF + 16 * kk + 4 * mt, 4), v(16 + 4 * kk, 4), "0" if kk == 0 else c))
    a("s_mov_b64 exec, 1")
    a("buffer_store_dwordx4 v[32:35], off, s[12:15], s52 sc1")
    a("s_mov_b32 exec_lo, 0x00030003")
    a("s_mov_b32 exec_hi, 0x00030003")
    for mt in range(4):
        a("ds_write_b128 v13, %s offset:%d" % (v(C + 4 * mt, 4), 128 * mt))
    a("s_mov_b64 exec, -1")
    a("s_waitcnt lgkmcnt(0)")
    stamp(a, 4)
    a("s_barrier")
    stamp(a, 5)
    a("""
    ds_read2st64_b32 v[16:17], v14 offset0:0 offset1:2
    ds_read2st64_b32 v[18:19], v14 offset0:4 offset1:6
    ds_read2st64_b32 v[20:21], v14 offset0:8 offset1:10
    ds_read2st64_b32 v[22:23], v14 offset0:12 offset1:14
    ds_read2st64_b32 v[24:25], v14 offset0:1 offset1:3
    ds_read2st64_b32 v[26:27], v14 offset0:5 offset1:7
    ds_read2st64_b32 v[28:29], v14 offset0:9 offset1:11
    ds_read2st64_b32 v[30:31], v14 offset0:13 offset1:15
    s_waitcnt lgkmcnt(4)
    v_pk_add_f32 v[16:17], v[16:17], v[18:19]
    v_pk_add_f32 v[20:21], v[20:21], v[22:23]
    v_pk_add_f32 v[16:17], v[16:17], v[20:21]
    v_add_f32 v16, v16, v17
    """)
    a("v_mul_f32 v17, %s, v16" % f32(-LOG2E))
    a("""
    v_exp_f32 v17, v17
    s_waitcnt lgkmcnt(0)
    v_pk_add_f32 v[24:25], v[24:25], v[26:27]
    v_add_f32 v17, 1.0, v17
    v_pk_add_f32 v[28:29], v[28:29], v[30:31]
    v_rcp_f32 v17, v17
    v_pk_add_f32 v[24:25], v[24:25], v[28:29]
    v_add_f32 v24, v24, v25
    v_mul_f32 v16, v16, v17
    v_mul_f32 v16, v16, v24
    v_mov_b32_dpp v17, v16 row_ror:14 row_mask:0xf bank_mask:0xf
    v_cvt_pk_bf16_f32 v20, v16, v17
    v_mov_b32_dpp v21, v20 row_ror:12 row_mask:0xf bank_mask:0xf
    v_mov_b32_dpp v22, v20 row_ror:8 row_mask:0xf bank_mask:0xf
    v_mov_b32_dpp v23, v20 row_ror:4 row_mask:0xf bank_mask:0xf
    """)
    for t in range(4):
        a("v_mfma_f32_16x16x32_bf16 %s, v[20:23], %s, 0" % (v(C + 4 * t, 4), v(WD + 4 * t, 4)))
    a("""
    s_mov_b64 exec, 0xffff
    v_mov_b32 v50, v52
    v_mov_b32 v51, v53
    buffer_store_dwordx4 v[48:51], v15, s[12:15], s46 offen sc1
    v_mov_b32 v58, v60
    v_mov_b32 v59, v61
    buffer_store_dwordx4 v[56:59], v15, s[12:15], s46 offen offset:256 sc1
    s_mov_b64 exec, -1
    """)
    stamp(a, 3)
    a.label("L_done", reset=True)
    stamp_end(a)
    a.label("L_end")
    a("s_endpgm")
    desc = """.section .rodata,"a"
.p2align 6
.amdhsa_kernel %s
  .amdhsa_next_free_vgpr 256
  .amdhsa_next_free_sgpr 102
  .amdhsa_accum_offset 256
  .amdhsa_group_segment_fixed_size 0
  .amdhsa_kernarg_size 120
  .amdhsa_user_sgpr_count 2
  .amdhsa_user_sgpr_kernarg_segment_ptr 1
  .amdhsa_system_sgpr_workgroup_id_x 1
.end_amdhsa_kernel
""" % KN
    return HEADER + "; @launch grid=(256,1,1) block=(512,1,1) lds=%d\n" % LDS_TOTAL + a.text() + desc


if __name__ == "__main__":
    out = sys.argv[1] if len(sys.argv) > 1 and sys.argv[1].endswith(".s") else "v13.s"
    open(out, "w").write(build())
    print("wrote", out)
```

```python
import sys, struct
from asmlib import Asm, Ins, v, s

NAME = "adaLN_cond__spectral_fnet__moe_arch_mod__prompt"
KN = NAME + "_kernel"
HEADER = open("cdna_kernels/%s.s.ref" % NAME).read().split("; Override launch geometry")[0]


def opt(name, default):
    for x in sys.argv:
        if x.startswith("--%s=" % name):
            return int(x.split("=")[1], 0)
    return default


STAMPS = "--stamps" in sys.argv
PROBE = opt("probe", -1)
KSH = opt("ksh", 6)
FSH = opt("fsh", 8)
HELP = opt("help", 1)
POIS = opt("pois", 0)
ADEL = opt("adel", 2)
BT = opt("bt", 8)
SENT = opt("sent", 0)
FDEL = opt("fdel", 0)
SW = opt("sw", 4)
PRE = opt("pre", 3)
CPOS = opt("cpos", 0)
CPF = opt("cpf", 0)
TOUCH = opt("touch", 1)

WS_MOD = 0x0
WS_GEN = 0x3000
WS_SEL = 0x3400
WS_PRE = 0x3800
WS_FLAG = 0x8000
WS_KEYS = 0x40000
WS_PART = 0x80000
WS_CAND = 0x100000
WS_INTER = 0x200000
WS_SIZE = 0x400000
WS_STAMP = 0x600000
if STAMPS:
    WS_SIZE = 0x800000
EPS = 1e-5
TAGC = 0x9E3779B9
SPIN = 1 << 15
OOB = 0x7fff0000
PITCH = 288
XWG = 120

LDS_U = 20480
LDS_VEC = LDS_U + 20480
LDS_KEY = LDS_VEC + 8192
LDS_RED = 98304
LDS_KEY2 = LDS_RED + 4096
LDS_TOTAL = LDS_KEY2 + 64

FR, FI, TC, TS, G, SA = 200, 204, 208, 216, 224, 240
VQ4, VTAG, VL16 = 248, 249, 250
LOG2E = 1.4426950408889634


def f32(x):
    return "0x%08x" % struct.unpack("<I", struct.pack("<f", x))[0]


def srd(a, base, nbytes):
    a("s_mov_b32 %s, 0x%x" % (s(base + 2), nbytes))
    a("s_mov_b32 %s, 0x20000" % s(base + 3))


NST = 14


def stamp(a, i):
    if PROBE >= 0 and i == 0:
        a("s_memrealtime s[96:97]")
    if PROBE == i:
        a("s_memrealtime s[92:93]")
    if not STAMPS:
        return
    if i == 0:
        a("s_memrealtime s[96:97]")
        for k in range(1, NST):
            a("s_mov_b32 %s, 0" % s(64 + 2 * k))
    a("s_memtime %s" % s(64 + 2 * i, 2))


def stamp_end(a):
    if not STAMPS:
        return
    a("s_waitcnt vmcnt(0)")
    a("s_memtime %s" % s(64 + 2 * (NST - 1), 2))
    a("s_memrealtime s[98:99]")
    a("s_mov_b64 exec, 1")
    a("s_lshl_b32 s93, s2, 3")
    a("s_add_u32 s93, s93, s5")
    a("s_lshl_b32 s93, s93, 6")
    a("s_add_u32 s93, s93, 0x%x" % WS_STAMP)
    a("s_waitcnt lgkmcnt(0)")
    a("v_mov_b32 v16, s96")
    a("v_mov_b32 v17, s98")
    for k in range(NST):
        a("v_mov_b32 %s, %s" % (v(18 + k), s(64 + 2 * k)))
    for k in range(4):
        a("buffer_store_dwordx4 %s, off, s[12:15], s93 offset:%d" % (v(16 + 4 * k, 4), 16 * k))


ROR = ["row_ror:%d row_mask:0xf bank_mask:0xf" % r for r in (8, 4, 2, 1)]
BC = ["row_bcast:15 row_mask:0xa bank_mask:0xf", "row_bcast:31 row_mask:0xc bank_mask:0xf"]


def dpp_sum(a, regs_, mods):
    for mod in mods:
        for r in regs_:
            a("v_add_f32_dpp %s, %s, %s %s" % (v(r), v(r), v(r), mod))


def poll_tail(a, label, cnt="s54"):
    a("s_cbranch_scc1 %s_ok" % label)
    a("s_sub_u32 %s, %s, 1" % (cnt, cnt))
    a("s_cbranch_scc0 %s" % label)
    a.label(label + "_ok")


def setup(a):
    a.label("L_setup", reset=True)
    a("""
    s_lshr_b32 s60, s59, 5
    s_lshl3_add_u32 s60, s60, s3
    s_and_b32 s60, s60, 31
    s_bfe_u32 s61, s59, 0x20003
    s_lshl_b32 s61, s61, 9
    s_add_u32 s61, s61, s60
    s_sub_u32 s94, s61, 992
    s_cmp_ge_u32 s61, 1024
    s_cselect_b32 s94, s94, s61
    s_mov_b32 s95, 0xffff0000
    s_cselect_b32 s95, s95, 0x0000ffff
    s_cmp_eq_u32 s60, 0
    s_cselect_b32 s61, s94, s61
    s_cselect_b32 s95, s95, -1
    """)
    a("s_cselect_b32 s94, 0, %s" % f32(-0.25))
    a("""
    s_cmp_eq_u32 s59, 128
    s_cselect_b32 s61, 1024, s61
    v_lshrrev_b32 v160, 1, v1
    v_lshlrev_b32 v160, 6, v160
    v_add_u32 v160, s61, v160
    v_cvt_f32_u32 v160, v160
    v_and_b32 v161, 1, v1
    v_cvt_f32_u32 v161, v161
    """)
    a("v_mul_f32 v160, %s, v160" % f32(1 / 2048))
    a("v_mul_f32 v161, %s, v161" % f32(0.25))
    a("v_fmac_f32 v161, v160, %s" % v(VQ4))
    for ks in range(2):
        for r in range(4):
            if r:
                a("v_add_f32 v161, v161, v160")
            elif ks:
                a("v_fmac_f32 v161, %s, v160" % f32(13.0))
            a("v_add_f32 v162, s94, v161")
            a("v_cos_f32 v163, v161")
            a("v_cos_f32 v162, v162")
            if ks or r:
                k = SA + 4 * ks + r - 1
                a("v_and_b32 %s, s95, %s" % (v(k), v(k)))
            a("v_cvt_pk_bf16_f32 %s, v163, v162" % v(SA + 4 * ks + r))
    a("v_and_b32 %s, s95, %s" % (v(SA + 7), v(SA + 7)))
    t = [v(160 + i) for i in range(15)]
    a("v_cvt_f32_u32 %s, v1" % t[0])
    a("v_mul_f32 %s, %s, %s" % (t[0], f32(1 / 512), t[0]))
    a("v_mul_f32 %s, %s, %s" % (t[1], t[0], v(VQ4)))
    a("v_mul_f32 %s, %s, %s" % (t[2], f32(16.0), t[0]))
    for j in range(4):
        if j:
            a("v_add_f32 %s, %s, %s" % (t[1], t[1], t[0]))
        a("v_mul_f32 %s, %s, %s" % (t[3], f32(32.0), t[1]))
        a("v_mul_f32 %s, %s, %s" % (t[4], f32(16.0), t[1]))
        a("v_add_f32 %s, %s, %s" % (t[5], t[1], t[2]))
        a("v_cos_f32 %s, %s" % (v(TC + j), t[1]))
        a("v_sin_f32 %s, %s" % (v(TS + j), t[1]))
        a("v_cos_f32 %s, %s" % (t[6], t[3]))
        a("v_sin_f32 %s, %s" % (t[3], t[3]))
        a("v_cos_f32 %s, %s" % (v(TC + 4 + j), t[5]))
        a("v_sin_f32 %s, %s" % (v(TS + 4 + j), t[5]))
        a("v_cos_f32 %s, %s" % (t[7 + j], t[4]))
        a("v_sin_f32 %s, %s" % (t[11 + j], t[4]))
        a("v_cvt_pk_bf16_f32 %s, %s, %s" % (v(FR + j), t[6], t[3]))
        a("v_cvt_pk_bf16_f32 %s, -%s, %s" % (v(FI + j), t[3], t[6]))
    for j in range(4):
        a("v_cvt_pk_bf16_f32 %s, %s, %s" % (v(G + j), t[7 + 2 * j], t[8 + 2 * j]))
    a("v_lshlrev_b32 %s, 31, v1" % t[3])
    a("v_lshrrev_b32 %s, 16, %s" % (t[4], t[3]))
    a("v_or_b32 %s, %s, %s" % (t[3], t[3], t[4]))
    for j in range(4):
        a("v_xor_b32 %s, s63, %s" % (v(G + 4 + j), v(G + j)))
        a("v_xor_b32 %s, %s, %s" % (v(G + 8 + j), t[3], v(G + j)))
        a("v_xor_b32 %s, s63, %s" % (v(G + 12 + j), v(G + 8 + j)))
    a("s_waitcnt lgkmcnt(0)")
    a("s_setpc_b64 s[100:101]")


def touch(a, half, dst, first):
    if first:
        a("""
        v_bfe_u32 v4, v0, 3, 3
        v_and_b32 v5, 7, v0
        v_lshlrev_b32 v5, 6, v5
        s_mov_b32 s34, 0x1c0000
        s_mov_b32 s35, 0x20000
        """)
    a("""
    s_and_b32 s46, s44, 31
    s_mul_i32 s48, s3, 448
    s_mul_i32 s49, s46, 57344
    s_add_u32 s48, s48, s49
    s_lshl_b32 s49, s3, 5
    s_add_u32 s49, s49, s46
    s_mul_i32 s49, s49, 7168
    """)
    if half:
        a("s_add_u32 s48, s48, 28672")
        a("s_add_u32 s49, s49, 512")
    a("""
    s_cmp_lt_u32 s44, 32
    s_cselect_b64 s[32:33], s[18:19], s[20:21]
    s_movk_i32 s50, 3584
    s_cmp_ge_u32 s44, 64
    s_cselect_b64 s[32:33], s[22:23], s[32:33]
    s_cselect_b32 s50, 1024, s50
    s_cselect_b32 s48, s49, s48
    v_mad_u32_u24 v6, v4, s50, v5
    """)
    a("buffer_load_dword %s, v6, s[32:35], s48 offen" % v(dst))


def get_tag(a):
    a("s_waitcnt lgkmcnt(0)")
    a("s_add_u32 s47, s47, 0x%x               ; hand-off tag of this launch" % TAGC)
    a("v_mov_b32 %s, s47" % v(VTAG))


def flag_store(a):
    a("s_lshl_b32 s53, s2, %d" % FSH)
    a("s_add_u32 s53, s53, 0x%x" % WS_FLAG)
    a("s_cmp_eq_u32 s5, 0")
    a("s_cselect_b32 s53, s53, 0x%x" % OOB)
    a("s_mov_b64 exec, 1")
    a("buffer_store_dword %s, off, s[12:15], s53 sc1" % v(VTAG))
    a("s_mov_b64 exec, -1")


def build():
    a = Asm()
    a.raw('.amdgcn_target "amdgcn-amd-amdhsa--gfx950"')
    a.raw(".text")
    a.raw(".globl %s" % KN)
    a.raw(".p2align 8")
    a.raw(".type %s,@function" % KN)
    a.label(KN, reset=True)
    a("s_cmp_ge_u32 s2, 256")
    a("s_cbranch_scc1 L_end")
    stamp(a, 0)
    a("s_load_dwordx2 s[8:9], s[0:1], 0")
    a("s_load_dwordx2 s[12:13], s[0:1], 112")
    a("s_load_dwordx16 s[16:31], s[0:1], 48")
    if CPF:
        a("s_getpc_b64 s[60:61]")
        a.label("L_cpf_pc")
        a("v_lshlrev_b32 v192, %d, v0" % (7 if CPF == 1 else 6))
        a("v_cmp_gt_u32 vcc, L_end-L_cpf_pc, v192")
        a("v_mov_b32 v193, 0")
        a("v_lshl_add_u64 v[192:193], v[192:193], 0, s[60:61]")
        a("s_and_saveexec_b64 s[60:61], vcc")
        a("s_cbranch_execz L_cpf")
        n = len(a.vm)
        a("global_load_dword v198, v[192:193], off")
        del a.vm[n:]
        a.label("L_cpf")
        a("s_mov_b64 exec, -1")
    a("""
    v_lshrrev_b32 v3, 6, v0               ; wave
    v_and_b32 v1, 15, v0                  ; n
    v_bfe_u32 v2, v0, 4, 2                ; q
    v_readfirstlane_b32 s5, v3
    s_and_b32 s3, s2, 7                   ; x
    s_lshr_b32 s4, s2, 3                  ; y
    v_and_b32 v250, 63, v0
    v_lshlrev_b32 v250, 4, v250           ; lane*16
    v_mov_b32 v252, -1
    v_mov_b32 v253, -1
    v_mov_b32 v254, -1
    v_mov_b32 v255, -1
    s_mov_b32 s63, 0x80000000
    """)
    a("v_cvt_f32_u32 %s, v2" % v(VQ4))
    srd(a, 8, 2048 * 1024)
    srd(a, 12, WS_SIZE)
    a("v_mul_f32 %s, 4.0, %s" % (v(VQ4), v(VQ4)))
    a("s_lshl_b32 s62, s5, 10")
    a("s_cmp_ge_u32 s4, 16")
    st0 = a.fork()
    a("s_cbranch_scc1 L_notdft")
    a("""
    s_movk_i32 s59, 128
    s_lshr_b32 s6, s4, 2
    s_lshl3_add_u32 s6, s6, s3            ; s2 index
    s_and_b32 s7, s4, 3
    v_lshlrev_b32 v5, 4, v1
    """)

    def store_addr():
        a("""
        v_and_b32 v8, 3, v3                   ; M tile
        v_lshlrev_b32 v13, 1, v2
        v_lshl_add_u32 v13, v8, 3, v13
        v_lshl_add_u32 v13, v13, 16, v5
        s_lshl_b32 s54, s6, 11
        s_lshl_b32 s55, s7, 9
        s_add_u32 s54, s54, s55
        """)
        a("s_add_u32 s54, s54, 0x%x" % WS_INTER)
        a("s_add_u32 s55, s54, 0x10000")
    a("s_lshl_b32 s44, s6, 10")
    for g in range(4):
        a("s_add_u32 s46, s7, %d" % g)
        a("s_and_b32 s46, s46, 3")
        a("s_lshl_b32 s46, s46, 8")
        a("s_add_u32 %s, s46, s44" % s(48 + g))
    a("""
    s_lshl1_add_u32 s46, s7, s5
    s_and_b32 s46, s46, 7
    s_lshl_b32 s46, s46, 3
    v_add_u32 v4, s46, v2
    v_lshl_or_b32 v6, v4, 15, v5
    v_add_u32 v7, 0x20000, v6
    s_waitcnt lgkmcnt(0)
    """)
    stamp(a, 1)
    X = 16
    for i in range(4):
        for g in range(2):
            a("buffer_load_dwordx4 %s, %s, s[8:11], %s offen" % (v(X + 16 * g + 4 * i, 4), v(6 + g), s(48 + i)))
    a("s_load_dword s47, s[12:13], 0x%x" % WS_GEN)
    a("s_branch L_dft")
    mark = len(a.lines)
    a.label("L_dft")
    store_addr()
    a("v_lshrrev_b32 v12, 8, v0")
    a("v_lshl_add_u32 v13, v12, 8, v13")
    if POIS == 4:
        a("s_barrier")
    if POIS < 5:
        a("buffer_store_dwordx4 v[252:255], v13, s[12:15], s54 offen sc1")
        a("buffer_store_dwordx4 v[252:255], v13, s[12:15], s55 offen sc1")
    WA = 48
    a("""
    v_lshrrev_b32 v9, 1, v1
    v_lshl_add_u32 v9, v8, 3, v9          ; slot
    v_and_b32 v10, 1, v1
    v_lshl_or_b32 v11, v9, 1, v10
    v_cmp_eq_u32 vcc, 1, v11
    v_cvt_f32_u32 v10, v10
    v_lshlrev_b32 v15, 31, v9
    v_cndmask_b32 v11, v9, 32, vcc
    """)
    a("v_mul_f32 v10, %s, v10" % f32(0.25))
    a("v_cvt_f32_u32 v11, v11")
    a("v_cndmask_b32 v10, v10, 0, vcc")
    a("v_mul_f32 v11, %s, v11" % f32(1 / 64))
    a("v_fmac_f32 v10, v11, %s" % v(VQ4))
    a("v_lshrrev_b32 v14, 16, v15")
    a("v_or_b32 v15, v15, v14")
    T = 56
    a("v_cos_f32 %s, v10" % v(T))
    for j in range(1, 8):
        a("v_add_f32 v10, v10, v11" if j != 4 else "v_fmac_f32 v10, %s, v11" % f32(13.0))
        a("v_cos_f32 %s, v10" % v(T + j))
    for j in range(4):
        a("v_cvt_pk_bf16_f32 %s, %s, %s" % (v(WA + j), v(T + 2 * j), v(T + 2 * j + 1)))
    for j in range(4):
        a("v_xor_b32 %s, v15, %s" % (v(WA + 4 + j), v(WA + j)))
    a("""
    v_mul_u32_u24 v10, 288, v4
    v_add_u32 v10, v10, v5
    v_bfe_u32 v11, v0, 2, 4
    v_mul_u32_u24 v11, 288, v11
    v_and_b32 v14, 3, v0
    v_lshl_add_u32 v11, v14, 3, v11
    v_lshl_add_u32 v11, v12, 7, v11
    s_mov_b32 s52, 0x3f803f80
    v_mov_b32 v56, 0
    v_mov_b32 v57, 0
    v_mov_b32 v58, 0
    v_mov_b32 v59, 0
    """)
    stamp(a, 2)
    U = 64
    for i in range(4):
        for g in range(2):
            a.wait_vm_for(v(X + 16 * g + 4 * i, 4))
            if i == 0 and g == 0:
                stamp(a, 3)
            for d in range(4):
                x = v(X + 16 * g + 4 * i + d)
                a("v_dot2c_f32_bf16 %s, s52, %s" % (v(56 + g), x))
                a("v_dot2c_f32_bf16 %s, %s, %s" % (v(58 + g), x, x))
            if i == 0:
                for d in range(4):
                    a("v_lshlrev_b32 %s, 16, %s" % (v(U + 8 * g + 2 * d), v(X + 16 * g + d)))
                    a("v_and_b32 %s, 0xffff0000, %s" % (v(U + 8 * g + 2 * d + 1), v(X + 16 * g + d)))
    stamp(a, 4)
    dpp_sum(a, [56, 57, 58, 59], ROR)
    for g in range(2):
        a("v_mul_f32 %s, %s, %s" % (v(56 + g), f32(1 / 512), v(56 + g)))
    for g in range(2):
        a("v_mul_f32 %s, %s, %s" % (v(60 + 2 * g), v(56 + g), v(56 + g)))
    for g in range(2):
        a("v_sub_f32 %s, %s, %s" % (v(60 + 2 * g), f32(EPS), v(60 + 2 * g)))
    for g in range(2):
        a("v_fmac_f32 %s, %s, %s" % (v(60 + 2 * g), f32(1 / 512), v(58 + g)))
    for g in range(2):
        a("v_rsq_f32 %s, %s" % (v(60 + 2 * g), v(60 + 2 * g)))
    for g in range(2):
        a("v_mul_f32 %s, %s, %s" % (v(61 + 2 * g), v(56 + g), v(60 + 2 * g)))
    for g in range(2):
        p = v(60 + 2 * g, 2)
        for d in range(4):
            u = v(U + 8 * g + 2 * d, 2)
            a("v_pk_fma_f32 %s, %s, %s, %s op_sel:[0,0,1] op_sel_hi:[1,0,1] neg_lo:[0,0,1] neg_hi:[0,0,1]" % (u, u, p, p))
        for d in range(4):
            a("v_cvt_pk_bf16_f32 %s, %s, %s" % (v(X + 16 * g + d), v(U + 8 * g + 2 * d), v(U + 8 * g + 2 * d + 1)))
        a("ds_write_b128 v10, %s offset:%d" % (v(X + 16 * g, 4), 4 * PITCH * g))
    a("s_waitcnt vmcnt(0)")
    get_tag(a)
    a("s_barrier")
    stamp(a, 5)
    B = 64
    for ks in range(2):
        for i in range(4):
            for hf in range(2):
                a("ds_read_b64_tr_b16 %s, v11 offset:%d" % (v(B + 16 * ks + 4 * i + 2 * hf, 2), ks * 32 * PITCH + hf * 16 * PITCH + i * 32))
    flag_store(a)
    ACC = 96
    for ks in range(2):
        for i in range(4):
            a.wait_lg_for(v(B + 16 * ks + 4 * i, 4))
            acc = v(ACC + 4 * i, 4)
            a("v_mfma_f32_16x16x32_bf16 %s, %s, %s, %s" % (acc, v(WA + 4 * ks, 4), v(B + 16 * ks + 4 * i, 4), "0" if ks == 0 else acc))
    O = 16
    for i in range(4):
        for p in range(2):
            a("v_cvt_pk_bf16_f32 %s, %s, %s" % (v(O + 4 * p + i), v(ACC + 4 * i + 2 * p), v(ACC + 4 * i + 2 * p + 1)))
    for p in range(2):
        a("buffer_store_dwordx4 %s, v13, s[12:15], %s offen sc1" % (v(O + 4 * p, 4), s(54 + p)))
    stamp(a, 6)
    a("s_cmp_lg_u32 s2, %d" % XWG)
    a("s_cbranch_scc1 L_notx")
    a("s_call_b64 s[100:101], L_setup")
    a("s_branch L_p2")
    a.label("L_notx")
    if ADEL == 1:
        a("s_waitcnt vmcnt(0)")
    a("s_cmp_lt_u32 s4, 7")
    a("s_cbranch_scc1 L_ffn")
    if ADEL == 2:
        a("s_waitcnt vmcnt(0)")
    a("s_sub_u32 s44, s4, 7")
    a("s_lshl3_add_u32 s44, s44, s5")
    for k in range(2):
        touch(a, 1, 196 + k, k == 0)
        if k == 0:
            a("s_add_u32 s44, s44, 64")
            a("s_cmp_ge_u32 s44, 96")
            a("s_cbranch_scc1 L_done")
    a("s_branch L_done")
    dft_block = a.lines[mark:]
    del a.lines[mark:]
    a.label("L_notdft")
    a.join(st0)
    a("s_sub_u32 s59, s2, 128")
    srd(a, 36, 512 * 6144)
    a("s_cmp_ge_u32 s4, 22")
    st1 = a.fork()
    a("s_cbranch_scc1 L_notmod")
    srd(a, 32, 1024)
    a("""
    s_sub_u32 s6, s2, 128
    s_lshl_b32 s48, s6, 7
    """)
    for i in range(1, 8):
        a("s_add_u32 %s, s48, %d" % (s(48 + i), 6144 * i))
    a("""
    v_lshrrev_b32 v4, 3, v0
    v_and_b32 v5, 7, v0
    v_mul_u32_u24 v6, 0xc000, v4
    v_lshl_add_u32 v6, v5, 4, v6
    v_and_b32 v7, 3, v0
    v_lshlrev_b32 v7, 2, v7
    v_lshl_add_u32 v7, v4, 4, v7
    s_waitcnt lgkmcnt(0)
    s_mov_b64 s[36:37], s[26:27]
    s_mov_b64 s[32:33], s[24:25]
    """)
    stamp(a, 1)
    a("buffer_load_dword v8, v7, s[32:35], 0 offen")
    W = 16
    for i in range(8):
        a("buffer_load_dwordx4 %s, v6, s[36:39], %s offen" % (v(W + 4 * i, 4), s(48 + i)))
    a("s_load_dword s47, s[12:13], 0x%x" % WS_GEN)
    a("s_call_b64 s[100:101], L_setup")
    a("s_branch L_mod")
    mark = len(a.lines)
    a.label("L_mod")
    a("""
    s_mov_b32 s44, 0x05040100
    s_mov_b32 s46, 0x07060302
    s_lshr_b32 s48, s6, 3
    s_cmp_eq_u32 s48, 1
    s_cselect_b32 s50, 1.0, 0
    s_cmp_eq_u32 s48, 4
    s_cselect_b32 s50, 1.0, s50
    v_lshrrev_b32 v6, 2, v0
    v_and_b32 v7, 3, v0
    v_lshl_add_u32 v6, v7, 4, v6
    v_lshlrev_b32 v9, 2, v0
    s_and_b32 s49, s6, 7
    s_lshl_b32 s58, s49, 8
    s_cmp_lt_u32 s6, 16
    s_cbranch_scc1 L_mod_pos
    v_bfe_u32 v6, v0, 2, 2
    v_lshl_add_u32 v6, v6, 4, v7
    v_lshl_add_u32 v6, v2, 2, v6
    v_lshlrev_b32 v9, 2, v1
    v_lshl_add_u32 v9, v2, 8, v9
    s_and_b32 s58, s49, 3
    s_lshl_b32 s58, s58, 6
    s_lshr_b32 s49, s49, 2
    s_lshl_b32 s49, s49, 10
    s_add_u32 s58, s58, s49
    """)
    a.label("L_mod_pos")
    a("""
    s_lshl_b32 s49, s48, 11
    s_add_u32 s58, s58, s49
    v_lshlrev_b32 v6, 2, v6
    v_lshlrev_b32 v10, 8, v3
    v_lshl_add_u32 v10, v5, 5, v10
    v_lshl_add_u32 v10, v2, 3, v10
    """)
    for j in range(8):
        a("v_mov_b32 %s, 0" % v(48 + j))
    stamp(a, 2)
    a.wait_vm_for("v8")
    get_tag(a)
    stamp(a, 3)
    a("v_lshlrev_b32 v11, 16, v8")
    a("v_and_b32 v12, 0xffff0000, v8")
    a("v_mul_f32 v13, %s, v11" % f32(-LOG2E))
    a("v_mul_f32 v14, %s, v12" % f32(-LOG2E))
    a("""
    v_exp_f32 v13, v13
    v_exp_f32 v14, v14
    v_add_f32 v13, 1.0, v13
    v_add_f32 v14, 1.0, v14
    v_rcp_f32 v13, v13
    v_rcp_f32 v14, v14
    v_mul_f32 v11, v11, v13
    v_mul_f32 v12, v12, v14
    v_cvt_pk_bf16_f32 v8, v11, v12
    """)
    for p in range(4):
        a("v_mov_b32_dpp %s, v8 quad_perm:[%d,%d,%d,%d] row_mask:0xf bank_mask:0xf" % (v(12 + p), p, p, p, p))
    for p in range(4):
        a.wait_vm_for(v(W + 8 * p, 8))
        for jj in range(4):
            a("v_perm_b32 %s, %s, %s, s44" % (v(56 + 2 * jj), v(W + 8 * p + 4 + jj), v(W + 8 * p + jj)))
            a("v_perm_b32 %s, %s, %s, s46" % (v(57 + 2 * jj), v(W + 8 * p + 4 + jj), v(W + 8 * p + jj)))
        for j in range(8):
            a("v_dot2c_f32_bf16 %s, %s, %s" % (v(48 + j), v(12 + p), v(56 + j)))
    stamp(a, 4)
    for j in range(4):
        a("v_permlane32_swap_b32 %s, %s" % (v(48 + j), v(52 + j)))
    for j in range(4):
        a("v_add_f32 %s, %s, %s" % (v(48 + j), v(48 + j), v(52 + j)))
    for j in range(2):
        a("v_permlane16_swap_b32 %s, %s" % (v(48 + j), v(50 + j)))
    for j in range(2):
        a("v_add_f32 %s, %s, %s" % (v(48 + j), v(48 + j), v(50 + j)))
    dpp_sum(a, [48, 49], ROR[:1])
    a("""
    s_mov_b32 exec_lo, 0x00ff00ff
    s_mov_b32 exec_hi, 0x00ff00ff
    ds_write_b64 v10, v[48:49]
    s_mov_b64 exec, -1
    s_waitcnt lgkmcnt(0)
    s_barrier
    """)
    stamp(a, 5)
    a("""
    s_cmp_lg_u32 s5, 0
    s_cbranch_scc1 L_p2
    ds_read2st64_b32 v[48:49], v6 offset0:0 offset1:1
    ds_read2st64_b32 v[50:51], v6 offset0:2 offset1:3
    ds_read2st64_b32 v[52:53], v6 offset0:4 offset1:5
    ds_read2st64_b32 v[54:55], v6 offset0:6 offset1:7
    s_waitcnt lgkmcnt(0)
    v_add_f32 v48, v48, v49
    v_add_f32 v50, v50, v51
    v_add_f32 v52, v52, v53
    v_add_f32 v54, v54, v55
    v_add_f32 v48, v48, v50
    v_add_f32 v52, v52, v54
    v_add_f32 v48, v48, v52
    v_cvt_pk_bf16_f32 v48, v48, v48
    v_and_b32 v48, 0xffff0000, v48
    v_add_f32 v48, s50, v48
    v_mov_b32 v49, v249
    v_mov_b32_dpp v50, v48 quad_perm:[1,1,3,3] row_mask:0xf bank_mask:0xf
    v_cvt_pk_bf16_f32 v48, v48, v50
    s_mov_b32 exec_lo, 0x55555555
    s_mov_b32 exec_hi, 0x55555555
    buffer_store_dwordx2 v[48:49], v9, s[12:15], s58 offen sc1
    s_mov_b64 exec, -1
    """)
    mod_block = a.lines[mark:]
    del a.lines[mark:]
    a.label("L_notmod")
    a.join(st1)
    a("""
    s_sub_u32 s58, s4, 22
    s_lshl3_add_u32 s7, s58, s5
    s_mul_i32 s7, s7, 0x6000
    s_lshl_b32 s44, s3, 7
    s_add_u32 s7, s7, s44
    s_add_u32 s7, s7, 0x120000
    s_add_u32 s44, s7, 4096
    v_mul_u32_u24 v4, 6144, v2
    v_bfe_u32 v5, v0, 3, 1
    v_lshl_add_u32 v4, v5, 10, v4
    v_and_b32 v5, 7, v0
    v_lshl_add_u32 v4, v5, 4, v4
    s_waitcnt lgkmcnt(0)
    s_mov_b64 s[36:37], s[26:27]
    """)
    if HELP == 2:
        a("s_cmp_lt_u32 s4, 29")
        a("s_cbranch_scc1 L_nohelp")
    if HELP:
        a("buffer_load_dwordx4 v[180:183], v4, s[36:39], s7 offen")
        a("buffer_load_dwordx4 v[184:187], v4, s[36:39], s7 offen offset:2048")
        a("buffer_load_dwordx4 v[188:191], v4, s[36:39], s44 offen")
    a.label("L_nohelp")
    a("s_load_dword s47, s[12:13], 0x%x" % WS_GEN)
    a("s_call_b64 s[100:101], L_setup")
    get_tag(a)
    if BT:
        a("s_cmp_ge_u32 s5, %d" % BT)
        a("s_cbranch_scc1 L_p2")
        a("s_mul_i32 s44, s58, %d" % BT)
        a("s_add_u32 s44, s44, s5")
        touch(a, 0, 196, True)
    a("s_branch L_p2")
    setup(a)
    a.lines += dft_block + mod_block
    a.label("L_p2", reset=True)
    a("""
    s_lshl_b32 s45, s59, 12
    s_add_u32 s44, s45, s62
    """)
    a("s_add_u32 s45, s45, 0x%x               ; candidate slots of this workgroup" % WS_CAND)
    a("s_add_u32 s44, s44, 0x%x" % WS_CAND)
    a("s_cmp_lt_u32 s5, 4")
    a("s_cselect_b32 s44, s44, 0x%x" % OOB)
    if CPOS == 0:
        a("buffer_store_dwordx4 v[252:255], v250, s[12:15], s44 offen sc1")
    srd(a, 28, 2048 * 1024)
    a("s_mov_b64 s[24:25], s[16:17]")
    srd(a, 24, 1024)
    a("""
    s_lshl_b32 s56, s5, 6
    s_add_u32 s56, s56, s61
    s_sub_u32 s57, 2048, s56
    s_lshl_b32 s50, s57, 10
    s_lshl_b32 s49, s56, 10
    v_lshlrev_b32 v7, 5, v1
    v_lshl_add_u32 v7, v2, 3, v7          ; 32n + 8q
    buffer_load_dwordx2 v[56:57], v7, s[8:11], s49 offen
    buffer_load_dwordx2 v[58:59], v7, s[8:11], s49 offen offset:512
    buffer_load_dwordx2 v[84:85], v7, s[8:11], s50 offen
    buffer_load_dwordx2 v[86:87], v7, s[8:11], s50 offen offset:512
    buffer_load_dwordx2 v[60:61], v7, s[24:27], 0 offen
    buffer_load_dwordx2 v[62:63], v7, s[24:27], 0 offen offset:512
    s_lshl1_add_u32 s52, s4, s5
    s_and_b32 s52, s52, 7
    s_lshl_b32 s53, s52, 8
    v_lshlrev_b32 v4, 4, v1
    v_add_u32 v4, s53, v4                 ; cb*256 + n*16
    v_lshl_add_u32 v5, v2, 13, v4
    s_lshl_b32 s40, s60, 16
    s_lshl_b32 s53, s52, 3
    """)
    a("s_add_u32 s40, s40, 0x%x" % WS_INTER)
    a("""
    s_add_u32 s41, s40, 0x1000
    s_add_u32 s42, s40, 0x8000
    s_add_u32 s43, s40, 0x9000
    v_mul_u32_u24 v8, 80, v1
    v_mul_u32_u24 v9, 5120, v2
    v_add3_u32 v9, v9, s53, v8
    v_mul_u32_u24 v12, 2560, v3
    v_lshl_add_u32 v10, v2, 4, v8
    v_or_b32 v11, s61, v2
    v_cmp_eq_u32 vcc, 0, v11
    v_mov_b32 v11, 0x45000000
    v_cndmask_b32 v11, 0, v11, vcc
    """)
    a("s_add_u32 s55, s62, %d" % (WS_MOD + 4096))
    a("v_add_u32 v9, %d, v9                   ; U write address" % LDS_U)
    a("v_add_u32 v12, %d, v12" % LDS_U)
    a("v_sub_u32 v176, v12, v10")
    a("v_add_u32 v176, %d, v176               ; mirrored read address" % (15 * 80 + 52))
    a("v_add_u32 v10, v10, v12")
    a("v_add_u32 v177, 31, v1")
    a("v_and_b32 v177, 31, v177")
    a("v_mad_u32_u24 v177, v177, 80, v12" if False else "v_mul_u32_u24 v177, 80, v177")
    a("v_add3_u32 v177, v177, v12, 64")
    a("v_add_u32 v13, %d, v250                ; vector read address" % LDS_VEC)
    a("v_add_u32 v14, s62, v13")
    a("v_add_u32 v15, v12, v250")
    a("v_add_u32 v12, v12, v7")
    a("""
    s_lshl_b32 s46, s59, 5
    s_lshl2_add_u32 s46, s5, s46
    s_mov_b32 s38, 0xffffe000
    s_mov_b32 s39, 0xffffe000
    s_cmp_eq_u32 s56, 0
    s_cselect_b32 s39, 0, s39
    s_cmp_lg_u32 s59, 128
    s_cbranch_scc1 L_live
    s_mov_b32 s39, 0
    s_cmp_eq_u32 s5, 0
    s_cselect_b32 s38, s38, 0
    """)
    a.label("L_live")
    a("s_cmp_eq_u32 s38, 0")
    a("s_cselect_b32 s49, 0x%x, s49" % OOB)
    a("s_cselect_b32 s36, 0, s46")
    a("s_add_u32 s37, s46, 2")
    a("s_cmp_eq_u32 s39, 0")
    a("s_cselect_b32 s50, 0x%x, s50" % OOB)
    a("s_cselect_b32 s37, 0, s37")
    a("s_lshl_b32 s51, s3, 7")
    a("s_add_u32 s51, s51, 0x%x" % WS_PRE)
    a("s_xor_b32 s53, s4, 31")
    a("s_or_b32 s53, s53, s5")
    a("s_cselect_b32 s51, 0x%x, s51" % OOB)
    stamp(a, 7)
    a("s_mov_b32 s54, %d" % SPIN)
    a("s_cmp_ge_u32 s5, 2")
    a("s_cbranch_scc1 L_poll1_ok")
    a("v_lshlrev_b32 v8, %d, v0" % FSH)
    a("s_mov_b32 s52, 0x%x" % WS_FLAG)
    a.label("L_poll1")
    a("buffer_load_dword v6, v8, s[12:15], s52 offen sc1")
    a("s_waitcnt vmcnt(0)")
    a("v_cmp_ne_u32 vcc, v6, %s" % v(VTAG))
    a("s_and_b64 exec, exec, vcc")
    a("s_cmp_eq_u64 exec, 0")
    poll_tail(a, "L_poll1")
    a("s_mov_b64 exec, -1")
    a("s_mov_b32 s54, %d" % SPIN)
    a("s_barrier")
    stamp(a, 8)
    L = 16
    XU, WU, XM = 112, 120, 160
    a.label("L_inter")
    for ks in range(2):
        for r in range(4):
            a("buffer_load_dwordx4 %s, v5, s[12:15], %s offen offset:%d sc1" % (v(L + 16 * ks + 4 * r, 4), s(40 + 2 * ks + r // 2), 2048 * (r % 2)))

    def mod_loads():
        a("buffer_load_dwordx4 v[48:51], v4, s[12:15], 0 offen offset:%d sc1" % (WS_MOD + 2048))
        a("buffer_load_dwordx4 v[52:55], v4, s[12:15], 0 offen offset:%d sc1" % WS_MOD)
        a("buffer_load_dwordx4 v[64:67], v250, s[12:15], s55 offen sc1")
    mod_loads()
    a("s_waitcnt vmcnt(11)")
    for dst, src in ((XU, 56), (XM, 84), (WU, 60)):
        for d in range(4):
            a("v_lshlrev_b32 %s, 16, %s" % (v(dst + 2 * d), v(src + d)))
            a("v_and_b32 %s, 0xffff0000, %s" % (v(dst + 2 * d + 1), v(src + d)))
    ACC = 96
    for ks in range(2):
        a.wait_vm_for(v(L + 16 * ks, 16))
        if ks == 1:
            stamp(a, 9)
        TT = 68 if ks == 0 else 16
        b = L + 16 * ks
        for i in range(4):
            for hp in range(2):
                o = i & 1
                a("v_pk_mov_b32 %s, %s, %s op_sel:[%d,%d]" % (v(TT + 4 * i + 2 * hp, 2), v(b + 8 * hp + (i & 2), 2), v(b + 8 * hp + 4 + (i & 2), 2), o, o))
        b = TT
        for i in range(4):
            acc = v(ACC + 4 * i, 4)
            a("v_mfma_f32_16x16x32_bf16 %s, %s, %s, %s" % (acc, v(SA + 4 * ks, 4), v(b + 4 * i, 4), "0" if ks == 0 else acc))
        if ks == 0:
            a("v_max3_u32 v6, %s, %s, %s" % (v(b), v(b + 1), v(b + 2)))
            a("v_max_u32 v6, v6, %s" % v(b + 3))
        else:
            a("v_max3_u32 v6, v6, %s, %s" % (v(b), v(b + 1)))
            a("v_max3_u32 v6, v6, %s, %s" % (v(b + 2), v(b + 3)))
    a("v_cmp_eq_u32 vcc, -1, v6")
    a("s_waitcnt vmcnt(0)")
    a("s_cmp_eq_u64 vcc, 0")
    poll_tail(a, "L_inter")
    a("s_mov_b32 s54, %d" % SPIN)
    a("s_branch L_modv_chk")
    a.label("L_modv")
    mod_loads()
    a("s_waitcnt vmcnt(0)")
    a.label("L_modv_chk")
    a("""
    v_xor_b32 v6, v49, v249
    v_xor_b32 v8, v51, v249
    v_bitop3_b32 v6, v6, v53, v249 bitop3:0xf6
    v_bitop3_b32 v8, v8, v55, v249 bitop3:0xf6
    v_bitop3_b32 v6, v6, v65, v249 bitop3:0xf6
    v_bitop3_b32 v8, v8, v67, v249 bitop3:0xf6
    v_or_b32 v6, v6, v8
    v_cmp_ne_u32 vcc, 0, v6
    v_and_b32 v65, 0xffff0000, v64
    v_and_b32 v67, 0xffff0000, v66
    s_cmp_eq_u64 vcc, 0
    """)
    poll_tail(a, "L_modv")
    a("""
    v_lshlrev_b32 v64, 16, v64
    v_lshlrev_b32 v66, 16, v66
    ds_write_b128 v14, v[64:67]
    """)
    for b in (48, 50, 52, 54):
        a("v_and_b32 %s, 0xffff0000, %s" % (v(b + 1), v(b)))
        a("v_lshlrev_b32 %s, 16, %s" % (v(b), v(b)))
    for i in range(4):
        a("v_mul_f32 %s, v11, %s" % (v(52 + i), v(52 + i)))
    P = 32
    for i in range(4):
        c = ACC + 4 * i
        a("v_fma_f32 %s, %s, %s, %s" % (v(c), v(c), v(48 + i), v(52 + i)))
        a("v_mul_f32 %s, %s, %s" % (v(c + 1), v(c + 1), v(48 + i)))
        a("v_pk_mul_f32 %s, %s, %s op_sel:[0,%d] op_sel_hi:[1,%d]" % (v(c + 2, 2), v(c + 2, 2), v(48 + (i & 2), 2), i & 1, i & 1))
        for tt in range(2):
            a("v_cvt_pk_bf16_f32 %s, %s, %s" % (v(P + 4 * tt + 2 * (i % 2) + i // 2), v(c + 2 * tt), v(c + 2 * tt + 1)))
    for tt in range(2):
        for h in range(2):
            a("ds_write_b64 v9, %s offset:%d" % (v(P + 4 * tt + 2 * h, 2), tt * 2560 + h * 1280))
    a("s_waitcnt lgkmcnt(0)")
    a("s_barrier")
    D = 24
    a("ds_read_b128 %s, v10" % v(D, 4))
    a("ds_read_b128 %s, v10 offset:1280" % v(D + 4, 4))
    def notice():
        a("s_mov_b64 exec, 1")
        a("buffer_store_dword %s, off, s[12:15], s51 sc1" % v(VTAG))
        a("s_mov_b64 exec, -1")
    if PRE == 1:
        notice()
    if CPOS == 1:
        a("buffer_store_dwordx4 v[252:255], v250, s[12:15], s44 offen sc1")
    VEC = 128
    for k in range(4):
        for g in range(2):
            a("ds_read_b128 %s, v13 offset:%d" % (v(VEC + 8 * k + 4 * g, 4), 2048 * k + 1024 * g))
    BR, BI = 32, 40
    for h in range(2):
        a.wait_lg_for(v(D + 4 * h, 4))
        a("v_mfma_f32_16x16x32_bf16 %s, %s, %s, 0" % (v(BR + 4 * h, 4), v(D + 4 * h, 4), v(FR, 4)))
        a("v_mfma_f32_16x16x32_bf16 %s, %s, %s, 0" % (v(BI + 4 * h, 4), v(D + 4 * h, 4), v(FI, 4)))
    A2 = 16
    Y, YM = 64, 72
    for h in range(2):
        for j in range(0, 4, 2):
            br, bi, tc, ts = v(BR + 4 * h + j, 2), v(BI + 4 * h + j, 2), v(TC + 4 * h + j, 2), v(TS + 4 * h + j, 2)
            a("v_pk_mul_f32 %s, %s, %s" % (v(48 + j, 2), br, tc))
            a("v_pk_mul_f32 %s, %s, %s" % (v(52 + j, 2), bi, tc))
            a("v_pk_fma_f32 %s, %s, %s, %s" % (v(48 + j, 2), bi, ts, v(48 + j, 2)))
            a("v_pk_fma_f32 %s, %s, %s, %s neg_lo:[1,0,0] neg_hi:[1,0,0]" % (v(52 + j, 2), br, ts, v(52 + j, 2)))
        for k in range(4):
            a("v_cvt_pk_bf16_f32 %s, %s, %s" % (v(A2 + 4 * h + k), v(48 + 2 * k), v(49 + 2 * k)))
        for g in range(2):
            y = v(Y + 4 * g, 4)
            a("v_mfma_f32_16x16x32_bf16 %s, %s, %s, %s" % (y, v(A2 + 4 * h, 4), v(G + 8 * h + 4 * g, 4), "0" if h == 0 else y))
    if PRE == 2:
        notice()
    a("v_mov_b32 v6, %s" % f32(1 / 512))
    a("v_lshlrev_b32 v11, 3, v3")
    a("v_add_u32 v11, %d, v11" % LDS_KEY)
    a("v_mov_b32 v13, %d" % LDS_KEY)
    a("ds_write_b128 v10, %s" % v(Y, 4))
    a("ds_write_b128 v10, %s offset:1280" % v(Y + 4, 4))
    a("s_mov_b64 exec, 0xffff")
    a("ds_write_b32 v177, %s" % v(Y))
    a("ds_write_b32 v10, %s offset:%d" % (v(Y + 4), 1280 - 16))
    a("s_mov_b64 exec, -1")
    for g in range(2):
        o = 320 * (1 - g)
        base = "v176"
        if o > 252:
            a("v_add_u32 v178, 1280, v176")
            base, o = "v178", 0
        a("ds_read2_b32 %s, %s offset0:%d offset1:%d" % (v(YM + 4 * g, 2), base, o + 3, o + 2))
        a("ds_read2_b32 %s, %s offset0:%d offset1:%d" % (v(YM + 4 * g + 2, 2), base, o + 1, o))
    GA, SB, CB, GB = VEC, VEC + 8, VEC + 16, VEC + 24
    H, HM = 32, 88
    rows = ((XU, Y, H, 8, 48), (XM, YM, HM, 80, 168))
    for ri, (xx, yy, hh, sp, tp) in enumerate(rows):
        a.wait_lg_for(v(VEC, 32) if ri == 0 else v(YM, 8))
        for e in range(0, 8, 2):
            a("v_pk_fma_f32 %s, %s, %s, %s" % (v(xx + e, 2), v(GA + e, 2), v(yy + e, 2), v(xx + e, 2)))
        a("v_pk_add_f32 %s, %s, %s" % (v(tp, 2), v(xx, 2), v(xx + 2, 2)))
        a("v_pk_mul_f32 %s, %s, %s" % (v(tp + 2, 2), v(xx, 2), v(xx, 2)))
        a("v_pk_add_f32 %s, %s, %s" % (v(tp + 4, 2), v(xx + 4, 2), v(xx + 6, 2)))
        a("v_pk_fma_f32 %s, %s, %s, %s" % (v(tp + 2, 2), v(xx + 2, 2), v(xx + 2, 2), v(tp + 2, 2)))
        a("v_pk_add_f32 %s, %s, %s" % (v(tp, 2), v(tp, 2), v(tp + 4, 2)))
        a("v_pk_fma_f32 %s, %s, %s, %s" % (v(tp + 2, 2), v(xx + 4, 2), v(xx + 4, 2), v(tp + 2, 2)))
        a("v_add_f32 %s, %s, %s" % (v(sp), v(tp), v(tp + 1)))
        a("v_pk_fma_f32 %s, %s, %s, %s" % (v(tp + 2, 2), v(xx + 6, 2), v(xx + 6, 2), v(tp + 2, 2)))
        a("v_add_f32 %s, %s, %s" % (v(sp + 1), v(tp + 2), v(tp + 3)))
    a("v_permlane32_swap_b32 v8, v80")
    a("v_permlane32_swap_b32 v9, v81")
    a("v_pk_add_f32 v[8:9], v[8:9], v[80:81]")
    a("v_permlane16_swap_b32 v8, v9")
    a("v_add_f32 v8, v8, v9")
    dpp_sum(a, [8], ROR)
    if PRE == 3:
        notice()
    for r in range(4):
        a("v_readlane_b32 %s, v8, %d" % (s(32 + r), 16 * r))
    for ri, (xx, yy, hh, sp, tp) in enumerate(rows):
        a("v_mul_f32 %s, %s, v6" % (v(sp + 1), s(32 + 2 * ri)))
    for ri, (xx, yy, hh, sp, tp) in enumerate(rows):
        a("v_mul_f32 %s, %s, %s" % (v(sp), v(sp + 1), v(sp + 1)))
    for ri, (xx, yy, hh, sp, tp) in enumerate(rows):
        a("v_sub_f32 %s, %s, %s" % (v(sp), f32(EPS), v(sp)))
    for ri, (xx, yy, hh, sp, tp) in enumerate(rows):
        a("v_fmac_f32 %s, %s, v6" % (v(sp), s(33 + 2 * ri)))
    for ri, (xx, yy, hh, sp, tp) in enumerate(rows):
        a("v_rsq_f32 %s, %s" % (v(sp), v(sp)))
    for ri, (xx, yy, hh, sp, tp) in enumerate(rows):
        a("v_mul_f32 %s, %s, %s" % (v(sp + 1), v(sp + 1), v(sp)))
    for ri, (xx, yy, hh, sp, tp) in enumerate(rows):
        p = v(sp, 2)
        for e in range(0, 8, 2):
            a("v_pk_fma_f32 %s, %s, %s, %s op_sel:[0,0,1] op_sel_hi:[1,0,1] neg_lo:[0,0,1] neg_hi:[0,0,1]" % (v(hh + e, 2), v(xx + e, 2), p, p))
        for e in range(0, 8, 2):
            a("v_pk_fma_f32 %s, %s, %s, %s" % (v(hh + e, 2), v(hh + e, 2), v(CB + e, 2), v(SB + e, 2)))
        a("v_pk_mul_f32 %s, %s, %s" % (v(tp, 2), v(hh, 2), v(WU, 2)))
        for e in range(2, 8, 2):
            a("v_pk_fma_f32 %s, %s, %s, %s" % (v(tp, 2), v(hh + e, 2), v(WU + e, 2), v(tp, 2)))
        a("v_add_f32 %s, %s, %s" % (v(8 + ri), v(tp), v(tp + 1)))
    fill = ["v_pk_fma_f32 %s, %s, %s, %s" % (v(xx + e, 2), v(GB + e, 2), v(hh + e, 2), v(xx + e, 2)) for (xx, yy, hh, sp, tp) in rows for e in range(0, 8, 2)]
    a("v_mov_b32 v80, s38")
    a("v_mov_b32 v81, s36")
    a("v_permlane32_swap_b32 v8, v9")
    a("v_add_f32 v8, v8, v9")
    a("s_mov_b32 exec_lo, 0")
    a("v_mov_b32 v80, s39")
    a("v_mov_b32 v81, s37")
    a("v_add_u32 v11, 4, v11")
    a("s_mov_b32 exec_lo, -1")
    for k, mod in enumerate(ROR + BC[:1]):
        a("v_add_f32_dpp v8, v8, v8 %s" % mod)
        if k < 4:
            a(fill[2 * k])
            a(fill[2 * k + 1])
    a("""
    v_ashrrev_i32 v9, 31, v8
    v_or_b32 v9, s63, v9
    v_xor_b32 v8, v8, v9
    v_and_or_b32 v8, v8, v80, v81
    s_mov_b32 exec_lo, 0x80000000
    s_mov_b32 exec_hi, 0x80000000
    ds_write_b32 v11, v8
    s_mov_b64 exec, -1
    v_readlane_b32 s56, v8, 31
    v_readlane_b32 s57, v8, 63
    """)
    if PRE == 4:
        notice()
    a("s_waitcnt vmcnt(0) lgkmcnt(0)" if CPOS == 1 else "s_waitcnt lgkmcnt(0)")
    stamp(a, 10)
    a("s_barrier")
    for k in range(4):
        a("ds_read_b128 %s, v13 offset:%d" % (v(16 + 4 * k, 4), 16 * k))
    OUT, OUTM, HP, HPM = 40, 44, 48, 52
    for (dst, src) in ((OUT, XU), (OUTM, XM)):
        for d in range(4):
            a("v_cvt_pk_bf16_f32 %s, %s, %s" % (v(dst + d), v(src + 2 * d), v(src + 2 * d + 1)))
    a("v_mov_b32 v57, %s" % v(VTAG))
    a("v_mov_b32 v59, %s" % v(VTAG))
    a("s_lshl_b32 s58, s59, %d" % KSH)
    a("s_add_u32 s58, s58, 0x%x" % WS_KEYS)
    a("s_waitcnt lgkmcnt(0)")
    a("v_max_u32 v56, v16, v17")
    a("v_min_u32 v58, v16, v17")
    for k in range(18, 30, 4):
        a("v_med3_u32 v60, v56, %s, %s" % (v(k), v(k + 1)))
        a("v_max3_u32 v56, v56, %s, %s" % (v(k), v(k + 1)))
        a("v_med3_u32 v61, v56, %s, %s" % (v(k + 2), v(k + 3)))
        a("v_max3_u32 v56, v56, %s, %s" % (v(k + 2), v(k + 3)))
        a("v_max3_u32 v58, v58, v60, v61")
    a("""
    v_med3_u32 v60, v56, v30, v31
    v_max3_u32 v56, v56, v30, v31
    v_max_u32 v58, v58, v60
    v_readfirstlane_b32 s60, v56
    v_readfirstlane_b32 s61, v58
    v_or_b32 v58, 1, v58
    s_cmp_eq_u32 s5, 0
    """)
    a("s_cselect_b32 s58, s58, 0x%x" % OOB)
    a("""
    s_mov_b64 exec, 1
    buffer_store_dwordx4 v[56:59], off, s[12:15], s58 sc1
    s_mov_b64 exec, -1
    ds_write_b64 v12, v[40:41]
    ds_write_b64 v12, v[42:43] offset:512
    ds_write_b64 v12, v[44:45] offset:1024
    ds_write_b64 v12, v[46:47] offset:1536
    ds_read_b128 v[40:43], v15
    ds_read_b128 v[44:47], v15 offset:1024
    """)
    for (dst, src) in ((HP, H), (HPM, HM)):
        for d in range(4):
            a("v_cvt_pk_bf16_f32 %s, %s, %s" % (v(dst + d), v(src + 2 * d), v(src + 2 * d + 1)))
    a("s_max_u32 s61, s61, 1")
    a("s_waitcnt lgkmcnt(0)")
    for ri, (key, off, o, hp) in enumerate((("s56", "s49", OUT, HP), ("s57", "s50", OUTM, HPM))):
        a("s_mov_b32 s58, s45")
        a("s_cmp_eq_u32 %s, s60" % key)
        a("s_cbranch_scc1 L_cand%d" % ri)
        a("s_add_u32 s58, s45, 2048")
        a("s_cmp_eq_u32 %s, s61" % key)
        a("s_cselect_b32 s53, 1, 0")
        a("s_or_b32 %s, %s, s53" % (key, key))
        a("s_cmp_eq_u32 s53, 1")
        a("s_cbranch_scc1 L_cand%d" % ri)
        a("s_mov_b32 %s, 0" % key)
        a("buffer_store_dwordx4 %s, v250, s[28:31], %s offen" % (v(o, 4), off))
        a("s_branch L_next%d" % ri)
        a.label("L_cand%d" % ri)
        a("buffer_store_dwordx4 %s, v250, s[12:15], s58 offen sc1" % v(hp, 4))
        a("buffer_store_dwordx4 %s, v250, s[12:15], s58 offen offset:1024 sc1" % v(o, 4))
        a.label("L_next%d" % ri)
    a.label("L_tail", reset=True)
    a("""
    s_lshl_b32 s59, s5, 8
    s_add_u32 s59, s59, s2
    s_sub_u32 s59, s59, 192
    s_cmp_lt_u32 s59, 64
    s_cselect_b32 s59, 1, 0
    s_or_b32 s60, s59, s56
    s_or_b32 s60, s60, s57
    s_cbranch_scc0 L_done
    s_lshl_b32 s45, s3, 7
    """)
    a("s_add_u32 s45, s45, 0x%x" % WS_SEL)
    a("s_cmp_eq_u32 s59, 0")
    a("s_cbranch_scc1 L_sel_go")
    a("""
    s_lshl3_add_u32 s44, s3, s4
    s_sub_u32 s44, s44, 24
    s_lshr_b32 s48, s44, 2
    s_lshl_b32 s48, s48, 5
    s_and_b32 s46, s44, 3
    s_lshl2_add_u32 s48, s46, s48
    v_and_b32 v4, 3, v0
    v_lshrrev_b32 v5, 1, v2
    v_lshl_add_u32 v5, v5, 4, v4
    v_add_u32 v5, s48, v5
    v_and_b32 v8, 0x103, v5
    v_bfe_u32 v9, v5, 2, 2
    v_lshl_add_u32 v8, v9, 6, v8
    v_bfe_u32 v9, v5, 4, 4
    v_lshl_add_u32 v8, v9, 2, v8
    v_lshlrev_b32 v8, 2, v8
    """)
    a("ds_read_b32 v8, v8 offset:%d           ; gb[e]" % (LDS_VEC + 3 * 2048))
    a("""
    v_bfe_u32 v9, v0, 2, 4
    v_lshlrev_b32 v9, 12, v9
    v_lshl_add_u32 v9, v4, 4, v9
    s_lshl_b32 s40, s44, 6
    v_and_b32 v10, 1, v2
    v_cmp_eq_u32 s[52:53], 1, v10
    v_mov_b32 v36, 0
    v_mov_b32 v37, 0
    v_mov_b32 v38, 0
    v_mov_b32 v39, 0
    """)
    a("s_add_u32 s40, s40, 0x%x" % WS_PART)
    a("s_add_u32 s41, s40, 0x10000")
    a("s_add_u32 s42, s40, 0x20000")
    a("s_add_u32 s43, s40, 0x30000")
    a("s_waitcnt lgkmcnt(0)")
    a.label("L_sel_go")
    a("s_mov_b32 s54, %d" % SPIN)
    a.label("L_poll_sel")
    a("buffer_load_dwordx4 v[16:19], off, s[12:15], s45 sc1")
    a("s_waitcnt vmcnt(0)")
    a("v_cmp_eq_u32 vcc, v17, %s" % v(VTAG))
    a("v_cmp_eq_u32 s[60:61], v19, %s" % v(VTAG))
    a("s_and_b64 vcc, vcc, s[60:61]")
    a("s_cmp_eq_u64 vcc, -1")
    poll_tail(a, "L_poll_sel")
    stamp(a, 11)
    a("""
    v_readfirstlane_b32 s60, v16
    v_readfirstlane_b32 s61, v18
    s_cmp_eq_u32 s59, 0
    s_cbranch_scc1 L_late_out
    v_cndmask_b32 v16, v16, v18, s[52:53]
    v_bfe_u32 v17, v16, 5, 8
    v_and_b32 v18, 1, v16
    v_lshlrev_b32 v19, 12, v17
    v_lshl_add_u32 v19, v18, 11, v19
    v_lshl_add_u32 v19, v5, 1, v19
    """)
    a("s_mov_b32 s55, 0x%x" % (WS_CAND + 1024))
    a("s_mov_b32 s54, %d" % SPIN)
    a.label("L_poll_base")
    a("""
    buffer_load_ushort v20, v19, s[12:15], s55 offen sc1
    v_and_b32 v21, 7, v17
    v_bfe_u32 v22, v17, 5, 2
    v_lshl_add_u32 v21, v22, 3, v21       ; slot
    v_bfe_u32 v22, v17, 3, 2
    v_lshl_add_u32 v22, v22, 9, v21
    v_subrev_u32 v23, 992, v22
    v_cmp_eq_u32 vcc, 0, v21
    v_cndmask_b32 v23, v22, v23, vcc
    v_cmp_gt_u32 vcc, 1024, v22
    v_cndmask_b32 v21, v23, v22, vcc
    v_lshrrev_b32 v22, 7, v17
    v_lshl_add_u32 v21, v22, 10, v21
    v_bfe_u32 v22, v16, 2, 3
    v_lshl_add_u32 v21, v22, 6, v21
    v_sub_u32 v22, 2048, v21
    v_and_b32 v23, 2, v16
    v_cmp_eq_u32 vcc, 0, v23
    v_cndmask_b32 v21, v22, v21, vcc
    v_lshlrev_b32 v21, 10, v21
    v_lshl_add_u32 v21, v5, 1, v21
    v_and_b32 v22, 0xffffe000, v16
    v_ashrrev_i32 v23, 31, v22
    v_not_b32 v23, v23
    v_or_b32 v23, s63, v23
    v_xor_b32 v22, v22, v23
    """)
    a("v_mul_f32 v22, %s, v22" % f32(-LOG2E))
    a("""
    v_exp_f32 v22, v22
    v_add_f32 v22, 1.0, v22
    v_rcp_f32 v22, v22
    v_mul_f32 v22, v22, v8
    s_waitcnt vmcnt(0)
    v_cmp_eq_u32 vcc, 0xffff, v20
    s_cmp_eq_u64 vcc, 0
    """)
    poll_tail(a, "L_poll_base")
    a("s_mov_b32 s54, %d" % SPIN)
    a.label("L_poll_part")
    a("""
    buffer_load_dwordx4 v[24:27], v9, s[12:15], s40 offen sc1
    buffer_load_dwordx4 v[28:31], v9, s[12:15], s41 offen sc1
    buffer_load_dwordx4 v[32:35], v9, s[12:15], s42 offen sc1
    s_mov_b32 exec_hi, 0
    buffer_load_dwordx4 v[36:39], v9, s[12:15], s43 offen sc1
    s_mov_b32 exec_hi, -1
    s_waitcnt vmcnt(0)
    v_max3_u32 v48, v24, v28, v32
    v_max_u32 v48, v48, v36
    v_cmp_eq_u32 vcc, -1, v48
    s_cmp_eq_u64 vcc, 0
    """)
    poll_tail(a, "L_poll_part")
    stamp(a, 12)
    a("""
    v_pk_add_f32 v[24:25], v[24:25], v[28:29]
    v_pk_add_f32 v[26:27], v[26:27], v[30:31]
    v_pk_add_f32 v[32:33], v[32:33], v[36:37]
    v_pk_add_f32 v[34:35], v[34:35], v[38:39]
    v_pk_add_f32 v[24:25], v[24:25], v[32:33]
    v_pk_add_f32 v[26:27], v[26:27], v[34:35]
    v_permlane32_swap_b32 v24, v26
    v_permlane32_swap_b32 v25, v27
    v_pk_add_f32 v[24:25], v[24:25], v[26:27]
    v_permlane16_swap_b32 v24, v25
    v_add_f32 v24, v24, v25
    v_lshlrev_b32 v20, 16, v20
    """)
    dpp_sum(a, [24], ROR[:2])
    a("""
    v_fmac_f32 v20, v24, v22
    v_cvt_pk_bf16_f32 v20, v20, v20
    s_mov_b32 exec_lo, 0x000f000f
    s_mov_b32 exec_hi, 0x000f000f
    buffer_store_short v20, v21, s[28:31], 0 offen
    s_mov_b64 exec, -1
    s_cmp_lg_u32 s2, 192
    s_cbranch_scc1 L_late_out
    s_mov_b64 exec, 1
    """)
    a("s_mov_b32 s55, 0x%x" % WS_GEN)
    a("buffer_store_dword %s, off, s[12:15], s55" % v(VTAG))
    a("s_mov_b64 exec, -1")
    if PROBE >= 0:
        a("s_waitcnt vmcnt(0)")
        a("s_memrealtime s[98:99]")
        a("s_waitcnt lgkmcnt(0)")
        a("s_sub_u32 s94, %s, s96" % ("s98" if PROBE == 13 else "s92"))
        a("s_mul_i32 s94, s94, 2")
        a("s_min_u32 s94, s94, 8000")
        a.label("L_probe")
        a("s_memrealtime s[96:97]")
        a("s_waitcnt lgkmcnt(0)")
        a("s_sub_u32 s95, s96, s98")
        a("s_cmp_lt_u32 s95, s94")
        a("s_cbranch_scc1 L_probe")
    a.label("L_late_out", reset=True)
    for ri, (key, off, o) in enumerate((("s56", "s49", OUT), ("s57", "s50", OUTM))):
        nxt = "L_late1" if ri == 0 else "L_done"
        a("s_cmp_eq_u32 %s, 0" % key)
        a("s_cbranch_scc1 %s" % nxt)
        a("s_cmp_eq_u32 %s, s60" % key)
        a("s_cbranch_scc1 %s" % nxt)
        a("s_cmp_eq_u32 %s, s61" % key)
        a("s_cbranch_scc1 %s" % nxt)
        a("buffer_store_dwordx4 %s, v250, s[28:31], %s offen" % (v(o, 4), off))
        if ri == 0:
            a.label("L_late1")
    a("s_branch L_done")
    a.label("L_ffn", reset=True)
    a("s_mov_b32 s58, s4")
    a("s_barrier")
    a("""
    s_mul_i32 s6, s3, 7
    s_add_u32 s6, s6, s58
    s_lshl_b32 s46, s6, 12
    """)
    a("s_add_u32 s46, s46, 0x%x               ; partial-sum slab" % WS_PART)
    a("s_add_u32 s45, s46, s62")
    a("s_cmp_lt_u32 s5, 4")
    a("s_cselect_b32 s45, s45, 0x%x" % OOB)
    a("s_mov_b64 s[32:33], s[18:19]")
    a("s_mov_b64 s[36:37], s[20:21]")
    a("s_mov_b64 s[40:41], s[22:23]")
    srd(a, 32, 512 * 3584)
    srd(a, 36, 512 * 3584)
    srd(a, 40, 1792 * 1024)
    a("""
    s_and_b32 s44, s5, 1
    s_lshl_b32 s44, s44, 7
    s_lshr_b32 s48, s5, 1
    s_lshl2_add_u32 s44, s48, s44
    v_bfe_u32 v4, v0, 2, 2
    v_lshl_add_u32 v4, v2, 4, v4
    v_add_u32 v4, s44, v4
    v_mul_u32_u24 v4, 3584, v4
    v_and_b32 v5, 3, v0
    v_lshl_add_u32 v4, v5, 4, v4
    s_lshl_b32 s48, s6, 6
    s_mul_i32 s7, s5, 12288
    s_mov_b32 m0, s7
    """)
    a("s_add_u32 s49, s48, %d" % (64 * 3584))
    a("s_add_u32 s50, s48, %d" % (256 * 3584))
    a("s_add_u32 s51, s48, %d" % (320 * 3584))
    stamp(a, 7)
    a("buffer_store_dwordx4 v[252:255], v250, s[12:15], s45 offen sc1")
    for sr in (32, 36):
        for i in range(4):
            a("buffer_load_dwordx4 v4, %s, %s offen lds" % (s(sr, 4), s(48 + i)))
            a("s_add_u32 m0, m0, 1024")
    a("""
    v_bfe_u32 v5, v0, 3, 3
    v_lshlrev_b32 v5, 10, v5
    v_and_b32 v4, 7, v0
    v_lshl_add_u32 v5, v4, 4, v5
    v_lshl_add_u32 v5, v3, 7, v5
    s_lshl_b32 s48, s6, 15
    """)
    for i in range(4):
        a("buffer_load_dwordx4 v5, s[40:43], s48 offen lds")
        if i < 3:
            a("s_add_u32 m0, m0, 1024")
            a("s_add_u32 s48, s48, 8192")
    WF, WD = 64, 96
    a("v_lshlrev_b32 v6, %d, v0" % KSH)
    a("""
    v_bfe_u32 v4, v0, 2, 4                ; 4q + r
    v_and_b32 v5, 3, v0
    v_lshlrev_b32 v5, 3, v5
    v_lshl_add_u32 v8, v4, 6, v5
    v_add_u32 v8, s7, v8
    v_bfe_u32 v9, v0, 2, 2
    v_lshl_add_u32 v9, v2, 3, v9
    v_lshl_add_u32 v9, v9, 7, v5
    v_add_u32 v9, s7, v9
    """)
    a("v_mov_b32 v33, %s" % v(VTAG))
    a("v_mov_b32 v35, %s" % v(VTAG))
    a("""
    v_and_b32 v10, 1, v0
    v_cmp_eq_u32 s[50:51], 1, v10
    v_lshlrev_b32 v11, 7, v3
    v_lshl_add_u32 v11, v2, 4, v11
    v_lshlrev_b32 v12, 6, v10
    v_lshl_add_u32 v13, v2, 4, v12
    v_lshl_add_u32 v13, v3, 9, v13
    v_and_b32 v14, 30, v0
    v_lshl_add_u32 v14, v14, 1, v12
    v_and_b32 v12, 32, v0
    v_lshl_add_u32 v14, v12, 2, v14
    """)
    a("v_add_u32 v13, %d, v13                 ; partial write address" % LDS_RED)
    a("v_add_u32 v14, %d, v14                 ; partial read address" % LDS_RED)
    a("""
    v_lshlrev_b32 v15, 9, v3
    v_lshl_add_u32 v15, v1, 4, v15
    v_lshlrev_b32 v7, 3, v3
    v_mov_b32 v16, 0
    v_mov_b32 v18, 0
    """)
    a("v_add_u32 v7, %d, v7" % LDS_KEY2)
    a("v_mov_b32 v4, %d" % LDS_KEY2)
    a("s_waitcnt vmcnt(0)")
    stamp(a, 8)
    for kk in range(2):
        for mt in range(4):
            for hf in range(2):
                a("ds_read_b64_tr_b16 %s, v8 offset:%d" % (v(WF + 16 * kk + 4 * mt + 2 * hf, 2), (mt // 2) * 4096 + hf * 2048 + kk * 1024 + (mt % 2) * 32))
    for t in range(4):
        for hf in range(2):
            a("ds_read_b64_tr_b16 %s, v9 offset:%d" % (v(WD + 4 * t + 2 * hf, 2), 8192 + hf * 512 + t * 32))
    a("s_barrier")
    a("s_lshl_b32 s53, s6, %d" % KSH)
    a("s_add_u32 s53, s53, 0x%x" % (WS_KEYS + (129 << KSH)))
    a("s_cmp_eq_u32 s5, 0")
    a("s_cselect_b32 s53, s53, 0x%x" % OOB)
    a("v_mov_b32 v32, 0")
    a("v_mov_b32 v34, 0")
    a("s_mov_b64 exec, 1")
    a("buffer_store_dwordx4 v[32:35], off, s[12:15], s53 sc1")
    a("s_mov_b64 exec, -1")
    a("s_lshl_b32 s52, s3, 7")
    a("s_add_u32 s55, s52, 0x%x" % WS_PRE)
    a("s_add_u32 s52, s52, 0x%x" % WS_SEL)
    a("s_or_b32 s53, s58, s5")
    a("s_cselect_b32 s52, 0x%x, s52           ; one announcing wave per group" % OOB)
    a("s_cmp_ge_u32 s5, 3")
    a("s_cbranch_scc1 L_keys_done")
    a("s_mov_b32 s54, %d" % SPIN)
    if PRE:
        a.label("L_poll_pre")
        a("buffer_load_dword v17, off, s[12:15], s55 sc1")
        a("s_waitcnt vmcnt(0)")
        a("v_cmp_eq_u32 vcc, v17, %s" % v(VTAG))
        a("s_cmp_eq_u64 vcc, -1")
        poll_tail(a, "L_poll_pre")
        a("s_mov_b32 s54, %d" % SPIN)
    stamp(a, 10)
    a("v_cmp_gt_u32 vcc, 185, v0")
    a("s_mov_b32 s55, 0x%x" % WS_KEYS)
    a("s_mov_b64 exec, vcc")
    a.label("L_poll_keys")
    a("buffer_load_dwordx4 v[16:19], v6, s[12:15], s55 offen sc1")
    a("s_waitcnt vmcnt(0)")
    a("v_cmp_ne_u32 vcc, v17, %s" % v(VTAG))
    a("v_cmp_ne_u32 s[60:61], v19, %s" % v(VTAG))
    a("s_or_b64 vcc, vcc, s[60:61]")
    a("s_and_b64 exec, exec, vcc")
    a("s_cmp_eq_u64 exec, 0")
    poll_tail(a, "L_poll_keys")
    a("s_mov_b64 exec, -1")
    for mod in ROR + BC:
        a("v_min_u32_dpp v19, v16, v16 %s" % mod)
        a("v_max_u32_dpp v18, v18, v18 %s" % mod)
        a("v_max_u32_dpp v16, v16, v16 %s" % mod)
        a("v_max_u32 v18, v18, v19")
    a("""
    s_mov_b32 exec_lo, 0
    s_mov_b32 exec_hi, 0x80000000
    ds_write2_b32 v7, v16, v18 offset0:0 offset1:1
    s_mov_b64 exec, -1
    """)
    a.label("L_keys_done")
    a("s_waitcnt lgkmcnt(0)")
    a("s_barrier")
    stamp(a, 11)
    a("ds_read_b128 v[16:19], v4")
    a("ds_read_b64 v[20:21], v4 offset:16")
    a("s_mov_b32 s55, 0x%x" % WS_CAND)
    a("s_mov_b32 s54, %d" % SPIN)
    a("""
    s_waitcnt lgkmcnt(0)
    v_med3_u32 v36, v16, v18, v20
    v_max3_u32 v32, v16, v18, v20
    v_max3_u32 v34, v17, v19, v21
    v_max_u32 v34, v34, v36
    v_cndmask_b32 v36, v32, v34, s[50:51]
    v_bfe_u32 v37, v36, 5, 8
    v_and_b32 v36, 1, v36
    v_lshl_add_u32 v11, v37, 12, v11
    v_lshl_add_u32 v11, v36, 11, v11
    """)
    a.label("L_poll_h2")
    a("""
    buffer_load_dwordx4 v[16:19], v11, s[12:15], s55 offen sc1
    buffer_load_dwordx4 v[20:23], v11, s[12:15], s55 offen offset:64 sc1
    s_waitcnt vmcnt(0)
    v_max_u32 v36, v16, v20
    v_cmp_eq_u32 vcc, -1, v36
    s_cmp_eq_u64 vcc, 0
    """)
    poll_tail(a, "L_poll_h2")
    stamp(a, 12)
    C = 48
    for kk in range(2):
        for mt in range(4):
            c = v(C + 4 * mt, 4)
            a("v_mfma_f32_16x16x32_bf16 %s, %s, %s, %s" % (c, v(WF + 16 * kk + 4 * mt, 4), v(16 + 4 * kk, 4), "0" if kk == 0 else c))
    a("s_mov_b64 exec, 1")
    a("buffer_store_dwordx4 v[32:35], off, s[12:15], s52 sc1")
    a("s_mov_b32 exec_lo, 0x00030003")
    a("s_mov_b32 exec_hi, 0x00030003")
    for mt in range(4):
        a("ds_write_b128 v13, %s offset:%d" % (v(C + 4 * mt, 4), 128 * mt))
    a("s_mov_b64 exec, -1")
    a("s_waitcnt lgkmcnt(0)")
    a("s_barrier")
    a("""
    ds_read2st64_b32 v[16:17], v14 offset0:0 offset1:2
    ds_read2st64_b32 v[18:19], v14 offset0:4 offset1:6
    ds_read2st64_b32 v[20:21], v14 offset0:8 offset1:10
    ds_read2st64_b32 v[22:23], v14 offset0:12 offset1:14
    ds_read2st64_b32 v[24:25], v14 offset0:1 offset1:3
    ds_read2st64_b32 v[26:27], v14 offset0:5 offset1:7
    ds_read2st64_b32 v[28:29], v14 offset0:9 offset1:11
    ds_read2st64_b32 v[30:31], v14 offset0:13 offset1:15
    s_waitcnt lgkmcnt(4)
    v_pk_add_f32 v[16:17], v[16:17], v[18:19]
    v_pk_add_f32 v[20:21], v[20:21], v[22:23]
    v_pk_add_f32 v[16:17], v[16:17], v[20:21]
    v_add_f32 v16, v16, v17
    """)
    a("v_mul_f32 v17, %s, v16" % f32(-LOG2E))
    a("""
    v_exp_f32 v17, v17
    s_waitcnt lgkmcnt(0)
    v_pk_add_f32 v[24:25], v[24:25], v[26:27]
    v_add_f32 v17, 1.0, v17
    v_pk_add_f32 v[28:29], v[28:29], v[30:31]
    v_rcp_f32 v17, v17
    v_pk_add_f32 v[24:25], v[24:25], v[28:29]
    v_add_f32 v24, v24, v25
    v_mul_f32 v16, v16, v17
    v_mul_f32 v16, v16, v24
    v_mov_b32_dpp v17, v16 row_ror:14 row_mask:0xf bank_mask:0xf
    v_cvt_pk_bf16_f32 v20, v16, v17
    v_mov_b32_dpp v21, v20 row_ror:12 row_mask:0xf bank_mask:0xf
    v_mov_b32_dpp v22, v20 row_ror:8 row_mask:0xf bank_mask:0xf
    v_mov_b32_dpp v23, v20 row_ror:4 row_mask:0xf bank_mask:0xf
    """)
    for t in range(4):
        a("v_mfma_f32_16x16x32_bf16 %s, v[20:23], %s, 0" % (v(C + 4 * t, 4), v(WD + 4 * t, 4)))
    a("""
    s_mov_b64 exec, 0xffff
    v_mov_b32 v50, v52
    v_mov_b32 v51, v53
    buffer_store_dwordx4 v[48:51], v15, s[12:15], s46 offen sc1
    v_mov_b32 v58, v60
    v_mov_b32 v59, v61
    buffer_store_dwordx4 v[56:59], v15, s[12:15], s46 offen offset:256 sc1
    s_mov_b64 exec, -1
    """)
    stamp(a, 9)
    a.label("L_done", reset=True)
    stamp_end(a)
    a.label("L_end")
    a("s_endpgm")
    desc = """.section .rodata,"a"
.p2align 6
.amdhsa_kernel %s
  .amdhsa_next_free_vgpr 256
  .amdhsa_next_free_sgpr 102
  .amdhsa_accum_offset 256
  .amdhsa_group_segment_fixed_size 0
  .amdhsa_kernarg_size 120
  .amdhsa_user_sgpr_count 2
  .amdhsa_user_sgpr_kernarg_segment_ptr 1
  .amdhsa_system_sgpr_workgroup_id_x 1
.end_amdhsa_kernel
""" % KN
    return HEADER + "; @launch grid=(256,1,1) block=(512,1,1) lds=%d\n" % LDS_TOTAL + a.text() + desc


if __name__ == "__main__":
    out = sys.argv[1] if len(sys.argv) > 1 and sys.argv[1].endswith(".s") else "v13.s"
    open(out, "w").write(build())
    print("wrote", out)
```

```python
import sys, struct
from asmlib import Asm, Ins, v, s

NAME = "adaLN_cond__spectral_fnet__moe_arch_mod__prompt"
KN = NAME + "_kernel"
HEADER = open("cdna_kernels/%s.s.ref" % NAME).read().split("; Override launch geometry")[0]


def opt(name, default):
    for x in sys.argv:
        if x.startswith("--%s=" % name):
            return int(x.split("=")[1], 0)
    return default


STAMPS = "--stamps" in sys.argv
PROBE = opt("probe", -1)
KSH = opt("ksh", 6)
FSH = opt("fsh", 8)
HELP = opt("help", 1)
POIS = opt("pois", 0)
OUTF = ("", " sc1", " nt", " sc0 sc1", " sc1 nt")[opt("outf", 1)]
EARLYH = opt("earlyh", 1)
MODFIRST = opt("modfirst", 2)
MH = opt("mh", 9)
PLATE = opt("plate", 0)
OUTL = opt("outl", 0)
FINE = opt("fine", 0)
PROG = opt("prog", 0)
FIN = opt("fin", 0)
HF = opt("hf", 1)
LO = opt("lo", 1)
ADEL = opt("adel", 1)
BT = opt("bt", 8)
SENT = opt("sent", 0)
FDEL = opt("fdel", 0)
SW = opt("sw", 4)
PRE = opt("pre", 3)
CPOS = opt("cpos", 0)
CPF = opt("cpf", 0)
TOUCH = opt("touch", 1)

WS_MOD = 0x0
WS_GEN = 0x3000
WS_SEL = 0x3400
WS_PRE = 0x3800
WS_FLAG = 0x8000
WS_KEYS = 0x40000
WS_PART = 0x80000
WS_CAND = 0x100000
WS_INTER = 0x200000
WS_SIZE = 0x400000
WS_STAMP = 0x600000
if STAMPS:
    WS_SIZE = 0x800000
EPS = 1e-5
TAGC = 0x9E3779B9
SPIN = 1 << 15
OOB = 0x7fff0000
PITCH = 288
XWG = 120

LDS_U = 20480
LDS_SCR = LDS_U + 20480
LDS_VEC = LDS_SCR + 20480
LDS_KEY = LDS_VEC + 7 * 2560
LDS_RED = 98304
LDS_KEY2 = LDS_RED + 4096
LDS_TOTAL = LDS_KEY2 + 64

FR, FI, TC, TS, G, SA = 200, 204, 208, 216, 224, 240
VQ4, VTAG, VL16 = 248, 249, 250
LOG2E = 1.4426950408889634


def f32(x):
    return "0x%08x" % struct.unpack("<I", struct.pack("<f", x))[0]


def srd(a, base, nbytes):
    a("s_mov_b32 %s, 0x%x" % (s(base + 2), nbytes))
    a("s_mov_b32 %s, 0x20000" % s(base + 3))


NST = 14


def stamp(a, i):
    if PROBE >= 0 and i == 0:
        a("s_memrealtime s[96:97]")
    if PROBE == i:
        a("s_memrealtime s[92:93]")
    if not STAMPS:
        return
    if i == 0:
        a("s_memrealtime s[96:97]")
        for k in range(1, NST):
            a("s_mov_b32 %s, 0" % s(64 + 2 * k))
    a("s_memtime %s" % s(64 + 2 * i, 2))


def stamp_end(a):
    if not STAMPS:
        return
    a("s_waitcnt vmcnt(0)")
    a("s_memtime %s" % s(64 + 2 * (NST - 1), 2))
    a("s_memrealtime s[98:99]")
    a("s_mov_b64 exec, 1")
    a("s_lshl_b32 s93, s2, 3")
    a("s_add_u32 s93, s93, s5")
    a("s_lshl_b32 s93, s93, 6")
    a("s_add_u32 s93, s93, 0x%x" % WS_STAMP)
    a("s_waitcnt lgkmcnt(0)")
    a("v_mov_b32 v16, s96")
    a("v_mov_b32 v17, s98")
    for k in range(NST):
        a("v_mov_b32 %s, %s" % (v(18 + k), s(64 + 2 * k)))
    for k in range(4):
        a("buffer_store_dwordx4 %s, off, s[12:15], s93 offset:%d" % (v(16 + 4 * k, 4), 16 * k))


ROR = ["row_ror:%d row_mask:0xf bank_mask:0xf" % r for r in (8, 4, 2, 1)]
BC = ["row_bcast:15 row_mask:0xa bank_mask:0xf", "row_bcast:31 row_mask:0xc bank_mask:0xf"]


def dpp_sum(a, regs_, mods):
    for mod in mods:
        for r in regs_:
            a("v_add_f32_dpp %s, %s, %s %s" % (v(r), v(r), v(r), mod))


def poll_tail(a, label, cnt="s54"):
    a("s_cbranch_scc1 %s_ok" % label)
    a("s_sub_u32 %s, %s, 1" % (cnt, cnt))
    a("s_cbranch_scc0 %s" % label)
    a.label(label + "_ok")


def setup(a):
    a.label("L_setup", reset=True)
    a("""
    s_lshr_b32 s60, s59, 5
    s_lshl3_add_u32 s60, s60, s3
    s_and_b32 s60, s60, 31
    s_bfe_u32 s61, s59, 0x20003
    s_lshl_b32 s61, s61, 9
    s_add_u32 s61, s61, s60
    s_sub_u32 s94, s61, 992
    s_cmp_ge_u32 s61, 1024
    s_cselect_b32 s94, s94, s61
    s_mov_b32 s95, 0xffff0000
    s_cselect_b32 s95, s95, 0x0000ffff
    s_cmp_eq_u32 s60, 0
    s_cselect_b32 s61, s94, s61
    s_cselect_b32 s95, s95, -1
    """)
    a("s_cselect_b32 s94, 0, %s" % f32(-0.25))
    a("""
    s_cmp_eq_u32 s59, 128
    s_cselect_b32 s61, 1024, s61
    v_lshrrev_b32 v160, 1, v1
    v_lshlrev_b32 v160, 6, v160
    v_add_u32 v160, s61, v160
    v_cvt_f32_u32 v160, v160
    v_and_b32 v161, 1, v1
    v_cvt_f32_u32 v161, v161
    """)
    a("v_mul_f32 v160, %s, v160" % f32(1 / 2048))
    a("v_mul_f32 v161, %s, v161" % f32(0.25))
    a("v_mul_f32 v162, %s, v160" % f32(0.25))
    a("v_fmac_f32 v161, v162, %s" % v(VQ4))
    a("v_mul_f32 v160, 4.0, v160")
    for ks in range(2):
        for r in range(4):
            if r or ks:
                a("v_add_f32 v161, v161, v160")
            a("v_add_f32 v162, s94, v161")
            a("v_cos_f32 v163, v161")
            a("v_cos_f32 v162, v162")
            if ks or r:
                k = SA + 4 * ks + r - 1
                a("v_and_b32 %s, s95, %s" % (v(k), v(k)))
            a("v_cvt_pk_bf16_f32 %s, v163, v162" % v(SA + 4 * ks + r))
    a("v_and_b32 %s, s95, %s" % (v(SA + 7), v(SA + 7)))
    t = [v(160 + i) for i in range(15)]
    a("v_cvt_f32_u32 %s, v1" % t[0])
    a("v_mul_f32 %s, %s, %s" % (t[0], f32(1 / 512), t[0]))
    a("v_mul_f32 %s, %s, %s" % (t[1], t[0], v(VQ4)))
    a("v_mul_f32 %s, %s, %s" % (t[2], f32(16.0), t[0]))
    for j in range(4):
        if j:
            a("v_add_f32 %s, %s, %s" % (t[1], t[1], t[0]))
        a("v_mul_f32 %s, %s, %s" % (t[3], f32(32.0), t[1]))
        a("v_mul_f32 %s, %s, %s" % (t[4], f32(16.0), t[1]))
        a("v_add_f32 %s, %s, %s" % (t[5], t[1], t[2]))
        a("v_cos_f32 %s, %s" % (v(TC + j), t[1]))
        a("v_sin_f32 %s, %s" % (v(TS + j), t[1]))
        a("v_cos_f32 %s, %s" % (t[6], t[3]))
        a("v_sin_f32 %s, %s" % (t[3], t[3]))
        a("v_cos_f32 %s, %s" % (v(TC + 4 + j), t[5]))
        a("v_sin_f32 %s, %s" % (v(TS + 4 + j), t[5]))
        a("v_cos_f32 %s, %s" % (t[7 + j], t[4]))
        a("v_sin_f32 %s, %s" % (t[11 + j], t[4]))
        a("v_cvt_pk_bf16_f32 %s, %s, %s" % (v(FR + j), t[6], t[3]))
        a("v_cvt_pk_bf16_f32 %s, -%s, %s" % (v(FI + j), t[3], t[6]))
    for j in range(4):
        a("v_cvt_pk_bf16_f32 %s, %s, %s" % (v(G + j), t[7 + 2 * j], t[8 + 2 * j]))
    a("v_lshlrev_b32 %s, 31, v1" % t[3])
    a("v_lshrrev_b32 %s, 16, %s" % (t[4], t[3]))
    a("v_or_b32 %s, %s, %s" % (t[3], t[3], t[4]))
    for j in range(4):
        a("v_xor_b32 %s, s63, %s" % (v(G + 4 + j), v(G + j)))
        a("v_xor_b32 %s, %s, %s" % (v(G + 8 + j), t[3], v(G + j)))
        a("v_xor_b32 %s, s63, %s" % (v(G + 12 + j), v(G + 8 + j)))
    a("s_waitcnt lgkmcnt(0)")
    a("s_setpc_b64 s[100:101]")


def touch(a, half, dst, first):
    if first:
        a("""
        v_bfe_u32 v4, v0, 3, 3
        v_and_b32 v5, 7, v0
        v_lshlrev_b32 v5, 6, v5
        s_mov_b32 s34, 0x1c0000
        s_mov_b32 s35, 0x20000
        """)
    a("""
    s_and_b32 s46, s44, 31
    s_mul_i32 s48, s3, 448
    s_mul_i32 s49, s46, 57344
    s_add_u32 s48, s48, s49
    s_lshl_b32 s49, s3, 5
    s_add_u32 s49, s49, s46
    s_mul_i32 s49, s49, 7168
    """)
    if half:
        a("s_add_u32 s48, s48, 28672")
        a("s_add_u32 s49, s49, 512")
    a("""
    s_cmp_lt_u32 s44, 32
    s_cselect_b64 s[32:33], s[18:19], s[20:21]
    s_movk_i32 s50, 3584
    s_cmp_ge_u32 s44, 64
    s_cselect_b64 s[32:33], s[22:23], s[32:33]
    s_cselect_b32 s50, 1024, s50
    s_cselect_b32 s48, s49, s48
    v_mad_u32_u24 v6, v4, s50, v5
    """)
    a("buffer_load_dword %s, v6, s[32:35], s48 offen" % v(dst))


def get_tag(a):
    a("s_waitcnt lgkmcnt(0)")
    a("s_add_u32 s47, s47, 0x%x               ; hand-off tag of this launch" % TAGC)
    a("v_mov_b32 %s, s47" % v(VTAG))


def flag_store(a, wave=0):
    a("s_lshl_b32 s53, s2, %d" % FSH)
    a("s_add_u32 s53, s53, 0x%x" % WS_FLAG)
    a("s_cmp_eq_u32 s5, %d" % wave)
    a("s_cselect_b32 s53, s53, 0x%x" % OOB)
    a("s_mov_b64 exec, 1")
    a("buffer_store_dword %s, off, s[12:15], s53 sc1" % v(VTAG))
    a("s_mov_b64 exec, -1")


def build():
    a = Asm()
    a.raw('.amdgcn_target "amdgcn-amd-amdhsa--gfx950"')
    a.raw(".text")
    a.raw(".globl %s" % KN)
    a.raw(".p2align 8")
    a.raw(".type %s,@function" % KN)
    a.label(KN, reset=True)
    a("s_cmp_ge_u32 s2, 256")
    a("s_cbranch_scc1 L_end")
    stamp(a, 0)
    a("s_load_dwordx2 s[8:9], s[0:1], 0")
    a("s_load_dwordx2 s[12:13], s[0:1], 112")
    a("s_load_dwordx16 s[16:31], s[0:1], 48")
    if CPF:
        a("s_getpc_b64 s[60:61]")
        a.label("L_cpf_pc")
        a("v_lshlrev_b32 v192, %d, v0" % (7 if CPF == 1 else 6))
        a("v_cmp_gt_u32 vcc, L_end-L_cpf_pc, v192")
        a("v_mov_b32 v193, 0")
        a("v_lshl_add_u64 v[192:193], v[192:193], 0, s[60:61]")
        a("s_and_saveexec_b64 s[60:61], vcc")
        a("s_cbranch_execz L_cpf")
        n = len(a.vm)
        a("global_load_dword v198, v[192:193], off")
        del a.vm[n:]
        a.label("L_cpf")
        a("s_mov_b64 exec, -1")
    a("""
    v_lshrrev_b32 v3, 6, v0               ; wave
    v_and_b32 v1, 15, v0                  ; n
    v_bfe_u32 v2, v0, 4, 2                ; q
    v_readfirstlane_b32 s5, v3
    s_and_b32 s3, s2, 7                   ; x
    s_lshr_b32 s4, s2, 3                  ; y
    v_and_b32 v250, 63, v0
    v_lshlrev_b32 v250, 4, v250           ; lane*16
    v_mov_b32 v252, -1
    v_mov_b32 v253, -1
    v_mov_b32 v254, -1
    v_mov_b32 v255, -1
    s_mov_b32 s63, 0x80000000
    """)
    a("v_cvt_f32_u32 %s, v2" % v(VQ4))
    srd(a, 8, 2048 * 1024)
    srd(a, 12, WS_SIZE)
    a("v_mul_f32 %s, 4.0, %s" % (v(VQ4), v(VQ4)))
    a("s_lshl_b32 s62, s5, 10")
    a("s_cmp_ge_u32 s4, 16")
    st0 = a.fork()
    a("s_cbranch_scc1 L_notdft")
    a("""
    s_movk_i32 s59, 128
    s_lshr_b32 s6, s4, 2
    s_lshl3_add_u32 s6, s6, s3            ; s2 index
    s_and_b32 s7, s4, 3
    v_lshlrev_b32 v5, 4, v1
    """)

    def store_addr():
        a("""
        v_and_b32 v8, 3, v3                   ; M tile
        v_lshlrev_b32 v13, 1, v2
        v_lshl_add_u32 v13, v8, 3, v13
        v_lshl_add_u32 v13, v13, 16, v5
        s_lshl_b32 s54, s6, 11
        s_lshl_b32 s55, s7, 9
        s_add_u32 s54, s54, s55
        """)
        a("s_add_u32 s54, s54, 0x%x" % WS_INTER)
        a("s_add_u32 s55, s54, 0x10000")
    a("s_lshl_b32 s44, s6, 10")
    for g in range(4):
        a("s_add_u32 s46, s7, %d" % g)
        a("s_and_b32 s46, s46, 3")
        a("s_lshl_b32 s46, s46, 8")
        a("s_add_u32 %s, s46, s44" % s(48 + g))
    a("""
    s_lshl1_add_u32 s46, s7, s5
    s_and_b32 s46, s46, 7
    s_lshl_b32 s46, s46, 3
    v_add_u32 v4, s46, v2
    v_lshl_or_b32 v6, v4, 15, v5
    v_add_u32 v7, 0x20000, v6
    s_waitcnt lgkmcnt(0)
    """)
    stamp(a, 1)
    X = 16
    for i in range(4):
        for g in range(2):
            a("buffer_load_dwordx4 %s, %s, s[8:11], %s offen" % (v(X + 16 * g + 4 * i, 4), v(6 + g), s(48 + i)))
    a("s_load_dword s47, s[12:13], 0x%x" % WS_GEN)
    a("s_branch L_dft")
    mark = len(a.lines)
    a.label("L_dft")
    store_addr()
    a("v_lshrrev_b32 v12, 8, v0")
    a("v_lshl_add_u32 v13, v12, 8, v13")
    if POIS == 4:
        a("s_barrier")
    if POIS < 5:
        a("buffer_store_dwordx4 v[252:255], v13, s[12:15], s54 offen sc1")
        a("buffer_store_dwordx4 v[252:255], v13, s[12:15], s55 offen sc1")
    WA = 48
    a("""
    v_lshrrev_b32 v9, 1, v1
    v_lshl_add_u32 v9, v8, 3, v9          ; slot
    v_and_b32 v10, 1, v1
    v_lshl_or_b32 v11, v9, 1, v10
    v_cmp_eq_u32 vcc, 1, v11
    v_cvt_f32_u32 v10, v10
    v_lshlrev_b32 v15, 31, v9
    v_cndmask_b32 v11, v9, 32, vcc
    """)
    a("v_mul_f32 v10, %s, v10" % f32(0.25))
    a("v_cvt_f32_u32 v11, v11")
    a("v_cndmask_b32 v10, v10, 0, vcc")
    a("v_mul_f32 v11, %s, v11" % f32(1 / 64))
    a("v_fmac_f32 v10, v11, %s" % v(VQ4))
    a("v_lshrrev_b32 v14, 16, v15")
    a("v_or_b32 v15, v15, v14")
    T = 56
    a("v_cos_f32 %s, v10" % v(T))
    for j in range(1, 8):
        a("v_add_f32 v10, v10, v11" if j != 4 else "v_fmac_f32 v10, %s, v11" % f32(13.0))
        a("v_cos_f32 %s, v10" % v(T + j))
    for j in range(4):
        a("v_cvt_pk_bf16_f32 %s, %s, %s" % (v(WA + j), v(T + 2 * j), v(T + 2 * j + 1)))
    for j in range(4):
        a("v_xor_b32 %s, v15, %s" % (v(WA + 4 + j), v(WA + j)))
    a("""
    v_mul_u32_u24 v10, 288, v4
    v_add_u32 v10, v10, v5
    v_bfe_u32 v11, v0, 2, 4
    v_mul_u32_u24 v11, 288, v11
    v_and_b32 v14, 3, v0
    v_lshl_add_u32 v11, v14, 3, v11
    v_lshl_add_u32 v11, v12, 7, v11
    s_mov_b32 s52, 0x3f803f80
    v_mov_b32 v56, 0
    v_mov_b32 v57, 0
    v_mov_b32 v58, 0
    v_mov_b32 v59, 0
    """)
    stamp(a, 2)
    U = 64
    for i in range(4):
        for g in range(2):
            a.wait_vm_for(v(X + 16 * g + 4 * i, 4))
            if i == 0 and g == 0:
                stamp(a, 3)
            for d in range(4):
                x = v(X + 16 * g + 4 * i + d)
                a("v_dot2c_f32_bf16 %s, s52, %s" % (v(56 + g), x))
                a("v_dot2c_f32_bf16 %s, %s, %s" % (v(58 + g), x, x))
            if i == 0:
                for d in range(4):
                    a("v_lshlrev_b32 %s, 16, %s" % (v(U + 8 * g + 2 * d), v(X + 16 * g + d)))
                    a("v_and_b32 %s, 0xffff0000, %s" % (v(U + 8 * g + 2 * d + 1), v(X + 16 * g + d)))
    stamp(a, 4)
    dpp_sum(a, [56, 57, 58, 59], ROR)
    for g in range(2):
        a("v_mul_f32 %s, %s, %s" % (v(56 + g), f32(1 / 512), v(56 + g)))
    for g in range(2):
        a("v_mul_f32 %s, %s, %s" % (v(60 + 2 * g), v(56 + g), v(56 + g)))
    for g in range(2):
        a("v_sub_f32 %s, %s, %s" % (v(60 + 2 * g), f32(EPS), v(60 + 2 * g)))
    for g in range(2):
        a("v_fmac_f32 %s, %s, %s" % (v(60 + 2 * g), f32(1 / 512), v(58 + g)))
    for g in range(2):
        a("v_rsq_f32 %s, %s" % (v(60 + 2 * g), v(60 + 2 * g)))
    for g in range(2):
        a("v_mul_f32 %s, %s, %s" % (v(61 + 2 * g), v(56 + g), v(60 + 2 * g)))
    for g in range(2):
        p = v(60 + 2 * g, 2)
        for d in range(4):
            u = v(U + 8 * g + 2 * d, 2)
            a("v_pk_fma_f32 %s, %s, %s, %s op_sel:[0,0,1] op_sel_hi:[1,0,1] neg_lo:[0,0,1] neg_hi:[0,0,1]" % (u, u, p, p))
        for d in range(4):
            a("v_cvt_pk_bf16_f32 %s, %s, %s" % (v(X + 16 * g + d), v(U + 8 * g + 2 * d), v(U + 8 * g + 2 * d + 1)))
        a("ds_write_b128 v10, %s offset:%d" % (v(X + 16 * g, 4), 4 * PITCH * g))
    if HF:
        a("s_lshl_b32 s53, s2, %d" % FSH)
        a("s_add_u32 s53, s53, 0x%x" % WS_FLAG)
    a("s_waitcnt vmcnt(0)")
    get_tag(a)
    if HF:
        a("s_cmp_lg_u32 s5, 7")
    a("s_barrier")
    stamp(a, 5)
    if HF:
        a("s_cbranch_scc1 L_nohint")
        a("s_mov_b64 exec, 1")
        a("buffer_store_dword %s, off, s[12:15], s53 sc1" % v(VTAG))
        a("s_mov_b64 exec, -1")
        a.label("L_nohint")
    B = 64
    for ks in range(2):
        for i in range(4):
            for hf in range(2):
                a("ds_read_b64_tr_b16 %s, v11 offset:%d" % (v(B + 16 * ks + 4 * i + 2 * hf, 2), ks * 32 * PITCH + hf * 16 * PITCH + i * 32))
    if not HF:
        flag_store(a)
    ACC = 96
    for ks in range(2):
        for i in range(4):
            a.wait_lg_for(v(B + 16 * ks + 4 * i, 4))
            acc = v(ACC + 4 * i, 4)
            a("v_mfma_f32_16x16x32_bf16 %s, %s, %s, %s" % (acc, v(WA + 4 * ks, 4), v(B + 16 * ks + 4 * i, 4), "0" if ks == 0 else acc))
    O = 16
    for i in range(4):
        for p in range(2):
            a("v_cvt_pk_bf16_f32 %s, %s, %s" % (v(O + 4 * p + i), v(ACC + 4 * i + 2 * p), v(ACC + 4 * i + 2 * p + 1)))
    for p in range(2):
        a("buffer_store_dwordx4 %s, v13, s[12:15], %s offen sc1" % (v(O + 4 * p, 4), s(54 + p)))
    stamp(a, 6)
    a("s_cmp_lg_u32 s2, %d" % XWG)
    a("s_cbranch_scc1 L_notx")
    a("s_call_b64 s[100:101], L_setup")
    a("s_branch L_p2")
    a.label("L_notx")
    if ADEL == 1:
        a("s_waitcnt vmcnt(0)")
    a("s_cmp_lt_u32 s4, 7")
    a("s_cbranch_scc1 L_ffn")
    if ADEL == 2:
        a("s_waitcnt vmcnt(0)")
    a("s_sub_u32 s44, s4, 7")
    a("s_lshl3_add_u32 s44, s44, s5")
    for k in range(2):
        touch(a, 1, 196 + k, k == 0)
        if k == 0:
            a("s_add_u32 s44, s44, 64")
            a("s_cmp_ge_u32 s44, 96")
            a("s_cbranch_scc1 L_done")
    a("s_branch L_done")
    dft_block = a.lines[mark:]
    del a.lines[mark:]
    a.label("L_notdft")
    a.join(st0)
    a("s_sub_u32 s59, s2, 128")
    srd(a, 36, 512 * 6144)
    a("s_cmp_ge_u32 s4, 22")
    st1 = a.fork()
    a("s_cbranch_scc1 L_notmod")
    srd(a, 32, 1024)
    a("""
    s_sub_u32 s6, s2, 128
    s_lshl_b32 s48, s6, 7
    """)
    for i in range(1, 8):
        a("s_add_u32 %s, s48, %d" % (s(48 + i), 6144 * i))
    a("""
    v_lshrrev_b32 v4, 3, v0
    v_and_b32 v5, 7, v0
    v_mul_u32_u24 v6, 0xc000, v4
    v_lshl_add_u32 v6, v5, 4, v6
    v_and_b32 v7, 3, v0
    v_lshlrev_b32 v7, 2, v7
    v_lshl_add_u32 v7, v4, 4, v7
    s_waitcnt lgkmcnt(0)
    s_mov_b64 s[36:37], s[26:27]
    s_mov_b64 s[32:33], s[24:25]
    """)
    stamp(a, 1)
    a("buffer_load_dword v8, v7, s[32:35], 0 offen")
    W = 16
    for i in range(8):
        a("buffer_load_dwordx4 %s, v6, s[36:39], %s offen" % (v(W + 4 * i, 4), s(48 + i)))
    a("s_load_dword s47, s[12:13], 0x%x" % WS_GEN)
    if MODFIRST == 2:
        a("s_cmp_lt_u32 s5, 4")
        a("s_cbranch_scc1 L_mod")
    if MODFIRST != 1:
        a("s_call_b64 s[100:101], L_setup")
    a("s_branch L_mod")
    mark = len(a.lines)
    a.label("L_mod")
    a("""
    s_mov_b32 s44, 0x05040100
    s_mov_b32 s46, 0x07060302
    s_lshr_b32 s48, s6, 3
    s_cmp_eq_u32 s48, 1
    s_cselect_b32 s50, 1.0, 0
    s_cmp_eq_u32 s48, 4
    s_cselect_b32 s50, 1.0, s50
    v_lshlrev_b32 v6, 1, v2
    v_lshl_add_u32 v6, v5, 3, v6
    v_and_b32 v7, 15, v6
    v_lshrrev_b32 v9, 4, v6
    v_lshl_add_u32 v10, v7, 2, v9
    v_and_b32 v7, 3, v6
    v_lshl_add_u32 v7, v9, 2, v7
    v_bfe_u32 v9, v6, 2, 2
    v_lshl_add_u32 v7, v9, 4, v7
    v_lshlrev_b32 v9, 8, v3
    v_lshl_add_u32 v10, v10, 2, v9
    v_lshl_add_u32 v7, v7, 2, v9
    s_lshl_b32 s58, s6, 8
    """)
    for j in range(8):
        a("v_mov_b32 %s, 0" % v(48 + j))
    stamp(a, 2)
    a.wait_vm_for("v8")
    get_tag(a)
    stamp(a, 3)
    a("v_lshlrev_b32 v11, 16, v8")
    a("v_and_b32 v12, 0xffff0000, v8")
    a("v_mul_f32 v13, %s, v11" % f32(-LOG2E))
    a("v_mul_f32 v14, %s, v12" % f32(-LOG2E))
    a("""
    v_exp_f32 v13, v13
    v_exp_f32 v14, v14
    v_add_f32 v13, 1.0, v13
    v_add_f32 v14, 1.0, v14
    v_rcp_f32 v13, v13
    v_rcp_f32 v14, v14
    v_mul_f32 v11, v11, v13
    v_mul_f32 v12, v12, v14
    v_cvt_pk_bf16_f32 v8, v11, v12
    """)
    for p in range(4):
        a("v_mov_b32_dpp %s, v8 quad_perm:[%d,%d,%d,%d] row_mask:0xf bank_mask:0xf" % (v(12 + p), p, p, p, p))
    for p in range(4):
        a.wait_vm_for(v(W + 8 * p, 8))
        for jj in range(4):
            a("v_perm_b32 %s, %s, %s, s44" % (v(56 + 2 * jj), v(W + 8 * p + 4 + jj), v(W + 8 * p + jj)))
            a("v_perm_b32 %s, %s, %s, s46" % (v(57 + 2 * jj), v(W + 8 * p + 4 + jj), v(W + 8 * p + jj)))
        for j in range(8):
            a("v_dot2c_f32_bf16 %s, %s, %s" % (v(48 + j), v(12 + p), v(56 + j)))
    stamp(a, 4)
    if MH == 0:
        flag_store(a, 7)
    for j in range(4):
        a("v_permlane32_swap_b32 %s, %s" % (v(48 + j), v(52 + j)))
    for j in range(4):
        a("v_add_f32 %s, %s, %s" % (v(48 + j), v(48 + j), v(52 + j)))
    for j in range(2):
        a("v_permlane16_swap_b32 %s, %s" % (v(48 + j), v(50 + j)))
    for j in range(2):
        a("v_add_f32 %s, %s, %s" % (v(48 + j), v(48 + j), v(50 + j)))
    dpp_sum(a, [48, 49], ROR[:1])
    a("""
    s_mov_b32 exec_lo, 0x00ff00ff
    s_mov_b32 exec_hi, 0x00ff00ff
    s_cmp_lt_u32 s6, 16
    s_cbranch_scc1 L_mod_w4
    ds_write_b64 v7, v[48:49]
    s_branch L_mod_w
    """)
    a.label("L_mod_w4")
    a("ds_write2_b32 v10, v48, v49 offset0:0 offset1:4")
    a.label("L_mod_w")
    a("s_mov_b64 exec, -1")
    if MODFIRST == 2:
        a("s_cmp_ge_u32 s5, 4")
        a("s_cbranch_scc1 L_mod_b")
        a("s_call_b64 s[100:101], L_setup")
        a.label("L_mod_b")
    a("""
    s_waitcnt lgkmcnt(0)
    s_barrier
    """)
    if MH == 1:
        flag_store(a, 1)
    stamp(a, 5)
    a("""
    s_cmp_lg_u32 s5, 0
    s_cbranch_scc1 L_mod_end
    s_mov_b64 exec, 0xffff
    """)
    for k in range(8):
        a("ds_read_b128 %s, v250 offset:%d" % (v(16 + 4 * k, 4), 256 * k))
    a("v_mov_b32 v49, v249")
    a("v_mov_b32 v51, v249")
    for k in range(0, 8, 2):
        a.wait_lg_for(v(16 + 4 * k, 8))
        a("v_pk_add_f32 %s, %s, %s" % (v(16 + 4 * k, 2), v(16 + 4 * k, 2), v(20 + 4 * k, 2)))
        a("v_pk_add_f32 %s, %s, %s" % (v(18 + 4 * k, 2), v(18 + 4 * k, 2), v(22 + 4 * k, 2)))
    a("""
    v_pk_add_f32 v[16:17], v[16:17], v[24:25]
    v_pk_add_f32 v[18:19], v[18:19], v[26:27]
    v_pk_add_f32 v[32:33], v[32:33], v[40:41]
    v_pk_add_f32 v[34:35], v[34:35], v[42:43]
    v_pk_add_f32 v[16:17], v[16:17], v[32:33]
    v_pk_add_f32 v[18:19], v[18:19], v[34:35]
    v_cvt_pk_bf16_f32 v48, v16, v17
    v_cvt_pk_bf16_f32 v50, v18, v19
    s_cmp_eq_u32 s50, 0
    s_cbranch_scc1 L_mod_st
    v_lshlrev_b32 v16, 16, v48
    v_and_b32 v17, 0xffff0000, v48
    v_lshlrev_b32 v18, 16, v50
    v_and_b32 v19, 0xffff0000, v50
    v_pk_add_f32 v[16:17], v[16:17], 1.0 op_sel_hi:[1,0]
    v_pk_add_f32 v[18:19], v[18:19], 1.0 op_sel_hi:[1,0]
    v_cvt_pk_bf16_f32 v48, v16, v17
    v_cvt_pk_bf16_f32 v50, v18, v19
    """)
    a.label("L_mod_st")
    a("buffer_store_dwordx4 v[48:51], v250, s[12:15], s58 offen sc1")
    a("s_mov_b64 exec, -1")
    if MH == 2:
        flag_store(a)
    a.label("L_mod_end")
    if MODFIRST == 1:
        a("s_call_b64 s[100:101], L_setup")
    mod_block = a.lines[mark:]
    del a.lines[mark:]
    a.label("L_notmod")
    a.join(st1)
    a("""
    s_sub_u32 s58, s4, 22
    s_lshl3_add_u32 s7, s58, s5
    s_mul_i32 s7, s7, 0x6000
    s_lshl_b32 s44, s3, 7
    s_add_u32 s7, s7, s44
    s_add_u32 s7, s7, 0x120000
    s_add_u32 s44, s7, 4096
    v_mul_u32_u24 v4, 6144, v2
    v_bfe_u32 v5, v0, 3, 1
    v_lshl_add_u32 v4, v5, 10, v4
    v_and_b32 v5, 7, v0
    v_lshl_add_u32 v4, v5, 4, v4
    s_waitcnt lgkmcnt(0)
    s_mov_b64 s[36:37], s[26:27]
    """)
    if HELP == 2:
        a("s_cmp_lt_u32 s4, 29")
        a("s_cbranch_scc1 L_nohelp")
    if HELP:
        a("buffer_load_dwordx4 v[180:183], v4, s[36:39], s7 offen")
        a("buffer_load_dwordx4 v[184:187], v4, s[36:39], s7 offen offset:2048")
        a("buffer_load_dwordx4 v[188:191], v4, s[36:39], s44 offen")
    a.label("L_nohelp")
    a("s_load_dword s47, s[12:13], 0x%x" % WS_GEN)
    a("s_call_b64 s[100:101], L_setup")
    get_tag(a)
    if BT:
        a("s_cmp_ge_u32 s5, %d" % BT)
        a("s_cbranch_scc1 L_p2")
        a("s_mul_i32 s44, s58, %d" % BT)
        a("s_add_u32 s44, s44, s5")
        touch(a, 0, 195, True)
    a("s_branch L_p2")
    setup(a)
    a.lines += dft_block + mod_block
    a.label("L_p2", reset=True)
    a("""
    s_lshl_b32 s45, s59, 12
    s_add_u32 s44, s45, s62
    """)
    a("s_add_u32 s45, s45, 0x%x               ; candidate slots of this workgroup" % WS_CAND)
    a("s_add_u32 s44, s44, 0x%x" % WS_CAND)
    a("s_cmp_lt_u32 s5, 4")
    a("s_cselect_b32 s44, s44, 0x%x" % OOB)
    if CPOS == 0:
        a("buffer_store_dwordx4 v[252:255], v250, s[12:15], s44 offen sc1")
    srd(a, 28, 2048 * 1024)
    a("s_mov_b64 s[24:25], s[16:17]")
    srd(a, 24, 1024)
    a("""
    s_lshl_b32 s56, s5, 6
    s_add_u32 s56, s56, s61
    s_sub_u32 s57, 2048, s56
    s_lshl_b32 s50, s57, 10
    s_lshl_b32 s49, s56, 10
    v_lshlrev_b32 v7, 5, v1
    v_lshl_add_u32 v7, v2, 3, v7          ; 32n + 8q
    buffer_load_dwordx2 v[56:57], v7, s[8:11], s49 offen
    buffer_load_dwordx2 v[58:59], v7, s[8:11], s49 offen offset:512
    buffer_load_dwordx2 v[84:85], v7, s[8:11], s50 offen
    buffer_load_dwordx2 v[86:87], v7, s[8:11], s50 offen offset:512
    buffer_load_dwordx2 v[60:61], v7, s[24:27], 0 offen
    buffer_load_dwordx2 v[62:63], v7, s[24:27], 0 offen offset:512
    s_lshl1_add_u32 s52, s4, s5
    s_and_b32 s52, s52, 7
    s_lshl_b32 s53, s52, 8
    v_lshlrev_b32 v4, 4, v1
    v_add_u32 v4, s53, v4                 ; cb*256 + n*16
    v_lshl_add_u32 v5, v2, 11, v4
    v_add_u32 v179, 0x8000, v5
    s_lshl_b32 s40, s60, 16
    s_lshl_b32 s53, s52, 3
    """)
    a("s_add_u32 s40, s40, 0x%x" % WS_INTER)
    a("""
    s_add_u32 s41, s40, 0x2000
    s_add_u32 s42, s40, 0x4000
    s_add_u32 s43, s40, 0x6000
    v_mul_u32_u24 v8, 80, v1
    v_mul_u32_u24 v9, 5120, v2
    v_add3_u32 v9, v9, s53, v8
    v_mul_u32_u24 v12, 2560, v3
    v_lshl_add_u32 v10, v2, 4, v8
    v_or_b32 v11, s61, v2
    v_cmp_eq_u32 vcc, 0, v11
    v_mov_b32 v11, 0x45000000
    v_cndmask_b32 v11, 0, v11, vcc
    """)
    a("v_add_u32 v9, %d, v9                   ; U write address" % LDS_U)
    a("v_add_u32 v12, %d, v12                 ; scratch row of this wave" % LDS_SCR)
    a("v_sub_u32 v176, v12, v10")
    a("v_add_u32 v176, %d, v176               ; mirrored position of elements 1..3 (g = 1)" % (15 * 80 + 52))
    a("v_add_u32 v178, 1280, v176")
    a("v_add_u32 v14, v10, v12")
    a("v_add_u32 v10, %d, v14                 ; U read address" % ((LDS_U - LDS_SCR) & 0xffffffff))
    a("v_cmp_eq_u32 vcc, 0, v2")
    a("v_cndmask_b32 v177, 12, 28, vcc")
    a("v_add_u32 v177, v177, v176")
    a("v_add_u32 v196, 1280, v177")
    a("v_cmp_eq_u32 vcc, 0, v250")
    a("v_cndmask_b32 v196, v196, v12, vcc")
    a("v_add_u32 v15, v12, v250")
    a("v_add_u32 v12, v12, v7")
    a("""
    s_lshl_b32 s46, s59, 5
    s_lshl2_add_u32 s46, s5, s46
    s_mov_b32 s38, 0xffffe000
    s_mov_b32 s39, 0xffffe000
    s_cmp_eq_u32 s56, 0
    s_cselect_b32 s39, 0, s39
    s_cmp_lg_u32 s59, 128
    s_cbranch_scc1 L_live
    s_mov_b32 s39, 0
    s_cmp_eq_u32 s5, 0
    s_cselect_b32 s38, s38, 0
    """)
    a.label("L_live")
    a("s_cmp_eq_u32 s38, 0")
    a("s_cselect_b32 s49, 0x%x, s49" % OOB)
    a("s_cselect_b32 s36, 0, s46")
    a("s_add_u32 s37, s46, 2")
    a("s_cmp_eq_u32 s39, 0")
    a("s_cselect_b32 s50, 0x%x, s50" % OOB)
    a("s_cselect_b32 s37, 0, s37")
    a("s_lshl_b32 s51, s3, 7")
    a("s_add_u32 s51, s51, 0x%x" % WS_PRE)
    a("s_xor_b32 s53, s4, 31")
    a("s_or_b32 s53, s53, s5")
    a("s_cselect_b32 s51, 0x%x, s51" % OOB)
    stamp(a, 7)
    L = 16
    XU, WU, XM, GAM, PP, PM = 112, 120, 160, 168, 180, 188
    VEC = 128
    GA, SB, CB, GB = VEC, VEC + 8, VEC + 16, VEC + 24

    def inter_load(ks, r):
        a("buffer_load_dwordx4 %s, %s, s[12:15], %s offen sc1" % (v(L + 16 * ks + 4 * r, 4), "v179" if ks else "v5", s(40 + r)))

    def unpack(dst, src):
        for d in range(4):
            a("v_lshlrev_b32 %s, 16, %s" % (v(dst + 2 * d), v(src + d)))
            a("v_and_b32 %s, 0xffff0000, %s" % (v(dst + 2 * d + 1), v(src + d)))

    def mirror_write(src, a0, a123, off=0):
        a("ds_write_b32 %s, %s offset:%d" % (a0, v(src), off))
        a("ds_write_b32 %s, %s offset:%d" % (a123, v(src + 1), off + 8))
        a("ds_write_b32 %s, %s offset:%d" % (a123, v(src + 2), off + 4))
        a("ds_write_b32 %s, %s offset:%d" % (a123, v(src + 3), off))

    def mirror(dst, src):
        for b, a0, a123 in ((src, "v196", "v178"), (src + 4, "v177", "v176")):
            a("ds_write_b32 %s, %s" % (a0, v(b)))
            a("ds_write_b32 %s, %s offset:8" % (a123, v(b + 1)))
            a("ds_write2_b32 %s, %s, %s offset0:1 offset1:0" % (a123, v(b + 2), v(b + 3)))
        a("ds_read_b128 %s, v14" % v(dst, 4))
        a("ds_read_b128 %s, v14 offset:1280" % v(dst + 4, 4))

    def mod_loads():
        a("buffer_load_dwordx4 v[48:51], v4, s[12:15], 0 offen offset:%d sc1" % (WS_MOD + 2048))
        a("buffer_load_dwordx4 v[52:55], v4, s[12:15], 0 offen offset:%d sc1" % WS_MOD)
        a("buffer_load_dwordx4 v[64:67], v197, s[12:15], s55 offen sc1")

    def vec_read(reg, k):
        a("ds_read_b128 %s, v198 offset:%d" % (v(reg, 4), 2560 * k))
        a("ds_read_b128 %s, v198 offset:%d" % (v(reg + 4, 4), 2560 * k + 1280))

    def tag_check(regs_):
        a("v_xor_b32 v88, %s, v249" % v(regs_[0]))
        a("v_xor_b32 v89, %s, v249" % v(regs_[1]))
        for k, r in enumerate(regs_[2:]):
            a("v_bitop3_b32 %s, %s, %s, v249 bitop3:0xf6" % (v(88 + k % 2), v(88 + k % 2), v(r)))
        a("v_or_b32 v88, v88, v89")
        a("v_cmp_ne_u32 vcc, 0, v88")

    def widen(base, n):
        for b in range(base, base + n, 2):
            a("v_and_b32 %s, 0xffff0000, %s" % (v(b + 1), v(b)))
            a("v_lshlrev_b32 %s, 16, %s" % (v(b), v(b)))

    a("s_add_u32 s55, s62, %d" % (WS_MOD + 4096))
    a("""
    v_and_b32 v197, 3, v0
    v_lshlrev_b32 v197, 4, v197
    v_lshl_add_u32 v197, v2, 6, v197
    v_bfe_u32 v68, v0, 2, 2
    v_lshl_add_u32 v197, v68, 8, v197
    v_mul_u32_u24 v68, 80, v1
    v_lshl_add_u32 v198, v2, 4, v68
    """)
    a("v_add_u32 v198, %d, v198               ; vector read address" % LDS_VEC)
    a("""
    s_mul_i32 s53, s5, 1280
    v_add_u32 v90, s53, v198
    s_bitcmp1_b32 s5, 0
    s_cselect_b64 vcc, -1, 0
    v_cndmask_b32 v91, v196, v177, vcc
    v_cndmask_b32 v199, v178, v176, vcc
    s_lshr_b32 s53, s5, 1
    s_sub_u32 s53, s53, s5
    s_mul_i32 s53, s53, 2560
    """)
    a("s_add_u32 s53, s53, %d" % (LDS_VEC + 4 * 2560 - LDS_SCR))
    a("v_add_u32 v91, s53, v91")
    a("v_add_u32 v199, s53, v199")
    a("s_waitcnt vmcnt(0)")
    unpack(XU, 56)
    unpack(72, 84)
    unpack(WU, 60)
    mirror(XM, 72)
    a("s_bitcmp1_b32 s5, 0")
    a("s_cselect_b64 vcc, -1, 0")
    for j in range(4):
        a("v_cndmask_b32 %s, %s, %s, vcc" % (v(92 + j), v(WU + j), v(WU + 4 + j)))
    a("s_cmp_lt_u32 s5, 2")
    a("s_cselect_b64 vcc, -1, 0")
    for j in range(4):
        a("v_cndmask_b32 %s, %s, 1.0, vcc" % (v(92 + j), v(92 + j)))
    a("s_mov_b32 s54, %d" % SPIN)
    a("s_waitcnt lgkmcnt(0)")
    if PROG:
        a("""
        v_and_b32 v8, 7, v0
        v_bfe_u32 v6, v0, 3, 2
        v_lshl_add_u32 v8, v6, 5, v8
        s_lshr_b32 s52, s52, 1
        """)
        a("v_lshlrev_b32 v8, %d, v8" % FSH)
        a("s_lshl_b32 s52, s52, %d" % (FSH + 3))
        a("s_add_u32 s52, s52, 0x%x" % WS_FLAG)
        a("s_mov_b32 s32, -1")
        a("s_mov_b32 s33, 0")
        a("s_mov_b32 s48, 0")
        a.label("L_poll1")
        a("s_mov_b64 exec, s[32:33]")
        a("buffer_load_dword v6, v8, s[12:15], s52 offen sc1")
        a("s_waitcnt vmcnt(0)")
        a("v_cmp_ne_u32 vcc, v6, %s" % v(VTAG))
        a("s_mov_b64 exec, -1")
        a("""
        s_mov_b32 s32, vcc_lo
        s_lshr_b32 s34, s32, 1
        s_or_b32 s34, s34, s32
        s_lshr_b32 s35, s34, 2
        s_or_b32 s34, s34, s35
        s_or_b32 s34, s34, s48
        s_andn2_b32 s34, 0x11111111, s34
        s_cbranch_scc0 L_skip7
        s_or_b32 s48, s48, s34
        """)
        for i in range(8):
            a("s_bitcmp1_b32 s34, %d" % (4 * i))
            a("s_cbranch_scc0 L_skip%d" % i)
            inter_load(i // 4, i % 4)
            a.label("L_skip%d" % i)
        a("s_cmp_eq_u32 s32, 0")
        poll_tail(a, "L_poll1")
        stamp(a, 8)
        a("s_mov_b32 s54, %d" % SPIN)
        a("s_branch L_inter_go")
        a.vm = []
    else:
        a("s_cmp_ge_u32 s5, 2")
        a("s_cbranch_scc1 L_poll1_ok")
        a("v_lshlrev_b32 v8, %d, v0" % FSH)
        a("s_mov_b32 s52, 0x%x" % WS_FLAG)
        a.label("L_poll1")
        a("buffer_load_dword v6, v8, s[12:15], s52 offen sc1")
        a("s_waitcnt vmcnt(0)")
        a("v_cmp_ne_u32 vcc, v6, %s" % v(VTAG))
        a("s_and_b64 exec, exec, vcc")
        a("s_cmp_eq_u64 exec, 0")
        poll_tail(a, "L_poll1")
        a("s_mov_b64 exec, -1")
        a("s_mov_b32 s54, %d" % SPIN)
        a("s_barrier")
        stamp(a, 8)
    a.label("L_inter")
    for ks in range(2):
        for r in range(4):
            inter_load(ks, r)
    a.label("L_inter_go")
    mod_loads()
    ACC = 96
    for ks in range(2):
        a.wait_vm_for(v(L, 32) if PROG else v(L + 16 * ks, 16))
        if ks == 1 - PROG:
            stamp(a, 9)
        TT = 68 if ks == 0 else 16
        b = L + 16 * ks
        for i in range(4):
            for hp in range(2):
                o = i & 1
                a("v_pk_mov_b32 %s, %s, %s op_sel:[%d,%d]" % (v(TT + 4 * i + 2 * hp, 2), v(b + 8 * hp + (i & 2), 2), v(b + 8 * hp + 4 + (i & 2), 2), o, o))
        for i in range(4):
            acc = v(ACC + 4 * i, 4)
            a("v_mfma_f32_16x16x32_bf16 %s, %s, %s, %s" % (acc, v(SA + 4 * ks, 4), v(TT + 4 * i, 4), "0" if ks == 0 else acc))
    a("""
    v_max3_u32 v6, v68, v69, v70
    v_max3_u32 v8, v71, v16, v17
    v_max3_u32 v6, v6, v18, v19
    v_max_u32 v6, v6, v8
    v_cmp_eq_u32 vcc, -1, v6
    s_waitcnt vmcnt(0)
    s_cmp_eq_u64 vcc, 0
    """)
    poll_tail(a, "L_inter")
    a("s_mov_b32 s54, %d" % SPIN)
    a("s_branch L_modv_chk")
    a.label("L_modv")
    mod_loads()
    a("s_waitcnt vmcnt(0)")
    a.label("L_modv_chk")
    tag_check([49, 51, 53, 55, 65, 67])
    a("v_and_b32 v65, 0xffff0000, v64")
    a("v_and_b32 v67, 0xffff0000, v66")
    a("s_cmp_eq_u64 vcc, 0")
    poll_tail(a, "L_modv")
    a("""
    v_lshlrev_b32 v64, 16, v64
    v_lshlrev_b32 v66, 16, v66
    ds_write_b128 v90, v[64:67]
    s_bitcmp1_b32 s5, 1
    s_cbranch_scc1 L_nop
    v_pk_mul_f32 v[92:93], v[92:93], v[64:65]
    v_pk_mul_f32 v[94:95], v[94:95], v[66:67]
    ds_write_b32 v91, v92
    ds_write_b32 v199, v93 offset:8
    ds_write2_b32 v199, v94, v95 offset0:1 offset1:0
    s_cmp_lt_u32 s5, 2
    s_cbranch_scc1 L_nop
    ds_write_b128 v90, v[92:95] offset:7680
    """)
    a.label("L_nop")
    widen(48, 8)
    for i in range(4):
        a("v_mul_f32 %s, v11, %s" % (v(52 + i), v(52 + i)))
    if FINE == 1:
        stamp(a, 1)
    P = 32
    for i in range(4):
        c = ACC + 4 * i
        a("v_fma_f32 %s, %s, %s, %s" % (v(c), v(c), v(48 + i), v(52 + i)))
        a("v_mul_f32 %s, %s, %s" % (v(c + 1), v(c + 1), v(48 + i)))
        a("v_pk_mul_f32 %s, %s, %s op_sel:[0,%d] op_sel_hi:[1,%d]" % (v(c + 2, 2), v(c + 2, 2), v(48 + (i & 2), 2), i & 1, i & 1))
        for tt in range(2):
            a("v_cvt_pk_bf16_f32 %s, %s, %s" % (v(P + 4 * tt + 2 * (i % 2) + i // 2), v(c + 2 * tt), v(c + 2 * tt + 1)))
        if i >= 2:
            for tt in range(2):
                a("ds_write_b64 v9, %s offset:%d" % (v(P + 4 * tt + 2 * (i - 2), 2), tt * 2560 + (i - 2) * 1280))
    a("s_waitcnt lgkmcnt(0)")
    if FINE == 1:
        stamp(a, 2)
    a("s_barrier")
    if FINE == 1:
        stamp(a, 3)
    D = 24
    a("ds_read_b128 %s, v10" % v(D, 4))
    a("ds_read_b128 %s, v10 offset:1280" % v(D + 4, 4))

    def notice():
        a("s_mov_b64 exec, 1")
        a("buffer_store_dword %s, off, s[12:15], s51 sc1" % v(VTAG))
        a("s_mov_b64 exec, -1")
    if PRE == 1:
        notice()
    a("v_mov_b32 v80, s38")
    a("v_mov_b32 v81, s36")
    a("v_lshlrev_b32 v11, 3, v3")
    a("v_add_u32 v11, %d, v11" % LDS_KEY)
    a("v_mov_b32 v13, %d" % LDS_KEY)
    a("s_mov_b32 exec_lo, 0")
    a("v_mov_b32 v80, s39")
    a("v_mov_b32 v81, s37")
    a("v_add_u32 v11, 4, v11")
    a("s_mov_b32 exec_lo, -1")
    BR, BI = 32, 40
    for h in range(2):
        a.wait_lg_for(v(D + 4 * h, 4))
        a("v_mfma_f32_16x16x32_bf16 %s, %s, %s, 0" % (v(BR + 4 * h, 4), v(D + 4 * h, 4), v(FR, 4)))
        a("v_mfma_f32_16x16x32_bf16 %s, %s, %s, 0" % (v(BI + 4 * h, 4), v(D + 4 * h, 4), v(FI, 4)))
    A2 = 16
    Y = 64
    for h in range(2):
        for j in range(0, 4, 2):
            br, bi, tc, ts = v(BR + 4 * h + j, 2), v(BI + 4 * h + j, 2), v(TC + 4 * h + j, 2), v(TS + 4 * h + j, 2)
            a("v_pk_mul_f32 %s, %s, %s" % (v(48 + j, 2), br, tc))
            a("v_pk_mul_f32 %s, %s, %s" % (v(52 + j, 2), bi, tc))
            a("v_pk_fma_f32 %s, %s, %s, %s" % (v(48 + j, 2), bi, ts, v(48 + j, 2)))
            a("v_pk_fma_f32 %s, %s, %s, %s neg_lo:[1,0,0] neg_hi:[1,0,0]" % (v(52 + j, 2), br, ts, v(52 + j, 2)))
        if h == 0:
            vec_read(PP, 5)
            vec_read(GA, 0)
        else:
            vec_read(GAM, 4)
            vec_read(PM, 6)
        for k in range(4):
            a("v_cvt_pk_bf16_f32 %s, %s, %s" % (v(A2 + 4 * h + k), v(48 + 2 * k), v(49 + 2 * k)))
        for gg in range(2):
            y = v(Y + 4 * gg, 4)
            a("v_mfma_f32_16x16x32_bf16 %s, %s, %s, %s" % (y, v(A2 + 4 * h, 4), v(G + 8 * h + 4 * gg, 4), "0" if h == 0 else y))
    if FINE:
        stamp(a, 4)
    if PRE == 2:
        notice()
    a("v_mov_b32 v57, %s" % v(VTAG))
    a("v_mov_b32 v59, %s" % v(VTAG))
    a("s_lshl_b32 s58, s59, %d" % KSH)
    a("s_add_u32 s58, s58, 0x%x" % WS_KEYS)
    a("s_cmp_eq_u32 s5, 0")
    a("s_cselect_b32 s58, s58, 0x%x" % OOB)
    rows = ((XU, GA, PP, 32), (XM, GAM, PM, 40))
    a.wait_lg_for(v(PP, 8))
    a("v_pk_add_f32 v[38:39], %s, %s" % (v(PP, 2), v(PP + 2, 2)))
    a("v_pk_add_f32 v[46:47], %s, %s" % (v(PP + 4, 2), v(PP + 6, 2)))
    a("v_pk_add_f32 v[38:39], v[38:39], v[46:47]")
    a("v_add_f32 v38, v38, v39")
    a("v_mov_b32 v46, v38")
    for xx, ga, pp, tp in rows:
        a.wait_lg_for(v(ga, 8))
        for e in range(0, 8, 2):
            a("v_pk_fma_f32 %s, %s, %s, %s" % (v(xx + e, 2), v(ga + e, 2), v(Y + e, 2), v(xx + e, 2)))
    XN = 72
    for xx, ga, pp, tp in rows:
        a.wait_lg_for(v(pp, 8))
        a("v_pk_add_f32 %s, %s, %s" % (v(tp, 2), v(xx, 2), v(xx + 2, 2)))
        a("v_pk_mul_f32 %s, %s, %s" % (v(tp + 2, 2), v(xx, 2), v(xx, 2)))
        a("v_pk_mul_f32 %s, %s, %s" % (v(tp + 4, 2), v(xx, 2), v(pp, 2)))
        for e in range(2, 8, 2):
            if e > 2:
                a("v_pk_add_f32 %s, %s, %s" % (v(tp, 2), v(tp, 2), v(xx + e, 2)))
            a("v_pk_fma_f32 %s, %s, %s, %s" % (v(tp + 2, 2), v(xx + e, 2), v(xx + e, 2), v(tp + 2, 2)))
            a("v_pk_fma_f32 %s, %s, %s, %s" % (v(tp + 4, 2), v(xx + e, 2), v(pp + e, 2), v(tp + 4, 2)))
        for k in range(3):
            a("v_add_f32 %s, %s, %s" % (v(tp + 2 * k), v(tp + 2 * k), v(tp + 2 * k + 1)))
    for k in (3, 0, 1, 2):
        a("v_permlane32_swap_b32 %s, %s" % (v(32 + 2 * k), v(40 + 2 * k)))
    for k in (3, 0, 1, 2):
        a("v_add_f32 %s, %s, %s" % (v(32 + 2 * k), v(32 + 2 * k), v(40 + 2 * k)))
    a("v_permlane16_swap_b32 v32, v34")
    a("v_permlane16_swap_b32 v36, v38")
    a("v_add_f32 v32, v32, v34")
    a("v_add_f32 v36, v36, v38")
    if EARLYH:
        extra = []
        for b, a0, a123 in ((XM, "v196", "v178"), (XM + 4, "v177", "v176")):
            extra += ["ds_write_b32 %s, %s" % (a0, v(b)), "ds_write_b32 %s, %s offset:8" % (a123, v(b + 1)), "ds_write2_b32 %s, %s, %s offset0:1 offset1:0" % (a123, v(b + 2), v(b + 3))]
        for k, mod in enumerate(ROR):
            for r in (32, 36):
                a("v_add_f32_dpp %s, %s, %s %s" % (v(r), v(r), v(r), mod))
            for t in extra[(k * 6) // 4:((k + 1) * 6) // 4]:
                a(t)
    else:
        dpp_sum(a, [32, 36], ROR)
    if FINE == 1:
        stamp(a, 5)
    if PRE == 3:
        notice()
    a("v_mov_b32_dpp v33, v32 %s" % BC[0])
    a("v_mov_b32_dpp v37, v36 %s" % BC[0])
    a("v_mul_f32 v33, %s, v33                 ; mean" % f32(1 / 512))
    a("v_mul_f32 v34, v33, v33")
    a("v_sub_f32 v34, %s, v34" % f32(EPS))
    a("v_fmac_f32 v34, %s, v32" % f32(1 / 512))
    a("v_rsq_f32 v34, v34")
    a("""
    v_fma_f32 v36, -v33, v36, v37
    v_mul_f32 v8, v36, v34
    v_ashrrev_i32 v9, 31, v8
    v_or_b32 v9, s63, v9
    v_xor_b32 v8, v8, v9
    v_and_or_b32 v8, v8, v80, v81
    s_mov_b32 exec_lo, 0x80000000
    s_mov_b32 exec_hi, 0x80000000
    ds_write_b32 v11, v8
    s_mov_b64 exec, -1
    v_mul_f32 v35, v33, v34
    s_cmp_lg_u32 s5, 0
    s_cbranch_scc1 L_noprio
    s_setprio 3
    """)
    a.label("L_noprio")
    a("s_waitcnt lgkmcnt(0)")
    stamp(a, 10)
    a("s_barrier")
    for k in range(4):
        a("ds_read_b128 %s, v13 offset:%d" % (v(16 + 4 * k, 4), 16 * k))
    a("""
    v_readlane_b32 s56, v8, 31
    v_readlane_b32 s57, v8, 63
    v_readlane_b32 s32, v34, 31
    v_readlane_b32 s33, v35, 31
    v_readlane_b32 s34, v34, 63
    v_readlane_b32 s35, v35, 63
    s_waitcnt lgkmcnt(2)
    v_max_u32 v56, v16, v17
    v_min_u32 v58, v16, v17
    """)
    for k in range(18, 30, 4):
        if k == 22:
            a("s_waitcnt lgkmcnt(0)")
        a("v_med3_u32 v60, v56, %s, %s" % (v(k), v(k + 1)))
        a("v_max3_u32 v56, v56, %s, %s" % (v(k), v(k + 1)))
        a("v_med3_u32 v61, v56, %s, %s" % (v(k + 2), v(k + 3)))
        a("v_max3_u32 v56, v56, %s, %s" % (v(k + 2), v(k + 3)))
        a("v_max3_u32 v58, v58, v60, v61")
    a("""
    v_med3_u32 v60, v56, v30, v31
    v_max3_u32 v56, v56, v30, v31
    v_max_u32 v60, v58, v60
    v_or_b32 v58, 1, v60
    s_mov_b64 exec, 1
    buffer_store_dwordx4 v[56:59], off, s[12:15], s58 sc1
    s_mov_b64 exec, -1
    s_setprio 0
    """)
    if FINE:
        stamp(a, 6)
    vec_read(CB, 2)
    vec_read(SB, 1)
    if EARLYH:
        a("ds_read_b128 %s, v14" % v(XN, 4))
        a("ds_read_b128 %s, v14 offset:1280" % v(XN + 4, 4))
        vec_read(GB, 3)
    else:
        vec_read(GB, 3)
        mirror(XN, XM)
    a("v_readfirstlane_b32 s60, v56")
    a("v_readfirstlane_b32 s61, v60")
    H, HM = 32, 88
    OUT, OUTM, HP, HPM = 40, 44, 48, 52
    for ri, (xx, hh, sp, o, hp) in enumerate(((XU, H, 32, OUT, HP), (XN, HM, 34, OUTM, HPM))):
        if ri:
            a("s_waitcnt lgkmcnt(0)")
        a("v_mov_b32 v60, %s" % s(sp + 1))
        for e in range(8):
            a("v_fma_f32 %s, %s, %s, -v60" % (v(hh + e), v(xx + e), s(sp)))
        a.wait_lg_for(v(VEC, 32))
        for e in range(0, 8, 2):
            a("v_pk_fma_f32 %s, %s, %s, %s" % (v(hh + e, 2), v(hh + e, 2), v(CB + e, 2), v(SB + e, 2)))
        for d in range(4):
            a("v_cvt_pk_bf16_f32 %s, %s, %s" % (v(hp + d), v(hh + 2 * d), v(hh + 2 * d + 1)))
        for e in range(0, 8, 2):
            a("v_pk_fma_f32 %s, %s, %s, %s" % (v(xx + e, 2), v(GB + e, 2), v(hh + e, 2), v(xx + e, 2)))
        for d in range(4):
            a("v_cvt_pk_bf16_f32 %s, %s, %s" % (v(o + d), v(xx + 2 * d), v(xx + 2 * d + 1)))
    a("""
    ds_write_b64 v12, v[40:41]
    ds_write_b64 v12, v[42:43] offset:512
    ds_write_b64 v12, v[44:45] offset:1024
    ds_write_b64 v12, v[46:47] offset:1536
    ds_read_b128 v[40:43], v15
    ds_read_b128 v[44:47], v15 offset:1024
    s_max_u32 s61, s61, 1
    """)
    for ri, (key, off, o, hp) in enumerate((("s56", "s49", OUT, HP), ("s57", "s50", OUTM, HPM))):
        a("s_mov_b32 s58, s45")
        a("s_cmp_eq_u32 %s, s60" % key)
        a("s_cbranch_scc1 L_cand%d" % ri)
        a("s_add_u32 s58, s45, 2048")
        a("s_cmp_eq_u32 %s, s61" % key)
        a("s_cselect_b32 s53, 1, 0")
        a("s_or_b32 %s, %s, s53" % (key, key))
        a("s_cmp_eq_u32 s53, 1")
        stc = a.fork()
        a("s_cbranch_scc1 L_cand%d" % ri)
        a("s_mov_b32 %s, 0" % key)
        a("s_waitcnt lgkmcnt(0)")
        a("buffer_store_dwordx4 %s, v250, s[28:31], %s offen%s" % (v(o, 4), off, OUTF))
        a("s_branch L_next%d" % ri)
        a.label("L_cand%d" % ri)
        a.join(stc)
        a("buffer_store_dwordx4 %s, v250, s[12:15], s58 offen sc1" % v(hp, 4))
        a("s_waitcnt lgkmcnt(0)")
        a("buffer_store_dwordx4 %s, v250, s[12:15], s58 offen offset:1024 sc1" % v(o, 4))
        a.label("L_next%d" % ri)
    a.label("L_tail", reset=True)
    a("""
    s_lshl_b32 s59, s5, 8
    s_add_u32 s59, s59, s2
    s_sub_u32 s59, s59, 192
    s_cmp_lt_u32 s59, 64
    s_cselect_b32 s59, 1, 0
    s_or_b32 s60, s59, s56
    s_or_b32 s60, s60, s57
    s_cbranch_scc0 L_done
    s_lshl_b32 s45, s3, 7
    """)
    a("s_add_u32 s45, s45, 0x%x" % WS_SEL)
    a("s_cmp_eq_u32 s59, 0")
    a("s_cbranch_scc1 L_sel_go")
    a("""
    s_lshl3_add_u32 s44, s3, s4
    s_sub_u32 s44, s44, 24
    s_lshr_b32 s48, s44, 2
    s_lshl_b32 s48, s48, 5
    s_and_b32 s46, s44, 3
    s_lshl2_add_u32 s48, s46, s48
    v_and_b32 v4, 3, v0
    v_lshrrev_b32 v5, 1, v2
    v_lshl_add_u32 v5, v5, 4, v4
    v_add_u32 v5, s48, v5
    v_and_b32 v8, 0x103, v5
    v_bfe_u32 v9, v5, 2, 2
    v_lshl_add_u32 v8, v9, 6, v8
    v_bfe_u32 v9, v5, 4, 4
    v_lshl_add_u32 v8, v9, 2, v8
    v_lshlrev_b32 v8, 2, v8
    """)
    a("ds_write_b128 v15, %s" % v(GB, 4))
    a("ds_write_b128 v15, %s offset:1024" % v(GB + 4, 4))
    a("ds_read_b32 v8, v8 offset:%d           ; gb[e]" % LDS_SCR)
    a("v_pk_mul_f32 v[62:63], %s, %s" % (v(SB, 2), v(WU, 2)))
    for e in range(2, 8, 2):
        a("v_pk_fma_f32 v[62:63], %s, %s, v[62:63]" % (v(SB + e, 2), v(WU + e, 2)))
    a("v_add_f32 v62, v62, v63")
    dpp_sum(a, [62], ROR + BC)
    a("v_readlane_b32 s58, v62, 63")
    a("""
    v_bfe_u32 v9, v0, 2, 4
    v_lshlrev_b32 v9, 12, v9
    v_lshl_add_u32 v9, v4, 4, v9
    s_lshl_b32 s40, s44, 6
    v_and_b32 v10, 1, v2
    v_cmp_eq_u32 s[52:53], 1, v10
    v_mov_b32 v36, 0
    v_mov_b32 v37, 0
    v_mov_b32 v38, 0
    v_mov_b32 v39, 0
    """)
    a("s_add_u32 s40, s40, 0x%x" % WS_PART)
    a("s_add_u32 s41, s40, 0x10000")
    a("s_add_u32 s42, s40, 0x20000")
    a("s_add_u32 s43, s40, 0x30000")
    a("s_waitcnt lgkmcnt(0)")
    a.label("L_sel_go")
    a("s_mov_b32 s54, %d" % SPIN)
    a.label("L_poll_sel")
    a("buffer_load_dwordx4 v[16:19], off, s[12:15], s45 sc1")
    a("s_waitcnt vmcnt(0)")
    a("v_cmp_eq_u32 vcc, v17, %s" % v(VTAG))
    a("v_cmp_eq_u32 s[60:61], v19, %s" % v(VTAG))
    a("s_and_b64 vcc, vcc, s[60:61]")
    a("s_cmp_eq_u64 vcc, -1")
    poll_tail(a, "L_poll_sel")
    stamp(a, 11)
    a("""
    v_readfirstlane_b32 s60, v16
    v_readfirstlane_b32 s61, v18
    """)
    if LO:
        for ri, (key, off, o) in enumerate((("s56", "s49", OUT), ("s57", "s50", OUTM))):
            a("s_cmp_eq_u32 %s, 0" % key)
            a("s_cbranch_scc1 L_lo%d" % ri)
            a("s_cmp_eq_u32 %s, s60" % key)
            a("s_cbranch_scc1 L_lo%d" % ri)
            a("s_cmp_eq_u32 %s, s61" % key)
            a("s_cbranch_scc1 L_lo%d" % ri)
            a("buffer_store_dwordx4 %s, v250, s[28:31], %s offen" % (v(o, 4), off))
            a.label("L_lo%d" % ri)
    a("""
    s_cmp_eq_u32 s59, 0
    s_cbranch_scc1 L_late_out
    v_cndmask_b32 v16, v16, v18, s[52:53]
    v_bfe_u32 v17, v16, 5, 8
    v_and_b32 v18, 1, v16
    v_lshlrev_b32 v19, 12, v17
    v_lshl_add_u32 v19, v18, 11, v19
    v_lshl_add_u32 v19, v5, 1, v19
    """)
    a("s_mov_b32 s55, 0x%x" % (WS_CAND + 1024))
    a("s_mov_b32 s54, %d" % SPIN)
    a.label("L_poll_base")
    a("""
    buffer_load_ushort v20, v19, s[12:15], s55 offen sc1
    v_and_b32 v21, 7, v17
    v_bfe_u32 v22, v17, 5, 2
    v_lshl_add_u32 v21, v22, 3, v21       ; slot
    v_bfe_u32 v22, v17, 3, 2
    v_lshl_add_u32 v22, v22, 9, v21
    v_subrev_u32 v23, 992, v22
    v_cmp_eq_u32 vcc, 0, v21
    v_cndmask_b32 v23, v22, v23, vcc
    v_cmp_gt_u32 vcc, 1024, v22
    v_cndmask_b32 v21, v23, v22, vcc
    v_lshrrev_b32 v22, 7, v17
    v_lshl_add_u32 v21, v22, 10, v21
    v_bfe_u32 v22, v16, 2, 3
    v_lshl_add_u32 v21, v22, 6, v21
    v_sub_u32 v22, 2048, v21
    v_and_b32 v23, 2, v16
    v_cmp_eq_u32 vcc, 0, v23
    v_cndmask_b32 v21, v22, v21, vcc
    v_lshlrev_b32 v21, 10, v21
    v_lshl_add_u32 v21, v5, 1, v21
    """)
    if FIN == 2:
        a("buffer_load_ushort v49, v21, s[28:31], 0 offen")
    a("""
    v_and_b32 v22, 0xffffe000, v16
    v_ashrrev_i32 v23, 31, v22
    v_not_b32 v23, v23
    v_or_b32 v23, s63, v23
    v_xor_b32 v22, v22, v23
    v_add_f32 v22, s58, v22
    """)
    a("v_mul_f32 v22, %s, v22" % f32(-LOG2E))
    a("""
    v_exp_f32 v22, v22
    v_add_f32 v22, 1.0, v22
    v_rcp_f32 v22, v22
    v_mul_f32 v22, v22, v8
    s_waitcnt vmcnt(0)
    v_cmp_eq_u32 vcc, 0xffff, v20
    s_cmp_eq_u64 vcc, 0
    """)
    poll_tail(a, "L_poll_base")
    a("s_mov_b32 s54, %d" % SPIN)
    a.label("L_poll_part")
    a("""
    buffer_load_dwordx4 v[24:27], v9, s[12:15], s40 offen sc1
    buffer_load_dwordx4 v[28:31], v9, s[12:15], s41 offen sc1
    buffer_load_dwordx4 v[32:35], v9, s[12:15], s42 offen sc1
    s_mov_b32 exec_hi, 0
    buffer_load_dwordx4 v[36:39], v9, s[12:15], s43 offen sc1
    s_mov_b32 exec_hi, -1
    s_waitcnt vmcnt(0)
    v_max3_u32 v48, v24, v28, v32
    v_max_u32 v48, v48, v36
    v_cmp_eq_u32 vcc, -1, v48
    s_cmp_eq_u64 vcc, 0
    """)
    poll_tail(a, "L_poll_part")
    stamp(a, 12)
    a("""
    v_pk_add_f32 v[24:25], v[24:25], v[28:29]
    v_pk_add_f32 v[26:27], v[26:27], v[30:31]
    v_pk_add_f32 v[32:33], v[32:33], v[36:37]
    v_pk_add_f32 v[34:35], v[34:35], v[38:39]
    v_pk_add_f32 v[24:25], v[24:25], v[32:33]
    v_pk_add_f32 v[26:27], v[26:27], v[34:35]
    v_permlane32_swap_b32 v24, v26
    v_permlane32_swap_b32 v25, v27
    v_pk_add_f32 v[24:25], v[24:25], v[26:27]
    v_permlane16_swap_b32 v24, v25
    v_add_f32 v24, v24, v25
    v_lshlrev_b32 v20, 16, v20
    """)
    dpp_sum(a, [24], ROR[:2])
    a("""
    v_fmac_f32 v20, v24, v22
    v_cvt_pk_bf16_f32 v20, v20, v20
    s_mov_b32 exec_lo, 0x000f000f
    s_mov_b32 exec_hi, 0x000f000f
    buffer_store_short v20, v21, s[28:31], 0 offen OUTF
    s_mov_b64 exec, -1
    s_cmp_lg_u32 s2, 192
    s_cbranch_scc1 L_late_out
    s_mov_b64 exec, 1
    """.replace(" OUTF", " sc1" if FIN == 1 else ""))
    a("s_mov_b32 s55, 0x%x" % WS_GEN)
    a("buffer_store_dword %s, off, s[12:15], s55" % v(VTAG))
    a("s_mov_b64 exec, -1")
    if PROBE >= 0:
        a("s_waitcnt vmcnt(0)")
        a("s_memrealtime s[98:99]")
        a("s_waitcnt lgkmcnt(0)")
        a("s_sub_u32 s94, %s, s96" % ("s98" if PROBE == 13 else "s92"))
        a("s_mul_i32 s94, s94, 2")
        a("s_min_u32 s94, s94, 8000")
        a.label("L_probe")
        a("s_memrealtime s[96:97]")
        a("s_waitcnt lgkmcnt(0)")
        a("s_sub_u32 s95, s96, s98")
        a("s_cmp_lt_u32 s95, s94")
        a("s_cbranch_scc1 L_probe")
    a.label("L_late_out", reset=True)
    for ri, (key, off, o) in enumerate((("s56", "s49", OUT), ("s57", "s50", OUTM)) if not LO else ()):
        nxt = "L_late1" if ri == 0 else "L_done"
        a("s_cmp_eq_u32 %s, 0" % key)
        a("s_cbranch_scc1 %s" % nxt)
        a("s_cmp_eq_u32 %s, s60" % key)
        a("s_cbranch_scc1 %s" % nxt)
        a("s_cmp_eq_u32 %s, s61" % key)
        a("s_cbranch_scc1 %s" % nxt)
        a("buffer_store_dwordx4 %s, v250, s[28:31], %s offen%s" % (v(o, 4), off, OUTF))
        if ri == 0:
            a.label("L_late1")
    a("s_branch L_done")
    a.label("L_ffn", reset=True)
    a("s_mov_b32 s58, s4")
    a("s_barrier")
    a("""
    s_mul_i32 s6, s3, 7
    s_add_u32 s6, s6, s58
    s_lshl_b32 s46, s6, 12
    """)
    a("s_add_u32 s46, s46, 0x%x               ; partial-sum slab" % WS_PART)
    a("s_add_u32 s45, s46, s62")
    a("s_cmp_lt_u32 s5, 4")
    a("s_cselect_b32 s45, s45, 0x%x" % OOB)
    a("s_mov_b64 s[32:33], s[18:19]")
    a("s_mov_b64 s[36:37], s[20:21]")
    a("s_mov_b64 s[40:41], s[22:23]")
    srd(a, 32, 512 * 3584)
    srd(a, 36, 512 * 3584)
    srd(a, 40, 1792 * 1024)
    a("""
    s_and_b32 s44, s5, 1
    s_lshl_b32 s44, s44, 7
    s_lshr_b32 s48, s5, 1
    s_lshl2_add_u32 s44, s48, s44
    v_bfe_u32 v4, v0, 2, 2
    v_lshl_add_u32 v4, v2, 4, v4
    v_add_u32 v4, s44, v4
    v_mul_u32_u24 v4, 3584, v4
    v_and_b32 v5, 3, v0
    v_lshl_add_u32 v4, v5, 4, v4
    s_lshl_b32 s48, s6, 6
    s_mul_i32 s7, s5, 12288
    s_mov_b32 m0, s7
    """)
    a("s_add_u32 s49, s48, %d" % (64 * 3584))
    a("s_add_u32 s50, s48, %d" % (256 * 3584))
    a("s_add_u32 s51, s48, %d" % (320 * 3584))
    stamp(a, 7)
    a("buffer_store_dwordx4 v[252:255], v250, s[12:15], s45 offen sc1")
    for sr in (32, 36):
        for i in range(4):
            a("buffer_load_dwordx4 v4, %s, %s offen lds" % (s(sr, 4), s(48 + i)))
            a("s_add_u32 m0, m0, 1024")
    a("""
    v_bfe_u32 v5, v0, 3, 3
    v_lshlrev_b32 v5, 10, v5
    v_and_b32 v4, 7, v0
    v_lshl_add_u32 v5, v4, 4, v5
    v_lshl_add_u32 v5, v3, 7, v5
    s_lshl_b32 s48, s6, 15
    """)
    for i in range(4):
        a("buffer_load_dwordx4 v5, s[40:43], s48 offen lds")
        if i < 3:
            a("s_add_u32 m0, m0, 1024")
            a("s_add_u32 s48, s48, 8192")
    WF, WD = 64, 96
    a("v_lshlrev_b32 v6, %d, v0" % KSH)
    a("""
    v_bfe_u32 v4, v0, 2, 4                ; 4q + r
    v_and_b32 v5, 3, v0
    v_lshlrev_b32 v5, 3, v5
    v_lshl_add_u32 v8, v4, 6, v5
    v_add_u32 v8, s7, v8
    v_bfe_u32 v9, v0, 2, 2
    v_lshl_add_u32 v9, v2, 3, v9
    v_lshl_add_u32 v9, v9, 7, v5
    v_add_u32 v9, s7, v9
    """)
    a("v_mov_b32 v33, %s" % v(VTAG))
    a("v_mov_b32 v35, %s" % v(VTAG))
    a("""
    v_and_b32 v10, 1, v0
    v_cmp_eq_u32 s[50:51], 1, v10
    v_lshlrev_b32 v11, 7, v3
    v_lshl_add_u32 v11, v2, 4, v11
    v_lshlrev_b32 v12, 6, v10
    v_lshl_add_u32 v13, v2, 4, v12
    v_lshl_add_u32 v13, v3, 9, v13
    v_and_b32 v14, 30, v0
    v_lshl_add_u32 v14, v14, 1, v12
    v_and_b32 v12, 32, v0
    v_lshl_add_u32 v14, v12, 2, v14
    """)
    a("v_add_u32 v13, %d, v13                 ; partial write address" % LDS_RED)
    a("v_add_u32 v14, %d, v14                 ; partial read address" % LDS_RED)
    a("""
    v_lshlrev_b32 v15, 9, v3
    v_lshl_add_u32 v15, v1, 4, v15
    v_lshlrev_b32 v7, 3, v3
    v_mov_b32 v16, 0
    v_mov_b32 v18, 0
    """)
    a("v_add_u32 v7, %d, v7" % LDS_KEY2)
    a("v_mov_b32 v4, %d" % LDS_KEY2)
    a("s_waitcnt vmcnt(0)")
    stamp(a, 8)
    for kk in range(2):
        for mt in range(4):
            for hf in range(2):
                a("ds_read_b64_tr_b16 %s, v8 offset:%d" % (v(WF + 16 * kk + 4 * mt + 2 * hf, 2), (mt // 2) * 4096 + hf * 2048 + kk * 1024 + (mt % 2) * 32))
    for t in range(4):
        for hf in range(2):
            a("ds_read_b64_tr_b16 %s, v9 offset:%d" % (v(WD + 4 * t + 2 * hf, 2), 8192 + hf * 512 + t * 32))
    a("s_barrier")
    a("s_lshl_b32 s53, s6, %d" % KSH)
    a("s_add_u32 s53, s53, 0x%x" % (WS_KEYS + (129 << KSH)))
    a("s_cmp_eq_u32 s5, 0")
    a("s_cselect_b32 s53, s53, 0x%x" % OOB)
    a("v_mov_b32 v32, 0")
    a("v_mov_b32 v34, 0")
    a("s_mov_b64 exec, 1")
    a("buffer_store_dwordx4 v[32:35], off, s[12:15], s53 sc1")
    a("s_mov_b64 exec, -1")
    a("s_lshl_b32 s52, s3, 7")
    a("s_add_u32 s55, s52, 0x%x" % WS_PRE)
    a("s_add_u32 s52, s52, 0x%x" % WS_SEL)
    a("s_or_b32 s53, s58, s5")
    a("s_cselect_b32 s52, 0x%x, s52           ; one announcing wave per group" % OOB)
    a("s_cmp_ge_u32 s5, 3")
    a("s_cbranch_scc1 L_keys_done")
    a("s_mov_b32 s54, %d" % SPIN)
    if PRE:
        a.label("L_poll_pre")
        a("buffer_load_dword v17, off, s[12:15], s55 sc1")
        a("s_waitcnt vmcnt(0)")
        a("v_cmp_eq_u32 vcc, v17, %s" % v(VTAG))
        a("s_cmp_eq_u64 vcc, -1")
        poll_tail(a, "L_poll_pre")
        a("s_mov_b32 s54, %d" % SPIN)
    stamp(a, 10)
    a("v_cmp_gt_u32 vcc, 185, v0")
    a("s_mov_b32 s55, 0x%x" % WS_KEYS)
    a("s_mov_b64 exec, vcc")
    a.label("L_poll_keys")
    a("buffer_load_dwordx4 v[16:19], v6, s[12:15], s55 offen sc1")
    a("s_waitcnt vmcnt(0)")
    a("v_cmp_ne_u32 vcc, v17, %s" % v(VTAG))
    a("v_cmp_ne_u32 s[60:61], v19, %s" % v(VTAG))
    a("s_or_b64 vcc, vcc, s[60:61]")
    a("s_and_b64 exec, exec, vcc")
    a("s_cmp_eq_u64 exec, 0")
    poll_tail(a, "L_poll_keys")
    a("s_mov_b64 exec, -1")
    for mod in ROR + BC:
        a("v_min_u32_dpp v19, v16, v16 %s" % mod)
        a("v_max_u32_dpp v18, v18, v18 %s" % mod)
        a("v_max_u32_dpp v16, v16, v16 %s" % mod)
        a("v_max_u32 v18, v18, v19")
    a("""
    s_mov_b32 exec_lo, 0
    s_mov_b32 exec_hi, 0x80000000
    ds_write2_b32 v7, v16, v18 offset0:0 offset1:1
    s_mov_b64 exec, -1
    """)
    a.label("L_keys_done")
    a("s_waitcnt lgkmcnt(0)")
    a("s_barrier")
    stamp(a, 11)
    a("ds_read_b128 v[16:19], v4")
    a("ds_read_b64 v[20:21], v4 offset:16")
    a("s_mov_b32 s55, 0x%x" % WS_CAND)
    a("s_mov_b32 s54, %d" % SPIN)
    a("""
    s_waitcnt lgkmcnt(0)
    v_med3_u32 v36, v16, v18, v20
    v_max3_u32 v32, v16, v18, v20
    v_max3_u32 v34, v17, v19, v21
    v_max_u32 v34, v34, v36
    v_cndmask_b32 v36, v32, v34, s[50:51]
    v_bfe_u32 v37, v36, 5, 8
    v_and_b32 v36, 1, v36
    v_lshl_add_u32 v11, v37, 12, v11
    v_lshl_add_u32 v11, v36, 11, v11
    """)
    a.label("L_poll_h2")
    a("""
    buffer_load_dwordx4 v[16:19], v11, s[12:15], s55 offen sc1
    buffer_load_dwordx4 v[20:23], v11, s[12:15], s55 offen offset:64 sc1
    """)
    C = 48
    for kk in range(2):
        a("s_waitcnt vmcnt(%d)" % (1 - kk))
        if kk:
            stamp(a, 12)
        for mt in range(4):
            c = v(C + 4 * mt, 4)
            a("v_mfma_f32_16x16x32_bf16 %s, %s, %s, %s" % (c, v(WF + 16 * kk + 4 * mt, 4), v(16 + 4 * kk, 4), "0" if kk == 0 else c))
    a("""
    v_max_u32 v36, v16, v20
    v_cmp_eq_u32 vcc, -1, v36
    s_cmp_eq_u64 vcc, 0
    """)
    poll_tail(a, "L_poll_h2")
    a("s_mov_b64 exec, 1")
    a("buffer_store_dwordx4 v[32:35], off, s[12:15], s52 sc1")
    a("s_mov_b32 exec_lo, 0x00030003")
    a("s_mov_b32 exec_hi, 0x00030003")
    for mt in range(4):
        a("ds_write_b128 v13, %s offset:%d" % (v(C + 4 * mt, 4), 128 * mt))
    a("s_mov_b64 exec, -1")
    a("s_waitcnt lgkmcnt(0)")
    a("s_barrier")
    a("""
    ds_read2st64_b32 v[16:17], v14 offset0:0 offset1:2
    ds_read2st64_b32 v[18:19], v14 offset0:4 offset1:6
    ds_read2st64_b32 v[20:21], v14 offset0:8 offset1:10
    ds_read2st64_b32 v[22:23], v14 offset0:12 offset1:14
    ds_read2st64_b32 v[24:25], v14 offset0:1 offset1:3
    ds_read2st64_b32 v[26:27], v14 offset0:5 offset1:7
    ds_read2st64_b32 v[28:29], v14 offset0:9 offset1:11
    ds_read2st64_b32 v[30:31], v14 offset0:13 offset1:15
    s_waitcnt lgkmcnt(4)
    v_pk_add_f32 v[16:17], v[16:17], v[18:19]
    v_pk_add_f32 v[20:21], v[20:21], v[22:23]
    v_pk_add_f32 v[16:17], v[16:17], v[20:21]
    v_add_f32 v16, v16, v17
    """)
    a("v_mul_f32 v17, %s, v16" % f32(-LOG2E))
    a("""
    v_exp_f32 v17, v17
    s_waitcnt lgkmcnt(0)
    v_pk_add_f32 v[24:25], v[24:25], v[26:27]
    v_add_f32 v17, 1.0, v17
    v_pk_add_f32 v[28:29], v[28:29], v[30:31]
    v_rcp_f32 v17, v17
    v_pk_add_f32 v[24:25], v[24:25], v[28:29]
    v_add_f32 v24, v24, v25
    v_mul_f32 v16, v16, v17
    v_mul_f32 v16, v16, v24
    v_mov_b32_dpp v17, v16 row_ror:14 row_mask:0xf bank_mask:0xf
    v_cvt_pk_bf16_f32 v20, v16, v17
    v_mov_b32_dpp v21, v20 row_ror:12 row_mask:0xf bank_mask:0xf
    v_mov_b32_dpp v22, v20 row_ror:8 row_mask:0xf bank_mask:0xf
    v_mov_b32_dpp v23, v20 row_ror:4 row_mask:0xf bank_mask:0xf
    """)
    for t in range(4):
        a("v_mfma_f32_16x16x32_bf16 %s, v[20:23], %s, 0" % (v(C + 4 * t, 4), v(WD + 4 * t, 4)))
    a("""
    s_mov_b64 exec, 0xffff
    v_mov_b32 v50, v52
    v_mov_b32 v51, v53
    buffer_store_dwordx4 v[48:51], v15, s[12:15], s46 offen sc1
    v_mov_b32 v58, v60
    v_mov_b32 v59, v61
    buffer_store_dwordx4 v[56:59], v15, s[12:15], s46 offen offset:256 sc1
    s_mov_b64 exec, -1
    """)
    stamp(a, 9)
    a.label("L_done", reset=True)
    stamp_end(a)
    a.label("L_end")
    a("s_endpgm")
    desc = """.section .rodata,"a"
.p2align 6
.amdhsa_kernel %s
  .amdhsa_next_free_vgpr 256
  .amdhsa_next_free_sgpr 102
  .amdhsa_accum_offset 256
  .amdhsa_group_segment_fixed_size 0
  .amdhsa_kernarg_size 120
  .amdhsa_user_sgpr_count 2
  .amdhsa_user_sgpr_kernarg_segment_ptr 1
  .amdhsa_system_sgpr_workgroup_id_x 1
.end_amdhsa_kernel
""" % KN
    return HEADER + "; @launch grid=(256,1,1) block=(512,1,1) lds=%d\n" % LDS_TOTAL + a.text() + desc


if __name__ == "__main__":
    out = sys.argv[1] if len(sys.argv) > 1 and sys.argv[1].endswith(".s") else "v13.s"
    open(out, "w").write(build())
    print("wrote", out)
```

```python
import sys, struct
from asmlib import Asm, Ins, v, s

NAME = "adaLN_cond__spectral_fnet__moe_arch_mod__prompt"
KN = NAME + "_kernel"
HEADER = open("cdna_kernels/%s.s.ref" % NAME).read().split("; Override launch geometry")[0]


def opt(name, default):
    for x in sys.argv:
        if x.startswith("--%s=" % name):
            return int(x.split("=")[1], 0)
    return default


STAMPS = "--stamps" in sys.argv
PROBE = opt("probe", -1)
KSH = opt("ksh", 6)
FSH = opt("fsh", 8)
HELP = opt("help", 1)
POIS = opt("pois", 0)
OUTF = ("", " sc1", " nt", " sc0 sc1", " sc1 nt")[opt("outf", 1)]
EARLYH = opt("earlyh", 1)
MODFIRST = opt("modfirst", 2)
MH = opt("mh", 9)
PLATE = opt("plate", 0)
OUTL = opt("outl", 0)
FINE = opt("fine", 0)
PROG = opt("prog", 0)
TMIN = opt("tmin", -1)
FIN = opt("fin", 0)
HF = opt("hf", 1)
LO = opt("lo", 1)
ADEL = opt("adel", 1)
BT = opt("bt", 8)
SENT = opt("sent", 0)
FDEL = opt("fdel", 0)
SW = opt("sw", 4)
PRE = opt("pre", 3)
CPOS = opt("cpos", 0)
CPF = opt("cpf", 0)
TOUCH = opt("touch", 1)

WS_MOD = 0x0
WS_GEN = 0x3000
WS_SEL = 0x3400
WS_PRE = 0x3800
WS_FLAG = 0x8000
WS_KEYS = 0x40000
WS_PART = 0x80000
WS_CAND = 0x100000
WS_INTER = 0x200000
WS_SIZE = 0x400000
WS_STAMP = 0x600000
if STAMPS:
    WS_SIZE = 0x800000
EPS = 1e-5
TAGC = 0x9E3779B9
SPIN = 1 << 15
OOB = 0x7fff0000
PITCH = 288
XWG = 120

LDS_U = 20480
LDS_SCR = LDS_U + 20480
LDS_VEC = LDS_SCR + 20480
LDS_KEY = LDS_VEC + 7 * 2560
LDS_RED = 98304
LDS_KEY2 = LDS_RED + 4096
LDS_TOTAL = LDS_KEY2 + 64

FR, FI, TC, TS, G, SA = 200, 204, 208, 216, 224, 240
VQ4, VTAG, VL16 = 248, 249, 250
LOG2E = 1.4426950408889634


def f32(x):
    return "0x%08x" % struct.unpack("<I", struct.pack("<f", x))[0]


def srd(a, base, nbytes):
    a("s_mov_b32 %s, 0x%x" % (s(base + 2), nbytes))
    a("s_mov_b32 %s, 0x20000" % s(base + 3))


NST = 14


def stamp(a, i):
    if PROBE >= 0 and i == 0:
        a("s_memrealtime s[96:97]")
    if PROBE == i:
        a("s_memrealtime s[92:93]")
    if not STAMPS:
        return
    if i == 0:
        a("s_memrealtime s[96:97]")
        for k in range(1, NST):
            a("s_mov_b32 %s, 0" % s(64 + 2 * k))
    a("s_memtime %s" % s(64 + 2 * i, 2))


def stamp_end(a):
    if not STAMPS:
        return
    a("s_waitcnt vmcnt(0)")
    a("s_memtime %s" % s(64 + 2 * (NST - 1), 2))
    a("s_memrealtime s[98:99]")
    a("s_mov_b64 exec, 1")
    a("s_lshl_b32 s93, s2, 3")
    a("s_add_u32 s93, s93, s5")
    a("s_lshl_b32 s93, s93, 6")
    a("s_add_u32 s93, s93, 0x%x" % WS_STAMP)
    a("s_waitcnt lgkmcnt(0)")
    a("v_mov_b32 v16, s96")
    a("v_mov_b32 v17, s98")
    for k in range(NST):
        a("v_mov_b32 %s, %s" % (v(18 + k), s(64 + 2 * k)))
    for k in range(4):
        a("buffer_store_dwordx4 %s, off, s[12:15], s93 offset:%d" % (v(16 + 4 * k, 4), 16 * k))


ROR = ["row_ror:%d row_mask:0xf bank_mask:0xf" % r for r in (8, 4, 2, 1)]
BC = ["row_bcast:15 row_mask:0xa bank_mask:0xf", "row_bcast:31 row_mask:0xc bank_mask:0xf"]


def dpp_sum(a, regs_, mods):
    for mod in mods:
        for r in regs_:
            a("v_add_f32_dpp %s, %s, %s %s" % (v(r), v(r), v(r), mod))


def poll_tail(a, label, cnt="s54"):
    a("s_cbranch_scc1 %s_ok" % label)
    a("s_sub_u32 %s, %s, 1" % (cnt, cnt))
    a("s_cbranch_scc0 %s" % label)
    a.label(label + "_ok")


def setup(a):
    a.label("L_setup", reset=True)
    a("""
    s_lshr_b32 s60, s59, 5
    s_lshl3_add_u32 s60, s60, s3
    s_and_b32 s60, s60, 31
    s_bfe_u32 s61, s59, 0x20003
    s_lshl_b32 s61, s61, 9
    s_add_u32 s61, s61, s60
    s_sub_u32 s94, s61, 992
    s_cmp_ge_u32 s61, 1024
    s_cselect_b32 s94, s94, s61
    s_mov_b32 s95, 0xffff0000
    s_cselect_b32 s95, s95, 0x0000ffff
    s_cmp_eq_u32 s60, 0
    s_cselect_b32 s61, s94, s61
    s_cselect_b32 s95, s95, -1
    """)
    a("s_cselect_b32 s94, 0, %s" % f32(-0.25))
    a("""
    s_cmp_eq_u32 s59, 128
    s_cselect_b32 s61, 1024, s61
    v_lshrrev_b32 v160, 1, v1
    v_lshlrev_b32 v160, 6, v160
    v_add_u32 v160, s61, v160
    v_cvt_f32_u32 v160, v160
    v_and_b32 v161, 1, v1
    v_cvt_f32_u32 v161, v161
    """)
    a("v_mul_f32 v160, %s, v160" % f32(1 / 2048))
    a("v_mul_f32 v161, %s, v161" % f32(0.25))
    a("v_mul_f32 v162, %s, v160" % f32(0.25))
    a("v_fmac_f32 v161, v162, %s" % v(VQ4))
    a("v_mul_f32 v160, 4.0, v160")
    for ks in range(2):
        for r in range(4):
            if r or ks:
                a("v_add_f32 v161, v161, v160")
            a("v_add_f32 v162, s94, v161")
            a("v_cos_f32 v163, v161")
            a("v_cos_f32 v162, v162")
            if ks or r:
                k = SA + 4 * ks + r - 1
                a("v_and_b32 %s, s95, %s" % (v(k), v(k)))
            a("v_cvt_pk_bf16_f32 %s, v163, v162" % v(SA + 4 * ks + r))
    a("v_and_b32 %s, s95, %s" % (v(SA + 7), v(SA + 7)))
    t = [v(160 + i) for i in range(15)]
    a("v_cvt_f32_u32 %s, v1" % t[0])
    a("v_mul_f32 %s, %s, %s" % (t[0], f32(1 / 512), t[0]))
    a("v_mul_f32 %s, %s, %s" % (t[1], t[0], v(VQ4)))
    a("v_mul_f32 %s, %s, %s" % (t[2], f32(16.0), t[0]))
    for j in range(4):
        if j:
            a("v_add_f32 %s, %s, %s" % (t[1], t[1], t[0]))
        a("v_mul_f32 %s, %s, %s" % (t[3], f32(32.0), t[1]))
        a("v_mul_f32 %s, %s, %s" % (t[4], f32(16.0), t[1]))
        a("v_add_f32 %s, %s, %s" % (t[5], t[1], t[2]))
        a("v_cos_f32 %s, %s" % (v(TC + j), t[1]))
        a("v_sin_f32 %s, %s" % (v(TS + j), t[1]))
        a("v_cos_f32 %s, %s" % (t[6], t[3]))
        a("v_sin_f32 %s, %s" % (t[3], t[3]))
        a("v_cos_f32 %s, %s" % (v(TC + 4 + j), t[5]))
        a("v_sin_f32 %s, %s" % (v(TS + 4 + j), t[5]))
        a("v_cos_f32 %s, %s" % (t[7 + j], t[4]))
        a("v_sin_f32 %s, %s" % (t[11 + j], t[4]))
        a("v_cvt_pk_bf16_f32 %s, %s, %s" % (v(FR + j), t[6], t[3]))
        a("v_cvt_pk_bf16_f32 %s, -%s, %s" % (v(FI + j), t[3], t[6]))
    for j in range(4):
        a("v_cvt_pk_bf16_f32 %s, %s, %s" % (v(G + j), t[7 + 2 * j], t[8 + 2 * j]))
    a("v_lshlrev_b32 %s, 31, v1" % t[3])
    a("v_lshrrev_b32 %s, 16, %s" % (t[4], t[3]))
    a("v_or_b32 %s, %s, %s" % (t[3], t[3], t[4]))
    for j in range(4):
        a("v_xor_b32 %s, s63, %s" % (v(G + 4 + j), v(G + j)))
        a("v_xor_b32 %s, %s, %s" % (v(G + 8 + j), t[3], v(G + j)))
        a("v_xor_b32 %s, s63, %s" % (v(G + 12 + j), v(G + 8 + j)))
    a("s_waitcnt lgkmcnt(0)")
    a("s_setpc_b64 s[100:101]")


def touch(a, half, dst, first):
    if first:
        a("""
        v_bfe_u32 v4, v0, 3, 3
        v_and_b32 v5, 7, v0
        v_lshlrev_b32 v5, 6, v5
        s_mov_b32 s34, 0x1c0000
        s_mov_b32 s35, 0x20000
        """)
    a("""
    s_and_b32 s46, s44, 31
    s_mul_i32 s48, s3, 448
    s_mul_i32 s49, s46, 57344
    s_add_u32 s48, s48, s49
    s_lshl_b32 s49, s3, 5
    s_add_u32 s49, s49, s46
    s_mul_i32 s49, s49, 7168
    """)
    if half:
        a("s_add_u32 s48, s48, 28672")
        a("s_add_u32 s49, s49, 512")
    a("""
    s_cmp_lt_u32 s44, 32
    s_cselect_b64 s[32:33], s[18:19], s[20:21]
    s_movk_i32 s50, 3584
    s_cmp_ge_u32 s44, 64
    s_cselect_b64 s[32:33], s[22:23], s[32:33]
    s_cselect_b32 s50, 1024, s50
    s_cselect_b32 s48, s49, s48
    v_mad_u32_u24 v6, v4, s50, v5
    """)
    a("buffer_load_dword %s, v6, s[32:35], s48 offen" % v(dst))


def get_tag(a):
    a("s_waitcnt lgkmcnt(0)")
    a("s_add_u32 s47, s47, 0x%x               ; hand-off tag of this launch" % TAGC)
    a("v_mov_b32 %s, s47" % v(VTAG))


def flag_store(a, wave=0):
    a("s_lshl_b32 s53, s2, %d" % FSH)
    a("s_add_u32 s53, s53, 0x%x" % WS_FLAG)
    a("s_cmp_eq_u32 s5, %d" % wave)
    a("s_cselect_b32 s53, s53, 0x%x" % OOB)
    a("s_mov_b64 exec, 1")
    a("buffer_store_dword %s, off, s[12:15], s53 sc1" % v(VTAG))
    a("s_mov_b64 exec, -1")


def build():
    a = Asm()
    a.raw('.amdgcn_target "amdgcn-amd-amdhsa--gfx950"')
    a.raw(".text")
    a.raw(".globl %s" % KN)
    a.raw(".p2align 8")
    a.raw(".type %s,@function" % KN)
    a.label(KN, reset=True)
    a("s_cmp_ge_u32 s2, 256")
    a("s_cbranch_scc1 L_end")
    stamp(a, 0)
    a("s_load_dwordx2 s[8:9], s[0:1], 0")
    a("s_load_dwordx2 s[12:13], s[0:1], 112")
    a("s_load_dwordx16 s[16:31], s[0:1], 48")
    if CPF:
        a("s_getpc_b64 s[60:61]")
        a.label("L_cpf_pc")
        a("v_lshlrev_b32 v192, %d, v0" % (7 if CPF == 1 else 6))
        a("v_cmp_gt_u32 vcc, L_end-L_cpf_pc, v192")
        a("v_mov_b32 v193, 0")
        a("v_lshl_add_u64 v[192:193], v[192:193], 0, s[60:61]")
        a("s_and_saveexec_b64 s[60:61], vcc")
        a("s_cbranch_execz L_cpf")
        n = len(a.vm)
        a("global_load_dword v198, v[192:193], off")
        del a.vm[n:]
        a.label("L_cpf")
        a("s_mov_b64 exec, -1")
    a("""
    v_lshrrev_b32 v3, 6, v0               ; wave
    v_and_b32 v1, 15, v0                  ; n
    v_bfe_u32 v2, v0, 4, 2                ; q
    v_readfirstlane_b32 s5, v3
    s_and_b32 s3, s2, 7                   ; x
    s_lshr_b32 s4, s2, 3                  ; y
    v_and_b32 v250, 63, v0
    v_lshlrev_b32 v250, 4, v250           ; lane*16
    v_mov_b32 v252, -1
    v_mov_b32 v253, -1
    v_mov_b32 v254, -1
    v_mov_b32 v255, -1
    s_mov_b32 s63, 0x80000000
    """)
    a("v_cvt_f32_u32 %s, v2" % v(VQ4))
    srd(a, 8, 2048 * 1024)
    srd(a, 12, WS_SIZE)
    a("v_mul_f32 %s, 4.0, %s" % (v(VQ4), v(VQ4)))
    a("s_lshl_b32 s62, s5, 10")
    a("s_cmp_ge_u32 s4, 16")
    st0 = a.fork()
    a("s_cbranch_scc1 L_notdft")
    a("""
    s_movk_i32 s59, 128
    s_lshr_b32 s6, s4, 2
    s_lshl3_add_u32 s6, s6, s3            ; s2 index
    s_and_b32 s7, s4, 3
    v_lshlrev_b32 v5, 4, v1
    """)

    def store_addr():
        a("""
        v_and_b32 v8, 3, v3                   ; M tile
        v_lshlrev_b32 v13, 1, v2
        v_lshl_add_u32 v13, v8, 3, v13
        v_lshl_add_u32 v13, v13, 16, v5
        s_lshl_b32 s54, s6, 11
        s_lshl_b32 s55, s7, 9
        s_add_u32 s54, s54, s55
        """)
        a("s_add_u32 s54, s54, 0x%x" % WS_INTER)
        a("s_add_u32 s55, s54, 0x10000")
    a("s_lshl_b32 s44, s6, 10")
    for g in range(4):
        a("s_add_u32 s46, s7, %d" % g)
        a("s_and_b32 s46, s46, 3")
        a("s_lshl_b32 s46, s46, 8")
        a("s_add_u32 %s, s46, s44" % s(48 + g))
    a("""
    s_lshl1_add_u32 s46, s7, s5
    s_and_b32 s46, s46, 7
    s_lshl_b32 s46, s46, 3
    v_add_u32 v4, s46, v2
    v_lshl_or_b32 v6, v4, 15, v5
    v_add_u32 v7, 0x20000, v6
    s_waitcnt lgkmcnt(0)
    """)
    stamp(a, 1)
    X = 16
    for i in range(4):
        for g in range(2):
            a("buffer_load_dwordx4 %s, %s, s[8:11], %s offen" % (v(X + 16 * g + 4 * i, 4), v(6 + g), s(48 + i)))
    a("s_load_dword s47, s[12:13], 0x%x" % WS_GEN)
    a("s_branch L_dft")
    mark = len(a.lines)
    a.label("L_dft")
    store_addr()
    a("v_lshrrev_b32 v12, 8, v0")
    a("v_lshl_add_u32 v13, v12, 8, v13")
    if POIS == 4:
        a("s_barrier")
    if POIS < 5:
        a("buffer_store_dwordx4 v[252:255], v13, s[12:15], s54 offen sc1")
        a("buffer_store_dwordx4 v[252:255], v13, s[12:15], s55 offen sc1")
    WA = 48
    a("""
    v_lshrrev_b32 v9, 1, v1
    v_lshl_add_u32 v9, v8, 3, v9          ; slot
    v_and_b32 v10, 1, v1
    v_lshl_or_b32 v11, v9, 1, v10
    v_cmp_eq_u32 vcc, 1, v11
    v_cvt_f32_u32 v10, v10
    v_lshlrev_b32 v15, 31, v9
    v_cndmask_b32 v11, v9, 32, vcc
    """)
    a("v_mul_f32 v10, %s, v10" % f32(0.25))
    a("v_cvt_f32_u32 v11, v11")
    a("v_cndmask_b32 v10, v10, 0, vcc")
    a("v_mul_f32 v11, %s, v11" % f32(1 / 64))
    a("v_fmac_f32 v10, v11, %s" % v(VQ4))
    a("v_lshrrev_b32 v14, 16, v15")
    a("v_or_b32 v15, v15, v14")
    T = 56
    a("v_cos_f32 %s, v10" % v(T))
    for j in range(1, 8):
        a("v_add_f32 v10, v10, v11" if j != 4 else "v_fmac_f32 v10, %s, v11" % f32(13.0))
        a("v_cos_f32 %s, v10" % v(T + j))
    for j in range(4):
        a("v_cvt_pk_bf16_f32 %s, %s, %s" % (v(WA + j), v(T + 2 * j), v(T + 2 * j + 1)))
    for j in range(4):
        a("v_xor_b32 %s, v15, %s" % (v(WA + 4 + j), v(WA + j)))
    a("""
    v_mul_u32_u24 v10, 288, v4
    v_add_u32 v10, v10, v5
    v_bfe_u32 v11, v0, 2, 4
    v_mul_u32_u24 v11, 288, v11
    v_and_b32 v14, 3, v0
    v_lshl_add_u32 v11, v14, 3, v11
    v_lshl_add_u32 v11, v12, 7, v11
    s_mov_b32 s52, 0x3f803f80
    v_mov_b32 v56, 0
    v_mov_b32 v57, 0
    v_mov_b32 v58, 0
    v_mov_b32 v59, 0
    """)
    stamp(a, 2)
    U = 64
    for i in range(4):
        for g in range(2):
            a.wait_vm_for(v(X + 16 * g + 4 * i, 4))
            if i == 0 and g == 0:
                stamp(a, 3)
            for d in range(4):
                x = v(X + 16 * g + 4 * i + d)
                a("v_dot2c_f32_bf16 %s, s52, %s" % (v(56 + g), x))
                a("v_dot2c_f32_bf16 %s, %s, %s" % (v(58 + g), x, x))
            if i == 0:
                for d in range(4):
                    a("v_lshlrev_b32 %s, 16, %s" % (v(U + 8 * g + 2 * d), v(X + 16 * g + d)))
                    a("v_and_b32 %s, 0xffff0000, %s" % (v(U + 8 * g + 2 * d + 1), v(X + 16 * g + d)))
    stamp(a, 4)
    dpp_sum(a, [56, 57, 58, 59], ROR)
    for g in range(2):
        a("v_mul_f32 %s, %s, %s" % (v(56 + g), f32(1 / 512), v(56 + g)))
    for g in range(2):
        a("v_mul_f32 %s, %s, %s" % (v(60 + 2 * g), v(56 + g), v(56 + g)))
    for g in range(2):
        a("v_sub_f32 %s, %s, %s" % (v(60 + 2 * g), f32(EPS), v(60 + 2 * g)))
    for g in range(2):
        a("v_fmac_f32 %s, %s, %s" % (v(60 + 2 * g), f32(1 / 512), v(58 + g)))
    for g in range(2):
        a("v_rsq_f32 %s, %s" % (v(60 + 2 * g), v(60 + 2 * g)))
    for g in range(2):
        a("v_mul_f32 %s, %s, %s" % (v(61 + 2 * g), v(56 + g), v(60 + 2 * g)))
    for g in range(2):
        p = v(60 + 2 * g, 2)
        for d in range(4):
            u = v(U + 8 * g + 2 * d, 2)
            a("v_pk_fma_f32 %s, %s, %s, %s op_sel:[0,0,1] op_sel_hi:[1,0,1] neg_lo:[0,0,1] neg_hi:[0,0,1]" % (u, u, p, p))
        for d in range(4):
            a("v_cvt_pk_bf16_f32 %s, %s, %s" % (v(X + 16 * g + d), v(U + 8 * g + 2 * d), v(U + 8 * g + 2 * d + 1)))
        a("ds_write_b128 v10, %s offset:%d" % (v(X + 16 * g, 4), 4 * PITCH * g))
    if HF:
        a("s_lshl_b32 s53, s2, %d" % FSH)
        a("s_add_u32 s53, s53, 0x%x" % WS_FLAG)
    a("s_waitcnt vmcnt(0)")
    get_tag(a)
    if HF:
        a("s_cmp_lg_u32 s5, 7")
    a("s_barrier")
    stamp(a, 5)
    if HF:
        a("s_cbranch_scc1 L_nohint")
        a("s_mov_b64 exec, 1")
        a("buffer_store_dword %s, off, s[12:15], s53 sc1" % v(VTAG))
        a("s_mov_b64 exec, -1")
        a.label("L_nohint")
    B = 64
    for ks in range(2):
        for i in range(4):
            for hf in range(2):
                a("ds_read_b64_tr_b16 %s, v11 offset:%d" % (v(B + 16 * ks + 4 * i + 2 * hf, 2), ks * 32 * PITCH + hf * 16 * PITCH + i * 32))
    if not HF:
        flag_store(a)
    ACC = 96
    for ks in range(2):
        for i in range(4):
            a.wait_lg_for(v(B + 16 * ks + 4 * i, 4))
            acc = v(ACC + 4 * i, 4)
            a("v_mfma_f32_16x16x32_bf16 %s, %s, %s, %s" % (acc, v(WA + 4 * ks, 4), v(B + 16 * ks + 4 * i, 4), "0" if ks == 0 else acc))
    O = 16
    for i in range(4):
        for p in range(2):
            a("v_cvt_pk_bf16_f32 %s, %s, %s" % (v(O + 4 * p + i), v(ACC + 4 * i + 2 * p), v(ACC + 4 * i + 2 * p + 1)))
    for p in range(2):
        a("buffer_store_dwordx4 %s, v13, s[12:15], %s offen sc1" % (v(O + 4 * p, 4), s(54 + p)))
    stamp(a, 6)
    a("s_cmp_lg_u32 s2, %d" % XWG)
    a("s_cbranch_scc1 L_notx")
    a("s_call_b64 s[100:101], L_setup")
    a("s_branch L_p2")
    a.label("L_notx")
    if ADEL == 1:
        a("s_waitcnt vmcnt(0)")
    a("s_cmp_lt_u32 s4, 7")
    a("s_cbranch_scc1 L_ffn")
    if ADEL == 2:
        a("s_waitcnt vmcnt(0)")
    a("s_sub_u32 s44, s4, 7")
    a("s_lshl3_add_u32 s44, s44, s5")
    for k in range(2):
        touch(a, 1, 196 + k, k == 0)
        if k == 0:
            a("s_add_u32 s44, s44, 64")
            a("s_cmp_ge_u32 s44, 96")
            a("s_cbranch_scc1 L_done")
    a("s_branch L_done")
    dft_block = a.lines[mark:]
    del a.lines[mark:]
    a.label("L_notdft")
    a.join(st0)
    a("s_sub_u32 s59, s2, 128")
    srd(a, 36, 512 * 6144)
    a("s_cmp_ge_u32 s4, 22")
    st1 = a.fork()
    a("s_cbranch_scc1 L_notmod")
    srd(a, 32, 1024)
    a("""
    s_sub_u32 s6, s2, 128
    s_lshl_b32 s48, s6, 7
    """)
    for i in range(1, 8):
        a("s_add_u32 %s, s48, %d" % (s(48 + i), 6144 * i))
    a("""
    v_lshrrev_b32 v4, 3, v0
    v_and_b32 v5, 7, v0
    v_mul_u32_u24 v6, 0xc000, v4
    v_lshl_add_u32 v6, v5, 4, v6
    v_and_b32 v7, 3, v0
    v_lshlrev_b32 v7, 2, v7
    v_lshl_add_u32 v7, v4, 4, v7
    s_waitcnt lgkmcnt(0)
    s_mov_b64 s[36:37], s[26:27]
    s_mov_b64 s[32:33], s[24:25]
    """)
    stamp(a, 1)
    a("buffer_load_dword v8, v7, s[32:35], 0 offen")
    W = 16
    for i in range(8):
        a("buffer_load_dwordx4 %s, v6, s[36:39], %s offen" % (v(W + 4 * i, 4), s(48 + i)))
    a("s_load_dword s47, s[12:13], 0x%x" % WS_GEN)
    if MODFIRST == 2:
        a("s_cmp_lt_u32 s5, 4")
        a("s_cbranch_scc1 L_mod")
    if MODFIRST != 1:
        a("s_call_b64 s[100:101], L_setup")
    a("s_branch L_mod")
    mark = len(a.lines)
    a.label("L_mod")
    a("""
    s_mov_b32 s44, 0x05040100
    s_mov_b32 s46, 0x07060302
    s_lshr_b32 s48, s6, 3
    s_cmp_eq_u32 s48, 1
    s_cselect_b32 s50, 1.0, 0
    s_cmp_eq_u32 s48, 4
    s_cselect_b32 s50, 1.0, s50
    v_lshlrev_b32 v6, 1, v2
    v_lshl_add_u32 v6, v5, 3, v6
    v_and_b32 v7, 15, v6
    v_lshrrev_b32 v9, 4, v6
    v_lshl_add_u32 v10, v7, 2, v9
    v_and_b32 v7, 3, v6
    v_lshl_add_u32 v7, v9, 2, v7
    v_bfe_u32 v9, v6, 2, 2
    v_lshl_add_u32 v7, v9, 4, v7
    v_lshlrev_b32 v9, 8, v3
    v_lshl_add_u32 v10, v10, 2, v9
    v_lshl_add_u32 v7, v7, 2, v9
    s_lshl_b32 s58, s6, 8
    """)
    for j in range(8):
        a("v_mov_b32 %s, 0" % v(48 + j))
    stamp(a, 2)
    a.wait_vm_for("v8")
    get_tag(a)
    stamp(a, 3)
    a("v_lshlrev_b32 v11, 16, v8")
    a("v_and_b32 v12, 0xffff0000, v8")
    a("v_mul_f32 v13, %s, v11" % f32(-LOG2E))
    a("v_mul_f32 v14, %s, v12" % f32(-LOG2E))
    a("""
    v_exp_f32 v13, v13
    v_exp_f32 v14, v14
    v_add_f32 v13, 1.0, v13
    v_add_f32 v14, 1.0, v14
    v_rcp_f32 v13, v13
    v_rcp_f32 v14, v14
    v_mul_f32 v11, v11, v13
    v_mul_f32 v12, v12, v14
    v_cvt_pk_bf16_f32 v8, v11, v12
    """)
    for p in range(4):
        a("v_mov_b32_dpp %s, v8 quad_perm:[%d,%d,%d,%d] row_mask:0xf bank_mask:0xf" % (v(12 + p), p, p, p, p))
    for p in range(4):
        a.wait_vm_for(v(W + 8 * p, 8))
        for jj in range(4):
            a("v_perm_b32 %s, %s, %s, s44" % (v(56 + 2 * jj), v(W + 8 * p + 4 + jj), v(W + 8 * p + jj)))
            a("v_perm_b32 %s, %s, %s, s46" % (v(57 + 2 * jj), v(W + 8 * p + 4 + jj), v(W + 8 * p + jj)))
        for j in range(8):
            a("v_dot2c_f32_bf16 %s, %s, %s" % (v(48 + j), v(12 + p), v(56 + j)))
    stamp(a, 4)
    if MH == 0:
        flag_store(a, 7)
    for j in range(4):
        a("v_permlane32_swap_b32 %s, %s" % (v(48 + j), v(52 + j)))
    for j in range(4):
        a("v_add_f32 %s, %s, %s" % (v(48 + j), v(48 + j), v(52 + j)))
    for j in range(2):
        a("v_permlane16_swap_b32 %s, %s" % (v(48 + j), v(50 + j)))
    for j in range(2):
        a("v_add_f32 %s, %s, %s" % (v(48 + j), v(48 + j), v(50 + j)))
    dpp_sum(a, [48, 49], ROR[:1])
    a("""
    s_mov_b32 exec_lo, 0x00ff00ff
    s_mov_b32 exec_hi, 0x00ff00ff
    s_cmp_lt_u32 s6, 16
    s_cbranch_scc1 L_mod_w4
    ds_write_b64 v7, v[48:49]
    s_branch L_mod_w
    """)
    a.label("L_mod_w4")
    a("ds_write2_b32 v10, v48, v49 offset0:0 offset1:4")
    a.label("L_mod_w")
    a("s_mov_b64 exec, -1")
    if MODFIRST == 2:
        a("s_cmp_ge_u32 s5, 4")
        a("s_cbranch_scc1 L_mod_b")
        a("s_call_b64 s[100:101], L_setup")
        a.label("L_mod_b")
    a("""
    s_waitcnt lgkmcnt(0)
    s_barrier
    """)
    if MH == 1:
        flag_store(a, 1)
    stamp(a, 5)
    a("""
    s_cmp_lg_u32 s5, 0
    s_cbranch_scc1 L_mod_end
    s_mov_b64 exec, 0xffff
    """)
    for k in range(8):
        a("ds_read_b128 %s, v250 offset:%d" % (v(16 + 4 * k, 4), 256 * k))
    a("v_mov_b32 v49, v249")
    a("v_mov_b32 v51, v249")
    for k in range(0, 8, 2):
        a.wait_lg_for(v(16 + 4 * k, 8))
        a("v_pk_add_f32 %s, %s, %s" % (v(16 + 4 * k, 2), v(16 + 4 * k, 2), v(20 + 4 * k, 2)))
        a("v_pk_add_f32 %s, %s, %s" % (v(18 + 4 * k, 2), v(18 + 4 * k, 2), v(22 + 4 * k, 2)))
    a("""
    v_pk_add_f32 v[16:17], v[16:17], v[24:25]
    v_pk_add_f32 v[18:19], v[18:19], v[26:27]
    v_pk_add_f32 v[32:33], v[32:33], v[40:41]
    v_pk_add_f32 v[34:35], v[34:35], v[42:43]
    v_pk_add_f32 v[16:17], v[16:17], v[32:33]
    v_pk_add_f32 v[18:19], v[18:19], v[34:35]
    v_cvt_pk_bf16_f32 v48, v16, v17
    v_cvt_pk_bf16_f32 v50, v18, v19
    s_cmp_eq_u32 s50, 0
    s_cbranch_scc1 L_mod_st
    v_lshlrev_b32 v16, 16, v48
    v_and_b32 v17, 0xffff0000, v48
    v_lshlrev_b32 v18, 16, v50
    v_and_b32 v19, 0xffff0000, v50
    v_pk_add_f32 v[16:17], v[16:17], 1.0 op_sel_hi:[1,0]
    v_pk_add_f32 v[18:19], v[18:19], 1.0 op_sel_hi:[1,0]
    v_cvt_pk_bf16_f32 v48, v16, v17
    v_cvt_pk_bf16_f32 v50, v18, v19
    """)
    a.label("L_mod_st")
    a("buffer_store_dwordx4 v[48:51], v250, s[12:15], s58 offen sc1")
    a("s_mov_b64 exec, -1")
    if MH == 2:
        flag_store(a)
    a.label("L_mod_end")
    if MODFIRST == 1:
        a("s_call_b64 s[100:101], L_setup")
    mod_block = a.lines[mark:]
    del a.lines[mark:]
    a.label("L_notmod")
    a.join(st1)
    a("""
    s_sub_u32 s58, s4, 22
    s_lshl3_add_u32 s7, s58, s5
    s_mul_i32 s7, s7, 0x6000
    s_lshl_b32 s44, s3, 7
    s_add_u32 s7, s7, s44
    s_add_u32 s7, s7, 0x120000
    s_add_u32 s44, s7, 4096
    v_mul_u32_u24 v4, 6144, v2
    v_bfe_u32 v5, v0, 3, 1
    v_lshl_add_u32 v4, v5, 10, v4
    v_and_b32 v5, 7, v0
    v_lshl_add_u32 v4, v5, 4, v4
    s_waitcnt lgkmcnt(0)
    s_mov_b64 s[36:37], s[26:27]
    """)
    if HELP == 2:
        a("s_cmp_lt_u32 s4, 29")
        a("s_cbranch_scc1 L_nohelp")
    if HELP:
        a("buffer_load_dwordx4 v[180:183], v4, s[36:39], s7 offen")
        a("buffer_load_dwordx4 v[184:187], v4, s[36:39], s7 offen offset:2048")
        a("buffer_load_dwordx4 v[188:191], v4, s[36:39], s44 offen")
    a.label("L_nohelp")
    a("s_load_dword s47, s[12:13], 0x%x" % WS_GEN)
    a("s_call_b64 s[100:101], L_setup")
    get_tag(a)
    if BT:
        a("s_cmp_ge_u32 s5, %d" % BT)
        a("s_cbranch_scc1 L_p2")
        a("s_mul_i32 s44, s58, %d" % BT)
        a("s_add_u32 s44, s44, s5")
        touch(a, 0, 195, True)
    a("s_branch L_p2")
    setup(a)
    a.lines += dft_block + mod_block
    a.label("L_p2", reset=True)
    a("""
    s_lshl_b32 s45, s59, 12
    s_add_u32 s44, s45, s62
    """)
    a("s_add_u32 s45, s45, 0x%x               ; candidate slots of this workgroup" % WS_CAND)
    a("s_add_u32 s44, s44, 0x%x" % WS_CAND)
    a("s_cmp_lt_u32 s5, 4")
    a("s_cselect_b32 s44, s44, 0x%x" % OOB)
    if CPOS == 0:
        a("buffer_store_dwordx4 v[252:255], v250, s[12:15], s44 offen sc1")
    srd(a, 28, 2048 * 1024)
    a("s_mov_b64 s[24:25], s[16:17]")
    srd(a, 24, 1024)
    a("""
    s_lshl_b32 s56, s5, 6
    s_add_u32 s56, s56, s61
    s_sub_u32 s57, 2048, s56
    s_lshl_b32 s50, s57, 10
    s_lshl_b32 s49, s56, 10
    v_lshlrev_b32 v7, 5, v1
    v_lshl_add_u32 v7, v2, 3, v7          ; 32n + 8q
    buffer_load_dwordx2 v[56:57], v7, s[8:11], s49 offen
    buffer_load_dwordx2 v[58:59], v7, s[8:11], s49 offen offset:512
    buffer_load_dwordx2 v[84:85], v7, s[8:11], s50 offen
    buffer_load_dwordx2 v[86:87], v7, s[8:11], s50 offen offset:512
    buffer_load_dwordx2 v[60:61], v7, s[24:27], 0 offen
    buffer_load_dwordx2 v[62:63], v7, s[24:27], 0 offen offset:512
    s_lshl1_add_u32 s52, s4, s5
    s_and_b32 s52, s52, 7
    s_lshl_b32 s53, s52, 8
    v_lshlrev_b32 v4, 4, v1
    v_add_u32 v4, s53, v4                 ; cb*256 + n*16
    v_lshl_add_u32 v5, v2, 11, v4
    v_add_u32 v179, 0x8000, v5
    s_lshl_b32 s40, s60, 16
    s_lshl_b32 s53, s52, 3
    """)
    a("s_add_u32 s40, s40, 0x%x" % WS_INTER)
    a("""
    s_add_u32 s41, s40, 0x2000
    s_add_u32 s42, s40, 0x4000
    s_add_u32 s43, s40, 0x6000
    v_mul_u32_u24 v8, 80, v1
    v_mul_u32_u24 v9, 5120, v2
    v_add3_u32 v9, v9, s53, v8
    v_mul_u32_u24 v12, 2560, v3
    v_lshl_add_u32 v10, v2, 4, v8
    v_or_b32 v11, s61, v2
    v_cmp_eq_u32 vcc, 0, v11
    v_mov_b32 v11, 0x45000000
    v_cndmask_b32 v11, 0, v11, vcc
    """)
    a("v_add_u32 v9, %d, v9                   ; U write address" % LDS_U)
    a("v_add_u32 v12, %d, v12                 ; scratch row of this wave" % LDS_SCR)
    a("v_sub_u32 v176, v12, v10")
    a("v_add_u32 v176, %d, v176               ; mirrored position of elements 1..3 (g = 1)" % (15 * 80 + 52))
    a("v_add_u32 v178, 1280, v176")
    a("v_add_u32 v14, v10, v12")
    a("v_add_u32 v10, %d, v14                 ; U read address" % ((LDS_U - LDS_SCR) & 0xffffffff))
    a("v_cmp_eq_u32 vcc, 0, v2")
    a("v_cndmask_b32 v177, 12, 28, vcc")
    a("v_add_u32 v177, v177, v176")
    a("v_add_u32 v196, 1280, v177")
    a("v_cmp_eq_u32 vcc, 0, v250")
    a("v_cndmask_b32 v196, v196, v12, vcc")
    a("v_add_u32 v15, v12, v250")
    a("v_add_u32 v12, v12, v7")
    a("""
    s_lshl_b32 s46, s59, 5
    s_lshl2_add_u32 s46, s5, s46
    s_mov_b32 s38, 0xffffe000
    s_mov_b32 s39, 0xffffe000
    s_cmp_eq_u32 s56, 0
    s_cselect_b32 s39, 0, s39
    s_cmp_lg_u32 s59, 128
    s_cbranch_scc1 L_live
    s_mov_b32 s39, 0
    s_cmp_eq_u32 s5, 0
    s_cselect_b32 s38, s38, 0
    """)
    a.label("L_live")
    a("s_cmp_eq_u32 s38, 0")
    a("s_cselect_b32 s49, 0x%x, s49" % OOB)
    a("s_cselect_b32 s36, 0, s46")
    a("s_add_u32 s37, s46, 2")
    a("s_cmp_eq_u32 s39, 0")
    a("s_cselect_b32 s50, 0x%x, s50" % OOB)
    a("s_cselect_b32 s37, 0, s37")
    a("s_lshl_b32 s51, s3, 7")
    a("s_add_u32 s51, s51, 0x%x" % WS_PRE)
    a("s_xor_b32 s53, s4, 31")
    a("s_or_b32 s53, s53, s5")
    a("s_cselect_b32 s51, 0x%x, s51" % OOB)
    stamp(a, 7)
    L = 16
    XU, WU, XM, GAM, PP, PM = 112, 120, 160, 168, 180, 188
    VEC = 128
    GA, SB, CB, GB = VEC, VEC + 8, VEC + 16, VEC + 24

    def inter_load(ks, r):
        a("buffer_load_dwordx4 %s, %s, s[12:15], %s offen sc1" % (v(L + 16 * ks + 4 * r, 4), "v179" if ks else "v5", s(40 + r)))

    def unpack(dst, src):
        for d in range(4):
            a("v_lshlrev_b32 %s, 16, %s" % (v(dst + 2 * d), v(src + d)))
            a("v_and_b32 %s, 0xffff0000, %s" % (v(dst + 2 * d + 1), v(src + d)))

    def mirror_write(src, a0, a123, off=0):
        a("ds_write_b32 %s, %s offset:%d" % (a0, v(src), off))
        a("ds_write_b32 %s, %s offset:%d" % (a123, v(src + 1), off + 8))
        a("ds_write_b32 %s, %s offset:%d" % (a123, v(src + 2), off + 4))
        a("ds_write_b32 %s, %s offset:%d" % (a123, v(src + 3), off))

    def mirror(dst, src):
        for b, a0, a123 in ((src, "v196", "v178"), (src + 4, "v177", "v176")):
            a("ds_write_b32 %s, %s" % (a0, v(b)))
            a("ds_write_b32 %s, %s offset:8" % (a123, v(b + 1)))
            a("ds_write2_b32 %s, %s, %s offset0:1 offset1:0" % (a123, v(b + 2), v(b + 3)))
        a("ds_read_b128 %s, v14" % v(dst, 4))
        a("ds_read_b128 %s, v14 offset:1280" % v(dst + 4, 4))

    def mod_loads():
        a("buffer_load_dwordx4 v[48:51], v4, s[12:15], 0 offen offset:%d sc1" % (WS_MOD + 2048))
        a("buffer_load_dwordx4 v[52:55], v4, s[12:15], 0 offen offset:%d sc1" % WS_MOD)
        a("buffer_load_dwordx4 v[64:67], v197, s[12:15], s55 offen sc1")

    def vec_read(reg, k):
        a("ds_read_b128 %s, v198 offset:%d" % (v(reg, 4), 2560 * k))
        a("ds_read_b128 %s, v198 offset:%d" % (v(reg + 4, 4), 2560 * k + 1280))

    def tag_check(regs_):
        a("v_xor_b32 v88, %s, v249" % v(regs_[0]))
        a("v_xor_b32 v89, %s, v249" % v(regs_[1]))
        for k, r in enumerate(regs_[2:]):
            a("v_bitop3_b32 %s, %s, %s, v249 bitop3:0xf6" % (v(88 + k % 2), v(88 + k % 2), v(r)))
        a("v_or_b32 v88, v88, v89")
        a("v_cmp_ne_u32 vcc, 0, v88")

    def widen(base, n):
        for b in range(base, base + n, 2):
            a("v_and_b32 %s, 0xffff0000, %s" % (v(b + 1), v(b)))
            a("v_lshlrev_b32 %s, 16, %s" % (v(b), v(b)))

    a("s_add_u32 s55, s62, %d" % (WS_MOD + 4096))
    a("""
    v_and_b32 v197, 3, v0
    v_lshlrev_b32 v197, 4, v197
    v_lshl_add_u32 v197, v2, 6, v197
    v_bfe_u32 v68, v0, 2, 2
    v_lshl_add_u32 v197, v68, 8, v197
    v_mul_u32_u24 v68, 80, v1
    v_lshl_add_u32 v198, v2, 4, v68
    """)
    a("v_add_u32 v198, %d, v198               ; vector read address" % LDS_VEC)
    a("""
    s_mul_i32 s53, s5, 1280
    v_add_u32 v90, s53, v198
    s_bitcmp1_b32 s5, 0
    s_cselect_b64 vcc, -1, 0
    v_cndmask_b32 v91, v196, v177, vcc
    v_cndmask_b32 v199, v178, v176, vcc
    s_lshr_b32 s53, s5, 1
    s_sub_u32 s53, s53, s5
    s_mul_i32 s53, s53, 2560
    """)
    a("s_add_u32 s53, s53, %d" % (LDS_VEC + 4 * 2560 - LDS_SCR))
    a("v_add_u32 v91, s53, v91")
    a("v_add_u32 v199, s53, v199")
    a("s_waitcnt vmcnt(0)")
    unpack(XU, 56)
    unpack(72, 84)
    unpack(WU, 60)
    mirror(XM, 72)
    a("s_bitcmp1_b32 s5, 0")
    a("s_cselect_b64 vcc, -1, 0")
    for j in range(4):
        a("v_cndmask_b32 %s, %s, %s, vcc" % (v(92 + j), v(WU + j), v(WU + 4 + j)))
    a("s_cmp_lt_u32 s5, 2")
    a("s_cselect_b64 vcc, -1, 0")
    for j in range(4):
        a("v_cndmask_b32 %s, %s, 1.0, vcc" % (v(92 + j), v(92 + j)))
    a("s_mov_b32 s54, %d" % SPIN)
    a("s_waitcnt lgkmcnt(0)")
    if PROG:
        a("""
        v_and_b32 v8, 7, v0
        v_bfe_u32 v6, v0, 3, 2
        v_lshl_add_u32 v8, v6, 5, v8
        s_lshr_b32 s52, s52, 1
        """)
        a("v_lshlrev_b32 v8, %d, v8" % FSH)
        a("s_lshl_b32 s52, s52, %d" % (FSH + 3))
        a("s_add_u32 s52, s52, 0x%x" % WS_FLAG)
        a("s_mov_b32 s32, -1")
        a("s_mov_b32 s33, 0")
        a("s_mov_b32 s48, 0")
        a.label("L_poll1")
        a("s_mov_b64 exec, s[32:33]")
        a("buffer_load_dword v6, v8, s[12:15], s52 offen sc1")
        a("s_waitcnt vmcnt(0)")
        a("v_cmp_ne_u32 vcc, v6, %s" % v(VTAG))
        a("s_mov_b64 exec, -1")
        a("""
        s_mov_b32 s32, vcc_lo
        s_lshr_b32 s34, s32, 1
        s_or_b32 s34, s34, s32
        s_lshr_b32 s35, s34, 2
        s_or_b32 s34, s34, s35
        s_or_b32 s34, s34, s48
        s_andn2_b32 s34, 0x11111111, s34
        s_cbranch_scc0 L_skip7
        s_or_b32 s48, s48, s34
        """)
        for i in range(8):
            a("s_bitcmp1_b32 s34, %d" % (4 * i))
            a("s_cbranch_scc0 L_skip%d" % i)
            inter_load(i // 4, i % 4)
            a.label("L_skip%d" % i)
        a("s_cmp_eq_u32 s32, 0")
        poll_tail(a, "L_poll1")
        stamp(a, 8)
        a("s_mov_b32 s54, %d" % SPIN)
        a("s_branch L_inter_go")
        a.vm = []
    else:
        a("s_cmp_ge_u32 s5, 2")
        a("s_cbranch_scc1 L_poll1_ok")
        a("v_lshlrev_b32 v8, %d, v0" % FSH)
        a("s_mov_b32 s52, 0x%x" % WS_FLAG)
        a.label("L_poll1")
        a("buffer_load_dword v6, v8, s[12:15], s52 offen sc1")
        a("s_waitcnt vmcnt(0)")
        a("v_cmp_ne_u32 vcc, v6, %s" % v(VTAG))
        a("s_and_b64 exec, exec, vcc")
        a("s_cmp_eq_u64 exec, 0")
        poll_tail(a, "L_poll1")
        a("s_mov_b64 exec, -1")
        a("s_mov_b32 s54, %d" % SPIN)
        a("s_barrier")
        stamp(a, 8)
    a.label("L_inter")
    for ks in range(2):
        for r in range(4):
            inter_load(ks, r)
    a.label("L_inter_go")
    mod_loads()
    ACC = 96
    for ks in range(2):
        a.wait_vm_for(v(L, 32) if PROG else v(L + 16 * ks, 16))
        if ks == 1 - PROG:
            stamp(a, 9)
        TT = 68 if ks == 0 else 16
        b = L + 16 * ks
        for i in range(4):
            for hp in range(2):
                o = i & 1
                a("v_pk_mov_b32 %s, %s, %s op_sel:[%d,%d]" % (v(TT + 4 * i + 2 * hp, 2), v(b + 8 * hp + (i & 2), 2), v(b + 8 * hp + 4 + (i & 2), 2), o, o))
        for i in range(4):
            acc = v(ACC + 4 * i, 4)
            a("v_mfma_f32_16x16x32_bf16 %s, %s, %s, %s" % (acc, v(SA + 4 * ks, 4), v(TT + 4 * i, 4), "0" if ks == 0 else acc))
    a("""
    v_max3_u32 v6, v68, v69, v70
    v_max3_u32 v8, v71, v16, v17
    v_max3_u32 v6, v6, v18, v19
    v_max_u32 v6, v6, v8
    v_cmp_eq_u32 vcc, -1, v6
    s_waitcnt vmcnt(0)
    s_cmp_eq_u64 vcc, 0
    """)
    poll_tail(a, "L_inter")
    a("s_mov_b32 s54, %d" % SPIN)
    a("s_branch L_modv_chk")
    a.label("L_modv")
    mod_loads()
    a("s_waitcnt vmcnt(0)")
    a.label("L_modv_chk")
    tag_check([49, 51, 53, 55, 65, 67])
    a("v_and_b32 v65, 0xffff0000, v64")
    a("v_and_b32 v67, 0xffff0000, v66")
    a("s_cmp_eq_u64 vcc, 0")
    poll_tail(a, "L_modv")
    a("""
    v_lshlrev_b32 v64, 16, v64
    v_lshlrev_b32 v66, 16, v66
    ds_write_b128 v90, v[64:67]
    s_bitcmp1_b32 s5, 1
    s_cbranch_scc1 L_nop
    v_pk_mul_f32 v[92:93], v[92:93], v[64:65]
    v_pk_mul_f32 v[94:95], v[94:95], v[66:67]
    ds_write_b32 v91, v92
    ds_write_b32 v199, v93 offset:8
    ds_write2_b32 v199, v94, v95 offset0:1 offset1:0
    s_cmp_lt_u32 s5, 2
    s_cbranch_scc1 L_nop
    ds_write_b128 v90, v[92:95] offset:7680
    """)
    a.label("L_nop")
    widen(48, 8)
    for i in range(4):
        a("v_mul_f32 %s, v11, %s" % (v(52 + i), v(52 + i)))
    if FINE == 1:
        stamp(a, 1)
    P = 32
    for i in range(4):
        c = ACC + 4 * i
        a("v_fma_f32 %s, %s, %s, %s" % (v(c), v(c), v(48 + i), v(52 + i)))
        a("v_mul_f32 %s, %s, %s" % (v(c + 1), v(c + 1), v(48 + i)))
        a("v_pk_mul_f32 %s, %s, %s op_sel:[0,%d] op_sel_hi:[1,%d]" % (v(c + 2, 2), v(c + 2, 2), v(48 + (i & 2), 2), i & 1, i & 1))
        for tt in range(2):
            a("v_cvt_pk_bf16_f32 %s, %s, %s" % (v(P + 4 * tt + 2 * (i % 2) + i // 2), v(c + 2 * tt), v(c + 2 * tt + 1)))
        if i >= 2:
            for tt in range(2):
                a("ds_write_b64 v9, %s offset:%d" % (v(P + 4 * tt + 2 * (i - 2), 2), tt * 2560 + (i - 2) * 1280))
    a("s_waitcnt lgkmcnt(0)")
    if FINE == 1:
        stamp(a, 2)
    a("s_barrier")
    if FINE == 1:
        stamp(a, 3)
    D = 24
    a("ds_read_b128 %s, v10" % v(D, 4))
    a("ds_read_b128 %s, v10 offset:1280" % v(D + 4, 4))

    def notice():
        a("s_mov_b64 exec, 1")
        a("buffer_store_dword %s, off, s[12:15], s51 sc1" % v(VTAG))
        a("s_mov_b64 exec, -1")
    if PRE == 1:
        notice()
    a("v_mov_b32 v80, s38")
    a("v_mov_b32 v81, s36")
    a("v_lshlrev_b32 v11, 3, v3")
    a("v_add_u32 v11, %d, v11" % LDS_KEY)
    a("v_mov_b32 v13, %d" % LDS_KEY)
    a("s_mov_b32 exec_lo, 0")
    a("v_mov_b32 v80, s39")
    a("v_mov_b32 v81, s37")
    a("v_add_u32 v11, 4, v11")
    a("s_mov_b32 exec_lo, -1")
    BR, BI = 32, 40
    for h in range(2):
        a.wait_lg_for(v(D + 4 * h, 4))
        a("v_mfma_f32_16x16x32_bf16 %s, %s, %s, 0" % (v(BR + 4 * h, 4), v(D + 4 * h, 4), v(FR, 4)))
        a("v_mfma_f32_16x16x32_bf16 %s, %s, %s, 0" % (v(BI + 4 * h, 4), v(D + 4 * h, 4), v(FI, 4)))
    A2 = 16
    Y = 64
    for h in range(2):
        for j in range(0, 4, 2):
            br, bi, tc, ts = v(BR + 4 * h + j, 2), v(BI + 4 * h + j, 2), v(TC + 4 * h + j, 2), v(TS + 4 * h + j, 2)
            a("v_pk_mul_f32 %s, %s, %s" % (v(48 + j, 2), br, tc))
            a("v_pk_mul_f32 %s, %s, %s" % (v(52 + j, 2), bi, tc))
            a("v_pk_fma_f32 %s, %s, %s, %s" % (v(48 + j, 2), bi, ts, v(48 + j, 2)))
            a("v_pk_fma_f32 %s, %s, %s, %s neg_lo:[1,0,0] neg_hi:[1,0,0]" % (v(52 + j, 2), br, ts, v(52 + j, 2)))
        if h == 0:
            vec_read(PP, 5)
            vec_read(GA, 0)
        else:
            vec_read(GAM, 4)
            vec_read(PM, 6)
        for k in range(4):
            a("v_cvt_pk_bf16_f32 %s, %s, %s" % (v(A2 + 4 * h + k), v(48 + 2 * k), v(49 + 2 * k)))
        for gg in range(2):
            y = v(Y + 4 * gg, 4)
            a("v_mfma_f32_16x16x32_bf16 %s, %s, %s, %s" % (y, v(A2 + 4 * h, 4), v(G + 8 * h + 4 * gg, 4), "0" if h == 0 else y))
    if FINE:
        stamp(a, 4)
    if PRE == 2:
        notice()
    a("v_mov_b32 v57, %s" % v(VTAG))
    a("v_mov_b32 v59, %s" % v(VTAG))
    a("s_lshl_b32 s58, s59, %d" % KSH)
    a("s_add_u32 s58, s58, 0x%x" % WS_KEYS)
    a("s_cmp_eq_u32 s5, 0")
    a("s_cselect_b32 s58, s58, 0x%x" % OOB)
    rows = ((XU, GA, PP, 32), (XM, GAM, PM, 40))
    a.wait_lg_for(v(PP, 8))
    a("v_pk_add_f32 v[38:39], %s, %s" % (v(PP, 2), v(PP + 2, 2)))
    a("v_pk_add_f32 v[46:47], %s, %s" % (v(PP + 4, 2), v(PP + 6, 2)))
    a("v_pk_add_f32 v[38:39], v[38:39], v[46:47]")
    a("v_add_f32 v38, v38, v39")
    a("v_mov_b32 v46, v38")
    for xx, ga, pp, tp in rows:
        a.wait_lg_for(v(ga, 8))
        for e in range(0, 8, 2):
            a("v_pk_fma_f32 %s, %s, %s, %s" % (v(xx + e, 2), v(ga + e, 2), v(Y + e, 2), v(xx + e, 2)))
    XN = 72
    for xx, ga, pp, tp in rows:
        a.wait_lg_for(v(pp, 8))
        a("v_pk_add_f32 %s, %s, %s" % (v(tp, 2), v(xx, 2), v(xx + 2, 2)))
        a("v_pk_mul_f32 %s, %s, %s" % (v(tp + 2, 2), v(xx, 2), v(xx, 2)))
        a("v_pk_mul_f32 %s, %s, %s" % (v(tp + 4, 2), v(xx, 2), v(pp, 2)))
        for e in range(2, 8, 2):
            if e > 2:
                a("v_pk_add_f32 %s, %s, %s" % (v(tp, 2), v(tp, 2), v(xx + e, 2)))
            a("v_pk_fma_f32 %s, %s, %s, %s" % (v(tp + 2, 2), v(xx + e, 2), v(xx + e, 2), v(tp + 2, 2)))
            a("v_pk_fma_f32 %s, %s, %s, %s" % (v(tp + 4, 2), v(xx + e, 2), v(pp + e, 2), v(tp + 4, 2)))
        for k in range(3):
            a("v_add_f32 %s, %s, %s" % (v(tp + 2 * k), v(tp + 2 * k), v(tp + 2 * k + 1)))
    for k in (3, 0, 1, 2):
        a("v_permlane32_swap_b32 %s, %s" % (v(32 + 2 * k), v(40 + 2 * k)))
    for k in (3, 0, 1, 2):
        a("v_add_f32 %s, %s, %s" % (v(32 + 2 * k), v(32 + 2 * k), v(40 + 2 * k)))
    a("v_permlane16_swap_b32 v32, v34")
    a("v_permlane16_swap_b32 v36, v38")
    a("v_add_f32 v32, v32, v34")
    a("v_add_f32 v36, v36, v38")
    if EARLYH:
        extra = []
        for b, a0, a123 in ((XM, "v196", "v178"), (XM + 4, "v177", "v176")):
            extra += ["ds_write_b32 %s, %s" % (a0, v(b)), "ds_write_b32 %s, %s offset:8" % (a123, v(b + 1)), "ds_write2_b32 %s, %s, %s offset0:1 offset1:0" % (a123, v(b + 2), v(b + 3))]
        for k, mod in enumerate(ROR):
            for r in (32, 36):
                a("v_add_f32_dpp %s, %s, %s %s" % (v(r), v(r), v(r), mod))
            for t in extra[(k * 6) // 4:((k + 1) * 6) // 4]:
                a(t)
    else:
        dpp_sum(a, [32, 36], ROR)
    if FINE == 1:
        stamp(a, 5)
    if PRE == 3:
        notice()
    a("v_mov_b32_dpp v33, v32 %s" % BC[0])
    a("v_mov_b32_dpp v37, v36 %s" % BC[0])
    a("v_mul_f32 v33, %s, v33                 ; mean" % f32(1 / 512))
    a("v_mul_f32 v34, v33, v33")
    a("v_sub_f32 v34, %s, v34" % f32(EPS))
    a("v_fmac_f32 v34, %s, v32" % f32(1 / 512))
    a("v_rsq_f32 v34, v34")
    a("""
    v_fma_f32 v36, -v33, v36, v37
    v_mul_f32 v8, v36, v34
    v_ashrrev_i32 v9, 31, v8
    v_or_b32 v9, s63, v9
    v_xor_b32 v8, v8, v9
    v_and_or_b32 v8, v8, v80, v81
    s_mov_b32 exec_lo, 0x80000000
    s_mov_b32 exec_hi, 0x80000000
    ds_write_b32 v11, v8
    s_mov_b64 exec, -1
    v_mul_f32 v35, v33, v34
    s_cmp_lg_u32 s5, 0
    s_cbranch_scc1 L_noprio
    s_setprio 3
    """)
    a.label("L_noprio")
    a("s_waitcnt lgkmcnt(0)")
    stamp(a, 10)
    a("s_barrier")
    for k in range(4):
        a("ds_read_b128 %s, v13 offset:%d" % (v(16 + 4 * k, 4), 16 * k))
    a("""
    v_readlane_b32 s56, v8, 31
    v_readlane_b32 s57, v8, 63
    v_readlane_b32 s32, v34, 31
    v_readlane_b32 s33, v35, 31
    v_readlane_b32 s34, v34, 63
    v_readlane_b32 s35, v35, 63
    s_waitcnt lgkmcnt(2)
    v_max_u32 v56, v16, v17
    v_min_u32 v58, v16, v17
    """)
    for k in range(18, 30, 4):
        if k == 22:
            a("s_waitcnt lgkmcnt(0)")
        a("v_med3_u32 v60, v56, %s, %s" % (v(k), v(k + 1)))
        a("v_max3_u32 v56, v56, %s, %s" % (v(k), v(k + 1)))
        a("v_med3_u32 v61, v56, %s, %s" % (v(k + 2), v(k + 3)))
        a("v_max3_u32 v56, v56, %s, %s" % (v(k + 2), v(k + 3)))
        a("v_max3_u32 v58, v58, v60, v61")
    a("""
    v_med3_u32 v60, v56, v30, v31
    v_max3_u32 v56, v56, v30, v31
    v_max_u32 v60, v58, v60
    v_or_b32 v58, 1, v60
    s_mov_b64 exec, 1
    buffer_store_dwordx4 v[56:59], off, s[12:15], s58 sc1
    s_mov_b64 exec, -1
    s_setprio 0
    """)
    if FINE:
        stamp(a, 6)
    vec_read(CB, 2)
    vec_read(SB, 1)
    if EARLYH:
        a("ds_read_b128 %s, v14" % v(XN, 4))
        a("ds_read_b128 %s, v14 offset:1280" % v(XN + 4, 4))
        vec_read(GB, 3)
    else:
        vec_read(GB, 3)
        mirror(XN, XM)
    a("v_readfirstlane_b32 s60, v56")
    a("v_readfirstlane_b32 s61, v60")
    H, HM = 32, 88
    OUT, OUTM, HP, HPM = 40, 44, 48, 52
    for ri, (xx, hh, sp, o, hp) in enumerate(((XU, H, 32, OUT, HP), (XN, HM, 34, OUTM, HPM))):
        if ri:
            a("s_waitcnt lgkmcnt(0)")
        a("v_mov_b32 v60, %s" % s(sp + 1))
        for e in range(8):
            a("v_fma_f32 %s, %s, %s, -v60" % (v(hh + e), v(xx + e), s(sp)))
        a.wait_lg_for(v(VEC, 32))
        for e in range(0, 8, 2):
            a("v_pk_fma_f32 %s, %s, %s, %s" % (v(hh + e, 2), v(hh + e, 2), v(CB + e, 2), v(SB + e, 2)))
        for d in range(4):
            a("v_cvt_pk_bf16_f32 %s, %s, %s" % (v(hp + d), v(hh + 2 * d), v(hh + 2 * d + 1)))
        for e in range(0, 8, 2):
            a("v_pk_fma_f32 %s, %s, %s, %s" % (v(xx + e, 2), v(GB + e, 2), v(hh + e, 2), v(xx + e, 2)))
        for d in range(4):
            a("v_cvt_pk_bf16_f32 %s, %s, %s" % (v(o + d), v(xx + 2 * d), v(xx + 2 * d + 1)))
    a("""
    ds_write_b64 v12, v[40:41]
    ds_write_b64 v12, v[42:43] offset:512
    ds_write_b64 v12, v[44:45] offset:1024
    ds_write_b64 v12, v[46:47] offset:1536
    ds_read_b128 v[40:43], v15
    ds_read_b128 v[44:47], v15 offset:1024
    s_max_u32 s61, s61, 1
    """)
    for ri, (key, off, o, hp) in enumerate((("s56", "s49", OUT, HP), ("s57", "s50", OUTM, HPM))):
        a("s_mov_b32 s58, s45")
        a("s_cmp_eq_u32 %s, s60" % key)
        a("s_cbranch_scc1 L_cand%d" % ri)
        a("s_add_u32 s58, s45, 2048")
        a("s_cmp_eq_u32 %s, s61" % key)
        a("s_cselect_b32 s53, 1, 0")
        a("s_or_b32 %s, %s, s53" % (key, key))
        a("s_cmp_eq_u32 s53, 1")
        stc = a.fork()
        a("s_cbranch_scc1 L_cand%d" % ri)
        a("s_mov_b32 %s, 0" % key)
        a("s_waitcnt lgkmcnt(0)")
        a("buffer_store_dwordx4 %s, v250, s[28:31], %s offen%s" % (v(o, 4), off, OUTF))
        a("s_branch L_next%d" % ri)
        a.label("L_cand%d" % ri)
        a.join(stc)
        a("buffer_store_dwordx4 %s, v250, s[12:15], s58 offen sc1" % v(hp, 4))
        a("s_waitcnt lgkmcnt(0)")
        a("buffer_store_dwordx4 %s, v250, s[12:15], s58 offen offset:1024 sc1" % v(o, 4))
        a.label("L_next%d" % ri)
    a.label("L_tail", reset=True)
    a("""
    s_lshl_b32 s59, s5, 8
    s_add_u32 s59, s59, s2
    s_sub_u32 s59, s59, 192
    s_cmp_lt_u32 s59, 64
    s_cselect_b32 s59, 1, 0
    s_or_b32 s60, s59, s56
    s_or_b32 s60, s60, s57
    s_cbranch_scc0 L_done
    s_lshl_b32 s45, s3, 7
    """)
    a("s_add_u32 s45, s45, 0x%x" % WS_SEL)
    a("s_cmp_eq_u32 s59, 0")
    a("s_cbranch_scc1 L_sel_go")
    a("""
    s_lshl3_add_u32 s44, s3, s4
    s_sub_u32 s44, s44, 24
    s_lshr_b32 s48, s44, 2
    s_lshl_b32 s48, s48, 5
    s_and_b32 s46, s44, 3
    s_lshl2_add_u32 s48, s46, s48
    v_and_b32 v4, 3, v0
    v_lshrrev_b32 v5, 1, v2
    v_lshl_add_u32 v5, v5, 4, v4
    v_add_u32 v5, s48, v5
    v_and_b32 v8, 0x103, v5
    v_bfe_u32 v9, v5, 2, 2
    v_lshl_add_u32 v8, v9, 6, v8
    v_bfe_u32 v9, v5, 4, 4
    v_lshl_add_u32 v8, v9, 2, v8
    v_lshlrev_b32 v8, 2, v8
    """)
    a("ds_write_b128 v15, %s" % v(GB, 4))
    a("ds_write_b128 v15, %s offset:1024" % v(GB + 4, 4))
    a("ds_read_b32 v8, v8 offset:%d           ; gb[e]" % LDS_SCR)
    a("v_pk_mul_f32 v[62:63], %s, %s" % (v(SB, 2), v(WU, 2)))
    for e in range(2, 8, 2):
        a("v_pk_fma_f32 v[62:63], %s, %s, v[62:63]" % (v(SB + e, 2), v(WU + e, 2)))
    a("v_add_f32 v62, v62, v63")
    dpp_sum(a, [62], ROR + BC)
    a("v_readlane_b32 s58, v62, 63")
    a("""
    v_bfe_u32 v9, v0, 2, 4
    v_lshlrev_b32 v9, 12, v9
    v_lshl_add_u32 v9, v4, 4, v9
    s_lshl_b32 s40, s44, 6
    v_and_b32 v10, 1, v2
    v_cmp_eq_u32 s[52:53], 1, v10
    v_mov_b32 v36, 0
    v_mov_b32 v37, 0
    v_mov_b32 v38, 0
    v_mov_b32 v39, 0
    """)
    a("s_add_u32 s40, s40, 0x%x" % WS_PART)
    a("s_add_u32 s41, s40, 0x10000")
    a("s_add_u32 s42, s40, 0x20000")
    a("s_add_u32 s43, s40, 0x30000")
    a("s_waitcnt lgkmcnt(0)")
    a.label("L_sel_go")
    a("s_mov_b32 s54, %d" % SPIN)
    a.label("L_poll_sel")
    a("buffer_load_dwordx4 v[16:19], off, s[12:15], s45 sc1")
    a("s_waitcnt vmcnt(0)")
    a("v_cmp_eq_u32 vcc, v17, %s" % v(VTAG))
    a("v_cmp_eq_u32 s[60:61], v19, %s" % v(VTAG))
    a("s_and_b64 vcc, vcc, s[60:61]")
    a("s_cmp_eq_u64 vcc, -1")
    poll_tail(a, "L_poll_sel")
    stamp(a, 11)
    a("""
    v_readfirstlane_b32 s60, v16
    v_readfirstlane_b32 s61, v18
    """)
    if LO:
        for ri, (key, off, o) in enumerate((("s56", "s49", OUT), ("s57", "s50", OUTM))):
            a("s_cmp_eq_u32 %s, 0" % key)
            a("s_cbranch_scc1 L_lo%d" % ri)
            a("s_cmp_eq_u32 %s, s60" % key)
            a("s_cbranch_scc1 L_lo%d" % ri)
            a("s_cmp_eq_u32 %s, s61" % key)
            a("s_cbranch_scc1 L_lo%d" % ri)
            a("buffer_store_dwordx4 %s, v250, s[28:31], %s offen" % (v(o, 4), off))
            a.label("L_lo%d" % ri)
    a("""
    s_cmp_eq_u32 s59, 0
    s_cbranch_scc1 L_late_out
    v_cndmask_b32 v16, v16, v18, s[52:53]
    v_bfe_u32 v17, v16, 5, 8
    v_and_b32 v18, 1, v16
    v_lshlrev_b32 v19, 12, v17
    v_lshl_add_u32 v19, v18, 11, v19
    v_lshl_add_u32 v19, v5, 1, v19
    """)
    a("s_mov_b32 s55, 0x%x" % (WS_CAND + 1024))
    a("s_mov_b32 s54, %d" % SPIN)
    a.label("L_poll_base")
    a("""
    buffer_load_ushort v20, v19, s[12:15], s55 offen sc1
    v_and_b32 v21, 7, v17
    v_bfe_u32 v22, v17, 5, 2
    v_lshl_add_u32 v21, v22, 3, v21       ; slot
    v_bfe_u32 v22, v17, 3, 2
    v_lshl_add_u32 v22, v22, 9, v21
    v_subrev_u32 v23, 992, v22
    v_cmp_eq_u32 vcc, 0, v21
    v_cndmask_b32 v23, v22, v23, vcc
    v_cmp_gt_u32 vcc, 1024, v22
    v_cndmask_b32 v21, v23, v22, vcc
    v_lshrrev_b32 v22, 7, v17
    v_lshl_add_u32 v21, v22, 10, v21
    v_bfe_u32 v22, v16, 2, 3
    v_lshl_add_u32 v21, v22, 6, v21
    v_sub_u32 v22, 2048, v21
    v_and_b32 v23, 2, v16
    v_cmp_eq_u32 vcc, 0, v23
    v_cndmask_b32 v21, v22, v21, vcc
    v_lshlrev_b32 v21, 10, v21
    v_lshl_add_u32 v21, v5, 1, v21
    """)
    if FIN == 2:
        a("buffer_load_ushort v49, v21, s[28:31], 0 offen")
    a("""
    v_and_b32 v22, 0xffffe000, v16
    v_ashrrev_i32 v23, 31, v22
    v_not_b32 v23, v23
    v_or_b32 v23, s63, v23
    v_xor_b32 v22, v22, v23
    v_add_f32 v22, s58, v22
    """)
    a("v_mul_f32 v22, %s, v22" % f32(-LOG2E))
    a("""
    v_exp_f32 v22, v22
    v_add_f32 v22, 1.0, v22
    v_rcp_f32 v22, v22
    v_mul_f32 v22, v22, v8
    s_waitcnt vmcnt(0)
    v_cmp_eq_u32 vcc, 0xffff, v20
    s_cmp_eq_u64 vcc, 0
    """)
    poll_tail(a, "L_poll_base")
    a("s_mov_b32 s54, %d" % SPIN)
    a.label("L_poll_part")
    a("""
    buffer_load_dwordx4 v[24:27], v9, s[12:15], s40 offen sc1
    buffer_load_dwordx4 v[28:31], v9, s[12:15], s41 offen sc1
    buffer_load_dwordx4 v[32:35], v9, s[12:15], s42 offen sc1
    s_mov_b32 exec_hi, 0
    buffer_load_dwordx4 v[36:39], v9, s[12:15], s43 offen sc1
    s_mov_b32 exec_hi, -1
    s_waitcnt vmcnt(0)
    v_max3_u32 v48, v24, v28, v32
    v_max_u32 v48, v48, v36
    v_cmp_eq_u32 vcc, -1, v48
    s_cmp_eq_u64 vcc, 0
    """)
    poll_tail(a, "L_poll_part")
    stamp(a, 12)
    a("""
    v_pk_add_f32 v[24:25], v[24:25], v[28:29]
    v_pk_add_f32 v[26:27], v[26:27], v[30:31]
    v_pk_add_f32 v[32:33], v[32:33], v[36:37]
    v_pk_add_f32 v[34:35], v[34:35], v[38:39]
    v_pk_add_f32 v[24:25], v[24:25], v[32:33]
    v_pk_add_f32 v[26:27], v[26:27], v[34:35]
    v_permlane32_swap_b32 v24, v26
    v_permlane32_swap_b32 v25, v27
    v_pk_add_f32 v[24:25], v[24:25], v[26:27]
    v_permlane16_swap_b32 v24, v25
    v_add_f32 v24, v24, v25
    v_lshlrev_b32 v20, 16, v20
    """)
    dpp_sum(a, [24], ROR[:2])
    a("""
    v_fmac_f32 v20, v24, v22
    v_cvt_pk_bf16_f32 v20, v20, v20
    s_mov_b32 exec_lo, 0x000f000f
    s_mov_b32 exec_hi, 0x000f000f
    buffer_store_short v20, v21, s[28:31], 0 offen OUTF
    s_mov_b64 exec, -1
    s_cmp_lg_u32 s2, 192
    s_cbranch_scc1 L_late_out
    s_mov_b64 exec, 1
    """.replace(" OUTF", " sc1" if FIN == 1 else ""))
    a("s_mov_b32 s55, 0x%x" % WS_GEN)
    a("buffer_store_dword %s, off, s[12:15], s55" % v(VTAG))
    a("s_mov_b64 exec, -1")
    if PROBE >= 0:
        a("s_waitcnt vmcnt(0)")
        a("s_memrealtime s[98:99]")
        a("s_waitcnt lgkmcnt(0)")
        a("s_sub_u32 s94, %s, s96" % ("s98" if PROBE == 13 else "s92"))
        if TMIN >= 0:
            a("s_max_u32 s94, s94, %d" % TMIN)
            a("s_sub_u32 s94, s94, %d" % TMIN)
            a("s_mul_i32 s94, s94, 2622")
            a("s_lshr_b32 s94, s94, 16")
            a("s_min_u32 s95, s94, 12")
            a("s_movk_i32 s94, 2400")
            a.label("L_lvl")
            a("s_sub_u32 s95, s95, 1")
            a("s_cbranch_scc1 L_lvl_done")
            a("s_mul_i32 s94, s94, 11")
            a("s_lshr_b32 s94, s94, 3")
            a("s_branch L_lvl")
            a.label("L_lvl_done")
            a("s_sub_u32 s94, s94, 2200")
        else:
            a("s_mul_i32 s94, s94, 2")
            a("s_min_u32 s94, s94, 8000")
        a.label("L_probe")
        a("s_memrealtime s[96:97]")
        a("s_waitcnt lgkmcnt(0)")
        a("s_sub_u32 s95, s96, s98")
        a("s_cmp_lt_u32 s95, s94")
        a("s_cbranch_scc1 L_probe")
    a.label("L_late_out", reset=True)
    for ri, (key, off, o) in enumerate((("s56", "s49", OUT), ("s57", "s50", OUTM)) if not LO else ()):
        nxt = "L_late1" if ri == 0 else "L_done"
        a("s_cmp_eq_u32 %s, 0" % key)
        a("s_cbranch_scc1 %s" % nxt)
        a("s_cmp_eq_u32 %s, s60" % key)
        a("s_cbranch_scc1 %s" % nxt)
        a("s_cmp_eq_u32 %s, s61" % key)
        a("s_cbranch_scc1 %s" % nxt)
        a("buffer_store_dwordx4 %s, v250, s[28:31], %s offen%s" % (v(o, 4), off, OUTF))
        if ri == 0:
            a.label("L_late1")
    a("s_branch L_done")
    a.label("L_ffn", reset=True)
    a("s_mov_b32 s58, s4")
    a("s_barrier")
    a("""
    s_mul_i32 s6, s3, 7
    s_add_u32 s6, s6, s58
    s_lshl_b32 s46, s6, 12
    """)
    a("s_add_u32 s46, s46, 0x%x               ; partial-sum slab" % WS_PART)
    a("s_add_u32 s45, s46, s62")
    a("s_cmp_lt_u32 s5, 4")
    a("s_cselect_b32 s45, s45, 0x%x" % OOB)
    a("s_mov_b64 s[32:33], s[18:19]")
    a("s_mov_b64 s[36:37], s[20:21]")
    a("s_mov_b64 s[40:41], s[22:23]")
    srd(a, 32, 512 * 3584)
    srd(a, 36, 512 * 3584)
    srd(a, 40, 1792 * 1024)
    a("""
    s_and_b32 s44, s5, 1
    s_lshl_b32 s44, s44, 7
    s_lshr_b32 s48, s5, 1
    s_lshl2_add_u32 s44, s48, s44
    v_bfe_u32 v4, v0, 2, 2
    v_lshl_add_u32 v4, v2, 4, v4
    v_add_u32 v4, s44, v4
    v_mul_u32_u24 v4, 3584, v4
    v_and_b32 v5, 3, v0
    v_lshl_add_u32 v4, v5, 4, v4
    s_lshl_b32 s48, s6, 6
    s_mul_i32 s7, s5, 12288
    s_mov_b32 m0, s7
    """)
    a("s_add_u32 s49, s48, %d" % (64 * 3584))
    a("s_add_u32 s50, s48, %d" % (256 * 3584))
    a("s_add_u32 s51, s48, %d" % (320 * 3584))
    stamp(a, 7)
    a("buffer_store_dwordx4 v[252:255], v250, s[12:15], s45 offen sc1")
    for sr in (32, 36):
        for i in range(4):
            a("buffer_load_dwordx4 v4, %s, %s offen lds" % (s(sr, 4), s(48 + i)))
            a("s_add_u32 m0, m0, 1024")
    a("""
    v_bfe_u32 v5, v0, 3, 3
    v_lshlrev_b32 v5, 10, v5
    v_and_b32 v4, 7, v0
    v_lshl_add_u32 v5, v4, 4, v5
    v_lshl_add_u32 v5, v3, 7, v5
    s_lshl_b32 s48, s6, 15
    """)
    for i in range(4):
        a("buffer_load_dwordx4 v5, s[40:43], s48 offen lds")
        if i < 3:
            a("s_add_u32 m0, m0, 1024")
            a("s_add_u32 s48, s48, 8192")
    WF, WD = 64, 96
    a("v_lshlrev_b32 v6, %d, v0" % KSH)
    a("""
    v_bfe_u32 v4, v0, 2, 4                ; 4q + r
    v_and_b32 v5, 3, v0
    v_lshlrev_b32 v5, 3, v5
    v_lshl_add_u32 v8, v4, 6, v5
    v_add_u32 v8, s7, v8
    v_bfe_u32 v9, v0, 2, 2
    v_lshl_add_u32 v9, v2, 3, v9
    v_lshl_add_u32 v9, v9, 7, v5
    v_add_u32 v9, s7, v9
    """)
    a("v_mov_b32 v33, %s" % v(VTAG))
    a("v_mov_b32 v35, %s" % v(VTAG))
    a("""
    v_and_b32 v10, 1, v0
    v_cmp_eq_u32 s[50:51], 1, v10
    v_lshlrev_b32 v11, 7, v3
    v_lshl_add_u32 v11, v2, 4, v11
    v_lshlrev_b32 v12, 6, v10
    v_lshl_add_u32 v13, v2, 4, v12
    v_lshl_add_u32 v13, v3, 9, v13
    v_and_b32 v14, 30, v0
    v_lshl_add_u32 v14, v14, 1, v12
    v_and_b32 v12, 32, v0
    v_lshl_add_u32 v14, v12, 2, v14
    """)
    a("v_add_u32 v13, %d, v13                 ; partial write address" % LDS_RED)
    a("v_add_u32 v14, %d, v14                 ; partial read address" % LDS_RED)
    a("""
    v_lshlrev_b32 v15, 9, v3
    v_lshl_add_u32 v15, v1, 4, v15
    v_lshlrev_b32 v7, 3, v3
    v_mov_b32 v16, 0
    v_mov_b32 v18, 0
    """)
    a("v_add_u32 v7, %d, v7" % LDS_KEY2)
    a("v_mov_b32 v4, %d" % LDS_KEY2)
    a("s_waitcnt vmcnt(0)")
    stamp(a, 8)
    for kk in range(2):
        for mt in range(4):
            for hf in range(2):
                a("ds_read_b64_tr_b16 %s, v8 offset:%d" % (v(WF + 16 * kk + 4 * mt + 2 * hf, 2), (mt // 2) * 4096 + hf * 2048 + kk * 1024 + (mt % 2) * 32))
    for t in range(4):
        for hf in range(2):
            a("ds_read_b64_tr_b16 %s, v9 offset:%d" % (v(WD + 4 * t + 2 * hf, 2), 8192 + hf * 512 + t * 32))
    a("s_barrier")
    a("s_lshl_b32 s53, s6, %d" % KSH)
    a("s_add_u32 s53, s53, 0x%x" % (WS_KEYS + (129 << KSH)))
    a("s_cmp_eq_u32 s5, 0")
    a("s_cselect_b32 s53, s53, 0x%x" % OOB)
    a("v_mov_b32 v32, 0")
    a("v_mov_b32 v34, 0")
    a("s_mov_b64 exec, 1")
    a("buffer_store_dwordx4 v[32:35], off, s[12:15], s53 sc1")
    a("s_mov_b64 exec, -1")
    a("s_lshl_b32 s52, s3, 7")
    a("s_add_u32 s55, s52, 0x%x" % WS_PRE)
    a("s_add_u32 s52, s52, 0x%x" % WS_SEL)
    a("s_or_b32 s53, s58, s5")
    a("s_cselect_b32 s52, 0x%x, s52           ; one announcing wave per group" % OOB)
    a("s_cmp_ge_u32 s5, 3")
    a("s_cbranch_scc1 L_keys_done")
    a("s_mov_b32 s54, %d" % SPIN)
    if PRE:
        a.label("L_poll_pre")
        a("buffer_load_dword v17, off, s[12:15], s55 sc1")
        a("s_waitcnt vmcnt(0)")
        a("v_cmp_eq_u32 vcc, v17, %s" % v(VTAG))
        a("s_cmp_eq_u64 vcc, -1")
        poll_tail(a, "L_poll_pre")
        a("s_mov_b32 s54, %d" % SPIN)
    stamp(a, 10)
    a("v_cmp_gt_u32 vcc, 185, v0")
    a("s_mov_b32 s55, 0x%x" % WS_KEYS)
    a("s_mov_b64 exec, vcc")
    a.label("L_poll_keys")
    a("buffer_load_dwordx4 v[16:19], v6, s[12:15], s55 offen sc1")
    a("s_waitcnt vmcnt(0)")
    a("v_cmp_ne_u32 vcc, v17, %s" % v(VTAG))
    a("v_cmp_ne_u32 s[60:61], v19, %s" % v(VTAG))
    a("s_or_b64 vcc, vcc, s[60:61]")
    a("s_and_b64 exec, exec, vcc")
    a("s_cmp_eq_u64 exec, 0")
    poll_tail(a, "L_poll_keys")
    a("s_mov_b64 exec, -1")
    for mod in ROR + BC:
        a("v_min_u32_dpp v19, v16, v16 %s" % mod)
        a("v_max_u32_dpp v18, v18, v18 %s" % mod)
        a("v_max_u32_dpp v16, v16, v16 %s" % mod)
        a("v_max_u32 v18, v18, v19")
    a("""
    s_mov_b32 exec_lo, 0
    s_mov_b32 exec_hi, 0x80000000
    ds_write2_b32 v7, v16, v18 offset0:0 offset1:1
    s_mov_b64 exec, -1
    """)
    a.label("L_keys_done")
    a("s_waitcnt lgkmcnt(0)")
    a("s_barrier")
    stamp(a, 11)
    a("ds_read_b128 v[16:19], v4")
    a("ds_read_b64 v[20:21], v4 offset:16")
    a("s_mov_b32 s55, 0x%x" % WS_CAND)
    a("s_mov_b32 s54, %d" % SPIN)
    a("""
    s_waitcnt lgkmcnt(0)
    v_med3_u32 v36, v16, v18, v20
    v_max3_u32 v32, v16, v18, v20
    v_max3_u32 v34, v17, v19, v21
    v_max_u32 v34, v34, v36
    v_cndmask_b32 v36, v32, v34, s[50:51]
    v_bfe_u32 v37, v36, 5, 8
    v_and_b32 v36, 1, v36
    v_lshl_add_u32 v11, v37, 12, v11
    v_lshl_add_u32 v11, v36, 11, v11
    """)
    a.label("L_poll_h2")
    a("""
    buffer_load_dwordx4 v[16:19], v11, s[12:15], s55 offen sc1
    buffer_load_dwordx4 v[20:23], v11, s[12:15], s55 offen offset:64 sc1
    """)
    C = 48
    for kk in range(2):
        a("s_waitcnt vmcnt(%d)" % (1 - kk))
        if kk:
            stamp(a, 12)
        for mt in range(4):
            c = v(C + 4 * mt, 4)
            a("v_mfma_f32_16x16x32_bf16 %s, %s, %s, %s" % (c, v(WF + 16 * kk + 4 * mt, 4), v(16 + 4 * kk, 4), "0" if kk == 0 else c))
    a("""
    v_max_u32 v36, v16, v20
    v_cmp_eq_u32 vcc, -1, v36
    s_cmp_eq_u64 vcc, 0
    """)
    poll_tail(a, "L_poll_h2")
    a("s_mov_b64 exec, 1")
    a("buffer_store_dwordx4 v[32:35], off, s[12:15], s52 sc1")
    a("s_mov_b32 exec_lo, 0x00030003")
    a("s_mov_b32 exec_hi, 0x00030003")
    for mt in range(4):
        a("ds_write_b128 v13, %s offset:%d" % (v(C + 4 * mt, 4), 128 * mt))
    a("s_mov_b64 exec, -1")
    a("s_waitcnt lgkmcnt(0)")
    a("s_barrier")
    a("""
    ds_read2st64_b32 v[16:17], v14 offset0:0 offset1:2
    ds_read2st64_b32 v[18:19], v14 offset0:4 offset1:6
    ds_read2st64_b32 v[20:21], v14 offset0:8 offset1:10
    ds_read2st64_b32 v[22:23], v14 offset0:12 offset1:14
    ds_read2st64_b32 v[24:25], v14 offset0:1 offset1:3
    ds_read2st64_b32 v[26:27], v14 offset0:5 offset1:7
    ds_read2st64_b32 v[28:29], v14 offset0:9 offset1:11
    ds_read2st64_b32 v[30:31], v14 offset0:13 offset1:15
    s_waitcnt lgkmcnt(4)
    v_pk_add_f32 v[16:17], v[16:17], v[18:19]
    v_pk_add_f32 v[20:21], v[20:21], v[22:23]
    v_pk_add_f32 v[16:17], v[16:17], v[20:21]
    v_add_f32 v16, v16, v17
    """)
    a("v_mul_f32 v17, %s, v16" % f32(-LOG2E))
    a("""
    v_exp_f32 v17, v17
    s_waitcnt lgkmcnt(0)
    v_pk_add_f32 v[24:25], v[24:25], v[26:27]
    v_add_f32 v17, 1.0, v17
    v_pk_add_f32 v[28:29], v[28:29], v[30:31]
    v_rcp_f32 v17, v17
    v_pk_add_f32 v[24:25], v[24:25], v[28:29]
    v_add_f32 v24, v24, v25
    v_mul_f32 v16, v16, v17
    v_mul_f32 v16, v16, v24
    v_mov_b32_dpp v17, v16 row_ror:14 row_mask:0xf bank_mask:0xf
    v_cvt_pk_bf16_f32 v20, v16, v17
    v_mov_b32_dpp v21, v20 row_ror:12 row_mask:0xf bank_mask:0xf
    v_mov_b32_dpp v22, v20 row_ror:8 row_mask:0xf bank_mask:0xf
    v_mov_b32_dpp v23, v20 row_ror:4 row_mask:0xf bank_mask:0xf
    """)
    for t in range(4):
        a("v_mfma_f32_16x16x32_bf16 %s, v[20:23], %s, 0" % (v(C + 4 * t, 4), v(WD + 4 * t, 4)))
    a("""
    s_mov_b64 exec, 0xffff
    v_mov_b32 v50, v52
    v_mov_b32 v51, v53
    buffer_store_dwordx4 v[48:51], v15, s[12:15], s46 offen sc1
    v_mov_b32 v58, v60
    v_mov_b32 v59, v61
    buffer_store_dwordx4 v[56:59], v15, s[12:15], s46 offen offset:256 sc1
    s_mov_b64 exec, -1
    """)
    stamp(a, 9)
    a.label("L_done", reset=True)
    stamp_end(a)
    a.label("L_end")
    a("s_endpgm")
    desc = """.section .rodata,"a"
.p2align 6
.amdhsa_kernel %s
  .amdhsa_next_free_vgpr 256
  .amdhsa_next_free_sgpr 102
  .amdhsa_accum_offset 256
  .amdhsa_group_segment_fixed_size 0
  .amdhsa_kernarg_size 120
  .amdhsa_user_sgpr_count 2
  .amdhsa_user_sgpr_kernarg_segment_ptr 1
  .amdhsa_system_sgpr_workgroup_id_x 1
.end_amdhsa_kernel
""" % KN
    return HEADER + "; @launch grid=(256,1,1) block=(512,1,1) lds=%d\n" % LDS_TOTAL + a.text() + desc


if __name__ == "__main__":
    out = sys.argv[1] if len(sys.argv) > 1 and sys.argv[1].endswith(".s") else "v13.s"
    open(out, "w").write(build())
    print("wrote", out)
```

```python
import sys, struct
from asmlib import Asm, Ins, v, s

NAME = "adaLN_cond__spectral_fnet__moe_arch_mod__prompt"
KN = NAME + "_kernel"
HEADER = open("cdna_kernels/%s.s.ref" % NAME).read().split("; Override launch geometry")[0]


def opt(name, default):
    for x in sys.argv:
        if x.startswith("--%s=" % name):
            return int(x.split("=")[1], 0)
    return default


STAMPS = "--stamps" in sys.argv
PROBE = opt("probe", -1)
KSH = opt("ksh", 6)
FSH = opt("fsh", 8)
HELP = opt("help", 1)
POIS = opt("pois", 0)
OUTF = ("", " sc1", " nt", " sc0 sc1", " sc1 nt")[opt("outf", 1)]
EARLYH = opt("earlyh", 1)
MODFIRST = opt("modfirst", 2)
MH = opt("mh", 9)
PLATE = opt("plate", 0)
OUTL = opt("outl", 0)
FINE = opt("fine", 0)
PROG = opt("prog", 0)
TMIN = opt("tmin", -1)
PFFN = opt("pffn", 0)
FIN = opt("fin", 0)
HF = opt("hf", 1)
LO = opt("lo", 1)
ADEL = opt("adel", 1)
BT = opt("bt", 8)
SENT = opt("sent", 0)
FDEL = opt("fdel", 0)
SW = opt("sw", 4)
PRE = opt("pre", 3)
CPOS = opt("cpos", 0)
CPF = opt("cpf", 0)
TOUCH = opt("touch", 1)

WS_MOD = 0x0
WS_GEN = 0x3000
WS_SEL = 0x3400
WS_PRE = 0x3800
WS_FLAG = 0x8000
WS_KEYS = 0x40000
WS_PART = 0x80000
WS_CAND = 0x100000
WS_INTER = 0x200000
WS_SIZE = 0x400000
WS_STAMP = 0x600000
if STAMPS:
    WS_SIZE = 0x800000
EPS = 1e-5
TAGC = 0x9E3779B9
SPIN = 1 << 15
OOB = 0x7fff0000
PITCH = 288
XWG = 120

LDS_U = 20480
LDS_SCR = LDS_U + 20480
LDS_VEC = LDS_SCR + 20480
LDS_KEY = LDS_VEC + 7 * 2560
LDS_RED = 98304
LDS_KEY2 = LDS_RED + 4096
LDS_TOTAL = LDS_KEY2 + 64

FR, FI, TC, TS, G, SA = 200, 204, 208, 216, 224, 240
VQ4, VTAG, VL16 = 248, 249, 250
LOG2E = 1.4426950408889634


def f32(x):
    return "0x%08x" % struct.unpack("<I", struct.pack("<f", x))[0]


def srd(a, base, nbytes):
    a("s_mov_b32 %s, 0x%x" % (s(base + 2), nbytes))
    a("s_mov_b32 %s, 0x20000" % s(base + 3))


NST = 14


def stamp(a, i):
    if PROBE >= 0 and i == 0:
        a("s_memrealtime s[96:97]")
    if PROBE == i:
        a("s_memrealtime s[92:93]")
    if not STAMPS:
        return
    if i == 0:
        a("s_memrealtime s[96:97]")
        for k in range(1, NST):
            a("s_mov_b32 %s, 0" % s(64 + 2 * k))
    a("s_memtime %s" % s(64 + 2 * i, 2))


def stamp_end(a):
    if not STAMPS:
        return
    a("s_waitcnt vmcnt(0)")
    a("s_memtime %s" % s(64 + 2 * (NST - 1), 2))
    a("s_memrealtime s[98:99]")
    a("s_mov_b64 exec, 1")
    a("s_lshl_b32 s93, s2, 3")
    a("s_add_u32 s93, s93, s5")
    a("s_lshl_b32 s93, s93, 6")
    a("s_add_u32 s93, s93, 0x%x" % WS_STAMP)
    a("s_waitcnt lgkmcnt(0)")
    a("v_mov_b32 v16, s96")
    a("v_mov_b32 v17, s98")
    for k in range(NST):
        a("v_mov_b32 %s, %s" % (v(18 + k), s(64 + 2 * k)))
    for k in range(4):
        a("buffer_store_dwordx4 %s, off, s[12:15], s93 offset:%d" % (v(16 + 4 * k, 4), 16 * k))


ROR = ["row_ror:%d row_mask:0xf bank_mask:0xf" % r for r in (8, 4, 2, 1)]
BC = ["row_bcast:15 row_mask:0xa bank_mask:0xf", "row_bcast:31 row_mask:0xc bank_mask:0xf"]


def dpp_sum(a, regs_, mods):
    for mod in mods:
        for r in regs_:
            a("v_add_f32_dpp %s, %s, %s %s" % (v(r), v(r), v(r), mod))


def poll_tail(a, label, cnt="s54"):
    a("s_cbranch_scc1 %s_ok" % label)
    a("s_sub_u32 %s, %s, 1" % (cnt, cnt))
    a("s_cbranch_scc0 %s" % label)
    a.label(label + "_ok")


def setup(a):
    a.label("L_setup", reset=True)
    a("""
    s_lshr_b32 s60, s59, 5
    s_lshl3_add_u32 s60, s60, s3
    s_and_b32 s60, s60, 31
    s_bfe_u32 s61, s59, 0x20003
    s_lshl_b32 s61, s61, 9
    s_add_u32 s61, s61, s60
    s_sub_u32 s94, s61, 992
    s_cmp_ge_u32 s61, 1024
    s_cselect_b32 s94, s94, s61
    s_mov_b32 s95, 0xffff0000
    s_cselect_b32 s95, s95, 0x0000ffff
    s_cmp_eq_u32 s60, 0
    s_cselect_b32 s61, s94, s61
    s_cselect_b32 s95, s95, -1
    """)
    a("s_cselect_b32 s94, 0, %s" % f32(-0.25))
    a("""
    s_cmp_eq_u32 s59, 128
    s_cselect_b32 s61, 1024, s61
    v_lshrrev_b32 v160, 1, v1
    v_lshlrev_b32 v160, 6, v160
    v_add_u32 v160, s61, v160
    v_cvt_f32_u32 v160, v160
    v_and_b32 v161, 1, v1
    v_cvt_f32_u32 v161, v161
    """)
    a("v_mul_f32 v160, %s, v160" % f32(1 / 2048))
    a("v_mul_f32 v161, %s, v161" % f32(0.25))
    a("v_mul_f32 v162, %s, v160" % f32(0.25))
    a("v_fmac_f32 v161, v162, %s" % v(VQ4))
    a("v_mul_f32 v160, 4.0, v160")
    for ks in range(2):
        for r in range(4):
            if r or ks:
                a("v_add_f32 v161, v161, v160")
            a("v_add_f32 v162, s94, v161")
            a("v_cos_f32 v163, v161")
            a("v_cos_f32 v162, v162")
            if ks or r:
                k = SA + 4 * ks + r - 1
                a("v_and_b32 %s, s95, %s" % (v(k), v(k)))
            a("v_cvt_pk_bf16_f32 %s, v163, v162" % v(SA + 4 * ks + r))
    a("v_and_b32 %s, s95, %s" % (v(SA + 7), v(SA + 7)))
    t = [v(160 + i) for i in range(15)]
    a("v_cvt_f32_u32 %s, v1" % t[0])
    a("v_mul_f32 %s, %s, %s" % (t[0], f32(1 / 512), t[0]))
    a("v_mul_f32 %s, %s, %s" % (t[1], t[0], v(VQ4)))
    a("v_mul_f32 %s, %s, %s" % (t[2], f32(16.0), t[0]))
    for j in range(4):
        if j:
            a("v_add_f32 %s, %s, %s" % (t[1], t[1], t[0]))
        a("v_mul_f32 %s, %s, %s" % (t[3], f32(32.0), t[1]))
        a("v_mul_f32 %s, %s, %s" % (t[4], f32(16.0), t[1]))
        a("v_add_f32 %s, %s, %s" % (t[5], t[1], t[2]))
        a("v_cos_f32 %s, %s" % (v(TC + j), t[1]))
        a("v_sin_f32 %s, %s" % (v(TS + j), t[1]))
        a("v_cos_f32 %s, %s" % (t[6], t[3]))
        a("v_sin_f32 %s, %s" % (t[3], t[3]))
        a("v_cos_f32 %s, %s" % (v(TC + 4 + j), t[5]))
        a("v_sin_f32 %s, %s" % (v(TS + 4 + j), t[5]))
        a("v_cos_f32 %s, %s" % (t[7 + j], t[4]))
        a("v_sin_f32 %s, %s" % (t[11 + j], t[4]))
        a("v_cvt_pk_bf16_f32 %s, %s, %s" % (v(FR + j), t[6], t[3]))
        a("v_cvt_pk_bf16_f32 %s, -%s, %s" % (v(FI + j), t[3], t[6]))
    for j in range(4):
        a("v_cvt_pk_bf16_f32 %s, %s, %s" % (v(G + j), t[7 + 2 * j], t[8 + 2 * j]))
    a("v_lshlrev_b32 %s, 31, v1" % t[3])
    a("v_lshrrev_b32 %s, 16, %s" % (t[4], t[3]))
    a("v_or_b32 %s, %s, %s" % (t[3], t[3], t[4]))
    for j in range(4):
        a("v_xor_b32 %s, s63, %s" % (v(G + 4 + j), v(G + j)))
        a("v_xor_b32 %s, %s, %s" % (v(G + 8 + j), t[3], v(G + j)))
        a("v_xor_b32 %s, s63, %s" % (v(G + 12 + j), v(G + 8 + j)))
    a("s_waitcnt lgkmcnt(0)")
    a("s_setpc_b64 s[100:101]")


def touch(a, half, dst, first):
    if first:
        a("""
        v_bfe_u32 v4, v0, 3, 3
        v_and_b32 v5, 7, v0
        v_lshlrev_b32 v5, 6, v5
        s_mov_b32 s34, 0x1c0000
        s_mov_b32 s35, 0x20000
        """)
    a("""
    s_and_b32 s46, s44, 31
    s_mul_i32 s48, s3, 448
    s_mul_i32 s49, s46, 57344
    s_add_u32 s48, s48, s49
    s_lshl_b32 s49, s3, 5
    s_add_u32 s49, s49, s46
    s_mul_i32 s49, s49, 7168
    """)
    if half:
        a("s_add_u32 s48, s48, 28672")
        a("s_add_u32 s49, s49, 512")
    a("""
    s_cmp_lt_u32 s44, 32
    s_cselect_b64 s[32:33], s[18:19], s[20:21]
    s_movk_i32 s50, 3584
    s_cmp_ge_u32 s44, 64
    s_cselect_b64 s[32:33], s[22:23], s[32:33]
    s_cselect_b32 s50, 1024, s50
    s_cselect_b32 s48, s49, s48
    v_mad_u32_u24 v6, v4, s50, v5
    """)
    a("buffer_load_dword %s, v6, s[32:35], s48 offen" % v(dst))


def probe_spin(a):
    a("s_waitcnt vmcnt(0)")
    a("s_memrealtime s[98:99]")
    a("s_waitcnt lgkmcnt(0)")
    a("s_sub_u32 s94, %s, s96" % ("s98" if PROBE == 13 else "s92"))
    if TMIN >= 0:
        a("s_max_u32 s94, s94, %d" % TMIN)
        a("s_sub_u32 s94, s94, %d" % TMIN)
        a("s_mul_i32 s94, s94, 2622")
        a("s_lshr_b32 s94, s94, 16")
        a("s_min_u32 s95, s94, 12")
        a("s_movk_i32 s94, 2400")
        a.label("L_lvl")
        a("s_sub_u32 s95, s95, 1")
        a("s_cbranch_scc1 L_lvl_done")
        a("s_mul_i32 s94, s94, 11")
        a("s_lshr_b32 s94, s94, 3")
        a("s_branch L_lvl")
        a.label("L_lvl_done")
        a("s_sub_u32 s94, s94, 2200")
    else:
        a("s_mul_i32 s94, s94, 2")
        a("s_min_u32 s94, s94, 8000")
    a.label("L_probe")
    a("s_memrealtime s[96:97]")
    a("s_waitcnt lgkmcnt(0)")
    a("s_sub_u32 s95, s96, s98")
    a("s_cmp_lt_u32 s95, s94")
    a("s_cbranch_scc1 L_probe")


def get_tag(a):
    a("s_waitcnt lgkmcnt(0)")
    a("s_add_u32 s47, s47, 0x%x               ; hand-off tag of this launch" % TAGC)
    a("v_mov_b32 %s, s47" % v(VTAG))


def flag_store(a, wave=0):
    a("s_lshl_b32 s53, s2, %d" % FSH)
    a("s_add_u32 s53, s53, 0x%x" % WS_FLAG)
    a("s_cmp_eq_u32 s5, %d" % wave)
    a("s_cselect_b32 s53, s53, 0x%x" % OOB)
    a("s_mov_b64 exec, 1")
    a("buffer_store_dword %s, off, s[12:15], s53 sc1" % v(VTAG))
    a("s_mov_b64 exec, -1")


def build():
    a = Asm()
    a.raw('.amdgcn_target "amdgcn-amd-amdhsa--gfx950"')
    a.raw(".text")
    a.raw(".globl %s" % KN)
    a.raw(".p2align 8")
    a.raw(".type %s,@function" % KN)
    a.label(KN, reset=True)
    a("s_cmp_ge_u32 s2, 256")
    a("s_cbranch_scc1 L_end")
    stamp(a, 0)
    a("s_load_dwordx2 s[8:9], s[0:1], 0")
    a("s_load_dwordx2 s[12:13], s[0:1], 112")
    a("s_load_dwordx16 s[16:31], s[0:1], 48")
    if CPF:
        a("s_getpc_b64 s[60:61]")
        a.label("L_cpf_pc")
        a("v_lshlrev_b32 v192, %d, v0" % (7 if CPF == 1 else 6))
        a("v_cmp_gt_u32 vcc, L_end-L_cpf_pc, v192")
        a("v_mov_b32 v193, 0")
        a("v_lshl_add_u64 v[192:193], v[192:193], 0, s[60:61]")
        a("s_and_saveexec_b64 s[60:61], vcc")
        a("s_cbranch_execz L_cpf")
        n = len(a.vm)
        a("global_load_dword v198, v[192:193], off")
        del a.vm[n:]
        a.label("L_cpf")
        a("s_mov_b64 exec, -1")
    a("""
    v_lshrrev_b32 v3, 6, v0               ; wave
    v_and_b32 v1, 15, v0                  ; n
    v_bfe_u32 v2, v0, 4, 2                ; q
    v_readfirstlane_b32 s5, v3
    s_and_b32 s3, s2, 7                   ; x
    s_lshr_b32 s4, s2, 3                  ; y
    v_and_b32 v250, 63, v0
    v_lshlrev_b32 v250, 4, v250           ; lane*16
    v_mov_b32 v252, -1
    v_mov_b32 v253, -1
    v_mov_b32 v254, -1
    v_mov_b32 v255, -1
    s_mov_b32 s63, 0x80000000
    """)
    a("v_cvt_f32_u32 %s, v2" % v(VQ4))
    srd(a, 8, 2048 * 1024)
    srd(a, 12, WS_SIZE)
    a("v_mul_f32 %s, 4.0, %s" % (v(VQ4), v(VQ4)))
    a("s_lshl_b32 s62, s5, 10")
    a("s_cmp_ge_u32 s4, 16")
    st0 = a.fork()
    a("s_cbranch_scc1 L_notdft")
    a("""
    s_movk_i32 s59, 128
    s_lshr_b32 s6, s4, 2
    s_lshl3_add_u32 s6, s6, s3            ; s2 index
    s_and_b32 s7, s4, 3
    v_lshlrev_b32 v5, 4, v1
    """)

    def store_addr():
        a("""
        v_and_b32 v8, 3, v3                   ; M tile
        v_lshlrev_b32 v13, 1, v2
        v_lshl_add_u32 v13, v8, 3, v13
        v_lshl_add_u32 v13, v13, 16, v5
        s_lshl_b32 s54, s6, 11
        s_lshl_b32 s55, s7, 9
        s_add_u32 s54, s54, s55
        """)
        a("s_add_u32 s54, s54, 0x%x" % WS_INTER)
        a("s_add_u32 s55, s54, 0x10000")
    a("s_lshl_b32 s44, s6, 10")
    for g in range(4):
        a("s_add_u32 s46, s7, %d" % g)
        a("s_and_b32 s46, s46, 3")
        a("s_lshl_b32 s46, s46, 8")
        a("s_add_u32 %s, s46, s44" % s(48 + g))
    a("""
    s_lshl1_add_u32 s46, s7, s5
    s_and_b32 s46, s46, 7
    s_lshl_b32 s46, s46, 3
    v_add_u32 v4, s46, v2
    v_lshl_or_b32 v6, v4, 15, v5
    v_add_u32 v7, 0x20000, v6
    s_waitcnt lgkmcnt(0)
    """)
    stamp(a, 1)
    X = 16
    for i in range(4):
        for g in range(2):
            a("buffer_load_dwordx4 %s, %s, s[8:11], %s offen" % (v(X + 16 * g + 4 * i, 4), v(6 + g), s(48 + i)))
    a("s_load_dword s47, s[12:13], 0x%x" % WS_GEN)
    a("s_branch L_dft")
    mark = len(a.lines)
    a.label("L_dft")
    store_addr()
    a("v_lshrrev_b32 v12, 8, v0")
    a("v_lshl_add_u32 v13, v12, 8, v13")
    if POIS == 4:
        a("s_barrier")
    if POIS < 5:
        a("buffer_store_dwordx4 v[252:255], v13, s[12:15], s54 offen sc1")
        a("buffer_store_dwordx4 v[252:255], v13, s[12:15], s55 offen sc1")
    WA = 48
    a("""
    v_lshrrev_b32 v9, 1, v1
    v_lshl_add_u32 v9, v8, 3, v9          ; slot
    v_and_b32 v10, 1, v1
    v_lshl_or_b32 v11, v9, 1, v10
    v_cmp_eq_u32 vcc, 1, v11
    v_cvt_f32_u32 v10, v10
    v_lshlrev_b32 v15, 31, v9
    v_cndmask_b32 v11, v9, 32, vcc
    """)
    a("v_mul_f32 v10, %s, v10" % f32(0.25))
    a("v_cvt_f32_u32 v11, v11")
    a("v_cndmask_b32 v10, v10, 0, vcc")
    a("v_mul_f32 v11, %s, v11" % f32(1 / 64))
    a("v_fmac_f32 v10, v11, %s" % v(VQ4))
    a("v_lshrrev_b32 v14, 16, v15")
    a("v_or_b32 v15, v15, v14")
    T = 56
    a("v_cos_f32 %s, v10" % v(T))
    for j in range(1, 8):
        a("v_add_f32 v10, v10, v11" if j != 4 else "v_fmac_f32 v10, %s, v11" % f32(13.0))
        a("v_cos_f32 %s, v10" % v(T + j))
    for j in range(4):
        a("v_cvt_pk_bf16_f32 %s, %s, %s" % (v(WA + j), v(T + 2 * j), v(T + 2 * j + 1)))
    for j in range(4):
        a("v_xor_b32 %s, v15, %s" % (v(WA + 4 + j), v(WA + j)))
    a("""
    v_mul_u32_u24 v10, 288, v4
    v_add_u32 v10, v10, v5
    v_bfe_u32 v11, v0, 2, 4
    v_mul_u32_u24 v11, 288, v11
    v_and_b32 v14, 3, v0
    v_lshl_add_u32 v11, v14, 3, v11
    v_lshl_add_u32 v11, v12, 7, v11
    s_mov_b32 s52, 0x3f803f80
    v_mov_b32 v56, 0
    v_mov_b32 v57, 0
    v_mov_b32 v58, 0
    v_mov_b32 v59, 0
    """)
    stamp(a, 2)
    U = 64
    for i in range(4):
        for g in range(2):
            a.wait_vm_for(v(X + 16 * g + 4 * i, 4))
            if i == 0 and g == 0:
                stamp(a, 3)
            for d in range(4):
                x = v(X + 16 * g + 4 * i + d)
                a("v_dot2c_f32_bf16 %s, s52, %s" % (v(56 + g), x))
                a("v_dot2c_f32_bf16 %s, %s, %s" % (v(58 + g), x, x))
            if i == 0:
                for d in range(4):
                    a("v_lshlrev_b32 %s, 16, %s" % (v(U + 8 * g + 2 * d), v(X + 16 * g + d)))
                    a("v_and_b32 %s, 0xffff0000, %s" % (v(U + 8 * g + 2 * d + 1), v(X + 16 * g + d)))
    stamp(a, 4)
    dpp_sum(a, [56, 57, 58, 59], ROR)
    for g in range(2):
        a("v_mul_f32 %s, %s, %s" % (v(56 + g), f32(1 / 512), v(56 + g)))
    for g in range(2):
        a("v_mul_f32 %s, %s, %s" % (v(60 + 2 * g), v(56 + g), v(56 + g)))
    for g in range(2):
        a("v_sub_f32 %s, %s, %s" % (v(60 + 2 * g), f32(EPS), v(60 + 2 * g)))
    for g in range(2):
        a("v_fmac_f32 %s, %s, %s" % (v(60 + 2 * g), f32(1 / 512), v(58 + g)))
    for g in range(2):
        a("v_rsq_f32 %s, %s" % (v(60 + 2 * g), v(60 + 2 * g)))
    for g in range(2):
        a("v_mul_f32 %s, %s, %s" % (v(61 + 2 * g), v(56 + g), v(60 + 2 * g)))
    for g in range(2):
        p = v(60 + 2 * g, 2)
        for d in range(4):
            u = v(U + 8 * g + 2 * d, 2)
            a("v_pk_fma_f32 %s, %s, %s, %s op_sel:[0,0,1] op_sel_hi:[1,0,1] neg_lo:[0,0,1] neg_hi:[0,0,1]" % (u, u, p, p))
        for d in range(4):
            a("v_cvt_pk_bf16_f32 %s, %s, %s" % (v(X + 16 * g + d), v(U + 8 * g + 2 * d), v(U + 8 * g + 2 * d + 1)))
        a("ds_write_b128 v10, %s offset:%d" % (v(X + 16 * g, 4), 4 * PITCH * g))
    if HF:
        a("s_lshl_b32 s53, s2, %d" % FSH)
        a("s_add_u32 s53, s53, 0x%x" % WS_FLAG)
    a("s_waitcnt vmcnt(0)")
    get_tag(a)
    if HF:
        a("s_cmp_lg_u32 s5, 7")
    a("s_barrier")
    stamp(a, 5)
    if HF:
        a("s_cbranch_scc1 L_nohint")
        a("s_mov_b64 exec, 1")
        a("buffer_store_dword %s, off, s[12:15], s53 sc1" % v(VTAG))
        a("s_mov_b64 exec, -1")
        a.label("L_nohint")
    B = 64
    for ks in range(2):
        for i in range(4):
            for hf in range(2):
                a("ds_read_b64_tr_b16 %s, v11 offset:%d" % (v(B + 16 * ks + 4 * i + 2 * hf, 2), ks * 32 * PITCH + hf * 16 * PITCH + i * 32))
    if not HF:
        flag_store(a)
    ACC = 96
    for ks in range(2):
        for i in range(4):
            a.wait_lg_for(v(B + 16 * ks + 4 * i, 4))
            acc = v(ACC + 4 * i, 4)
            a("v_mfma_f32_16x16x32_bf16 %s, %s, %s, %s" % (acc, v(WA + 4 * ks, 4), v(B + 16 * ks + 4 * i, 4), "0" if ks == 0 else acc))
    O = 16
    for i in range(4):
        for p in range(2):
            a("v_cvt_pk_bf16_f32 %s, %s, %s" % (v(O + 4 * p + i), v(ACC + 4 * i + 2 * p), v(ACC + 4 * i + 2 * p + 1)))
    for p in range(2):
        a("buffer_store_dwordx4 %s, v13, s[12:15], %s offen sc1" % (v(O + 4 * p, 4), s(54 + p)))
    stamp(a, 6)
    a("s_cmp_lg_u32 s2, %d" % XWG)
    a("s_cbranch_scc1 L_notx")
    a("s_call_b64 s[100:101], L_setup")
    a("s_branch L_p2")
    a.label("L_notx")
    if ADEL == 1:
        a("s_waitcnt vmcnt(0)")
    a("s_cmp_lt_u32 s4, 7")
    a("s_cbranch_scc1 L_ffn")
    if ADEL == 2:
        a("s_waitcnt vmcnt(0)")
    a("s_sub_u32 s44, s4, 7")
    a("s_lshl3_add_u32 s44, s44, s5")
    for k in range(2):
        touch(a, 1, 196 + k, k == 0)
        if k == 0:
            a("s_add_u32 s44, s44, 64")
            a("s_cmp_ge_u32 s44, 96")
            a("s_cbranch_scc1 L_done")
    a("s_branch L_done")
    dft_block = a.lines[mark:]
    del a.lines[mark:]
    a.label("L_notdft")
    a.join(st0)
    a("s_sub_u32 s59, s2, 128")
    srd(a, 36, 512 * 6144)
    a("s_cmp_ge_u32 s4, 22")
    st1 = a.fork()
    a("s_cbranch_scc1 L_notmod")
    srd(a, 32, 1024)
    a("""
    s_sub_u32 s6, s2, 128
    s_lshl_b32 s48, s6, 7
    """)
    for i in range(1, 8):
        a("s_add_u32 %s, s48, %d" % (s(48 + i), 6144 * i))
    a("""
    v_lshrrev_b32 v4, 3, v0
    v_and_b32 v5, 7, v0
    v_mul_u32_u24 v6, 0xc000, v4
    v_lshl_add_u32 v6, v5, 4, v6
    v_and_b32 v7, 3, v0
    v_lshlrev_b32 v7, 2, v7
    v_lshl_add_u32 v7, v4, 4, v7
    s_waitcnt lgkmcnt(0)
    s_mov_b64 s[36:37], s[26:27]
    s_mov_b64 s[32:33], s[24:25]
    """)
    stamp(a, 1)
    a("buffer_load_dword v8, v7, s[32:35], 0 offen")
    W = 16
    for i in range(8):
        a("buffer_load_dwordx4 %s, v6, s[36:39], %s offen" % (v(W + 4 * i, 4), s(48 + i)))
    a("s_load_dword s47, s[12:13], 0x%x" % WS_GEN)
    if MODFIRST == 2:
        a("s_cmp_lt_u32 s5, 4")
        a("s_cbranch_scc1 L_mod")
    if MODFIRST != 1:
        a("s_call_b64 s[100:101], L_setup")
    a("s_branch L_mod")
    mark = len(a.lines)
    a.label("L_mod")
    a("""
    s_mov_b32 s44, 0x05040100
    s_mov_b32 s46, 0x07060302
    s_lshr_b32 s48, s6, 3
    s_cmp_eq_u32 s48, 1
    s_cselect_b32 s50, 1.0, 0
    s_cmp_eq_u32 s48, 4
    s_cselect_b32 s50, 1.0, s50
    v_lshlrev_b32 v6, 1, v2
    v_lshl_add_u32 v6, v5, 3, v6
    v_and_b32 v7, 15, v6
    v_lshrrev_b32 v9, 4, v6
    v_lshl_add_u32 v10, v7, 2, v9
    v_and_b32 v7, 3, v6
    v_lshl_add_u32 v7, v9, 2, v7
    v_bfe_u32 v9, v6, 2, 2
    v_lshl_add_u32 v7, v9, 4, v7
    v_lshlrev_b32 v9, 8, v3
    v_lshl_add_u32 v10, v10, 2, v9
    v_lshl_add_u32 v7, v7, 2, v9
    s_lshl_b32 s58, s6, 8
    """)
    for j in range(8):
        a("v_mov_b32 %s, 0" % v(48 + j))
    stamp(a, 2)
    a.wait_vm_for("v8")
    get_tag(a)
    stamp(a, 3)
    a("v_lshlrev_b32 v11, 16, v8")
    a("v_and_b32 v12, 0xffff0000, v8")
    a("v_mul_f32 v13, %s, v11" % f32(-LOG2E))
    a("v_mul_f32 v14, %s, v12" % f32(-LOG2E))
    a("""
    v_exp_f32 v13, v13
    v_exp_f32 v14, v14
    v_add_f32 v13, 1.0, v13
    v_add_f32 v14, 1.0, v14
    v_rcp_f32 v13, v13
    v_rcp_f32 v14, v14
    v_mul_f32 v11, v11, v13
    v_mul_f32 v12, v12, v14
    v_cvt_pk_bf16_f32 v8, v11, v12
    """)
    for p in range(4):
        a("v_mov_b32_dpp %s, v8 quad_perm:[%d,%d,%d,%d] row_mask:0xf bank_mask:0xf" % (v(12 + p), p, p, p, p))
    for p in range(4):
        a.wait_vm_for(v(W + 8 * p, 8))
        for jj in range(4):
            a("v_perm_b32 %s, %s, %s, s44" % (v(56 + 2 * jj), v(W + 8 * p + 4 + jj), v(W + 8 * p + jj)))
            a("v_perm_b32 %s, %s, %s, s46" % (v(57 + 2 * jj), v(W + 8 * p + 4 + jj), v(W + 8 * p + jj)))
        for j in range(8):
            a("v_dot2c_f32_bf16 %s, %s, %s" % (v(48 + j), v(12 + p), v(56 + j)))
    stamp(a, 4)
    if MH == 0:
        flag_store(a, 7)
    for j in range(4):
        a("v_permlane32_swap_b32 %s, %s" % (v(48 + j), v(52 + j)))
    for j in range(4):
        a("v_add_f32 %s, %s, %s" % (v(48 + j), v(48 + j), v(52 + j)))
    for j in range(2):
        a("v_permlane16_swap_b32 %s, %s" % (v(48 + j), v(50 + j)))
    for j in range(2):
        a("v_add_f32 %s, %s, %s" % (v(48 + j), v(48 + j), v(50 + j)))
    dpp_sum(a, [48, 49], ROR[:1])
    a("""
    s_mov_b32 exec_lo, 0x00ff00ff
    s_mov_b32 exec_hi, 0x00ff00ff
    s_cmp_lt_u32 s6, 16
    s_cbranch_scc1 L_mod_w4
    ds_write_b64 v7, v[48:49]
    s_branch L_mod_w
    """)
    a.label("L_mod_w4")
    a("ds_write2_b32 v10, v48, v49 offset0:0 offset1:4")
    a.label("L_mod_w")
    a("s_mov_b64 exec, -1")
    if MODFIRST == 2:
        a("s_cmp_ge_u32 s5, 4")
        a("s_cbranch_scc1 L_mod_b")
        a("s_call_b64 s[100:101], L_setup")
        a.label("L_mod_b")
    a("""
    s_waitcnt lgkmcnt(0)
    s_barrier
    """)
    if MH == 1:
        flag_store(a, 1)
    stamp(a, 5)
    a("""
    s_cmp_lg_u32 s5, 0
    s_cbranch_scc1 L_mod_end
    s_mov_b64 exec, 0xffff
    """)
    for k in range(8):
        a("ds_read_b128 %s, v250 offset:%d" % (v(16 + 4 * k, 4), 256 * k))
    a("v_mov_b32 v49, v249")
    a("v_mov_b32 v51, v249")
    for k in range(0, 8, 2):
        a.wait_lg_for(v(16 + 4 * k, 8))
        a("v_pk_add_f32 %s, %s, %s" % (v(16 + 4 * k, 2), v(16 + 4 * k, 2), v(20 + 4 * k, 2)))
        a("v_pk_add_f32 %s, %s, %s" % (v(18 + 4 * k, 2), v(18 + 4 * k, 2), v(22 + 4 * k, 2)))
    a("""
    v_pk_add_f32 v[16:17], v[16:17], v[24:25]
    v_pk_add_f32 v[18:19], v[18:19], v[26:27]
    v_pk_add_f32 v[32:33], v[32:33], v[40:41]
    v_pk_add_f32 v[34:35], v[34:35], v[42:43]
    v_pk_add_f32 v[16:17], v[16:17], v[32:33]
    v_pk_add_f32 v[18:19], v[18:19], v[34:35]
    v_cvt_pk_bf16_f32 v48, v16, v17
    v_cvt_pk_bf16_f32 v50, v18, v19
    s_cmp_eq_u32 s50, 0
    s_cbranch_scc1 L_mod_st
    v_lshlrev_b32 v16, 16, v48
    v_and_b32 v17, 0xffff0000, v48
    v_lshlrev_b32 v18, 16, v50
    v_and_b32 v19, 0xffff0000, v50
    v_pk_add_f32 v[16:17], v[16:17], 1.0 op_sel_hi:[1,0]
    v_pk_add_f32 v[18:19], v[18:19], 1.0 op_sel_hi:[1,0]
    v_cvt_pk_bf16_f32 v48, v16, v17
    v_cvt_pk_bf16_f32 v50, v18, v19
    """)
    a.label("L_mod_st")
    a("buffer_store_dwordx4 v[48:51], v250, s[12:15], s58 offen sc1")
    a("s_mov_b64 exec, -1")
    if MH == 2:
        flag_store(a)
    a.label("L_mod_end")
    if MODFIRST == 1:
        a("s_call_b64 s[100:101], L_setup")
    mod_block = a.lines[mark:]
    del a.lines[mark:]
    a.label("L_notmod")
    a.join(st1)
    a("""
    s_sub_u32 s58, s4, 22
    s_lshl3_add_u32 s7, s58, s5
    s_mul_i32 s7, s7, 0x6000
    s_lshl_b32 s44, s3, 7
    s_add_u32 s7, s7, s44
    s_add_u32 s7, s7, 0x120000
    s_add_u32 s44, s7, 4096
    v_mul_u32_u24 v4, 6144, v2
    v_bfe_u32 v5, v0, 3, 1
    v_lshl_add_u32 v4, v5, 10, v4
    v_and_b32 v5, 7, v0
    v_lshl_add_u32 v4, v5, 4, v4
    s_waitcnt lgkmcnt(0)
    s_mov_b64 s[36:37], s[26:27]
    """)
    if HELP == 2:
        a("s_cmp_lt_u32 s4, 29")
        a("s_cbranch_scc1 L_nohelp")
    if HELP:
        a("buffer_load_dwordx4 v[180:183], v4, s[36:39], s7 offen")
        a("buffer_load_dwordx4 v[184:187], v4, s[36:39], s7 offen offset:2048")
        a("buffer_load_dwordx4 v[188:191], v4, s[36:39], s44 offen")
    a.label("L_nohelp")
    a("s_load_dword s47, s[12:13], 0x%x" % WS_GEN)
    a("s_call_b64 s[100:101], L_setup")
    get_tag(a)
    if BT:
        a("s_cmp_ge_u32 s5, %d" % BT)
        a("s_cbranch_scc1 L_p2")
        a("s_mul_i32 s44, s58, %d" % BT)
        a("s_add_u32 s44, s44, s5")
        touch(a, 0, 195, True)
    a("s_branch L_p2")
    setup(a)
    a.lines += dft_block + mod_block
    a.label("L_p2", reset=True)
    a("""
    s_lshl_b32 s45, s59, 12
    s_add_u32 s44, s45, s62
    """)
    a("s_add_u32 s45, s45, 0x%x               ; candidate slots of this workgroup" % WS_CAND)
    a("s_add_u32 s44, s44, 0x%x" % WS_CAND)
    a("s_cmp_lt_u32 s5, 4")
    a("s_cselect_b32 s44, s44, 0x%x" % OOB)
    if CPOS == 0:
        a("buffer_store_dwordx4 v[252:255], v250, s[12:15], s44 offen sc1")
    srd(a, 28, 2048 * 1024)
    a("s_mov_b64 s[24:25], s[16:17]")
    srd(a, 24, 1024)
    a("""
    s_lshl_b32 s56, s5, 6
    s_add_u32 s56, s56, s61
    s_sub_u32 s57, 2048, s56
    s_lshl_b32 s50, s57, 10
    s_lshl_b32 s49, s56, 10
    v_lshlrev_b32 v7, 5, v1
    v_lshl_add_u32 v7, v2, 3, v7          ; 32n + 8q
    buffer_load_dwordx2 v[56:57], v7, s[8:11], s49 offen
    buffer_load_dwordx2 v[58:59], v7, s[8:11], s49 offen offset:512
    buffer_load_dwordx2 v[84:85], v7, s[8:11], s50 offen
    buffer_load_dwordx2 v[86:87], v7, s[8:11], s50 offen offset:512
    buffer_load_dwordx2 v[60:61], v7, s[24:27], 0 offen
    buffer_load_dwordx2 v[62:63], v7, s[24:27], 0 offen offset:512
    s_lshl1_add_u32 s52, s4, s5
    s_and_b32 s52, s52, 7
    s_lshl_b32 s53, s52, 8
    v_lshlrev_b32 v4, 4, v1
    v_add_u32 v4, s53, v4                 ; cb*256 + n*16
    v_lshl_add_u32 v5, v2, 11, v4
    v_add_u32 v179, 0x8000, v5
    s_lshl_b32 s40, s60, 16
    s_lshl_b32 s53, s52, 3
    """)
    a("s_add_u32 s40, s40, 0x%x" % WS_INTER)
    a("""
    s_add_u32 s41, s40, 0x2000
    s_add_u32 s42, s40, 0x4000
    s_add_u32 s43, s40, 0x6000
    v_mul_u32_u24 v8, 80, v1
    v_mul_u32_u24 v9, 5120, v2
    v_add3_u32 v9, v9, s53, v8
    v_mul_u32_u24 v12, 2560, v3
    v_lshl_add_u32 v10, v2, 4, v8
    v_or_b32 v11, s61, v2
    v_cmp_eq_u32 vcc, 0, v11
    v_mov_b32 v11, 0x45000000
    v_cndmask_b32 v11, 0, v11, vcc
    """)
    a("v_add_u32 v9, %d, v9                   ; U write address" % LDS_U)
    a("v_add_u32 v12, %d, v12                 ; scratch row of this wave" % LDS_SCR)
    a("v_sub_u32 v176, v12, v10")
    a("v_add_u32 v176, %d, v176               ; mirrored position of elements 1..3 (g = 1)" % (15 * 80 + 52))
    a("v_add_u32 v178, 1280, v176")
    a("v_add_u32 v14, v10, v12")
    a("v_add_u32 v10, %d, v14                 ; U read address" % ((LDS_U - LDS_SCR) & 0xffffffff))
    a("v_cmp_eq_u32 vcc, 0, v2")
    a("v_cndmask_b32 v177, 12, 28, vcc")
    a("v_add_u32 v177, v177, v176")
    a("v_add_u32 v196, 1280, v177")
    a("v_cmp_eq_u32 vcc, 0, v250")
    a("v_cndmask_b32 v196, v196, v12, vcc")
    a("v_add_u32 v15, v12, v250")
    a("v_add_u32 v12, v12, v7")
    a("""
    s_lshl_b32 s46, s59, 5
    s_lshl2_add_u32 s46, s5, s46
    s_mov_b32 s38, 0xffffe000
    s_mov_b32 s39, 0xffffe000
    s_cmp_eq_u32 s56, 0
    s_cselect_b32 s39, 0, s39
    s_cmp_lg_u32 s59, 128
    s_cbranch_scc1 L_live
    s_mov_b32 s39, 0
    s_cmp_eq_u32 s5, 0
    s_cselect_b32 s38, s38, 0
    """)
    a.label("L_live")
    a("s_cmp_eq_u32 s38, 0")
    a("s_cselect_b32 s49, 0x%x, s49" % OOB)
    a("s_cselect_b32 s36, 0, s46")
    a("s_add_u32 s37, s46, 2")
    a("s_cmp_eq_u32 s39, 0")
    a("s_cselect_b32 s50, 0x%x, s50" % OOB)
    a("s_cselect_b32 s37, 0, s37")
    a("s_lshl_b32 s51, s3, 7")
    a("s_add_u32 s51, s51, 0x%x" % WS_PRE)
    a("s_xor_b32 s53, s4, 31")
    a("s_or_b32 s53, s53, s5")
    a("s_cselect_b32 s51, 0x%x, s51" % OOB)
    stamp(a, 7)
    L = 16
    XU, WU, XM, GAM, PP, PM = 112, 120, 160, 168, 180, 188
    VEC = 128
    GA, SB, CB, GB = VEC, VEC + 8, VEC + 16, VEC + 24

    def inter_load(ks, r):
        a("buffer_load_dwordx4 %s, %s, s[12:15], %s offen sc1" % (v(L + 16 * ks + 4 * r, 4), "v179" if ks else "v5", s(40 + r)))

    def unpack(dst, src):
        for d in range(4):
            a("v_lshlrev_b32 %s, 16, %s" % (v(dst + 2 * d), v(src + d)))
            a("v_and_b32 %s, 0xffff0000, %s" % (v(dst + 2 * d + 1), v(src + d)))

    def mirror_write(src, a0, a123, off=0):
        a("ds_write_b32 %s, %s offset:%d" % (a0, v(src), off))
        a("ds_write_b32 %s, %s offset:%d" % (a123, v(src + 1), off + 8))
        a("ds_write_b32 %s, %s offset:%d" % (a123, v(src + 2), off + 4))
        a("ds_write_b32 %s, %s offset:%d" % (a123, v(src + 3), off))

    def mirror(dst, src):
        for b, a0, a123 in ((src, "v196", "v178"), (src + 4, "v177", "v176")):
            a("ds_write_b32 %s, %s" % (a0, v(b)))
            a("ds_write_b32 %s, %s offset:8" % (a123, v(b + 1)))
            a("ds_write2_b32 %s, %s, %s offset0:1 offset1:0" % (a123, v(b + 2), v(b + 3)))
        a("ds_read_b128 %s, v14" % v(dst, 4))
        a("ds_read_b128 %s, v14 offset:1280" % v(dst + 4, 4))

    def mod_loads():
        a("buffer_load_dwordx4 v[48:51], v4, s[12:15], 0 offen offset:%d sc1" % (WS_MOD + 2048))
        a("buffer_load_dwordx4 v[52:55], v4, s[12:15], 0 offen offset:%d sc1" % WS_MOD)
        a("buffer_load_dwordx4 v[64:67], v197, s[12:15], s55 offen sc1")

    def vec_read(reg, k):
        a("ds_read_b128 %s, v198 offset:%d" % (v(reg, 4), 2560 * k))
        a("ds_read_b128 %s, v198 offset:%d" % (v(reg + 4, 4), 2560 * k + 1280))

    def tag_check(regs_):
        a("v_xor_b32 v88, %s, v249" % v(regs_[0]))
        a("v_xor_b32 v89, %s, v249" % v(regs_[1]))
        for k, r in enumerate(regs_[2:]):
            a("v_bitop3_b32 %s, %s, %s, v249 bitop3:0xf6" % (v(88 + k % 2), v(88 + k % 2), v(r)))
        a("v_or_b32 v88, v88, v89")
        a("v_cmp_ne_u32 vcc, 0, v88")

    def widen(base, n):
        for b in range(base, base + n, 2):
            a("v_and_b32 %s, 0xffff0000, %s" % (v(b + 1), v(b)))
            a("v_lshlrev_b32 %s, 16, %s" % (v(b), v(b)))

    a("s_add_u32 s55, s62, %d" % (WS_MOD + 4096))
    a("""
    v_and_b32 v197, 3, v0
    v_lshlrev_b32 v197, 4, v197
    v_lshl_add_u32 v197, v2, 6, v197
    v_bfe_u32 v68, v0, 2, 2
    v_lshl_add_u32 v197, v68, 8, v197
    v_mul_u32_u24 v68, 80, v1
    v_lshl_add_u32 v198, v2, 4, v68
    """)
    a("v_add_u32 v198, %d, v198               ; vector read address" % LDS_VEC)
    a("""
    s_mul_i32 s53, s5, 1280
    v_add_u32 v90, s53, v198
    s_bitcmp1_b32 s5, 0
    s_cselect_b64 vcc, -1, 0
    v_cndmask_b32 v91, v196, v177, vcc
    v_cndmask_b32 v199, v178, v176, vcc
    s_lshr_b32 s53, s5, 1
    s_sub_u32 s53, s53, s5
    s_mul_i32 s53, s53, 2560
    """)
    a("s_add_u32 s53, s53, %d" % (LDS_VEC + 4 * 2560 - LDS_SCR))
    a("v_add_u32 v91, s53, v91")
    a("v_add_u32 v199, s53, v199")
    a("s_waitcnt vmcnt(0)")
    unpack(XU, 56)
    unpack(72, 84)
    unpack(WU, 60)
    mirror(XM, 72)
    a("s_bitcmp1_b32 s5, 0")
    a("s_cselect_b64 vcc, -1, 0")
    for j in range(4):
        a("v_cndmask_b32 %s, %s, %s, vcc" % (v(92 + j), v(WU + j), v(WU + 4 + j)))
    a("s_cmp_lt_u32 s5, 2")
    a("s_cselect_b64 vcc, -1, 0")
    for j in range(4):
        a("v_cndmask_b32 %s, %s, 1.0, vcc" % (v(92 + j), v(92 + j)))
    a("s_mov_b32 s54, %d" % SPIN)
    a("s_waitcnt lgkmcnt(0)")
    if PROG:
        a("""
        v_and_b32 v8, 7, v0
        v_bfe_u32 v6, v0, 3, 2
        v_lshl_add_u32 v8, v6, 5, v8
        s_lshr_b32 s52, s52, 1
        """)
        a("v_lshlrev_b32 v8, %d, v8" % FSH)
        a("s_lshl_b32 s52, s52, %d" % (FSH + 3))
        a("s_add_u32 s52, s52, 0x%x" % WS_FLAG)
        a("s_mov_b32 s32, -1")
        a("s_mov_b32 s33, 0")
        a("s_mov_b32 s48, 0")
        a.label("L_poll1")
        a("s_mov_b64 exec, s[32:33]")
        a("buffer_load_dword v6, v8, s[12:15], s52 offen sc1")
        a("s_waitcnt vmcnt(0)")
        a("v_cmp_ne_u32 vcc, v6, %s" % v(VTAG))
        a("s_mov_b64 exec, -1")
        a("""
        s_mov_b32 s32, vcc_lo
        s_lshr_b32 s34, s32, 1
        s_or_b32 s34, s34, s32
        s_lshr_b32 s35, s34, 2
        s_or_b32 s34, s34, s35
        s_or_b32 s34, s34, s48
        s_andn2_b32 s34, 0x11111111, s34
        s_cbranch_scc0 L_skip7
        s_or_b32 s48, s48, s34
        """)
        for i in range(8):
            a("s_bitcmp1_b32 s34, %d" % (4 * i))
            a("s_cbranch_scc0 L_skip%d" % i)
            inter_load(i // 4, i % 4)
            a.label("L_skip%d" % i)
        a("s_cmp_eq_u32 s32, 0")
        poll_tail(a, "L_poll1")
        stamp(a, 8)
        a("s_mov_b32 s54, %d" % SPIN)
        a("s_branch L_inter_go")
        a.vm = []
    else:
        a("s_cmp_ge_u32 s5, 2")
        a("s_cbranch_scc1 L_poll1_ok")
        a("v_lshlrev_b32 v8, %d, v0" % FSH)
        a("s_mov_b32 s52, 0x%x" % WS_FLAG)
        a.label("L_poll1")
        a("buffer_load_dword v6, v8, s[12:15], s52 offen sc1")
        a("s_waitcnt vmcnt(0)")
        a("v_cmp_ne_u32 vcc, v6, %s" % v(VTAG))
        a("s_and_b64 exec, exec, vcc")
        a("s_cmp_eq_u64 exec, 0")
        poll_tail(a, "L_poll1")
        a("s_mov_b64 exec, -1")
        a("s_mov_b32 s54, %d" % SPIN)
        a("s_barrier")
        stamp(a, 8)
    a.label("L_inter")
    for ks in range(2):
        for r in range(4):
            inter_load(ks, r)
    a.label("L_inter_go")
    mod_loads()
    ACC = 96
    for ks in range(2):
        a.wait_vm_for(v(L, 32) if PROG else v(L + 16 * ks, 16))
        if ks == 1 - PROG:
            stamp(a, 9)
        TT = 68 if ks == 0 else 16
        b = L + 16 * ks
        for i in range(4):
            for hp in range(2):
                o = i & 1
                a("v_pk_mov_b32 %s, %s, %s op_sel:[%d,%d]" % (v(TT + 4 * i + 2 * hp, 2), v(b + 8 * hp + (i & 2), 2), v(b + 8 * hp + 4 + (i & 2), 2), o, o))
        for i in range(4):
            acc = v(ACC + 4 * i, 4)
            a("v_mfma_f32_16x16x32_bf16 %s, %s, %s, %s" % (acc, v(SA + 4 * ks, 4), v(TT + 4 * i, 4), "0" if ks == 0 else acc))
    a("""
    v_max3_u32 v6, v68, v69, v70
    v_max3_u32 v8, v71, v16, v17
    v_max3_u32 v6, v6, v18, v19
    v_max_u32 v6, v6, v8
    v_cmp_eq_u32 vcc, -1, v6
    s_waitcnt vmcnt(0)
    s_cmp_eq_u64 vcc, 0
    """)
    poll_tail(a, "L_inter")
    a("s_mov_b32 s54, %d" % SPIN)
    a("s_branch L_modv_chk")
    a.label("L_modv")
    mod_loads()
    a("s_waitcnt vmcnt(0)")
    a.label("L_modv_chk")
    tag_check([49, 51, 53, 55, 65, 67])
    a("v_and_b32 v65, 0xffff0000, v64")
    a("v_and_b32 v67, 0xffff0000, v66")
    a("s_cmp_eq_u64 vcc, 0")
    poll_tail(a, "L_modv")
    a("""
    v_lshlrev_b32 v64, 16, v64
    v_lshlrev_b32 v66, 16, v66
    ds_write_b128 v90, v[64:67]
    s_bitcmp1_b32 s5, 1
    s_cbranch_scc1 L_nop
    v_pk_mul_f32 v[92:93], v[92:93], v[64:65]
    v_pk_mul_f32 v[94:95], v[94:95], v[66:67]
    ds_write_b32 v91, v92
    ds_write_b32 v199, v93 offset:8
    ds_write2_b32 v199, v94, v95 offset0:1 offset1:0
    s_cmp_lt_u32 s5, 2
    s_cbranch_scc1 L_nop
    ds_write_b128 v90, v[92:95] offset:7680
    """)
    a.label("L_nop")
    widen(48, 8)
    for i in range(4):
        a("v_mul_f32 %s, v11, %s" % (v(52 + i), v(52 + i)))
    if FINE == 1:
        stamp(a, 1)
    P = 32
    for i in range(4):
        c = ACC + 4 * i
        a("v_fma_f32 %s, %s, %s, %s" % (v(c), v(c), v(48 + i), v(52 + i)))
        a("v_mul_f32 %s, %s, %s" % (v(c + 1), v(c + 1), v(48 + i)))
        a("v_pk_mul_f32 %s, %s, %s op_sel:[0,%d] op_sel_hi:[1,%d]" % (v(c + 2, 2), v(c + 2, 2), v(48 + (i & 2), 2), i & 1, i & 1))
        for tt in range(2):
            a("v_cvt_pk_bf16_f32 %s, %s, %s" % (v(P + 4 * tt + 2 * (i % 2) + i // 2), v(c + 2 * tt), v(c + 2 * tt + 1)))
        if i >= 2:
            for tt in range(2):
                a("ds_write_b64 v9, %s offset:%d" % (v(P + 4 * tt + 2 * (i - 2), 2), tt * 2560 + (i - 2) * 1280))
    a("s_waitcnt lgkmcnt(0)")
    if FINE == 1:
        stamp(a, 2)
    a("s_barrier")
    if FINE == 1:
        stamp(a, 3)
    D = 24
    a("ds_read_b128 %s, v10" % v(D, 4))
    a("ds_read_b128 %s, v10 offset:1280" % v(D + 4, 4))

    def notice():
        a("s_mov_b64 exec, 1")
        a("buffer_store_dword %s, off, s[12:15], s51 sc1" % v(VTAG))
        a("s_mov_b64 exec, -1")
    if PRE == 1:
        notice()
    a("v_mov_b32 v80, s38")
    a("v_mov_b32 v81, s36")
    a("v_lshlrev_b32 v11, 3, v3")
    a("v_add_u32 v11, %d, v11" % LDS_KEY)
    a("v_mov_b32 v13, %d" % LDS_KEY)
    a("s_mov_b32 exec_lo, 0")
    a("v_mov_b32 v80, s39")
    a("v_mov_b32 v81, s37")
    a("v_add_u32 v11, 4, v11")
    a("s_mov_b32 exec_lo, -1")
    BR, BI = 32, 40
    for h in range(2):
        a.wait_lg_for(v(D + 4 * h, 4))
        a("v_mfma_f32_16x16x32_bf16 %s, %s, %s, 0" % (v(BR + 4 * h, 4), v(D + 4 * h, 4), v(FR, 4)))
        a("v_mfma_f32_16x16x32_bf16 %s, %s, %s, 0" % (v(BI + 4 * h, 4), v(D + 4 * h, 4), v(FI, 4)))
    A2 = 16
    Y = 64
    for h in range(2):
        for j in range(0, 4, 2):
            br, bi, tc, ts = v(BR + 4 * h + j, 2), v(BI + 4 * h + j, 2), v(TC + 4 * h + j, 2), v(TS + 4 * h + j, 2)
            a("v_pk_mul_f32 %s, %s, %s" % (v(48 + j, 2), br, tc))
            a("v_pk_mul_f32 %s, %s, %s" % (v(52 + j, 2), bi, tc))
            a("v_pk_fma_f32 %s, %s, %s, %s" % (v(48 + j, 2), bi, ts, v(48 + j, 2)))
            a("v_pk_fma_f32 %s, %s, %s, %s neg_lo:[1,0,0] neg_hi:[1,0,0]" % (v(52 + j, 2), br, ts, v(52 + j, 2)))
        if h == 0:
            vec_read(PP, 5)
            vec_read(GA, 0)
        else:
            vec_read(GAM, 4)
            vec_read(PM, 6)
        for k in range(4):
            a("v_cvt_pk_bf16_f32 %s, %s, %s" % (v(A2 + 4 * h + k), v(48 + 2 * k), v(49 + 2 * k)))
        for gg in range(2):
            y = v(Y + 4 * gg, 4)
            a("v_mfma_f32_16x16x32_bf16 %s, %s, %s, %s" % (y, v(A2 + 4 * h, 4), v(G + 8 * h + 4 * gg, 4), "0" if h == 0 else y))
    if FINE:
        stamp(a, 4)
    if PRE == 2:
        notice()
    a("v_mov_b32 v57, %s" % v(VTAG))
    a("v_mov_b32 v59, %s" % v(VTAG))
    a("s_lshl_b32 s58, s59, %d" % KSH)
    a("s_add_u32 s58, s58, 0x%x" % WS_KEYS)
    a("s_cmp_eq_u32 s5, 0")
    a("s_cselect_b32 s58, s58, 0x%x" % OOB)
    rows = ((XU, GA, PP, 32), (XM, GAM, PM, 40))
    a.wait_lg_for(v(PP, 8))
    a("v_pk_add_f32 v[38:39], %s, %s" % (v(PP, 2), v(PP + 2, 2)))
    a("v_pk_add_f32 v[46:47], %s, %s" % (v(PP + 4, 2), v(PP + 6, 2)))
    a("v_pk_add_f32 v[38:39], v[38:39], v[46:47]")
    a("v_add_f32 v38, v38, v39")
    a("v_mov_b32 v46, v38")
    for xx, ga, pp, tp in rows:
        a.wait_lg_for(v(ga, 8))
        for e in range(0, 8, 2):
            a("v_pk_fma_f32 %s, %s, %s, %s" % (v(xx + e, 2), v(ga + e, 2), v(Y + e, 2), v(xx + e, 2)))
    XN = 72
    for xx, ga, pp, tp in rows:
        a.wait_lg_for(v(pp, 8))
        a("v_pk_add_f32 %s, %s, %s" % (v(tp, 2), v(xx, 2), v(xx + 2, 2)))
        a("v_pk_mul_f32 %s, %s, %s" % (v(tp + 2, 2), v(xx, 2), v(xx, 2)))
        a("v_pk_mul_f32 %s, %s, %s" % (v(tp + 4, 2), v(xx, 2), v(pp, 2)))
        for e in range(2, 8, 2):
            if e > 2:
                a("v_pk_add_f32 %s, %s, %s" % (v(tp, 2), v(tp, 2), v(xx + e, 2)))
            a("v_pk_fma_f32 %s, %s, %s, %s" % (v(tp + 2, 2), v(xx + e, 2), v(xx + e, 2), v(tp + 2, 2)))
            a("v_pk_fma_f32 %s, %s, %s, %s" % (v(tp + 4, 2), v(xx + e, 2), v(pp + e, 2), v(tp + 4, 2)))
        for k in range(3):
            a("v_add_f32 %s, %s, %s" % (v(tp + 2 * k), v(tp + 2 * k), v(tp + 2 * k + 1)))
    for k in (3, 0, 1, 2):
        a("v_permlane32_swap_b32 %s, %s" % (v(32 + 2 * k), v(40 + 2 * k)))
    for k in (3, 0, 1, 2):
        a("v_add_f32 %s, %s, %s" % (v(32 + 2 * k), v(32 + 2 * k), v(40 + 2 * k)))
    a("v_permlane16_swap_b32 v32, v34")
    a("v_permlane16_swap_b32 v36, v38")
    a("v_add_f32 v32, v32, v34")
    a("v_add_f32 v36, v36, v38")
    if EARLYH:
        extra = []
        for b, a0, a123 in ((XM, "v196", "v178"), (XM + 4, "v177", "v176")):
            extra += ["ds_write_b32 %s, %s" % (a0, v(b)), "ds_write_b32 %s, %s offset:8" % (a123, v(b + 1)), "ds_write2_b32 %s, %s, %s offset0:1 offset1:0" % (a123, v(b + 2), v(b + 3))]
        for k, mod in enumerate(ROR):
            for r in (32, 36):
                a("v_add_f32_dpp %s, %s, %s %s" % (v(r), v(r), v(r), mod))
            for t in extra[(k * 6) // 4:((k + 1) * 6) // 4]:
                a(t)
    else:
        dpp_sum(a, [32, 36], ROR)
    if FINE == 1:
        stamp(a, 5)
    if PRE == 3:
        notice()
    a("v_mov_b32_dpp v33, v32 %s" % BC[0])
    a("v_mov_b32_dpp v37, v36 %s" % BC[0])
    a("v_mul_f32 v33, %s, v33                 ; mean" % f32(1 / 512))
    a("v_mul_f32 v34, v33, v33")
    a("v_sub_f32 v34, %s, v34" % f32(EPS))
    a("v_fmac_f32 v34, %s, v32" % f32(1 / 512))
    a("v_rsq_f32 v34, v34")
    a("""
    v_fma_f32 v36, -v33, v36, v37
    v_mul_f32 v8, v36, v34
    v_ashrrev_i32 v9, 31, v8
    v_or_b32 v9, s63, v9
    v_xor_b32 v8, v8, v9
    v_and_or_b32 v8, v8, v80, v81
    s_mov_b32 exec_lo, 0x80000000
    s_mov_b32 exec_hi, 0x80000000
    ds_write_b32 v11, v8
    s_mov_b64 exec, -1
    v_mul_f32 v35, v33, v34
    s_cmp_lg_u32 s5, 0
    s_cbranch_scc1 L_noprio
    s_setprio 3
    """)
    a.label("L_noprio")
    a("s_waitcnt lgkmcnt(0)")
    stamp(a, 10)
    a("s_barrier")
    for k in range(4):
        a("ds_read_b128 %s, v13 offset:%d" % (v(16 + 4 * k, 4), 16 * k))
    a("""
    v_readlane_b32 s56, v8, 31
    v_readlane_b32 s57, v8, 63
    v_readlane_b32 s32, v34, 31
    v_readlane_b32 s33, v35, 31
    v_readlane_b32 s34, v34, 63
    v_readlane_b32 s35, v35, 63
    s_waitcnt lgkmcnt(2)
    v_max_u32 v56, v16, v17
    v_min_u32 v58, v16, v17
    """)
    for k in range(18, 30, 4):
        if k == 22:
            a("s_waitcnt lgkmcnt(0)")
        a("v_med3_u32 v60, v56, %s, %s" % (v(k), v(k + 1)))
        a("v_max3_u32 v56, v56, %s, %s" % (v(k), v(k + 1)))
        a("v_med3_u32 v61, v56, %s, %s" % (v(k + 2), v(k + 3)))
        a("v_max3_u32 v56, v56, %s, %s" % (v(k + 2), v(k + 3)))
        a("v_max3_u32 v58, v58, v60, v61")
    a("""
    v_med3_u32 v60, v56, v30, v31
    v_max3_u32 v56, v56, v30, v31
    v_max_u32 v60, v58, v60
    v_or_b32 v58, 1, v60
    s_mov_b64 exec, 1
    buffer_store_dwordx4 v[56:59], off, s[12:15], s58 sc1
    s_mov_b64 exec, -1
    s_setprio 0
    """)
    if FINE:
        stamp(a, 6)
    vec_read(CB, 2)
    vec_read(SB, 1)
    if EARLYH:
        a("ds_read_b128 %s, v14" % v(XN, 4))
        a("ds_read_b128 %s, v14 offset:1280" % v(XN + 4, 4))
        vec_read(GB, 3)
    else:
        vec_read(GB, 3)
        mirror(XN, XM)
    a("v_readfirstlane_b32 s60, v56")
    a("v_readfirstlane_b32 s61, v60")
    H, HM = 32, 88
    OUT, OUTM, HP, HPM = 40, 44, 48, 52
    for ri, (xx, hh, sp, o, hp) in enumerate(((XU, H, 32, OUT, HP), (XN, HM, 34, OUTM, HPM))):
        if ri:
            a("s_waitcnt lgkmcnt(0)")
        a("v_mov_b32 v60, %s" % s(sp + 1))
        for e in range(8):
            a("v_fma_f32 %s, %s, %s, -v60" % (v(hh + e), v(xx + e), s(sp)))
        a.wait_lg_for(v(VEC, 32))
        for e in range(0, 8, 2):
            a("v_pk_fma_f32 %s, %s, %s, %s" % (v(hh + e, 2), v(hh + e, 2), v(CB + e, 2), v(SB + e, 2)))
        for d in range(4):
            a("v_cvt_pk_bf16_f32 %s, %s, %s" % (v(hp + d), v(hh + 2 * d), v(hh + 2 * d + 1)))
        for e in range(0, 8, 2):
            a("v_pk_fma_f32 %s, %s, %s, %s" % (v(xx + e, 2), v(GB + e, 2), v(hh + e, 2), v(xx + e, 2)))
        for d in range(4):
            a("v_cvt_pk_bf16_f32 %s, %s, %s" % (v(o + d), v(xx + 2 * d), v(xx + 2 * d + 1)))
    a("""
    ds_write_b64 v12, v[40:41]
    ds_write_b64 v12, v[42:43] offset:512
    ds_write_b64 v12, v[44:45] offset:1024
    ds_write_b64 v12, v[46:47] offset:1536
    ds_read_b128 v[40:43], v15
    ds_read_b128 v[44:47], v15 offset:1024
    s_max_u32 s61, s61, 1
    """)
    for ri, (key, off, o, hp) in enumerate((("s56", "s49", OUT, HP), ("s57", "s50", OUTM, HPM))):
        a("s_mov_b32 s58, s45")
        a("s_cmp_eq_u32 %s, s60" % key)
        a("s_cbranch_scc1 L_cand%d" % ri)
        a("s_add_u32 s58, s45, 2048")
        a("s_cmp_eq_u32 %s, s61" % key)
        a("s_cselect_b32 s53, 1, 0")
        a("s_or_b32 %s, %s, s53" % (key, key))
        a("s_cmp_eq_u32 s53, 1")
        stc = a.fork()
        a("s_cbranch_scc1 L_cand%d" % ri)
        a("s_mov_b32 %s, 0" % key)
        a("s_waitcnt lgkmcnt(0)")
        a("buffer_store_dwordx4 %s, v250, s[28:31], %s offen%s" % (v(o, 4), off, OUTF))
        a("s_branch L_next%d" % ri)
        a.label("L_cand%d" % ri)
        a.join(stc)
        a("buffer_store_dwordx4 %s, v250, s[12:15], s58 offen sc1" % v(hp, 4))
        a("s_waitcnt lgkmcnt(0)")
        a("buffer_store_dwordx4 %s, v250, s[12:15], s58 offen offset:1024 sc1" % v(o, 4))
        a.label("L_next%d" % ri)
    a.label("L_tail", reset=True)
    a("""
    s_lshl_b32 s59, s5, 8
    s_add_u32 s59, s59, s2
    s_sub_u32 s59, s59, 192
    s_cmp_lt_u32 s59, 64
    s_cselect_b32 s59, 1, 0
    s_or_b32 s60, s59, s56
    s_or_b32 s60, s60, s57
    s_cbranch_scc0 L_done
    s_lshl_b32 s45, s3, 7
    """)
    a("s_add_u32 s45, s45, 0x%x" % WS_SEL)
    a("s_cmp_eq_u32 s59, 0")
    a("s_cbranch_scc1 L_sel_go")
    a("""
    s_lshl3_add_u32 s44, s3, s4
    s_sub_u32 s44, s44, 24
    s_lshr_b32 s48, s44, 2
    s_lshl_b32 s48, s48, 5
    s_and_b32 s46, s44, 3
    s_lshl2_add_u32 s48, s46, s48
    v_and_b32 v4, 3, v0
    v_lshrrev_b32 v5, 1, v2
    v_lshl_add_u32 v5, v5, 4, v4
    v_add_u32 v5, s48, v5
    v_and_b32 v8, 0x103, v5
    v_bfe_u32 v9, v5, 2, 2
    v_lshl_add_u32 v8, v9, 6, v8
    v_bfe_u32 v9, v5, 4, 4
    v_lshl_add_u32 v8, v9, 2, v8
    v_lshlrev_b32 v8, 2, v8
    """)
    a("ds_write_b128 v15, %s" % v(GB, 4))
    a("ds_write_b128 v15, %s offset:1024" % v(GB + 4, 4))
    a("ds_read_b32 v8, v8 offset:%d           ; gb[e]" % LDS_SCR)
    a("v_pk_mul_f32 v[62:63], %s, %s" % (v(SB, 2), v(WU, 2)))
    for e in range(2, 8, 2):
        a("v_pk_fma_f32 v[62:63], %s, %s, v[62:63]" % (v(SB + e, 2), v(WU + e, 2)))
    a("v_add_f32 v62, v62, v63")
    dpp_sum(a, [62], ROR + BC)
    a("v_readlane_b32 s58, v62, 63")
    a("""
    v_bfe_u32 v9, v0, 2, 4
    v_lshlrev_b32 v9, 12, v9
    v_lshl_add_u32 v9, v4, 4, v9
    s_lshl_b32 s40, s44, 6
    v_and_b32 v10, 1, v2
    v_cmp_eq_u32 s[52:53], 1, v10
    v_mov_b32 v36, 0
    v_mov_b32 v37, 0
    v_mov_b32 v38, 0
    v_mov_b32 v39, 0
    """)
    a("s_add_u32 s40, s40, 0x%x" % WS_PART)
    a("s_add_u32 s41, s40, 0x10000")
    a("s_add_u32 s42, s40, 0x20000")
    a("s_add_u32 s43, s40, 0x30000")
    a("s_waitcnt lgkmcnt(0)")
    a.label("L_sel_go")
    a("s_mov_b32 s54, %d" % SPIN)
    a.label("L_poll_sel")
    a("buffer_load_dwordx4 v[16:19], off, s[12:15], s45 sc1")
    a("s_waitcnt vmcnt(0)")
    a("v_cmp_eq_u32 vcc, v17, %s" % v(VTAG))
    a("v_cmp_eq_u32 s[60:61], v19, %s" % v(VTAG))
    a("s_and_b64 vcc, vcc, s[60:61]")
    a("s_cmp_eq_u64 vcc, -1")
    poll_tail(a, "L_poll_sel")
    stamp(a, 11)
    a("""
    v_readfirstlane_b32 s60, v16
    v_readfirstlane_b32 s61, v18
    """)
    if LO:
        for ri, (key, off, o) in enumerate((("s56", "s49", OUT), ("s57", "s50", OUTM))):
            a("s_cmp_eq_u32 %s, 0" % key)
            a("s_cbranch_scc1 L_lo%d" % ri)
            a("s_cmp_eq_u32 %s, s60" % key)
            a("s_cbranch_scc1 L_lo%d" % ri)
            a("s_cmp_eq_u32 %s, s61" % key)
            a("s_cbranch_scc1 L_lo%d" % ri)
            a("buffer_store_dwordx4 %s, v250, s[28:31], %s offen" % (v(o, 4), off))
            a.label("L_lo%d" % ri)
    a("""
    s_cmp_eq_u32 s59, 0
    s_cbranch_scc1 L_late_out
    v_cndmask_b32 v16, v16, v18, s[52:53]
    v_bfe_u32 v17, v16, 5, 8
    v_and_b32 v18, 1, v16
    v_lshlrev_b32 v19, 12, v17
    v_lshl_add_u32 v19, v18, 11, v19
    v_lshl_add_u32 v19, v5, 1, v19
    """)
    a("s_mov_b32 s55, 0x%x" % (WS_CAND + 1024))
    a("s_mov_b32 s54, %d" % SPIN)
    a.label("L_poll_base")
    a("""
    buffer_load_ushort v20, v19, s[12:15], s55 offen sc1
    v_and_b32 v21, 7, v17
    v_bfe_u32 v22, v17, 5, 2
    v_lshl_add_u32 v21, v22, 3, v21       ; slot
    v_bfe_u32 v22, v17, 3, 2
    v_lshl_add_u32 v22, v22, 9, v21
    v_subrev_u32 v23, 992, v22
    v_cmp_eq_u32 vcc, 0, v21
    v_cndmask_b32 v23, v22, v23, vcc
    v_cmp_gt_u32 vcc, 1024, v22
    v_cndmask_b32 v21, v23, v22, vcc
    v_lshrrev_b32 v22, 7, v17
    v_lshl_add_u32 v21, v22, 10, v21
    v_bfe_u32 v22, v16, 2, 3
    v_lshl_add_u32 v21, v22, 6, v21
    v_sub_u32 v22, 2048, v21
    v_and_b32 v23, 2, v16
    v_cmp_eq_u32 vcc, 0, v23
    v_cndmask_b32 v21, v22, v21, vcc
    v_lshlrev_b32 v21, 10, v21
    v_lshl_add_u32 v21, v5, 1, v21
    """)
    if FIN == 2:
        a("buffer_load_ushort v49, v21, s[28:31], 0 offen")
    a("""
    v_and_b32 v22, 0xffffe000, v16
    v_ashrrev_i32 v23, 31, v22
    v_not_b32 v23, v23
    v_or_b32 v23, s63, v23
    v_xor_b32 v22, v22, v23
    v_add_f32 v22, s58, v22
    """)
    a("v_mul_f32 v22, %s, v22" % f32(-LOG2E))
    a("""
    v_exp_f32 v22, v22
    v_add_f32 v22, 1.0, v22
    v_rcp_f32 v22, v22
    v_mul_f32 v22, v22, v8
    s_waitcnt vmcnt(0)
    v_cmp_eq_u32 vcc, 0xffff, v20
    s_cmp_eq_u64 vcc, 0
    """)
    poll_tail(a, "L_poll_base")
    a("s_mov_b32 s54, %d" % SPIN)
    a.label("L_poll_part")
    a("""
    buffer_load_dwordx4 v[24:27], v9, s[12:15], s40 offen sc1
    buffer_load_dwordx4 v[28:31], v9, s[12:15], s41 offen sc1
    buffer_load_dwordx4 v[32:35], v9, s[12:15], s42 offen sc1
    s_mov_b32 exec_hi, 0
    buffer_load_dwordx4 v[36:39], v9, s[12:15], s43 offen sc1
    s_mov_b32 exec_hi, -1
    s_waitcnt vmcnt(0)
    v_max3_u32 v48, v24, v28, v32
    v_max_u32 v48, v48, v36
    v_cmp_eq_u32 vcc, -1, v48
    s_cmp_eq_u64 vcc, 0
    """)
    poll_tail(a, "L_poll_part")
    stamp(a, 12)
    a("""
    v_pk_add_f32 v[24:25], v[24:25], v[28:29]
    v_pk_add_f32 v[26:27], v[26:27], v[30:31]
    v_pk_add_f32 v[32:33], v[32:33], v[36:37]
    v_pk_add_f32 v[34:35], v[34:35], v[38:39]
    v_pk_add_f32 v[24:25], v[24:25], v[32:33]
    v_pk_add_f32 v[26:27], v[26:27], v[34:35]
    v_permlane32_swap_b32 v24, v26
    v_permlane32_swap_b32 v25, v27
    v_pk_add_f32 v[24:25], v[24:25], v[26:27]
    v_permlane16_swap_b32 v24, v25
    v_add_f32 v24, v24, v25
    v_lshlrev_b32 v20, 16, v20
    """)
    dpp_sum(a, [24], ROR[:2])
    a("""
    v_fmac_f32 v20, v24, v22
    v_cvt_pk_bf16_f32 v20, v20, v20
    s_mov_b32 exec_lo, 0x000f000f
    s_mov_b32 exec_hi, 0x000f000f
    buffer_store_short v20, v21, s[28:31], 0 offen OUTF
    s_mov_b64 exec, -1
    s_cmp_lg_u32 s2, 192
    s_cbranch_scc1 L_late_out
    s_mov_b64 exec, 1
    """.replace(" OUTF", " sc1" if FIN == 1 else ""))
    a("s_mov_b32 s55, 0x%x" % WS_GEN)
    a("buffer_store_dword %s, off, s[12:15], s55" % v(VTAG))
    a("s_mov_b64 exec, -1")
    if PROBE >= 0 and not PFFN:
        probe_spin(a)
    a.label("L_late_out", reset=True)
    for ri, (key, off, o) in enumerate((("s56", "s49", OUT), ("s57", "s50", OUTM)) if not LO else ()):
        nxt = "L_late1" if ri == 0 else "L_done"
        a("s_cmp_eq_u32 %s, 0" % key)
        a("s_cbranch_scc1 %s" % nxt)
        a("s_cmp_eq_u32 %s, s60" % key)
        a("s_cbranch_scc1 %s" % nxt)
        a("s_cmp_eq_u32 %s, s61" % key)
        a("s_cbranch_scc1 %s" % nxt)
        a("buffer_store_dwordx4 %s, v250, s[28:31], %s offen%s" % (v(o, 4), off, OUTF))
        if ri == 0:
            a.label("L_late1")
    a("s_branch L_done")
    a.label("L_ffn", reset=True)
    a("s_mov_b32 s58, s4")
    a("s_barrier")
    a("""
    s_mul_i32 s6, s3, 7
    s_add_u32 s6, s6, s58
    s_lshl_b32 s46, s6, 12
    """)
    a("s_add_u32 s46, s46, 0x%x               ; partial-sum slab" % WS_PART)
    a("s_add_u32 s45, s46, s62")
    a("s_cmp_lt_u32 s5, 4")
    a("s_cselect_b32 s45, s45, 0x%x" % OOB)
    a("s_mov_b64 s[32:33], s[18:19]")
    a("s_mov_b64 s[36:37], s[20:21]")
    a("s_mov_b64 s[40:41], s[22:23]")
    srd(a, 32, 512 * 3584)
    srd(a, 36, 512 * 3584)
    srd(a, 40, 1792 * 1024)
    a("""
    s_and_b32 s44, s5, 1
    s_lshl_b32 s44, s44, 7
    s_lshr_b32 s48, s5, 1
    s_lshl2_add_u32 s44, s48, s44
    v_bfe_u32 v4, v0, 2, 2
    v_lshl_add_u32 v4, v2, 4, v4
    v_add_u32 v4, s44, v4
    v_mul_u32_u24 v4, 3584, v4
    v_and_b32 v5, 3, v0
    v_lshl_add_u32 v4, v5, 4, v4
    s_lshl_b32 s48, s6, 6
    s_mul_i32 s7, s5, 12288
    s_mov_b32 m0, s7
    """)
    a("s_add_u32 s49, s48, %d" % (64 * 3584))
    a("s_add_u32 s50, s48, %d" % (256 * 3584))
    a("s_add_u32 s51, s48, %d" % (320 * 3584))
    stamp(a, 7)
    a("buffer_store_dwordx4 v[252:255], v250, s[12:15], s45 offen sc1")
    for sr in (32, 36):
        for i in range(4):
            a("buffer_load_dwordx4 v4, %s, %s offen lds" % (s(sr, 4), s(48 + i)))
            a("s_add_u32 m0, m0, 1024")
    a("""
    v_bfe_u32 v5, v0, 3, 3
    v_lshlrev_b32 v5, 10, v5
    v_and_b32 v4, 7, v0
    v_lshl_add_u32 v5, v4, 4, v5
    v_lshl_add_u32 v5, v3, 7, v5
    s_lshl_b32 s48, s6, 15
    """)
    for i in range(4):
        a("buffer_load_dwordx4 v5, s[40:43], s48 offen lds")
        if i < 3:
            a("s_add_u32 m0, m0, 1024")
            a("s_add_u32 s48, s48, 8192")
    WF, WD = 64, 96
    a("v_lshlrev_b32 v6, %d, v0" % KSH)
    a("""
    v_bfe_u32 v4, v0, 2, 4                ; 4q + r
    v_and_b32 v5, 3, v0
    v_lshlrev_b32 v5, 3, v5
    v_lshl_add_u32 v8, v4, 6, v5
    v_add_u32 v8, s7, v8
    v_bfe_u32 v9, v0, 2, 2
    v_lshl_add_u32 v9, v2, 3, v9
    v_lshl_add_u32 v9, v9, 7, v5
    v_add_u32 v9, s7, v9
    """)
    a("v_mov_b32 v33, %s" % v(VTAG))
    a("v_mov_b32 v35, %s" % v(VTAG))
    a("""
    v_and_b32 v10, 1, v0
    v_cmp_eq_u32 s[50:51], 1, v10
    v_lshlrev_b32 v11, 7, v3
    v_lshl_add_u32 v11, v2, 4, v11
    v_lshlrev_b32 v12, 6, v10
    v_lshl_add_u32 v13, v2, 4, v12
    v_lshl_add_u32 v13, v3, 9, v13
    v_and_b32 v14, 30, v0
    v_lshl_add_u32 v14, v14, 1, v12
    v_and_b32 v12, 32, v0
    v_lshl_add_u32 v14, v12, 2, v14
    """)
    a("v_add_u32 v13, %d, v13                 ; partial write address" % LDS_RED)
    a("v_add_u32 v14, %d, v14                 ; partial read address" % LDS_RED)
    a("""
    v_lshlrev_b32 v15, 9, v3
    v_lshl_add_u32 v15, v1, 4, v15
    v_lshlrev_b32 v7, 3, v3
    v_mov_b32 v16, 0
    v_mov_b32 v18, 0
    """)
    a("v_add_u32 v7, %d, v7" % LDS_KEY2)
    a("v_mov_b32 v4, %d" % LDS_KEY2)
    a("s_waitcnt vmcnt(0)")
    stamp(a, 8)
    for kk in range(2):
        for mt in range(4):
            for hf in range(2):
                a("ds_read_b64_tr_b16 %s, v8 offset:%d" % (v(WF + 16 * kk + 4 * mt + 2 * hf, 2), (mt // 2) * 4096 + hf * 2048 + kk * 1024 + (mt % 2) * 32))
    for t in range(4):
        for hf in range(2):
            a("ds_read_b64_tr_b16 %s, v9 offset:%d" % (v(WD + 4 * t + 2 * hf, 2), 8192 + hf * 512 + t * 32))
    a("s_barrier")
    a("s_lshl_b32 s53, s6, %d" % KSH)
    a("s_add_u32 s53, s53, 0x%x" % (WS_KEYS + (129 << KSH)))
    a("s_cmp_eq_u32 s5, 0")
    a("s_cselect_b32 s53, s53, 0x%x" % OOB)
    a("v_mov_b32 v32, 0")
    a("v_mov_b32 v34, 0")
    a("s_mov_b64 exec, 1")
    a("buffer_store_dwordx4 v[32:35], off, s[12:15], s53 sc1")
    a("s_mov_b64 exec, -1")
    a("s_lshl_b32 s52, s3, 7")
    a("s_add_u32 s55, s52, 0x%x" % WS_PRE)
    a("s_add_u32 s52, s52, 0x%x" % WS_SEL)
    a("s_or_b32 s53, s58, s5")
    a("s_cselect_b32 s52, 0x%x, s52           ; one announcing wave per group" % OOB)
    a("s_cmp_ge_u32 s5, 3")
    a("s_cbranch_scc1 L_keys_done")
    a("s_mov_b32 s54, %d" % SPIN)
    if PRE:
        a.label("L_poll_pre")
        a("buffer_load_dword v17, off, s[12:15], s55 sc1")
        a("s_waitcnt vmcnt(0)")
        a("v_cmp_eq_u32 vcc, v17, %s" % v(VTAG))
        a("s_cmp_eq_u64 vcc, -1")
        poll_tail(a, "L_poll_pre")
        a("s_mov_b32 s54, %d" % SPIN)
    stamp(a, 10)
    a("v_cmp_gt_u32 vcc, 185, v0")
    a("s_mov_b32 s55, 0x%x" % WS_KEYS)
    a("s_mov_b64 exec, vcc")
    a.label("L_poll_keys")
    a("buffer_load_dwordx4 v[16:19], v6, s[12:15], s55 offen sc1")
    a("s_waitcnt vmcnt(0)")
    a("v_cmp_ne_u32 vcc, v17, %s" % v(VTAG))
    a("v_cmp_ne_u32 s[60:61], v19, %s" % v(VTAG))
    a("s_or_b64 vcc, vcc, s[60:61]")
    a("s_and_b64 exec, exec, vcc")
    a("s_cmp_eq_u64 exec, 0")
    poll_tail(a, "L_poll_keys")
    a("s_mov_b64 exec, -1")
    for mod in ROR + BC:
        a("v_min_u32_dpp v19, v16, v16 %s" % mod)
        a("v_max_u32_dpp v18, v18, v18 %s" % mod)
        a("v_max_u32_dpp v16, v16, v16 %s" % mod)
        a("v_max_u32 v18, v18, v19")
    a("""
    s_mov_b32 exec_lo, 0
    s_mov_b32 exec_hi, 0x80000000
    ds_write2_b32 v7, v16, v18 offset0:0 offset1:1
    s_mov_b64 exec, -1
    """)
    a.label("L_keys_done")
    a("s_waitcnt lgkmcnt(0)")
    a("s_barrier")
    stamp(a, 11)
    a("ds_read_b128 v[16:19], v4")
    a("ds_read_b64 v[20:21], v4 offset:16")
    a("s_mov_b32 s55, 0x%x" % WS_CAND)
    a("s_mov_b32 s54, %d" % SPIN)
    a("""
    s_waitcnt lgkmcnt(0)
    v_med3_u32 v36, v16, v18, v20
    v_max3_u32 v32, v16, v18, v20
    v_max3_u32 v34, v17, v19, v21
    v_max_u32 v34, v34, v36
    v_cndmask_b32 v36, v32, v34, s[50:51]
    v_bfe_u32 v37, v36, 5, 8
    v_and_b32 v36, 1, v36
    v_lshl_add_u32 v11, v37, 12, v11
    v_lshl_add_u32 v11, v36, 11, v11
    """)
    a.label("L_poll_h2")
    a("""
    buffer_load_dwordx4 v[16:19], v11, s[12:15], s55 offen sc1
    buffer_load_dwordx4 v[20:23], v11, s[12:15], s55 offen offset:64 sc1
    """)
    C = 48
    for kk in range(2):
        a("s_waitcnt vmcnt(%d)" % (1 - kk))
        if kk:
            stamp(a, 12)
        for mt in range(4):
            c = v(C + 4 * mt, 4)
            a("v_mfma_f32_16x16x32_bf16 %s, %s, %s, %s" % (c, v(WF + 16 * kk + 4 * mt, 4), v(16 + 4 * kk, 4), "0" if kk == 0 else c))
    a("""
    v_max_u32 v36, v16, v20
    v_cmp_eq_u32 vcc, -1, v36
    s_cmp_eq_u64 vcc, 0
    """)
    poll_tail(a, "L_poll_h2")
    a("s_mov_b64 exec, 1")
    a("buffer_store_dwordx4 v[32:35], off, s[12:15], s52 sc1")
    a("s_mov_b32 exec_lo, 0x00030003")
    a("s_mov_b32 exec_hi, 0x00030003")
    for mt in range(4):
        a("ds_write_b128 v13, %s offset:%d" % (v(C + 4 * mt, 4), 128 * mt))
    a("s_mov_b64 exec, -1")
    a("s_waitcnt lgkmcnt(0)")
    a("s_barrier")
    a("""
    ds_read2st64_b32 v[16:17], v14 offset0:0 offset1:2
    ds_read2st64_b32 v[18:19], v14 offset0:4 offset1:6
    ds_read2st64_b32 v[20:21], v14 offset0:8 offset1:10
    ds_read2st64_b32 v[22:23], v14 offset0:12 offset1:14
    ds_read2st64_b32 v[24:25], v14 offset0:1 offset1:3
    ds_read2st64_b32 v[26:27], v14 offset0:5 offset1:7
    ds_read2st64_b32 v[28:29], v14 offset0:9 offset1:11
    ds_read2st64_b32 v[30:31], v14 offset0:13 offset1:15
    s_waitcnt lgkmcnt(4)
    v_pk_add_f32 v[16:17], v[16:17], v[18:19]
    v_pk_add_f32 v[20:21], v[20:21], v[22:23]
    v_pk_add_f32 v[16:17], v[16:17], v[20:21]
    v_add_f32 v16, v16, v17
    """)
    a("v_mul_f32 v17, %s, v16" % f32(-LOG2E))
    a("""
    v_exp_f32 v17, v17
    s_waitcnt lgkmcnt(0)
    v_pk_add_f32 v[24:25], v[24:25], v[26:27]
    v_add_f32 v17, 1.0, v17
    v_pk_add_f32 v[28:29], v[28:29], v[30:31]
    v_rcp_f32 v17, v17
    v_pk_add_f32 v[24:25], v[24:25], v[28:29]
    v_add_f32 v24, v24, v25
    v_mul_f32 v16, v16, v17
    v_mul_f32 v16, v16, v24
    v_mov_b32_dpp v17, v16 row_ror:14 row_mask:0xf bank_mask:0xf
    v_cvt_pk_bf16_f32 v20, v16, v17
    v_mov_b32_dpp v21, v20 row_ror:12 row_mask:0xf bank_mask:0xf
    v_mov_b32_dpp v22, v20 row_ror:8 row_mask:0xf bank_mask:0xf
    v_mov_b32_dpp v23, v20 row_ror:4 row_mask:0xf bank_mask:0xf
    """)
    for t in range(4):
        a("v_mfma_f32_16x16x32_bf16 %s, v[20:23], %s, 0" % (v(C + 4 * t, 4), v(WD + 4 * t, 4)))
    a("""
    s_mov_b64 exec, 0xffff
    v_mov_b32 v50, v52
    v_mov_b32 v51, v53
    buffer_store_dwordx4 v[48:51], v15, s[12:15], s46 offen sc1
    v_mov_b32 v58, v60
    v_mov_b32 v59, v61
    buffer_store_dwordx4 v[56:59], v15, s[12:15], s46 offen offset:256 sc1
    s_mov_b64 exec, -1
    """)
    stamp(a, 9)
    if PROBE >= 0 and PFFN:
        a("s_lshl_b32 s94, s2, 3")
        a("s_or_b32 s94, s94, s5")
        a("s_cmp_lg_u32 s94, %d" % (PFFN - 1))
        a("s_cbranch_scc1 L_done")
        probe_spin(a)
    a.label("L_done", reset=True)
    stamp_end(a)
    a.label("L_end")
    a("s_endpgm")
    desc = """.section .rodata,"a"
.p2align 6
.amdhsa_kernel %s
  .amdhsa_next_free_vgpr 256
  .amdhsa_next_free_sgpr 102
  .amdhsa_accum_offset 256
  .amdhsa_group_segment_fixed_size 0
  .amdhsa_kernarg_size 120
  .amdhsa_user_sgpr_count 2
  .amdhsa_user_sgpr_kernarg_segment_ptr 1
  .amdhsa_system_sgpr_workgroup_id_x 1
.end_amdhsa_kernel
""" % KN
    return HEADER + "; @launch grid=(256,1,1) block=(512,1,1) lds=%d\n" % LDS_TOTAL + a.text() + desc


if __name__ == "__main__":
    out = sys.argv[1] if len(sys.argv) > 1 and sys.argv[1].endswith(".s") else "v13.s"
    open(out, "w").write(build())
    print("wrote", out)
```

```python
import sys, struct
from asmlib import Asm, Ins, v, s

NAME = "adaLN_cond__spectral_fnet__moe_arch_mod__prompt"
KN = NAME + "_kernel"
HEADER = open("cdna_kernels/%s.s.ref" % NAME).read().split("; Override launch geometry")[0]


def opt(name, default):
    for x in sys.argv:
        if x.startswith("--%s=" % name):
            return int(x.split("=")[1], 0)
    return default


STAMPS = "--stamps" in sys.argv
PROBE = opt("probe", -1)
KSH = opt("ksh", 6)
FSH = opt("fsh", 8)
HELP = opt("help", 1)
POIS = opt("pois", 4)
OUTF = ("", " sc1", " nt", " sc0 sc1", " sc1 nt")[opt("outf", 1)]
EARLYH = opt("earlyh", 1)
MODFIRST = opt("modfirst", 0)
ROWL = opt("rowl", 1)
MH = opt("mh", 9)
PLATE = opt("plate", 0)
OUTL = opt("outl", 0)
FINE = opt("fine", 0)
PROG = opt("prog", 0)
TMIN = opt("tmin", -1)
PFFN = opt("pffn", 0)
FIN = opt("fin", 0)
HF = opt("hf", 1)
LO = opt("lo", 1)
ADEL = opt("adel", 2)
BDEL = opt("bdel", 1)
BT = opt("bt", 4)
SENT = opt("sent", 0)
FDEL = opt("fdel", 0)
SW = opt("sw", 4)
PRE = opt("pre", 3)
CPOS = opt("cpos", 0)
CPF = opt("cpf", 0)
TOUCH = opt("touch", 1)

WS_MOD = 0x0
WS_GEN = 0x3000
WS_SEL = 0x3400
WS_PRE = 0x3800
WS_FLAG = 0x8000
WS_KEYS = 0x40000
WS_PART = 0x80000
WS_CAND = 0x100000
WS_INTER = 0x200000
WS_SIZE = 0x400000
WS_STAMP = 0x600000
if STAMPS:
    WS_SIZE = 0x800000
EPS = 1e-5
TAGC = 0x9E3779B9
SPIN = 1 << 15
OOB = 0x7fff0000
PITCH = 288
XWG = 120

LDS_U = 20480
LDS_SCR = LDS_U + 20480
LDS_VEC = LDS_SCR + 20480
LDS_KEY = LDS_VEC + 7 * 2560
LDS_TAB = LDS_KEY + 128
LDS_RED = 98304
LDS_KEY2 = LDS_RED + 4096
LDS_TOTAL = LDS_KEY2 + 64

FR, FI, TC, TS, G, SA = 200, 204, 208, 216, 224, 240
VQ4, VTAG, VL16 = 248, 249, 250
LOG2E = 1.4426950408889634


def f32(x):
    return "0x%08x" % struct.unpack("<I", struct.pack("<f", x))[0]


def srd(a, base, nbytes):
    a("s_mov_b32 %s, 0x%x" % (s(base + 2), nbytes))
    a("s_mov_b32 %s, 0x20000" % s(base + 3))


NST = 14


def stamp(a, i):
    if PROBE >= 0 and i == 0:
        a("s_memrealtime s[96:97]")
    if PROBE == i:
        a("s_memrealtime s[92:93]")
    if not STAMPS:
        return
    if i == 0:
        a("s_memrealtime s[96:97]")
        for k in range(1, NST):
            a("s_mov_b32 %s, 0" % s(64 + 2 * k))
    a("s_memtime %s" % s(64 + 2 * i, 2))


def stamp_end(a):
    if not STAMPS:
        return
    a("s_waitcnt vmcnt(0)")
    a("s_memtime %s" % s(64 + 2 * (NST - 1), 2))
    a("s_memrealtime s[98:99]")
    a("s_mov_b64 exec, 1")
    a("s_lshl_b32 s93, s2, 3")
    a("s_add_u32 s93, s93, s5")
    a("s_lshl_b32 s93, s93, 6")
    a("s_add_u32 s93, s93, 0x%x" % WS_STAMP)
    a("s_waitcnt lgkmcnt(0)")
    a("v_mov_b32 v16, s96")
    a("v_mov_b32 v17, s98")
    for k in range(NST):
        a("v_mov_b32 %s, %s" % (v(18 + k), s(64 + 2 * k)))
    for k in range(4):
        a("buffer_store_dwordx4 %s, off, s[12:15], s93 offset:%d" % (v(16 + 4 * k, 4), 16 * k))


ROR = ["row_ror:%d row_mask:0xf bank_mask:0xf" % r for r in (8, 4, 2, 1)]
BC = ["row_bcast:15 row_mask:0xa bank_mask:0xf", "row_bcast:31 row_mask:0xc bank_mask:0xf"]


def dpp_sum(a, regs_, mods):
    for mod in mods:
        for r in regs_:
            a("v_add_f32_dpp %s, %s, %s %s" % (v(r), v(r), v(r), mod))


def poll_tail(a, label, cnt="s54"):
    a("s_cbranch_scc1 %s_ok" % label)
    a("s_sub_u32 %s, %s, 1" % (cnt, cnt))
    a("s_cbranch_scc0 %s" % label)
    a.label(label + "_ok")


def setup(a):
    a.label("L_setup", reset=True)
    a("""
    s_lshr_b32 s60, s59, 5
    s_lshl3_add_u32 s60, s60, s3
    s_and_b32 s60, s60, 31
    s_bfe_u32 s61, s59, 0x20003
    s_lshl_b32 s61, s61, 9
    s_add_u32 s61, s61, s60
    s_sub_u32 s94, s61, 992
    s_cmp_ge_u32 s61, 1024
    s_cselect_b32 s94, s94, s61
    s_mov_b32 s95, 0xffff0000
    s_cselect_b32 s95, s95, 0x0000ffff
    s_cmp_eq_u32 s60, 0
    s_cselect_b32 s61, s94, s61
    s_cselect_b32 s95, s95, -1
    """)
    a("s_cselect_b32 s94, 0, %s" % f32(-0.25))
    a("""
    s_cmp_eq_u32 s59, 128
    s_cselect_b32 s61, 1024, s61
    v_lshrrev_b32 v160, 1, v1
    v_lshlrev_b32 v160, 6, v160
    v_add_u32 v160, s61, v160
    v_cvt_f32_u32 v160, v160
    v_and_b32 v161, 1, v1
    v_cvt_f32_u32 v161, v161
    """.replace("CANDBASE", "0x%x" % WS_CAND))
    a("v_lshl_add_u32 v162, v3, 2, v2")
    a("v_cvt_f32_u32 v162, v162")
    a("v_mul_f32 v160, %s, v160" % f32(1 / 2048))
    a("v_mul_f32 v161, %s, v161" % f32(0.25))
    a("v_fmac_f32 v161, v160, v162")
    a("""
    v_add_f32 v162, s94, v161
    v_cos_f32 v163, v161
    v_cos_f32 v162, v162
    v_and_b32 v164, 3, v3
    v_lshl_add_u32 v165, v2, 2, v164
    v_mul_u32_u24 v165, v165, v1          ; n*(4q+j)
    v_lshrrev_b32 v166, 2, v3
    v_mul_u32_u24 v167, v166, v1
    v_lshl_add_u32 v167, v167, 4, v165    ; n*(16h+4q+j)
    v_cvt_f32_u32 v165, v165
    v_cvt_f32_u32 v167, v167
    v_cvt_pk_bf16_f32 v163, v163, v162
    s_cmp_lt_u32 s5, 4
    """)
    a("s_mov_b32 s94, %s" % f32(1 / 32))
    a("s_cselect_b32 s94, %s, s94" % f32(1 / 16))
    a("v_mul_f32 v167, %s, v167" % f32(1 / 512))
    a("""
    v_mul_f32 v165, s94, v165
    v_and_b32 v163, s95, v163
    v_cos_f32 v168, v167
    v_sin_f32 v169, v167
    v_cos_f32 v170, v165
    v_sin_f32 v171, v165
    v_lshl_add_u32 v164, v164, 2, v250
    v_lshl_add_u32 v164, v166, 10, v164
    """)
    a("v_add_u32 v164, %d, v164" % LDS_TAB)
    a("""
    ds_write_b32 v164, v163
    ds_write2st64_b32 v164, v168, v169 offset0:8 offset1:16
    v_cvt_pk_bf16_f32 v172, v170, v171
    s_cbranch_scc0 L_setup_g
    v_cvt_pk_bf16_f32 v173, -v171, v170
    ds_write2st64_b32 v164, v172, v173 offset0:24 offset1:28
    s_branch L_setup_end
    """)
    a.label("L_setup_g")
    a("""
    s_bitcmp1_b32 s5, 0
    s_cselect_b32 s94, 0x80008000, 0
    v_lshlrev_b32 v170, 31, v1
    v_lshrrev_b32 v171, 16, v170
    v_xor_b32 v173, s94, v172
    v_bitop3_b32 v174, v172, v170, v171 bitop3:0x96
    ds_write2st64_b32 v164, v172, v173 offset0:28 offset1:32
    v_xor_b32 v175, s94, v174
    ds_write2st64_b32 v164, v174, v175 offset0:36 offset1:40
    """)
    a.label("L_setup_end")
    a("s_waitcnt lgkmcnt(0)")
    if ROWL:
        a("s_sub_u32 s40, s4, 16")
        a("s_cmp_lt_u32 s40, 6")
        a("s_cbranch_scc1 L_setup_ret")
    if BDEL:
        a("s_waitcnt vmcnt(0)")
    a.label("L_rows")
    a("""
    s_lshl_b32 s40, s5, 6
    s_add_u32 s40, s40, s61
    s_sub_u32 s41, 2048, s40
    s_lshl_b32 s40, s40, 10
    s_lshl_b32 s41, s41, 10
    s_mov_b64 s[24:25], s[16:17]
    s_movk_i32 s26, 1024
    s_mov_b32 s27, 0x20000
    buffer_load_dwordx4 v[100:103], v250, s[8:11], s40 offen
    buffer_load_dwordx4 v[104:107], v250, s[8:11], s41 offen
    buffer_load_dwordx4 v[108:111], v250, s[24:27], 0 offen
    s_lshl_b32 s40, s59, 12
    s_add_u32 s40, s40, s62
    s_add_u32 s40, s40, CANDBASE
    s_cmp_lt_u32 s5, 4
    s_cselect_b32 s40, s40, 0x7fff0000
    buffer_store_dwordx4 v[252:255], v250, s[12:15], s40 offen sc1
    """.replace("CANDBASE", "0x%x" % WS_CAND))
    a.label("L_setup_ret")
    a("s_setpc_b64 s[100:101]")


def touch(a, half, dst, first):
    if first:
        a("""
        v_bfe_u32 v4, v0, 3, 3
        v_and_b32 v5, 7, v0
        v_lshlrev_b32 v5, 6, v5
        s_mov_b32 s34, 0x1c0000
        s_mov_b32 s35, 0x20000
        """)
    a("""
    s_and_b32 s46, s44, 31
    s_mul_i32 s48, s3, 448
    s_mul_i32 s49, s46, 57344
    s_add_u32 s48, s48, s49
    s_lshl_b32 s49, s3, 5
    s_add_u32 s49, s49, s46
    s_mul_i32 s49, s49, 7168
    """)
    if half:
        a("s_add_u32 s48, s48, 28672")
        a("s_add_u32 s49, s49, 512")
    a("""
    s_cmp_lt_u32 s44, 32
    s_cselect_b64 s[32:33], s[18:19], s[20:21]
    s_movk_i32 s50, 3584
    s_cmp_ge_u32 s44, 64
    s_cselect_b64 s[32:33], s[22:23], s[32:33]
    s_cselect_b32 s50, 1024, s50
    s_cselect_b32 s48, s49, s48
    v_mad_u32_u24 v6, v4, s50, v5
    """)
    a("buffer_load_dword %s, v6, s[32:35], s48 offen" % v(dst))


def probe_spin(a):
    a("s_waitcnt vmcnt(0)")
    a("s_memrealtime s[98:99]")
    a("s_waitcnt lgkmcnt(0)")
    a("s_sub_u32 s94, %s, s96" % ("s98" if PROBE == 13 else "s92"))
    if TMIN >= 0:
        a("s_max_u32 s94, s94, %d" % TMIN)
        a("s_sub_u32 s94, s94, %d" % TMIN)
        a("s_mul_i32 s94, s94, 2622")
        a("s_lshr_b32 s94, s94, 16")
        a("s_min_u32 s95, s94, 12")
        a("s_movk_i32 s94, 2400")
        a.label("L_lvl")
        a("s_sub_u32 s95, s95, 1")
        a("s_cbranch_scc1 L_lvl_done")
        a("s_mul_i32 s94, s94, 11")
        a("s_lshr_b32 s94, s94, 3")
        a("s_branch L_lvl")
        a.label("L_lvl_done")
        a("s_sub_u32 s94, s94, 2200")
    else:
        a("s_mul_i32 s94, s94, 2")
        a("s_min_u32 s94, s94, 8000")
    a.label("L_probe")
    a("s_memrealtime s[96:97]")
    a("s_waitcnt lgkmcnt(0)")
    a("s_sub_u32 s95, s96, s98")
    a("s_cmp_lt_u32 s95, s94")
    a("s_cbranch_scc1 L_probe")


def get_tag(a):
    a("s_waitcnt lgkmcnt(0)")
    a("s_add_u32 s47, s47, 0x%x               ; hand-off tag of this launch" % TAGC)
    a("v_mov_b32 %s, s47" % v(VTAG))


def flag_store(a, wave=0):
    a("s_lshl_b32 s53, s2, %d" % FSH)
    a("s_add_u32 s53, s53, 0x%x" % WS_FLAG)
    a("s_cmp_eq_u32 s5, %d" % wave)
    a("s_cselect_b32 s53, s53, 0x%x" % OOB)
    a("s_mov_b64 exec, 1")
    a("buffer_store_dword %s, off, s[12:15], s53 sc1" % v(VTAG))
    a("s_mov_b64 exec, -1")


def build():
    a = Asm()
    a.raw('.amdgcn_target "amdgcn-amd-amdhsa--gfx950"')
    a.raw(".text")
    a.raw(".globl %s" % KN)
    a.raw(".p2align 8")
    a.raw(".type %s,@function" % KN)
    a.label(KN, reset=True)
    a("s_cmp_ge_u32 s2, 256")
    a("s_cbranch_scc1 L_end")
    stamp(a, 0)
    a("s_load_dwordx2 s[8:9], s[0:1], 0")
    a("s_load_dwordx2 s[12:13], s[0:1], 112")
    a("s_load_dwordx16 s[16:31], s[0:1], 48")
    if CPF:
        a("s_getpc_b64 s[60:61]")
        a.label("L_cpf_pc")
        a("v_lshlrev_b32 v192, %d, v0" % (7 if CPF == 1 else 6))
        a("v_cmp_gt_u32 vcc, L_end-L_cpf_pc, v192")
        a("v_mov_b32 v193, 0")
        a("v_lshl_add_u64 v[192:193], v[192:193], 0, s[60:61]")
        a("s_and_saveexec_b64 s[60:61], vcc")
        a("s_cbranch_execz L_cpf")
        n = len(a.vm)
        a("global_load_dword v198, v[192:193], off")
        del a.vm[n:]
        a.label("L_cpf")
        a("s_mov_b64 exec, -1")
    a("""
    v_lshrrev_b32 v3, 6, v0               ; wave
    v_and_b32 v1, 15, v0                  ; n
    v_bfe_u32 v2, v0, 4, 2                ; q
    v_readfirstlane_b32 s5, v3
    s_and_b32 s3, s2, 7                   ; x
    s_lshr_b32 s4, s2, 3                  ; y
    v_and_b32 v250, 63, v0
    v_lshlrev_b32 v250, 4, v250           ; lane*16
    v_mov_b32 v252, -1
    v_mov_b32 v253, -1
    v_mov_b32 v254, -1
    v_mov_b32 v255, -1
    s_mov_b32 s63, 0x80000000
    """)
    a("v_cvt_f32_u32 %s, v2" % v(VQ4))
    srd(a, 8, 2048 * 1024)
    srd(a, 12, WS_SIZE)
    a("v_mul_f32 %s, 4.0, %s" % (v(VQ4), v(VQ4)))
    a("s_lshl_b32 s62, s5, 10")
    a("s_cmp_ge_u32 s4, 16")
    st0 = a.fork()
    a("s_cbranch_scc1 L_notdft")
    a("""
    s_movk_i32 s59, 128
    s_lshr_b32 s6, s4, 2
    s_lshl3_add_u32 s6, s6, s3            ; s2 index
    s_and_b32 s7, s4, 3
    v_lshlrev_b32 v5, 4, v1
    """)

    def store_addr():
        a("""
        v_and_b32 v8, 3, v3                   ; M tile
        v_lshlrev_b32 v13, 1, v2
        v_lshl_add_u32 v13, v8, 3, v13
        v_lshl_add_u32 v13, v13, 16, v5
        s_lshl_b32 s54, s6, 11
        s_lshl_b32 s55, s7, 9
        s_add_u32 s54, s54, s55
        """)
        a("s_add_u32 s54, s54, 0x%x" % WS_INTER)
        a("s_add_u32 s55, s54, 0x10000")
    a("s_lshl_b32 s44, s6, 10")
    for g in range(4):
        a("s_add_u32 s46, s7, %d" % g)
        a("s_and_b32 s46, s46, 3")
        a("s_lshl_b32 s46, s46, 8")
        a("s_add_u32 %s, s46, s44" % s(48 + g))
    a("""
    s_lshl1_add_u32 s46, s7, s5
    s_and_b32 s46, s46, 7
    s_lshl_b32 s46, s46, 3
    v_add_u32 v4, s46, v2
    v_lshl_or_b32 v6, v4, 15, v5
    v_add_u32 v7, 0x20000, v6
    s_waitcnt lgkmcnt(0)
    """)
    stamp(a, 1)
    X = 16
    for i in range(4):
        for g in range(2):
            a("buffer_load_dwordx4 %s, %s, s[8:11], %s offen" % (v(X + 16 * g + 4 * i, 4), v(6 + g), s(48 + i)))
    a("s_load_dword s47, s[12:13], 0x%x" % WS_GEN)
    a("s_branch L_dft")
    mark = len(a.lines)
    a.label("L_dft")
    store_addr()
    a("v_lshrrev_b32 v12, 8, v0")
    a("v_lshl_add_u32 v13, v12, 8, v13")
    if POIS == 4:
        a("s_barrier")
    if POIS < 5:
        a("buffer_store_dwordx4 v[252:255], v13, s[12:15], s54 offen sc1")
        a("buffer_store_dwordx4 v[252:255], v13, s[12:15], s55 offen sc1")
    WA = 48
    a("""
    v_lshrrev_b32 v9, 1, v1
    v_lshl_add_u32 v9, v8, 3, v9          ; slot
    v_and_b32 v10, 1, v1
    v_lshl_or_b32 v11, v9, 1, v10
    v_cmp_eq_u32 vcc, 1, v11
    v_cvt_f32_u32 v10, v10
    v_lshlrev_b32 v15, 31, v9
    v_cndmask_b32 v11, v9, 32, vcc
    """)
    a("v_mul_f32 v10, %s, v10" % f32(0.25))
    a("v_cvt_f32_u32 v11, v11")
    a("v_cndmask_b32 v10, v10, 0, vcc")
    a("v_mul_f32 v11, %s, v11" % f32(1 / 64))
    a("v_fmac_f32 v10, v11, %s" % v(VQ4))
    a("v_lshrrev_b32 v14, 16, v15")
    a("v_or_b32 v15, v15, v14")
    T = 56
    a("v_cos_f32 %s, v10" % v(T))
    for j in range(1, 8):
        a("v_add_f32 v10, v10, v11" if j != 4 else "v_fmac_f32 v10, %s, v11" % f32(13.0))
        a("v_cos_f32 %s, v10" % v(T + j))
    for j in range(4):
        a("v_cvt_pk_bf16_f32 %s, %s, %s" % (v(WA + j), v(T + 2 * j), v(T + 2 * j + 1)))
    for j in range(4):
        a("v_xor_b32 %s, v15, %s" % (v(WA + 4 + j), v(WA + j)))
    a("""
    v_mul_u32_u24 v10, 288, v4
    v_add_u32 v10, v10, v5
    v_bfe_u32 v11, v0, 2, 4
    v_mul_u32_u24 v11, 288, v11
    v_and_b32 v14, 3, v0
    v_lshl_add_u32 v11, v14, 3, v11
    v_lshl_add_u32 v11, v12, 7, v11
    s_mov_b32 s52, 0x3f803f80
    v_mov_b32 v56, 0
    v_mov_b32 v57, 0
    v_mov_b32 v58, 0
    v_mov_b32 v59, 0
    """)
    stamp(a, 2)
    U = 64
    for i in range(4):
        for g in range(2):
            a.wait_vm_for(v(X + 16 * g + 4 * i, 4))
            if i == 0 and g == 0:
                stamp(a, 3)
            for d in range(4):
                x = v(X + 16 * g + 4 * i + d)
                a("v_dot2c_f32_bf16 %s, s52, %s" % (v(56 + g), x))
                a("v_dot2c_f32_bf16 %s, %s, %s" % (v(58 + g), x, x))
            if i == 0:
                for d in range(4):
                    a("v_lshlrev_b32 %s, 16, %s" % (v(U + 8 * g + 2 * d), v(X + 16 * g + d)))
                    a("v_and_b32 %s, 0xffff0000, %s" % (v(U + 8 * g + 2 * d + 1), v(X + 16 * g + d)))
    stamp(a, 4)
    dpp_sum(a, [56, 57, 58, 59], ROR)
    for g in range(2):
        a("v_mul_f32 %s, %s, %s" % (v(56 + g), f32(1 / 512), v(56 + g)))
    for g in range(2):
        a("v_mul_f32 %s, %s, %s" % (v(60 + 2 * g), v(56 + g), v(56 + g)))
    for g in range(2):
        a("v_sub_f32 %s, %s, %s" % (v(60 + 2 * g), f32(EPS), v(60 + 2 * g)))
    for g in range(2):
        a("v_fmac_f32 %s, %s, %s" % (v(60 + 2 * g), f32(1 / 512), v(58 + g)))
    for g in range(2):
        a("v_rsq_f32 %s, %s" % (v(60 + 2 * g), v(60 + 2 * g)))
    for g in range(2):
        a("v_mul_f32 %s, %s, %s" % (v(61 + 2 * g), v(56 + g), v(60 + 2 * g)))
    for g in range(2):
        p = v(60 + 2 * g, 2)
        for d in range(4):
            u = v(U + 8 * g + 2 * d, 2)
            a("v_pk_fma_f32 %s, %s, %s, %s op_sel:[0,0,1] op_sel_hi:[1,0,1] neg_lo:[0,0,1] neg_hi:[0,0,1]" % (u, u, p, p))
        for d in range(4):
            a("v_cvt_pk_bf16_f32 %s, %s, %s" % (v(X + 16 * g + d), v(U + 8 * g + 2 * d), v(U + 8 * g + 2 * d + 1)))
        a("ds_write_b128 v10, %s offset:%d" % (v(X + 16 * g, 4), 4 * PITCH * g))
    if HF:
        a("s_lshl_b32 s53, s2, %d" % FSH)
        a("s_add_u32 s53, s53, 0x%x" % WS_FLAG)
    a("s_waitcnt vmcnt(0)")
    get_tag(a)
    if HF:
        a("s_cmp_lg_u32 s5, 7")
    a("s_barrier")
    stamp(a, 5)
    if HF:
        a("s_cbranch_scc1 L_nohint")
        a("s_mov_b64 exec, 1")
        a("buffer_store_dword %s, off, s[12:15], s53 sc1" % v(VTAG))
        a("s_mov_b64 exec, -1")
        a.label("L_nohint")
    B = 64
    for ks in range(2):
        for i in range(4):
            for hf in range(2):
                a("ds_read_b64_tr_b16 %s, v11 offset:%d" % (v(B + 16 * ks + 4 * i + 2 * hf, 2), ks * 32 * PITCH + hf * 16 * PITCH + i * 32))
    if not HF:
        flag_store(a)
    ACC = 96
    for ks in range(2):
        for i in range(4):
            a.wait_lg_for(v(B + 16 * ks + 4 * i, 4))
            acc = v(ACC + 4 * i, 4)
            a("v_mfma_f32_16x16x32_bf16 %s, %s, %s, %s" % (acc, v(WA + 4 * ks, 4), v(B + 16 * ks + 4 * i, 4), "0" if ks == 0 else acc))
    O = 16
    for i in range(4):
        for p in range(2):
            a("v_cvt_pk_bf16_f32 %s, %s, %s" % (v(O + 4 * p + i), v(ACC + 4 * i + 2 * p), v(ACC + 4 * i + 2 * p + 1)))
    for p in range(2):
        a("buffer_store_dwordx4 %s, v13, s[12:15], %s offen sc1" % (v(O + 4 * p, 4), s(54 + p)))
    stamp(a, 6)
    a("s_cmp_lg_u32 s2, %d" % XWG)
    a("s_cbranch_scc1 L_notx")
    a("s_call_b64 s[100:101], L_setup")
    a("s_branch L_p2")
    a.label("L_notx")
    a("s_cmp_lt_u32 s4, 7")
    a("s_cbranch_scc1 L_ffn")
    if not TOUCH:
        a("s_branch L_done")
    if ADEL == 2:
        a("s_waitcnt vmcnt(0)")
    a("s_sub_u32 s44, s4, 7")
    a("s_lshl3_add_u32 s44, s44, s5")
    for k in range(2):
        touch(a, 1, 196 + k, k == 0)
        if k == 0:
            a("s_add_u32 s44, s44, 64")
            a("s_cmp_ge_u32 s44, 96")
            a("s_cbranch_scc1 L_done")
    a("s_branch L_done")
    dft_block = a.lines[mark:]
    del a.lines[mark:]
    a.label("L_notdft")
    a.join(st0)
    a("s_sub_u32 s59, s2, 128")
    srd(a, 36, 512 * 6144)
    a("s_cmp_ge_u32 s4, 22")
    st1 = a.fork()
    a("s_cbranch_scc1 L_notmod")
    srd(a, 32, 1024)
    a("""
    s_sub_u32 s6, s2, 128
    s_lshl_b32 s48, s6, 7
    """)
    for i in range(1, 8):
        a("s_add_u32 %s, s48, %d" % (s(48 + i), 6144 * i))
    a("""
    v_lshrrev_b32 v4, 3, v0
    v_and_b32 v5, 7, v0
    v_mul_u32_u24 v6, 0xc000, v4
    v_lshl_add_u32 v6, v5, 4, v6
    v_and_b32 v7, 3, v0
    v_lshlrev_b32 v7, 2, v7
    v_lshl_add_u32 v7, v4, 4, v7
    s_waitcnt lgkmcnt(0)
    s_mov_b64 s[36:37], s[26:27]
    s_mov_b64 s[32:33], s[24:25]
    """)
    stamp(a, 1)
    a("buffer_load_dword v8, v7, s[32:35], 0 offen")
    W = 16
    for i in range(8):
        a("buffer_load_dwordx4 %s, v6, s[36:39], %s offen" % (v(W + 4 * i, 4), s(48 + i)))
    a("s_load_dword s47, s[12:13], 0x%x" % WS_GEN)
    if MODFIRST == 2:
        a("s_cmp_lt_u32 s5, 4")
        a("s_cbranch_scc1 L_mod")
    if MODFIRST != 1:
        a("s_call_b64 s[100:101], L_setup")
        if not ROWL:
          a.vm += [Ins("buffer_load_dwordx4 %s, v250, s[8:11], 0 offen" % v(r, 4)) for r in (100, 104, 108)] + [Ins("buffer_store_dwordx4 v[252:255], v250, s[12:15], 0 offen")]
    a("s_branch L_mod")
    mark = len(a.lines)
    a.label("L_mod")
    a("""
    s_mov_b32 s44, 0x05040100
    s_mov_b32 s46, 0x07060302
    s_lshr_b32 s48, s6, 3
    s_cmp_eq_u32 s48, 1
    s_cselect_b32 s50, 1.0, 0
    s_cmp_eq_u32 s48, 4
    s_cselect_b32 s50, 1.0, s50
    v_lshlrev_b32 v6, 1, v2
    v_lshl_add_u32 v6, v5, 3, v6
    v_and_b32 v7, 15, v6
    v_lshrrev_b32 v9, 4, v6
    v_lshl_add_u32 v10, v7, 2, v9
    v_and_b32 v7, 3, v6
    v_lshl_add_u32 v7, v9, 2, v7
    v_bfe_u32 v9, v6, 2, 2
    v_lshl_add_u32 v7, v9, 4, v7
    v_lshlrev_b32 v9, 8, v3
    v_lshl_add_u32 v10, v10, 2, v9
    v_lshl_add_u32 v7, v7, 2, v9
    s_lshl_b32 s58, s6, 8
    """)
    for j in range(8):
        a("v_mov_b32 %s, 0" % v(48 + j))
    stamp(a, 2)
    a.wait_vm_for("v8")
    get_tag(a)
    stamp(a, 3)
    a("v_lshlrev_b32 v11, 16, v8")
    a("v_and_b32 v12, 0xffff0000, v8")
    a("v_mul_f32 v13, %s, v11" % f32(-LOG2E))
    a("v_mul_f32 v14, %s, v12" % f32(-LOG2E))
    a("""
    v_exp_f32 v13, v13
    v_exp_f32 v14, v14
    v_add_f32 v13, 1.0, v13
    v_add_f32 v14, 1.0, v14
    v_rcp_f32 v13, v13
    v_rcp_f32 v14, v14
    v_mul_f32 v11, v11, v13
    v_mul_f32 v12, v12, v14
    v_cvt_pk_bf16_f32 v8, v11, v12
    """)
    for p in range(4):
        a("v_mov_b32_dpp %s, v8 quad_perm:[%d,%d,%d,%d] row_mask:0xf bank_mask:0xf" % (v(12 + p), p, p, p, p))
    for p in range(4):
        a.wait_vm_for(v(W + 8 * p, 8))
        if ROWL and p == 3:
            if STAMPS:
                a("s_waitcnt lgkmcnt(0)")
            a("s_call_b64 s[100:101], L_rows")
        for jj in range(4):
            a("v_perm_b32 %s, %s, %s, s44" % (v(56 + 2 * jj), v(W + 8 * p + 4 + jj), v(W + 8 * p + jj)))
            a("v_perm_b32 %s, %s, %s, s46" % (v(57 + 2 * jj), v(W + 8 * p + 4 + jj), v(W + 8 * p + jj)))
        for j in range(8):
            a("v_dot2c_f32_bf16 %s, %s, %s" % (v(48 + j), v(12 + p), v(56 + j)))
    stamp(a, 4)
    if MH == 0:
        flag_store(a, 7)
    for j in range(4):
        a("v_permlane32_swap_b32 %s, %s" % (v(48 + j), v(52 + j)))
    for j in range(4):
        a("v_add_f32 %s, %s, %s" % (v(48 + j), v(48 + j), v(52 + j)))
    for j in range(2):
        a("v_permlane16_swap_b32 %s, %s" % (v(48 + j), v(50 + j)))
    for j in range(2):
        a("v_add_f32 %s, %s, %s" % (v(48 + j), v(48 + j), v(50 + j)))
    dpp_sum(a, [48, 49], ROR[:1])
    a("""
    s_mov_b32 exec_lo, 0x00ff00ff
    s_mov_b32 exec_hi, 0x00ff00ff
    s_cmp_lt_u32 s6, 16
    s_cbranch_scc1 L_mod_w4
    ds_write_b64 v7, v[48:49]
    s_branch L_mod_w
    """)
    a.label("L_mod_w4")
    a("ds_write2_b32 v10, v48, v49 offset0:0 offset1:4")
    a.label("L_mod_w")
    a("s_mov_b64 exec, -1")
    if MODFIRST == 2:
        a("s_cmp_ge_u32 s5, 4")
        a("s_cbranch_scc1 L_mod_b")
        a("s_call_b64 s[100:101], L_setup")
        a.label("L_mod_b")
    a("""
    s_waitcnt lgkmcnt(0)
    s_barrier
    """)
    if MH == 1:
        flag_store(a, 1)
    stamp(a, 5)
    a("""
    s_cmp_lg_u32 s5, 0
    s_cbranch_scc1 L_mod_end
    s_mov_b64 exec, 0xffff
    """)
    for k in range(8):
        a("ds_read_b128 %s, v250 offset:%d" % (v(16 + 4 * k, 4), 256 * k))
    a("v_mov_b32 v49, v249")
    a("v_mov_b32 v51, v249")
    for k in range(0, 8, 2):
        a.wait_lg_for(v(16 + 4 * k, 8))
        a("v_pk_add_f32 %s, %s, %s" % (v(16 + 4 * k, 2), v(16 + 4 * k, 2), v(20 + 4 * k, 2)))
        a("v_pk_add_f32 %s, %s, %s" % (v(18 + 4 * k, 2), v(18 + 4 * k, 2), v(22 + 4 * k, 2)))
    a("""
    v_pk_add_f32 v[16:17], v[16:17], v[24:25]
    v_pk_add_f32 v[18:19], v[18:19], v[26:27]
    v_pk_add_f32 v[32:33], v[32:33], v[40:41]
    v_pk_add_f32 v[34:35], v[34:35], v[42:43]
    v_pk_add_f32 v[16:17], v[16:17], v[32:33]
    v_pk_add_f32 v[18:19], v[18:19], v[34:35]
    v_cvt_pk_bf16_f32 v48, v16, v17
    v_cvt_pk_bf16_f32 v50, v18, v19
    s_cmp_eq_u32 s50, 0
    s_cbranch_scc1 L_mod_st
    v_lshlrev_b32 v16, 16, v48
    v_and_b32 v17, 0xffff0000, v48
    v_lshlrev_b32 v18, 16, v50
    v_and_b32 v19, 0xffff0000, v50
    v_pk_add_f32 v[16:17], v[16:17], 1.0 op_sel_hi:[1,0]
    v_pk_add_f32 v[18:19], v[18:19], 1.0 op_sel_hi:[1,0]
    v_cvt_pk_bf16_f32 v48, v16, v17
    v_cvt_pk_bf16_f32 v50, v18, v19
    """)
    a.label("L_mod_st")
    a("buffer_store_dwordx4 v[48:51], v250, s[12:15], s58 offen sc1")
    a("s_mov_b64 exec, -1")
    if MH == 2:
        flag_store(a)
    a.label("L_mod_end")
    if MODFIRST == 1:
        a("s_call_b64 s[100:101], L_setup")
    mod_block = a.lines[mark:]
    del a.lines[mark:]
    a.label("L_notmod")
    a.join(st1)
    a("""
    s_sub_u32 s58, s4, 22
    s_lshl3_add_u32 s7, s58, s5
    s_mul_i32 s7, s7, 0x6000
    s_lshl_b32 s44, s3, 7
    s_add_u32 s7, s7, s44
    s_add_u32 s7, s7, 0x120000
    s_add_u32 s44, s7, 4096
    v_mul_u32_u24 v4, 6144, v2
    v_bfe_u32 v5, v0, 3, 1
    v_lshl_add_u32 v4, v5, 10, v4
    v_and_b32 v5, 7, v0
    v_lshl_add_u32 v4, v5, 4, v4
    s_waitcnt lgkmcnt(0)
    s_mov_b64 s[36:37], s[26:27]
    """)
    if HELP == 2:
        a("s_cmp_lt_u32 s4, 29")
        a("s_cbranch_scc1 L_nohelp")
    if HELP:
        a("buffer_load_dwordx4 v[180:183], v4, s[36:39], s7 offen")
        a("buffer_load_dwordx4 v[184:187], v4, s[36:39], s7 offen offset:2048")
        a("buffer_load_dwordx4 v[188:191], v4, s[36:39], s44 offen")
    a.label("L_nohelp")
    a("s_load_dword s47, s[12:13], 0x%x" % WS_GEN)
    a("s_call_b64 s[100:101], L_setup")
    get_tag(a)
    if BT:
        a("s_cmp_ge_u32 s5, %d" % BT)
        a("s_cbranch_scc1 L_p2")
        a("s_mul_i32 s44, s58, %d" % BT)
        a("s_add_u32 s44, s44, s5")
        touch(a, 0, 195, True)
    a("s_branch L_p2")
    setup(a)
    a.lines += dft_block + mod_block
    a.label("L_p2", reset=True)
    a("v_add_u32 v160, %d, v250" % LDS_TAB)
    a("s_barrier")
    for k, r in enumerate((SA, SA + 4, TC, TC + 4, TS, TS + 4, FR, FI, G, G + 4, G + 8, G + 12)):
        a("ds_read_b128 %s, v160 offset:%d" % (v(r, 4), 1024 * k))
    a.vm += [Ins("buffer_load_dwordx2 %s, v7, s[8:11], 0 offen" % v(r, 2)) for r in (100, 102, 104, 106, 108, 110)]
    a("""
    s_lshl_b32 s45, s59, 12
    """)
    a("s_add_u32 s45, s45, 0x%x               ; candidate slots of this workgroup" % WS_CAND)
    srd(a, 28, 2048 * 1024)
    a("""
    s_lshl_b32 s56, s5, 6
    s_add_u32 s56, s56, s61
    s_sub_u32 s57, 2048, s56
    s_lshl_b32 s50, s57, 10
    s_lshl_b32 s49, s56, 10
    v_lshlrev_b32 v7, 5, v1
    v_lshl_add_u32 v7, v2, 3, v7          ; 32n + 8q
    s_lshl1_add_u32 s52, s4, s5
    s_and_b32 s52, s52, 7
    s_lshl_b32 s53, s52, 8
    v_lshlrev_b32 v4, 4, v1
    v_add_u32 v4, s53, v4                 ; cb*256 + n*16
    v_lshl_add_u32 v5, v2, 11, v4
    v_add_u32 v179, 0x8000, v5
    s_lshl_b32 s40, s60, 16
    s_lshl_b32 s53, s52, 3
    """)
    a("s_add_u32 s40, s40, 0x%x" % WS_INTER)
    a("""
    s_add_u32 s41, s40, 0x2000
    s_add_u32 s42, s40, 0x4000
    s_add_u32 s43, s40, 0x6000
    v_mul_u32_u24 v8, 80, v1
    v_mul_u32_u24 v9, 5120, v2
    v_add3_u32 v9, v9, s53, v8
    v_mul_u32_u24 v12, 2560, v3
    v_lshl_add_u32 v10, v2, 4, v8
    v_or_b32 v11, s61, v2
    v_cmp_eq_u32 vcc, 0, v11
    v_mov_b32 v11, 0x45000000
    v_cndmask_b32 v11, 0, v11, vcc
    """)
    a("v_add_u32 v9, %d, v9                   ; U write address" % LDS_U)
    a("v_add_u32 v12, %d, v12                 ; scratch row of this wave" % LDS_SCR)
    a("v_sub_u32 v176, v12, v10")
    a("v_add_u32 v176, %d, v176               ; mirrored position of elements 1..3 (g = 1)" % (15 * 80 + 52))
    a("v_add_u32 v178, 1280, v176")
    a("v_add_u32 v14, v10, v12")
    a("v_add_u32 v10, %d, v14                 ; U read address" % ((LDS_U - LDS_SCR) & 0xffffffff))
    a("v_cmp_eq_u32 vcc, 0, v2")
    a("v_cndmask_b32 v177, 12, 28, vcc")
    a("v_add_u32 v177, v177, v176")
    a("v_add_u32 v196, 1280, v177")
    a("v_cmp_eq_u32 vcc, 0, v250")
    a("v_cndmask_b32 v196, v196, v12, vcc")
    a("v_add_u32 v15, v12, v250")
    a("v_add_u32 v12, v12, v7")
    a("""
    s_lshl_b32 s46, s59, 5
    s_lshl2_add_u32 s46, s5, s46
    s_mov_b32 s38, 0xffffe000
    s_mov_b32 s39, 0xffffe000
    s_cmp_eq_u32 s56, 0
    s_cselect_b32 s39, 0, s39
    s_cmp_lg_u32 s59, 128
    s_cbranch_scc1 L_live
    s_mov_b32 s39, 0
    s_cmp_eq_u32 s5, 0
    s_cselect_b32 s38, s38, 0
    """)
    a.label("L_live")
    a("s_cmp_eq_u32 s38, 0")
    a("s_cselect_b32 s49, 0x%x, s49" % OOB)
    a("s_cselect_b32 s36, 0, s46")
    a("s_add_u32 s37, s46, 2")
    a("s_cmp_eq_u32 s39, 0")
    a("s_cselect_b32 s50, 0x%x, s50" % OOB)
    a("s_cselect_b32 s37, 0, s37")
    a("s_lshl_b32 s51, s3, 7")
    a("s_add_u32 s51, s51, 0x%x" % WS_PRE)
    a("s_xor_b32 s53, s4, 31")
    a("s_or_b32 s53, s53, s5")
    a("s_cselect_b32 s51, 0x%x, s51" % OOB)
    stamp(a, 7)
    L = 16
    XU, WU, XM, GAM, PP, PM = 112, 120, 160, 168, 180, 188
    VEC = 128
    GA, SB, CB, GB = VEC, VEC + 8, VEC + 16, VEC + 24

    def inter_load(ks, r):
        a("buffer_load_dwordx4 %s, %s, s[12:15], %s offen sc1" % (v(L + 16 * ks + 4 * r, 4), "v179" if ks else "v5", s(40 + r)))

    def unpack(dst, src):
        for d in range(4):
            a("v_lshlrev_b32 %s, 16, %s" % (v(dst + 2 * d), v(src + d)))
            a("v_and_b32 %s, 0xffff0000, %s" % (v(dst + 2 * d + 1), v(src + d)))

    def mirror_write(src, a0, a123, off=0):
        a("ds_write_b32 %s, %s offset:%d" % (a0, v(src), off))
        a("ds_write_b32 %s, %s offset:%d" % (a123, v(src + 1), off + 8))
        a("ds_write_b32 %s, %s offset:%d" % (a123, v(src + 2), off + 4))
        a("ds_write_b32 %s, %s offset:%d" % (a123, v(src + 3), off))

    def mirror(dst, src):
        for b, a0, a123 in ((src, "v196", "v178"), (src + 4, "v177", "v176")):
            a("ds_write_b32 %s, %s" % (a0, v(b)))
            a("ds_write_b32 %s, %s offset:8" % (a123, v(b + 1)))
            a("ds_write2_b32 %s, %s, %s offset0:1 offset1:0" % (a123, v(b + 2), v(b + 3)))
        a("ds_read_b128 %s, v14" % v(dst, 4))
        a("ds_read_b128 %s, v14 offset:1280" % v(dst + 4, 4))

    def mod_loads():
        a("buffer_load_dwordx4 v[48:51], v4, s[12:15], 0 offen offset:%d sc1" % (WS_MOD + 2048))
        a("buffer_load_dwordx4 v[52:55], v4, s[12:15], 0 offen offset:%d sc1" % WS_MOD)
        a("buffer_load_dwordx4 v[64:67], v197, s[12:15], s55 offen sc1")

    def vec_read(reg, k):
        a("ds_read_b128 %s, v198 offset:%d" % (v(reg, 4), 2560 * k))
        a("ds_read_b128 %s, v198 offset:%d" % (v(reg + 4, 4), 2560 * k + 1280))

    def tag_check(regs_):
        a("v_xor_b32 v88, %s, v249" % v(regs_[0]))
        a("v_xor_b32 v89, %s, v249" % v(regs_[1]))
        for k, r in enumerate(regs_[2:]):
            a("v_bitop3_b32 %s, %s, %s, v249 bitop3:0xf6" % (v(88 + k % 2), v(88 + k % 2), v(r)))
        a("v_or_b32 v88, v88, v89")
        a("v_cmp_ne_u32 vcc, 0, v88")

    def widen(base, n):
        for b in range(base, base + n, 2):
            a("v_and_b32 %s, 0xffff0000, %s" % (v(b + 1), v(b)))
            a("v_lshlrev_b32 %s, 16, %s" % (v(b), v(b)))

    a("s_add_u32 s55, s62, %d" % (WS_MOD + 4096))
    a("""
    v_and_b32 v197, 3, v0
    v_lshlrev_b32 v197, 4, v197
    v_lshl_add_u32 v197, v2, 6, v197
    v_bfe_u32 v68, v0, 2, 2
    v_lshl_add_u32 v197, v68, 8, v197
    v_mul_u32_u24 v68, 80, v1
    v_lshl_add_u32 v198, v2, 4, v68
    """)
    a("v_add_u32 v198, %d, v198               ; vector read address" % LDS_VEC)
    a("""
    s_mul_i32 s53, s5, 1280
    v_add_u32 v90, s53, v198
    s_bitcmp1_b32 s5, 0
    s_cselect_b64 vcc, -1, 0
    v_cndmask_b32 v91, v196, v177, vcc
    v_cndmask_b32 v199, v178, v176, vcc
    s_lshr_b32 s53, s5, 1
    s_sub_u32 s53, s53, s5
    s_mul_i32 s53, s53, 2560
    """)
    a("s_add_u32 s53, s53, %d" % (LDS_VEC + 4 * 2560 - LDS_SCR))
    a("v_add_u32 v91, s53, v91")
    a("v_add_u32 v199, s53, v199")
    a("s_waitcnt vmcnt(0)")
    a("""
    ds_write_b128 v15, v[100:103]
    ds_write_b128 v15, v[104:107] offset:1024
    ds_read_b64 v[56:57], v12
    ds_read_b64 v[58:59], v12 offset:512
    ds_read_b64 v[84:85], v12 offset:1024
    ds_read_b64 v[86:87], v12 offset:1536
    ds_write_b128 v15, v[108:111]
    ds_read_b64 v[60:61], v12
    ds_read_b64 v[62:63], v12 offset:512
    s_waitcnt lgkmcnt(0)
    """)
    unpack(XU, 56)
    unpack(72, 84)
    unpack(WU, 60)
    mirror(XM, 72)
    a("s_bitcmp1_b32 s5, 0")
    a("s_cselect_b64 vcc, -1, 0")
    for j in range(4):
        a("v_cndmask_b32 %s, %s, %s, vcc" % (v(92 + j), v(WU + j), v(WU + 4 + j)))
    a("s_cmp_lt_u32 s5, 2")
    a("s_cselect_b64 vcc, -1, 0")
    for j in range(4):
        a("v_cndmask_b32 %s, %s, 1.0, vcc" % (v(92 + j), v(92 + j)))
    a("s_mov_b32 s54, %d" % SPIN)
    a("s_waitcnt lgkmcnt(0)")
    if PROG:
        a("""
        v_and_b32 v8, 7, v0
        v_bfe_u32 v6, v0, 3, 2
        v_lshl_add_u32 v8, v6, 5, v8
        s_lshr_b32 s52, s52, 1
        """)
        a("v_lshlrev_b32 v8, %d, v8" % FSH)
        a("s_lshl_b32 s52, s52, %d" % (FSH + 3))
        a("s_add_u32 s52, s52, 0x%x" % WS_FLAG)
        a("s_mov_b32 s32, -1")
        a("s_mov_b32 s33, 0")
        a("s_mov_b32 s48, 0")
        a.label("L_poll1")
        a("s_mov_b64 exec, s[32:33]")
        a("buffer_load_dword v6, v8, s[12:15], s52 offen sc1")
        a("s_waitcnt vmcnt(0)")
        a("v_cmp_ne_u32 vcc, v6, %s" % v(VTAG))
        a("s_mov_b64 exec, -1")
        a("""
        s_mov_b32 s32, vcc_lo
        s_lshr_b32 s34, s32, 1
        s_or_b32 s34, s34, s32
        s_lshr_b32 s35, s34, 2
        s_or_b32 s34, s34, s35
        s_or_b32 s34, s34, s48
        s_andn2_b32 s34, 0x11111111, s34
        s_cbranch_scc0 L_skip7
        s_or_b32 s48, s48, s34
        """)
        for i in range(8):
            a("s_bitcmp1_b32 s34, %d" % (4 * i))
            a("s_cbranch_scc0 L_skip%d" % i)
            inter_load(i // 4, i % 4)
            a.label("L_skip%d" % i)
        a("s_cmp_eq_u32 s32, 0")
        poll_tail(a, "L_poll1")
        stamp(a, 8)
        a("s_mov_b32 s54, %d" % SPIN)
        a("s_branch L_inter_go")
        a.vm = []
    else:
        a("s_cmp_ge_u32 s5, 2")
        a("s_cbranch_scc1 L_poll1_ok")
        a("v_lshlrev_b32 v8, %d, v0" % FSH)
        a("s_mov_b32 s52, 0x%x" % WS_FLAG)
        a.label("L_poll1")
        a("buffer_load_dword v6, v8, s[12:15], s52 offen sc1")
        a("s_waitcnt vmcnt(0)")
        a("v_cmp_ne_u32 vcc, v6, %s" % v(VTAG))
        a("s_and_b64 exec, exec, vcc")
        a("s_cmp_eq_u64 exec, 0")
        poll_tail(a, "L_poll1")
        a("s_mov_b64 exec, -1")
        a("s_mov_b32 s54, %d" % SPIN)
        a("s_barrier")
        stamp(a, 8)
    a.label("L_inter")
    for ks in range(2):
        for r in range(4):
            inter_load(ks, r)
    a.label("L_inter_go")
    mod_loads()
    ACC = 96
    for ks in range(2):
        a.wait_vm_for(v(L, 32) if PROG else v(L + 16 * ks, 16))
        if ks == 1 - PROG:
            stamp(a, 9)
        TT = 68 if ks == 0 else 16
        b = L + 16 * ks
        for i in range(4):
            for hp in range(2):
                o = i & 1
                a("v_pk_mov_b32 %s, %s, %s op_sel:[%d,%d]" % (v(TT + 4 * i + 2 * hp, 2), v(b + 8 * hp + (i & 2), 2), v(b + 8 * hp + 4 + (i & 2), 2), o, o))
        for i in range(4):
            acc = v(ACC + 4 * i, 4)
            a("v_mfma_f32_16x16x32_bf16 %s, %s, %s, %s" % (acc, v(SA + 4 * ks, 4), v(TT + 4 * i, 4), "0" if ks == 0 else acc))
    a("""
    v_max3_u32 v6, v68, v69, v70
    v_max3_u32 v8, v71, v16, v17
    v_max3_u32 v6, v6, v18, v19
    v_max_u32 v6, v6, v8
    v_cmp_eq_u32 vcc, -1, v6
    s_waitcnt vmcnt(0)
    s_cmp_eq_u64 vcc, 0
    """)
    poll_tail(a, "L_inter")
    a("s_mov_b32 s54, %d" % SPIN)
    a("s_branch L_modv_chk")
    a.label("L_modv")
    mod_loads()
    a("s_waitcnt vmcnt(0)")
    a.label("L_modv_chk")
    tag_check([49, 51, 53, 55, 65, 67])
    a("v_and_b32 v65, 0xffff0000, v64")
    a("v_and_b32 v67, 0xffff0000, v66")
    a("s_cmp_eq_u64 vcc, 0")
    poll_tail(a, "L_modv")
    a("""
    v_lshlrev_b32 v64, 16, v64
    v_lshlrev_b32 v66, 16, v66
    ds_write_b128 v90, v[64:67]
    s_bitcmp1_b32 s5, 1
    s_cbranch_scc1 L_nop
    v_pk_mul_f32 v[92:93], v[92:93], v[64:65]
    v_pk_mul_f32 v[94:95], v[94:95], v[66:67]
    ds_write_b32 v91, v92
    ds_write_b32 v199, v93 offset:8
    ds_write2_b32 v199, v94, v95 offset0:1 offset1:0
    s_cmp_lt_u32 s5, 2
    s_cbranch_scc1 L_nop
    ds_write_b128 v90, v[92:95] offset:7680
    """)
    a.label("L_nop")
    widen(48, 8)
    for i in range(4):
        a("v_mul_f32 %s, v11, %s" % (v(52 + i), v(52 + i)))
    if FINE == 1:
        stamp(a, 1)
    P = 32
    for i in range(4):
        c = ACC + 4 * i
        a("v_fma_f32 %s, %s, %s, %s" % (v(c), v(c), v(48 + i), v(52 + i)))
        a("v_mul_f32 %s, %s, %s" % (v(c + 1), v(c + 1), v(48 + i)))
        a("v_pk_mul_f32 %s, %s, %s op_sel:[0,%d] op_sel_hi:[1,%d]" % (v(c + 2, 2), v(c + 2, 2), v(48 + (i & 2), 2), i & 1, i & 1))
        for tt in range(2):
            a("v_cvt_pk_bf16_f32 %s, %s, %s" % (v(P + 4 * tt + 2 * (i % 2) + i // 2), v(c + 2 * tt), v(c + 2 * tt + 1)))
        if i >= 2:
            for tt in range(2):
                a("ds_write_b64 v9, %s offset:%d" % (v(P + 4 * tt + 2 * (i - 2), 2), tt * 2560 + (i - 2) * 1280))
    a("s_waitcnt lgkmcnt(0)")
    if FINE == 1:
        stamp(a, 2)
    a("s_barrier")
    if FINE == 1:
        stamp(a, 3)
    D = 24
    a("ds_read_b128 %s, v10" % v(D, 4))
    a("ds_read_b128 %s, v10 offset:1280" % v(D + 4, 4))

    def notice():
        a("s_mov_b64 exec, 1")
        a("buffer_store_dword %s, off, s[12:15], s51 sc1" % v(VTAG))
        a("s_mov_b64 exec, -1")
    if PRE == 1:
        notice()
    a("v_mov_b32 v80, s38")
    a("v_mov_b32 v81, s36")
    a("v_lshlrev_b32 v11, 3, v3")
    a("v_add_u32 v11, %d, v11" % LDS_KEY)
    a("v_mov_b32 v13, %d" % LDS_KEY)
    a("s_mov_b32 exec_lo, 0")
    a("v_mov_b32 v80, s39")
    a("v_mov_b32 v81, s37")
    a("v_add_u32 v11, 4, v11")
    a("s_mov_b32 exec_lo, -1")
    BR, BI = 32, 40
    for h in range(2):
        a.wait_lg_for(v(D + 4 * h, 4))
        a("v_mfma_f32_16x16x32_bf16 %s, %s, %s, 0" % (v(BR + 4 * h, 4), v(D + 4 * h, 4), v(FR, 4)))
        a("v_mfma_f32_16x16x32_bf16 %s, %s, %s, 0" % (v(BI + 4 * h, 4), v(D + 4 * h, 4), v(FI, 4)))
    A2 = 16
    Y = 64
    for h in range(2):
        for j in range(0, 4, 2):
            br, bi, tc, ts = v(BR + 4 * h + j, 2), v(BI + 4 * h + j, 2), v(TC + 4 * h + j, 2), v(TS + 4 * h + j, 2)
            a("v_pk_mul_f32 %s, %s, %s" % (v(48 + j, 2), br, tc))
            a("v_pk_mul_f32 %s, %s, %s" % (v(52 + j, 2), bi, tc))
            a("v_pk_fma_f32 %s, %s, %s, %s" % (v(48 + j, 2), bi, ts, v(48 + j, 2)))
            a("v_pk_fma_f32 %s, %s, %s, %s neg_lo:[1,0,0] neg_hi:[1,0,0]" % (v(52 + j, 2), br, ts, v(52 + j, 2)))
        if h == 0:
            vec_read(PP, 5)
            vec_read(GA, 0)
        else:
            vec_read(GAM, 4)
            vec_read(PM, 6)
        for k in range(4):
            a("v_cvt_pk_bf16_f32 %s, %s, %s" % (v(A2 + 4 * h + k), v(48 + k), v(52 + k)))
        for gg in range(2):
            y = v(Y + 4 * gg, 4)
            a("v_mfma_f32_16x16x32_bf16 %s, %s, %s, %s" % (y, v(A2 + 4 * h, 4), v(G + 8 * h + 4 * gg, 4), "0" if h == 0 else y))
    if FINE:
        stamp(a, 4)
    if PRE == 2:
        notice()
    a("v_mov_b32 v57, %s" % v(VTAG))
    a("v_mov_b32 v59, %s" % v(VTAG))
    a("s_lshl_b32 s58, s59, %d" % KSH)
    a("s_add_u32 s58, s58, 0x%x" % WS_KEYS)
    a("s_cmp_eq_u32 s5, 0")
    a("s_cselect_b32 s58, s58, 0x%x" % OOB)
    rows = ((XU, GA, PP, 32), (XM, GAM, PM, 40))
    a.wait_lg_for(v(PP, 8))
    a("v_pk_add_f32 v[38:39], %s, %s" % (v(PP, 2), v(PP + 2, 2)))
    a("v_pk_add_f32 v[46:47], %s, %s" % (v(PP + 4, 2), v(PP + 6, 2)))
    a("v_pk_add_f32 v[38:39], v[38:39], v[46:47]")
    a("v_add_f32 v38, v38, v39")
    a("v_mov_b32 v46, v38")
    for xx, ga, pp, tp in rows:
        a.wait_lg_for(v(ga, 8))
        for e in range(0, 8, 2):
            a("v_pk_fma_f32 %s, %s, %s, %s" % (v(xx + e, 2), v(ga + e, 2), v(Y + e, 2), v(xx + e, 2)))
    XN = 72
    for xx, ga, pp, tp in rows:
        a.wait_lg_for(v(pp, 8))
        a("v_pk_add_f32 %s, %s, %s" % (v(tp, 2), v(xx, 2), v(xx + 2, 2)))
        a("v_pk_mul_f32 %s, %s, %s" % (v(tp + 2, 2), v(xx, 2), v(xx, 2)))
        a("v_pk_mul_f32 %s, %s, %s" % (v(tp + 4, 2), v(xx, 2), v(pp, 2)))
        for e in range(2, 8, 2):
            if e > 2:
                a("v_pk_add_f32 %s, %s, %s" % (v(tp, 2), v(tp, 2), v(xx + e, 2)))
            a("v_pk_fma_f32 %s, %s, %s, %s" % (v(tp + 2, 2), v(xx + e, 2), v(xx + e, 2), v(tp + 2, 2)))
            a("v_pk_fma_f32 %s, %s, %s, %s" % (v(tp + 4, 2), v(xx + e, 2), v(pp + e, 2), v(tp + 4, 2)))
        for k in range(3):
            a("v_add_f32 %s, %s, %s" % (v(tp + 2 * k), v(tp + 2 * k), v(tp + 2 * k + 1)))
    for k in (3, 0, 1, 2):
        a("v_permlane32_swap_b32 %s, %s" % (v(32 + 2 * k), v(40 + 2 * k)))
    for k in (3, 0, 1, 2):
        a("v_add_f32 %s, %s, %s" % (v(32 + 2 * k), v(32 + 2 * k), v(40 + 2 * k)))
    a("v_permlane16_swap_b32 v32, v34")
    a("v_permlane16_swap_b32 v36, v38")
    a("v_add_f32 v32, v32, v34")
    a("v_add_f32 v36, v36, v38")
    if EARLYH:
        extra = []
        for b, a0, a123 in ((XM, "v196", "v178"), (XM + 4, "v177", "v176")):
            extra += ["ds_write_b32 %s, %s" % (a0, v(b)), "ds_write_b32 %s, %s offset:8" % (a123, v(b + 1)), "ds_write2_b32 %s, %s, %s offset0:1 offset1:0" % (a123, v(b + 2), v(b + 3))]
        for k, mod in enumerate(ROR):
            for r in (32, 36):
                a("v_add_f32_dpp %s, %s, %s %s" % (v(r), v(r), v(r), mod))
            for t in extra[(k * 6) // 4:((k + 1) * 6) // 4]:
                a(t)
    else:
        dpp_sum(a, [32, 36], ROR)
    if FINE == 1:
        stamp(a, 5)
    if PRE == 3:
        notice()
    a("v_mov_b32_dpp v33, v32 %s" % BC[0])
    a("v_mov_b32_dpp v37, v36 %s" % BC[0])
    a("v_mul_f32 v33, %s, v33                 ; mean" % f32(1 / 512))
    a("v_mul_f32 v34, v33, v33")
    a("v_sub_f32 v34, %s, v34" % f32(EPS))
    a("v_fmac_f32 v34, %s, v32" % f32(1 / 512))
    a("v_rsq_f32 v34, v34")
    a("""
    v_fma_f32 v36, -v33, v36, v37
    v_mul_f32 v8, v36, v34
    v_ashrrev_i32 v9, 31, v8
    v_or_b32 v9, s63, v9
    v_xor_b32 v8, v8, v9
    v_and_or_b32 v8, v8, v80, v81
    s_mov_b32 exec_lo, 0x80000000
    s_mov_b32 exec_hi, 0x80000000
    ds_write_b32 v11, v8
    s_mov_b64 exec, -1
    v_mul_f32 v35, v33, v34
    s_cmp_lg_u32 s5, 0
    s_cbranch_scc1 L_noprio
    s_setprio 3
    """)
    a.label("L_noprio")
    a("s_waitcnt lgkmcnt(0)")
    stamp(a, 10)
    a("s_barrier")
    for k in range(4):
        a("ds_read_b128 %s, v13 offset:%d" % (v(16 + 4 * k, 4), 16 * k))
    a("""
    v_readlane_b32 s56, v8, 31
    v_readlane_b32 s57, v8, 63
    v_readlane_b32 s32, v34, 31
    v_readlane_b32 s33, v35, 31
    v_readlane_b32 s34, v34, 63
    v_readlane_b32 s35, v35, 63
    s_waitcnt lgkmcnt(2)
    v_max_u32 v56, v16, v17
    v_min_u32 v58, v16, v17
    """)
    for k in range(18, 30, 4):
        if k == 22:
            a("s_waitcnt lgkmcnt(0)")
        a("v_med3_u32 v60, v56, %s, %s" % (v(k), v(k + 1)))
        a("v_max3_u32 v56, v56, %s, %s" % (v(k), v(k + 1)))
        a("v_med3_u32 v61, v56, %s, %s" % (v(k + 2), v(k + 3)))
        a("v_max3_u32 v56, v56, %s, %s" % (v(k + 2), v(k + 3)))
        a("v_max3_u32 v58, v58, v60, v61")
    a("""
    v_med3_u32 v60, v56, v30, v31
    v_max3_u32 v56, v56, v30, v31
    v_max_u32 v60, v58, v60
    v_or_b32 v58, 1, v60
    s_mov_b64 exec, 1
    buffer_store_dwordx4 v[56:59], off, s[12:15], s58 sc1
    s_mov_b64 exec, -1
    s_setprio 0
    """)
    if FINE:
        stamp(a, 6)
    vec_read(CB, 2)
    vec_read(SB, 1)
    if EARLYH:
        a("ds_read_b128 %s, v14" % v(XN, 4))
        a("ds_read_b128 %s, v14 offset:1280" % v(XN + 4, 4))
        vec_read(GB, 3)
    else:
        vec_read(GB, 3)
        mirror(XN, XM)
    a("v_readfirstlane_b32 s60, v56")
    a("v_readfirstlane_b32 s61, v60")
    H, HM = 32, 88
    OUT, OUTM, HP, HPM = 40, 44, 48, 52
    for ri, (xx, hh, sp, o, hp) in enumerate(((XU, H, 32, OUT, HP), (XN, HM, 34, OUTM, HPM))):
        if ri:
            a("s_waitcnt lgkmcnt(0)")
        a("v_mov_b32 v60, %s" % s(sp + 1))
        for e in range(8):
            a("v_fma_f32 %s, %s, %s, -v60" % (v(hh + e), v(xx + e), s(sp)))
        a.wait_lg_for(v(VEC, 32))
        for e in range(0, 8, 2):
            a("v_pk_fma_f32 %s, %s, %s, %s" % (v(hh + e, 2), v(hh + e, 2), v(CB + e, 2), v(SB + e, 2)))
        for d in range(4):
            a("v_cvt_pk_bf16_f32 %s, %s, %s" % (v(hp + d), v(hh + 2 * d), v(hh + 2 * d + 1)))
        for e in range(0, 8, 2):
            a("v_pk_fma_f32 %s, %s, %s, %s" % (v(xx + e, 2), v(GB + e, 2), v(hh + e, 2), v(xx + e, 2)))
        for d in range(4):
            a("v_cvt_pk_bf16_f32 %s, %s, %s" % (v(o + d), v(xx + 2 * d), v(xx + 2 * d + 1)))
    a("""
    ds_write_b64 v12, v[40:41]
    ds_write_b64 v12, v[42:43] offset:512
    ds_write_b64 v12, v[44:45] offset:1024
    ds_write_b64 v12, v[46:47] offset:1536
    ds_read_b128 v[40:43], v15
    ds_read_b128 v[44:47], v15 offset:1024
    s_max_u32 s61, s61, 1
    """)
    for ri, (key, off, o, hp) in enumerate((("s56", "s49", OUT, HP), ("s57", "s50", OUTM, HPM))):
        a("s_mov_b32 s58, s45")
        a("s_cmp_eq_u32 %s, s60" % key)
        a("s_cbranch_scc1 L_cand%d" % ri)
        a("s_add_u32 s58, s45, 2048")
        a("s_cmp_eq_u32 %s, s61" % key)
        a("s_cselect_b32 s53, 1, 0")
        a("s_or_b32 %s, %s, s53" % (key, key))
        a("s_cmp_eq_u32 s53, 1")
        stc = a.fork()
        a("s_cbranch_scc1 L_cand%d" % ri)
        a("s_mov_b32 %s, 0" % key)
        a("s_waitcnt lgkmcnt(0)")
        a("buffer_store_dwordx4 %s, v250, s[28:31], %s offen%s" % (v(o, 4), off, OUTF))
        a("s_branch L_next%d" % ri)
        a.label("L_cand%d" % ri)
        a.join(stc)
        a("buffer_store_dwordx4 %s, v250, s[12:15], s58 offen sc1" % v(hp, 4))
        a("s_waitcnt lgkmcnt(0)")
        a("buffer_store_dwordx4 %s, v250, s[12:15], s58 offen offset:1024 sc1" % v(o, 4))
        a.label("L_next%d" % ri)
    a.label("L_tail", reset=True)
    a("""
    s_lshl_b32 s59, s5, 8
    s_add_u32 s59, s59, s2
    s_sub_u32 s59, s59, 192
    s_cmp_lt_u32 s59, 64
    s_cselect_b32 s59, 1, 0
    s_or_b32 s60, s59, s56
    s_or_b32 s60, s60, s57
    s_cbranch_scc0 L_done
    s_lshl_b32 s45, s3, 7
    """)
    a("s_add_u32 s45, s45, 0x%x" % WS_SEL)
    a("s_cmp_eq_u32 s59, 0")
    a("s_cbranch_scc1 L_sel_go")
    a("""
    s_lshl3_add_u32 s44, s3, s4
    s_sub_u32 s44, s44, 24
    s_lshr_b32 s48, s44, 2
    s_lshl_b32 s48, s48, 5
    s_and_b32 s46, s44, 3
    s_lshl2_add_u32 s48, s46, s48
    v_and_b32 v4, 3, v0
    v_lshrrev_b32 v5, 1, v2
    v_lshl_add_u32 v5, v5, 4, v4
    v_add_u32 v5, s48, v5
    v_and_b32 v8, 0x103, v5
    v_bfe_u32 v9, v5, 2, 2
    v_lshl_add_u32 v8, v9, 6, v8
    v_bfe_u32 v9, v5, 4, 4
    v_lshl_add_u32 v8, v9, 2, v8
    v_lshlrev_b32 v8, 2, v8
    """)
    a("ds_write_b128 v15, %s" % v(GB, 4))
    a("ds_write_b128 v15, %s offset:1024" % v(GB + 4, 4))
    a("ds_read_b32 v8, v8 offset:%d           ; gb[e]" % LDS_SCR)
    a("v_pk_mul_f32 v[62:63], %s, %s" % (v(SB, 2), v(WU, 2)))
    for e in range(2, 8, 2):
        a("v_pk_fma_f32 v[62:63], %s, %s, v[62:63]" % (v(SB + e, 2), v(WU + e, 2)))
    a("v_add_f32 v62, v62, v63")
    dpp_sum(a, [62], ROR + BC)
    a("v_readlane_b32 s58, v62, 63")
    a("""
    v_bfe_u32 v9, v0, 2, 4
    v_lshlrev_b32 v9, 12, v9
    v_lshl_add_u32 v9, v4, 4, v9
    s_lshl_b32 s40, s44, 6
    v_and_b32 v10, 1, v2
    v_cmp_eq_u32 s[52:53], 1, v10
    v_mov_b32 v36, 0
    v_mov_b32 v37, 0
    v_mov_b32 v38, 0
    v_mov_b32 v39, 0
    """)
    a("s_add_u32 s40, s40, 0x%x" % WS_PART)
    a("s_add_u32 s41, s40, 0x10000")
    a("s_add_u32 s42, s40, 0x20000")
    a("s_add_u32 s43, s40, 0x30000")
    a("s_waitcnt lgkmcnt(0)")
    a.label("L_sel_go")
    a("s_mov_b32 s54, %d" % SPIN)
    a.label("L_poll_sel")
    a("buffer_load_dwordx4 v[16:19], off, s[12:15], s45 sc1")
    a("s_waitcnt vmcnt(0)")
    a("v_cmp_eq_u32 vcc, v17, %s" % v(VTAG))
    a("v_cmp_eq_u32 s[60:61], v19, %s" % v(VTAG))
    a("s_and_b64 vcc, vcc, s[60:61]")
    a("s_cmp_eq_u64 vcc, -1")
    poll_tail(a, "L_poll_sel")
    stamp(a, 11)
    a("""
    v_readfirstlane_b32 s60, v16
    v_readfirstlane_b32 s61, v18
    """)
    if LO:
        for ri, (key, off, o) in enumerate((("s56", "s49", OUT), ("s57", "s50", OUTM))):
            a("s_cmp_eq_u32 %s, 0" % key)
            a("s_cbranch_scc1 L_lo%d" % ri)
            a("s_cmp_eq_u32 %s, s60" % key)
            a("s_cbranch_scc1 L_lo%d" % ri)
            a("s_cmp_eq_u32 %s, s61" % key)
            a("s_cbranch_scc1 L_lo%d" % ri)
            a("buffer_store_dwordx4 %s, v250, s[28:31], %s offen" % (v(o, 4), off))
            a.label("L_lo%d" % ri)
    a("""
    s_cmp_eq_u32 s59, 0
    s_cbranch_scc1 L_late_out
    v_cndmask_b32 v16, v16, v18, s[52:53]
    v_bfe_u32 v17, v16, 5, 8
    v_and_b32 v18, 1, v16
    v_lshlrev_b32 v19, 12, v17
    v_lshl_add_u32 v19, v18, 11, v19
    v_lshl_add_u32 v19, v5, 1, v19
    """)
    a("s_mov_b32 s55, 0x%x" % (WS_CAND + 1024))
    a("s_mov_b32 s54, %d" % SPIN)
    a.label("L_poll_base")
    a("""
    buffer_load_ushort v20, v19, s[12:15], s55 offen sc1
    v_and_b32 v21, 7, v17
    v_bfe_u32 v22, v17, 5, 2
    v_lshl_add_u32 v21, v22, 3, v21       ; slot
    v_bfe_u32 v22, v17, 3, 2
    v_lshl_add_u32 v22, v22, 9, v21
    v_subrev_u32 v23, 992, v22
    v_cmp_eq_u32 vcc, 0, v21
    v_cndmask_b32 v23, v22, v23, vcc
    v_cmp_gt_u32 vcc, 1024, v22
    v_cndmask_b32 v21, v23, v22, vcc
    v_lshrrev_b32 v22, 7, v17
    v_lshl_add_u32 v21, v22, 10, v21
    v_bfe_u32 v22, v16, 2, 3
    v_lshl_add_u32 v21, v22, 6, v21
    v_sub_u32 v22, 2048, v21
    v_and_b32 v23, 2, v16
    v_cmp_eq_u32 vcc, 0, v23
    v_cndmask_b32 v21, v22, v21, vcc
    v_lshlrev_b32 v21, 10, v21
    v_lshl_add_u32 v21, v5, 1, v21
    """)
    if FIN == 2:
        a("buffer_load_ushort v49, v21, s[28:31], 0 offen")
    a("""
    v_and_b32 v22, 0xffffe000, v16
    v_ashrrev_i32 v23, 31, v22
    v_not_b32 v23, v23
    v_or_b32 v23, s63, v23
    v_xor_b32 v22, v22, v23
    v_add_f32 v22, s58, v22
    """)
    a("v_mul_f32 v22, %s, v22" % f32(-LOG2E))
    a("""
    v_exp_f32 v22, v22
    v_add_f32 v22, 1.0, v22
    v_rcp_f32 v22, v22
    v_mul_f32 v22, v22, v8
    s_waitcnt vmcnt(0)
    v_cmp_eq_u32 vcc, 0xffff, v20
    s_cmp_eq_u64 vcc, 0
    """)
    poll_tail(a, "L_poll_base")
    a("s_mov_b32 s54, %d" % SPIN)
    a.label("L_poll_part")
    a("""
    buffer_load_dwordx4 v[24:27], v9, s[12:15], s40 offen sc1
    buffer_load_dwordx4 v[28:31], v9, s[12:15], s41 offen sc1
    buffer_load_dwordx4 v[32:35], v9, s[12:15], s42 offen sc1
    s_mov_b32 exec_hi, 0
    buffer_load_dwordx4 v[36:39], v9, s[12:15], s43 offen sc1
    s_mov_b32 exec_hi, -1
    s_waitcnt vmcnt(0)
    v_max3_u32 v48, v24, v28, v32
    v_max_u32 v48, v48, v36
    v_cmp_eq_u32 vcc, -1, v48
    s_cmp_eq_u64 vcc, 0
    """)
    poll_tail(a, "L_poll_part")
    stamp(a, 12)
    a("""
    v_pk_add_f32 v[24:25], v[24:25], v[28:29]
    v_pk_add_f32 v[26:27], v[26:27], v[30:31]
    v_pk_add_f32 v[32:33], v[32:33], v[36:37]
    v_pk_add_f32 v[34:35], v[34:35], v[38:39]
    v_pk_add_f32 v[24:25], v[24:25], v[32:33]
    v_pk_add_f32 v[26:27], v[26:27], v[34:35]
    v_permlane32_swap_b32 v24, v26
    v_permlane32_swap_b32 v25, v27
    v_pk_add_f32 v[24:25], v[24:25], v[26:27]
    v_permlane16_swap_b32 v24, v25
    v_add_f32 v24, v24, v25
    v_lshlrev_b32 v20, 16, v20
    """)
    dpp_sum(a, [24], ROR[:2])
    a("""
    v_fmac_f32 v20, v24, v22
    v_cvt_pk_bf16_f32 v20, v20, v20
    s_mov_b32 exec_lo, 0x000f000f
    s_mov_b32 exec_hi, 0x000f000f
    buffer_store_short v20, v21, s[28:31], 0 offen OUTF
    s_mov_b64 exec, -1
    s_cmp_lg_u32 s2, 192
    s_cbranch_scc1 L_late_out
    s_mov_b64 exec, 1
    """.replace(" OUTF", " sc1" if FIN == 1 else ""))
    a("s_mov_b32 s55, 0x%x" % WS_GEN)
    a("buffer_store_dword %s, off, s[12:15], s55" % v(VTAG))
    a("s_mov_b64 exec, -1")
    if PROBE >= 0 and not PFFN:
        probe_spin(a)
    a.label("L_late_out", reset=True)
    for ri, (key, off, o) in enumerate((("s56", "s49", OUT), ("s57", "s50", OUTM)) if not LO else ()):
        nxt = "L_late1" if ri == 0 else "L_done"
        a("s_cmp_eq_u32 %s, 0" % key)
        a("s_cbranch_scc1 %s" % nxt)
        a("s_cmp_eq_u32 %s, s60" % key)
        a("s_cbranch_scc1 %s" % nxt)
        a("s_cmp_eq_u32 %s, s61" % key)
        a("s_cbranch_scc1 %s" % nxt)
        a("buffer_store_dwordx4 %s, v250, s[28:31], %s offen%s" % (v(o, 4), off, OUTF))
        if ri == 0:
            a.label("L_late1")
    a("s_branch L_done")
    a.label("L_ffn", reset=True)
    a("s_mov_b32 s58, s4")
    a("""
    s_mul_i32 s6, s3, 7
    s_add_u32 s6, s6, s58
    s_lshl_b32 s46, s6, 12
    """)
    a("s_add_u32 s46, s46, 0x%x               ; partial-sum slab" % WS_PART)
    a("s_add_u32 s45, s46, s62")
    a("s_cmp_lt_u32 s5, 4")
    a("s_cselect_b32 s45, s45, 0x%x" % OOB)
    a("buffer_store_dwordx4 v[252:255], v250, s[12:15], s45 offen sc1")
    a("v_mov_b32 v33, %s" % v(VTAG))
    a("v_mov_b32 v35, %s" % v(VTAG))
    a("v_mov_b32 v32, 0")
    a("v_mov_b32 v34, 0")
    a("s_lshl_b32 s53, s6, %d" % KSH)
    a("s_add_u32 s53, s53, 0x%x" % (WS_KEYS + (129 << KSH)))
    a("s_cmp_eq_u32 s5, 0")
    a("s_cselect_b32 s53, s53, 0x%x" % OOB)
    a("s_waitcnt vmcnt(0)")
    a("s_barrier")
    a("s_mov_b64 exec, 1")
    a("buffer_store_dwordx4 v[32:35], off, s[12:15], s53 sc1")
    a("s_mov_b64 exec, -1")
    a("s_mov_b64 s[32:33], s[18:19]")
    a("s_mov_b64 s[36:37], s[20:21]")
    a("s_mov_b64 s[40:41], s[22:23]")
    srd(a, 32, 512 * 3584)
    srd(a, 36, 512 * 3584)
    srd(a, 40, 1792 * 1024)
    a("""
    s_and_b32 s44, s5, 1
    s_lshl_b32 s44, s44, 7
    s_lshr_b32 s48, s5, 1
    s_lshl2_add_u32 s44, s48, s44
    v_bfe_u32 v4, v0, 2, 2
    v_lshl_add_u32 v4, v2, 4, v4
    v_add_u32 v4, s44, v4
    v_mul_u32_u24 v4, 3584, v4
    v_and_b32 v5, 3, v0
    v_lshl_add_u32 v4, v5, 4, v4
    s_lshl_b32 s48, s6, 6
    s_mul_i32 s7, s5, 12288
    s_mov_b32 m0, s7
    """)
    a("s_add_u32 s49, s48, %d" % (64 * 3584))
    a("s_add_u32 s50, s48, %d" % (256 * 3584))
    a("s_add_u32 s51, s48, %d" % (320 * 3584))
    stamp(a, 7)
    for sr in (32, 36):
        for i in range(4):
            a("buffer_load_dwordx4 v4, %s, %s offen lds" % (s(sr, 4), s(48 + i)))
            a("s_add_u32 m0, m0, 1024")
    a("""
    v_bfe_u32 v5, v0, 3, 3
    v_lshlrev_b32 v5, 10, v5
    v_and_b32 v4, 7, v0
    v_lshl_add_u32 v5, v4, 4, v5
    v_lshl_add_u32 v5, v3, 7, v5
    s_lshl_b32 s48, s6, 15
    """)
    for i in range(4):
        a("buffer_load_dwordx4 v5, s[40:43], s48 offen lds")
        if i < 3:
            a("s_add_u32 m0, m0, 1024")
            a("s_add_u32 s48, s48, 8192")
    WF, WD = 64, 96
    a("v_lshlrev_b32 v6, %d, v0" % KSH)
    a("""
    v_bfe_u32 v4, v0, 2, 4                ; 4q + r
    v_and_b32 v5, 3, v0
    v_lshlrev_b32 v5, 3, v5
    v_lshl_add_u32 v8, v4, 6, v5
    v_add_u32 v8, s7, v8
    v_bfe_u32 v9, v0, 2, 2
    v_lshl_add_u32 v9, v2, 3, v9
    v_lshl_add_u32 v9, v9, 7, v5
    v_add_u32 v9, s7, v9
    """)
    a("""
    v_and_b32 v10, 1, v0
    v_cmp_eq_u32 s[50:51], 1, v10
    v_lshlrev_b32 v11, 7, v3
    v_lshl_add_u32 v11, v2, 4, v11
    v_lshlrev_b32 v12, 6, v10
    v_lshl_add_u32 v13, v2, 4, v12
    v_lshl_add_u32 v13, v3, 9, v13
    v_and_b32 v14, 30, v0
    v_lshl_add_u32 v14, v14, 1, v12
    v_and_b32 v12, 32, v0
    v_lshl_add_u32 v14, v12, 2, v14
    """)
    a("v_add_u32 v13, %d, v13                 ; partial write address" % LDS_RED)
    a("v_add_u32 v14, %d, v14                 ; partial read address" % LDS_RED)
    a("""
    v_lshlrev_b32 v15, 9, v3
    v_lshl_add_u32 v15, v1, 4, v15
    v_lshlrev_b32 v7, 3, v3
    v_mov_b32 v16, 0
    v_mov_b32 v18, 0
    """)
    a("v_add_u32 v7, %d, v7" % LDS_KEY2)
    a("v_mov_b32 v4, %d" % LDS_KEY2)
    a("s_waitcnt vmcnt(0)")
    stamp(a, 8)
    for kk in range(2):
        for mt in range(4):
            for hf in range(2):
                a("ds_read_b64_tr_b16 %s, v8 offset:%d" % (v(WF + 16 * kk + 4 * mt + 2 * hf, 2), (mt // 2) * 4096 + hf * 2048 + kk * 1024 + (mt % 2) * 32))
    for t in range(4):
        for hf in range(2):
            a("ds_read_b64_tr_b16 %s, v9 offset:%d" % (v(WD + 4 * t + 2 * hf, 2), 8192 + hf * 512 + t * 32))
    a("s_lshl_b32 s52, s3, 7")
    a("s_add_u32 s55, s52, 0x%x" % WS_PRE)
    a("s_add_u32 s52, s52, 0x%x" % WS_SEL)
    a("s_or_b32 s53, s58, s5")
    a("s_cselect_b32 s52, 0x%x, s52           ; one announcing wave per group" % OOB)
    a("s_cmp_ge_u32 s5, 3")
    a("s_cbranch_scc1 L_keys_done")
    a("s_mov_b32 s54, %d" % SPIN)
    if PRE:
        a.label("L_poll_pre")
        a("buffer_load_dword v17, off, s[12:15], s55 sc1")
        a("s_waitcnt vmcnt(0)")
        a("v_cmp_eq_u32 vcc, v17, %s" % v(VTAG))
        a("s_cmp_eq_u64 vcc, -1")
        poll_tail(a, "L_poll_pre")
        a("s_mov_b32 s54, %d" % SPIN)
    stamp(a, 10)
    a("v_cmp_gt_u32 vcc, 185, v0")
    a("s_mov_b32 s55, 0x%x" % WS_KEYS)
    a("s_mov_b64 exec, vcc")
    a.label("L_poll_keys")
    a("buffer_load_dwordx4 v[16:19], v6, s[12:15], s55 offen sc1")
    a("s_waitcnt vmcnt(0)")
    a("v_cmp_ne_u32 vcc, v17, %s" % v(VTAG))
    a("v_cmp_ne_u32 s[60:61], v19, %s" % v(VTAG))
    a("s_or_b64 vcc, vcc, s[60:61]")
    a("s_and_b64 exec, exec, vcc")
    a("s_cmp_eq_u64 exec, 0")
    poll_tail(a, "L_poll_keys")
    a("s_mov_b64 exec, -1")
    for mod in ROR + BC:
        a("v_min_u32_dpp v19, v16, v16 %s" % mod)
        a("v_max_u32_dpp v18, v18, v18 %s" % mod)
        a("v_max_u32_dpp v16, v16, v16 %s" % mod)
        a("v_max_u32 v18, v18, v19")
    a("""
    s_mov_b32 exec_lo, 0
    s_mov_b32 exec_hi, 0x80000000
    ds_write2_b32 v7, v16, v18 offset0:0 offset1:1
    s_mov_b64 exec, -1
    """)
    a.label("L_keys_done")
    a("s_waitcnt lgkmcnt(0)")
    a("s_barrier")
    stamp(a, 11)
    a("ds_read_b128 v[16:19], v4")
    a("ds_read_b64 v[20:21], v4 offset:16")
    a("s_mov_b32 s55, 0x%x" % WS_CAND)
    a("s_mov_b32 s54, %d" % SPIN)
    a("""
    s_waitcnt lgkmcnt(0)
    v_med3_u32 v36, v16, v18, v20
    v_max3_u32 v32, v16, v18, v20
    v_max3_u32 v34, v17, v19, v21
    v_max_u32 v34, v34, v36
    v_cndmask_b32 v36, v32, v34, s[50:51]
    v_bfe_u32 v37, v36, 5, 8
    v_and_b32 v36, 1, v36
    v_lshl_add_u32 v11, v37, 12, v11
    v_lshl_add_u32 v11, v36, 11, v11
    """)
    a.label("L_poll_h2")
    a("""
    buffer_load_dwordx4 v[16:19], v11, s[12:15], s55 offen sc1
    buffer_load_dwordx4 v[20:23], v11, s[12:15], s55 offen offset:64 sc1
    """)
    C = 48
    for kk in range(2):
        a("s_waitcnt vmcnt(%d)" % (1 - kk))
        if kk:
            stamp(a, 12)
        for mt in range(4):
            c = v(C + 4 * mt, 4)
            a("v_mfma_f32_16x16x32_bf16 %s, %s, %s, %s" % (c, v(WF + 16 * kk + 4 * mt, 4), v(16 + 4 * kk, 4), "0" if kk == 0 else c))
    a("""
    v_max_u32 v36, v16, v20
    v_cmp_eq_u32 vcc, -1, v36
    s_cmp_eq_u64 vcc, 0
    """)
    poll_tail(a, "L_poll_h2")
    a("s_mov_b64 exec, 1")
    a("buffer_store_dwordx4 v[32:35], off, s[12:15], s52 sc1")
    a("s_mov_b32 exec_lo, 0x00030003")
    a("s_mov_b32 exec_hi, 0x00030003")
    for mt in range(4):
        a("ds_write_b128 v13, %s offset:%d" % (v(C + 4 * mt, 4), 128 * mt))
    a("s_mov_b64 exec, -1")
    a("s_waitcnt lgkmcnt(0)")
    a("s_barrier")
    a("""
    ds_read2st64_b32 v[16:17], v14 offset0:0 offset1:2
    ds_read2st64_b32 v[18:19], v14 offset0:4 offset1:6
    ds_read2st64_b32 v[20:21], v14 offset0:8 offset1:10
    ds_read2st64_b32 v[22:23], v14 offset0:12 offset1:14
    ds_read2st64_b32 v[24:25], v14 offset0:1 offset1:3
    ds_read2st64_b32 v[26:27], v14 offset0:5 offset1:7
    ds_read2st64_b32 v[28:29], v14 offset0:9 offset1:11
    ds_read2st64_b32 v[30:31], v14 offset0:13 offset1:15
    s_waitcnt lgkmcnt(4)
    v_pk_add_f32 v[16:17], v[16:17], v[18:19]
    v_pk_add_f32 v[20:21], v[20:21], v[22:23]
    v_pk_add_f32 v[16:17], v[16:17], v[20:21]
    v_add_f32 v16, v16, v17
    """)
    a("v_mul_f32 v17, %s, v16" % f32(-LOG2E))
    a("""
    v_exp_f32 v17, v17
    s_waitcnt lgkmcnt(0)
    v_pk_add_f32 v[24:25], v[24:25], v[26:27]
    v_add_f32 v17, 1.0, v17
    v_pk_add_f32 v[28:29], v[28:29], v[30:31]
    v_rcp_f32 v17, v17
    v_pk_add_f32 v[24:25], v[24:25], v[28:29]
    v_add_f32 v24, v24, v25
    v_mul_f32 v16, v16, v17
    v_mul_f32 v16, v16, v24
    v_mov_b32_dpp v17, v16 row_ror:14 row_mask:0xf bank_mask:0xf
    v_cvt_pk_bf16_f32 v20, v16, v17
    v_mov_b32_dpp v21, v20 row_ror:12 row_mask:0xf bank_mask:0xf
    v_mov_b32_dpp v22, v20 row_ror:8 row_mask:0xf bank_mask:0xf
    v_mov_b32_dpp v23, v20 row_ror:4 row_mask:0xf bank_mask:0xf
    """)
    for t in range(4):
        a("v_mfma_f32_16x16x32_bf16 %s, v[20:23], %s, 0" % (v(C + 4 * t, 4), v(WD + 4 * t, 4)))
    a("""
    s_mov_b64 exec, 0xffff
    v_mov_b32 v50, v52
    v_mov_b32 v51, v53
    buffer_store_dwordx4 v[48:51], v15, s[12:15], s46 offen sc1
    v_mov_b32 v58, v60
    v_mov_b32 v59, v61
    buffer_store_dwordx4 v[56:59], v15, s[12:15], s46 offen offset:256 sc1
    s_mov_b64 exec, -1
    """)
    stamp(a, 9)
    if PROBE >= 0 and PFFN:
        a("s_lshl_b32 s94, s2, 3")
        a("s_or_b32 s94, s94, s5")
        a("s_cmp_lg_u32 s94, %d" % (PFFN - 1))
        a("s_cbranch_scc1 L_done")
        probe_spin(a)
    a.label("L_done", reset=True)
    stamp_end(a)
    a.label("L_end")
    a("s_endpgm")
    desc = """.section .rodata,"a"
.p2align 6
.amdhsa_kernel %s
  .amdhsa_next_free_vgpr 256
  .amdhsa_next_free_sgpr 102
  .amdhsa_accum_offset 256
  .amdhsa_group_segment_fixed_size 0
  .amdhsa_kernarg_size 120
  .amdhsa_user_sgpr_count 2
  .amdhsa_user_sgpr_kernarg_segment_ptr 1
  .amdhsa_system_sgpr_workgroup_id_x 1
.end_amdhsa_kernel
""" % KN
    return HEADER + "; @launch grid=(256,1,1) block=(512,1,1) lds=%d\n" % LDS_TOTAL + a.text() + desc


if __name__ == "__main__":
    out = sys.argv[1] if len(sys.argv) > 1 and sys.argv[1].endswith(".s") else "v13.s"
    open(out, "w").write(build())
    print("wrote", out)
```

```python
import sys, struct
from asmlib import Asm, Ins, v, s

NAME = "adaLN_cond__spectral_fnet__moe_arch_mod__prompt"
KN = NAME + "_kernel"
HEADER = open("cdna_kernels/%s.s.ref" % NAME).read().split("; Override launch geometry")[0]


def opt(name, default):
    for x in sys.argv:
        if x.startswith("--%s=" % name):
            return int(x.split("=")[1], 0)
    return default


STAMPS = "--stamps" in sys.argv
PROBE = opt("probe", -1)
KSH = opt("ksh", 6)
FSH = opt("fsh", 8)
HELP = opt("help", 1)
POIS = opt("pois", 4)
OUTF = ("", " sc1", " nt", " sc0 sc1", " sc1 nt")[opt("outf", 1)]
EARLYH = opt("earlyh", 1)
MODFIRST = opt("modfirst", 0)
ROWL = opt("rowl", 1)
MH = opt("mh", 9)
PLATE = opt("plate", 0)
OUTL = opt("outl", 0)
FINE = opt("fine", 0)
PROG = opt("prog", 0)
TMIN = opt("tmin", -1)
PFFN = opt("pffn", 0)
FIN = opt("fin", 0)
HF = opt("hf", 1)
LO = opt("lo", 1)
ADEL = opt("adel", 2)
EPART = opt("epart", 1)
BT2 = opt("bt2", 0)
SWZ = opt("swz", 1)
BDEL = opt("bdel", 0)
BT = opt("bt", 8)
SENT = opt("sent", 0)
FDEL = opt("fdel", 0)
SW = opt("sw", 4)
PRE = opt("pre", 3)
CPOS = opt("cpos", 0)
CPF = opt("cpf", 0)
TOUCH = opt("touch", 1)

WS_MOD = 0x0
WS_GEN = 0x3000
WS_SEL = 0x3400
WS_PRE = 0x3800
WS_FLAG = 0x8000
WS_KEYS = 0x40000
WS_PART = 0x80000
WS_CAND = 0x100000
WS_INTER = 0x200000
WS_SIZE = 0x400000
WS_STAMP = 0x600000
if STAMPS:
    WS_SIZE = 0x800000
EPS = 1e-5
TAGC = 0x9E3779B9
SPIN = 1 << 15
OOB = 0x7fff0000
PITCH = 288
XWG = 120

LDS_U = 20480
LDS_SCR = LDS_U + 20480
LDS_VEC = LDS_SCR + 20480
LDS_KEY = LDS_VEC + 7 * 2560
LDS_TAB = LDS_KEY + 128
LDS_RED = 98304
LDS_KEY2 = LDS_RED + 4096
LDS_TOTAL = LDS_KEY2 + 64

FR, FI, TC, TS, G, SA = 200, 204, 208, 216, 224, 240
VQ4, VTAG, VL16 = 248, 249, 250
LOG2E = 1.4426950408889634


def f32(x):
    return "0x%08x" % struct.unpack("<I", struct.pack("<f", x))[0]


def srd(a, base, nbytes):
    a("s_mov_b32 %s, 0x%x" % (s(base + 2), nbytes))
    a("s_mov_b32 %s, 0x20000" % s(base + 3))


NST = 14


def stamp(a, i):
    if PROBE >= 0 and i == 0:
        a("s_memrealtime s[96:97]")
    if PROBE == i:
        a("s_memrealtime s[92:93]")
    if not STAMPS:
        return
    if i == 0:
        a("s_memrealtime s[96:97]")
        for k in range(1, NST):
            a("s_mov_b32 %s, 0" % s(64 + 2 * k))
    a("s_memtime %s" % s(64 + 2 * i, 2))


def stamp_end(a):
    if not STAMPS:
        return
    a("s_waitcnt vmcnt(0)")
    a("s_memtime %s" % s(64 + 2 * (NST - 1), 2))
    a("s_memrealtime s[98:99]")
    a("s_mov_b64 exec, 1")
    a("s_lshl_b32 s93, s2, 3")
    a("s_add_u32 s93, s93, s5")
    a("s_lshl_b32 s93, s93, 6")
    a("s_add_u32 s93, s93, 0x%x" % WS_STAMP)
    a("s_waitcnt lgkmcnt(0)")
    a("v_mov_b32 v16, s96")
    a("v_mov_b32 v17, s98")
    for k in range(NST):
        a("v_mov_b32 %s, %s" % (v(18 + k), s(64 + 2 * k)))
    for k in range(4):
        a("buffer_store_dwordx4 %s, off, s[12:15], s93 offset:%d" % (v(16 + 4 * k, 4), 16 * k))


ROR = ["row_ror:%d row_mask:0xf bank_mask:0xf" % r for r in (8, 4, 2, 1)]
BC = ["row_bcast:15 row_mask:0xa bank_mask:0xf", "row_bcast:31 row_mask:0xc bank_mask:0xf"]


def dpp_sum(a, regs_, mods):
    for mod in mods:
        for r in regs_:
            a("v_add_f32_dpp %s, %s, %s %s" % (v(r), v(r), v(r), mod))


def poll_tail(a, label, cnt="s54"):
    a("s_cbranch_scc1 %s_ok" % label)
    a("s_sub_u32 %s, %s, 1" % (cnt, cnt))
    a("s_cbranch_scc0 %s" % label)
    a.label(label + "_ok")


def setup(a):
    a.label("L_setup", reset=True)
    a("""
    s_lshr_b32 s60, s59, 5
    s_lshl3_add_u32 s60, s60, s3
    s_and_b32 s60, s60, 31
    s_bfe_u32 s61, s59, 0x20003
    s_lshl_b32 s61, s61, 9
    s_add_u32 s61, s61, s60
    s_sub_u32 s94, s61, 992
    s_cmp_ge_u32 s61, 1024
    s_cselect_b32 s94, s94, s61
    s_mov_b32 s95, 0xffff0000
    s_cselect_b32 s95, s95, 0x0000ffff
    s_cmp_eq_u32 s60, 0
    s_cselect_b32 s61, s94, s61
    s_cselect_b32 s95, s95, -1
    """)
    a("s_cselect_b32 s94, 0, %s" % f32(-0.25))
    a("""
    s_cmp_eq_u32 s59, 128
    s_cselect_b32 s61, 1024, s61
    v_lshrrev_b32 v160, 1, v1
    v_lshlrev_b32 v160, 6, v160
    v_add_u32 v160, s61, v160
    v_cvt_f32_u32 v160, v160
    v_and_b32 v161, 1, v1
    v_cvt_f32_u32 v161, v161
    """.replace("CANDBASE", "0x%x" % WS_CAND))
    a("v_lshl_add_u32 v162, v3, 2, v2")
    a("v_cvt_f32_u32 v162, v162")
    a("v_mul_f32 v160, %s, v160" % f32(1 / 2048))
    a("v_mul_f32 v161, %s, v161" % f32(0.25))
    a("v_fmac_f32 v161, v160, v162")
    a("""
    v_add_f32 v162, s94, v161
    v_cos_f32 v163, v161
    v_cos_f32 v162, v162
    v_and_b32 v164, 3, v3
    v_lshl_add_u32 v165, v2, 2, v164
    v_mul_u32_u24 v165, v165, v1          ; n*(4q+j)
    v_lshrrev_b32 v166, 2, v3
    v_mul_u32_u24 v167, v166, v1
    v_lshl_add_u32 v167, v167, 4, v165    ; n*(16h+4q+j)
    v_cvt_f32_u32 v165, v165
    v_cvt_f32_u32 v167, v167
    v_cvt_pk_bf16_f32 v163, v163, v162
    s_cmp_lt_u32 s5, 4
    """)
    a("s_mov_b32 s94, %s" % f32(1 / 32))
    a("s_cselect_b32 s94, %s, s94" % f32(1 / 16))
    a("v_mul_f32 v167, %s, v167" % f32(1 / 512))
    a("""
    v_mul_f32 v165, s94, v165
    v_and_b32 v163, s95, v163
    v_cos_f32 v168, v167
    v_sin_f32 v169, v167
    v_cos_f32 v170, v165
    v_sin_f32 v171, v165
    v_lshl_add_u32 v164, v164, 2, v250
    v_lshl_add_u32 v164, v166, 10, v164
    """)
    a("v_add_u32 v164, %d, v164" % LDS_TAB)
    a("""
    ds_write_b32 v164, v163
    ds_write2st64_b32 v164, v168, v169 offset0:8 offset1:16
    v_cvt_pk_bf16_f32 v172, v170, v171
    s_cbranch_scc0 L_setup_g
    v_cvt_pk_bf16_f32 v173, -v171, v170
    ds_write2st64_b32 v164, v172, v173 offset0:24 offset1:28
    s_branch L_setup_end
    """)
    a.label("L_setup_g")
    a("""
    s_bitcmp1_b32 s5, 0
    s_cselect_b32 s94, 0x80008000, 0
    v_lshlrev_b32 v170, 31, v1
    v_lshrrev_b32 v171, 16, v170
    v_xor_b32 v173, s94, v172
    v_bitop3_b32 v174, v172, v170, v171 bitop3:0x96
    ds_write2st64_b32 v164, v172, v173 offset0:28 offset1:32
    v_xor_b32 v175, s94, v174
    ds_write2st64_b32 v164, v174, v175 offset0:36 offset1:40
    """)
    a.label("L_setup_end")
    a("s_waitcnt lgkmcnt(0)")
    if ROWL:
        a("s_sub_u32 s40, s4, 16")
        a("s_cmp_lt_u32 s40, 6")
        a("s_cbranch_scc1 L_setup_ret")
    if BDEL:
        a("s_waitcnt vmcnt(0)")
    a.label("L_rows")
    a("""
    s_lshl_b32 s40, s5, 6
    s_add_u32 s40, s40, s61
    s_sub_u32 s41, 2048, s40
    s_lshl_b32 s40, s40, 10
    s_lshl_b32 s41, s41, 10
    s_mov_b64 s[24:25], s[16:17]
    s_movk_i32 s26, 1024
    s_mov_b32 s27, 0x20000
    buffer_load_dwordx4 v[100:103], v250, s[8:11], s40 offen
    buffer_load_dwordx4 v[104:107], v250, s[8:11], s41 offen
    buffer_load_dwordx4 v[108:111], v250, s[24:27], 0 offen
    s_lshl_b32 s40, s59, 12
    s_add_u32 s40, s40, s62
    s_add_u32 s40, s40, CANDBASE
    s_cmp_lt_u32 s5, 4
    s_cselect_b32 s40, s40, 0x7fff0000
    buffer_store_dwordx4 v[252:255], v250, s[12:15], s40 offen sc1
    """.replace("CANDBASE", "0x%x" % WS_CAND))
    a.label("L_setup_ret")
    a("s_setpc_b64 s[100:101]")


def touch(a, half, dst, first):
    if first:
        a("""
        v_bfe_u32 v4, v0, 3, 3
        v_and_b32 v5, 7, v0
        v_lshlrev_b32 v5, 6, v5
        s_mov_b32 s34, 0x1c0000
        s_mov_b32 s35, 0x20000
        """)
    a("""
    s_and_b32 s46, s44, 31
    s_mul_i32 s48, s3, 448
    s_mul_i32 s49, s46, 57344
    s_add_u32 s48, s48, s49
    s_lshl_b32 s49, s3, 5
    s_add_u32 s49, s49, s46
    s_mul_i32 s49, s49, 7168
    """)
    if half:
        a("s_add_u32 s48, s48, 28672")
        a("s_add_u32 s49, s49, 512")
    a("""
    s_cmp_lt_u32 s44, 32
    s_cselect_b64 s[32:33], s[18:19], s[20:21]
    s_movk_i32 s50, 3584
    s_cmp_ge_u32 s44, 64
    s_cselect_b64 s[32:33], s[22:23], s[32:33]
    s_cselect_b32 s50, 1024, s50
    s_cselect_b32 s48, s49, s48
    v_mad_u32_u24 v6, v4, s50, v5
    """)
    a("buffer_load_dword %s, v6, s[32:35], s48 offen" % v(dst))


def probe_spin(a):
    a("s_waitcnt vmcnt(0)")
    a("s_memrealtime s[98:99]")
    a("s_waitcnt lgkmcnt(0)")
    a("s_sub_u32 s94, %s, s96" % ("s98" if PROBE == 13 else "s92"))
    if TMIN >= 0:
        a("s_max_u32 s94, s94, %d" % TMIN)
        a("s_sub_u32 s94, s94, %d" % TMIN)
        a("s_mul_i32 s94, s94, 2622")
        a("s_lshr_b32 s94, s94, 16")
        a("s_min_u32 s95, s94, 12")
        a("s_movk_i32 s94, 2400")
        a.label("L_lvl")
        a("s_sub_u32 s95, s95, 1")
        a("s_cbranch_scc1 L_lvl_done")
        a("s_mul_i32 s94, s94, 11")
        a("s_lshr_b32 s94, s94, 3")
        a("s_branch L_lvl")
        a.label("L_lvl_done")
        a("s_sub_u32 s94, s94, 2200")
    else:
        a("s_mul_i32 s94, s94, 2")
        a("s_min_u32 s94, s94, 8000")
    a.label("L_probe")
    a("s_memrealtime s[96:97]")
    a("s_waitcnt lgkmcnt(0)")
    a("s_sub_u32 s95, s96, s98")
    a("s_cmp_lt_u32 s95, s94")
    a("s_cbranch_scc1 L_probe")


def get_tag(a):
    a("s_waitcnt lgkmcnt(0)")
    a("s_add_u32 s47, s47, 0x%x               ; hand-off tag of this launch" % TAGC)
    a("v_mov_b32 %s, s47" % v(VTAG))


def flag_store(a, wave=0):
    a("s_lshl_b32 s53, s2, %d" % FSH)
    a("s_add_u32 s53, s53, 0x%x" % WS_FLAG)
    a("s_cmp_eq_u32 s5, %d" % wave)
    a("s_cselect_b32 s53, s53, 0x%x" % OOB)
    a("s_mov_b64 exec, 1")
    a("buffer_store_dword %s, off, s[12:15], s53 sc1" % v(VTAG))
    a("s_mov_b64 exec, -1")


def build():
    a = Asm()
    a.raw('.amdgcn_target "amdgcn-amd-amdhsa--gfx950"')
    a.raw(".text")
    a.raw(".globl %s" % KN)
    a.raw(".p2align 8")
    a.raw(".type %s,@function" % KN)
    a.label(KN, reset=True)
    a("s_cmp_ge_u32 s2, 256")
    a("s_cbranch_scc1 L_end")
    stamp(a, 0)
    a("s_load_dwordx2 s[8:9], s[0:1], 0")
    a("s_load_dwordx2 s[12:13], s[0:1], 112")
    a("s_load_dwordx16 s[16:31], s[0:1], 48")
    if CPF:
        a("s_getpc_b64 s[60:61]")
        a.label("L_cpf_pc")
        a("v_lshlrev_b32 v192, %d, v0" % (7 if CPF == 1 else 6))
        a("v_cmp_gt_u32 vcc, L_end-L_cpf_pc, v192")
        a("v_mov_b32 v193, 0")
        a("v_lshl_add_u64 v[192:193], v[192:193], 0, s[60:61]")
        a("s_and_saveexec_b64 s[60:61], vcc")
        a("s_cbranch_execz L_cpf")
        n = len(a.vm)
        a("global_load_dword v198, v[192:193], off")
        del a.vm[n:]
        a.label("L_cpf")
        a("s_mov_b64 exec, -1")
    a("""
    v_lshrrev_b32 v3, 6, v0               ; wave
    v_and_b32 v1, 15, v0                  ; n
    v_bfe_u32 v2, v0, 4, 2                ; q
    v_readfirstlane_b32 s5, v3
    s_and_b32 s3, s2, 7                   ; x
    s_lshr_b32 s4, s2, 3                  ; y
    v_and_b32 v250, 63, v0
    v_lshlrev_b32 v250, 4, v250           ; lane*16
    v_mov_b32 v252, -1
    v_mov_b32 v253, -1
    v_mov_b32 v254, -1
    v_mov_b32 v255, -1
    s_mov_b32 s63, 0x80000000
    """)
    a("v_cvt_f32_u32 %s, v2" % v(VQ4))
    srd(a, 8, 2048 * 1024)
    srd(a, 12, WS_SIZE)
    a("v_mul_f32 %s, 4.0, %s" % (v(VQ4), v(VQ4)))
    a("s_lshl_b32 s62, s5, 10")
    a("s_cmp_ge_u32 s4, 16")
    st0 = a.fork()
    a("s_cbranch_scc1 L_notdft")
    a("""
    s_movk_i32 s59, 128
    s_lshr_b32 s6, s4, 2
    s_lshl3_add_u32 s6, s6, s3            ; s2 index
    s_and_b32 s7, s4, 3
    v_lshlrev_b32 v5, 4, v1
    """)

    def store_addr():
        a("""
        v_and_b32 v8, 3, v3                   ; M tile
        v_lshlrev_b32 v13, 1, v2
        v_lshl_add_u32 v13, v8, 3, v13
        v_lshl_add_u32 v13, v13, 16, v5
        s_lshl_b32 s54, s6, 11
        s_lshl_b32 s55, s7, 9
        s_add_u32 s54, s54, s55
        """)
        a("s_add_u32 s54, s54, 0x%x" % WS_INTER)
        a("s_add_u32 s55, s54, 0x10000")
    a("s_lshl_b32 s44, s6, 10")
    for g in range(4):
        a("s_add_u32 s46, s7, %d" % g)
        a("s_and_b32 s46, s46, 3")
        a("s_lshl_b32 s46, s46, 8")
        a("s_add_u32 %s, s46, s44" % s(48 + g))
    a("""
    s_lshl1_add_u32 s46, s7, s5
    s_and_b32 s46, s46, 7
    s_lshl_b32 s46, s46, 3
    v_add_u32 v4, s46, v2
    v_lshl_or_b32 v6, v4, 15, v5
    v_add_u32 v7, 0x20000, v6
    s_waitcnt lgkmcnt(0)
    """)
    stamp(a, 1)
    X = 16
    for i in range(4):
        for g in range(2):
            a("buffer_load_dwordx4 %s, %s, s[8:11], %s offen" % (v(X + 16 * g + 4 * i, 4), v(6 + g), s(48 + i)))
    a("s_load_dword s47, s[12:13], 0x%x" % WS_GEN)
    a("s_branch L_dft")
    mark = len(a.lines)
    a.label("L_dft")
    store_addr()
    a("v_lshrrev_b32 v12, 8, v0")
    a("v_lshl_add_u32 v13, v12, 8, v13")
    if POIS == 4:
        a("s_barrier")
    if POIS < 5:
        a("buffer_store_dwordx4 v[252:255], v13, s[12:15], s54 offen sc1")
        a("buffer_store_dwordx4 v[252:255], v13, s[12:15], s55 offen sc1")
    if EPART:
        a("""
        s_mul_i32 s56, s3, 7
        s_add_u32 s56, s56, s4
        s_lshl_b32 s57, s56, 12
        s_add_u32 s57, s57, s62
        """)
        a("s_add_u32 s57, s57, 0x%x" % WS_PART)
        a("s_lshl_b32 s58, s56, %d" % KSH)
        a("s_add_u32 s58, s58, 0x%x" % (WS_KEYS + (129 << KSH)))
        a("s_cmp_lt_u32 s5, 4")
        a("s_cselect_b32 s57, s57, 0x%x" % OOB)
        a("s_cmp_lt_u32 s4, 7")
        a("s_cselect_b32 s57, s57, 0x%x" % OOB)
        a("s_cselect_b32 s58, s58, 0x%x" % OOB)
        a("buffer_store_dwordx4 v[252:255], v250, s[12:15], s57 offen sc1")
        a("v_mov_b32 v112, 0")
        a("v_mov_b32 v114, 0")
    WA = 48
    a("""
    v_lshrrev_b32 v9, 1, v1
    v_lshl_add_u32 v9, v8, 3, v9          ; slot
    v_and_b32 v10, 1, v1
    v_lshl_or_b32 v11, v9, 1, v10
    v_cmp_eq_u32 vcc, 1, v11
    v_cvt_f32_u32 v10, v10
    v_lshlrev_b32 v15, 31, v9
    v_cndmask_b32 v11, v9, 32, vcc
    """)
    a("v_mul_f32 v10, %s, v10" % f32(0.25))
    a("v_cvt_f32_u32 v11, v11")
    a("v_cndmask_b32 v10, v10, 0, vcc")
    a("v_mul_f32 v11, %s, v11" % f32(1 / 64))
    a("v_fmac_f32 v10, v11, %s" % v(VQ4))
    a("v_lshrrev_b32 v14, 16, v15")
    a("v_or_b32 v15, v15, v14")
    T = 56
    a("v_cos_f32 %s, v10" % v(T))
    for j in range(1, 8):
        a("v_add_f32 v10, v10, v11" if j != 4 else "v_fmac_f32 v10, %s, v11" % f32(13.0))
        a("v_cos_f32 %s, v10" % v(T + j))
    for j in range(4):
        a("v_cvt_pk_bf16_f32 %s, %s, %s" % (v(WA + j), v(T + 2 * j), v(T + 2 * j + 1)))
    for j in range(4):
        a("v_xor_b32 %s, v15, %s" % (v(WA + 4 + j), v(WA + j)))
    a("""
    v_mul_u32_u24 v10, 288, v4
    v_add_u32 v10, v10, v5
    v_bfe_u32 v11, v0, 2, 4
    v_mul_u32_u24 v11, 288, v11
    v_and_b32 v14, 3, v0
    v_lshl_add_u32 v11, v14, 3, v11
    v_lshl_add_u32 v11, v12, 7, v11
    s_mov_b32 s52, 0x3f803f80
    v_mov_b32 v56, 0
    v_mov_b32 v57, 0
    v_mov_b32 v58, 0
    v_mov_b32 v59, 0
    """)
    stamp(a, 2)
    U = 64
    for i in range(4):
        for g in range(2):
            a.wait_vm_for(v(X + 16 * g + 4 * i, 4))
            if i == 0 and g == 0:
                stamp(a, 3)
            for d in range(4):
                x = v(X + 16 * g + 4 * i + d)
                a("v_dot2c_f32_bf16 %s, s52, %s" % (v(56 + g), x))
                a("v_dot2c_f32_bf16 %s, %s, %s" % (v(58 + g), x, x))
            if i == 0:
                for d in range(4):
                    a("v_lshlrev_b32 %s, 16, %s" % (v(U + 8 * g + 2 * d), v(X + 16 * g + d)))
                    a("v_and_b32 %s, 0xffff0000, %s" % (v(U + 8 * g + 2 * d + 1), v(X + 16 * g + d)))
    stamp(a, 4)
    dpp_sum(a, [56, 57, 58, 59], ROR)
    for g in range(2):
        a("v_mul_f32 %s, %s, %s" % (v(56 + g), f32(1 / 512), v(56 + g)))
    for g in range(2):
        a("v_mul_f32 %s, %s, %s" % (v(60 + 2 * g), v(56 + g), v(56 + g)))
    for g in range(2):
        a("v_sub_f32 %s, %s, %s" % (v(60 + 2 * g), f32(EPS), v(60 + 2 * g)))
    for g in range(2):
        a("v_fmac_f32 %s, %s, %s" % (v(60 + 2 * g), f32(1 / 512), v(58 + g)))
    for g in range(2):
        a("v_rsq_f32 %s, %s" % (v(60 + 2 * g), v(60 + 2 * g)))
    for g in range(2):
        a("v_mul_f32 %s, %s, %s" % (v(61 + 2 * g), v(56 + g), v(60 + 2 * g)))
    for g in range(2):
        p = v(60 + 2 * g, 2)
        for d in range(4):
            u = v(U + 8 * g + 2 * d, 2)
            a("v_pk_fma_f32 %s, %s, %s, %s op_sel:[0,0,1] op_sel_hi:[1,0,1] neg_lo:[0,0,1] neg_hi:[0,0,1]" % (u, u, p, p))
        for d in range(4):
            a("v_cvt_pk_bf16_f32 %s, %s, %s" % (v(X + 16 * g + d), v(U + 8 * g + 2 * d), v(U + 8 * g + 2 * d + 1)))
        a("ds_write_b128 v10, %s offset:%d" % (v(X + 16 * g, 4), 4 * PITCH * g))
    if HF:
        a("s_lshl_b32 s53, s2, %d" % FSH)
        a("s_add_u32 s53, s53, 0x%x" % WS_FLAG)
    a("s_waitcnt vmcnt(0)")
    get_tag(a)
    if HF:
        a("s_cmp_lg_u32 s5, 7")
    a("s_barrier")
    stamp(a, 5)
    if HF:
        a("s_cbranch_scc1 L_nohint")
        a("s_mov_b64 exec, 1")
        a("buffer_store_dword %s, off, s[12:15], s53 sc1" % v(VTAG))
        if EPART:
            a("v_mov_b32 v113, %s" % v(VTAG))
            a("v_mov_b32 v115, %s" % v(VTAG))
            a("buffer_store_dwordx4 v[112:115], off, s[12:15], s58 sc1")
        a("s_mov_b64 exec, -1")
        a.label("L_nohint")
    B = 64
    for ks in range(2):
        for i in range(4):
            for hf in range(2):
                a("ds_read_b64_tr_b16 %s, v11 offset:%d" % (v(B + 16 * ks + 4 * i + 2 * hf, 2), ks * 32 * PITCH + hf * 16 * PITCH + i * 32))
    if not HF:
        flag_store(a)
    ACC = 96
    for ks in range(2):
        for i in range(4):
            a.wait_lg_for(v(B + 16 * ks + 4 * i, 4))
            acc = v(ACC + 4 * i, 4)
            a("v_mfma_f32_16x16x32_bf16 %s, %s, %s, %s" % (acc, v(WA + 4 * ks, 4), v(B + 16 * ks + 4 * i, 4), "0" if ks == 0 else acc))
    O = 16
    for i in range(4):
        for p in range(2):
            a("v_cvt_pk_bf16_f32 %s, %s, %s" % (v(O + 4 * p + i), v(ACC + 4 * i + 2 * p), v(ACC + 4 * i + 2 * p + 1)))
    for p in range(2):
        a("buffer_store_dwordx4 %s, v13, s[12:15], %s offen sc1" % (v(O + 4 * p, 4), s(54 + p)))
    stamp(a, 6)
    a("s_cmp_lg_u32 s2, %d" % XWG)
    a("s_cbranch_scc1 L_notx")
    a("s_call_b64 s[100:101], L_setup")
    a("s_branch L_p2")
    a.label("L_notx")
    a("s_cmp_lt_u32 s4, 7")
    a("s_cbranch_scc1 L_ffn")
    if not TOUCH:
        a("s_branch L_done")
    if ADEL == 2:
        a("s_waitcnt vmcnt(0)")
    a("s_sub_u32 s44, s4, 7")
    a("s_lshl3_add_u32 s44, s44, s5")
    for k in range(2):
        touch(a, 1, 196 + k, k == 0)
        if k == 0:
            a("s_add_u32 s44, s44, 64")
            a("s_cmp_ge_u32 s44, 96")
            a("s_cbranch_scc1 L_done")
    a("s_branch L_done")
    dft_block = a.lines[mark:]
    del a.lines[mark:]
    a.label("L_notdft")
    a.join(st0)
    a("s_sub_u32 s59, s2, 128")
    srd(a, 36, 512 * 6144)
    a("s_cmp_ge_u32 s4, 22")
    st1 = a.fork()
    a("s_cbranch_scc1 L_notmod")
    srd(a, 32, 1024)
    a("""
    s_sub_u32 s6, s2, 128                 ; column block (64 columns)
    s_lshl_b32 s48, s6, 7
    """)
    for i in range(1, 8):
        a("s_add_u32 %s, s48, %d" % (s(48 + i), 6144 * i))
    a("""
    v_lshrrev_b32 v4, 3, v0
    v_and_b32 v5, 7, v0
    v_mul_u32_u24 v6, 0xc000, v4
    v_lshl_add_u32 v6, v5, 4, v6
    v_and_b32 v7, 3, v0
    v_lshlrev_b32 v7, 2, v7
    v_lshl_add_u32 v7, v4, 4, v7
    s_waitcnt lgkmcnt(0)
    s_mov_b64 s[36:37], s[26:27]
    s_mov_b64 s[32:33], s[24:25]
    """)
    stamp(a, 1)
    a("buffer_load_dword v8, v7, s[32:35], 0 offen")
    W = 16
    for i in range(8):
        a("buffer_load_dwordx4 %s, v6, s[36:39], %s offen" % (v(W + 4 * i, 4), s(48 + i)))
    a("s_load_dword s47, s[12:13], 0x%x" % WS_GEN)
    if MODFIRST == 2:
        a("s_cmp_lt_u32 s5, 4")
        a("s_cbranch_scc1 L_mod")
    if MODFIRST != 1:
        a("s_call_b64 s[100:101], L_setup")
        if not ROWL:
          a.vm += [Ins("buffer_load_dwordx4 %s, v250, s[8:11], 0 offen" % v(r, 4)) for r in (100, 104, 108)] + [Ins("buffer_store_dwordx4 v[252:255], v250, s[12:15], 0 offen")]
    a("s_branch L_mod")
    mark = len(a.lines)
    a.label("L_mod")
    a("""
    s_mov_b32 s44, 0x05040100
    s_mov_b32 s46, 0x07060302
    s_lshr_b32 s48, s6, 3
    s_cmp_eq_u32 s48, 1
    s_cselect_b32 s50, 1.0, 0
    s_cmp_eq_u32 s48, 4
    s_cselect_b32 s50, 1.0, s50
    v_lshlrev_b32 v6, 1, v2
    v_lshl_add_u32 v6, v5, 3, v6
    v_and_b32 v7, 15, v6
    v_lshrrev_b32 v9, 4, v6
    v_lshl_add_u32 v10, v7, 2, v9
    v_and_b32 v7, 3, v6
    v_lshl_add_u32 v7, v9, 2, v7
    v_bfe_u32 v9, v6, 2, 2
    v_lshl_add_u32 v7, v9, 4, v7
    v_lshlrev_b32 v9, 8, v3
    v_lshl_add_u32 v10, v10, 2, v9
    v_lshl_add_u32 v7, v7, 2, v9
    s_lshl_b32 s58, s6, 8
    """)
    for j in range(8):
        a("v_mov_b32 %s, 0" % v(48 + j))
    stamp(a, 2)
    a.wait_vm_for("v8")
    get_tag(a)
    stamp(a, 3)
    a("v_lshlrev_b32 v11, 16, v8")
    a("v_and_b32 v12, 0xffff0000, v8")
    a("v_mul_f32 v13, %s, v11" % f32(-LOG2E))
    a("v_mul_f32 v14, %s, v12" % f32(-LOG2E))
    a("""
    v_exp_f32 v13, v13
    v_exp_f32 v14, v14
    v_add_f32 v13, 1.0, v13
    v_add_f32 v14, 1.0, v14
    v_rcp_f32 v13, v13
    v_rcp_f32 v14, v14
    v_mul_f32 v11, v11, v13
    v_mul_f32 v12, v12, v14
    v_cvt_pk_bf16_f32 v8, v11, v12
    """)
    for p in range(4):
        a("v_mov_b32_dpp %s, v8 quad_perm:[%d,%d,%d,%d] row_mask:0xf bank_mask:0xf" % (v(12 + p), p, p, p, p))
    for p in range(4):
        a.wait_vm_for(v(W + 8 * p, 8))
        if ROWL and p == 3:
            if STAMPS:
                a("s_waitcnt lgkmcnt(0)")
            a("s_call_b64 s[100:101], L_rows")
        for jj in range(4):
            a("v_perm_b32 %s, %s, %s, s44" % (v(56 + 2 * jj), v(W + 8 * p + 4 + jj), v(W + 8 * p + jj)))
            a("v_perm_b32 %s, %s, %s, s46" % (v(57 + 2 * jj), v(W + 8 * p + 4 + jj), v(W + 8 * p + jj)))
        for j in range(8):
            a("v_dot2c_f32_bf16 %s, %s, %s" % (v(48 + j), v(12 + p), v(56 + j)))
    stamp(a, 4)
    if MH == 0:
        flag_store(a, 7)
    for j in range(4):
        a("v_permlane32_swap_b32 %s, %s" % (v(48 + j), v(52 + j)))
    for j in range(4):
        a("v_add_f32 %s, %s, %s" % (v(48 + j), v(48 + j), v(52 + j)))
    for j in range(2):
        a("v_permlane16_swap_b32 %s, %s" % (v(48 + j), v(50 + j)))
    for j in range(2):
        a("v_add_f32 %s, %s, %s" % (v(48 + j), v(48 + j), v(50 + j)))
    dpp_sum(a, [48, 49], ROR[:1])
    a("""
    s_mov_b32 exec_lo, 0x00ff00ff
    s_mov_b32 exec_hi, 0x00ff00ff
    s_cmp_lt_u32 s6, 16
    s_cbranch_scc1 L_mod_w4
    ds_write_b64 v7, v[48:49]
    s_branch L_mod_w
    """)
    a.label("L_mod_w4")
    a("ds_write2_b32 v10, v48, v49 offset0:0 offset1:4")
    a.label("L_mod_w")
    a("s_mov_b64 exec, -1")
    if MODFIRST == 2:
        a("s_cmp_ge_u32 s5, 4")
        a("s_cbranch_scc1 L_mod_b")
        a("s_call_b64 s[100:101], L_setup")
        a.label("L_mod_b")
    a("""
    s_waitcnt lgkmcnt(0)
    s_barrier
    """)
    if MH == 1:
        flag_store(a, 1)
    stamp(a, 5)
    a("""
    s_cmp_lg_u32 s5, 0
    s_cbranch_scc1 L_mod_end
    s_mov_b64 exec, 0xffff
    """)
    for k in range(8):
        a("ds_read_b128 %s, v250 offset:%d" % (v(16 + 4 * k, 4), 256 * k))
    a("v_mov_b32 v49, v249")
    a("v_mov_b32 v51, v249")
    for k in range(0, 8, 2):
        a.wait_lg_for(v(16 + 4 * k, 8))
        a("v_pk_add_f32 %s, %s, %s" % (v(16 + 4 * k, 2), v(16 + 4 * k, 2), v(20 + 4 * k, 2)))
        a("v_pk_add_f32 %s, %s, %s" % (v(18 + 4 * k, 2), v(18 + 4 * k, 2), v(22 + 4 * k, 2)))
    a("""
    v_pk_add_f32 v[16:17], v[16:17], v[24:25]
    v_pk_add_f32 v[18:19], v[18:19], v[26:27]
    v_pk_add_f32 v[32:33], v[32:33], v[40:41]
    v_pk_add_f32 v[34:35], v[34:35], v[42:43]
    v_pk_add_f32 v[16:17], v[16:17], v[32:33]
    v_pk_add_f32 v[18:19], v[18:19], v[34:35]
    v_cvt_pk_bf16_f32 v48, v16, v17
    v_cvt_pk_bf16_f32 v50, v18, v19
    s_cmp_eq_u32 s50, 0
    s_cbranch_scc1 L_mod_st
    v_lshlrev_b32 v16, 16, v48
    v_and_b32 v17, 0xffff0000, v48
    v_lshlrev_b32 v18, 16, v50
    v_and_b32 v19, 0xffff0000, v50
    v_pk_add_f32 v[16:17], v[16:17], 1.0 op_sel_hi:[1,0]
    v_pk_add_f32 v[18:19], v[18:19], 1.0 op_sel_hi:[1,0]
    v_cvt_pk_bf16_f32 v48, v16, v17
    v_cvt_pk_bf16_f32 v50, v18, v19
    """)
    a.label("L_mod_st")
    a("buffer_store_dwordx4 v[48:51], v250, s[12:15], s58 offen sc1")
    a("s_mov_b64 exec, -1")
    if MH == 2:
        flag_store(a)
    a.label("L_mod_end")
    if MODFIRST == 1:
        a("s_call_b64 s[100:101], L_setup")
    mod_block = a.lines[mark:]
    del a.lines[mark:]
    a.label("L_notmod")
    a.join(st1)
    a("""
    s_sub_u32 s58, s4, 22
    s_lshl3_add_u32 s7, s58, s5
    s_mul_i32 s7, s7, 0x6000
    s_lshl_b32 s44, s3, 7
    s_add_u32 s7, s7, s44
    s_add_u32 s7, s7, 0x120000
    s_add_u32 s44, s7, 4096
    v_mul_u32_u24 v4, 6144, v2
    v_bfe_u32 v5, v0, 3, 1
    v_lshl_add_u32 v4, v5, 10, v4
    v_and_b32 v5, 7, v0
    v_lshl_add_u32 v4, v5, 4, v4
    s_waitcnt lgkmcnt(0)
    s_mov_b64 s[36:37], s[26:27]
    """)
    if HELP == 2:
        a("s_cmp_lt_u32 s4, 29")
        a("s_cbranch_scc1 L_nohelp")
    if HELP:
        a("buffer_load_dwordx4 v[180:183], v4, s[36:39], s7 offen")
        a("buffer_load_dwordx4 v[184:187], v4, s[36:39], s7 offen offset:2048")
        a("buffer_load_dwordx4 v[188:191], v4, s[36:39], s44 offen")
    a.label("L_nohelp")
    a("s_load_dword s47, s[12:13], 0x%x" % WS_GEN)
    a("s_call_b64 s[100:101], L_setup")
    get_tag(a)
    if BT:
        a("s_cmp_ge_u32 s5, %d" % BT)
        a("s_cbranch_scc1 L_p2")
        a("s_mul_i32 s44, s58, %d" % BT)
        a("s_add_u32 s44, s44, s5")
        touch(a, 0, 195, True)
        if BT2:
            a("s_add_u32 s44, s44, 16")
            touch(a, 1, 194, False)
    a("s_branch L_p2")
    setup(a)
    a.lines += dft_block + mod_block
    a.label("L_p2", reset=True)
    a("v_add_u32 v160, %d, v250" % LDS_TAB)
    a("s_barrier")
    for k, r in enumerate((SA, SA + 4, TC, TC + 4, TS, TS + 4, FR, FI, G, G + 4, G + 8, G + 12)):
        a("ds_read_b128 %s, v160 offset:%d" % (v(r, 4), 1024 * k))
    a.vm += [Ins("buffer_load_dwordx2 %s, v7, s[8:11], 0 offen" % v(r, 2)) for r in (100, 102, 104, 106, 108, 110)]
    a("""
    s_lshl_b32 s45, s59, 12
    """)
    a("s_add_u32 s45, s45, 0x%x               ; candidate slots of this workgroup" % WS_CAND)
    srd(a, 28, 2048 * 1024)
    a("""
    s_lshl_b32 s56, s5, 6
    s_add_u32 s56, s56, s61
    s_sub_u32 s57, 2048, s56
    s_lshl_b32 s50, s57, 10
    s_lshl_b32 s49, s56, 10
    v_lshlrev_b32 v7, 5, v1
    v_lshl_add_u32 v7, v2, 3, v7          ; 32n + 8q
    s_lshl1_add_u32 s52, s4, s5
    s_and_b32 s52, s52, 7
    s_lshl_b32 s53, s52, 8
    v_lshlrev_b32 v4, 4, v1
    v_add_u32 v4, s53, v4                 ; cb*256 + n*16
    v_lshl_add_u32 v5, v2, 11, v4
    v_add_u32 v179, 0x8000, v5
    s_lshl_b32 s40, s60, 16
    s_lshl_b32 s53, s52, 3
    """)
    a("s_add_u32 s40, s40, 0x%x" % WS_INTER)
    a("""
    s_add_u32 s41, s40, 0x2000
    s_add_u32 s42, s40, 0x4000
    s_add_u32 s43, s40, 0x6000
    v_mul_u32_u24 v8, 80, v1
    v_mul_u32_u24 v9, 5120, v2
    v_add3_u32 v9, v9, s53, v8
    v_mul_u32_u24 v12, 2560, v3
    v_lshl_add_u32 v10, v2, 4, v8
    v_or_b32 v11, s61, v2
    v_cmp_eq_u32 vcc, 0, v11
    v_mov_b32 v11, 0x45000000
    v_cndmask_b32 v11, 0, v11, vcc
    """)
    a("v_add_u32 v9, %d, v9                   ; U write address" % LDS_U)
    a("v_add_u32 v12, %d, v12                 ; scratch row of this wave" % LDS_SCR)
    a("v_sub_u32 v176, v12, v10")
    a("v_add_u32 v176, %d, v176               ; mirrored position of elements 1..3 (g = 1)" % (15 * 80 + 52))
    a("v_add_u32 v178, 1280, v176")
    a("v_add_u32 v14, v10, v12")
    a("v_add_u32 v10, %d, v14                 ; U read address" % ((LDS_U - LDS_SCR) & 0xffffffff))
    a("v_cmp_eq_u32 vcc, 0, v2")
    a("v_cndmask_b32 v177, 12, 28, vcc")
    a("v_add_u32 v177, v177, v176")
    a("v_add_u32 v196, 1280, v177")
    a("v_cmp_eq_u32 vcc, 0, v250")
    a("v_cndmask_b32 v196, v196, v12, vcc")
    a("v_add_u32 v15, v12, v250")
    a("v_add_u32 v12, v12, v7")
    a("""
    s_lshl_b32 s46, s59, 5
    s_lshl2_add_u32 s46, s5, s46
    s_mov_b32 s38, 0xffffe000
    s_mov_b32 s39, 0xffffe000
    s_cmp_eq_u32 s56, 0
    s_cselect_b32 s39, 0, s39
    s_cmp_lg_u32 s59, 128
    s_cbranch_scc1 L_live
    s_mov_b32 s39, 0
    s_cmp_eq_u32 s5, 0
    s_cselect_b32 s38, s38, 0
    """)
    a.label("L_live")
    a("s_cmp_eq_u32 s38, 0")
    a("s_cselect_b32 s49, 0x%x, s49" % OOB)
    a("s_cselect_b32 s36, 0, s46")
    a("s_add_u32 s37, s46, 2")
    a("s_cmp_eq_u32 s39, 0")
    a("s_cselect_b32 s50, 0x%x, s50" % OOB)
    a("s_cselect_b32 s37, 0, s37")
    a("s_lshl_b32 s51, s3, 7")
    a("s_add_u32 s51, s51, 0x%x" % WS_PRE)
    a("s_xor_b32 s53, s4, 31")
    a("s_or_b32 s53, s53, s5")
    a("s_cselect_b32 s51, 0x%x, s51" % OOB)
    stamp(a, 7)
    L = 16
    XU, WU, XM, GAM, PP, PM = 112, 120, 160, 168, 180, 188
    VEC = 128
    GA, SB, CB, GB = VEC, VEC + 8, VEC + 16, VEC + 24

    def inter_load(ks, r):
        a("buffer_load_dwordx4 %s, %s, s[12:15], %s offen sc1" % (v(L + 16 * ks + 4 * r, 4), "v179" if ks else "v5", s(40 + r)))

    def unpack(dst, src):
        for d in range(4):
            a("v_lshlrev_b32 %s, 16, %s" % (v(dst + 2 * d), v(src + d)))
            a("v_and_b32 %s, 0xffff0000, %s" % (v(dst + 2 * d + 1), v(src + d)))

    def mirror_write(src, a0, a123, off=0):
        a("ds_write_b32 %s, %s offset:%d" % (a0, v(src), off))
        a("ds_write_b32 %s, %s offset:%d" % (a123, v(src + 1), off + 8))
        a("ds_write_b32 %s, %s offset:%d" % (a123, v(src + 2), off + 4))
        a("ds_write_b32 %s, %s offset:%d" % (a123, v(src + 3), off))

    def mirror(dst, src):
        for b, a0, a123 in ((src, "v196", "v178"), (src + 4, "v177", "v176")):
            a("ds_write_b32 %s, %s" % (a0, v(b)))
            a("ds_write_b32 %s, %s offset:8" % (a123, v(b + 1)))
            a("ds_write2_b32 %s, %s, %s offset0:1 offset1:0" % (a123, v(b + 2), v(b + 3)))
        a("ds_read_b128 %s, v14" % v(dst, 4))
        a("ds_read_b128 %s, v14 offset:1280" % v(dst + 4, 4))

    def mod_loads():
        a("buffer_load_dwordx4 v[48:51], v4, s[12:15], 0 offen offset:%d sc1" % (WS_MOD + 2048))
        a("buffer_load_dwordx4 v[52:55], v4, s[12:15], 0 offen offset:%d sc1" % WS_MOD)
        a("buffer_load_dwordx4 v[64:67], v197, s[12:15], s55 offen sc1")

    def vec_read(reg, k):
        a("ds_read_b128 %s, v198 offset:%d" % (v(reg, 4), 2560 * k))
        a("ds_read_b128 %s, v198 offset:%d" % (v(reg + 4, 4), 2560 * k + 1280))

    def tag_check(regs_):
        a("v_xor_b32 v88, %s, v249" % v(regs_[0]))
        a("v_xor_b32 v89, %s, v249" % v(regs_[1]))
        for k, r in enumerate(regs_[2:]):
            a("v_bitop3_b32 %s, %s, %s, v249 bitop3:0xf6" % (v(88 + k % 2), v(88 + k % 2), v(r)))
        a("v_or_b32 v88, v88, v89")
        a("v_cmp_ne_u32 vcc, 0, v88")

    def widen(base, n):
        for b in range(base, base + n, 2):
            a("v_and_b32 %s, 0xffff0000, %s" % (v(b + 1), v(b)))
            a("v_lshlrev_b32 %s, 16, %s" % (v(b), v(b)))

    a("s_add_u32 s55, s62, %d" % (WS_MOD + 4096))
    a("""
    v_and_b32 v197, 3, v0
    v_lshlrev_b32 v197, 4, v197
    v_lshl_add_u32 v197, v2, 6, v197
    v_bfe_u32 v68, v0, 2, 2
    v_lshl_add_u32 v197, v68, 8, v197
    v_mul_u32_u24 v68, 80, v1
    v_lshl_add_u32 v198, v2, 4, v68
    """)
    a("v_add_u32 v198, %d, v198               ; vector read address" % LDS_VEC)
    a("""
    s_mul_i32 s53, s5, 1280
    v_add_u32 v90, s53, v198
    s_bitcmp1_b32 s5, 0
    s_cselect_b64 vcc, -1, 0
    v_cndmask_b32 v91, v196, v177, vcc
    v_cndmask_b32 v199, v178, v176, vcc
    s_lshr_b32 s53, s5, 1
    s_sub_u32 s53, s53, s5
    s_mul_i32 s53, s53, 2560
    """)
    a("s_add_u32 s53, s53, %d" % (LDS_VEC + 4 * 2560 - LDS_SCR))
    a("v_add_u32 v91, s53, v91")
    a("v_add_u32 v199, s53, v199")
    a("s_waitcnt vmcnt(0)")
    a("""
    ds_write_b128 v15, v[100:103]
    ds_write_b128 v15, v[104:107] offset:1024
    ds_read_b64 v[56:57], v12
    ds_read_b64 v[58:59], v12 offset:512
    ds_read_b64 v[84:85], v12 offset:1024
    ds_read_b64 v[86:87], v12 offset:1536
    ds_write_b128 v15, v[108:111]
    ds_read_b64 v[60:61], v12
    ds_read_b64 v[62:63], v12 offset:512
    s_waitcnt lgkmcnt(0)
    """)
    unpack(XU, 56)
    unpack(72, 84)
    unpack(WU, 60)
    mirror(XM, 72)
    a("s_bitcmp1_b32 s5, 0")
    a("s_cselect_b64 vcc, -1, 0")
    for j in range(4):
        a("v_cndmask_b32 %s, %s, %s, vcc" % (v(92 + j), v(WU + j), v(WU + 4 + j)))
    a("s_cmp_lt_u32 s5, 2")
    a("s_cselect_b64 vcc, -1, 0")
    for j in range(4):
        a("v_cndmask_b32 %s, %s, 1.0, vcc" % (v(92 + j), v(92 + j)))
    a("s_mov_b32 s54, %d" % SPIN)
    a("s_waitcnt lgkmcnt(0)")
    if PROG:
        a("""
        v_and_b32 v8, 7, v0
        v_bfe_u32 v6, v0, 3, 2
        v_lshl_add_u32 v8, v6, 5, v8
        s_lshr_b32 s52, s52, 1
        """)
        a("v_lshlrev_b32 v8, %d, v8" % FSH)
        a("s_lshl_b32 s52, s52, %d" % (FSH + 3))
        a("s_add_u32 s52, s52, 0x%x" % WS_FLAG)
        a("s_mov_b32 s32, -1")
        a("s_mov_b32 s33, 0")
        a("s_mov_b32 s48, 0")
        a.label("L_poll1")
        a("s_mov_b64 exec, s[32:33]")
        a("buffer_load_dword v6, v8, s[12:15], s52 offen sc1")
        a("s_waitcnt vmcnt(0)")
        a("v_cmp_ne_u32 vcc, v6, %s" % v(VTAG))
        a("s_mov_b64 exec, -1")
        a("""
        s_mov_b32 s32, vcc_lo
        s_lshr_b32 s34, s32, 1
        s_or_b32 s34, s34, s32
        s_lshr_b32 s35, s34, 2
        s_or_b32 s34, s34, s35
        s_or_b32 s34, s34, s48
        s_andn2_b32 s34, 0x11111111, s34
        s_cbranch_scc0 L_skip7
        s_or_b32 s48, s48, s34
        """)
        for i in range(8):
            a("s_bitcmp1_b32 s34, %d" % (4 * i))
            a("s_cbranch_scc0 L_skip%d" % i)
            inter_load(i // 4, i % 4)
            a.label("L_skip%d" % i)
        a("s_cmp_eq_u32 s32, 0")
        poll_tail(a, "L_poll1")
        stamp(a, 8)
        a("s_mov_b32 s54, %d" % SPIN)
        a("s_branch L_inter_go")
        a.vm = []
    else:
        a("s_cmp_ge_u32 s5, 2")
        a("s_cbranch_scc1 L_poll1_ok")
        a("v_lshlrev_b32 v8, %d, v0" % FSH)
        a("s_mov_b32 s52, 0x%x" % WS_FLAG)
        a.label("L_poll1")
        a("buffer_load_dword v6, v8, s[12:15], s52 offen sc1")
        a("s_waitcnt vmcnt(0)")
        a("v_cmp_ne_u32 vcc, v6, %s" % v(VTAG))
        a("s_and_b64 exec, exec, vcc")
        a("s_cmp_eq_u64 exec, 0")
        poll_tail(a, "L_poll1")
        a("s_mov_b64 exec, -1")
        a("s_mov_b32 s54, %d" % SPIN)
        a("s_barrier")
        stamp(a, 8)
    a.label("L_inter")
    for ks in range(2):
        for r in range(4):
            inter_load(ks, r)
    a.label("L_inter_go")
    mod_loads()
    ACC = 96
    for ks in range(2):
        a.wait_vm_for(v(L, 32) if PROG else v(L + 16 * ks, 16))
        if ks == 1 - PROG:
            stamp(a, 9)
        TT = 68 if ks == 0 else 16
        b = L + 16 * ks
        for i in range(4):
            for hp in range(2):
                o = i & 1
                a("v_pk_mov_b32 %s, %s, %s op_sel:[%d,%d]" % (v(TT + 4 * i + 2 * hp, 2), v(b + 8 * hp + (i & 2), 2), v(b + 8 * hp + 4 + (i & 2), 2), o, o))
        for i in range(4):
            acc = v(ACC + 4 * i, 4)
            a("v_mfma_f32_16x16x32_bf16 %s, %s, %s, %s" % (acc, v(SA + 4 * ks, 4), v(TT + 4 * i, 4), "0" if ks == 0 else acc))
    a("""
    v_max3_u32 v6, v68, v69, v70
    v_max3_u32 v8, v71, v16, v17
    v_max3_u32 v6, v6, v18, v19
    v_max_u32 v6, v6, v8
    v_cmp_eq_u32 vcc, -1, v6
    s_waitcnt vmcnt(0)
    s_cmp_eq_u64 vcc, 0
    """)
    poll_tail(a, "L_inter")
    a("s_mov_b32 s54, %d" % SPIN)
    a("s_branch L_modv_chk")
    a.label("L_modv")
    mod_loads()
    a("s_waitcnt vmcnt(0)")
    a.label("L_modv_chk")
    tag_check([49, 51, 53, 55, 65, 67])
    a("v_and_b32 v65, 0xffff0000, v64")
    a("v_and_b32 v67, 0xffff0000, v66")
    a("s_cmp_eq_u64 vcc, 0")
    poll_tail(a, "L_modv")
    a("""
    v_lshlrev_b32 v64, 16, v64
    v_lshlrev_b32 v66, 16, v66
    ds_write_b128 v90, v[64:67]
    s_bitcmp1_b32 s5, 1
    s_cbranch_scc1 L_nop
    v_pk_mul_f32 v[92:93], v[92:93], v[64:65]
    v_pk_mul_f32 v[94:95], v[94:95], v[66:67]
    ds_write_b32 v91, v92
    ds_write_b32 v199, v93 offset:8
    ds_write2_b32 v199, v94, v95 offset0:1 offset1:0
    s_cmp_lt_u32 s5, 2
    s_cbranch_scc1 L_nop
    ds_write_b128 v90, v[92:95] offset:7680
    """)
    a.label("L_nop")
    widen(48, 8)
    for i in range(4):
        a("v_mul_f32 %s, v11, %s" % (v(52 + i), v(52 + i)))
    if FINE == 1:
        stamp(a, 1)
    P = 32
    for i in range(4):
        c = ACC + 4 * i
        a("v_fma_f32 %s, %s, %s, %s" % (v(c), v(c), v(48 + i), v(52 + i)))
        a("v_mul_f32 %s, %s, %s" % (v(c + 1), v(c + 1), v(48 + i)))
        a("v_pk_mul_f32 %s, %s, %s op_sel:[0,%d] op_sel_hi:[1,%d]" % (v(c + 2, 2), v(c + 2, 2), v(48 + (i & 2), 2), i & 1, i & 1))
        for tt in range(2):
            a("v_cvt_pk_bf16_f32 %s, %s, %s" % (v(P + 4 * tt + 2 * (i % 2) + i // 2), v(c + 2 * tt), v(c + 2 * tt + 1)))
        if i >= 2:
            for tt in range(2):
                a("ds_write_b64 v9, %s offset:%d" % (v(P + 4 * tt + 2 * (i - 2), 2), tt * 2560 + (i - 2) * 1280))
    a("s_waitcnt lgkmcnt(0)")
    if FINE == 1:
        stamp(a, 2)
    a("s_barrier")
    if FINE == 1:
        stamp(a, 3)
    D = 24
    a("ds_read_b128 %s, v10" % v(D, 4))
    a("ds_read_b128 %s, v10 offset:1280" % v(D + 4, 4))

    def notice():
        a("s_mov_b64 exec, 1")
        a("buffer_store_dword %s, off, s[12:15], s51 sc1" % v(VTAG))
        a("s_mov_b64 exec, -1")
    if PRE == 1:
        notice()
    a("v_mov_b32 v80, s38")
    a("v_mov_b32 v81, s36")
    a("v_lshlrev_b32 v11, 3, v3")
    a("v_add_u32 v11, %d, v11" % LDS_KEY)
    a("v_mov_b32 v13, %d" % LDS_KEY)
    a("s_mov_b32 exec_lo, 0")
    a("v_mov_b32 v80, s39")
    a("v_mov_b32 v81, s37")
    a("v_add_u32 v11, 4, v11")
    a("s_mov_b32 exec_lo, -1")
    BR, BI = 32, 40
    for h in range(2):
        a.wait_lg_for(v(D + 4 * h, 4))
        a("v_mfma_f32_16x16x32_bf16 %s, %s, %s, 0" % (v(BR + 4 * h, 4), v(D + 4 * h, 4), v(FR, 4)))
        a("v_mfma_f32_16x16x32_bf16 %s, %s, %s, 0" % (v(BI + 4 * h, 4), v(D + 4 * h, 4), v(FI, 4)))
    A2 = 16
    Y = 64
    for h in range(2):
        for j in range(0, 4, 2):
            br, bi, tc, ts = v(BR + 4 * h + j, 2), v(BI + 4 * h + j, 2), v(TC + 4 * h + j, 2), v(TS + 4 * h + j, 2)
            a("v_pk_mul_f32 %s, %s, %s" % (v(48 + j, 2), br, tc))
            a("v_pk_mul_f32 %s, %s, %s" % (v(52 + j, 2), bi, tc))
            a("v_pk_fma_f32 %s, %s, %s, %s" % (v(48 + j, 2), bi, ts, v(48 + j, 2)))
            a("v_pk_fma_f32 %s, %s, %s, %s neg_lo:[1,0,0] neg_hi:[1,0,0]" % (v(52 + j, 2), br, ts, v(52 + j, 2)))
        if h == 0:
            vec_read(PP, 5)
            vec_read(GA, 0)
        else:
            vec_read(GAM, 4)
            vec_read(PM, 6)
        for k in range(4):
            a("v_cvt_pk_bf16_f32 %s, %s, %s" % (v(A2 + 4 * h + k), v(48 + k), v(52 + k)))
        for gg in range(2):
            y = v(Y + 4 * gg, 4)
            a("v_mfma_f32_16x16x32_bf16 %s, %s, %s, %s" % (y, v(A2 + 4 * h, 4), v(G + 8 * h + 4 * gg, 4), "0" if h == 0 else y))
    if FINE:
        stamp(a, 4)
    if PRE == 2:
        notice()
    a("v_mov_b32 v57, %s" % v(VTAG))
    a("v_mov_b32 v59, %s" % v(VTAG))
    a("s_lshl_b32 s58, s59, %d" % KSH)
    a("s_add_u32 s58, s58, 0x%x" % WS_KEYS)
    a("s_cmp_eq_u32 s5, 0")
    a("s_cselect_b32 s58, s58, 0x%x" % OOB)
    rows = ((XU, GA, PP, 32), (XM, GAM, PM, 40))
    a.wait_lg_for(v(PP, 8))
    a("v_pk_add_f32 v[38:39], %s, %s" % (v(PP, 2), v(PP + 2, 2)))
    a("v_pk_add_f32 v[46:47], %s, %s" % (v(PP + 4, 2), v(PP + 6, 2)))
    a("v_pk_add_f32 v[38:39], v[38:39], v[46:47]")
    a("v_add_f32 v38, v38, v39")
    a("v_mov_b32 v46, v38")
    for xx, ga, pp, tp in rows:
        a.wait_lg_for(v(ga, 8))
        for e in range(0, 8, 2):
            a("v_pk_fma_f32 %s, %s, %s, %s" % (v(xx + e, 2), v(ga + e, 2), v(Y + e, 2), v(xx + e, 2)))
    XN = 72
    for xx, ga, pp, tp in rows:
        a.wait_lg_for(v(pp, 8))
        a("v_pk_add_f32 %s, %s, %s" % (v(tp, 2), v(xx, 2), v(xx + 2, 2)))
        a("v_pk_mul_f32 %s, %s, %s" % (v(tp + 2, 2), v(xx, 2), v(xx, 2)))
        a("v_pk_mul_f32 %s, %s, %s" % (v(tp + 4, 2), v(xx, 2), v(pp, 2)))
        for e in range(2, 8, 2):
            if e > 2:
                a("v_pk_add_f32 %s, %s, %s" % (v(tp, 2), v(tp, 2), v(xx + e, 2)))
            a("v_pk_fma_f32 %s, %s, %s, %s" % (v(tp + 2, 2), v(xx + e, 2), v(xx + e, 2), v(tp + 2, 2)))
            a("v_pk_fma_f32 %s, %s, %s, %s" % (v(tp + 4, 2), v(xx + e, 2), v(pp + e, 2), v(tp + 4, 2)))
        for k in range(3):
            a("v_add_f32 %s, %s, %s" % (v(tp + 2 * k), v(tp + 2 * k), v(tp + 2 * k + 1)))
    for k in (3, 0, 1, 2):
        a("v_permlane32_swap_b32 %s, %s" % (v(32 + 2 * k), v(40 + 2 * k)))
    for k in (3, 0, 1, 2):
        a("v_add_f32 %s, %s, %s" % (v(32 + 2 * k), v(32 + 2 * k), v(40 + 2 * k)))
    a("v_permlane16_swap_b32 v32, v34")
    a("v_permlane16_swap_b32 v36, v38")
    a("v_add_f32 v32, v32, v34")
    a("v_add_f32 v36, v36, v38")
    if EARLYH:
        extra = []
        for b, a0, a123 in ((XM, "v196", "v178"), (XM + 4, "v177", "v176")):
            extra += ["ds_write_b32 %s, %s" % (a0, v(b)), "ds_write_b32 %s, %s offset:8" % (a123, v(b + 1)), "ds_write2_b32 %s, %s, %s offset0:1 offset1:0" % (a123, v(b + 2), v(b + 3))]
        for k, mod in enumerate(ROR):
            for r in (32, 36):
                a("v_add_f32_dpp %s, %s, %s %s" % (v(r), v(r), v(r), mod))
            for t in extra[(k * 6) // 4:((k + 1) * 6) // 4]:
                a(t)
    else:
        dpp_sum(a, [32, 36], ROR)
    if FINE == 1:
        stamp(a, 5)
    if PRE == 3:
        notice()
    a("v_mov_b32_dpp v33, v32 %s" % BC[0])
    a("v_mov_b32_dpp v37, v36 %s" % BC[0])
    a("v_mul_f32 v33, %s, v33                 ; mean" % f32(1 / 512))
    a("v_mul_f32 v34, v33, v33")
    a("v_sub_f32 v34, %s, v34" % f32(EPS))
    a("v_fmac_f32 v34, %s, v32" % f32(1 / 512))
    a("v_rsq_f32 v34, v34")
    a("""
    v_fma_f32 v36, -v33, v36, v37
    v_mul_f32 v8, v36, v34
    v_ashrrev_i32 v9, 31, v8
    v_or_b32 v9, s63, v9
    v_xor_b32 v8, v8, v9
    v_and_or_b32 v8, v8, v80, v81
    s_mov_b32 exec_lo, 0x80000000
    s_mov_b32 exec_hi, 0x80000000
    ds_write_b32 v11, v8
    s_mov_b64 exec, -1
    v_mul_f32 v35, v33, v34
    s_cmp_lg_u32 s5, 0
    s_cbranch_scc1 L_noprio
    s_setprio 3
    """)
    a.label("L_noprio")
    a("s_waitcnt lgkmcnt(0)")
    stamp(a, 10)
    a("s_barrier")
    for k in range(4):
        a("ds_read_b128 %s, v13 offset:%d" % (v(16 + 4 * k, 4), 16 * k))
    a("""
    v_readlane_b32 s56, v8, 31
    v_readlane_b32 s57, v8, 63
    v_readlane_b32 s32, v34, 31
    v_readlane_b32 s33, v35, 31
    v_readlane_b32 s34, v34, 63
    v_readlane_b32 s35, v35, 63
    s_waitcnt lgkmcnt(2)
    v_max_u32 v56, v16, v17
    v_min_u32 v58, v16, v17
    """)
    for k in range(18, 30, 4):
        if k == 22:
            a("s_waitcnt lgkmcnt(0)")
        a("v_med3_u32 v60, v56, %s, %s" % (v(k), v(k + 1)))
        a("v_max3_u32 v56, v56, %s, %s" % (v(k), v(k + 1)))
        a("v_med3_u32 v61, v56, %s, %s" % (v(k + 2), v(k + 3)))
        a("v_max3_u32 v56, v56, %s, %s" % (v(k + 2), v(k + 3)))
        a("v_max3_u32 v58, v58, v60, v61")
    a("""
    v_med3_u32 v60, v56, v30, v31
    v_max3_u32 v56, v56, v30, v31
    v_max_u32 v60, v58, v60
    v_or_b32 v58, 1, v60
    s_mov_b64 exec, 1
    buffer_store_dwordx4 v[56:59], off, s[12:15], s58 sc1
    s_mov_b64 exec, -1
    s_setprio 0
    """)
    if FINE:
        stamp(a, 6)
    vec_read(CB, 2)
    vec_read(SB, 1)
    if EARLYH:
        a("ds_read_b128 %s, v14" % v(XN, 4))
        a("ds_read_b128 %s, v14 offset:1280" % v(XN + 4, 4))
        vec_read(GB, 3)
    else:
        vec_read(GB, 3)
        mirror(XN, XM)
    a("v_readfirstlane_b32 s60, v56")
    a("v_readfirstlane_b32 s61, v60")
    H, HM = 32, 88
    OUT, OUTM, HP, HPM = 40, 44, 48, 52
    for ri, (xx, hh, sp, o, hp) in enumerate(((XU, H, 32, OUT, HP), (XN, HM, 34, OUTM, HPM))):
        if ri:
            a("s_waitcnt lgkmcnt(0)")
        a("v_mov_b32 v60, %s" % s(sp + 1))
        for e in range(8):
            a("v_fma_f32 %s, %s, %s, -v60" % (v(hh + e), v(xx + e), s(sp)))
        a.wait_lg_for(v(VEC, 32))
        for e in range(0, 8, 2):
            a("v_pk_fma_f32 %s, %s, %s, %s" % (v(hh + e, 2), v(hh + e, 2), v(CB + e, 2), v(SB + e, 2)))
        for d in range(4):
            a("v_cvt_pk_bf16_f32 %s, %s, %s" % (v(hp + d), v(hh + 2 * d), v(hh + 2 * d + 1)))
        for e in range(0, 8, 2):
            a("v_pk_fma_f32 %s, %s, %s, %s" % (v(xx + e, 2), v(GB + e, 2), v(hh + e, 2), v(xx + e, 2)))
        for d in range(4):
            a("v_cvt_pk_bf16_f32 %s, %s, %s" % (v(o + d), v(xx + 2 * d), v(xx + 2 * d + 1)))
    a("""
    ds_write_b64 v12, v[40:41]
    ds_write_b64 v12, v[42:43] offset:512
    ds_write_b64 v12, v[44:45] offset:1024
    ds_write_b64 v12, v[46:47] offset:1536
    ds_read_b128 v[40:43], v15
    ds_read_b128 v[44:47], v15 offset:1024
    s_max_u32 s61, s61, 1
    """)
    for ri, (key, off, o, hp) in enumerate((("s56", "s49", OUT, HP), ("s57", "s50", OUTM, HPM))):
        a("s_mov_b32 s58, s45")
        a("s_cmp_eq_u32 %s, s60" % key)
        a("s_cbranch_scc1 L_cand%d" % ri)
        a("s_add_u32 s58, s45, 2048")
        a("s_cmp_eq_u32 %s, s61" % key)
        a("s_cselect_b32 s53, 1, 0")
        a("s_or_b32 %s, %s, s53" % (key, key))
        a("s_cmp_eq_u32 s53, 1")
        stc = a.fork()
        a("s_cbranch_scc1 L_cand%d" % ri)
        a("s_mov_b32 %s, 0" % key)
        a("s_waitcnt lgkmcnt(0)")
        a("buffer_store_dwordx4 %s, v250, s[28:31], %s offen%s" % (v(o, 4), off, OUTF))
        a("s_branch L_next%d" % ri)
        a.label("L_cand%d" % ri)
        a.join(stc)
        a("buffer_store_dwordx4 %s, v250, s[12:15], s58 offen sc1" % v(hp, 4))
        a("s_waitcnt lgkmcnt(0)")
        a("buffer_store_dwordx4 %s, v250, s[12:15], s58 offen offset:1024 sc1" % v(o, 4))
        a.label("L_next%d" % ri)
    a.label("L_tail", reset=True)
    a("""
    s_lshl_b32 s59, s5, 8
    s_add_u32 s59, s59, s2
    s_sub_u32 s59, s59, 192
    s_cmp_lt_u32 s59, 64
    s_cselect_b32 s59, 1, 0
    s_or_b32 s60, s59, s56
    s_or_b32 s60, s60, s57
    s_cbranch_scc0 L_done
    s_lshl_b32 s45, s3, 7
    """)
    a("s_add_u32 s45, s45, 0x%x" % WS_SEL)
    a("s_cmp_eq_u32 s59, 0")
    a("s_cbranch_scc1 L_sel_go")
    a("""
    s_lshl3_add_u32 s44, s3, s4
    s_sub_u32 s44, s44, 24
    s_lshr_b32 s48, s44, 2
    s_lshl_b32 s48, s48, 5
    s_and_b32 s46, s44, 3
    s_lshl2_add_u32 s48, s46, s48
    v_and_b32 v4, 3, v0
    v_lshrrev_b32 v5, 1, v2
    v_lshl_add_u32 v5, v5, 4, v4
    v_add_u32 v5, s48, v5
    v_and_b32 v8, 0x103, v5
    v_bfe_u32 v9, v5, 2, 2
    v_lshl_add_u32 v8, v9, 6, v8
    v_bfe_u32 v9, v5, 4, 4
    v_lshl_add_u32 v8, v9, 2, v8
    v_lshlrev_b32 v8, 2, v8
    """)
    a("ds_write_b128 v15, %s" % v(GB, 4))
    a("ds_write_b128 v15, %s offset:1024" % v(GB + 4, 4))
    a("ds_read_b32 v8, v8 offset:%d           ; gb[e]" % LDS_SCR)
    a("v_pk_mul_f32 v[62:63], %s, %s" % (v(SB, 2), v(WU, 2)))
    for e in range(2, 8, 2):
        a("v_pk_fma_f32 v[62:63], %s, %s, v[62:63]" % (v(SB + e, 2), v(WU + e, 2)))
    a("v_add_f32 v62, v62, v63")
    dpp_sum(a, [62], ROR + BC)
    a("v_readlane_b32 s58, v62, 63")
    a("""
    v_bfe_u32 v9, v0, 2, 4
    v_lshlrev_b32 v9, 12, v9
    v_lshl_add_u32 v9, v4, 4, v9
    s_lshl_b32 s40, s44, 6
    v_and_b32 v10, 1, v2
    v_cmp_eq_u32 s[52:53], 1, v10
    v_mov_b32 v36, 0
    v_mov_b32 v37, 0
    v_mov_b32 v38, 0
    v_mov_b32 v39, 0
    """)
    a("s_add_u32 s40, s40, 0x%x" % WS_PART)
    a("s_add_u32 s41, s40, 0x10000")
    a("s_add_u32 s42, s40, 0x20000")
    a("s_add_u32 s43, s40, 0x30000")
    a("s_waitcnt lgkmcnt(0)")
    a.label("L_sel_go")
    a("s_mov_b32 s54, %d" % SPIN)
    a.label("L_poll_sel")
    a("buffer_load_dwordx4 v[16:19], off, s[12:15], s45 sc1")
    a("s_waitcnt vmcnt(0)")
    a("v_cmp_eq_u32 vcc, v17, %s" % v(VTAG))
    a("v_cmp_eq_u32 s[60:61], v19, %s" % v(VTAG))
    a("s_and_b64 vcc, vcc, s[60:61]")
    a("s_cmp_eq_u64 vcc, -1")
    poll_tail(a, "L_poll_sel")
    stamp(a, 11)
    a("""
    v_readfirstlane_b32 s60, v16
    v_readfirstlane_b32 s61, v18
    """)
    if LO:
        for ri, (key, off, o) in enumerate((("s56", "s49", OUT), ("s57", "s50", OUTM))):
            a("s_cmp_eq_u32 %s, 0" % key)
            a("s_cbranch_scc1 L_lo%d" % ri)
            a("s_cmp_eq_u32 %s, s60" % key)
            a("s_cbranch_scc1 L_lo%d" % ri)
            a("s_cmp_eq_u32 %s, s61" % key)
            a("s_cbranch_scc1 L_lo%d" % ri)
            a("buffer_store_dwordx4 %s, v250, s[28:31], %s offen" % (v(o, 4), off))
            a.label("L_lo%d" % ri)
    a("""
    s_cmp_eq_u32 s59, 0
    s_cbranch_scc1 L_late_out
    v_cndmask_b32 v16, v16, v18, s[52:53]
    v_bfe_u32 v17, v16, 5, 8
    v_and_b32 v18, 1, v16
    v_lshlrev_b32 v19, 12, v17
    v_lshl_add_u32 v19, v18, 11, v19
    v_lshl_add_u32 v19, v5, 1, v19
    """)
    a("s_mov_b32 s55, 0x%x" % (WS_CAND + 1024))
    a("s_mov_b32 s54, %d" % SPIN)
    a.label("L_poll_base")
    a("""
    buffer_load_ushort v20, v19, s[12:15], s55 offen sc1
    v_and_b32 v21, 7, v17
    v_bfe_u32 v22, v17, 5, 2
    v_lshl_add_u32 v21, v22, 3, v21       ; slot
    v_bfe_u32 v22, v17, 3, 2
    v_lshl_add_u32 v22, v22, 9, v21
    v_subrev_u32 v23, 992, v22
    v_cmp_eq_u32 vcc, 0, v21
    v_cndmask_b32 v23, v22, v23, vcc
    v_cmp_gt_u32 vcc, 1024, v22
    v_cndmask_b32 v21, v23, v22, vcc
    v_lshrrev_b32 v22, 7, v17
    v_lshl_add_u32 v21, v22, 10, v21
    v_bfe_u32 v22, v16, 2, 3
    v_lshl_add_u32 v21, v22, 6, v21
    v_sub_u32 v22, 2048, v21
    v_and_b32 v23, 2, v16
    v_cmp_eq_u32 vcc, 0, v23
    v_cndmask_b32 v21, v22, v21, vcc
    v_lshlrev_b32 v21, 10, v21
    v_lshl_add_u32 v21, v5, 1, v21
    """)
    if FIN == 2:
        a("buffer_load_ushort v49, v21, s[28:31], 0 offen")
    a("""
    v_and_b32 v22, 0xffffe000, v16
    v_ashrrev_i32 v23, 31, v22
    v_not_b32 v23, v23
    v_or_b32 v23, s63, v23
    v_xor_b32 v22, v22, v23
    v_add_f32 v22, s58, v22
    """)
    a("v_mul_f32 v22, %s, v22" % f32(-LOG2E))
    a("""
    v_exp_f32 v22, v22
    v_add_f32 v22, 1.0, v22
    v_rcp_f32 v22, v22
    v_mul_f32 v22, v22, v8
    s_waitcnt vmcnt(0)
    v_cmp_eq_u32 vcc, 0xffff, v20
    s_cmp_eq_u64 vcc, 0
    """)
    poll_tail(a, "L_poll_base")
    a("s_mov_b32 s54, %d" % SPIN)
    a.label("L_poll_part")
    a("""
    buffer_load_dwordx4 v[24:27], v9, s[12:15], s40 offen sc1
    buffer_load_dwordx4 v[28:31], v9, s[12:15], s41 offen sc1
    buffer_load_dwordx4 v[32:35], v9, s[12:15], s42 offen sc1
    s_mov_b32 exec_hi, 0
    buffer_load_dwordx4 v[36:39], v9, s[12:15], s43 offen sc1
    s_mov_b32 exec_hi, -1
    s_waitcnt vmcnt(0)
    v_max3_u32 v48, v24, v28, v32
    v_max_u32 v48, v48, v36
    v_cmp_eq_u32 vcc, -1, v48
    s_cmp_eq_u64 vcc, 0
    """)
    poll_tail(a, "L_poll_part")
    stamp(a, 12)
    a("""
    v_pk_add_f32 v[24:25], v[24:25], v[28:29]
    v_pk_add_f32 v[26:27], v[26:27], v[30:31]
    v_pk_add_f32 v[32:33], v[32:33], v[36:37]
    v_pk_add_f32 v[34:35], v[34:35], v[38:39]
    v_pk_add_f32 v[24:25], v[24:25], v[32:33]
    v_pk_add_f32 v[26:27], v[26:27], v[34:35]
    v_permlane32_swap_b32 v24, v26
    v_permlane32_swap_b32 v25, v27
    v_pk_add_f32 v[24:25], v[24:25], v[26:27]
    v_permlane16_swap_b32 v24, v25
    v_add_f32 v24, v24, v25
    v_lshlrev_b32 v20, 16, v20
    """)
    dpp_sum(a, [24], ROR[:2])
    a("""
    v_fmac_f32 v20, v24, v22
    v_cvt_pk_bf16_f32 v20, v20, v20
    s_mov_b32 exec_lo, 0x000f000f
    s_mov_b32 exec_hi, 0x000f000f
    buffer_store_short v20, v21, s[28:31], 0 offen OUTF
    s_mov_b64 exec, -1
    s_cmp_lg_u32 s2, 192
    s_cbranch_scc1 L_late_out
    s_mov_b64 exec, 1
    """.replace(" OUTF", " sc1" if FIN == 1 else ""))
    a("s_mov_b32 s55, 0x%x" % WS_GEN)
    a("buffer_store_dword %s, off, s[12:15], s55" % v(VTAG))
    a("s_mov_b64 exec, -1")
    if PROBE >= 0 and not PFFN:
        probe_spin(a)
    a.label("L_late_out", reset=True)
    for ri, (key, off, o) in enumerate((("s56", "s49", OUT), ("s57", "s50", OUTM)) if not LO else ()):
        nxt = "L_late1" if ri == 0 else "L_done"
        a("s_cmp_eq_u32 %s, 0" % key)
        a("s_cbranch_scc1 %s" % nxt)
        a("s_cmp_eq_u32 %s, s60" % key)
        a("s_cbranch_scc1 %s" % nxt)
        a("s_cmp_eq_u32 %s, s61" % key)
        a("s_cbranch_scc1 %s" % nxt)
        a("buffer_store_dwordx4 %s, v250, s[28:31], %s offen%s" % (v(o, 4), off, OUTF))
        if ri == 0:
            a.label("L_late1")
    a("s_branch L_done")
    a.label("L_ffn", reset=True)
    a("s_mov_b32 s58, s4")
    a("""
    s_mul_i32 s6, s3, 7
    s_add_u32 s6, s6, s58
    s_lshl_b32 s46, s6, 12
    """)
    a("s_add_u32 s46, s46, 0x%x               ; partial-sum slab" % WS_PART)
    a("s_add_u32 s45, s46, s62")
    a("s_cmp_lt_u32 s5, 4")
    a("s_cselect_b32 s45, s45, 0x%x" % OOB)
    if EPART:
        a("v_mov_b32 v33, %s" % v(VTAG))
        a("v_mov_b32 v35, %s" % v(VTAG))
        if EPART == 2:
            a("s_waitcnt vmcnt(0)")
        a("s_barrier")
    else:
        a("buffer_store_dwordx4 v[252:255], v250, s[12:15], s45 offen sc1")
        a("v_mov_b32 v33, %s" % v(VTAG))
        a("v_mov_b32 v35, %s" % v(VTAG))
        a("v_mov_b32 v32, 0")
        a("v_mov_b32 v34, 0")
        a("s_lshl_b32 s53, s6, %d" % KSH)
        a("s_add_u32 s53, s53, 0x%x" % (WS_KEYS + (129 << KSH)))
        a("s_cmp_eq_u32 s5, 0")
        a("s_cselect_b32 s53, s53, 0x%x" % OOB)
        a("s_waitcnt vmcnt(0)")
        a("s_barrier")
        a("s_mov_b64 exec, 1")
        a("buffer_store_dwordx4 v[32:35], off, s[12:15], s53 sc1")
        a("s_mov_b64 exec, -1")
    a("s_mov_b64 s[32:33], s[18:19]")
    a("s_mov_b64 s[36:37], s[20:21]")
    a("s_mov_b64 s[40:41], s[22:23]")
    srd(a, 32, 512 * 3584)
    srd(a, 36, 512 * 3584)
    srd(a, 40, 1792 * 1024)
    a("""
    s_and_b32 s44, s5, 1
    s_lshl_b32 s44, s44, 7
    s_lshr_b32 s48, s5, 1
    s_lshl2_add_u32 s44, s48, s44
    v_bfe_u32 v4, v0, 2, 2
    v_lshl_add_u32 v4, v2, 4, v4
    v_add_u32 v4, s44, v4
    v_mul_u32_u24 v4, 3584, v4
    v_and_b32 v5, 3, v0
    SWZA
    v_lshl_add_u32 v4, v5, 4, v4
    s_lshl_b32 s48, s6, 6
    s_mul_i32 s7, s5, 12288
    s_mov_b32 m0, s7
    """.replace("SWZA", "v_and_b32 v6, 1, v2\nv_lshlrev_b32 v6, 1, v6\nv_xor_b32 v5, v5, v6" if SWZ else ""))
    a("s_add_u32 s49, s48, %d" % (64 * 3584))
    a("s_add_u32 s50, s48, %d" % (256 * 3584))
    a("s_add_u32 s51, s48, %d" % (320 * 3584))
    stamp(a, 7)
    for sr in (32, 36):
        for i in range(4):
            a("buffer_load_dwordx4 v4, %s, %s offen lds" % (s(sr, 4), s(48 + i)))
            a("s_add_u32 m0, m0, 1024")
    a("""
    v_bfe_u32 v5, v0, 3, 3
    v_lshlrev_b32 v5, 10, v5
    v_and_b32 v4, 7, v0
    SWZB
    v_lshl_add_u32 v5, v4, 4, v5
    v_lshl_add_u32 v5, v3, 7, v5
    v_xor_b32 v6, SWZC, v5
    s_lshl_b32 s48, s6, 15
    """.replace("SWZB", "v_lshrrev_b32 v6, 3, v0\nv_and_b32 v6, 2, v6\nv_xor_b32 v4, v4, v6" if SWZ else "").replace("SWZC", "64" if SWZ else "0"))
    for i in range(4):
        a("buffer_load_dwordx4 %s, s[40:43], s48 offen lds" % ("v6" if i & 1 else "v5"))
        if i < 3:
            a("s_add_u32 m0, m0, 1024")
            a("s_add_u32 s48, s48, 8192")
    WF, WD = 64, 96
    a("v_lshlrev_b32 v6, %d, v0" % KSH)
    a("""
    v_bfe_u32 v4, v0, 2, 4                ; 4q + r
    v_and_b32 v5, 3, v0
    v_lshlrev_b32 v5, 3, v5
    v_lshl_add_u32 v8, v4, 6, v5
    v_add_u32 v8, s7, v8
    v_bfe_u32 v9, v0, 2, 2
    v_lshl_add_u32 v9, v2, 3, v9
    v_lshl_add_u32 v9, v9, 7, v5
    v_add_u32 v9, s7, v9
    """)
    a("""
    v_and_b32 v10, 1, v0
    v_cmp_eq_u32 s[50:51], 1, v10
    v_lshlrev_b32 v11, 7, v3
    v_lshl_add_u32 v11, v2, 4, v11
    v_lshlrev_b32 v12, 6, v10
    v_lshl_add_u32 v13, v2, 4, v12
    v_lshl_add_u32 v13, v3, 9, v13
    v_and_b32 v14, 30, v0
    v_lshl_add_u32 v14, v14, 1, v12
    v_and_b32 v12, 32, v0
    v_lshl_add_u32 v14, v12, 2, v14
    """)
    a("v_add_u32 v13, %d, v13                 ; partial write address" % LDS_RED)
    a("v_add_u32 v14, %d, v14                 ; partial read address" % LDS_RED)
    a("""
    v_lshlrev_b32 v15, 9, v3
    v_lshl_add_u32 v15, v1, 4, v15
    v_lshlrev_b32 v7, 3, v3
    v_mov_b32 v16, 0
    v_mov_b32 v18, 0
    """)
    a("v_add_u32 v7, %d, v7" % LDS_KEY2)
    a("v_mov_b32 v4, %d" % LDS_KEY2)
    if SWZ:
        a("""
        v_and_b32 v12, 1, v2
        v_lshl_add_u32 v40, v12, 5, v8
        v_xor_b32 v41, 32, v40
        v_lshl_add_u32 v42, v12, 6, v9
        v_and_b32 v12, 8, v0
        v_lshl_add_u32 v42, v12, 2, v42
        v_xor_b32 v43, 32, v42
        v_xor_b32 v44, 64, v42
        v_xor_b32 v45, 0x60, v42
        """)
    a("s_waitcnt vmcnt(0)")
    stamp(a, 8)
    for kk in range(2):
        for mt in range(4):
            for hf in range(2):
                if SWZ:
                    a("ds_read_b64_tr_b16 %s, %s offset:%d" % (v(WF + 16 * kk + 4 * mt + 2 * hf, 2), "v41" if mt % 2 else "v40", (mt // 2) * 4096 + hf * 2048 + kk * 1024))
                else:
                    a("ds_read_b64_tr_b16 %s, v8 offset:%d" % (v(WF + 16 * kk + 4 * mt + 2 * hf, 2), (mt // 2) * 4096 + hf * 2048 + kk * 1024 + (mt % 2) * 32))
    for t in range(4):
        for hf in range(2):
            if SWZ:
                a("ds_read_b64_tr_b16 %s, %s offset:%d" % (v(WD + 4 * t + 2 * hf, 2), v(42 + t), 8192 + hf * 512))
            else:
                a("ds_read_b64_tr_b16 %s, v9 offset:%d" % (v(WD + 4 * t + 2 * hf, 2), 8192 + hf * 512 + t * 32))
    a("s_lshl_b32 s52, s3, 7")
    a("s_add_u32 s55, s52, 0x%x" % WS_PRE)
    a("s_add_u32 s52, s52, 0x%x" % WS_SEL)
    a("s_or_b32 s53, s58, s5")
    a("s_cselect_b32 s52, 0x%x, s52           ; one announcing wave per group" % OOB)
    a("s_cmp_ge_u32 s5, 3")
    a("s_cbranch_scc1 L_keys_done")
    a("s_mov_b32 s54, %d" % SPIN)
    if PRE:
        a.label("L_poll_pre")
        a("buffer_load_dword v17, off, s[12:15], s55 sc1")
        a("s_waitcnt vmcnt(0)")
        a("v_cmp_eq_u32 vcc, v17, %s" % v(VTAG))
        a("s_cmp_eq_u64 vcc, -1")
        poll_tail(a, "L_poll_pre")
        a("s_mov_b32 s54, %d" % SPIN)
    stamp(a, 10)
    a("v_cmp_gt_u32 vcc, 185, v0")
    a("s_mov_b32 s55, 0x%x" % WS_KEYS)
    a("s_mov_b64 exec, vcc")
    a.label("L_poll_keys")
    a("buffer_load_dwordx4 v[16:19], v6, s[12:15], s55 offen sc1")
    a("s_waitcnt vmcnt(0)")
    a("v_cmp_ne_u32 vcc, v17, %s" % v(VTAG))
    a("v_cmp_ne_u32 s[60:61], v19, %s" % v(VTAG))
    a("s_or_b64 vcc, vcc, s[60:61]")
    a("s_and_b64 exec, exec, vcc")
    a("s_cmp_eq_u64 exec, 0")
    poll_tail(a, "L_poll_keys")
    a("s_mov_b64 exec, -1")
    for mod in ROR + BC:
        a("v_min_u32_dpp v19, v16, v16 %s" % mod)
        a("v_max_u32_dpp v18, v18, v18 %s" % mod)
        a("v_max_u32_dpp v16, v16, v16 %s" % mod)
        a("v_max_u32 v18, v18, v19")
    a("""
    s_mov_b32 exec_lo, 0
    s_mov_b32 exec_hi, 0x80000000
    ds_write2_b32 v7, v16, v18 offset0:0 offset1:1
    s_mov_b64 exec, -1
    """)
    a.label("L_keys_done")
    a("s_waitcnt lgkmcnt(0)")
    a("s_barrier")
    stamp(a, 11)
    a("ds_read_b128 v[16:19], v4")
    a("ds_read_b64 v[20:21], v4 offset:16")
    a("s_mov_b32 s55, 0x%x" % WS_CAND)
    a("s_mov_b32 s54, %d" % SPIN)
    a("""
    s_waitcnt lgkmcnt(0)
    v_med3_u32 v36, v16, v18, v20
    v_max3_u32 v32, v16, v18, v20
    v_max3_u32 v34, v17, v19, v21
    v_max_u32 v34, v34, v36
    v_cndmask_b32 v36, v32, v34, s[50:51]
    v_bfe_u32 v37, v36, 5, 8
    v_and_b32 v36, 1, v36
    v_lshl_add_u32 v11, v37, 12, v11
    v_lshl_add_u32 v11, v36, 11, v11
    """)
    a.label("L_poll_h2")
    a("""
    buffer_load_dwordx4 v[16:19], v11, s[12:15], s55 offen sc1
    buffer_load_dwordx4 v[20:23], v11, s[12:15], s55 offen offset:64 sc1
    """)
    C = 48
    for kk in range(2):
        a("s_waitcnt vmcnt(%d)" % (1 - kk))
        if kk:
            stamp(a, 12)
        for mt in range(4):
            c = v(C + 4 * mt, 4)
            a("v_mfma_f32_16x16x32_bf16 %s, %s, %s, %s" % (c, v(WF + 16 * kk + 4 * mt, 4), v(16 + 4 * kk, 4), "0" if kk == 0 else c))
    a("""
    v_max_u32 v36, v16, v20
    v_cmp_eq_u32 vcc, -1, v36
    s_cmp_eq_u64 vcc, 0
    """)
    poll_tail(a, "L_poll_h2")
    a("s_mov_b64 exec, 1")
    a("buffer_store_dwordx4 v[32:35], off, s[12:15], s52 sc1")
    a("s_mov_b32 exec_lo, 0x00030003")
    a("s_mov_b32 exec_hi, 0x00030003")
    for mt in range(4):
        a("ds_write_b128 v13, %s offset:%d" % (v(C + 4 * mt, 4), 128 * mt))
    a("s_mov_b64 exec, -1")
    a("s_waitcnt lgkmcnt(0)")
    a("s_barrier")
    a("""
    ds_read2st64_b32 v[16:17], v14 offset0:0 offset1:2
    ds_read2st64_b32 v[18:19], v14 offset0:4 offset1:6
    ds_read2st64_b32 v[20:21], v14 offset0:8 offset1:10
    ds_read2st64_b32 v[22:23], v14 offset0:12 offset1:14
    ds_read2st64_b32 v[24:25], v14 offset0:1 offset1:3
    ds_read2st64_b32 v[26:27], v14 offset0:5 offset1:7
    ds_read2st64_b32 v[28:29], v14 offset0:9 offset1:11
    ds_read2st64_b32 v[30:31], v14 offset0:13 offset1:15
    s_waitcnt lgkmcnt(4)
    v_pk_add_f32 v[16:17], v[16:17], v[18:19]
    v_pk_add_f32 v[20:21], v[20:21], v[22:23]
    v_pk_add_f32 v[16:17], v[16:17], v[20:21]
    v_add_f32 v16, v16, v17
    """)
    a("v_mul_f32 v17, %s, v16" % f32(-LOG2E))
    a("""
    v_exp_f32 v17, v17
    s_waitcnt lgkmcnt(0)
    v_pk_add_f32 v[24:25], v[24:25], v[26:27]
    v_add_f32 v17, 1.0, v17
    v_pk_add_f32 v[28:29], v[28:29], v[30:31]
    v_rcp_f32 v17, v17
    v_pk_add_f32 v[24:25], v[24:25], v[28:29]
    v_add_f32 v24, v24, v25
    v_mul_f32 v16, v16, v17
    v_mul_f32 v16, v16, v24
    v_mov_b32_dpp v17, v16 row_ror:14 row_mask:0xf bank_mask:0xf
    v_cvt_pk_bf16_f32 v20, v16, v17
    v_mov_b32_dpp v21, v20 row_ror:12 row_mask:0xf bank_mask:0xf
    v_mov_b32_dpp v22, v20 row_ror:8 row_mask:0xf bank_mask:0xf
    v_mov_b32_dpp v23, v20 row_ror:4 row_mask:0xf bank_mask:0xf
    """)
    for t in range(4):
        a("v_mfma_f32_16x16x32_bf16 %s, v[20:23], %s, 0" % (v(C + 4 * t, 4), v(WD + 4 * t, 4)))
    a("""
    s_mov_b64 exec, 0xffff
    v_mov_b32 v50, v52
    v_mov_b32 v51, v53
    buffer_store_dwordx4 v[48:51], v15, s[12:15], s46 offen sc1
    v_mov_b32 v58, v60
    v_mov_b32 v59, v61
    buffer_store_dwordx4 v[56:59], v15, s[12:15], s46 offen offset:256 sc1
    s_mov_b64 exec, -1
    """)
    stamp(a, 9)
    if PROBE >= 0 and PFFN:
        a("s_lshl_b32 s94, s2, 3")
        a("s_or_b32 s94, s94, s5")
        a("s_cmp_lg_u32 s94, %d" % (PFFN - 1))
        a("s_cbranch_scc1 L_done")
        probe_spin(a)
    a.label("L_done", reset=True)
    stamp_end(a)
    a.label("L_end")
    a("s_endpgm")
    desc = """.section .rodata,"a"
.p2align 6
.amdhsa_kernel %s
  .amdhsa_next_free_vgpr 256
  .amdhsa_next_free_sgpr 102
  .amdhsa_accum_offset 256
  .amdhsa_group_segment_fixed_size 0
  .amdhsa_kernarg_size 120
  .amdhsa_user_sgpr_count 2
  .amdhsa_user_sgpr_kernarg_segment_ptr 1
  .amdhsa_system_sgpr_workgroup_id_x 1
.end_amdhsa_kernel
""" % KN
    return HEADER + "; @launch grid=(256,1,1) block=(512,1,1) lds=%d\n" % LDS_TOTAL + a.text() + desc


if __name__ == "__main__":
    out = sys.argv[1] if len(sys.argv) > 1 and sys.argv[1].endswith(".s") else "v13.s"
    open(out, "w").write(build())
    print("wrote", out)
```

```python
import sys, struct
from asmlib import Asm, Ins, v, s

NAME = "adaLN_cond__spectral_fnet__moe_arch_mod__prompt"
KN = NAME + "_kernel"
HEADER = open("cdna_kernels/%s.s.ref" % NAME).read().split("; Override launch geometry")[0]


def opt(name, default):
    for x in sys.argv:
        if x.startswith("--%s=" % name):
            return int(x.split("=")[1], 0)
    return default


STAMPS = "--stamps" in sys.argv
PROBE = opt("probe", -1)
KSH = opt("ksh", 6)
FSH = opt("fsh", 8)
HELP = opt("help", 1)
POIS = opt("pois", 4)
OUTF = ("", " sc1", " nt", " sc0 sc1", " sc1 nt")[opt("outf", 1)]
EARLYH = opt("earlyh", 2)
MODFIRST = opt("modfirst", 0)
ROWL = opt("rowl", 1)
MH = opt("mh", 9)
PLATE = opt("plate", 0)
OUTL = opt("outl", 0)
FINE = opt("fine", 0)
PROG = opt("prog", 0)
TMIN = opt("tmin", -1)
PFFN = opt("pffn", 0)
FIN = opt("fin", 0)
HF = opt("hf", 1)
LO = opt("lo", 1)
ADEL = opt("adel", 2)
PRIO = opt("prio", 0)
EPART = opt("epart", 0)
BT2 = opt("bt2", 0)
SWZ = opt("swz", 1)
BDEL = opt("bdel", 0)
BT = opt("bt", 8)
SENT = opt("sent", 0)
FDEL = opt("fdel", 0)
SW = opt("sw", 4)
PRE = opt("pre", 3)
CPOS = opt("cpos", 0)
CPF = opt("cpf", 0)
TOUCH = opt("touch", 1)

WS_MOD = 0x0
WS_GEN = 0x3000
WS_SEL = 0x3400
WS_PRE = 0x3800
WS_FLAG = 0x8000
WS_KEYS = 0x40000
WS_PART = 0x80000
WS_CAND = 0x100000
WS_INTER = 0x200000
WS_SIZE = 0x400000
WS_STAMP = 0x600000
if STAMPS:
    WS_SIZE = 0x800000
EPS = 1e-5
TAGC = 0x9E3779B9
SPIN = 1 << 15
OOB = 0x7fff0000
PITCH = 288
XWG = 120

LDS_U = 20480
LDS_SCR = LDS_U + 20480
LDS_VEC = LDS_SCR + 20480
LDS_KEY = LDS_VEC + 7 * 2560
LDS_TAB = LDS_KEY + 128
LDS_RED = 98304
LDS_KEY2 = LDS_RED + 4096
LDS_TOTAL = LDS_KEY2 + 64

FR, FI, TC, TS, G, SA = 200, 204, 208, 216, 224, 240
VQ4, VTAG, VL16 = 248, 249, 250
LOG2E = 1.4426950408889634


def f32(x):
    return "0x%08x" % struct.unpack("<I", struct.pack("<f", x))[0]


def srd(a, base, nbytes):
    a("s_mov_b32 %s, 0x%x" % (s(base + 2), nbytes))
    a("s_mov_b32 %s, 0x20000" % s(base + 3))


NST = 14


def stamp(a, i):
    if PROBE >= 0 and i == 0:
        a("s_memrealtime s[96:97]")
    if PROBE == i:
        a("s_memrealtime s[92:93]")
    if not STAMPS:
        return
    if i == 0:
        a("s_memrealtime s[96:97]")
        for k in range(1, NST):
            a("s_mov_b32 %s, 0" % s(64 + 2 * k))
    a("s_memtime %s" % s(64 + 2 * i, 2))


def stamp_end(a):
    if not STAMPS:
        return
    a("s_waitcnt vmcnt(0)")
    a("s_memtime %s" % s(64 + 2 * (NST - 1), 2))
    a("s_memrealtime s[98:99]")
    a("s_mov_b64 exec, 1")
    a("s_lshl_b32 s93, s2, 3")
    a("s_add_u32 s93, s93, s5")
    a("s_lshl_b32 s93, s93, 6")
    a("s_add_u32 s93, s93, 0x%x" % WS_STAMP)
    a("s_waitcnt lgkmcnt(0)")
    a("v_mov_b32 v16, s96")
    a("v_mov_b32 v17, s98")
    for k in range(NST):
        a("v_mov_b32 %s, %s" % (v(18 + k), s(64 + 2 * k)))
    for k in range(4):
        a("buffer_store_dwordx4 %s, off, s[12:15], s93 offset:%d" % (v(16 + 4 * k, 4), 16 * k))


ROR = ["row_ror:%d row_mask:0xf bank_mask:0xf" % r for r in (8, 4, 2, 1)]
BC = ["row_bcast:15 row_mask:0xa bank_mask:0xf", "row_bcast:31 row_mask:0xc bank_mask:0xf"]


def dpp_sum(a, regs_, mods):
    for mod in mods:
        for r in regs_:
            a("v_add_f32_dpp %s, %s, %s %s" % (v(r), v(r), v(r), mod))


def poll_tail(a, label, cnt="s54"):
    a("s_cbranch_scc1 %s_ok" % label)
    a("s_sub_u32 %s, %s, 1" % (cnt, cnt))
    a("s_cbranch_scc0 %s" % label)
    a.label(label + "_ok")


def setup(a):
    a.label("L_setup", reset=True)
    a("""
    s_lshr_b32 s60, s59, 5
    s_lshl3_add_u32 s60, s60, s3
    s_and_b32 s60, s60, 31
    s_bfe_u32 s61, s59, 0x20003
    s_lshl_b32 s61, s61, 9
    s_add_u32 s61, s61, s60
    s_sub_u32 s94, s61, 992
    s_cmp_ge_u32 s61, 1024
    s_cselect_b32 s94, s94, s61
    s_mov_b32 s95, 0xffff0000
    s_cselect_b32 s95, s95, 0x0000ffff
    s_cmp_eq_u32 s60, 0
    s_cselect_b32 s61, s94, s61
    s_cselect_b32 s95, s95, -1
    """)
    a("s_cselect_b32 s94, 0, %s" % f32(-0.25))
    a("""
    s_cmp_eq_u32 s59, 128
    s_cselect_b32 s61, 1024, s61
    v_lshrrev_b32 v160, 1, v1
    v_lshlrev_b32 v160, 6, v160
    v_add_u32 v160, s61, v160
    v_cvt_f32_u32 v160, v160
    v_and_b32 v161, 1, v1
    v_cvt_f32_u32 v161, v161
    """.replace("CANDBASE", "0x%x" % WS_CAND))
    a("v_lshl_add_u32 v162, v3, 2, v2")
    a("v_cvt_f32_u32 v162, v162")
    a("v_mul_f32 v160, %s, v160" % f32(1 / 2048))
    a("v_mul_f32 v161, %s, v161" % f32(0.25))
    a("v_fmac_f32 v161, v160, v162")
    a("""
    v_add_f32 v162, s94, v161
    v_cos_f32 v163, v161
    v_cos_f32 v162, v162
    v_and_b32 v164, 3, v3
    v_lshl_add_u32 v165, v2, 2, v164
    v_mul_u32_u24 v165, v165, v1          ; n*(4q+j)
    v_lshrrev_b32 v166, 2, v3
    v_mul_u32_u24 v167, v166, v1
    v_lshl_add_u32 v167, v167, 4, v165    ; n*(16h+4q+j)
    v_cvt_f32_u32 v165, v165
    v_cvt_f32_u32 v167, v167
    v_cvt_pk_bf16_f32 v163, v163, v162
    s_cmp_lt_u32 s5, 4
    """)
    a("s_mov_b32 s94, %s" % f32(1 / 32))
    a("s_cselect_b32 s94, %s, s94" % f32(1 / 16))
    a("v_mul_f32 v167, %s, v167" % f32(1 / 512))
    a("""
    v_mul_f32 v165, s94, v165
    v_and_b32 v163, s95, v163
    v_cos_f32 v168, v167
    v_sin_f32 v169, v167
    v_cos_f32 v170, v165
    v_sin_f32 v171, v165
    v_lshl_add_u32 v164, v164, 2, v250
    v_lshl_add_u32 v164, v166, 10, v164
    """)
    a("v_add_u32 v164, %d, v164" % LDS_TAB)
    a("""
    ds_write_b32 v164, v163
    ds_write2st64_b32 v164, v168, v169 offset0:8 offset1:16
    v_cvt_pk_bf16_f32 v172, v170, v171
    s_cbranch_scc0 L_setup_g
    v_cvt_pk_bf16_f32 v173, -v171, v170
    ds_write2st64_b32 v164, v172, v173 offset0:24 offset1:28
    s_branch L_setup_end
    """)
    a.label("L_setup_g")
    a("""
    s_bitcmp1_b32 s5, 0
    s_cselect_b32 s94, 0x80008000, 0
    v_lshlrev_b32 v170, 31, v1
    v_lshrrev_b32 v171, 16, v170
    v_xor_b32 v173, s94, v172
    v_bitop3_b32 v174, v172, v170, v171 bitop3:0x96
    ds_write2st64_b32 v164, v172, v173 offset0:28 offset1:32
    v_xor_b32 v175, s94, v174
    ds_write2st64_b32 v164, v174, v175 offset0:36 offset1:40
    """)
    a.label("L_setup_end")
    a("s_waitcnt lgkmcnt(0)")
    if ROWL:
        a("s_sub_u32 s40, s4, 16")
        a("s_cmp_lt_u32 s40, 6")
        a("s_cbranch_scc1 L_setup_ret")
    if BDEL:
        a("s_waitcnt vmcnt(0)")
    a.label("L_rows")
    a("""
    s_lshl_b32 s40, s5, 6
    s_add_u32 s40, s40, s61
    s_sub_u32 s41, 2048, s40
    s_lshl_b32 s40, s40, 10
    s_lshl_b32 s41, s41, 10
    s_mov_b64 s[24:25], s[16:17]
    s_movk_i32 s26, 1024
    s_mov_b32 s27, 0x20000
    buffer_load_dwordx4 v[100:103], v250, s[8:11], s40 offen
    buffer_load_dwordx4 v[104:107], v250, s[8:11], s41 offen
    buffer_load_dwordx4 v[108:111], v250, s[24:27], 0 offen
    s_lshl_b32 s40, s59, 12
    s_add_u32 s40, s40, s62
    s_add_u32 s40, s40, CANDBASE
    s_cmp_lt_u32 s5, 4
    s_cselect_b32 s40, s40, 0x7fff0000
    buffer_store_dwordx4 v[252:255], v250, s[12:15], s40 offen sc1
    """.replace("CANDBASE", "0x%x" % WS_CAND))
    a.label("L_setup_ret")
    a("s_setpc_b64 s[100:101]")


def touch(a, half, dst, first):
    if first:
        a("""
        v_bfe_u32 v4, v0, 3, 3
        v_and_b32 v5, 7, v0
        v_lshlrev_b32 v5, 6, v5
        s_mov_b32 s34, 0x1c0000
        s_mov_b32 s35, 0x20000
        """)
    a("""
    s_and_b32 s46, s44, 31
    s_mul_i32 s48, s3, 448
    s_mul_i32 s49, s46, 57344
    s_add_u32 s48, s48, s49
    s_lshl_b32 s49, s3, 5
    s_add_u32 s49, s49, s46
    s_mul_i32 s49, s49, 7168
    """)
    if half:
        a("s_add_u32 s48, s48, 28672")
        a("s_add_u32 s49, s49, 512")
    a("""
    s_cmp_lt_u32 s44, 32
    s_cselect_b64 s[32:33], s[18:19], s[20:21]
    s_movk_i32 s50, 3584
    s_cmp_ge_u32 s44, 64
    s_cselect_b64 s[32:33], s[22:23], s[32:33]
    s_cselect_b32 s50, 1024, s50
    s_cselect_b32 s48, s49, s48
    v_mad_u32_u24 v6, v4, s50, v5
    """)
    a("buffer_load_dword %s, v6, s[32:35], s48 offen" % v(dst))


def probe_spin(a):
    a("s_waitcnt vmcnt(0)")
    a("s_memrealtime s[98:99]")
    a("s_waitcnt lgkmcnt(0)")
    a("s_sub_u32 s94, %s, s96" % ("s98" if PROBE == 13 else "s92"))
    if TMIN >= 0:
        a("s_max_u32 s94, s94, %d" % TMIN)
        a("s_sub_u32 s94, s94, %d" % TMIN)
        a("s_mul_i32 s94, s94, 2622")
        a("s_lshr_b32 s94, s94, 16")
        a("s_min_u32 s95, s94, 12")
        a("s_movk_i32 s94, 2400")
        a.label("L_lvl")
        a("s_sub_u32 s95, s95, 1")
        a("s_cbranch_scc1 L_lvl_done")
        a("s_mul_i32 s94, s94, 11")
        a("s_lshr_b32 s94, s94, 3")
        a("s_branch L_lvl")
        a.label("L_lvl_done")
        a("s_sub_u32 s94, s94, 2200")
    else:
        a("s_mul_i32 s94, s94, 2")
        a("s_min_u32 s94, s94, 8000")
    a.label("L_probe")
    a("s_memrealtime s[96:97]")
    a("s_waitcnt lgkmcnt(0)")
    a("s_sub_u32 s95, s96, s98")
    a("s_cmp_lt_u32 s95, s94")
    a("s_cbranch_scc1 L_probe")


def get_tag(a):
    a("s_waitcnt lgkmcnt(0)")
    a("s_add_u32 s47, s47, 0x%x               ; hand-off tag of this launch" % TAGC)
    a("v_mov_b32 %s, s47" % v(VTAG))


def flag_store(a, wave=0):
    a("s_lshl_b32 s53, s2, %d" % FSH)
    a("s_add_u32 s53, s53, 0x%x" % WS_FLAG)
    a("s_cmp_eq_u32 s5, %d" % wave)
    a("s_cselect_b32 s53, s53, 0x%x" % OOB)
    a("s_mov_b64 exec, 1")
    a("buffer_store_dword %s, off, s[12:15], s53 sc1" % v(VTAG))
    a("s_mov_b64 exec, -1")


def build():
    a = Asm()
    a.raw('.amdgcn_target "amdgcn-amd-amdhsa--gfx950"')
    a.raw(".text")
    a.raw(".globl %s" % KN)
    a.raw(".p2align 8")
    a.raw(".type %s,@function" % KN)
    a.label(KN, reset=True)
    a("s_cmp_ge_u32 s2, 256")
    a("s_cbranch_scc1 L_end")
    stamp(a, 0)
    a("s_load_dwordx2 s[8:9], s[0:1], 0")
    a("s_load_dwordx2 s[12:13], s[0:1], 112")
    a("s_load_dwordx16 s[16:31], s[0:1], 48")
    if CPF:
        a("s_getpc_b64 s[60:61]")
        a.label("L_cpf_pc")
        a("v_lshlrev_b32 v192, %d, v0" % (7 if CPF == 1 else 6))
        a("v_cmp_gt_u32 vcc, L_end-L_cpf_pc, v192")
        a("v_mov_b32 v193, 0")
        a("v_lshl_add_u64 v[192:193], v[192:193], 0, s[60:61]")
        a("s_and_saveexec_b64 s[60:61], vcc")
        a("s_cbranch_execz L_cpf")
        n = len(a.vm)
        a("global_load_dword v198, v[192:193], off")
        del a.vm[n:]
        a.label("L_cpf")
        a("s_mov_b64 exec, -1")
    a("""
    v_lshrrev_b32 v3, 6, v0               ; wave
    v_and_b32 v1, 15, v0                  ; n
    v_bfe_u32 v2, v0, 4, 2                ; q
    v_readfirstlane_b32 s5, v3
    s_and_b32 s3, s2, 7                   ; x
    s_lshr_b32 s4, s2, 3                  ; y
    v_and_b32 v250, 63, v0
    v_lshlrev_b32 v250, 4, v250           ; lane*16
    v_mov_b32 v252, -1
    v_mov_b32 v253, -1
    v_mov_b32 v254, -1
    v_mov_b32 v255, -1
    s_mov_b32 s63, 0x80000000
    """)
    a("v_cvt_f32_u32 %s, v2" % v(VQ4))
    srd(a, 8, 2048 * 1024)
    srd(a, 12, WS_SIZE)
    a("v_mul_f32 %s, 4.0, %s" % (v(VQ4), v(VQ4)))
    a("s_lshl_b32 s62, s5, 10")
    a("s_cmp_ge_u32 s4, 16")
    st0 = a.fork()
    a("s_cbranch_scc1 L_notdft")
    a("""
    s_movk_i32 s59, 128
    s_lshr_b32 s6, s4, 2
    s_lshl3_add_u32 s6, s6, s3            ; s2 index
    s_and_b32 s7, s4, 3
    v_lshlrev_b32 v5, 4, v1
    """)

    def store_addr():
        a("""
        v_and_b32 v8, 3, v3                   ; M tile
        v_lshlrev_b32 v13, 1, v2
        v_lshl_add_u32 v13, v8, 3, v13
        v_lshl_add_u32 v13, v13, 16, v5
        s_lshl_b32 s54, s6, 11
        s_lshl_b32 s55, s7, 9
        s_add_u32 s54, s54, s55
        """)
        a("s_add_u32 s54, s54, 0x%x" % WS_INTER)
        a("s_add_u32 s55, s54, 0x10000")
    a("s_lshl_b32 s44, s6, 10")
    for g in range(4):
        a("s_add_u32 s46, s7, %d" % g)
        a("s_and_b32 s46, s46, 3")
        a("s_lshl_b32 s46, s46, 8")
        a("s_add_u32 %s, s46, s44" % s(48 + g))
    a("""
    s_lshl1_add_u32 s46, s7, s5
    s_and_b32 s46, s46, 7
    s_lshl_b32 s46, s46, 3
    v_add_u32 v4, s46, v2
    v_lshl_or_b32 v6, v4, 15, v5
    v_add_u32 v7, 0x20000, v6
    s_waitcnt lgkmcnt(0)
    """)
    stamp(a, 1)
    X = 16
    for i in range(4):
        for g in range(2):
            a("buffer_load_dwordx4 %s, %s, s[8:11], %s offen" % (v(X + 16 * g + 4 * i, 4), v(6 + g), s(48 + i)))
    a("s_load_dword s47, s[12:13], 0x%x" % WS_GEN)
    a("s_branch L_dft")
    mark = len(a.lines)
    a.label("L_dft")
    store_addr()
    a("v_lshrrev_b32 v12, 8, v0")
    a("v_lshl_add_u32 v13, v12, 8, v13")
    if POIS == 4:
        a("s_barrier")
    if POIS < 5:
        a("buffer_store_dwordx4 v[252:255], v13, s[12:15], s54 offen sc1")
        a("buffer_store_dwordx4 v[252:255], v13, s[12:15], s55 offen sc1")
    if EPART:
        a("""
        s_mul_i32 s56, s3, 7
        s_add_u32 s56, s56, s4
        s_lshl_b32 s57, s56, 12
        s_add_u32 s57, s57, s62
        """)
        a("s_add_u32 s57, s57, 0x%x" % WS_PART)
        a("s_lshl_b32 s58, s56, %d" % KSH)
        a("s_add_u32 s58, s58, 0x%x" % (WS_KEYS + (129 << KSH)))
        a("s_cmp_lt_u32 s5, 4")
        a("s_cselect_b32 s57, s57, 0x%x" % OOB)
        a("s_cmp_lt_u32 s4, 7")
        a("s_cselect_b32 s57, s57, 0x%x" % OOB)
        a("s_cselect_b32 s58, s58, 0x%x" % OOB)
        a("buffer_store_dwordx4 v[252:255], v250, s[12:15], s57 offen sc1")
        a("v_mov_b32 v112, 0")
        a("v_mov_b32 v114, 0")
    WA = 48
    a("""
    v_lshrrev_b32 v9, 1, v1
    v_lshl_add_u32 v9, v8, 3, v9          ; slot
    v_and_b32 v10, 1, v1
    v_lshl_or_b32 v11, v9, 1, v10
    v_cmp_eq_u32 vcc, 1, v11
    v_cvt_f32_u32 v10, v10
    v_lshlrev_b32 v15, 31, v9
    v_cndmask_b32 v11, v9, 32, vcc
    """)
    a("v_mul_f32 v10, %s, v10" % f32(0.25))
    a("v_cvt_f32_u32 v11, v11")
    a("v_cndmask_b32 v10, v10, 0, vcc")
    a("v_mul_f32 v11, %s, v11" % f32(1 / 64))
    a("v_fmac_f32 v10, v11, %s" % v(VQ4))
    a("v_lshrrev_b32 v14, 16, v15")
    a("v_or_b32 v15, v15, v14")
    T = 56
    a("v_cos_f32 %s, v10" % v(T))
    for j in range(1, 8):
        a("v_add_f32 v10, v10, v11" if j != 4 else "v_fmac_f32 v10, %s, v11" % f32(13.0))
        a("v_cos_f32 %s, v10" % v(T + j))
    for j in range(4):
        a("v_cvt_pk_bf16_f32 %s, %s, %s" % (v(WA + j), v(T + 2 * j), v(T + 2 * j + 1)))
    for j in range(4):
        a("v_xor_b32 %s, v15, %s" % (v(WA + 4 + j), v(WA + j)))
    a("""
    v_mul_u32_u24 v10, 288, v4
    v_add_u32 v10, v10, v5
    v_bfe_u32 v11, v0, 2, 4
    v_mul_u32_u24 v11, 288, v11
    v_and_b32 v14, 3, v0
    v_lshl_add_u32 v11, v14, 3, v11
    v_lshl_add_u32 v11, v12, 7, v11
    s_mov_b32 s52, 0x3f803f80
    v_mov_b32 v56, 0
    v_mov_b32 v57, 0
    v_mov_b32 v58, 0
    v_mov_b32 v59, 0
    """)
    stamp(a, 2)
    U = 64
    for i in range(4):
        for g in range(2):
            a.wait_vm_for(v(X + 16 * g + 4 * i, 4))
            if i == 0 and g == 0:
                stamp(a, 3)
            for d in range(4):
                x = v(X + 16 * g + 4 * i + d)
                a("v_dot2c_f32_bf16 %s, s52, %s" % (v(56 + g), x))
                a("v_dot2c_f32_bf16 %s, %s, %s" % (v(58 + g), x, x))
            if i == 0:
                for d in range(4):
                    a("v_lshlrev_b32 %s, 16, %s" % (v(U + 8 * g + 2 * d), v(X + 16 * g + d)))
                    a("v_and_b32 %s, 0xffff0000, %s" % (v(U + 8 * g + 2 * d + 1), v(X + 16 * g + d)))
    stamp(a, 4)
    dpp_sum(a, [56, 57, 58, 59], ROR)
    for g in range(2):
        a("v_mul_f32 %s, %s, %s" % (v(56 + g), f32(1 / 512), v(56 + g)))
    for g in range(2):
        a("v_mul_f32 %s, %s, %s" % (v(60 + 2 * g), v(56 + g), v(56 + g)))
    for g in range(2):
        a("v_sub_f32 %s, %s, %s" % (v(60 + 2 * g), f32(EPS), v(60 + 2 * g)))
    for g in range(2):
        a("v_fmac_f32 %s, %s, %s" % (v(60 + 2 * g), f32(1 / 512), v(58 + g)))
    for g in range(2):
        a("v_rsq_f32 %s, %s" % (v(60 + 2 * g), v(60 + 2 * g)))
    for g in range(2):
        a("v_mul_f32 %s, %s, %s" % (v(61 + 2 * g), v(56 + g), v(60 + 2 * g)))
    for g in range(2):
        p = v(60 + 2 * g, 2)
        for d in range(4):
            u = v(U + 8 * g + 2 * d, 2)
            a("v_pk_fma_f32 %s, %s, %s, %s op_sel:[0,0,1] op_sel_hi:[1,0,1] neg_lo:[0,0,1] neg_hi:[0,0,1]" % (u, u, p, p))
        for d in range(4):
            a("v_cvt_pk_bf16_f32 %s, %s, %s" % (v(X + 16 * g + d), v(U + 8 * g + 2 * d), v(U + 8 * g + 2 * d + 1)))
        a("ds_write_b128 v10, %s offset:%d" % (v(X + 16 * g, 4), 4 * PITCH * g))
    if HF:
        a("s_lshl_b32 s53, s2, %d" % FSH)
        a("s_add_u32 s53, s53, 0x%x" % WS_FLAG)
    a("s_waitcnt vmcnt(0)")
    get_tag(a)
    if HF:
        a("s_cmp_lg_u32 s5, 7")
    a("s_barrier")
    stamp(a, 5)
    if HF:
        a("s_cbranch_scc1 L_nohint")
        a("s_mov_b64 exec, 1")
        a("buffer_store_dword %s, off, s[12:15], s53 sc1" % v(VTAG))
        if EPART:
            a("v_mov_b32 v113, %s" % v(VTAG))
            a("v_mov_b32 v115, %s" % v(VTAG))
            a("buffer_store_dwordx4 v[112:115], off, s[12:15], s58 sc1")
        a("s_mov_b64 exec, -1")
        a.label("L_nohint")
    B = 64
    for ks in range(2):
        for i in range(4):
            for hf in range(2):
                a("ds_read_b64_tr_b16 %s, v11 offset:%d" % (v(B + 16 * ks + 4 * i + 2 * hf, 2), ks * 32 * PITCH + hf * 16 * PITCH + i * 32))
    if not HF:
        flag_store(a)
    ACC = 96
    for ks in range(2):
        for i in range(4):
            a.wait_lg_for(v(B + 16 * ks + 4 * i, 4))
            acc = v(ACC + 4 * i, 4)
            a("v_mfma_f32_16x16x32_bf16 %s, %s, %s, %s" % (acc, v(WA + 4 * ks, 4), v(B + 16 * ks + 4 * i, 4), "0" if ks == 0 else acc))
    O = 16
    for i in range(4):
        for p in range(2):
            a("v_cvt_pk_bf16_f32 %s, %s, %s" % (v(O + 4 * p + i), v(ACC + 4 * i + 2 * p), v(ACC + 4 * i + 2 * p + 1)))
    for p in range(2):
        a("buffer_store_dwordx4 %s, v13, s[12:15], %s offen sc1" % (v(O + 4 * p, 4), s(54 + p)))
    stamp(a, 6)
    a("s_cmp_lg_u32 s2, %d" % XWG)
    a("s_cbranch_scc1 L_notx")
    a("s_call_b64 s[100:101], L_setup")
    a("s_branch L_p2")
    a.label("L_notx")
    a("s_cmp_lt_u32 s4, 7")
    a("s_cbranch_scc1 L_ffn")
    if not TOUCH:
        a("s_branch L_done")
    if ADEL == 2:
        a("s_waitcnt vmcnt(0)")
    a("s_sub_u32 s44, s4, 7")
    a("s_lshl3_add_u32 s44, s44, s5")
    for k in range(2):
        touch(a, 1, 196 + k, k == 0)
        if k == 0:
            a("s_add_u32 s44, s44, 64")
            a("s_cmp_ge_u32 s44, 96")
            a("s_cbranch_scc1 L_done")
    a("s_branch L_done")
    dft_block = a.lines[mark:]
    del a.lines[mark:]
    a.label("L_notdft")
    a.join(st0)
    a("s_sub_u32 s59, s2, 128")
    srd(a, 36, 512 * 6144)
    a("s_cmp_ge_u32 s4, 22")
    st1 = a.fork()
    a("s_cbranch_scc1 L_notmod")
    srd(a, 32, 1024)
    a("""
    s_sub_u32 s6, s2, 128                 ; column block (64 columns)
    s_lshl_b32 s48, s6, 7
    """)
    for i in range(1, 8):
        a("s_add_u32 %s, s48, %d" % (s(48 + i), 6144 * i))
    a("""
    v_lshrrev_b32 v4, 3, v0
    v_and_b32 v5, 7, v0
    v_mul_u32_u24 v6, 0xc000, v4
    v_lshl_add_u32 v6, v5, 4, v6
    v_and_b32 v7, 3, v0
    v_lshlrev_b32 v7, 2, v7
    v_lshl_add_u32 v7, v4, 4, v7
    s_waitcnt lgkmcnt(0)
    s_mov_b64 s[36:37], s[26:27]
    s_mov_b64 s[32:33], s[24:25]
    """)
    stamp(a, 1)
    a("buffer_load_dword v8, v7, s[32:35], 0 offen")
    W = 16
    for i in range(8):
        a("buffer_load_dwordx4 %s, v6, s[36:39], %s offen" % (v(W + 4 * i, 4), s(48 + i)))
    a("s_load_dword s47, s[12:13], 0x%x" % WS_GEN)
    if MODFIRST == 2:
        a("s_cmp_lt_u32 s5, 4")
        a("s_cbranch_scc1 L_mod")
    if MODFIRST != 1:
        a("s_call_b64 s[100:101], L_setup")
        if not ROWL:
          a.vm += [Ins("buffer_load_dwordx4 %s, v250, s[8:11], 0 offen" % v(r, 4)) for r in (100, 104, 108)] + [Ins("buffer_store_dwordx4 v[252:255], v250, s[12:15], 0 offen")]
    a("s_branch L_mod")
    mark = len(a.lines)
    a.label("L_mod")
    a("""
    s_mov_b32 s44, 0x05040100
    s_mov_b32 s46, 0x07060302
    s_lshr_b32 s48, s6, 3
    s_cmp_eq_u32 s48, 1
    s_cselect_b32 s50, 1.0, 0
    s_cmp_eq_u32 s48, 4
    s_cselect_b32 s50, 1.0, s50
    v_lshlrev_b32 v6, 1, v2
    v_lshl_add_u32 v6, v5, 3, v6
    v_and_b32 v7, 15, v6
    v_lshrrev_b32 v9, 4, v6
    v_lshl_add_u32 v10, v7, 2, v9
    v_and_b32 v7, 3, v6
    v_lshl_add_u32 v7, v9, 2, v7
    v_bfe_u32 v9, v6, 2, 2
    v_lshl_add_u32 v7, v9, 4, v7
    v_lshlrev_b32 v9, 8, v3
    v_lshl_add_u32 v10, v10, 2, v9
    v_lshl_add_u32 v7, v7, 2, v9
    s_lshl_b32 s58, s6, 8
    """)
    for j in range(8):
        a("v_mov_b32 %s, 0" % v(48 + j))
    stamp(a, 2)
    a.wait_vm_for("v8")
    get_tag(a)
    stamp(a, 3)
    a("v_lshlrev_b32 v11, 16, v8")
    a("v_and_b32 v12, 0xffff0000, v8")
    a("v_mul_f32 v13, %s, v11" % f32(-LOG2E))
    a("v_mul_f32 v14, %s, v12" % f32(-LOG2E))
    a("""
    v_exp_f32 v13, v13
    v_exp_f32 v14, v14
    v_add_f32 v13, 1.0, v13
    v_add_f32 v14, 1.0, v14
    v_rcp_f32 v13, v13
    v_rcp_f32 v14, v14
    v_mul_f32 v11, v11, v13
    v_mul_f32 v12, v12, v14
    v_cvt_pk_bf16_f32 v8, v11, v12
    """)
    for p in range(4):
        a("v_mov_b32_dpp %s, v8 quad_perm:[%d,%d,%d,%d] row_mask:0xf bank_mask:0xf" % (v(12 + p), p, p, p, p))
    for p in range(4):
        a.wait_vm_for(v(W + 8 * p, 8))
        if ROWL and p == 3:
            if STAMPS:
                a("s_waitcnt lgkmcnt(0)")
            a("s_call_b64 s[100:101], L_rows")
        for jj in range(4):
            a("v_perm_b32 %s, %s, %s, s44" % (v(56 + 2 * jj), v(W + 8 * p + 4 + jj), v(W + 8 * p + jj)))
            a("v_perm_b32 %s, %s, %s, s46" % (v(57 + 2 * jj), v(W + 8 * p + 4 + jj), v(W + 8 * p + jj)))
        for j in range(8):
            a("v_dot2c_f32_bf16 %s, %s, %s" % (v(48 + j), v(12 + p), v(56 + j)))
    stamp(a, 4)
    if MH == 0:
        flag_store(a, 7)
    for j in range(4):
        a("v_permlane32_swap_b32 %s, %s" % (v(48 + j), v(52 + j)))
    for j in range(4):
        a("v_add_f32 %s, %s, %s" % (v(48 + j), v(48 + j), v(52 + j)))
    for j in range(2):
        a("v_permlane16_swap_b32 %s, %s" % (v(48 + j), v(50 + j)))
    for j in range(2):
        a("v_add_f32 %s, %s, %s" % (v(48 + j), v(48 + j), v(50 + j)))
    dpp_sum(a, [48, 49], ROR[:1])
    a("""
    s_mov_b32 exec_lo, 0x00ff00ff
    s_mov_b32 exec_hi, 0x00ff00ff
    s_cmp_lt_u32 s6, 16
    s_cbranch_scc1 L_mod_w4
    ds_write_b64 v7, v[48:49]
    s_branch L_mod_w
    """)
    a.label("L_mod_w4")
    a("ds_write2_b32 v10, v48, v49 offset0:0 offset1:4")
    a.label("L_mod_w")
    a("s_mov_b64 exec, -1")
    if MODFIRST == 2:
        a("s_cmp_ge_u32 s5, 4")
        a("s_cbranch_scc1 L_mod_b")
        a("s_call_b64 s[100:101], L_setup")
        a.label("L_mod_b")
    a("""
    s_waitcnt lgkmcnt(0)
    s_barrier
    """)
    if MH == 1:
        flag_store(a, 1)
    stamp(a, 5)
    a("""
    s_cmp_lg_u32 s5, 0
    s_cbranch_scc1 L_mod_end
    s_mov_b64 exec, 0xffff
    """)
    for k in range(8):
        a("ds_read_b128 %s, v250 offset:%d" % (v(16 + 4 * k, 4), 256 * k))
    a("v_mov_b32 v49, v249")
    a("v_mov_b32 v51, v249")
    for k in range(0, 8, 2):
        a.wait_lg_for(v(16 + 4 * k, 8))
        a("v_pk_add_f32 %s, %s, %s" % (v(16 + 4 * k, 2), v(16 + 4 * k, 2), v(20 + 4 * k, 2)))
        a("v_pk_add_f32 %s, %s, %s" % (v(18 + 4 * k, 2), v(18 + 4 * k, 2), v(22 + 4 * k, 2)))
    a("""
    v_pk_add_f32 v[16:17], v[16:17], v[24:25]
    v_pk_add_f32 v[18:19], v[18:19], v[26:27]
    v_pk_add_f32 v[32:33], v[32:33], v[40:41]
    v_pk_add_f32 v[34:35], v[34:35], v[42:43]
    v_pk_add_f32 v[16:17], v[16:17], v[32:33]
    v_pk_add_f32 v[18:19], v[18:19], v[34:35]
    v_cvt_pk_bf16_f32 v48, v16, v17
    v_cvt_pk_bf16_f32 v50, v18, v19
    s_cmp_eq_u32 s50, 0
    s_cbranch_scc1 L_mod_st
    v_lshlrev_b32 v16, 16, v48
    v_and_b32 v17, 0xffff0000, v48
    v_lshlrev_b32 v18, 16, v50
    v_and_b32 v19, 0xffff0000, v50
    v_pk_add_f32 v[16:17], v[16:17], 1.0 op_sel_hi:[1,0]
    v_pk_add_f32 v[18:19], v[18:19], 1.0 op_sel_hi:[1,0]
    v_cvt_pk_bf16_f32 v48, v16, v17
    v_cvt_pk_bf16_f32 v50, v18, v19
    """)
    a.label("L_mod_st")
    a("buffer_store_dwordx4 v[48:51], v250, s[12:15], s58 offen sc1")
    a("s_mov_b64 exec, -1")
    if MH == 2:
        flag_store(a)
    a.label("L_mod_end")
    if MODFIRST == 1:
        a("s_call_b64 s[100:101], L_setup")
    mod_block = a.lines[mark:]
    del a.lines[mark:]
    a.label("L_notmod")
    a.join(st1)
    a("""
    s_sub_u32 s58, s4, 22
    s_lshl3_add_u32 s7, s58, s5
    s_mul_i32 s7, s7, 0x6000
    s_lshl_b32 s44, s3, 7
    s_add_u32 s7, s7, s44
    s_add_u32 s7, s7, 0x120000
    s_add_u32 s44, s7, 4096
    v_mul_u32_u24 v4, 6144, v2
    v_bfe_u32 v5, v0, 3, 1
    v_lshl_add_u32 v4, v5, 10, v4
    v_and_b32 v5, 7, v0
    v_lshl_add_u32 v4, v5, 4, v4
    s_waitcnt lgkmcnt(0)
    s_mov_b64 s[36:37], s[26:27]
    """)
    if HELP == 2:
        a("s_cmp_lt_u32 s4, 29")
        a("s_cbranch_scc1 L_nohelp")
    if HELP:
        a("buffer_load_dwordx4 v[180:183], v4, s[36:39], s7 offen")
        a("buffer_load_dwordx4 v[184:187], v4, s[36:39], s7 offen offset:2048")
        a("buffer_load_dwordx4 v[188:191], v4, s[36:39], s44 offen")
    a.label("L_nohelp")
    a("s_load_dword s47, s[12:13], 0x%x" % WS_GEN)
    a("s_call_b64 s[100:101], L_setup")
    get_tag(a)
    if BT:
        a("s_cmp_ge_u32 s5, %d" % BT)
        a("s_cbranch_scc1 L_p2")
        a("s_mul_i32 s44, s58, %d" % BT)
        a("s_add_u32 s44, s44, s5")
        touch(a, 0, 195, True)
        if BT2:
            a("s_add_u32 s44, s44, 16")
            touch(a, 1, 194, False)
    a("s_branch L_p2")
    setup(a)
    a.lines += dft_block + mod_block
    a.label("L_p2", reset=True)
    a("v_add_u32 v160, %d, v250" % LDS_TAB)
    a("s_barrier")
    for k, r in enumerate((SA, SA + 4, TC, TC + 4, TS, TS + 4, FR, FI, G, G + 4, G + 8, G + 12)):
        a("ds_read_b128 %s, v160 offset:%d" % (v(r, 4), 1024 * k))
    a.vm += [Ins("buffer_load_dwordx2 %s, v7, s[8:11], 0 offen" % v(r, 2)) for r in (100, 102, 104, 106, 108, 110)]
    a("""
    s_lshl_b32 s45, s59, 12
    """)
    a("s_add_u32 s45, s45, 0x%x               ; candidate slots of this workgroup" % WS_CAND)
    srd(a, 28, 2048 * 1024)
    a("""
    s_lshl_b32 s56, s5, 6
    s_add_u32 s56, s56, s61
    s_sub_u32 s57, 2048, s56
    s_lshl_b32 s50, s57, 10
    s_lshl_b32 s49, s56, 10
    v_lshlrev_b32 v7, 5, v1
    v_lshl_add_u32 v7, v2, 3, v7          ; 32n + 8q
    s_lshl1_add_u32 s52, s4, s5
    s_and_b32 s52, s52, 7
    s_lshl_b32 s53, s52, 8
    v_lshlrev_b32 v4, 4, v1
    v_add_u32 v4, s53, v4                 ; cb*256 + n*16
    v_lshl_add_u32 v5, v2, 11, v4
    v_add_u32 v179, 0x8000, v5
    s_lshl_b32 s40, s60, 16
    s_lshl_b32 s53, s52, 3
    """)
    a("s_add_u32 s40, s40, 0x%x" % WS_INTER)
    a("""
    s_add_u32 s41, s40, 0x2000
    s_add_u32 s42, s40, 0x4000
    s_add_u32 s43, s40, 0x6000
    v_mul_u32_u24 v8, 80, v1
    v_mul_u32_u24 v9, 5120, v2
    v_add3_u32 v9, v9, s53, v8
    v_mul_u32_u24 v12, 2560, v3
    v_lshl_add_u32 v10, v2, 4, v8
    v_or_b32 v11, s61, v2
    v_cmp_eq_u32 vcc, 0, v11
    v_mov_b32 v11, 0x45000000
    v_cndmask_b32 v11, 0, v11, vcc
    """)
    a("v_add_u32 v9, %d, v9                   ; U write address" % LDS_U)
    a("v_add_u32 v12, %d, v12                 ; scratch row of this wave" % LDS_SCR)
    a("v_sub_u32 v176, v12, v10")
    a("v_add_u32 v176, %d, v176               ; mirrored position of elements 1..3 (g = 1)" % (15 * 80 + 52))
    a("v_add_u32 v178, 1280, v176")
    a("v_add_u32 v14, v10, v12")
    a("v_add_u32 v10, %d, v14                 ; U read address" % ((LDS_U - LDS_SCR) & 0xffffffff))
    a("v_cmp_eq_u32 vcc, 0, v2")
    a("v_cndmask_b32 v177, 12, 28, vcc")
    a("v_add_u32 v177, v177, v176")
    a("v_add_u32 v196, 1280, v177")
    a("v_cmp_eq_u32 vcc, 0, v250")
    a("v_cndmask_b32 v196, v196, v12, vcc")
    a("v_add_u32 v15, v12, v250")
    a("v_add_u32 v12, v12, v7")
    a("""
    s_lshl_b32 s46, s59, 5
    s_lshl2_add_u32 s46, s5, s46
    s_mov_b32 s38, 0xffffe000
    s_mov_b32 s39, 0xffffe000
    s_cmp_eq_u32 s56, 0
    s_cselect_b32 s39, 0, s39
    s_cmp_lg_u32 s59, 128
    s_cbranch_scc1 L_live
    s_mov_b32 s39, 0
    s_cmp_eq_u32 s5, 0
    s_cselect_b32 s38, s38, 0
    """)
    a.label("L_live")
    a("s_cmp_eq_u32 s38, 0")
    a("s_cselect_b32 s49, 0x%x, s49" % OOB)
    a("s_cselect_b32 s36, 0, s46")
    a("s_add_u32 s37, s46, 2")
    a("s_cmp_eq_u32 s39, 0")
    a("s_cselect_b32 s50, 0x%x, s50" % OOB)
    a("s_cselect_b32 s37, 0, s37")
    a("s_lshl_b32 s51, s3, 7")
    a("s_add_u32 s51, s51, 0x%x" % WS_PRE)
    a("s_xor_b32 s53, s4, 31")
    a("s_or_b32 s53, s53, s5")
    a("s_cselect_b32 s51, 0x%x, s51" % OOB)
    stamp(a, 7)
    L = 16
    XU, WU, XM, GAM, PP, PM = 112, 120, 160, 168, 180, 188
    VEC = 128
    GA, SB, CB, GB = VEC, VEC + 8, VEC + 16, VEC + 24

    def inter_load(ks, r):
        a("buffer_load_dwordx4 %s, %s, s[12:15], %s offen sc1" % (v(L + 16 * ks + 4 * r, 4), "v179" if ks else "v5", s(40 + r)))

    def unpack(dst, src):
        for d in range(4):
            a("v_lshlrev_b32 %s, 16, %s" % (v(dst + 2 * d), v(src + d)))
            a("v_and_b32 %s, 0xffff0000, %s" % (v(dst + 2 * d + 1), v(src + d)))

    def mirror_write(src, a0, a123, off=0):
        a("ds_write_b32 %s, %s offset:%d" % (a0, v(src), off))
        a("ds_write_b32 %s, %s offset:%d" % (a123, v(src + 1), off + 8))
        a("ds_write_b32 %s, %s offset:%d" % (a123, v(src + 2), off + 4))
        a("ds_write_b32 %s, %s offset:%d" % (a123, v(src + 3), off))

    def mirror(dst, src):
        for b, a0, a123 in ((src, "v196", "v178"), (src + 4, "v177", "v176")):
            a("ds_write_b32 %s, %s" % (a0, v(b)))
            a("ds_write_b32 %s, %s offset:8" % (a123, v(b + 1)))
            a("ds_write2_b32 %s, %s, %s offset0:1 offset1:0" % (a123, v(b + 2), v(b + 3)))
        a("ds_read_b128 %s, v14" % v(dst, 4))
        a("ds_read_b128 %s, v14 offset:1280" % v(dst + 4, 4))

    def mod_loads():
        a("buffer_load_dwordx4 v[48:51], v4, s[12:15], 0 offen offset:%d sc1" % (WS_MOD + 2048))
        a("buffer_load_dwordx4 v[52:55], v4, s[12:15], 0 offen offset:%d sc1" % WS_MOD)
        a("buffer_load_dwordx4 v[64:67], v197, s[12:15], s55 offen sc1")

    def vec_read(reg, k):
        a("ds_read_b128 %s, v198 offset:%d" % (v(reg, 4), 2560 * k))
        a("ds_read_b128 %s, v198 offset:%d" % (v(reg + 4, 4), 2560 * k + 1280))

    def tag_check(regs_):
        a("v_xor_b32 v88, %s, v249" % v(regs_[0]))
        a("v_xor_b32 v89, %s, v249" % v(regs_[1]))
        for k, r in enumerate(regs_[2:]):
            a("v_bitop3_b32 %s, %s, %s, v249 bitop3:0xf6" % (v(88 + k % 2), v(88 + k % 2), v(r)))
        a("v_or_b32 v88, v88, v89")
        a("v_cmp_ne_u32 vcc, 0, v88")

    def widen(base, n):
        for b in range(base, base + n, 2):
            a("v_and_b32 %s, 0xffff0000, %s" % (v(b + 1), v(b)))
            a("v_lshlrev_b32 %s, 16, %s" % (v(b), v(b)))

    a("s_add_u32 s55, s62, %d" % (WS_MOD + 4096))
    a("""
    v_and_b32 v197, 3, v0
    v_lshlrev_b32 v197, 4, v197
    v_lshl_add_u32 v197, v2, 6, v197
    v_bfe_u32 v68, v0, 2, 2
    v_lshl_add_u32 v197, v68, 8, v197
    v_mul_u32_u24 v68, 80, v1
    v_lshl_add_u32 v198, v2, 4, v68
    """)
    a("v_add_u32 v198, %d, v198               ; vector read address" % LDS_VEC)
    a("""
    s_mul_i32 s53, s5, 1280
    v_add_u32 v90, s53, v198
    s_bitcmp1_b32 s5, 0
    s_cselect_b64 vcc, -1, 0
    v_cndmask_b32 v91, v196, v177, vcc
    v_cndmask_b32 v199, v178, v176, vcc
    s_lshr_b32 s53, s5, 1
    s_sub_u32 s53, s53, s5
    s_mul_i32 s53, s53, 2560
    """)
    a("s_add_u32 s53, s53, %d" % (LDS_VEC + 4 * 2560 - LDS_SCR))
    a("v_add_u32 v91, s53, v91")
    a("v_add_u32 v199, s53, v199")
    a("s_waitcnt vmcnt(0)")
    a("""
    ds_write_b128 v15, v[100:103]
    ds_write_b128 v15, v[104:107] offset:1024
    ds_read_b64 v[56:57], v12
    ds_read_b64 v[58:59], v12 offset:512
    ds_read_b64 v[84:85], v12 offset:1024
    ds_read_b64 v[86:87], v12 offset:1536
    ds_write_b128 v15, v[108:111]
    ds_read_b64 v[60:61], v12
    ds_read_b64 v[62:63], v12 offset:512
    s_waitcnt lgkmcnt(0)
    """)
    unpack(XU, 56)
    unpack(72, 84)
    unpack(WU, 60)
    mirror(XM, 72)
    a("s_bitcmp1_b32 s5, 0")
    a("s_cselect_b64 vcc, -1, 0")
    for j in range(4):
        a("v_cndmask_b32 %s, %s, %s, vcc" % (v(92 + j), v(WU + j), v(WU + 4 + j)))
    a("s_cmp_lt_u32 s5, 2")
    a("s_cselect_b64 vcc, -1, 0")
    for j in range(4):
        a("v_cndmask_b32 %s, %s, 1.0, vcc" % (v(92 + j), v(92 + j)))
    a("s_mov_b32 s54, %d" % SPIN)
    a("s_waitcnt lgkmcnt(0)")
    if PROG:
        a("""
        v_and_b32 v8, 7, v0
        v_bfe_u32 v6, v0, 3, 2
        v_lshl_add_u32 v8, v6, 5, v8
        s_lshr_b32 s52, s52, 1
        """)
        a("v_lshlrev_b32 v8, %d, v8" % FSH)
        a("s_lshl_b32 s52, s52, %d" % (FSH + 3))
        a("s_add_u32 s52, s52, 0x%x" % WS_FLAG)
        a("s_mov_b32 s32, -1")
        a("s_mov_b32 s33, 0")
        a("s_mov_b32 s48, 0")
        a.label("L_poll1")
        a("s_mov_b64 exec, s[32:33]")
        a("buffer_load_dword v6, v8, s[12:15], s52 offen sc1")
        a("s_waitcnt vmcnt(0)")
        a("v_cmp_ne_u32 vcc, v6, %s" % v(VTAG))
        a("s_mov_b64 exec, -1")
        a("""
        s_mov_b32 s32, vcc_lo
        s_lshr_b32 s34, s32, 1
        s_or_b32 s34, s34, s32
        s_lshr_b32 s35, s34, 2
        s_or_b32 s34, s34, s35
        s_or_b32 s34, s34, s48
        s_andn2_b32 s34, 0x11111111, s34
        s_cbranch_scc0 L_skip7
        s_or_b32 s48, s48, s34
        """)
        for i in range(8):
            a("s_bitcmp1_b32 s34, %d" % (4 * i))
            a("s_cbranch_scc0 L_skip%d" % i)
            inter_load(i // 4, i % 4)
            a.label("L_skip%d" % i)
        a("s_cmp_eq_u32 s32, 0")
        poll_tail(a, "L_poll1")
        stamp(a, 8)
        a("s_mov_b32 s54, %d" % SPIN)
        a("s_branch L_inter_go")
        a.vm = []
    else:
        a("s_cmp_ge_u32 s5, 2")
        a("s_cbranch_scc1 L_poll1_ok")
        a("v_lshlrev_b32 v8, %d, v0" % FSH)
        a("s_mov_b32 s52, 0x%x" % WS_FLAG)
        a.label("L_poll1")
        a("buffer_load_dword v6, v8, s[12:15], s52 offen sc1")
        a("s_waitcnt vmcnt(0)")
        a("v_cmp_ne_u32 vcc, v6, %s" % v(VTAG))
        a("s_and_b64 exec, exec, vcc")
        a("s_cmp_eq_u64 exec, 0")
        poll_tail(a, "L_poll1")
        a("s_mov_b64 exec, -1")
        a("s_mov_b32 s54, %d" % SPIN)
        a("s_barrier")
        stamp(a, 8)
    if PRIO:
        a("s_cmp_lt_u32 s5, 4")
        a("s_cbranch_scc1 L_inter")
        a("s_setprio %d" % PRIO)
    a.label("L_inter")
    for ks in range(2):
        for r in range(4):
            inter_load(ks, r)
    a.label("L_inter_go")
    mod_loads()
    ACC = 96
    for ks in range(2):
        a.wait_vm_for(v(L, 32) if PROG else v(L + 16 * ks, 16))
        if ks == 1 - PROG:
            stamp(a, 9)
        TT = 68 if ks == 0 else 16
        b = L + 16 * ks
        for i in range(4):
            for hp in range(2):
                o = i & 1
                a("v_pk_mov_b32 %s, %s, %s op_sel:[%d,%d]" % (v(TT + 4 * i + 2 * hp, 2), v(b + 8 * hp + (i & 2), 2), v(b + 8 * hp + 4 + (i & 2), 2), o, o))
        for i in range(4):
            acc = v(ACC + 4 * i, 4)
            a("v_mfma_f32_16x16x32_bf16 %s, %s, %s, %s" % (acc, v(SA + 4 * ks, 4), v(TT + 4 * i, 4), "0" if ks == 0 else acc))
    a("""
    v_max3_u32 v6, v68, v69, v70
    v_max3_u32 v8, v71, v16, v17
    v_max3_u32 v6, v6, v18, v19
    v_max_u32 v6, v6, v8
    v_cmp_eq_u32 vcc, -1, v6
    s_waitcnt vmcnt(0)
    s_cmp_eq_u64 vcc, 0
    """)
    poll_tail(a, "L_inter")
    a("s_mov_b32 s54, %d" % SPIN)
    a("s_branch L_modv_chk")
    a.label("L_modv")
    mod_loads()
    a("s_waitcnt vmcnt(0)")
    a.label("L_modv_chk")
    tag_check([49, 51, 53, 55, 65, 67])
    a("v_and_b32 v65, 0xffff0000, v64")
    a("v_and_b32 v67, 0xffff0000, v66")
    a("s_cmp_eq_u64 vcc, 0")
    poll_tail(a, "L_modv")
    a("""
    v_lshlrev_b32 v64, 16, v64
    v_lshlrev_b32 v66, 16, v66
    ds_write_b128 v90, v[64:67]
    s_bitcmp1_b32 s5, 1
    s_cbranch_scc1 L_nop
    v_pk_mul_f32 v[92:93], v[92:93], v[64:65]
    v_pk_mul_f32 v[94:95], v[94:95], v[66:67]
    ds_write_b32 v91, v92
    ds_write_b32 v199, v93 offset:8
    ds_write2_b32 v199, v94, v95 offset0:1 offset1:0
    s_cmp_lt_u32 s5, 2
    s_cbranch_scc1 L_nop
    ds_write_b128 v90, v[92:95] offset:7680
    """)
    a.label("L_nop")
    widen(48, 8)
    for i in range(4):
        a("v_mul_f32 %s, v11, %s" % (v(52 + i), v(52 + i)))
    if FINE == 1:
        stamp(a, 1)
    P = 32
    for i in range(4):
        c = ACC + 4 * i
        a("v_fma_f32 %s, %s, %s, %s" % (v(c), v(c), v(48 + i), v(52 + i)))
        a("v_mul_f32 %s, %s, %s" % (v(c + 1), v(c + 1), v(48 + i)))
        a("v_pk_mul_f32 %s, %s, %s op_sel:[0,%d] op_sel_hi:[1,%d]" % (v(c + 2, 2), v(c + 2, 2), v(48 + (i & 2), 2), i & 1, i & 1))
        for tt in range(2):
            a("v_cvt_pk_bf16_f32 %s, %s, %s" % (v(P + 4 * tt + 2 * (i % 2) + i // 2), v(c + 2 * tt), v(c + 2 * tt + 1)))
        if i >= 2:
            for tt in range(2):
                a("ds_write_b64 v9, %s offset:%d" % (v(P + 4 * tt + 2 * (i - 2), 2), tt * 2560 + (i - 2) * 1280))
    a("s_waitcnt lgkmcnt(0)")
    if FINE == 1:
        stamp(a, 2)
    a("s_barrier")
    if FINE == 1:
        stamp(a, 3)
    D = 24
    a("ds_read_b128 %s, v10" % v(D, 4))
    a("ds_read_b128 %s, v10 offset:1280" % v(D + 4, 4))

    def notice():
        a("s_mov_b64 exec, 1")
        a("buffer_store_dword %s, off, s[12:15], s51 sc1" % v(VTAG))
        a("s_mov_b64 exec, -1")
    if PRE == 1:
        notice()
    a("v_mov_b32 v80, s38")
    a("v_mov_b32 v81, s36")
    a("v_lshlrev_b32 v11, 3, v3")
    a("v_add_u32 v11, %d, v11" % LDS_KEY)
    a("v_mov_b32 v13, %d" % LDS_KEY)
    a("s_mov_b32 exec_lo, 0")
    a("v_mov_b32 v80, s39")
    a("v_mov_b32 v81, s37")
    a("v_add_u32 v11, 4, v11")
    a("s_mov_b32 exec_lo, -1")
    BR, BI = 32, 40
    for h in range(2):
        a.wait_lg_for(v(D + 4 * h, 4))
        a("v_mfma_f32_16x16x32_bf16 %s, %s, %s, 0" % (v(BR + 4 * h, 4), v(D + 4 * h, 4), v(FR, 4)))
        a("v_mfma_f32_16x16x32_bf16 %s, %s, %s, 0" % (v(BI + 4 * h, 4), v(D + 4 * h, 4), v(FI, 4)))
    A2 = 16
    Y = 64
    for h in range(2):
        for j in range(0, 4, 2):
            br, bi, tc, ts = v(BR + 4 * h + j, 2), v(BI + 4 * h + j, 2), v(TC + 4 * h + j, 2), v(TS + 4 * h + j, 2)
            a("v_pk_mul_f32 %s, %s, %s" % (v(48 + j, 2), br, tc))
            a("v_pk_mul_f32 %s, %s, %s" % (v(52 + j, 2), bi, tc))
            a("v_pk_fma_f32 %s, %s, %s, %s" % (v(48 + j, 2), bi, ts, v(48 + j, 2)))
            a("v_pk_fma_f32 %s, %s, %s, %s neg_lo:[1,0,0] neg_hi:[1,0,0]" % (v(52 + j, 2), br, ts, v(52 + j, 2)))
        if h == 0:
            vec_read(PP, 5)
            vec_read(GA, 0)
        else:
            vec_read(GAM, 4)
            vec_read(PM, 6)
        for k in range(4):
            a("v_cvt_pk_bf16_f32 %s, %s, %s" % (v(A2 + 4 * h + k), v(48 + k), v(52 + k)))
        for gg in range(2):
            y = v(Y + 4 * gg, 4)
            a("v_mfma_f32_16x16x32_bf16 %s, %s, %s, %s" % (y, v(A2 + 4 * h, 4), v(G + 8 * h + 4 * gg, 4), "0" if h == 0 else y))
    if FINE:
        stamp(a, 4)
    if PRE == 2:
        notice()
    a("v_mov_b32 v57, %s" % v(VTAG))
    a("v_mov_b32 v59, %s" % v(VTAG))
    a("s_lshl_b32 s58, s59, %d" % KSH)
    a("s_add_u32 s58, s58, 0x%x" % WS_KEYS)
    a("s_cmp_eq_u32 s5, 0")
    a("s_cselect_b32 s58, s58, 0x%x" % OOB)
    rows = ((XU, GA, PP, 32), (XM, GAM, PM, 40))
    a.wait_lg_for(v(PP, 8))
    a("v_pk_add_f32 v[38:39], %s, %s" % (v(PP, 2), v(PP + 2, 2)))
    a("v_pk_add_f32 v[46:47], %s, %s" % (v(PP + 4, 2), v(PP + 6, 2)))
    a("v_pk_add_f32 v[38:39], v[38:39], v[46:47]")
    a("v_add_f32 v38, v38, v39")
    a("v_mov_b32 v46, v38")
    for xx, ga, pp, tp in rows:
        a.wait_lg_for(v(ga, 8))
        for e in range(0, 8, 2):
            a("v_pk_fma_f32 %s, %s, %s, %s" % (v(xx + e, 2), v(ga + e, 2), v(Y + e, 2), v(xx + e, 2)))
    XN = 72
    for xx, ga, pp, tp in rows:
        a.wait_lg_for(v(pp, 8))
        a("v_pk_add_f32 %s, %s, %s" % (v(tp, 2), v(xx, 2), v(xx + 2, 2)))
        a("v_pk_mul_f32 %s, %s, %s" % (v(tp + 2, 2), v(xx, 2), v(xx, 2)))
        a("v_pk_mul_f32 %s, %s, %s" % (v(tp + 4, 2), v(xx, 2), v(pp, 2)))
        for e in range(2, 8, 2):
            if e > 2:
                a("v_pk_add_f32 %s, %s, %s" % (v(tp, 2), v(tp, 2), v(xx + e, 2)))
            a("v_pk_fma_f32 %s, %s, %s, %s" % (v(tp + 2, 2), v(xx + e, 2), v(xx + e, 2), v(tp + 2, 2)))
            a("v_pk_fma_f32 %s, %s, %s, %s" % (v(tp + 4, 2), v(xx + e, 2), v(pp + e, 2), v(tp + 4, 2)))
        for k in range(3):
            a("v_add_f32 %s, %s, %s" % (v(tp + 2 * k), v(tp + 2 * k), v(tp + 2 * k + 1)))
    for k in (3, 0, 1, 2):
        a("v_permlane32_swap_b32 %s, %s" % (v(32 + 2 * k), v(40 + 2 * k)))
    for k in (3, 0, 1, 2):
        a("v_add_f32 %s, %s, %s" % (v(32 + 2 * k), v(32 + 2 * k), v(40 + 2 * k)))
    a("v_permlane16_swap_b32 v32, v34")
    a("v_permlane16_swap_b32 v36, v38")
    a("v_add_f32 v32, v32, v34")
    a("v_add_f32 v36, v36, v38")
    if EARLYH == 1:
        extra = []
        for b, a0, a123 in ((XM, "v196", "v178"), (XM + 4, "v177", "v176")):
            extra += ["ds_write_b32 %s, %s" % (a0, v(b)), "ds_write_b32 %s, %s offset:8" % (a123, v(b + 1)), "ds_write2_b32 %s, %s, %s offset0:1 offset1:0" % (a123, v(b + 2), v(b + 3))]
        for k, mod in enumerate(ROR):
            for r in (32, 36):
                a("v_add_f32_dpp %s, %s, %s %s" % (v(r), v(r), v(r), mod))
            for t in extra[(k * 6) // 4:((k + 1) * 6) // 4]:
                a(t)
    else:
        dpp_sum(a, [32, 36], ROR)
    if FINE == 1:
        stamp(a, 5)
    if PRE == 3:
        notice()
    a("v_mov_b32_dpp v33, v32 %s" % BC[0])
    a("v_mov_b32_dpp v37, v36 %s" % BC[0])
    a("v_mul_f32 v33, %s, v33                 ; mean" % f32(1 / 512))
    a("v_mul_f32 v34, v33, v33")
    a("v_sub_f32 v34, %s, v34" % f32(EPS))
    a("v_fmac_f32 v34, %s, v32" % f32(1 / 512))
    a("v_rsq_f32 v34, v34")
    a("""
    v_fma_f32 v36, -v33, v36, v37
    v_mul_f32 v8, v36, v34
    v_ashrrev_i32 v9, 31, v8
    v_or_b32 v9, s63, v9
    v_xor_b32 v8, v8, v9
    v_and_or_b32 v8, v8, v80, v81
    s_mov_b32 exec_lo, 0x80000000
    s_mov_b32 exec_hi, 0x80000000
    ds_write_b32 v11, v8
    s_mov_b64 exec, -1
    v_mul_f32 v35, v33, v34
    s_cmp_lg_u32 s5, 0
    s_cbranch_scc1 L_noprio
    s_setprio 3
    """)
    a.label("L_noprio")
    if EARLYH == 2:
        for b, a0, a123 in ((XM, "v196", "v178"), (XM + 4, "v177", "v176")):
            a("ds_write_b32 %s, %s" % (a0, v(b)))
            a("ds_write_b32 %s, %s offset:8" % (a123, v(b + 1)))
            a("ds_write2_b32 %s, %s, %s offset0:1 offset1:0" % (a123, v(b + 2), v(b + 3)))
        a("s_waitcnt lgkmcnt(6)")
    else:
        a("s_waitcnt lgkmcnt(0)")
    stamp(a, 10)
    a("s_barrier")
    for k in range(4):
        a("ds_read_b128 %s, v13 offset:%d" % (v(16 + 4 * k, 4), 16 * k))
    a("""
    v_readlane_b32 s56, v8, 31
    v_readlane_b32 s57, v8, 63
    v_readlane_b32 s32, v34, 31
    v_readlane_b32 s33, v35, 31
    v_readlane_b32 s34, v34, 63
    v_readlane_b32 s35, v35, 63
    s_waitcnt lgkmcnt(2)
    v_max_u32 v56, v16, v17
    v_min_u32 v58, v16, v17
    """)
    for k in range(18, 30, 4):
        if k == 22:
            a("s_waitcnt lgkmcnt(0)")
        a("v_med3_u32 v60, v56, %s, %s" % (v(k), v(k + 1)))
        a("v_max3_u32 v56, v56, %s, %s" % (v(k), v(k + 1)))
        a("v_med3_u32 v61, v56, %s, %s" % (v(k + 2), v(k + 3)))
        a("v_max3_u32 v56, v56, %s, %s" % (v(k + 2), v(k + 3)))
        a("v_max3_u32 v58, v58, v60, v61")
    a("""
    v_med3_u32 v60, v56, v30, v31
    v_max3_u32 v56, v56, v30, v31
    v_max_u32 v60, v58, v60
    v_or_b32 v58, 1, v60
    s_mov_b64 exec, 1
    buffer_store_dwordx4 v[56:59], off, s[12:15], s58 sc1
    s_mov_b64 exec, -1
    s_setprio 0
    """)
    if FINE:
        stamp(a, 6)
    vec_read(CB, 2)
    vec_read(SB, 1)
    if EARLYH:
        a("ds_read_b128 %s, v14" % v(XN, 4))
        a("ds_read_b128 %s, v14 offset:1280" % v(XN + 4, 4))
        vec_read(GB, 3)
    else:
        vec_read(GB, 3)
        mirror(XN, XM)
    a("v_readfirstlane_b32 s60, v56")
    a("v_readfirstlane_b32 s61, v60")
    H, HM = 32, 88
    OUT, OUTM, HP, HPM = 40, 44, 48, 52
    for ri, (xx, hh, sp, o, hp) in enumerate(((XU, H, 32, OUT, HP), (XN, HM, 34, OUTM, HPM))):
        if ri:
            a("s_waitcnt lgkmcnt(0)")
        a("v_mov_b32 v60, %s" % s(sp + 1))
        for e in range(8):
            a("v_fma_f32 %s, %s, %s, -v60" % (v(hh + e), v(xx + e), s(sp)))
        a.wait_lg_for(v(VEC, 32))
        for e in range(0, 8, 2):
            a("v_pk_fma_f32 %s, %s, %s, %s" % (v(hh + e, 2), v(hh + e, 2), v(CB + e, 2), v(SB + e, 2)))
        for d in range(4):
            a("v_cvt_pk_bf16_f32 %s, %s, %s" % (v(hp + d), v(hh + 2 * d), v(hh + 2 * d + 1)))
        for e in range(0, 8, 2):
            a("v_pk_fma_f32 %s, %s, %s, %s" % (v(xx + e, 2), v(GB + e, 2), v(hh + e, 2), v(xx + e, 2)))
        for d in range(4):
            a("v_cvt_pk_bf16_f32 %s, %s, %s" % (v(o + d), v(xx + 2 * d), v(xx + 2 * d + 1)))
    a("""
    ds_write_b64 v12, v[40:41]
    ds_write_b64 v12, v[42:43] offset:512
    ds_write_b64 v12, v[44:45] offset:1024
    ds_write_b64 v12, v[46:47] offset:1536
    ds_read_b128 v[40:43], v15
    ds_read_b128 v[44:47], v15 offset:1024
    s_max_u32 s61, s61, 1
    """)
    for ri, (key, off, o, hp) in enumerate((("s56", "s49", OUT, HP), ("s57", "s50", OUTM, HPM))):
        a("s_mov_b32 s58, s45")
        a("s_cmp_eq_u32 %s, s60" % key)
        a("s_cbranch_scc1 L_cand%d" % ri)
        a("s_add_u32 s58, s45, 2048")
        a("s_cmp_eq_u32 %s, s61" % key)
        a("s_cselect_b32 s53, 1, 0")
        a("s_or_b32 %s, %s, s53" % (key, key))
        a("s_cmp_eq_u32 s53, 1")
        stc = a.fork()
        a("s_cbranch_scc1 L_cand%d" % ri)
        a("s_mov_b32 %s, 0" % key)
        a("s_waitcnt lgkmcnt(0)")
        a("buffer_store_dwordx4 %s, v250, s[28:31], %s offen%s" % (v(o, 4), off, OUTF))
        a("s_branch L_next%d" % ri)
        a.label("L_cand%d" % ri)
        a.join(stc)
        a("buffer_store_dwordx4 %s, v250, s[12:15], s58 offen sc1" % v(hp, 4))
        a("s_waitcnt lgkmcnt(0)")
        a("buffer_store_dwordx4 %s, v250, s[12:15], s58 offen offset:1024 sc1" % v(o, 4))
        a.label("L_next%d" % ri)
    a.label("L_tail", reset=True)
    a("""
    s_lshl_b32 s59, s5, 8
    s_add_u32 s59, s59, s2
    s_sub_u32 s59, s59, 192
    s_cmp_lt_u32 s59, 64
    s_cselect_b32 s59, 1, 0
    s_or_b32 s60, s59, s56
    s_or_b32 s60, s60, s57
    s_cbranch_scc0 L_done
    s_lshl_b32 s45, s3, 7
    """)
    a("s_add_u32 s45, s45, 0x%x" % WS_SEL)
    a("s_cmp_eq_u32 s59, 0")
    a("s_cbranch_scc1 L_sel_go")
    a("""
    s_lshl3_add_u32 s44, s3, s4
    s_sub_u32 s44, s44, 24
    s_lshr_b32 s48, s44, 2
    s_lshl_b32 s48, s48, 5
    s_and_b32 s46, s44, 3
    s_lshl2_add_u32 s48, s46, s48
    v_and_b32 v4, 3, v0
    v_lshrrev_b32 v5, 1, v2
    v_lshl_add_u32 v5, v5, 4, v4
    v_add_u32 v5, s48, v5
    v_and_b32 v8, 0x103, v5
    v_bfe_u32 v9, v5, 2, 2
    v_lshl_add_u32 v8, v9, 6, v8
    v_bfe_u32 v9, v5, 4, 4
    v_lshl_add_u32 v8, v9, 2, v8
    v_lshlrev_b32 v8, 2, v8
    """)
    a("ds_write_b128 v15, %s" % v(GB, 4))
    a("ds_write_b128 v15, %s offset:1024" % v(GB + 4, 4))
    a("ds_read_b32 v8, v8 offset:%d           ; gb[e]" % LDS_SCR)
    a("v_pk_mul_f32 v[62:63], %s, %s" % (v(SB, 2), v(WU, 2)))
    for e in range(2, 8, 2):
        a("v_pk_fma_f32 v[62:63], %s, %s, v[62:63]" % (v(SB + e, 2), v(WU + e, 2)))
    a("v_add_f32 v62, v62, v63")
    dpp_sum(a, [62], ROR + BC)
    a("v_readlane_b32 s58, v62, 63")
    a("""
    v_bfe_u32 v9, v0, 2, 4
    v_lshlrev_b32 v9, 12, v9
    v_lshl_add_u32 v9, v4, 4, v9
    s_lshl_b32 s40, s44, 6
    v_and_b32 v10, 1, v2
    v_cmp_eq_u32 s[52:53], 1, v10
    v_mov_b32 v36, 0
    v_mov_b32 v37, 0
    v_mov_b32 v38, 0
    v_mov_b32 v39, 0
    """)
    a("s_add_u32 s40, s40, 0x%x" % WS_PART)
    a("s_add_u32 s41, s40, 0x10000")
    a("s_add_u32 s42, s40, 0x20000")
    a("s_add_u32 s43, s40, 0x30000")
    a("s_waitcnt lgkmcnt(0)")
    a.label("L_sel_go")
    a("s_mov_b32 s54, %d" % SPIN)
    a.label("L_poll_sel")
    a("buffer_load_dwordx4 v[16:19], off, s[12:15], s45 sc1")
    a("s_waitcnt vmcnt(0)")
    a("v_cmp_eq_u32 vcc, v17, %s" % v(VTAG))
    a("v_cmp_eq_u32 s[60:61], v19, %s" % v(VTAG))
    a("s_and_b64 vcc, vcc, s[60:61]")
    a("s_cmp_eq_u64 vcc, -1")
    poll_tail(a, "L_poll_sel")
    stamp(a, 11)
    a("""
    v_readfirstlane_b32 s60, v16
    v_readfirstlane_b32 s61, v18
    """)
    if LO:
        for ri, (key, off, o) in enumerate((("s56", "s49", OUT), ("s57", "s50", OUTM))):
            a("s_cmp_eq_u32 %s, 0" % key)
            a("s_cbranch_scc1 L_lo%d" % ri)
            a("s_cmp_eq_u32 %s, s60" % key)
            a("s_cbranch_scc1 L_lo%d" % ri)
            a("s_cmp_eq_u32 %s, s61" % key)
            a("s_cbranch_scc1 L_lo%d" % ri)
            a("buffer_store_dwordx4 %s, v250, s[28:31], %s offen" % (v(o, 4), off))
            a.label("L_lo%d" % ri)
    a("""
    s_cmp_eq_u32 s59, 0
    s_cbranch_scc1 L_late_out
    v_cndmask_b32 v16, v16, v18, s[52:53]
    v_bfe_u32 v17, v16, 5, 8
    v_and_b32 v18, 1, v16
    v_lshlrev_b32 v19, 12, v17
    v_lshl_add_u32 v19, v18, 11, v19
    v_lshl_add_u32 v19, v5, 1, v19
    """)
    a("s_mov_b32 s55, 0x%x" % (WS_CAND + 1024))
    a("s_mov_b32 s54, %d" % SPIN)
    a.label("L_poll_base")
    a("""
    buffer_load_ushort v20, v19, s[12:15], s55 offen sc1
    v_and_b32 v21, 7, v17
    v_bfe_u32 v22, v17, 5, 2
    v_lshl_add_u32 v21, v22, 3, v21       ; slot
    v_bfe_u32 v22, v17, 3, 2
    v_lshl_add_u32 v22, v22, 9, v21
    v_subrev_u32 v23, 992, v22
    v_cmp_eq_u32 vcc, 0, v21
    v_cndmask_b32 v23, v22, v23, vcc
    v_cmp_gt_u32 vcc, 1024, v22
    v_cndmask_b32 v21, v23, v22, vcc
    v_lshrrev_b32 v22, 7, v17
    v_lshl_add_u32 v21, v22, 10, v21
    v_bfe_u32 v22, v16, 2, 3
    v_lshl_add_u32 v21, v22, 6, v21
    v_sub_u32 v22, 2048, v21
    v_and_b32 v23, 2, v16
    v_cmp_eq_u32 vcc, 0, v23
    v_cndmask_b32 v21, v22, v21, vcc
    v_lshlrev_b32 v21, 10, v21
    v_lshl_add_u32 v21, v5, 1, v21
    """)
    if FIN == 2:
        a("buffer_load_ushort v49, v21, s[28:31], 0 offen")
    a("""
    v_and_b32 v22, 0xffffe000, v16
    v_ashrrev_i32 v23, 31, v22
    v_not_b32 v23, v23
    v_or_b32 v23, s63, v23
    v_xor_b32 v22, v22, v23
    v_add_f32 v22, s58, v22
    """)
    a("v_mul_f32 v22, %s, v22" % f32(-LOG2E))
    a("""
    v_exp_f32 v22, v22
    v_add_f32 v22, 1.0, v22
    v_rcp_f32 v22, v22
    v_mul_f32 v22, v22, v8
    s_waitcnt vmcnt(0)
    v_cmp_eq_u32 vcc, 0xffff, v20
    s_cmp_eq_u64 vcc, 0
    """)
    poll_tail(a, "L_poll_base")
    a("s_mov_b32 s54, %d" % SPIN)
    a.label("L_poll_part")
    a("""
    buffer_load_dwordx4 v[24:27], v9, s[12:15], s40 offen sc1
    buffer_load_dwordx4 v[28:31], v9, s[12:15], s41 offen sc1
    buffer_load_dwordx4 v[32:35], v9, s[12:15], s42 offen sc1
    s_mov_b32 exec_hi, 0
    buffer_load_dwordx4 v[36:39], v9, s[12:15], s43 offen sc1
    s_mov_b32 exec_hi, -1
    s_waitcnt vmcnt(0)
    v_max3_u32 v48, v24, v28, v32
    v_max_u32 v48, v48, v36
    v_cmp_eq_u32 vcc, -1, v48
    s_cmp_eq_u64 vcc, 0
    """)
    poll_tail(a, "L_poll_part")
    stamp(a, 12)
    a("""
    v_pk_add_f32 v[24:25], v[24:25], v[28:29]
    v_pk_add_f32 v[26:27], v[26:27], v[30:31]
    v_pk_add_f32 v[32:33], v[32:33], v[36:37]
    v_pk_add_f32 v[34:35], v[34:35], v[38:39]
    v_pk_add_f32 v[24:25], v[24:25], v[32:33]
    v_pk_add_f32 v[26:27], v[26:27], v[34:35]
    v_permlane32_swap_b32 v24, v26
    v_permlane32_swap_b32 v25, v27
    v_pk_add_f32 v[24:25], v[24:25], v[26:27]
    v_permlane16_swap_b32 v24, v25
    v_add_f32 v24, v24, v25
    v_lshlrev_b32 v20, 16, v20
    """)
    dpp_sum(a, [24], ROR[:2])
    a("""
    v_fmac_f32 v20, v24, v22
    v_cvt_pk_bf16_f32 v20, v20, v20
    s_mov_b32 exec_lo, 0x000f000f
    s_mov_b32 exec_hi, 0x000f000f
    buffer_store_short v20, v21, s[28:31], 0 offen OUTF
    s_mov_b64 exec, -1
    s_cmp_lg_u32 s2, 192
    s_cbranch_scc1 L_late_out
    s_mov_b64 exec, 1
    """.replace(" OUTF", " sc1" if FIN == 1 else ""))
    a("s_mov_b32 s55, 0x%x" % WS_GEN)
    a("buffer_store_dword %s, off, s[12:15], s55" % v(VTAG))
    a("s_mov_b64 exec, -1")
    if PROBE >= 0 and not PFFN:
        probe_spin(a)
    a.label("L_late_out", reset=True)
    for ri, (key, off, o) in enumerate((("s56", "s49", OUT), ("s57", "s50", OUTM)) if not LO else ()):
        nxt = "L_late1" if ri == 0 else "L_done"
        a("s_cmp_eq_u32 %s, 0" % key)
        a("s_cbranch_scc1 %s" % nxt)
        a("s_cmp_eq_u32 %s, s60" % key)
        a("s_cbranch_scc1 %s" % nxt)
        a("s_cmp_eq_u32 %s, s61" % key)
        a("s_cbranch_scc1 %s" % nxt)
        a("buffer_store_dwordx4 %s, v250, s[28:31], %s offen%s" % (v(o, 4), off, OUTF))
        if ri == 0:
            a.label("L_late1")
    a("s_branch L_done")
    a.label("L_ffn", reset=True)
    a("s_mov_b32 s58, s4")
    a("""
    s_mul_i32 s6, s3, 7
    s_add_u32 s6, s6, s58
    s_lshl_b32 s46, s6, 12
    """)
    a("s_add_u32 s46, s46, 0x%x               ; partial-sum slab" % WS_PART)
    a("s_add_u32 s45, s46, s62")
    a("s_cmp_lt_u32 s5, 4")
    a("s_cselect_b32 s45, s45, 0x%x" % OOB)
    if EPART:
        a("v_mov_b32 v33, %s" % v(VTAG))
        a("v_mov_b32 v35, %s" % v(VTAG))
        if EPART == 2:
            a("s_waitcnt vmcnt(0)")
        a("s_barrier")
    else:
        a("buffer_store_dwordx4 v[252:255], v250, s[12:15], s45 offen sc1")
        a("v_mov_b32 v33, %s" % v(VTAG))
        a("v_mov_b32 v35, %s" % v(VTAG))
        a("v_mov_b32 v32, 0")
        a("v_mov_b32 v34, 0")
        a("s_lshl_b32 s53, s6, %d" % KSH)
        a("s_add_u32 s53, s53, 0x%x" % (WS_KEYS + (129 << KSH)))
        a("s_cmp_eq_u32 s5, 0")
        a("s_cselect_b32 s53, s53, 0x%x" % OOB)
        a("s_waitcnt vmcnt(0)")
        a("s_barrier")
        a("s_mov_b64 exec, 1")
        a("buffer_store_dwordx4 v[32:35], off, s[12:15], s53 sc1")
        a("s_mov_b64 exec, -1")
    a("s_mov_b64 s[32:33], s[18:19]")
    a("s_mov_b64 s[36:37], s[20:21]")
    a("s_mov_b64 s[40:41], s[22:23]")
    srd(a, 32, 512 * 3584)
    srd(a, 36, 512 * 3584)
    srd(a, 40, 1792 * 1024)
    a("""
    s_and_b32 s44, s5, 1
    s_lshl_b32 s44, s44, 7
    s_lshr_b32 s48, s5, 1
    s_lshl2_add_u32 s44, s48, s44
    v_bfe_u32 v4, v0, 2, 2
    v_lshl_add_u32 v4, v2, 4, v4
    v_add_u32 v4, s44, v4
    v_mul_u32_u24 v4, 3584, v4
    v_and_b32 v5, 3, v0
    SWZA
    v_lshl_add_u32 v4, v5, 4, v4
    s_lshl_b32 s48, s6, 6
    s_mul_i32 s7, s5, 12288
    s_mov_b32 m0, s7
    """.replace("SWZA", "v_and_b32 v6, 1, v2\nv_lshlrev_b32 v6, 1, v6\nv_xor_b32 v5, v5, v6" if SWZ else ""))
    a("s_add_u32 s49, s48, %d" % (64 * 3584))
    a("s_add_u32 s50, s48, %d" % (256 * 3584))
    a("s_add_u32 s51, s48, %d" % (320 * 3584))
    stamp(a, 7)
    for sr in (32, 36):
        for i in range(4):
            a("buffer_load_dwordx4 v4, %s, %s offen lds" % (s(sr, 4), s(48 + i)))
            a("s_add_u32 m0, m0, 1024")
    a("""
    v_bfe_u32 v5, v0, 3, 3
    v_lshlrev_b32 v5, 10, v5
    v_and_b32 v4, 7, v0
    SWZB
    v_lshl_add_u32 v5, v4, 4, v5
    v_lshl_add_u32 v5, v3, 7, v5
    v_xor_b32 v6, SWZC, v5
    s_lshl_b32 s48, s6, 15
    """.replace("SWZB", "v_lshrrev_b32 v6, 3, v0\nv_and_b32 v6, 2, v6\nv_xor_b32 v4, v4, v6" if SWZ else "").replace("SWZC", "64" if SWZ else "0"))
    for i in range(4):
        a("buffer_load_dwordx4 %s, s[40:43], s48 offen lds" % ("v6" if i & 1 else "v5"))
        if i < 3:
            a("s_add_u32 m0, m0, 1024")
            a("s_add_u32 s48, s48, 8192")
    WF, WD = 64, 96
    a("v_lshlrev_b32 v6, %d, v0" % KSH)
    a("""
    v_bfe_u32 v4, v0, 2, 4                ; 4q + r
    v_and_b32 v5, 3, v0
    v_lshlrev_b32 v5, 3, v5
    v_lshl_add_u32 v8, v4, 6, v5
    v_add_u32 v8, s7, v8
    v_bfe_u32 v9, v0, 2, 2
    v_lshl_add_u32 v9, v2, 3, v9
    v_lshl_add_u32 v9, v9, 7, v5
    v_add_u32 v9, s7, v9
    """)
    a("""
    v_and_b32 v10, 1, v0
    v_cmp_eq_u32 s[50:51], 1, v10
    v_lshlrev_b32 v11, 7, v3
    v_lshl_add_u32 v11, v2, 4, v11
    v_lshlrev_b32 v12, 6, v10
    v_lshl_add_u32 v13, v2, 4, v12
    v_lshl_add_u32 v13, v3, 9, v13
    v_and_b32 v14, 30, v0
    v_lshl_add_u32 v14, v14, 1, v12
    v_and_b32 v12, 32, v0
    v_lshl_add_u32 v14, v12, 2, v14
    """)
    a("v_add_u32 v13, %d, v13                 ; partial write address" % LDS_RED)
    a("v_add_u32 v14, %d, v14                 ; partial read address" % LDS_RED)
    a("""
    v_lshlrev_b32 v15, 9, v3
    v_lshl_add_u32 v15, v1, 4, v15
    v_lshlrev_b32 v7, 3, v3
    v_mov_b32 v16, 0
    v_mov_b32 v18, 0
    """)
    a("v_add_u32 v7, %d, v7" % LDS_KEY2)
    a("v_mov_b32 v4, %d" % LDS_KEY2)
    if SWZ:
        a("""
        v_and_b32 v12, 1, v2
        v_lshl_add_u32 v40, v12, 5, v8
        v_xor_b32 v41, 32, v40
        v_lshl_add_u32 v42, v12, 6, v9
        v_and_b32 v12, 8, v0
        v_lshl_add_u32 v42, v12, 2, v42
        v_xor_b32 v43, 32, v42
        v_xor_b32 v44, 64, v42
        v_xor_b32 v45, 0x60, v42
        """)
    a("s_waitcnt vmcnt(0)")
    stamp(a, 8)
    for kk in range(2):
        for mt in range(4):
            for hf in range(2):
                if SWZ:
                    a("ds_read_b64_tr_b16 %s, %s offset:%d" % (v(WF + 16 * kk + 4 * mt + 2 * hf, 2), "v41" if mt % 2 else "v40", (mt // 2) * 4096 + hf * 2048 + kk * 1024))
                else:
                    a("ds_read_b64_tr_b16 %s, v8 offset:%d" % (v(WF + 16 * kk + 4 * mt + 2 * hf, 2), (mt // 2) * 4096 + hf * 2048 + kk * 1024 + (mt % 2) * 32))
    for t in range(4):
        for hf in range(2):
            if SWZ:
                a("ds_read_b64_tr_b16 %s, %s offset:%d" % (v(WD + 4 * t + 2 * hf, 2), v(42 + t), 8192 + hf * 512))
            else:
                a("ds_read_b64_tr_b16 %s, v9 offset:%d" % (v(WD + 4 * t + 2 * hf, 2), 8192 + hf * 512 + t * 32))
    a("s_lshl_b32 s52, s3, 7")
    a("s_add_u32 s55, s52, 0x%x" % WS_PRE)
    a("s_add_u32 s52, s52, 0x%x" % WS_SEL)
    a("s_or_b32 s53, s58, s5")
    a("s_cselect_b32 s52, 0x%x, s52           ; one announcing wave per group" % OOB)
    a("s_cmp_ge_u32 s5, 3")
    a("s_cbranch_scc1 L_keys_done")
    a("s_mov_b32 s54, %d" % SPIN)
    if PRE:
        a.label("L_poll_pre")
        a("buffer_load_dword v17, off, s[12:15], s55 sc1")
        a("s_waitcnt vmcnt(0)")
        a("v_cmp_eq_u32 vcc, v17, %s" % v(VTAG))
        a("s_cmp_eq_u64 vcc, -1")
        poll_tail(a, "L_poll_pre")
        a("s_mov_b32 s54, %d" % SPIN)
    stamp(a, 10)
    a("v_cmp_gt_u32 vcc, 185, v0")
    a("s_mov_b32 s55, 0x%x" % WS_KEYS)
    a("s_mov_b64 exec, vcc")
    a.label("L_poll_keys")
    a("buffer_load_dwordx4 v[16:19], v6, s[12:15], s55 offen sc1")
    a("s_waitcnt vmcnt(0)")
    a("v_cmp_ne_u32 vcc, v17, %s" % v(VTAG))
    a("v_cmp_ne_u32 s[60:61], v19, %s" % v(VTAG))
    a("s_or_b64 vcc, vcc, s[60:61]")
    a("s_and_b64 exec, exec, vcc")
    a("s_cmp_eq_u64 exec, 0")
    poll_tail(a, "L_poll_keys")
    a("s_mov_b64 exec, -1")
    for mod in ROR + BC:
        a("v_min_u32_dpp v19, v16, v16 %s" % mod)
        a("v_max_u32_dpp v18, v18, v18 %s" % mod)
        a("v_max_u32_dpp v16, v16, v16 %s" % mod)
        a("v_max_u32 v18, v18, v19")
    a("""
    s_mov_b32 exec_lo, 0
    s_mov_b32 exec_hi, 0x80000000
    ds_write2_b32 v7, v16, v18 offset0:0 offset1:1
    s_mov_b64 exec, -1
    """)
    a.label("L_keys_done")
    a("s_waitcnt lgkmcnt(0)")
    a("s_barrier")
    stamp(a, 11)
    a("ds_read_b128 v[16:19], v4")
    a("ds_read_b64 v[20:21], v4 offset:16")
    a("s_mov_b32 s55, 0x%x" % WS_CAND)
    a("s_mov_b32 s54, %d" % SPIN)
    a("""
    s_waitcnt lgkmcnt(0)
    v_med3_u32 v36, v16, v18, v20
    v_max3_u32 v32, v16, v18, v20
    v_max3_u32 v34, v17, v19, v21
    v_max_u32 v34, v34, v36
    v_cndmask_b32 v36, v32, v34, s[50:51]
    v_bfe_u32 v37, v36, 5, 8
    v_and_b32 v36, 1, v36
    v_lshl_add_u32 v11, v37, 12, v11
    v_lshl_add_u32 v11, v36, 11, v11
    """)
    a.label("L_poll_h2")
    a("""
    buffer_load_dwordx4 v[16:19], v11, s[12:15], s55 offen sc1
    buffer_load_dwordx4 v[20:23], v11, s[12:15], s55 offen offset:64 sc1
    """)
    C = 48
    for kk in range(2):
        a("s_waitcnt vmcnt(%d)" % (1 - kk))
        if kk:
            stamp(a, 12)
        for mt in range(4):
            c = v(C + 4 * mt, 4)
            a("v_mfma_f32_16x16x32_bf16 %s, %s, %s, %s" % (c, v(WF + 16 * kk + 4 * mt, 4), v(16 + 4 * kk, 4), "0" if kk == 0 else c))
    a("""
    v_max_u32 v36, v16, v20
    v_cmp_eq_u32 vcc, -1, v36
    s_cmp_eq_u64 vcc, 0
    """)
    poll_tail(a, "L_poll_h2")
    a("s_mov_b64 exec, 1")
    a("buffer_store_dwordx4 v[32:35], off, s[12:15], s52 sc1")
    a("s_mov_b32 exec_lo, 0x00030003")
    a("s_mov_b32 exec_hi, 0x00030003")
    for mt in range(4):
        a("ds_write_b128 v13, %s offset:%d" % (v(C + 4 * mt, 4), 128 * mt))
    a("s_mov_b64 exec, -1")
    a("s_waitcnt lgkmcnt(0)")
    a("s_barrier")
    a("""
    ds_read2st64_b32 v[16:17], v14 offset0:0 offset1:2
    ds_read2st64_b32 v[18:19], v14 offset0:4 offset1:6
    ds_read2st64_b32 v[20:21], v14 offset0:8 offset1:10
    ds_read2st64_b32 v[22:23], v14 offset0:12 offset1:14
    ds_read2st64_b32 v[24:25], v14 offset0:1 offset1:3
    ds_read2st64_b32 v[26:27], v14 offset0:5 offset1:7
    ds_read2st64_b32 v[28:29], v14 offset0:9 offset1:11
    ds_read2st64_b32 v[30:31], v14 offset0:13 offset1:15
    s_waitcnt lgkmcnt(4)
    v_pk_add_f32 v[16:17], v[16:17], v[18:19]
    v_pk_add_f32 v[20:21], v[20:21], v[22:23]
    v_pk_add_f32 v[16:17], v[16:17], v[20:21]
    v_add_f32 v16, v16, v17
    """)
    a("v_mul_f32 v17, %s, v16" % f32(-LOG2E))
    a("""
    v_exp_f32 v17, v17
    s_waitcnt lgkmcnt(0)
    v_pk_add_f32 v[24:25], v[24:25], v[26:27]
    v_add_f32 v17, 1.0, v17
    v_pk_add_f32 v[28:29], v[28:29], v[30:31]
    v_rcp_f32 v17, v17
    v_pk_add_f32 v[24:25], v[24:25], v[28:29]
    v_add_f32 v24, v24, v25
    v_mul_f32 v16, v16, v17
    v_mul_f32 v16, v16, v24
    v_mov_b32_dpp v17, v16 row_ror:14 row_mask:0xf bank_mask:0xf
    v_cvt_pk_bf16_f32 v20, v16, v17
    v_mov_b32_dpp v21, v20 row_ror:12 row_mask:0xf bank_mask:0xf
    v_mov_b32_dpp v22, v20 row_ror:8 row_mask:0xf bank_mask:0xf
    v_mov_b32_dpp v23, v20 row_ror:4 row_mask:0xf bank_mask:0xf
    """)
    for t in range(4):
        a("v_mfma_f32_16x16x32_bf16 %s, v[20:23], %s, 0" % (v(C + 4 * t, 4), v(WD + 4 * t, 4)))
    a("""
    s_mov_b64 exec, 0xffff
    v_mov_b32 v50, v52
    v_mov_b32 v51, v53
    buffer_store_dwordx4 v[48:51], v15, s[12:15], s46 offen sc1
    v_mov_b32 v58, v60
    v_mov_b32 v59, v61
    buffer_store_dwordx4 v[56:59], v15, s[12:15], s46 offen offset:256 sc1
    s_mov_b64 exec, -1
    """)
    stamp(a, 9)
    if PROBE >= 0 and PFFN:
        a("s_lshl_b32 s94, s2, 3")
        a("s_or_b32 s94, s94, s5")
        a("s_cmp_lg_u32 s94, %d" % (PFFN - 1))
        a("s_cbranch_scc1 L_done")
        probe_spin(a)
    a.label("L_done", reset=True)
    stamp_end(a)
    a.label("L_end")
    a("s_endpgm")
    desc = """.section .rodata,"a"
.p2align 6
.amdhsa_kernel %s
  .amdhsa_next_free_vgpr 256
  .amdhsa_next_free_sgpr 102
  .amdhsa_accum_offset 256
  .amdhsa_group_segment_fixed_size 0
  .amdhsa_kernarg_size 120
  .amdhsa_user_sgpr_count 2
  .amdhsa_user_sgpr_kernarg_segment_ptr 1
  .amdhsa_system_sgpr_workgroup_id_x 1
.end_amdhsa_kernel
""" % KN
    return HEADER + "; @launch grid=(256,1,1) block=(512,1,1) lds=%d\n" % LDS_TOTAL + a.text() + desc


if __name__ == "__main__":
    out = sys.argv[1] if len(sys.argv) > 1 and sys.argv[1].endswith(".s") else "v13.s"
    open(out, "w").write(build())
    print("wrote", out)
```

```python
import sys, struct
from asmlib import Asm, Ins, v, s

NAME = "adaLN_cond__spectral_fnet__moe_arch_mod__prompt"
KN = NAME + "_kernel"
HEADER = open("cdna_kernels/%s.s.ref" % NAME).read().split("; Override launch geometry")[0]


def opt(name, default):
    for x in sys.argv:
        if x.startswith("--%s=" % name):
            return int(x.split("=")[1], 0)
    return default


STAMPS = "--stamps" in sys.argv
PROBE = opt("probe", -1)
KSH = opt("ksh", 6)
FSH = opt("fsh", 8)
HELP = opt("help", 1)
POIS = opt("pois", 4)
OUTF = ("", " sc1", " nt", " sc0 sc1", " sc1 nt")[opt("outf", 1)]
EARLYH = opt("earlyh", 2)
MODFIRST = opt("modfirst", 0)
ROWL = opt("rowl", 1)
MH = opt("mh", 9)
PLATE = opt("plate", 0)
OUTL = opt("outl", 0)
FINE = opt("fine", 0)
PROG = opt("prog", 0)
TMIN = opt("tmin", -1)
PFFN = opt("pffn", 0)
FIN = opt("fin", 0)
HF = opt("hf", 1)
LO = opt("lo", 1)
ADEL = opt("adel", 2)
SASK = opt("sask", 0)
CA16 = opt("ca16", 0)
PRIO = opt("prio", 0)
EPART = opt("epart", 0)
BT2 = opt("bt2", 0)
SWZ = opt("swz", 1)
BDEL = opt("bdel", 0)
BT = opt("bt", 8)
SENT = opt("sent", 0)
FDEL = opt("fdel", 0)
SW = opt("sw", 4)
PRE = opt("pre", 3)
CPOS = opt("cpos", 0)
CPF = opt("cpf", 0)
TOUCH = opt("touch", 1)

WS_MOD = 0x0
WS_GEN = 0x3000
WS_SEL = 0x3400
WS_PRE = 0x3800
WS_FLAG = 0x8000
WS_KEYS = 0x40000
WS_PART = 0x80000
WS_CAND = 0x100000
WS_INTER = 0x200000
WS_SIZE = 0x400000
WS_STAMP = 0x600000
if STAMPS:
    WS_SIZE = 0x800000
EPS = 1e-5
TAGC = 0x9E3779B9
SPIN = 1 << 15
OOB = 0x7fff0000
PITCH = 288
XWG = 120

LDS_U = 20480
LDS_SCR = LDS_U + 20480
LDS_VEC = LDS_SCR + 20480
LDS_KEY = LDS_VEC + 7 * 2560
LDS_TAB = LDS_KEY + 128
LDS_RED = 98304
LDS_KEY2 = LDS_RED + 4096
LDS_TOTAL = LDS_KEY2 + 64

FR, FI, TC, TS, G, SA = 200, 204, 208, 216, 224, 240
VQ4, VTAG, VL16 = 248, 249, 250
LOG2E = 1.4426950408889634


def f32(x):
    return "0x%08x" % struct.unpack("<I", struct.pack("<f", x))[0]


def srd(a, base, nbytes):
    a("s_mov_b32 %s, 0x%x" % (s(base + 2), nbytes))
    a("s_mov_b32 %s, 0x20000" % s(base + 3))


NST = 14


def stamp(a, i):
    if PROBE >= 0 and i == 0:
        a("s_memrealtime s[96:97]")
    if PROBE == i:
        a("s_memrealtime s[92:93]")
    if not STAMPS:
        return
    if i == 0:
        a("s_memrealtime s[96:97]")
        for k in range(1, NST):
            a("s_mov_b32 %s, 0" % s(64 + 2 * k))
    a("s_memtime %s" % s(64 + 2 * i, 2))


def stamp_end(a):
    if not STAMPS:
        return
    a("s_waitcnt vmcnt(0)")
    a("s_memtime %s" % s(64 + 2 * (NST - 1), 2))
    a("s_memrealtime s[98:99]")
    a("s_mov_b64 exec, 1")
    a("s_lshl_b32 s93, s2, 3")
    a("s_add_u32 s93, s93, s5")
    a("s_lshl_b32 s93, s93, 6")
    a("s_add_u32 s93, s93, 0x%x" % WS_STAMP)
    a("s_waitcnt lgkmcnt(0)")
    a("v_mov_b32 v16, s96")
    a("v_mov_b32 v17, s98")
    for k in range(NST):
        a("v_mov_b32 %s, %s" % (v(18 + k), s(64 + 2 * k)))
    for k in range(4):
        a("buffer_store_dwordx4 %s, off, s[12:15], s93 offset:%d" % (v(16 + 4 * k, 4), 16 * k))


ROR = ["row_ror:%d row_mask:0xf bank_mask:0xf" % r for r in (8, 4, 2, 1)]
BC = ["row_bcast:15 row_mask:0xa bank_mask:0xf", "row_bcast:31 row_mask:0xc bank_mask:0xf"]


def dpp_sum(a, regs_, mods):
    for mod in mods:
        for r in regs_:
            a("v_add_f32_dpp %s, %s, %s %s" % (v(r), v(r), v(r), mod))


def poll_tail(a, label, cnt="s54"):
    a("s_cbranch_scc1 %s_ok" % label)
    a("s_sub_u32 %s, %s, 1" % (cnt, cnt))
    a("s_cbranch_scc0 %s" % label)
    a.label(label + "_ok")


def setup(a):
    a.label("L_setup", reset=True)
    a("""
    s_lshr_b32 s60, s59, 5
    s_lshl3_add_u32 s60, s60, s3
    s_and_b32 s60, s60, 31
    s_bfe_u32 s61, s59, 0x20003
    s_lshl_b32 s61, s61, 9
    s_add_u32 s61, s61, s60
    s_sub_u32 s94, s61, 992
    s_cmp_ge_u32 s61, 1024
    s_cselect_b32 s94, s94, s61
    s_mov_b32 s95, 0xffff0000
    s_cselect_b32 s95, s95, 0x0000ffff
    s_cmp_eq_u32 s60, 0
    s_cselect_b32 s61, s94, s61
    s_cselect_b32 s95, s95, -1
    """)
    a("s_cselect_b32 s94, 0, %s" % f32(-0.25))
    a("""
    s_cmp_eq_u32 s59, 128
    s_cselect_b32 s61, 1024, s61
    v_lshrrev_b32 v160, 1, v1
    v_lshlrev_b32 v160, 6, v160
    v_add_u32 v160, s61, v160
    v_cvt_f32_u32 v160, v160
    v_and_b32 v161, 1, v1
    v_cvt_f32_u32 v161, v161
    """.replace("CANDBASE", "0x%x" % WS_CAND))
    a("v_lshl_add_u32 v162, v3, 2, v2")
    a("v_cvt_f32_u32 v162, v162")
    a("v_mul_f32 v160, %s, v160" % f32(1 / 2048))
    a("v_mul_f32 v161, %s, v161" % f32(0.25))
    a("v_fmac_f32 v161, v160, v162")
    a("""
    v_add_f32 v162, s94, v161
    v_cos_f32 v163, v161
    v_cos_f32 v162, v162
    v_and_b32 v164, 3, v3
    v_lshl_add_u32 v165, v2, 2, v164
    v_mul_u32_u24 v165, v165, v1          ; n*(4q+j)
    v_lshrrev_b32 v166, 2, v3
    v_mul_u32_u24 v167, v166, v1
    v_lshl_add_u32 v167, v167, 4, v165    ; n*(16h+4q+j)
    v_cvt_f32_u32 v165, v165
    v_cvt_f32_u32 v167, v167
    v_cvt_pk_bf16_f32 v163, v163, v162
    s_cmp_lt_u32 s5, 4
    """)
    a("s_mov_b32 s94, %s" % f32(1 / 32))
    a("s_cselect_b32 s94, %s, s94" % f32(1 / 16))
    a("v_mul_f32 v167, %s, v167" % f32(1 / 512))
    a("""
    v_mul_f32 v165, s94, v165
    v_and_b32 v163, s95, v163
    v_cos_f32 v168, v167
    v_sin_f32 v169, v167
    v_cos_f32 v170, v165
    v_sin_f32 v171, v165
    v_lshl_add_u32 v164, v164, 2, v250
    v_lshl_add_u32 v164, v166, 10, v164
    """)
    a("v_add_u32 v164, %d, v164" % LDS_TAB)
    a("""
    ds_write_b32 v164, v163
    ds_write2st64_b32 v164, v168, v169 offset0:8 offset1:16
    v_cvt_pk_bf16_f32 v172, v170, v171
    s_cbranch_scc0 L_setup_g
    v_cvt_pk_bf16_f32 v173, -v171, v170
    ds_write2st64_b32 v164, v172, v173 offset0:24 offset1:28
    s_branch L_setup_end
    """)
    a.label("L_setup_g")
    a("""
    s_bitcmp1_b32 s5, 0
    s_cselect_b32 s94, 0x80008000, 0
    v_lshlrev_b32 v170, 31, v1
    v_lshrrev_b32 v171, 16, v170
    v_xor_b32 v173, s94, v172
    v_bitop3_b32 v174, v172, v170, v171 bitop3:0x96
    ds_write2st64_b32 v164, v172, v173 offset0:28 offset1:32
    v_xor_b32 v175, s94, v174
    ds_write2st64_b32 v164, v174, v175 offset0:36 offset1:40
    """)
    a.label("L_setup_end")
    a("s_waitcnt lgkmcnt(0)")
    if ROWL:
        a("s_sub_u32 s40, s4, 16")
        a("s_cmp_lt_u32 s40, 6")
        a("s_cbranch_scc1 L_setup_ret")
    if BDEL:
        a("s_waitcnt vmcnt(0)")
    a.label("L_rows")
    a("""
    s_lshl_b32 s40, s5, 6
    s_add_u32 s40, s40, s61
    s_sub_u32 s41, 2048, s40
    s_lshl_b32 s40, s40, 10
    s_lshl_b32 s41, s41, 10
    s_mov_b64 s[24:25], s[16:17]
    s_movk_i32 s26, 1024
    s_mov_b32 s27, 0x20000
    buffer_load_dwordx4 v[100:103], v250, s[8:11], s40 offen
    buffer_load_dwordx4 v[104:107], v250, s[8:11], s41 offen
    buffer_load_dwordx4 v[108:111], v250, s[24:27], 0 offen
    s_lshl_b32 s40, s59, 12
    s_add_u32 s40, s40, s62
    s_add_u32 s40, s40, CANDBASE
    s_cmp_lt_u32 s5, 4
    s_cselect_b32 s40, s40, 0x7fff0000
    buffer_store_dwordx4 v[252:255], v250, s[12:15], s40 offen sc1
    """.replace("CANDBASE", "0x%x" % WS_CAND))
    a.label("L_setup_ret")
    a("s_setpc_b64 s[100:101]")


def touch(a, half, dst, first):
    if first:
        a("""
        v_bfe_u32 v4, v0, 3, 3
        v_and_b32 v5, 7, v0
        v_lshlrev_b32 v5, 6, v5
        s_mov_b32 s34, 0x1c0000
        s_mov_b32 s35, 0x20000
        """)
    a("""
    s_and_b32 s46, s44, 31
    s_mul_i32 s48, s3, 448
    s_mul_i32 s49, s46, 57344
    s_add_u32 s48, s48, s49
    s_lshl_b32 s49, s3, 5
    s_add_u32 s49, s49, s46
    s_mul_i32 s49, s49, 7168
    """)
    if half:
        a("s_add_u32 s48, s48, 28672")
        a("s_add_u32 s49, s49, 512")
    a("""
    s_cmp_lt_u32 s44, 32
    s_cselect_b64 s[32:33], s[18:19], s[20:21]
    s_movk_i32 s50, 3584
    s_cmp_ge_u32 s44, 64
    s_cselect_b64 s[32:33], s[22:23], s[32:33]
    s_cselect_b32 s50, 1024, s50
    s_cselect_b32 s48, s49, s48
    v_mad_u32_u24 v6, v4, s50, v5
    """)
    a("buffer_load_dword %s, v6, s[32:35], s48 offen" % v(dst))


def probe_spin(a):
    a("s_waitcnt vmcnt(0)")
    a("s_memrealtime s[98:99]")
    a("s_waitcnt lgkmcnt(0)")
    if PROBE >= 20:
        a("s_mov_b32 s92, 0x70000")
        a("buffer_load_dwordx4 v[60:63], v250, s[12:15], s92 offen sc1")
        a("s_waitcnt vmcnt(0)")
        for r in range(60, 64):
            a("v_subrev_u32 v%d, s96, v%d" % (r, r))
        a("v_min3_i32 v64, v60, v61, v62")
        a("v_min_i32 v64, v64, v63")
        a("v_max3_i32 v65, v60, v61, v62")
        a("v_max_i32 v65, v65, v63")
        for mod in ROR + BC:
            a("v_min_i32_dpp v64, v64, v64 %s" % mod)
            a("v_max_i32_dpp v65, v65, v65 %s" % mod)
        a("v_readlane_b32 s92, v64, 63")
        a("v_readlane_b32 s93, v65, 63")
        if PROBE == 20:
            a("s_sub_u32 s94, s93, s92")
        elif PROBE == 21:
            a("s_sub_u32 s94, 0, s92")
        else:
            a("s_sub_u32 s94, s98, s96")
            a("s_sub_u32 s94, s94, s92")
    else:
        a("s_sub_u32 s94, %s, s96" % ("s98" if PROBE == 13 else "s92"))
    if TMIN >= 0:
        a("s_max_u32 s94, s94, %d" % TMIN)
        a("s_sub_u32 s94, s94, %d" % TMIN)
        a("s_mul_i32 s94, s94, 2622")
        a("s_lshr_b32 s94, s94, 16")
        a("s_min_u32 s95, s94, 12")
        a("s_movk_i32 s94, 2400")
        a.label("L_lvl")
        a("s_sub_u32 s95, s95, 1")
        a("s_cbranch_scc1 L_lvl_done")
        a("s_mul_i32 s94, s94, 11")
        a("s_lshr_b32 s94, s94, 3")
        a("s_branch L_lvl")
        a.label("L_lvl_done")
        a("s_sub_u32 s94, s94, 2200")
    else:
        a("s_mul_i32 s94, s94, 2")
        a("s_min_u32 s94, s94, 8000")
    a.label("L_probe")
    a("s_memrealtime s[96:97]")
    a("s_waitcnt lgkmcnt(0)")
    a("s_sub_u32 s95, s96, s98")
    a("s_cmp_lt_u32 s95, s94")
    a("s_cbranch_scc1 L_probe")


def get_tag(a):
    a("s_waitcnt lgkmcnt(0)")
    if PROBE >= 20:
        a("v_mov_b32 v251, s96")
        a("s_lshl_b32 s92, s2, 2")
        a("s_add_u32 s92, s92, 0x70000")
        a("s_cmp_eq_u32 s5, 0")
        a("s_cselect_b32 s92, s92, 0x%x" % OOB)
        a("s_mov_b64 exec, 1")
        a("buffer_store_dword v251, off, s[12:15], s92 sc1")
        a.vm.pop()
        a("s_mov_b64 exec, -1")
    a("s_add_u32 s47, s47, 0x%x               ; hand-off tag of this launch" % TAGC)
    a("v_mov_b32 %s, s47" % v(VTAG))


def flag_store(a, wave=0):
    a("s_lshl_b32 s53, s2, %d" % FSH)
    a("s_add_u32 s53, s53, 0x%x" % WS_FLAG)
    a("s_cmp_eq_u32 s5, %d" % wave)
    a("s_cselect_b32 s53, s53, 0x%x" % OOB)
    a("s_mov_b64 exec, 1")
    a("buffer_store_dword %s, off, s[12:15], s53 sc1" % v(VTAG))
    a("s_mov_b64 exec, -1")


def build():
    a = Asm()
    a.raw('.amdgcn_target "amdgcn-amd-amdhsa--gfx950"')
    a.raw(".text")
    a.raw(".globl %s" % KN)
    a.raw(".p2align 8")
    a.raw(".type %s,@function" % KN)
    a.label(KN, reset=True)
    a("s_cmp_ge_u32 s2, 256")
    a("s_cbranch_scc1 L_end")
    stamp(a, 0)
    a("s_load_dwordx2 s[8:9], s[0:1], 0")
    a("s_load_dwordx2 s[12:13], s[0:1], 112")
    a("s_load_dwordx16 s[16:31], s[0:1], 48")
    if CPF:
        a("s_getpc_b64 s[60:61]")
        a.label("L_cpf_pc")
        a("v_lshlrev_b32 v192, %d, v0" % (7 if CPF == 1 else 6))
        a("v_cmp_gt_u32 vcc, L_end-L_cpf_pc, v192")
        a("v_mov_b32 v193, 0")
        a("v_lshl_add_u64 v[192:193], v[192:193], 0, s[60:61]")
        a("s_and_saveexec_b64 s[60:61], vcc")
        a("s_cbranch_execz L_cpf")
        n = len(a.vm)
        a("global_load_dword v198, v[192:193], off")
        del a.vm[n:]
        a.label("L_cpf")
        a("s_mov_b64 exec, -1")
    a("""
    v_lshrrev_b32 v3, 6, v0               ; wave
    v_and_b32 v1, 15, v0                  ; n
    v_bfe_u32 v2, v0, 4, 2                ; q
    v_readfirstlane_b32 s5, v3
    s_and_b32 s3, s2, 7                   ; x
    s_lshr_b32 s4, s2, 3                  ; y
    v_and_b32 v250, 63, v0
    v_lshlrev_b32 v250, 4, v250           ; lane*16
    v_mov_b32 v252, -1
    v_mov_b32 v253, -1
    v_mov_b32 v254, -1
    v_mov_b32 v255, -1
    s_mov_b32 s63, 0x80000000
    """)
    a("v_cvt_f32_u32 %s, v2" % v(VQ4))
    srd(a, 8, 2048 * 1024)
    srd(a, 12, WS_SIZE)
    a("v_mul_f32 %s, 4.0, %s" % (v(VQ4), v(VQ4)))
    a("s_lshl_b32 s62, s5, 10")
    a("s_cmp_ge_u32 s4, 16")
    st0 = a.fork()
    a("s_cbranch_scc1 L_notdft")
    a("""
    s_movk_i32 s59, 128
    s_lshr_b32 s6, s4, 2
    s_lshl3_add_u32 s6, s6, s3            ; s2 index
    s_and_b32 s7, s4, 3
    v_lshlrev_b32 v5, 4, v1
    """)

    def store_addr():
        a("""
        v_and_b32 v8, 3, v3                   ; M tile
        v_lshlrev_b32 v13, 1, v2
        v_lshl_add_u32 v13, v8, 3, v13
        v_lshl_add_u32 v13, v13, 16, v5
        s_lshl_b32 s54, s6, 11
        s_lshl_b32 s55, s7, 9
        s_add_u32 s54, s54, s55
        """)
        a("s_add_u32 s54, s54, 0x%x" % WS_INTER)
        a("s_add_u32 s55, s54, 0x10000")
    a("s_lshl_b32 s44, s6, 10")
    for g in range(4):
        a("s_add_u32 s46, s7, %d" % g)
        a("s_and_b32 s46, s46, 3")
        a("s_lshl_b32 s46, s46, 8")
        a("s_add_u32 %s, s46, s44" % s(48 + g))
    a("""
    s_lshl1_add_u32 s46, s7, s5
    s_and_b32 s46, s46, 7
    s_lshl_b32 s46, s46, 3
    v_add_u32 v4, s46, v2
    v_lshl_or_b32 v6, v4, 15, v5
    v_add_u32 v7, 0x20000, v6
    s_waitcnt lgkmcnt(0)
    """)
    stamp(a, 1)
    X = 16
    for i in range(4):
        for g in range(2):
            a("buffer_load_dwordx4 %s, %s, s[8:11], %s offen" % (v(X + 16 * g + 4 * i, 4), v(6 + g), s(48 + i)))
    a("s_load_dword s47, s[12:13], 0x%x" % WS_GEN)
    a("s_branch L_dft")
    mark = len(a.lines)
    a.label("L_dft")
    store_addr()
    a("v_lshrrev_b32 v12, 8, v0")
    a("v_lshl_add_u32 v13, v12, 8, v13")
    if POIS == 4:
        a("s_barrier")
    if POIS < 5:
        a("buffer_store_dwordx4 v[252:255], v13, s[12:15], s54 offen sc1")
        a("buffer_store_dwordx4 v[252:255], v13, s[12:15], s55 offen sc1")
    if EPART:
        a("""
        s_mul_i32 s56, s3, 7
        s_add_u32 s56, s56, s4
        s_lshl_b32 s57, s56, 12
        s_add_u32 s57, s57, s62
        """)
        a("s_add_u32 s57, s57, 0x%x" % WS_PART)
        a("s_lshl_b32 s58, s56, %d" % KSH)
        a("s_add_u32 s58, s58, 0x%x" % (WS_KEYS + (129 << KSH)))
        a("s_cmp_lt_u32 s5, 4")
        a("s_cselect_b32 s57, s57, 0x%x" % OOB)
        a("s_cmp_lt_u32 s4, 7")
        a("s_cselect_b32 s57, s57, 0x%x" % OOB)
        a("s_cselect_b32 s58, s58, 0x%x" % OOB)
        a("buffer_store_dwordx4 v[252:255], v250, s[12:15], s57 offen sc1")
        a("v_mov_b32 v112, 0")
        a("v_mov_b32 v114, 0")
    WA = 48
    a("""
    v_lshrrev_b32 v9, 1, v1
    v_lshl_add_u32 v9, v8, 3, v9          ; slot
    v_and_b32 v10, 1, v1
    v_lshl_or_b32 v11, v9, 1, v10
    v_cmp_eq_u32 vcc, 1, v11
    v_cvt_f32_u32 v10, v10
    v_lshlrev_b32 v15, 31, v9
    v_cndmask_b32 v11, v9, 32, vcc
    """)
    a("v_mul_f32 v10, %s, v10" % f32(0.25))
    a("v_cvt_f32_u32 v11, v11")
    a("v_cndmask_b32 v10, v10, 0, vcc")
    a("v_mul_f32 v11, %s, v11" % f32(1 / 64))
    a("v_fmac_f32 v10, v11, %s" % v(VQ4))
    a("v_lshrrev_b32 v14, 16, v15")
    a("v_or_b32 v15, v15, v14")
    T = 56
    a("v_cos_f32 %s, v10" % v(T))
    for j in range(1, 8):
        a("v_add_f32 v10, v10, v11" if j != 4 else "v_fmac_f32 v10, %s, v11" % f32(13.0))
        a("v_cos_f32 %s, v10" % v(T + j))
    for j in range(4):
        a("v_cvt_pk_bf16_f32 %s, %s, %s" % (v(WA + j), v(T + 2 * j), v(T + 2 * j + 1)))
    for j in range(4):
        a("v_xor_b32 %s, v15, %s" % (v(WA + 4 + j), v(WA + j)))
    a("""
    v_mul_u32_u24 v10, 288, v4
    v_add_u32 v10, v10, v5
    v_bfe_u32 v11, v0, 2, 4
    v_mul_u32_u24 v11, 288, v11
    v_and_b32 v14, 3, v0
    v_lshl_add_u32 v11, v14, 3, v11
    v_lshl_add_u32 v11, v12, 7, v11
    s_mov_b32 s52, 0x3f803f80
    v_mov_b32 v56, 0
    v_mov_b32 v57, 0
    v_mov_b32 v58, 0
    v_mov_b32 v59, 0
    """)
    stamp(a, 2)
    U = 64
    for i in range(4):
        for g in range(2):
            a.wait_vm_for(v(X + 16 * g + 4 * i, 4))
            if i == 0 and g == 0:
                stamp(a, 3)
            for d in range(4):
                x = v(X + 16 * g + 4 * i + d)
                a("v_dot2c_f32_bf16 %s, s52, %s" % (v(56 + g), x))
                a("v_dot2c_f32_bf16 %s, %s, %s" % (v(58 + g), x, x))
            if i == 0:
                for d in range(4):
                    a("v_lshlrev_b32 %s, 16, %s" % (v(U + 8 * g + 2 * d), v(X + 16 * g + d)))
                    a("v_and_b32 %s, 0xffff0000, %s" % (v(U + 8 * g + 2 * d + 1), v(X + 16 * g + d)))
    stamp(a, 4)
    dpp_sum(a, [56, 57, 58, 59], ROR)
    for g in range(2):
        a("v_mul_f32 %s, %s, %s" % (v(56 + g), f32(1 / 512), v(56 + g)))
    for g in range(2):
        a("v_mul_f32 %s, %s, %s" % (v(60 + 2 * g), v(56 + g), v(56 + g)))
    for g in range(2):
        a("v_sub_f32 %s, %s, %s" % (v(60 + 2 * g), f32(EPS), v(60 + 2 * g)))
    for g in range(2):
        a("v_fmac_f32 %s, %s, %s" % (v(60 + 2 * g), f32(1 / 512), v(58 + g)))
    for g in range(2):
        a("v_rsq_f32 %s, %s" % (v(60 + 2 * g), v(60 + 2 * g)))
    for g in range(2):
        a("v_mul_f32 %s, %s, %s" % (v(61 + 2 * g), v(56 + g), v(60 + 2 * g)))
    for g in range(2):
        p = v(60 + 2 * g, 2)
        for d in range(4):
            u = v(U + 8 * g + 2 * d, 2)
            a("v_pk_fma_f32 %s, %s, %s, %s op_sel:[0,0,1] op_sel_hi:[1,0,1] neg_lo:[0,0,1] neg_hi:[0,0,1]" % (u, u, p, p))
        for d in range(4):
            a("v_cvt_pk_bf16_f32 %s, %s, %s" % (v(X + 16 * g + d), v(U + 8 * g + 2 * d), v(U + 8 * g + 2 * d + 1)))
        a("ds_write_b128 v10, %s offset:%d" % (v(X + 16 * g, 4), 4 * PITCH * g))
    if HF:
        a("s_lshl_b32 s53, s2, %d" % FSH)
        a("s_add_u32 s53, s53, 0x%x" % WS_FLAG)
    a("s_waitcnt vmcnt(0)")
    get_tag(a)
    if HF:
        a("s_cmp_lg_u32 s5, 7")
    a("s_barrier")
    stamp(a, 5)
    if HF:
        a("s_cbranch_scc1 L_nohint")
        a("s_mov_b64 exec, 1")
        a("buffer_store_dword %s, off, s[12:15], s53 sc1" % v(VTAG))
        if EPART:
            a("v_mov_b32 v113, %s" % v(VTAG))
            a("v_mov_b32 v115, %s" % v(VTAG))
            a("buffer_store_dwordx4 v[112:115], off, s[12:15], s58 sc1")
        a("s_mov_b64 exec, -1")
        a.label("L_nohint")
    B = 64
    for ks in range(2):
        for i in range(4):
            for hf in range(2):
                a("ds_read_b64_tr_b16 %s, v11 offset:%d" % (v(B + 16 * ks + 4 * i + 2 * hf, 2), ks * 32 * PITCH + hf * 16 * PITCH + i * 32))
    if not HF:
        flag_store(a)
    ACC = 96
    for ks in range(2):
        for i in range(4):
            a.wait_lg_for(v(B + 16 * ks + 4 * i, 4))
            acc = v(ACC + 4 * i, 4)
            a("v_mfma_f32_16x16x32_bf16 %s, %s, %s, %s" % (acc, v(WA + 4 * ks, 4), v(B + 16 * ks + 4 * i, 4), "0" if ks == 0 else acc))
    O = 16
    for i in range(4):
        for p in range(2):
            a("v_cvt_pk_bf16_f32 %s, %s, %s" % (v(O + 4 * p + i), v(ACC + 4 * i + 2 * p), v(ACC + 4 * i + 2 * p + 1)))
    for p in range(2):
        a("buffer_store_dwordx4 %s, v13, s[12:15], %s offen sc1" % (v(O + 4 * p, 4), s(54 + p)))
    stamp(a, 6)
    a("s_cmp_lg_u32 s2, %d" % XWG)
    a("s_cbranch_scc1 L_notx")
    a("s_call_b64 s[100:101], L_setup")
    a("s_branch L_p2")
    a.label("L_notx")
    a("s_cmp_lt_u32 s4, 7")
    a("s_cbranch_scc1 L_ffn")
    if not TOUCH:
        a("s_branch L_done")
    if ADEL == 2:
        a("s_waitcnt vmcnt(0)")
    a("s_sub_u32 s44, s4, 7")
    a("s_lshl3_add_u32 s44, s44, s5")
    for k in range(2):
        touch(a, 1, 196 + k, k == 0)
        if k == 0:
            a("s_add_u32 s44, s44, 64")
            a("s_cmp_ge_u32 s44, 96")
            a("s_cbranch_scc1 L_done")
    a("s_branch L_done")
    dft_block = a.lines[mark:]
    del a.lines[mark:]
    a.label("L_notdft")
    a.join(st0)
    a("s_sub_u32 s59, s2, 128")
    srd(a, 36, 512 * 6144)
    a("s_cmp_ge_u32 s4, 22")
    st1 = a.fork()
    a("s_cbranch_scc1 L_notmod")
    srd(a, 32, 1024)
    a("""
    s_sub_u32 s6, s2, 128                 ; column block (64 columns)
    s_lshl_b32 s48, s6, 7
    """)
    for i in range(1, 8):
        a("s_add_u32 %s, s48, %d" % (s(48 + i), 6144 * i))
    a("""
    v_lshrrev_b32 v4, 3, v0
    v_and_b32 v5, 7, v0
    v_mul_u32_u24 v6, 0xc000, v4
    v_lshl_add_u32 v6, v5, 4, v6
    v_and_b32 v7, 3, v0
    v_lshlrev_b32 v7, 2, v7
    v_lshl_add_u32 v7, v4, 4, v7
    s_waitcnt lgkmcnt(0)
    s_mov_b64 s[36:37], s[26:27]
    s_mov_b64 s[32:33], s[24:25]
    """)
    stamp(a, 1)
    a("buffer_load_dword v8, v7, s[32:35], 0 offen")
    W = 16
    for i in range(8):
        a("buffer_load_dwordx4 %s, v6, s[36:39], %s offen" % (v(W + 4 * i, 4), s(48 + i)))
    a("s_load_dword s47, s[12:13], 0x%x" % WS_GEN)
    if MODFIRST == 2:
        a("s_cmp_lt_u32 s5, 4")
        a("s_cbranch_scc1 L_mod")
    if MODFIRST != 1:
        a("s_call_b64 s[100:101], L_setup")
        if not ROWL:
          a.vm += [Ins("buffer_load_dwordx4 %s, v250, s[8:11], 0 offen" % v(r, 4)) for r in (100, 104, 108)] + [Ins("buffer_store_dwordx4 v[252:255], v250, s[12:15], 0 offen")]
    a("s_branch L_mod")
    mark = len(a.lines)
    a.label("L_mod")
    a("""
    s_mov_b32 s44, 0x05040100
    s_mov_b32 s46, 0x07060302
    s_lshr_b32 s48, s6, 3
    s_cmp_eq_u32 s48, 1
    s_cselect_b32 s50, 1.0, 0
    s_cmp_eq_u32 s48, 4
    s_cselect_b32 s50, 1.0, s50
    v_lshlrev_b32 v6, 1, v2
    v_lshl_add_u32 v6, v5, 3, v6
    v_and_b32 v7, 15, v6
    v_lshrrev_b32 v9, 4, v6
    v_lshl_add_u32 v10, v7, 2, v9
    v_and_b32 v7, 3, v6
    v_lshl_add_u32 v7, v9, 2, v7
    v_bfe_u32 v9, v6, 2, 2
    v_lshl_add_u32 v7, v9, 4, v7
    v_lshlrev_b32 v9, 8, v3
    v_lshl_add_u32 v10, v10, 2, v9
    v_lshl_add_u32 v7, v7, 2, v9
    s_lshl_b32 s58, s6, 8
    """)
    for j in range(8):
        a("v_mov_b32 %s, 0" % v(48 + j))
    stamp(a, 2)
    a.wait_vm_for("v8")
    get_tag(a)
    stamp(a, 3)
    a("v_lshlrev_b32 v11, 16, v8")
    a("v_and_b32 v12, 0xffff0000, v8")
    a("v_mul_f32 v13, %s, v11" % f32(-LOG2E))
    a("v_mul_f32 v14, %s, v12" % f32(-LOG2E))
    a("""
    v_exp_f32 v13, v13
    v_exp_f32 v14, v14
    v_add_f32 v13, 1.0, v13
    v_add_f32 v14, 1.0, v14
    v_rcp_f32 v13, v13
    v_rcp_f32 v14, v14
    v_mul_f32 v11, v11, v13
    v_mul_f32 v12, v12, v14
    v_cvt_pk_bf16_f32 v8, v11, v12
    """)
    for p in range(4):
        a("v_mov_b32_dpp %s, v8 quad_perm:[%d,%d,%d,%d] row_mask:0xf bank_mask:0xf" % (v(12 + p), p, p, p, p))
    for p in range(4):
        a.wait_vm_for(v(W + 8 * p, 8))
        if ROWL and p == 3:
            if STAMPS:
                a("s_waitcnt lgkmcnt(0)")
            a("s_call_b64 s[100:101], L_rows")
        for jj in range(4):
            a("v_perm_b32 %s, %s, %s, s44" % (v(56 + 2 * jj), v(W + 8 * p + 4 + jj), v(W + 8 * p + jj)))
            a("v_perm_b32 %s, %s, %s, s46" % (v(57 + 2 * jj), v(W + 8 * p + 4 + jj), v(W + 8 * p + jj)))
        for j in range(8):
            a("v_dot2c_f32_bf16 %s, %s, %s" % (v(48 + j), v(12 + p), v(56 + j)))
    stamp(a, 4)
    if MH == 0:
        flag_store(a, 7)
    for j in range(4):
        a("v_permlane32_swap_b32 %s, %s" % (v(48 + j), v(52 + j)))
    for j in range(4):
        a("v_add_f32 %s, %s, %s" % (v(48 + j), v(48 + j), v(52 + j)))
    for j in range(2):
        a("v_permlane16_swap_b32 %s, %s" % (v(48 + j), v(50 + j)))
    for j in range(2):
        a("v_add_f32 %s, %s, %s" % (v(48 + j), v(48 + j), v(50 + j)))
    dpp_sum(a, [48, 49], ROR[:1])
    a("""
    s_mov_b32 exec_lo, 0x00ff00ff
    s_mov_b32 exec_hi, 0x00ff00ff
    s_cmp_lt_u32 s6, 16
    s_cbranch_scc1 L_mod_w4
    ds_write_b64 v7, v[48:49]
    s_branch L_mod_w
    """)
    a.label("L_mod_w4")
    a("ds_write2_b32 v10, v48, v49 offset0:0 offset1:4")
    a.label("L_mod_w")
    a("s_mov_b64 exec, -1")
    if MODFIRST == 2:
        a("s_cmp_ge_u32 s5, 4")
        a("s_cbranch_scc1 L_mod_b")
        a("s_call_b64 s[100:101], L_setup")
        a.label("L_mod_b")
    a("""
    s_waitcnt lgkmcnt(0)
    s_barrier
    """)
    if MH == 1:
        flag_store(a, 1)
    stamp(a, 5)
    a("""
    s_cmp_lg_u32 s5, 0
    s_cbranch_scc1 L_mod_end
    s_mov_b64 exec, 0xffff
    """)
    for k in range(8):
        a("ds_read_b128 %s, v250 offset:%d" % (v(16 + 4 * k, 4), 256 * k))
    a("v_mov_b32 v49, v249")
    a("v_mov_b32 v51, v249")
    for k in range(0, 8, 2):
        a.wait_lg_for(v(16 + 4 * k, 8))
        a("v_pk_add_f32 %s, %s, %s" % (v(16 + 4 * k, 2), v(16 + 4 * k, 2), v(20 + 4 * k, 2)))
        a("v_pk_add_f32 %s, %s, %s" % (v(18 + 4 * k, 2), v(18 + 4 * k, 2), v(22 + 4 * k, 2)))
    a("""
    v_pk_add_f32 v[16:17], v[16:17], v[24:25]
    v_pk_add_f32 v[18:19], v[18:19], v[26:27]
    v_pk_add_f32 v[32:33], v[32:33], v[40:41]
    v_pk_add_f32 v[34:35], v[34:35], v[42:43]
    v_pk_add_f32 v[16:17], v[16:17], v[32:33]
    v_pk_add_f32 v[18:19], v[18:19], v[34:35]
    v_cvt_pk_bf16_f32 v48, v16, v17
    v_cvt_pk_bf16_f32 v50, v18, v19
    s_cmp_eq_u32 s50, 0
    s_cbranch_scc1 L_mod_st
    v_lshlrev_b32 v16, 16, v48
    v_and_b32 v17, 0xffff0000, v48
    v_lshlrev_b32 v18, 16, v50
    v_and_b32 v19, 0xffff0000, v50
    v_pk_add_f32 v[16:17], v[16:17], 1.0 op_sel_hi:[1,0]
    v_pk_add_f32 v[18:19], v[18:19], 1.0 op_sel_hi:[1,0]
    v_cvt_pk_bf16_f32 v48, v16, v17
    v_cvt_pk_bf16_f32 v50, v18, v19
    """)
    a.label("L_mod_st")
    a("buffer_store_dwordx4 v[48:51], v250, s[12:15], s58 offen sc1")
    a("s_mov_b64 exec, -1")
    if MH == 2:
        flag_store(a)
    a.label("L_mod_end")
    if MODFIRST == 1:
        a("s_call_b64 s[100:101], L_setup")
    mod_block = a.lines[mark:]
    del a.lines[mark:]
    a.label("L_notmod")
    a.join(st1)
    a("""
    s_sub_u32 s58, s4, 22
    s_lshl3_add_u32 s7, s58, s5
    s_mul_i32 s7, s7, 0x6000
    s_lshl_b32 s44, s3, 7
    s_add_u32 s7, s7, s44
    s_add_u32 s7, s7, 0x120000
    s_add_u32 s44, s7, 4096
    v_mul_u32_u24 v4, 6144, v2
    v_bfe_u32 v5, v0, 3, 1
    v_lshl_add_u32 v4, v5, 10, v4
    v_and_b32 v5, 7, v0
    v_lshl_add_u32 v4, v5, 4, v4
    s_waitcnt lgkmcnt(0)
    s_mov_b64 s[36:37], s[26:27]
    """)
    if HELP == 2:
        a("s_cmp_lt_u32 s4, 29")
        a("s_cbranch_scc1 L_nohelp")
    if HELP:
        a("buffer_load_dwordx4 v[180:183], v4, s[36:39], s7 offen")
        a("buffer_load_dwordx4 v[184:187], v4, s[36:39], s7 offen offset:2048")
        a("buffer_load_dwordx4 v[188:191], v4, s[36:39], s44 offen")
    a.label("L_nohelp")
    a("s_load_dword s47, s[12:13], 0x%x" % WS_GEN)
    a("s_call_b64 s[100:101], L_setup")
    get_tag(a)
    if BT:
        a("s_cmp_ge_u32 s5, %d" % BT)
        a("s_cbranch_scc1 L_p2")
        a("s_mul_i32 s44, s58, %d" % BT)
        a("s_add_u32 s44, s44, s5")
        touch(a, 0, 195, True)
        if BT2:
            a("s_add_u32 s44, s44, 16")
            touch(a, 1, 194, False)
    a("s_branch L_p2")
    setup(a)
    a.lines += dft_block + mod_block
    a.label("L_p2", reset=True)
    a("v_add_u32 v160, %d, v250" % LDS_TAB)
    a("s_barrier")
    for k, r in enumerate((SA, SA + 4, TC, TC + 4, TS, TS + 4, FR, FI, G, G + 4, G + 8, G + 12)):
        a("ds_read_b128 %s, v160 offset:%d" % (v(r, 4), 1024 * k))
    a.vm += [Ins("buffer_load_dwordx2 %s, v7, s[8:11], 0 offen" % v(r, 2)) for r in (100, 102, 104, 106, 108, 110)]
    a("""
    s_lshl_b32 s45, s59, 12
    """)
    a("s_add_u32 s45, s45, 0x%x               ; candidate slots of this workgroup" % WS_CAND)
    srd(a, 28, 2048 * 1024)
    a("""
    s_lshl_b32 s56, s5, 6
    s_add_u32 s56, s56, s61
    s_sub_u32 s57, 2048, s56
    s_lshl_b32 s50, s57, 10
    s_lshl_b32 s49, s56, 10
    v_lshlrev_b32 v7, 5, v1
    v_lshl_add_u32 v7, v2, 3, v7          ; 32n + 8q
    s_lshl1_add_u32 s52, s4, s5
    s_and_b32 s52, s52, 7
    s_lshl_b32 s53, s52, 8
    v_lshlrev_b32 v4, 4, v1
    v_add_u32 v4, s53, v4                 ; cb*256 + n*16
    v_lshl_add_u32 v5, v2, 11, v4
    v_add_u32 v179, 0x8000, v5
    s_lshl_b32 s40, s60, 16
    s_lshl_b32 s53, s52, 3
    """)
    a("s_add_u32 s40, s40, 0x%x" % WS_INTER)
    a("""
    s_add_u32 s41, s40, 0x2000
    s_add_u32 s42, s40, 0x4000
    s_add_u32 s43, s40, 0x6000
    v_mul_u32_u24 v8, 80, v1
    v_mul_u32_u24 v9, 5120, v2
    v_add3_u32 v9, v9, s53, v8
    v_mul_u32_u24 v12, 2560, v3
    v_lshl_add_u32 v10, v2, 4, v8
    v_or_b32 v11, s61, v2
    v_cmp_eq_u32 vcc, 0, v11
    v_mov_b32 v11, 0x45000000
    v_cndmask_b32 v11, 0, v11, vcc
    """)
    a("v_add_u32 v9, %d, v9                   ; U write address" % LDS_U)
    a("v_add_u32 v12, %d, v12                 ; scratch row of this wave" % LDS_SCR)
    a("v_sub_u32 v176, v12, v10")
    a("v_add_u32 v176, %d, v176               ; mirrored position of elements 1..3 (g = 1)" % (15 * 80 + 52))
    a("v_add_u32 v178, 1280, v176")
    a("v_add_u32 v14, v10, v12")
    a("v_add_u32 v10, %d, v14                 ; U read address" % ((LDS_U - LDS_SCR) & 0xffffffff))
    a("v_cmp_eq_u32 vcc, 0, v2")
    a("v_cndmask_b32 v177, 12, 28, vcc")
    a("v_add_u32 v177, v177, v176")
    a("v_add_u32 v196, 1280, v177")
    a("v_cmp_eq_u32 vcc, 0, v250")
    a("v_cndmask_b32 v196, v196, v12, vcc")
    a("v_add_u32 v15, v12, v250")
    a("v_add_u32 v12, v12, v7")
    a("""
    s_lshl_b32 s46, s59, 5
    s_lshl2_add_u32 s46, s5, s46
    s_mov_b32 s38, 0xffffe000
    s_mov_b32 s39, 0xffffe000
    s_cmp_eq_u32 s56, 0
    s_cselect_b32 s39, 0, s39
    s_cmp_lg_u32 s59, 128
    s_cbranch_scc1 L_live
    s_mov_b32 s39, 0
    s_cmp_eq_u32 s5, 0
    s_cselect_b32 s38, s38, 0
    """)
    a.label("L_live")
    a("s_cmp_eq_u32 s38, 0")
    a("s_cselect_b32 s49, 0x%x, s49" % OOB)
    a("s_cselect_b32 s36, 0, s46")
    a("s_add_u32 s37, s46, 2")
    a("s_cmp_eq_u32 s39, 0")
    a("s_cselect_b32 s50, 0x%x, s50" % OOB)
    a("s_cselect_b32 s37, 0, s37")
    a("s_lshl_b32 s51, s3, 7")
    a("s_add_u32 s51, s51, 0x%x" % WS_PRE)
    a("s_xor_b32 s53, s4, 31")
    a("s_or_b32 s53, s53, s5")
    a("s_cselect_b32 s51, 0x%x, s51" % OOB)
    stamp(a, 7)
    L = 16
    XU, WU, XM, GAM, PP, PM = 112, 120, 160, 168, 180, 188
    VEC = 128
    GA, SB, CB, GB = VEC, VEC + 8, VEC + 16, VEC + 24

    def inter_load(ks, r):
        a("buffer_load_dwordx4 %s, %s, s[12:15], %s offen sc1" % (v(L + 16 * ks + 4 * r, 4), "v179" if ks else "v5", s(40 + r)))

    def unpack(dst, src):
        for d in range(4):
            a("v_lshlrev_b32 %s, 16, %s" % (v(dst + 2 * d), v(src + d)))
            a("v_and_b32 %s, 0xffff0000, %s" % (v(dst + 2 * d + 1), v(src + d)))

    def mirror_write(src, a0, a123, off=0):
        a("ds_write_b32 %s, %s offset:%d" % (a0, v(src), off))
        a("ds_write_b32 %s, %s offset:%d" % (a123, v(src + 1), off + 8))
        a("ds_write_b32 %s, %s offset:%d" % (a123, v(src + 2), off + 4))
        a("ds_write_b32 %s, %s offset:%d" % (a123, v(src + 3), off))

    def mirror(dst, src):
        for b, a0, a123 in ((src, "v196", "v178"), (src + 4, "v177", "v176")):
            a("ds_write_b32 %s, %s" % (a0, v(b)))
            a("ds_write_b32 %s, %s offset:8" % (a123, v(b + 1)))
            a("ds_write2_b32 %s, %s, %s offset0:1 offset1:0" % (a123, v(b + 2), v(b + 3)))
        a("ds_read_b128 %s, v14" % v(dst, 4))
        a("ds_read_b128 %s, v14 offset:1280" % v(dst + 4, 4))

    def mod_loads():
        a("buffer_load_dwordx4 v[48:51], v4, s[12:15], 0 offen offset:%d sc1" % (WS_MOD + 2048))
        a("buffer_load_dwordx4 v[64:67], v197, s[12:15], s55 offen sc1")
        if SASK:
            mod_loads.n += 1
            a("s_cmp_lg_u32 s61, 0")
            a("s_cbranch_scc1 L_nosa%d" % mod_loads.n)
        a("buffer_load_dwordx4 v[52:55], v4, s[12:15], 0 offen offset:%d sc1" % WS_MOD)
        if SASK:
            a.vm.pop()
            a.label("L_nosa%d" % mod_loads.n)

    mod_loads.n = 0

    def vec_read(reg, k):
        a("ds_read_b128 %s, v198 offset:%d" % (v(reg, 4), 2560 * k))
        a("ds_read_b128 %s, v198 offset:%d" % (v(reg + 4, 4), 2560 * k + 1280))

    def tag_check(regs_):
        a("v_xor_b32 v88, %s, v249" % v(regs_[0]))
        a("v_xor_b32 v89, %s, v249" % v(regs_[1]))
        for k, r in enumerate(regs_[2:]):
            a("v_bitop3_b32 %s, %s, %s, v249 bitop3:0xf6" % (v(88 + k % 2), v(88 + k % 2), v(r)))
        a("v_or_b32 v88, v88, v89")
        a("v_cmp_ne_u32 vcc, 0, v88")

    def widen(base, n):
        for b in range(base, base + n, 2):
            a("v_and_b32 %s, 0xffff0000, %s" % (v(b + 1), v(b)))
            a("v_lshlrev_b32 %s, 16, %s" % (v(b), v(b)))

    a("s_add_u32 s55, s62, %d" % (WS_MOD + 4096))
    a("""
    v_and_b32 v197, 3, v0
    v_lshlrev_b32 v197, 4, v197
    v_lshl_add_u32 v197, v2, 6, v197
    v_bfe_u32 v68, v0, 2, 2
    v_lshl_add_u32 v197, v68, 8, v197
    v_mul_u32_u24 v68, 80, v1
    v_lshl_add_u32 v198, v2, 4, v68
    """)
    a("v_add_u32 v198, %d, v198               ; vector read address" % LDS_VEC)
    a("""
    s_mul_i32 s53, s5, 1280
    v_add_u32 v90, s53, v198
    s_bitcmp1_b32 s5, 0
    s_cselect_b64 vcc, -1, 0
    v_cndmask_b32 v91, v196, v177, vcc
    v_cndmask_b32 v199, v178, v176, vcc
    s_lshr_b32 s53, s5, 1
    s_sub_u32 s53, s53, s5
    s_mul_i32 s53, s53, 2560
    """)
    a("s_add_u32 s53, s53, %d" % (LDS_VEC + 4 * 2560 - LDS_SCR))
    a("v_add_u32 v91, s53, v91")
    a("v_add_u32 v199, s53, v199")
    a("s_waitcnt vmcnt(0)")
    a("""
    ds_write_b128 v15, v[100:103]
    ds_write_b128 v15, v[104:107] offset:1024
    ds_read_b64 v[56:57], v12
    ds_read_b64 v[58:59], v12 offset:512
    ds_read_b64 v[84:85], v12 offset:1024
    ds_read_b64 v[86:87], v12 offset:1536
    ds_write_b128 v15, v[108:111]
    ds_read_b64 v[60:61], v12
    ds_read_b64 v[62:63], v12 offset:512
    s_waitcnt lgkmcnt(0)
    """)
    unpack(XU, 56)
    unpack(72, 84)
    unpack(WU, 60)
    mirror(XM, 72)
    a("s_bitcmp1_b32 s5, 0")
    a("s_cselect_b64 vcc, -1, 0")
    for j in range(4):
        a("v_cndmask_b32 %s, %s, %s, vcc" % (v(92 + j), v(WU + j), v(WU + 4 + j)))
    a("s_cmp_lt_u32 s5, 2")
    a("s_cselect_b64 vcc, -1, 0")
    for j in range(4):
        a("v_cndmask_b32 %s, %s, 1.0, vcc" % (v(92 + j), v(92 + j)))
    if SASK:
        a("v_mov_b32 v52, 0")
        a("v_mov_b32 v53, v249")
        a("v_mov_b32 v54, 0")
        a("v_mov_b32 v55, v249")
    a("s_mov_b32 s54, %d" % SPIN)
    a("s_waitcnt lgkmcnt(0)")
    if PROG:
        a("""
        v_and_b32 v8, 7, v0
        v_bfe_u32 v6, v0, 3, 2
        v_lshl_add_u32 v8, v6, 5, v8
        s_lshr_b32 s52, s52, 1
        """)
        a("v_lshlrev_b32 v8, %d, v8" % FSH)
        a("s_lshl_b32 s52, s52, %d" % (FSH + 3))
        a("s_add_u32 s52, s52, 0x%x" % WS_FLAG)
        a("s_mov_b32 s32, -1")
        a("s_mov_b32 s33, 0")
        a("s_mov_b32 s48, 0")
        a.label("L_poll1")
        a("s_mov_b64 exec, s[32:33]")
        a("buffer_load_dword v6, v8, s[12:15], s52 offen sc1")
        a("s_waitcnt vmcnt(0)")
        a("v_cmp_ne_u32 vcc, v6, %s" % v(VTAG))
        a("s_mov_b64 exec, -1")
        a("""
        s_mov_b32 s32, vcc_lo
        s_lshr_b32 s34, s32, 1
        s_or_b32 s34, s34, s32
        s_lshr_b32 s35, s34, 2
        s_or_b32 s34, s34, s35
        s_or_b32 s34, s34, s48
        s_andn2_b32 s34, 0x11111111, s34
        s_cbranch_scc0 L_skip7
        s_or_b32 s48, s48, s34
        """)
        for i in range(8):
            a("s_bitcmp1_b32 s34, %d" % (4 * i))
            a("s_cbranch_scc0 L_skip%d" % i)
            inter_load(i // 4, i % 4)
            a.label("L_skip%d" % i)
        a("s_cmp_eq_u32 s32, 0")
        poll_tail(a, "L_poll1")
        stamp(a, 8)
        a("s_mov_b32 s54, %d" % SPIN)
        a("s_branch L_inter_go")
        a.vm = []
    else:
        a("s_cmp_ge_u32 s5, 2")
        a("s_cbranch_scc1 L_poll1_ok")
        a("v_lshlrev_b32 v8, %d, v0" % FSH)
        a("s_mov_b32 s52, 0x%x" % WS_FLAG)
        a.label("L_poll1")
        a("buffer_load_dword v6, v8, s[12:15], s52 offen sc1")
        a("s_waitcnt vmcnt(0)")
        a("v_cmp_ne_u32 vcc, v6, %s" % v(VTAG))
        a("s_and_b64 exec, exec, vcc")
        a("s_cmp_eq_u64 exec, 0")
        poll_tail(a, "L_poll1")
        a("s_mov_b64 exec, -1")
        a("s_mov_b32 s54, %d" % SPIN)
        a("s_barrier")
        stamp(a, 8)
    if PRIO:
        a("s_cmp_lt_u32 s5, 4")
        a("s_cbranch_scc1 L_inter")
        a("s_setprio %d" % PRIO)
    a.label("L_inter")
    for ks in range(2):
        for r in range(4):
            inter_load(ks, r)
    a.label("L_inter_go")
    mod_loads()
    ACC = 96
    for ks in range(2):
        a.wait_vm_for(v(L, 32) if PROG else v(L + 16 * ks, 16))
        if ks == 1 - PROG:
            stamp(a, 9)
        TT = 68 if ks == 0 else 16
        b = L + 16 * ks
        for i in range(4):
            for hp in range(2):
                o = i & 1
                a("v_pk_mov_b32 %s, %s, %s op_sel:[%d,%d]" % (v(TT + 4 * i + 2 * hp, 2), v(b + 8 * hp + (i & 2), 2), v(b + 8 * hp + 4 + (i & 2), 2), o, o))
        for i in range(4):
            acc = v(ACC + 4 * i, 4)
            a("v_mfma_f32_16x16x32_bf16 %s, %s, %s, %s" % (acc, v(SA + 4 * ks, 4), v(TT + 4 * i, 4), "0" if ks == 0 else acc))
    a("""
    v_max3_u32 v6, v68, v69, v70
    v_max3_u32 v8, v71, v16, v17
    v_max3_u32 v6, v6, v18, v19
    v_max_u32 v6, v6, v8
    v_cmp_eq_u32 vcc, -1, v6
    s_waitcnt vmcnt(0)
    s_cmp_eq_u64 vcc, 0
    """)
    poll_tail(a, "L_inter")
    a("s_mov_b32 s54, %d" % SPIN)
    a("s_branch L_modv_chk")
    a.label("L_modv")
    mod_loads()
    a("s_waitcnt vmcnt(0)")
    a.label("L_modv_chk")
    tag_check([49, 51, 53, 55, 65, 67])
    a("v_and_b32 v65, 0xffff0000, v64")
    a("v_and_b32 v67, 0xffff0000, v66")
    a("s_cmp_eq_u64 vcc, 0")
    poll_tail(a, "L_modv")
    a("""
    v_lshlrev_b32 v64, 16, v64
    v_lshlrev_b32 v66, 16, v66
    ds_write_b128 v90, v[64:67]
    s_bitcmp1_b32 s5, 1
    s_cbranch_scc1 L_nop
    v_pk_mul_f32 v[92:93], v[92:93], v[64:65]
    v_pk_mul_f32 v[94:95], v[94:95], v[66:67]
    ds_write_b32 v91, v92
    ds_write_b32 v199, v93 offset:8
    ds_write2_b32 v199, v94, v95 offset0:1 offset1:0
    s_cmp_lt_u32 s5, 2
    s_cbranch_scc1 L_nop
    ds_write_b128 v90, v[92:95] offset:7680
    """)
    a.label("L_nop")
    if SASK:
        widen(48, 4)
        a("v_mov_b32 v53, 0")
        a("s_cmp_lg_u32 s61, 0")
        a("v_mov_b32 v55, 0")
        a("s_cbranch_scc1 L_nobias")
        widen(52, 4)
    else:
        widen(48, 8)
    for i in range(4):
        a("v_mul_f32 %s, v11, %s" % (v(52 + i), v(52 + i)))
    a.label("L_nobias")
    if FINE == 1:
        stamp(a, 1)
    P = 32
    for i in range(4):
        c = ACC + 4 * i
        a("v_fma_f32 %s, %s, %s, %s" % (v(c), v(c), v(48 + i), v(52 + i)))
        a("v_mul_f32 %s, %s, %s" % (v(c + 1), v(c + 1), v(48 + i)))
        a("v_pk_mul_f32 %s, %s, %s op_sel:[0,%d] op_sel_hi:[1,%d]" % (v(c + 2, 2), v(c + 2, 2), v(48 + (i & 2), 2), i & 1, i & 1))
        for tt in range(2):
            a("v_cvt_pk_bf16_f32 %s, %s, %s" % (v(P + 4 * tt + 2 * (i % 2) + i // 2), v(c + 2 * tt), v(c + 2 * tt + 1)))
        if i >= 2:
            for tt in range(2):
                a("ds_write_b64 v9, %s offset:%d" % (v(P + 4 * tt + 2 * (i - 2), 2), tt * 2560 + (i - 2) * 1280))
    a("s_waitcnt lgkmcnt(0)")
    if FINE == 1:
        stamp(a, 2)
    a("s_barrier")
    if FINE == 1:
        stamp(a, 3)
    D = 24
    a("ds_read_b128 %s, v10" % v(D, 4))
    a("ds_read_b128 %s, v10 offset:1280" % v(D + 4, 4))

    def notice():
        a("s_mov_b64 exec, 1")
        a("buffer_store_dword %s, off, s[12:15], s51 sc1" % v(VTAG))
        a("s_mov_b64 exec, -1")
    if PRE == 1:
        notice()
    a("v_mov_b32 v80, s38")
    a("v_mov_b32 v81, s36")
    a("v_lshlrev_b32 v11, 3, v3")
    a("v_add_u32 v11, %d, v11" % LDS_KEY)
    a("v_mov_b32 v13, %d" % LDS_KEY)
    a("s_mov_b32 exec_lo, 0")
    a("v_mov_b32 v80, s39")
    a("v_mov_b32 v81, s37")
    a("v_add_u32 v11, 4, v11")
    a("s_mov_b32 exec_lo, -1")
    BR, BI = 32, 40
    for h in range(2):
        a.wait_lg_for(v(D + 4 * h, 4))
        a("v_mfma_f32_16x16x32_bf16 %s, %s, %s, 0" % (v(BR + 4 * h, 4), v(D + 4 * h, 4), v(FR, 4)))
        a("v_mfma_f32_16x16x32_bf16 %s, %s, %s, 0" % (v(BI + 4 * h, 4), v(D + 4 * h, 4), v(FI, 4)))
    A2 = 16
    Y = 64
    for h in range(2):
        for j in range(0, 4, 2):
            br, bi, tc, ts = v(BR + 4 * h + j, 2), v(BI + 4 * h + j, 2), v(TC + 4 * h + j, 2), v(TS + 4 * h + j, 2)
            a("v_pk_mul_f32 %s, %s, %s" % (v(48 + j, 2), br, tc))
            a("v_pk_mul_f32 %s, %s, %s" % (v(52 + j, 2), bi, tc))
            a("v_pk_fma_f32 %s, %s, %s, %s" % (v(48 + j, 2), bi, ts, v(48 + j, 2)))
            a("v_pk_fma_f32 %s, %s, %s, %s neg_lo:[1,0,0] neg_hi:[1,0,0]" % (v(52 + j, 2), br, ts, v(52 + j, 2)))
        if h == 0:
            vec_read(PP, 5)
            vec_read(GA, 0)
        else:
            vec_read(GAM, 4)
            vec_read(PM, 6)
        for k in range(4):
            a("v_cvt_pk_bf16_f32 %s, %s, %s" % (v(A2 + 4 * h + k), v(48 + k), v(52 + k)))
        for gg in range(2):
            y = v(Y + 4 * gg, 4)
            a("v_mfma_f32_16x16x32_bf16 %s, %s, %s, %s" % (y, v(A2 + 4 * h, 4), v(G + 8 * h + 4 * gg, 4), "0" if h == 0 else y))
    if FINE:
        stamp(a, 4)
    if PRE == 2:
        notice()
    a("v_mov_b32 v57, %s" % v(VTAG))
    a("v_mov_b32 v59, %s" % v(VTAG))
    a("s_lshl_b32 s58, s59, %d" % KSH)
    a("s_add_u32 s58, s58, 0x%x" % WS_KEYS)
    a("s_cmp_eq_u32 s5, 0")
    a("s_cselect_b32 s58, s58, 0x%x" % OOB)
    rows = ((XU, GA, PP, 32), (XM, GAM, PM, 40))
    a.wait_lg_for(v(PP, 8))
    a("v_pk_add_f32 v[38:39], %s, %s" % (v(PP, 2), v(PP + 2, 2)))
    a("v_pk_add_f32 v[46:47], %s, %s" % (v(PP + 4, 2), v(PP + 6, 2)))
    a("v_pk_add_f32 v[38:39], v[38:39], v[46:47]")
    a("v_add_f32 v38, v38, v39")
    a("v_mov_b32 v46, v38")
    for xx, ga, pp, tp in rows:
        a.wait_lg_for(v(ga, 8))
        for e in range(0, 8, 2):
            a("v_pk_fma_f32 %s, %s, %s, %s" % (v(xx + e, 2), v(ga + e, 2), v(Y + e, 2), v(xx + e, 2)))
    XN = 72
    for xx, ga, pp, tp in rows:
        a.wait_lg_for(v(pp, 8))
        a("v_pk_add_f32 %s, %s, %s" % (v(tp, 2), v(xx, 2), v(xx + 2, 2)))
        a("v_pk_mul_f32 %s, %s, %s" % (v(tp + 2, 2), v(xx, 2), v(xx, 2)))
        a("v_pk_mul_f32 %s, %s, %s" % (v(tp + 4, 2), v(xx, 2), v(pp, 2)))
        for e in range(2, 8, 2):
            if e > 2:
                a("v_pk_add_f32 %s, %s, %s" % (v(tp, 2), v(tp, 2), v(xx + e, 2)))
            a("v_pk_fma_f32 %s, %s, %s, %s" % (v(tp + 2, 2), v(xx + e, 2), v(xx + e, 2), v(tp + 2, 2)))
            a("v_pk_fma_f32 %s, %s, %s, %s" % (v(tp + 4, 2), v(xx + e, 2), v(pp + e, 2), v(tp + 4, 2)))
        for k in range(3):
            a("v_add_f32 %s, %s, %s" % (v(tp + 2 * k), v(tp + 2 * k), v(tp + 2 * k + 1)))
    for k in (3, 0, 1, 2):
        a("v_permlane32_swap_b32 %s, %s" % (v(32 + 2 * k), v(40 + 2 * k)))
    for k in (3, 0, 1, 2):
        a("v_add_f32 %s, %s, %s" % (v(32 + 2 * k), v(32 + 2 * k), v(40 + 2 * k)))
    a("v_permlane16_swap_b32 v32, v34")
    a("v_permlane16_swap_b32 v36, v38")
    a("v_add_f32 v32, v32, v34")
    a("v_add_f32 v36, v36, v38")
    if EARLYH == 1:
        extra = []
        for b, a0, a123 in ((XM, "v196", "v178"), (XM + 4, "v177", "v176")):
            extra += ["ds_write_b32 %s, %s" % (a0, v(b)), "ds_write_b32 %s, %s offset:8" % (a123, v(b + 1)), "ds_write2_b32 %s, %s, %s offset0:1 offset1:0" % (a123, v(b + 2), v(b + 3))]
        for k, mod in enumerate(ROR):
            for r in (32, 36):
                a("v_add_f32_dpp %s, %s, %s %s" % (v(r), v(r), v(r), mod))
            for t in extra[(k * 6) // 4:((k + 1) * 6) // 4]:
                a(t)
    else:
        dpp_sum(a, [32, 36], ROR)
    if FINE == 1:
        stamp(a, 5)
    if PRE == 3:
        notice()
    a("v_mov_b32_dpp v33, v32 %s" % BC[0])
    a("v_mov_b32_dpp v37, v36 %s" % BC[0])
    a("v_mul_f32 v33, %s, v33                 ; mean" % f32(1 / 512))
    a("v_mul_f32 v34, v33, v33")
    a("v_sub_f32 v34, %s, v34" % f32(EPS))
    a("v_fmac_f32 v34, %s, v32" % f32(1 / 512))
    a("v_rsq_f32 v34, v34")
    a("""
    v_fma_f32 v36, -v33, v36, v37
    v_mul_f32 v8, v36, v34
    v_ashrrev_i32 v9, 31, v8
    v_or_b32 v9, s63, v9
    v_xor_b32 v8, v8, v9
    v_and_or_b32 v8, v8, v80, v81
    s_mov_b32 exec_lo, 0x80000000
    s_mov_b32 exec_hi, 0x80000000
    ds_write_b32 v11, v8
    s_mov_b64 exec, -1
    v_mul_f32 v35, v33, v34
    s_cmp_lg_u32 s5, 0
    s_cbranch_scc1 L_noprio
    s_setprio 3
    """)
    a.label("L_noprio")
    if EARLYH == 2:
        for b, a0, a123 in ((XM, "v196", "v178"), (XM + 4, "v177", "v176")):
            a("ds_write_b32 %s, %s" % (a0, v(b)))
            a("ds_write_b32 %s, %s offset:8" % (a123, v(b + 1)))
            a("ds_write2_b32 %s, %s, %s offset0:1 offset1:0" % (a123, v(b + 2), v(b + 3)))
        a("s_waitcnt lgkmcnt(6)")
    else:
        a("s_waitcnt lgkmcnt(0)")
    stamp(a, 10)
    a("s_barrier")
    for k in range(4):
        a("ds_read_b128 %s, v13 offset:%d" % (v(16 + 4 * k, 4), 16 * k))
    a("""
    v_readlane_b32 s56, v8, 31
    v_readlane_b32 s57, v8, 63
    v_readlane_b32 s32, v34, 31
    v_readlane_b32 s33, v35, 31
    v_readlane_b32 s34, v34, 63
    v_readlane_b32 s35, v35, 63
    s_waitcnt lgkmcnt(2)
    v_max_u32 v56, v16, v17
    v_min_u32 v58, v16, v17
    """)
    for k in range(18, 30, 4):
        if k == 22:
            a("s_waitcnt lgkmcnt(0)")
        a("v_med3_u32 v60, v56, %s, %s" % (v(k), v(k + 1)))
        a("v_max3_u32 v56, v56, %s, %s" % (v(k), v(k + 1)))
        a("v_med3_u32 v61, v56, %s, %s" % (v(k + 2), v(k + 3)))
        a("v_max3_u32 v56, v56, %s, %s" % (v(k + 2), v(k + 3)))
        a("v_max3_u32 v58, v58, v60, v61")
    a("""
    v_med3_u32 v60, v56, v30, v31
    v_max3_u32 v56, v56, v30, v31
    v_max_u32 v60, v58, v60
    v_or_b32 v58, 1, v60
    s_mov_b64 exec, 1
    buffer_store_dwordx4 v[56:59], off, s[12:15], s58 sc1
    s_mov_b64 exec, -1
    s_setprio 0
    """)
    if FINE:
        stamp(a, 6)
    vec_read(CB, 2)
    vec_read(SB, 1)
    if EARLYH:
        a("ds_read_b128 %s, v14" % v(XN, 4))
        a("ds_read_b128 %s, v14 offset:1280" % v(XN + 4, 4))
        vec_read(GB, 3)
    else:
        vec_read(GB, 3)
        mirror(XN, XM)
    a("v_readfirstlane_b32 s60, v56")
    a("v_readfirstlane_b32 s61, v60")
    H, HM = 32, 88
    OUT, OUTM, HP, HPM = 40, 44, 48, 52
    for ri, (xx, hh, sp, o, hp) in enumerate(((XU, H, 32, OUT, HP), (XN, HM, 34, OUTM, HPM))):
        if ri:
            a("s_waitcnt lgkmcnt(0)")
        a("v_mov_b32 v60, %s" % s(sp + 1))
        for e in range(8):
            a("v_fma_f32 %s, %s, %s, -v60" % (v(hh + e), v(xx + e), s(sp)))
        a.wait_lg_for(v(VEC, 32))
        for e in range(0, 8, 2):
            a("v_pk_fma_f32 %s, %s, %s, %s" % (v(hh + e, 2), v(hh + e, 2), v(CB + e, 2), v(SB + e, 2)))
        for d in range(4):
            a("v_cvt_pk_bf16_f32 %s, %s, %s" % (v(hp + d), v(hh + 2 * d), v(hh + 2 * d + 1)))
        for e in range(0, 8, 2):
            a("v_pk_fma_f32 %s, %s, %s, %s" % (v(xx + e, 2), v(GB + e, 2), v(hh + e, 2), v(xx + e, 2)))
        for d in range(4):
            a("v_cvt_pk_bf16_f32 %s, %s, %s" % (v(o + d), v(xx + 2 * d), v(xx + 2 * d + 1)))
    a("""
    ds_write_b64 v12, v[40:41]
    ds_write_b64 v12, v[42:43] offset:512
    ds_write_b64 v12, v[44:45] offset:1024
    ds_write_b64 v12, v[46:47] offset:1536
    ds_read_b128 v[40:43], v15
    ds_read_b128 v[44:47], v15 offset:1024
    s_max_u32 s61, s61, 1
    """)
    for ri, (key, off, o, hp) in enumerate((("s56", "s49", OUT, HP), ("s57", "s50", OUTM, HPM))):
        a("s_mov_b32 s58, s45")
        a("s_cmp_eq_u32 %s, s60" % key)
        a("s_cbranch_scc1 L_cand%d" % ri)
        a("s_add_u32 s58, s45, 2048")
        a("s_cmp_eq_u32 %s, s61" % key)
        a("s_cselect_b32 s53, 1, 0")
        a("s_or_b32 %s, %s, s53" % (key, key))
        a("s_cmp_eq_u32 s53, 1")
        stc = a.fork()
        a("s_cbranch_scc1 L_cand%d" % ri)
        a("s_mov_b32 %s, 0" % key)
        a("s_waitcnt lgkmcnt(0)")
        a("buffer_store_dwordx4 %s, v250, s[28:31], %s offen%s" % (v(o, 4), off, OUTF))
        a("s_branch L_next%d" % ri)
        a.label("L_cand%d" % ri)
        a.join(stc)
        a("buffer_store_dwordx4 %s, v250, s[12:15], s58 offen sc1" % v(hp, 4))
        a("s_waitcnt lgkmcnt(0)")
        a("buffer_store_dwordx4 %s, v250, s[12:15], s58 offen offset:1024 sc1" % v(o, 4))
        a.label("L_next%d" % ri)
    a.label("L_tail", reset=True)
    a("""
    s_lshl_b32 s59, s5, 8
    s_add_u32 s59, s59, s2
    s_sub_u32 s59, s59, 192
    s_cmp_lt_u32 s59, 64
    s_cselect_b32 s59, 1, 0
    s_or_b32 s60, s59, s56
    s_or_b32 s60, s60, s57
    s_cbranch_scc0 L_done
    s_lshl_b32 s45, s3, 7
    """)
    a("s_add_u32 s45, s45, 0x%x" % WS_SEL)
    a("s_cmp_eq_u32 s59, 0")
    a("s_cbranch_scc1 L_sel_go")
    a("""
    s_lshl3_add_u32 s44, s3, s4
    s_sub_u32 s44, s44, 24
    s_lshr_b32 s48, s44, 2
    s_lshl_b32 s48, s48, 5
    s_and_b32 s46, s44, 3
    s_lshl2_add_u32 s48, s46, s48
    v_and_b32 v4, 3, v0
    v_lshrrev_b32 v5, 1, v2
    v_lshl_add_u32 v5, v5, 4, v4
    v_add_u32 v5, s48, v5
    v_and_b32 v8, 0x103, v5
    v_bfe_u32 v9, v5, 2, 2
    v_lshl_add_u32 v8, v9, 6, v8
    v_bfe_u32 v9, v5, 4, 4
    v_lshl_add_u32 v8, v9, 2, v8
    v_lshlrev_b32 v8, 2, v8
    """)
    a("ds_write_b128 v15, %s" % v(GB, 4))
    a("ds_write_b128 v15, %s offset:1024" % v(GB + 4, 4))
    a("ds_read_b32 v8, v8 offset:%d           ; gb[e]" % LDS_SCR)
    a("v_pk_mul_f32 v[62:63], %s, %s" % (v(SB, 2), v(WU, 2)))
    for e in range(2, 8, 2):
        a("v_pk_fma_f32 v[62:63], %s, %s, v[62:63]" % (v(SB + e, 2), v(WU + e, 2)))
    a("v_add_f32 v62, v62, v63")
    dpp_sum(a, [62], ROR + BC)
    a("v_readlane_b32 s58, v62, 63")
    a("""
    v_bfe_u32 v9, v0, 2, 4
    v_lshlrev_b32 v9, 12, v9
    v_lshl_add_u32 v9, v4, 4, v9
    s_lshl_b32 s40, s44, 6
    v_and_b32 v10, 1, v2
    v_cmp_eq_u32 s[52:53], 1, v10
    v_mov_b32 v36, 0
    v_mov_b32 v37, 0
    v_mov_b32 v38, 0
    v_mov_b32 v39, 0
    """)
    a("s_add_u32 s40, s40, 0x%x" % WS_PART)
    a("s_add_u32 s41, s40, 0x10000")
    a("s_add_u32 s42, s40, 0x20000")
    a("s_add_u32 s43, s40, 0x30000")
    a("s_waitcnt lgkmcnt(0)")
    a.label("L_sel_go")
    a("s_mov_b32 s54, %d" % SPIN)
    a.label("L_poll_sel")
    a("buffer_load_dwordx4 v[16:19], off, s[12:15], s45 sc1")
    a("s_waitcnt vmcnt(0)")
    a("v_cmp_eq_u32 vcc, v17, %s" % v(VTAG))
    a("v_cmp_eq_u32 s[60:61], v19, %s" % v(VTAG))
    a("s_and_b64 vcc, vcc, s[60:61]")
    a("s_cmp_eq_u64 vcc, -1")
    poll_tail(a, "L_poll_sel")
    stamp(a, 11)
    a("""
    v_readfirstlane_b32 s60, v16
    v_readfirstlane_b32 s61, v18
    """)
    if LO:
        for ri, (key, off, o) in enumerate((("s56", "s49", OUT), ("s57", "s50", OUTM))):
            a("s_cmp_eq_u32 %s, 0" % key)
            a("s_cbranch_scc1 L_lo%d" % ri)
            a("s_cmp_eq_u32 %s, s60" % key)
            a("s_cbranch_scc1 L_lo%d" % ri)
            a("s_cmp_eq_u32 %s, s61" % key)
            a("s_cbranch_scc1 L_lo%d" % ri)
            a("buffer_store_dwordx4 %s, v250, s[28:31], %s offen" % (v(o, 4), off))
            a.label("L_lo%d" % ri)
    a("""
    s_cmp_eq_u32 s59, 0
    s_cbranch_scc1 L_late_out
    v_cndmask_b32 v16, v16, v18, s[52:53]
    v_bfe_u32 v17, v16, 5, 8
    v_and_b32 v18, 1, v16
    v_lshlrev_b32 v19, 12, v17
    v_lshl_add_u32 v19, v18, 11, v19
    v_lshl_add_u32 v19, v5, 1, v19
    """)
    a("s_mov_b32 s55, 0x%x" % (WS_CAND + 1024))
    a("s_mov_b32 s54, %d" % SPIN)
    a.label("L_poll_base")
    a("""
    buffer_load_ushort v20, v19, s[12:15], s55 offen sc1
    v_and_b32 v21, 7, v17
    v_bfe_u32 v22, v17, 5, 2
    v_lshl_add_u32 v21, v22, 3, v21       ; slot
    v_bfe_u32 v22, v17, 3, 2
    v_lshl_add_u32 v22, v22, 9, v21
    v_subrev_u32 v23, 992, v22
    v_cmp_eq_u32 vcc, 0, v21
    v_cndmask_b32 v23, v22, v23, vcc
    v_cmp_gt_u32 vcc, 1024, v22
    v_cndmask_b32 v21, v23, v22, vcc
    v_lshrrev_b32 v22, 7, v17
    v_lshl_add_u32 v21, v22, 10, v21
    v_bfe_u32 v22, v16, 2, 3
    v_lshl_add_u32 v21, v22, 6, v21
    v_sub_u32 v22, 2048, v21
    v_and_b32 v23, 2, v16
    v_cmp_eq_u32 vcc, 0, v23
    v_cndmask_b32 v21, v22, v21, vcc
    v_lshlrev_b32 v21, 10, v21
    v_lshl_add_u32 v21, v5, 1, v21
    """)
    if FIN == 2:
        a("buffer_load_ushort v49, v21, s[28:31], 0 offen")
    a("""
    v_and_b32 v22, 0xffffe000, v16
    v_ashrrev_i32 v23, 31, v22
    v_not_b32 v23, v23
    v_or_b32 v23, s63, v23
    v_xor_b32 v22, v22, v23
    v_add_f32 v22, s58, v22
    """)
    a("v_mul_f32 v22, %s, v22" % f32(-LOG2E))
    a("""
    v_exp_f32 v22, v22
    v_add_f32 v22, 1.0, v22
    v_rcp_f32 v22, v22
    v_mul_f32 v22, v22, v8
    s_waitcnt vmcnt(0)
    v_cmp_eq_u32 vcc, 0xffff, v20
    s_cmp_eq_u64 vcc, 0
    """)
    poll_tail(a, "L_poll_base")
    a("s_mov_b32 s54, %d" % SPIN)
    a.label("L_poll_part")
    a("""
    buffer_load_dwordx4 v[24:27], v9, s[12:15], s40 offen sc1
    buffer_load_dwordx4 v[28:31], v9, s[12:15], s41 offen sc1
    buffer_load_dwordx4 v[32:35], v9, s[12:15], s42 offen sc1
    s_mov_b32 exec_hi, 0
    buffer_load_dwordx4 v[36:39], v9, s[12:15], s43 offen sc1
    s_mov_b32 exec_hi, -1
    s_waitcnt vmcnt(0)
    v_max3_u32 v48, v24, v28, v32
    v_max_u32 v48, v48, v36
    v_cmp_eq_u32 vcc, -1, v48
    s_cmp_eq_u64 vcc, 0
    """)
    poll_tail(a, "L_poll_part")
    stamp(a, 12)
    a("""
    v_pk_add_f32 v[24:25], v[24:25], v[28:29]
    v_pk_add_f32 v[26:27], v[26:27], v[30:31]
    v_pk_add_f32 v[32:33], v[32:33], v[36:37]
    v_pk_add_f32 v[34:35], v[34:35], v[38:39]
    v_pk_add_f32 v[24:25], v[24:25], v[32:33]
    v_pk_add_f32 v[26:27], v[26:27], v[34:35]
    v_permlane32_swap_b32 v24, v26
    v_permlane32_swap_b32 v25, v27
    v_pk_add_f32 v[24:25], v[24:25], v[26:27]
    v_permlane16_swap_b32 v24, v25
    v_add_f32 v24, v24, v25
    v_lshlrev_b32 v20, 16, v20
    """)
    dpp_sum(a, [24], ROR[:2])
    a("""
    v_fmac_f32 v20, v24, v22
    v_cvt_pk_bf16_f32 v20, v20, v20
    s_mov_b32 exec_lo, 0x000f000f
    s_mov_b32 exec_hi, 0x000f000f
    buffer_store_short v20, v21, s[28:31], 0 offen OUTF
    s_mov_b64 exec, -1
    s_cmp_lg_u32 s2, 192
    s_cbranch_scc1 L_late_out
    s_mov_b64 exec, 1
    """.replace(" OUTF", " sc1" if FIN == 1 else ""))
    a("s_mov_b32 s55, 0x%x" % WS_GEN)
    a("buffer_store_dword %s, off, s[12:15], s55" % v(VTAG))
    a("s_mov_b64 exec, -1")
    if PROBE >= 0 and not PFFN:
        probe_spin(a)
    a.label("L_late_out", reset=True)
    for ri, (key, off, o) in enumerate((("s56", "s49", OUT), ("s57", "s50", OUTM)) if not LO else ()):
        nxt = "L_late1" if ri == 0 else "L_done"
        a("s_cmp_eq_u32 %s, 0" % key)
        a("s_cbranch_scc1 %s" % nxt)
        a("s_cmp_eq_u32 %s, s60" % key)
        a("s_cbranch_scc1 %s" % nxt)
        a("s_cmp_eq_u32 %s, s61" % key)
        a("s_cbranch_scc1 %s" % nxt)
        a("buffer_store_dwordx4 %s, v250, s[28:31], %s offen%s" % (v(o, 4), off, OUTF))
        if ri == 0:
            a.label("L_late1")
    a("s_branch L_done")
    a.label("L_ffn", reset=True)
    a("s_mov_b32 s58, s4")
    a("""
    s_mul_i32 s6, s3, 7
    s_add_u32 s6, s6, s58
    s_lshl_b32 s46, s6, 12
    """)
    a("s_add_u32 s46, s46, 0x%x               ; partial-sum slab" % WS_PART)
    a("s_add_u32 s45, s46, s62")
    a("s_cmp_lt_u32 s5, 4")
    a("s_cselect_b32 s45, s45, 0x%x" % OOB)
    if EPART:
        a("v_mov_b32 v33, %s" % v(VTAG))
        a("v_mov_b32 v35, %s" % v(VTAG))
        if EPART == 2:
            a("s_waitcnt vmcnt(0)")
        a("s_barrier")
    else:
        a("buffer_store_dwordx4 v[252:255], v250, s[12:15], s45 offen sc1")
        a("v_mov_b32 v33, %s" % v(VTAG))
        a("v_mov_b32 v35, %s" % v(VTAG))
        a("v_mov_b32 v32, 0")
        a("v_mov_b32 v34, 0")
        a("s_lshl_b32 s53, s6, %d" % KSH)
        a("s_add_u32 s53, s53, 0x%x" % (WS_KEYS + (129 << KSH)))
        a("s_cmp_eq_u32 s5, 0")
        a("s_cselect_b32 s53, s53, 0x%x" % OOB)
        a("s_waitcnt vmcnt(0)")
        a("s_barrier")
        a("s_mov_b64 exec, 1")
        a("buffer_store_dwordx4 v[32:35], off, s[12:15], s53 sc1")
        a("s_mov_b64 exec, -1")
    a("s_mov_b64 s[32:33], s[18:19]")
    a("s_mov_b64 s[36:37], s[20:21]")
    a("s_mov_b64 s[40:41], s[22:23]")
    srd(a, 32, 512 * 3584)
    srd(a, 36, 512 * 3584)
    srd(a, 40, 1792 * 1024)
    a("""
    s_and_b32 s44, s5, 1
    s_lshl_b32 s44, s44, 7
    s_lshr_b32 s48, s5, 1
    s_lshl2_add_u32 s44, s48, s44
    v_bfe_u32 v4, v0, 2, 2
    v_lshl_add_u32 v4, v2, 4, v4
    v_add_u32 v4, s44, v4
    v_mul_u32_u24 v4, 3584, v4
    v_and_b32 v5, 3, v0
    SWZA
    v_lshl_add_u32 v4, v5, 4, v4
    s_lshl_b32 s48, s6, 6
    s_mul_i32 s7, s5, 12288
    s_mov_b32 m0, s7
    """.replace("SWZA", "v_and_b32 v6, 1, v2\nv_lshlrev_b32 v6, 1, v6\nv_xor_b32 v5, v5, v6" if SWZ else ""))
    a("s_add_u32 s49, s48, %d" % (64 * 3584))
    a("s_add_u32 s50, s48, %d" % (256 * 3584))
    a("s_add_u32 s51, s48, %d" % (320 * 3584))
    stamp(a, 7)
    for sr in (32, 36):
        for i in range(4):
            a("buffer_load_dwordx4 v4, %s, %s offen lds" % (s(sr, 4), s(48 + i)))
            a("s_add_u32 m0, m0, 1024")
    a("""
    v_bfe_u32 v5, v0, 3, 3
    v_lshlrev_b32 v5, 10, v5
    v_and_b32 v4, 7, v0
    SWZB
    v_lshl_add_u32 v5, v4, 4, v5
    v_lshl_add_u32 v5, v3, 7, v5
    v_xor_b32 v6, SWZC, v5
    s_lshl_b32 s48, s6, 15
    """.replace("SWZB", "v_lshrrev_b32 v6, 3, v0\nv_and_b32 v6, 2, v6\nv_xor_b32 v4, v4, v6" if SWZ else "").replace("SWZC", "64" if SWZ else "0"))
    for i in range(4):
        a("buffer_load_dwordx4 %s, s[40:43], s48 offen lds" % ("v6" if i & 1 else "v5"))
        if i < 3:
            a("s_add_u32 m0, m0, 1024")
            a("s_add_u32 s48, s48, 8192")
    WF, WD = 64, 96
    a("v_lshlrev_b32 v6, %d, v0" % KSH)
    a("""
    v_bfe_u32 v4, v0, 2, 4                ; 4q + r
    v_and_b32 v5, 3, v0
    v_lshlrev_b32 v5, 3, v5
    v_lshl_add_u32 v8, v4, 6, v5
    v_add_u32 v8, s7, v8
    v_bfe_u32 v9, v0, 2, 2
    v_lshl_add_u32 v9, v2, 3, v9
    v_lshl_add_u32 v9, v9, 7, v5
    v_add_u32 v9, s7, v9
    """)
    a("""
    v_and_b32 v10, 1, v0
    v_cmp_eq_u32 s[50:51], 1, v10
    v_lshlrev_b32 v11, 7, v3
    v_lshl_add_u32 v11, v2, 4, v11
    v_lshlrev_b32 v12, 6, v10
    v_lshl_add_u32 v13, v2, 4, v12
    v_lshl_add_u32 v13, v3, 9, v13
    v_and_b32 v14, 30, v0
    v_lshl_add_u32 v14, v14, 1, v12
    v_and_b32 v12, 32, v0
    v_lshl_add_u32 v14, v12, 2, v14
    """)
    a("v_add_u32 v13, %d, v13                 ; partial write address" % LDS_RED)
    a("v_add_u32 v14, %d, v14                 ; partial read address" % LDS_RED)
    a("""
    v_lshlrev_b32 v15, 9, v3
    v_lshl_add_u32 v15, v1, 4, v15
    v_lshlrev_b32 v7, 3, v3
    v_mov_b32 v16, 0
    v_mov_b32 v18, 0
    """)
    a("v_add_u32 v7, %d, v7" % LDS_KEY2)
    a("v_mov_b32 v4, %d" % LDS_KEY2)
    if SWZ:
        a("""
        v_and_b32 v12, 1, v2
        v_lshl_add_u32 v40, v12, 5, v8
        v_xor_b32 v41, 32, v40
        v_lshl_add_u32 v42, v12, 6, v9
        v_and_b32 v12, 8, v0
        v_lshl_add_u32 v42, v12, 2, v42
        v_xor_b32 v43, 32, v42
        v_xor_b32 v44, 64, v42
        v_xor_b32 v45, 0x60, v42
        """)
    a("s_waitcnt vmcnt(0)")
    stamp(a, 8)
    for kk in range(2):
        for mt in range(4):
            for hf in range(2):
                if SWZ:
                    a("ds_read_b64_tr_b16 %s, %s offset:%d" % (v(WF + 16 * kk + 4 * mt + 2 * hf, 2), "v41" if mt % 2 else "v40", (mt // 2) * 4096 + hf * 2048 + kk * 1024))
                else:
                    a("ds_read_b64_tr_b16 %s, v8 offset:%d" % (v(WF + 16 * kk + 4 * mt + 2 * hf, 2), (mt // 2) * 4096 + hf * 2048 + kk * 1024 + (mt % 2) * 32))
    for t in range(4):
        for hf in range(2):
            if SWZ:
                a("ds_read_b64_tr_b16 %s, %s offset:%d" % (v(WD + 4 * t + 2 * hf, 2), v(42 + t), 8192 + hf * 512))
            else:
                a("ds_read_b64_tr_b16 %s, v9 offset:%d" % (v(WD + 4 * t + 2 * hf, 2), 8192 + hf * 512 + t * 32))
    a("s_lshl_b32 s52, s3, 7")
    a("s_add_u32 s55, s52, 0x%x" % WS_PRE)
    a("s_add_u32 s52, s52, 0x%x" % WS_SEL)
    a("s_or_b32 s53, s58, s5")
    a("s_cselect_b32 s52, 0x%x, s52           ; one announcing wave per group" % OOB)
    a("s_cmp_ge_u32 s5, 3")
    a("s_cbranch_scc1 L_keys_done")
    a("s_mov_b32 s54, %d" % SPIN)
    if PRE:
        a.label("L_poll_pre")
        a("buffer_load_dword v17, off, s[12:15], s55 sc1")
        a("s_waitcnt vmcnt(0)")
        a("v_cmp_eq_u32 vcc, v17, %s" % v(VTAG))
        a("s_cmp_eq_u64 vcc, -1")
        poll_tail(a, "L_poll_pre")
        a("s_mov_b32 s54, %d" % SPIN)
    stamp(a, 10)
    a("v_cmp_gt_u32 vcc, 185, v0")
    a("s_mov_b32 s55, 0x%x" % WS_KEYS)
    a("s_mov_b64 exec, vcc")
    a.label("L_poll_keys")
    a("buffer_load_dwordx4 v[16:19], v6, s[12:15], s55 offen sc1")
    a("s_waitcnt vmcnt(0)")
    a("v_cmp_ne_u32 vcc, v17, %s" % v(VTAG))
    a("v_cmp_ne_u32 s[60:61], v19, %s" % v(VTAG))
    a("s_or_b64 vcc, vcc, s[60:61]")
    a("s_and_b64 exec, exec, vcc")
    a("s_cmp_eq_u64 exec, 0")
    poll_tail(a, "L_poll_keys")
    a("s_mov_b64 exec, -1")
    for mod in ROR + BC:
        a("v_min_u32_dpp v19, v16, v16 %s" % mod)
        a("v_max_u32_dpp v18, v18, v18 %s" % mod)
        a("v_max_u32_dpp v16, v16, v16 %s" % mod)
        a("v_max_u32 v18, v18, v19")
    a("""
    s_mov_b32 exec_lo, 0
    s_mov_b32 exec_hi, 0x80000000
    ds_write2_b32 v7, v16, v18 offset0:0 offset1:1
    s_mov_b64 exec, -1
    """)
    a.label("L_keys_done")
    a("s_waitcnt lgkmcnt(0)")
    a("s_barrier")
    stamp(a, 11)
    a("ds_read_b128 v[16:19], v4")
    a("ds_read_b64 v[20:21], v4 offset:16")
    a("s_mov_b32 s55, 0x%x" % WS_CAND)
    a("s_mov_b32 s54, %d" % SPIN)
    a("""
    s_waitcnt lgkmcnt(0)
    v_med3_u32 v36, v16, v18, v20
    v_max3_u32 v32, v16, v18, v20
    v_max3_u32 v34, v17, v19, v21
    v_max_u32 v34, v34, v36
    v_cndmask_b32 v36, v32, v34, s[50:51]
    v_bfe_u32 v37, v36, 5, 8
    v_and_b32 v36, 1, v36
    v_lshl_add_u32 v11, v37, 12, v11
    v_lshl_add_u32 v11, v36, 11, v11
    """)
    a.label("L_poll_h2")
    a("""
    buffer_load_dwordx4 v[16:19], v11, s[12:15], s55 offen sc1
    buffer_load_dwordx4 v[20:23], v11, s[12:15], s55 offen offset:64 sc1
    """)
    C = 48
    for kk in range(2):
        a("s_waitcnt vmcnt(%d)" % (1 - kk))
        if kk:
            stamp(a, 12)
        for mt in range(4):
            c = v(C + 4 * mt, 4)
            a("v_mfma_f32_16x16x32_bf16 %s, %s, %s, %s" % (c, v(WF + 16 * kk + 4 * mt, 4), v(16 + 4 * kk, 4), "0" if kk == 0 else c))
    a("""
    v_max_u32 v36, v16, v20
    v_cmp_eq_u32 vcc, -1, v36
    s_cmp_eq_u64 vcc, 0
    """)
    poll_tail(a, "L_poll_h2")
    a("s_mov_b64 exec, 1")
    a("buffer_store_dwordx4 v[32:35], off, s[12:15], s52 sc1")
    a("s_mov_b32 exec_lo, 0x00030003")
    a("s_mov_b32 exec_hi, 0x00030003")
    for mt in range(4):
        a("ds_write_b128 v13, %s offset:%d" % (v(C + 4 * mt, 4), 128 * mt))
    a("s_mov_b64 exec, -1")
    a("s_waitcnt lgkmcnt(0)")
    a("s_barrier")
    a("""
    ds_read2st64_b32 v[16:17], v14 offset0:0 offset1:2
    ds_read2st64_b32 v[18:19], v14 offset0:4 offset1:6
    ds_read2st64_b32 v[20:21], v14 offset0:8 offset1:10
    ds_read2st64_b32 v[22:23], v14 offset0:12 offset1:14
    ds_read2st64_b32 v[24:25], v14 offset0:1 offset1:3
    ds_read2st64_b32 v[26:27], v14 offset0:5 offset1:7
    ds_read2st64_b32 v[28:29], v14 offset0:9 offset1:11
    ds_read2st64_b32 v[30:31], v14 offset0:13 offset1:15
    s_waitcnt lgkmcnt(4)
    v_pk_add_f32 v[16:17], v[16:17], v[18:19]
    v_pk_add_f32 v[20:21], v[20:21], v[22:23]
    v_pk_add_f32 v[16:17], v[16:17], v[20:21]
    v_add_f32 v16, v16, v17
    """)
    a("v_mul_f32 v17, %s, v16" % f32(-LOG2E))
    a("""
    v_exp_f32 v17, v17
    s_waitcnt lgkmcnt(0)
    v_pk_add_f32 v[24:25], v[24:25], v[26:27]
    v_add_f32 v17, 1.0, v17
    v_pk_add_f32 v[28:29], v[28:29], v[30:31]
    v_rcp_f32 v17, v17
    v_pk_add_f32 v[24:25], v[24:25], v[28:29]
    v_add_f32 v24, v24, v25
    v_mul_f32 v16, v16, v17
    v_mul_f32 v16, v16, v24
    v_mov_b32_dpp v17, v16 row_ror:14 row_mask:0xf bank_mask:0xf
    v_cvt_pk_bf16_f32 v20, v16, v17
    v_mov_b32_dpp v21, v20 row_ror:12 row_mask:0xf bank_mask:0xf
    v_mov_b32_dpp v22, v20 row_ror:8 row_mask:0xf bank_mask:0xf
    v_mov_b32_dpp v23, v20 row_ror:4 row_mask:0xf bank_mask:0xf
    """)
    for t in range(4):
        a("v_mfma_f32_16x16x32_bf16 %s, v[20:23], %s, 0" % (v(C + 4 * t, 4), v(WD + 4 * t, 4)))
    a("""
    s_mov_b64 exec, 0xffff
    v_mov_b32 v50, v52
    v_mov_b32 v51, v53
    buffer_store_dwordx4 v[48:51], v15, s[12:15], s46 offen sc1
    v_mov_b32 v58, v60
    v_mov_b32 v59, v61
    buffer_store_dwordx4 v[56:59], v15, s[12:15], s46 offen offset:256 sc1
    s_mov_b64 exec, -1
    """)
    stamp(a, 9)
    if PROBE >= 0 and PFFN:
        a("s_lshl_b32 s94, s2, 3")
        a("s_or_b32 s94, s94, s5")
        a("s_cmp_lg_u32 s94, %d" % (PFFN - 1))
        a("s_cbranch_scc1 L_done")
        probe_spin(a)
    a.label("L_done", reset=True)
    stamp_end(a)
    a.label("L_end")
    a("s_endpgm")
    desc = """.section .rodata,"a"
.p2align 6
.amdhsa_kernel %s
  .amdhsa_next_free_vgpr 256
  .amdhsa_next_free_sgpr 102
  .amdhsa_accum_offset 256
  .amdhsa_group_segment_fixed_size 0
  .amdhsa_kernarg_size 120
  .amdhsa_user_sgpr_count 2
  .amdhsa_user_sgpr_kernarg_segment_ptr 1
  .amdhsa_system_sgpr_workgroup_id_x 1
.end_amdhsa_kernel
""" % KN
    return HEADER + "; @launch grid=(256,1,1) block=(512,1,1) lds=%d\n" % LDS_TOTAL + a.text() + desc


if __name__ == "__main__":
    out = sys.argv[1] if len(sys.argv) > 1 and sys.argv[1].endswith(".s") else "v13.s"
    open(out, "w").write(build())
    print("wrote", out)
```

```python
import sys, struct
from asmlib import Asm, Ins, v, s

NAME = "adaLN_cond__spectral_fnet__moe_arch_mod__prompt"
KN = NAME + "_kernel"
HEADER = open("cdna_kernels/%s.s.ref" % NAME).read().split("; Override launch geometry")[0]


def opt(name, default):
    for x in sys.argv:
        if x.startswith("--%s=" % name):
            return int(x.split("=")[1], 0)
    return default


STAMPS = "--stamps" in sys.argv
PROBE = opt("probe", -1)
KSH = opt("ksh", 6)
FSH = opt("fsh", 8)
HELP = opt("help", 1)
POIS = opt("pois", 4)
OUTF = ("", " sc1", " nt", " sc0 sc1", " sc1 nt")[opt("outf", 1)]
EARLYH = opt("earlyh", 2)
MODFIRST = opt("modfirst", 0)
ROWL = opt("rowl", 1)
MH = opt("mh", 9)
PLATE = opt("plate", 0)
OUTL = opt("outl", 0)
FINE = opt("fine", 0)
PROG = opt("prog", 0)
TMIN = opt("tmin", -1)
PFFN = opt("pffn", 0)
FIN = opt("fin", 0)
HF = opt("hf", 1)
LO = opt("lo", 1)
ADEL = opt("adel", 2)
SASK = opt("sask", 0)
CA16 = opt("ca16", 0)
GE = opt("ge", 1)
LAY = opt("lay", 0)
PRIO = opt("prio", 0)
EPART = opt("epart", 0)
BT2 = opt("bt2", 0)
SWZ = opt("swz", 1)
BDEL = opt("bdel", 0)
BT = opt("bt", 8)
SENT = opt("sent", 0)
FDEL = opt("fdel", 0)
SW = opt("sw", 4)
PRE = opt("pre", 3)
CPOS = opt("cpos", 0)
CPF = opt("cpf", 0)
TOUCH = opt("touch", 1)

WS_MOD = 0x0
WS_GEN = 0x3000
WS_SEL = 0x3400
WS_PRE = 0x3800
WS_FLAG = 0x8000
WS_KEYS = 0x40000
WS_PART = 0x80000
WS_CAND = 0x100000
WS_INTER = 0x200000
WS_SIZE = 0x400000
WS_STAMP = 0x600000
if STAMPS:
    WS_SIZE = 0x800000
EPS = 1e-5
TAGC = 0x9E3779B9
SPIN = 1 << 15
OOB = 0x7fff0000
PITCH = 288
XWG = 120

LDS_U = 20480
LDS_SCR = LDS_U + 20480
LDS_VEC = LDS_SCR + 20480
LDS_KEY = LDS_VEC + 7 * 2560
LDS_TAB = LDS_KEY + 128
LDS_RED = 98304
LDS_KEY2 = LDS_RED + 4096
LDS_TOTAL = LDS_KEY2 + 64

FR, FI, TC, TS, G, SA = 200, 204, 208, 216, 224, 240
VQ4, VTAG, VL16 = 248, 249, 250
LOG2E = 1.4426950408889634


DOC = """; ---------------------------------------------------------------------------------------------
;   y = Re(F_2048 . h . F_512) is evaluated as a factorised DFT (2048 = 64 x 32, 512 = 16 x 32) on bf16 MFMA,
; Workgroups 0..127   : LayerNorm + DFT-64 over rows s = 32*s1 + s2 (128-column slice each) -> d_ws.
; Workgroups 128..175 : mod = silu(c) @ w_mod (64 columns each); 176..255 pull w_mod / expert weights into L2.
; Hand-offs go through d_ws with write-through (sc1) stores and sc1 loads. Every word handed over is validated by
; ---------------------------------------------------------------------------------------------
"""


def f32(x):
    return "0x%08x" % struct.unpack("<I", struct.pack("<f", x))[0]


def srd(a, base, nbytes):
    a("s_mov_b32 %s, 0x%x" % (s(base + 2), nbytes))
    a("s_mov_b32 %s, 0x20000" % s(base + 3))


NST = 14


def stamp(a, i):
    if PROBE >= 0 and i == 0:
        a("s_memrealtime s[96:97]")
    if PROBE == i:
        a("s_memrealtime s[92:93]")
    if not STAMPS:
        return
    if i == 0:
        a("s_memrealtime s[96:97]")
        for k in range(1, NST):
            a("s_mov_b32 %s, 0" % s(64 + 2 * k))
    a("s_memtime %s" % s(64 + 2 * i, 2))


def stamp_end(a):
    if not STAMPS:
        return
    a("s_waitcnt vmcnt(0)")
    a("s_memtime %s" % s(64 + 2 * (NST - 1), 2))
    a("s_memrealtime s[98:99]")
    a("s_mov_b64 exec, 1")
    a("s_lshl_b32 s93, s2, 3")
    a("s_add_u32 s93, s93, s5")
    a("s_lshl_b32 s93, s93, 6")
    a("s_add_u32 s93, s93, 0x%x" % WS_STAMP)
    a("s_waitcnt lgkmcnt(0)")
    a("v_mov_b32 v16, s96")
    a("v_mov_b32 v17, s98")
    for k in range(NST):
        a("v_mov_b32 %s, %s" % (v(18 + k), s(64 + 2 * k)))
    for k in range(4):
        a("buffer_store_dwordx4 %s, off, s[12:15], s93 offset:%d" % (v(16 + 4 * k, 4), 16 * k))


ROR = ["row_ror:%d row_mask:0xf bank_mask:0xf" % r for r in (8, 4, 2, 1)]
BC = ["row_bcast:15 row_mask:0xa bank_mask:0xf", "row_bcast:31 row_mask:0xc bank_mask:0xf"]


def dpp_sum(a, regs_, mods):
    for mod in mods:
        for r in regs_:
            a("v_add_f32_dpp %s, %s, %s %s" % (v(r), v(r), v(r), mod))


def poll_tail(a, label, cnt="s54"):
    a("s_cbranch_scc1 %s_ok" % label)
    a("s_sub_u32 %s, %s, 1" % (cnt, cnt))
    a("s_cbranch_scc0 %s" % label)
    a.label(label + "_ok")


def setup(a):
    a.label("L_setup", reset=True)
    a("""
    s_lshr_b32 s60, s59, 5
    s_lshl3_add_u32 s60, s60, s3
    s_and_b32 s60, s60, 31
    s_bfe_u32 s61, s59, 0x20003
    s_lshl_b32 s61, s61, 9
    s_add_u32 s61, s61, s60
    s_sub_u32 s94, s61, 992
    s_cmp_ge_u32 s61, 1024
    s_cselect_b32 s94, s94, s61
    s_mov_b32 s95, 0xffff0000
    s_cselect_b32 s95, s95, 0x0000ffff
    s_cmp_eq_u32 s60, 0
    s_cselect_b32 s61, s94, s61
    s_cselect_b32 s95, s95, -1
    """)
    a("s_cselect_b32 s94, 0, %s" % f32(-0.25))
    a("""
    s_cmp_eq_u32 s59, 128
    s_cselect_b32 s61, 1024, s61
    v_lshrrev_b32 v160, 1, v1
    v_lshlrev_b32 v160, 6, v160
    v_add_u32 v160, s61, v160
    v_cvt_f32_u32 v160, v160
    v_and_b32 v161, 1, v1
    v_cvt_f32_u32 v161, v161
    """.replace("CANDBASE", "0x%x" % WS_CAND))
    a("v_lshl_add_u32 v162, v3, 2, v2")
    a("v_cvt_f32_u32 v162, v162")
    a("v_mul_f32 v160, %s, v160" % f32(1 / 2048))
    a("v_mul_f32 v161, %s, v161" % f32(0.25))
    a("v_fmac_f32 v161, v160, v162")
    a("""
    v_add_f32 v162, s94, v161
    v_cos_f32 v163, v161
    v_cos_f32 v162, v162
    v_and_b32 v164, 3, v3
    v_lshl_add_u32 v165, v2, 2, v164
    v_mul_u32_u24 v165, v165, v1          ; n*(4q+j)
    v_lshrrev_b32 v166, 2, v3
    v_mul_u32_u24 v167, v166, v1
    v_lshl_add_u32 v167, v167, 4, v165    ; n*(16h+4q+j)
    v_cvt_f32_u32 v165, v165
    v_cvt_f32_u32 v167, v167
    v_cvt_pk_bf16_f32 v163, v163, v162
    s_cmp_lt_u32 s5, 4
    """)
    a("s_mov_b32 s94, %s" % f32(1 / 32))
    a("s_cselect_b32 s94, %s, s94" % f32(1 / 16))
    a("v_mul_f32 v167, %s, v167" % f32(1 / 512))
    a("""
    v_mul_f32 v165, s94, v165
    v_and_b32 v163, s95, v163
    v_cos_f32 v168, v167
    v_sin_f32 v169, v167
    v_cos_f32 v170, v165
    v_sin_f32 v171, v165
    v_lshl_add_u32 v164, v164, 2, v250
    v_lshl_add_u32 v164, v166, 10, v164
    """)
    a("v_add_u32 v164, %d, v164" % LDS_TAB)
    a("""
    ds_write_b32 v164, v163
    ds_write2st64_b32 v164, v168, v169 offset0:8 offset1:16
    v_cvt_pk_bf16_f32 v172, v170, v171
    s_cbranch_scc0 L_setup_g
    v_cvt_pk_bf16_f32 v173, -v171, v170
    ds_write2st64_b32 v164, v172, v173 offset0:24 offset1:28
    s_branch L_setup_end
    """)
    a.label("L_setup_g")
    a("""
    s_bitcmp1_b32 s5, 0
    s_cselect_b32 s94, 0x80008000, 0
    v_lshlrev_b32 v170, 31, v1
    v_lshrrev_b32 v171, 16, v170
    v_xor_b32 v173, s94, v172
    v_bitop3_b32 v174, v172, v170, v171 bitop3:0x96
    ds_write2st64_b32 v164, v172, v173 offset0:28 offset1:32
    v_xor_b32 v175, s94, v174
    ds_write2st64_b32 v164, v174, v175 offset0:36 offset1:40
    """)
    a.label("L_setup_end")
    a("s_waitcnt lgkmcnt(0)")
    if ROWL:
        a("s_sub_u32 s40, s4, 16")
        a("s_cmp_lt_u32 s40, 6")
        a("s_cbranch_scc1 L_setup_ret")
    if BDEL:
        a("s_waitcnt vmcnt(0)")
    a.label("L_rows")
    a("""
    s_lshl_b32 s40, s5, 6
    s_add_u32 s40, s40, s61
    s_sub_u32 s41, 2048, s40
    s_lshl_b32 s40, s40, 10
    s_lshl_b32 s41, s41, 10
    s_mov_b64 s[24:25], s[16:17]
    s_movk_i32 s26, 1024
    s_mov_b32 s27, 0x20000
    buffer_load_dwordx4 v[100:103], v250, s[8:11], s40 offen
    buffer_load_dwordx4 v[104:107], v250, s[8:11], s41 offen
    buffer_load_dwordx4 v[108:111], v250, s[24:27], 0 offen
    s_lshl_b32 s40, s59, 12
    s_add_u32 s40, s40, s62
    s_add_u32 s40, s40, CANDBASE
    s_cmp_lt_u32 s5, 4
    s_cselect_b32 s40, s40, 0x7fff0000
    buffer_store_dwordx4 v[252:255], v250, s[12:15], s40 offen sc1
    """.replace("CANDBASE", "0x%x" % WS_CAND))
    a.label("L_setup_ret")
    a("s_setpc_b64 s[100:101]")


def touch(a, half, dst, first):
    if first:
        a("""
        v_bfe_u32 v4, v0, 3, 3
        v_and_b32 v5, 7, v0
        v_lshlrev_b32 v5, 6, v5
        s_mov_b32 s34, 0x1c0000
        s_mov_b32 s35, 0x20000
        """)
    a("""
    s_and_b32 s46, s44, 31
    s_mul_i32 s48, s3, 448
    s_mul_i32 s49, s46, 57344
    s_add_u32 s48, s48, s49
    s_lshl_b32 s49, s3, 5
    s_add_u32 s49, s49, s46
    s_mul_i32 s49, s49, 7168
    """)
    if half:
        a("s_add_u32 s48, s48, 28672")
        a("s_add_u32 s49, s49, 512")
    a("""
    s_cmp_lt_u32 s44, 32
    s_cselect_b64 s[32:33], s[18:19], s[20:21]
    s_movk_i32 s50, 3584
    s_cmp_ge_u32 s44, 64
    s_cselect_b64 s[32:33], s[22:23], s[32:33]
    s_cselect_b32 s50, 1024, s50
    s_cselect_b32 s48, s49, s48
    v_mad_u32_u24 v6, v4, s50, v5
    """)
    a("buffer_load_dword %s, v6, s[32:35], s48 offen" % v(dst))


def probe_spin(a):
    a("s_waitcnt vmcnt(0)")
    a("s_memrealtime s[98:99]")
    a("s_waitcnt lgkmcnt(0)")
    if PROBE >= 20:
        a("s_mov_b32 s92, 0x70000")
        a("buffer_load_dwordx4 v[60:63], v250, s[12:15], s92 offen sc1")
        a("s_waitcnt vmcnt(0)")
        for r in range(60, 64):
            a("v_subrev_u32 v%d, s96, v%d" % (r, r))
        a("v_min3_i32 v64, v60, v61, v62")
        a("v_min_i32 v64, v64, v63")
        a("v_max3_i32 v65, v60, v61, v62")
        a("v_max_i32 v65, v65, v63")
        for mod in ROR + BC:
            a("v_min_i32_dpp v64, v64, v64 %s" % mod)
            a("v_max_i32_dpp v65, v65, v65 %s" % mod)
        a("v_readlane_b32 s92, v64, 63")
        a("v_readlane_b32 s93, v65, 63")
        if PROBE == 20:
            a("s_sub_u32 s94, s93, s92")
        elif PROBE == 21:
            a("s_sub_u32 s94, 0, s92")
        else:
            a("s_sub_u32 s94, s98, s96")
            a("s_sub_u32 s94, s94, s92")
    else:
        a("s_sub_u32 s94, %s, s96" % ("s98" if PROBE == 13 else "s92"))
    if TMIN >= 0:
        a("s_max_u32 s94, s94, %d" % TMIN)
        a("s_sub_u32 s94, s94, %d" % TMIN)
        a("s_mul_i32 s94, s94, 2622")
        a("s_lshr_b32 s94, s94, 16")
        a("s_min_u32 s95, s94, 12")
        a("s_movk_i32 s94, 2400")
        a.label("L_lvl")
        a("s_sub_u32 s95, s95, 1")
        a("s_cbranch_scc1 L_lvl_done")
        a("s_mul_i32 s94, s94, 11")
        a("s_lshr_b32 s94, s94, 3")
        a("s_branch L_lvl")
        a.label("L_lvl_done")
        a("s_sub_u32 s94, s94, 2200")
    else:
        a("s_mul_i32 s94, s94, 2")
        a("s_min_u32 s94, s94, 8000")
    a.label("L_probe")
    a("s_memrealtime s[96:97]")
    a("s_waitcnt lgkmcnt(0)")
    a("s_sub_u32 s95, s96, s98")
    a("s_cmp_lt_u32 s95, s94")
    a("s_cbranch_scc1 L_probe")


def get_tag(a):
    a("s_waitcnt lgkmcnt(0)")
    if PROBE >= 20:
        a("v_mov_b32 v251, s96")
        a("s_lshl_b32 s92, s2, 2")
        a("s_add_u32 s92, s92, 0x70000")
        a("s_cmp_eq_u32 s5, 0")
        a("s_cselect_b32 s92, s92, 0x%x" % OOB)
        a("s_mov_b64 exec, 1")
        a("buffer_store_dword v251, off, s[12:15], s92 sc1")
        a.vm.pop()
        a("s_mov_b64 exec, -1")
    a("s_add_u32 s47, s47, 0x%x               ; hand-off tag of this launch" % TAGC)
    a("v_mov_b32 %s, s47" % v(VTAG))


def flag_store(a, wave=0):
    a("s_lshl_b32 s53, s2, %d" % FSH)
    a("s_add_u32 s53, s53, 0x%x" % WS_FLAG)
    a("s_cmp_eq_u32 s5, %d" % wave)
    a("s_cselect_b32 s53, s53, 0x%x" % OOB)
    a("s_mov_b64 exec, 1")
    a("buffer_store_dword %s, off, s[12:15], s53 sc1" % v(VTAG))
    a("s_mov_b64 exec, -1")


def build():
    a = Asm()
    a.raw('.amdgcn_target "amdgcn-amd-amdhsa--gfx950"')
    a.raw(".text")
    a.raw(".globl %s" % KN)
    a.raw(".p2align 8")
    a.raw(".type %s,@function" % KN)
    a.label(KN, reset=True)
    a("s_cmp_ge_u32 s2, 256")
    a("s_cbranch_scc1 L_end")
    stamp(a, 0)
    a("s_load_dwordx2 s[8:9], s[0:1], 0")
    a("s_load_dwordx2 s[12:13], s[0:1], 112")
    a("s_load_dwordx16 s[16:31], s[0:1], 48")
    if CPF:
        if CPF >= 3:
            a("s_cmp_lt_u32 s2, 176")
            a("s_cbranch_scc1 L_cpf")
        a("s_getpc_b64 s[60:61]")
        a.label("L_cpf_pc")
        a("v_lshlrev_b32 v192, %d, v0" % (7 if CPF in (1, 3) else 6))
        a("v_cmp_gt_u32 vcc, L_end-L_cpf_pc, v192")
        a("v_mov_b32 v193, 0")
        a("v_lshl_add_u64 v[192:193], v[192:193], 0, s[60:61]")
        a("s_and_saveexec_b64 s[60:61], vcc")
        a("s_cbranch_execz L_cpf")
        n = len(a.vm)
        a("global_load_dword v194, v[192:193], off")
        del a.vm[n:]
        a.label("L_cpf")
        a("s_mov_b64 exec, -1")
    a("""
    v_lshrrev_b32 v3, 6, v0               ; wave
    v_and_b32 v1, 15, v0                  ; n
    v_bfe_u32 v2, v0, 4, 2                ; q
    v_readfirstlane_b32 s5, v3
    s_and_b32 s3, s2, 7                   ; x
    s_lshr_b32 s4, s2, 3                  ; y
    v_and_b32 v250, 63, v0
    v_lshlrev_b32 v250, 4, v250           ; lane*16
    v_mov_b32 v252, -1
    v_mov_b32 v253, -1
    v_mov_b32 v254, -1
    v_mov_b32 v255, -1
    s_mov_b32 s63, 0x80000000
    """)
    a("v_cvt_f32_u32 %s, v2" % v(VQ4))
    srd(a, 8, 2048 * 1024)
    srd(a, 12, WS_SIZE)
    a("v_mul_f32 %s, 4.0, %s" % (v(VQ4), v(VQ4)))
    a("s_lshl_b32 s62, s5, 10")
    a("s_cmp_ge_u32 s4, 16")
    st0 = a.fork()
    a("s_cbranch_scc1 L_notdft")
    a("""
    s_movk_i32 s59, 128
    s_lshr_b32 s6, s4, 2
    s_lshl3_add_u32 s6, s6, s3            ; s2 index
    s_and_b32 s7, s4, 3
    v_lshlrev_b32 v5, 4, v1
    """)

    def store_addr():
        a("""
        v_and_b32 v8, 3, v3                   ; M tile
        v_lshlrev_b32 v13, 1, v2
        v_lshl_add_u32 v13, v8, 3, v13
        v_lshl_add_u32 v13, v13, 16, v5
        s_lshl_b32 s54, s6, 11
        s_lshl_b32 s55, s7, 9
        s_add_u32 s54, s54, s55
        """)
        a("s_add_u32 s54, s54, 0x%x" % WS_INTER)
        a("s_add_u32 s55, s54, 0x10000")
    a("s_lshl_b32 s44, s6, 10")
    for g in range(4):
        a("s_add_u32 s46, s7, %d" % g)
        a("s_and_b32 s46, s46, 3")
        a("s_lshl_b32 s46, s46, 8")
        a("s_add_u32 %s, s46, s44" % s(48 + g))
    a("""
    s_lshl1_add_u32 s46, s7, s5
    s_and_b32 s46, s46, 7
    s_lshl_b32 s46, s46, 3
    v_add_u32 v4, s46, v2
    v_lshl_or_b32 v6, v4, 15, v5
    v_add_u32 v7, 0x20000, v6
    s_waitcnt lgkmcnt(0)
    """)
    if GE:
        a("s_load_dword s47, s[12:13], 0x%x" % WS_GEN)
    stamp(a, 1)
    X = 16
    for i in range(4):
        for g in range(2):
            a("buffer_load_dwordx4 %s, %s, s[8:11], %s offen" % (v(X + 16 * g + 4 * i, 4), v(6 + g), s(48 + i)))
    if not GE:
        a("s_load_dword s47, s[12:13], 0x%x" % WS_GEN)
    if not LAY:
        a("s_branch L_dft")
    mark = len(a.lines)
    a.label("L_dft")
    store_addr()
    a("v_lshrrev_b32 v12, 8, v0")
    a("v_lshl_add_u32 v13, v12, 8, v13")
    if POIS == 4:
        a("s_barrier")
    if POIS < 5:
        a("buffer_store_dwordx4 v[252:255], v13, s[12:15], s54 offen sc1")
        a("buffer_store_dwordx4 v[252:255], v13, s[12:15], s55 offen sc1")
    if EPART:
        a("""
        s_mul_i32 s56, s3, 7
        s_add_u32 s56, s56, s4
        s_lshl_b32 s57, s56, 12
        s_add_u32 s57, s57, s62
        """)
        a("s_add_u32 s57, s57, 0x%x" % WS_PART)
        a("s_lshl_b32 s58, s56, %d" % KSH)
        a("s_add_u32 s58, s58, 0x%x" % (WS_KEYS + (129 << KSH)))
        a("s_cmp_lt_u32 s5, 4")
        a("s_cselect_b32 s57, s57, 0x%x" % OOB)
        a("s_cmp_lt_u32 s4, 7")
        a("s_cselect_b32 s57, s57, 0x%x" % OOB)
        a("s_cselect_b32 s58, s58, 0x%x" % OOB)
        a("buffer_store_dwordx4 v[252:255], v250, s[12:15], s57 offen sc1")
        a("v_mov_b32 v112, 0")
        a("v_mov_b32 v114, 0")
    WA = 48
    a("""
    v_lshrrev_b32 v9, 1, v1
    v_lshl_add_u32 v9, v8, 3, v9          ; slot
    v_and_b32 v10, 1, v1
    v_lshl_or_b32 v11, v9, 1, v10
    v_cmp_eq_u32 vcc, 1, v11
    v_cvt_f32_u32 v10, v10
    v_lshlrev_b32 v15, 31, v9
    v_cndmask_b32 v11, v9, 32, vcc
    """)
    a("v_mul_f32 v10, %s, v10" % f32(0.25))
    a("v_cvt_f32_u32 v11, v11")
    a("v_cndmask_b32 v10, v10, 0, vcc")
    a("v_mul_f32 v11, %s, v11" % f32(1 / 64))
    a("v_fmac_f32 v10, v11, %s" % v(VQ4))
    a("v_lshrrev_b32 v14, 16, v15")
    a("v_or_b32 v15, v15, v14")
    T = 56
    a("v_cos_f32 %s, v10" % v(T))
    for j in range(1, 8):
        a("v_add_f32 v10, v10, v11" if j != 4 else "v_fmac_f32 v10, %s, v11" % f32(13.0))
        a("v_cos_f32 %s, v10" % v(T + j))
    for j in range(4):
        a("v_cvt_pk_bf16_f32 %s, %s, %s" % (v(WA + j), v(T + 2 * j), v(T + 2 * j + 1)))
    for j in range(4):
        a("v_xor_b32 %s, v15, %s" % (v(WA + 4 + j), v(WA + j)))
    a("""
    v_mul_u32_u24 v10, 288, v4
    v_add_u32 v10, v10, v5
    v_bfe_u32 v11, v0, 2, 4
    v_mul_u32_u24 v11, 288, v11
    v_and_b32 v14, 3, v0
    v_lshl_add_u32 v11, v14, 3, v11
    v_lshl_add_u32 v11, v12, 7, v11
    s_mov_b32 s52, 0x3f803f80
    v_mov_b32 v56, 0
    v_mov_b32 v57, 0
    v_mov_b32 v58, 0
    v_mov_b32 v59, 0
    """)
    stamp(a, 2)
    U = 64
    for i in range(4):
        for g in range(2):
            a.wait_vm_for(v(X + 16 * g + 4 * i, 4))
            if i == 0 and g == 0:
                stamp(a, 3)
            for d in range(4):
                x = v(X + 16 * g + 4 * i + d)
                a("v_dot2c_f32_bf16 %s, s52, %s" % (v(56 + g), x))
                a("v_dot2c_f32_bf16 %s, %s, %s" % (v(58 + g), x, x))
            if i == 0:
                for d in range(4):
                    a("v_lshlrev_b32 %s, 16, %s" % (v(U + 8 * g + 2 * d), v(X + 16 * g + d)))
                    a("v_and_b32 %s, 0xffff0000, %s" % (v(U + 8 * g + 2 * d + 1), v(X + 16 * g + d)))
    stamp(a, 4)
    dpp_sum(a, [56, 57, 58, 59], ROR)
    for g in range(2):
        a("v_mul_f32 %s, %s, %s" % (v(56 + g), f32(1 / 512), v(56 + g)))
    for g in range(2):
        a("v_mul_f32 %s, %s, %s" % (v(60 + 2 * g), v(56 + g), v(56 + g)))
    for g in range(2):
        a("v_sub_f32 %s, %s, %s" % (v(60 + 2 * g), f32(EPS), v(60 + 2 * g)))
    for g in range(2):
        a("v_fmac_f32 %s, %s, %s" % (v(60 + 2 * g), f32(1 / 512), v(58 + g)))
    for g in range(2):
        a("v_rsq_f32 %s, %s" % (v(60 + 2 * g), v(60 + 2 * g)))
    for g in range(2):
        a("v_mul_f32 %s, %s, %s" % (v(61 + 2 * g), v(56 + g), v(60 + 2 * g)))
    for g in range(2):
        p = v(60 + 2 * g, 2)
        for d in range(4):
            u = v(U + 8 * g + 2 * d, 2)
            a("v_pk_fma_f32 %s, %s, %s, %s op_sel:[0,0,1] op_sel_hi:[1,0,1] neg_lo:[0,0,1] neg_hi:[0,0,1]" % (u, u, p, p))
        for d in range(4):
            a("v_cvt_pk_bf16_f32 %s, %s, %s" % (v(X + 16 * g + d), v(U + 8 * g + 2 * d), v(U + 8 * g + 2 * d + 1)))
        a("ds_write_b128 v10, %s offset:%d" % (v(X + 16 * g, 4), 4 * PITCH * g))
    if HF:
        a("s_lshl_b32 s53, s2, %d" % FSH)
        a("s_add_u32 s53, s53, 0x%x" % WS_FLAG)
    a("s_waitcnt vmcnt(0)")
    get_tag(a)
    if HF:
        a("s_cmp_lg_u32 s5, 7")
    a("s_barrier")
    stamp(a, 5)
    if HF:
        a("s_cbranch_scc1 L_nohint")
        a("s_mov_b64 exec, 1")
        a("buffer_store_dword %s, off, s[12:15], s53 sc1" % v(VTAG))
        if EPART:
            a("v_mov_b32 v113, %s" % v(VTAG))
            a("v_mov_b32 v115, %s" % v(VTAG))
            a("buffer_store_dwordx4 v[112:115], off, s[12:15], s58 sc1")
        a("s_mov_b64 exec, -1")
        a.label("L_nohint")
    B = 64
    for ks in range(2):
        for i in range(4):
            for hf in range(2):
                a("ds_read_b64_tr_b16 %s, v11 offset:%d" % (v(B + 16 * ks + 4 * i + 2 * hf, 2), ks * 32 * PITCH + hf * 16 * PITCH + i * 32))
    if not HF:
        flag_store(a)
    ACC = 96
    for ks in range(2):
        for i in range(4):
            a.wait_lg_for(v(B + 16 * ks + 4 * i, 4))
            acc = v(ACC + 4 * i, 4)
            a("v_mfma_f32_16x16x32_bf16 %s, %s, %s, %s" % (acc, v(WA + 4 * ks, 4), v(B + 16 * ks + 4 * i, 4), "0" if ks == 0 else acc))
    O = 16
    for i in range(4):
        for p in range(2):
            a("v_cvt_pk_bf16_f32 %s, %s, %s" % (v(O + 4 * p + i), v(ACC + 4 * i + 2 * p), v(ACC + 4 * i + 2 * p + 1)))
    for p in range(2):
        a("buffer_store_dwordx4 %s, v13, s[12:15], %s offen sc1" % (v(O + 4 * p, 4), s(54 + p)))
    stamp(a, 6)
    a("s_cmp_lg_u32 s2, %d" % XWG)
    a("s_cbranch_scc1 L_notx")
    a("s_call_b64 s[100:101], L_setup")
    a("s_branch L_p2")
    a.label("L_notx")
    a("s_cmp_lt_u32 s4, 7")
    a("s_cbranch_scc1 L_ffn")
    if not TOUCH:
        a("s_branch L_done")
    if ADEL == 2:
        a("s_waitcnt vmcnt(0)")
    a("s_sub_u32 s44, s4, 7")
    a("s_lshl3_add_u32 s44, s44, s5")
    for k in range(2):
        touch(a, 1, 196 + k, k == 0)
        if k == 0:
            a("s_add_u32 s44, s44, 64")
            a("s_cmp_ge_u32 s44, 96")
            a("s_cbranch_scc1 L_done")
    a("s_branch L_done")
    dft_block = a.lines[mark:] if not LAY else []
    if not LAY:
        del a.lines[mark:]
    a.label("L_notdft")
    a.join(st0)
    a("s_sub_u32 s59, s2, 128")
    srd(a, 36, 512 * 6144)
    a("s_cmp_ge_u32 s4, 22")
    st1 = a.fork()
    a("s_cbranch_scc1 L_notmod")
    srd(a, 32, 1024)
    a("""
    s_sub_u32 s6, s2, 128                 ; column block (64 columns)
    s_lshl_b32 s48, s6, 7
    """)
    for i in range(1, 8):
        a("s_add_u32 %s, s48, %d" % (s(48 + i), 6144 * i))
    a("""
    v_lshrrev_b32 v4, 3, v0
    v_and_b32 v5, 7, v0
    v_mul_u32_u24 v6, 0xc000, v4
    v_lshl_add_u32 v6, v5, 4, v6
    v_and_b32 v7, 3, v0
    v_lshlrev_b32 v7, 2, v7
    v_lshl_add_u32 v7, v4, 4, v7
    s_waitcnt lgkmcnt(0)
    s_mov_b64 s[36:37], s[26:27]
    s_mov_b64 s[32:33], s[24:25]
    """)
    if GE:
        a("s_load_dword s47, s[12:13], 0x%x" % WS_GEN)
    stamp(a, 1)
    a("buffer_load_dword v8, v7, s[32:35], 0 offen")
    W = 16
    for i in range(8):
        a("buffer_load_dwordx4 %s, v6, s[36:39], %s offen" % (v(W + 4 * i, 4), s(48 + i)))
    if not GE:
        a("s_load_dword s47, s[12:13], 0x%x" % WS_GEN)
    if MODFIRST == 2:
        a("s_cmp_lt_u32 s5, 4")
        a("s_cbranch_scc1 L_mod")
    if MODFIRST != 1:
        a("s_call_b64 s[100:101], L_setup")
        if not ROWL:
          a.vm += [Ins("buffer_load_dwordx4 %s, v250, s[8:11], 0 offen" % v(r, 4)) for r in (100, 104, 108)] + [Ins("buffer_store_dwordx4 v[252:255], v250, s[12:15], 0 offen")]
    a("s_branch L_mod")
    mark = len(a.lines)
    a.label("L_mod")
    a("""
    s_mov_b32 s44, 0x05040100
    s_mov_b32 s46, 0x07060302
    s_lshr_b32 s48, s6, 3
    s_cmp_eq_u32 s48, 1
    s_cselect_b32 s50, 1.0, 0
    s_cmp_eq_u32 s48, 4
    s_cselect_b32 s50, 1.0, s50
    v_lshlrev_b32 v6, 1, v2
    v_lshl_add_u32 v6, v5, 3, v6
    v_and_b32 v7, 15, v6
    v_lshrrev_b32 v9, 4, v6
    v_lshl_add_u32 v10, v7, 2, v9
    v_and_b32 v7, 3, v6
    v_lshl_add_u32 v7, v9, 2, v7
    v_bfe_u32 v9, v6, 2, 2
    v_lshl_add_u32 v7, v9, 4, v7
    v_lshlrev_b32 v9, 8, v3
    v_lshl_add_u32 v10, v10, 2, v9
    v_lshl_add_u32 v7, v7, 2, v9
    s_lshl_b32 s58, s6, 8
    """)
    for j in range(8):
        a("v_mov_b32 %s, 0" % v(48 + j))
    stamp(a, 2)
    a.wait_vm_for("v8")
    get_tag(a)
    stamp(a, 3)
    a("v_lshlrev_b32 v11, 16, v8")
    a("v_and_b32 v12, 0xffff0000, v8")
    a("v_mul_f32 v13, %s, v11" % f32(-LOG2E))
    a("v_mul_f32 v14, %s, v12" % f32(-LOG2E))
    a("""
    v_exp_f32 v13, v13
    v_exp_f32 v14, v14
    v_add_f32 v13, 1.0, v13
    v_add_f32 v14, 1.0, v14
    v_rcp_f32 v13, v13
    v_rcp_f32 v14, v14
    v_mul_f32 v11, v11, v13
    v_mul_f32 v12, v12, v14
    v_cvt_pk_bf16_f32 v8, v11, v12
    """)
    for p in range(4):
        a("v_mov_b32_dpp %s, v8 quad_perm:[%d,%d,%d,%d] row_mask:0xf bank_mask:0xf" % (v(12 + p), p, p, p, p))
    for p in range(4):
        a.wait_vm_for(v(W + 8 * p, 8))
        if ROWL and p == 3:
            if STAMPS:
                a("s_waitcnt lgkmcnt(0)")
            a("s_call_b64 s[100:101], L_rows")
        for jj in range(4):
            a("v_perm_b32 %s, %s, %s, s44" % (v(56 + 2 * jj), v(W + 8 * p + 4 + jj), v(W + 8 * p + jj)))
            a("v_perm_b32 %s, %s, %s, s46" % (v(57 + 2 * jj), v(W + 8 * p + 4 + jj), v(W + 8 * p + jj)))
        for j in range(8):
            a("v_dot2c_f32_bf16 %s, %s, %s" % (v(48 + j), v(12 + p), v(56 + j)))
    stamp(a, 4)
    if MH == 0:
        flag_store(a, 7)
    for j in range(4):
        a("v_permlane32_swap_b32 %s, %s" % (v(48 + j), v(52 + j)))
    for j in range(4):
        a("v_add_f32 %s, %s, %s" % (v(48 + j), v(48 + j), v(52 + j)))
    for j in range(2):
        a("v_permlane16_swap_b32 %s, %s" % (v(48 + j), v(50 + j)))
    for j in range(2):
        a("v_add_f32 %s, %s, %s" % (v(48 + j), v(48 + j), v(50 + j)))
    dpp_sum(a, [48, 49], ROR[:1])
    a("""
    s_mov_b32 exec_lo, 0x00ff00ff
    s_mov_b32 exec_hi, 0x00ff00ff
    s_cmp_lt_u32 s6, 16
    s_cbranch_scc1 L_mod_w4
    ds_write_b64 v7, v[48:49]
    s_branch L_mod_w
    """)
    a.label("L_mod_w4")
    a("ds_write2_b32 v10, v48, v49 offset0:0 offset1:4")
    a.label("L_mod_w")
    a("s_mov_b64 exec, -1")
    if MODFIRST == 2:
        a("s_cmp_ge_u32 s5, 4")
        a("s_cbranch_scc1 L_mod_b")
        a("s_call_b64 s[100:101], L_setup")
        a.label("L_mod_b")
    a("""
    s_waitcnt lgkmcnt(0)
    s_barrier
    """)
    if MH == 1:
        flag_store(a, 1)
    stamp(a, 5)
    a("""
    s_cmp_lg_u32 s5, 0
    s_cbranch_scc1 L_mod_end
    s_mov_b64 exec, 0xffff
    """)
    for k in range(8):
        a("ds_read_b128 %s, v250 offset:%d" % (v(16 + 4 * k, 4), 256 * k))
    a("v_mov_b32 v49, v249")
    a("v_mov_b32 v51, v249")
    for k in range(0, 8, 2):
        a.wait_lg_for(v(16 + 4 * k, 8))
        a("v_pk_add_f32 %s, %s, %s" % (v(16 + 4 * k, 2), v(16 + 4 * k, 2), v(20 + 4 * k, 2)))
        a("v_pk_add_f32 %s, %s, %s" % (v(18 + 4 * k, 2), v(18 + 4 * k, 2), v(22 + 4 * k, 2)))
    a("""
    v_pk_add_f32 v[16:17], v[16:17], v[24:25]
    v_pk_add_f32 v[18:19], v[18:19], v[26:27]
    v_pk_add_f32 v[32:33], v[32:33], v[40:41]
    v_pk_add_f32 v[34:35], v[34:35], v[42:43]
    v_pk_add_f32 v[16:17], v[16:17], v[32:33]
    v_pk_add_f32 v[18:19], v[18:19], v[34:35]
    v_cvt_pk_bf16_f32 v48, v16, v17
    v_cvt_pk_bf16_f32 v50, v18, v19
    s_cmp_eq_u32 s50, 0
    s_cbranch_scc1 L_mod_st
    v_lshlrev_b32 v16, 16, v48
    v_and_b32 v17, 0xffff0000, v48
    v_lshlrev_b32 v18, 16, v50
    v_and_b32 v19, 0xffff0000, v50
    v_pk_add_f32 v[16:17], v[16:17], 1.0 op_sel_hi:[1,0]
    v_pk_add_f32 v[18:19], v[18:19], 1.0 op_sel_hi:[1,0]
    v_cvt_pk_bf16_f32 v48, v16, v17
    v_cvt_pk_bf16_f32 v50, v18, v19
    """)
    a.label("L_mod_st")
    a("buffer_store_dwordx4 v[48:51], v250, s[12:15], s58 offen sc1")
    a("s_mov_b64 exec, -1")
    if MH == 2:
        flag_store(a)
    a.label("L_mod_end")
    if MODFIRST == 1:
        a("s_call_b64 s[100:101], L_setup")
    mod_block = a.lines[mark:]
    del a.lines[mark:]
    a.label("L_notmod")
    a.join(st1)
    a("""
    s_sub_u32 s58, s4, 22
    s_lshl3_add_u32 s7, s58, s5
    s_mul_i32 s7, s7, 0x6000
    s_lshl_b32 s44, s3, 7
    s_add_u32 s7, s7, s44
    s_add_u32 s7, s7, 0x120000
    s_add_u32 s44, s7, 4096
    v_mul_u32_u24 v4, 6144, v2
    v_bfe_u32 v5, v0, 3, 1
    v_lshl_add_u32 v4, v5, 10, v4
    v_and_b32 v5, 7, v0
    v_lshl_add_u32 v4, v5, 4, v4
    s_waitcnt lgkmcnt(0)
    s_mov_b64 s[36:37], s[26:27]
    """)
    if GE:
        a("s_load_dword s47, s[12:13], 0x%x" % WS_GEN)
    if HELP == 2:
        a("s_cmp_lt_u32 s4, 29")
        a("s_cbranch_scc1 L_nohelp")
    if HELP:
        a("buffer_load_dwordx4 v[180:183], v4, s[36:39], s7 offen")
        a("buffer_load_dwordx4 v[184:187], v4, s[36:39], s7 offen offset:2048")
        a("buffer_load_dwordx4 v[188:191], v4, s[36:39], s44 offen")
    a.label("L_nohelp")
    if not GE:
        a("s_load_dword s47, s[12:13], 0x%x" % WS_GEN)
    a("s_call_b64 s[100:101], L_setup")
    get_tag(a)
    if BT:
        a("s_cmp_ge_u32 s5, %d" % BT)
        a("s_cbranch_scc1 L_p2")
        a("s_mul_i32 s44, s58, %d" % BT)
        a("s_add_u32 s44, s44, s5")
        touch(a, 0, 195, True)
        if BT2:
            a("s_add_u32 s44, s44, 16")
            touch(a, 1, 194, False)
    a("s_branch L_p2")
    setup(a)
    a.lines += dft_block + mod_block
    a.label("L_p2", reset=True)
    a("v_add_u32 v160, %d, v250" % LDS_TAB)
    a("s_barrier")
    for k, r in enumerate((SA, SA + 4, TC, TC + 4, TS, TS + 4, FR, FI, G, G + 4, G + 8, G + 12)):
        a("ds_read_b128 %s, v160 offset:%d" % (v(r, 4), 1024 * k))
    a.vm += [Ins("buffer_load_dwordx2 %s, v7, s[8:11], 0 offen" % v(r, 2)) for r in (100, 102, 104, 106, 108, 110)]
    a("""
    s_lshl_b32 s45, s59, 12
    """)
    a("s_add_u32 s45, s45, 0x%x               ; candidate slots of this workgroup" % WS_CAND)
    srd(a, 28, 2048 * 1024)
    a("""
    s_lshl_b32 s56, s5, 6
    s_add_u32 s56, s56, s61
    s_sub_u32 s57, 2048, s56
    s_lshl_b32 s50, s57, 10
    s_lshl_b32 s49, s56, 10
    v_lshlrev_b32 v7, 5, v1
    v_lshl_add_u32 v7, v2, 3, v7          ; 32n + 8q
    s_lshl1_add_u32 s52, s4, s5
    s_and_b32 s52, s52, 7
    s_lshl_b32 s53, s52, 8
    v_lshlrev_b32 v4, 4, v1
    v_add_u32 v4, s53, v4                 ; cb*256 + n*16
    v_lshl_add_u32 v5, v2, 11, v4
    v_add_u32 v179, 0x8000, v5
    s_lshl_b32 s40, s60, 16
    s_lshl_b32 s53, s52, 3
    """)
    a("s_add_u32 s40, s40, 0x%x" % WS_INTER)
    a("""
    s_add_u32 s41, s40, 0x2000
    s_add_u32 s42, s40, 0x4000
    s_add_u32 s43, s40, 0x6000
    v_mul_u32_u24 v8, 80, v1
    v_mul_u32_u24 v9, 5120, v2
    v_add3_u32 v9, v9, s53, v8
    v_mul_u32_u24 v12, 2560, v3
    v_lshl_add_u32 v10, v2, 4, v8
    v_or_b32 v11, s61, v2
    v_cmp_eq_u32 vcc, 0, v11
    v_mov_b32 v11, 0x45000000
    v_cndmask_b32 v11, 0, v11, vcc
    """)
    a("v_add_u32 v9, %d, v9                   ; U write address" % LDS_U)
    a("v_add_u32 v12, %d, v12                 ; scratch row of this wave" % LDS_SCR)
    a("v_sub_u32 v176, v12, v10")
    a("v_add_u32 v176, %d, v176               ; mirrored position of elements 1..3 (g = 1)" % (15 * 80 + 52))
    a("v_add_u32 v178, 1280, v176")
    a("v_add_u32 v14, v10, v12")
    a("v_add_u32 v10, %d, v14                 ; U read address" % ((LDS_U - LDS_SCR) & 0xffffffff))
    a("v_cmp_eq_u32 vcc, 0, v2")
    a("v_cndmask_b32 v177, 12, 28, vcc")
    a("v_add_u32 v177, v177, v176")
    a("v_add_u32 v196, 1280, v177")
    a("v_cmp_eq_u32 vcc, 0, v250")
    a("v_cndmask_b32 v196, v196, v12, vcc")
    a("v_add_u32 v15, v12, v250")
    a("v_add_u32 v12, v12, v7")
    a("""
    s_lshl_b32 s46, s59, 5
    s_lshl2_add_u32 s46, s5, s46
    s_mov_b32 s38, 0xffffe000
    s_mov_b32 s39, 0xffffe000
    s_cmp_eq_u32 s56, 0
    s_cselect_b32 s39, 0, s39
    s_cmp_lg_u32 s59, 128
    s_cbranch_scc1 L_live
    s_mov_b32 s39, 0
    s_cmp_eq_u32 s5, 0
    s_cselect_b32 s38, s38, 0
    """)
    a.label("L_live")
    a("s_cmp_eq_u32 s38, 0")
    a("s_cselect_b32 s49, 0x%x, s49" % OOB)
    a("s_cselect_b32 s36, 0, s46")
    a("s_add_u32 s37, s46, 2")
    a("s_cmp_eq_u32 s39, 0")
    a("s_cselect_b32 s50, 0x%x, s50" % OOB)
    a("s_cselect_b32 s37, 0, s37")
    a("s_lshl_b32 s51, s3, 7")
    a("s_add_u32 s51, s51, 0x%x" % WS_PRE)
    a("s_xor_b32 s53, s4, 31")
    a("s_or_b32 s53, s53, s5")
    a("s_cselect_b32 s51, 0x%x, s51" % OOB)
    stamp(a, 7)
    L = 16
    XU, WU, XM, GAM, PP, PM = 112, 120, 160, 168, 180, 188
    VEC = 128
    GA, SB, CB, GB = VEC, VEC + 8, VEC + 16, VEC + 24

    def inter_load(ks, r):
        a("buffer_load_dwordx4 %s, %s, s[12:15], %s offen sc1" % (v(L + 16 * ks + 4 * r, 4), "v179" if ks else "v5", s(40 + r)))

    def unpack(dst, src):
        for d in range(4):
            a("v_lshlrev_b32 %s, 16, %s" % (v(dst + 2 * d), v(src + d)))
            a("v_and_b32 %s, 0xffff0000, %s" % (v(dst + 2 * d + 1), v(src + d)))

    def mirror_write(src, a0, a123, off=0):
        a("ds_write_b32 %s, %s offset:%d" % (a0, v(src), off))
        a("ds_write_b32 %s, %s offset:%d" % (a123, v(src + 1), off + 8))
        a("ds_write_b32 %s, %s offset:%d" % (a123, v(src + 2), off + 4))
        a("ds_write_b32 %s, %s offset:%d" % (a123, v(src + 3), off))

    def mirror(dst, src):
        for b, a0, a123 in ((src, "v196", "v178"), (src + 4, "v177", "v176")):
            a("ds_write_b32 %s, %s" % (a0, v(b)))
            a("ds_write_b32 %s, %s offset:8" % (a123, v(b + 1)))
            a("ds_write2_b32 %s, %s, %s offset0:1 offset1:0" % (a123, v(b + 2), v(b + 3)))
        a("ds_read_b128 %s, v14" % v(dst, 4))
        a("ds_read_b128 %s, v14 offset:1280" % v(dst + 4, 4))

    def mod_loads():
        a("buffer_load_dwordx4 v[48:51], v4, s[12:15], 0 offen offset:%d sc1" % (WS_MOD + 2048))
        a("buffer_load_dwordx4 v[64:67], v197, s[12:15], s55 offen sc1")
        if SASK:
            mod_loads.n += 1
            a("s_cmp_lg_u32 s61, 0")
            a("s_cbranch_scc1 L_nosa%d" % mod_loads.n)
        a("buffer_load_dwordx4 v[52:55], v4, s[12:15], 0 offen offset:%d sc1" % WS_MOD)
        if SASK:
            a.vm.pop()
            a.label("L_nosa%d" % mod_loads.n)

    mod_loads.n = 0

    def vec_read(reg, k):
        a("ds_read_b128 %s, v198 offset:%d" % (v(reg, 4), 2560 * k))
        a("ds_read_b128 %s, v198 offset:%d" % (v(reg + 4, 4), 2560 * k + 1280))

    def tag_check(regs_):
        a("v_xor_b32 v88, %s, v249" % v(regs_[0]))
        a("v_xor_b32 v89, %s, v249" % v(regs_[1]))
        for k, r in enumerate(regs_[2:]):
            a("v_bitop3_b32 %s, %s, %s, v249 bitop3:0xf6" % (v(88 + k % 2), v(88 + k % 2), v(r)))
        a("v_or_b32 v88, v88, v89")
        a("v_cmp_ne_u32 vcc, 0, v88")

    def widen(base, n):
        for b in range(base, base + n, 2):
            a("v_and_b32 %s, 0xffff0000, %s" % (v(b + 1), v(b)))
            a("v_lshlrev_b32 %s, 16, %s" % (v(b), v(b)))

    a("s_add_u32 s55, s62, %d" % (WS_MOD + 4096))
    a("""
    v_and_b32 v197, 3, v0
    v_lshlrev_b32 v197, 4, v197
    v_lshl_add_u32 v197, v2, 6, v197
    v_bfe_u32 v68, v0, 2, 2
    v_lshl_add_u32 v197, v68, 8, v197
    v_mul_u32_u24 v68, 80, v1
    v_lshl_add_u32 v198, v2, 4, v68
    """)
    a("v_add_u32 v198, %d, v198               ; vector read address" % LDS_VEC)
    a("""
    s_mul_i32 s53, s5, 1280
    v_add_u32 v90, s53, v198
    s_bitcmp1_b32 s5, 0
    s_cselect_b64 vcc, -1, 0
    v_cndmask_b32 v91, v196, v177, vcc
    v_cndmask_b32 v199, v178, v176, vcc
    s_lshr_b32 s53, s5, 1
    s_sub_u32 s53, s53, s5
    s_mul_i32 s53, s53, 2560
    """)
    a("s_add_u32 s53, s53, %d" % (LDS_VEC + 4 * 2560 - LDS_SCR))
    a("v_add_u32 v91, s53, v91")
    a("v_add_u32 v199, s53, v199")
    a("s_waitcnt vmcnt(0)")
    a("""
    ds_write_b128 v15, v[100:103]
    ds_write_b128 v15, v[104:107] offset:1024
    ds_read_b64 v[56:57], v12
    ds_read_b64 v[58:59], v12 offset:512
    ds_read_b64 v[84:85], v12 offset:1024
    ds_read_b64 v[86:87], v12 offset:1536
    ds_write_b128 v15, v[108:111]
    ds_read_b64 v[60:61], v12
    ds_read_b64 v[62:63], v12 offset:512
    s_waitcnt lgkmcnt(0)
    """)
    unpack(XU, 56)
    unpack(72, 84)
    unpack(WU, 60)
    mirror(XM, 72)
    a("s_bitcmp1_b32 s5, 0")
    a("s_cselect_b64 vcc, -1, 0")
    for j in range(4):
        a("v_cndmask_b32 %s, %s, %s, vcc" % (v(92 + j), v(WU + j), v(WU + 4 + j)))
    a("s_cmp_lt_u32 s5, 2")
    a("s_cselect_b64 vcc, -1, 0")
    for j in range(4):
        a("v_cndmask_b32 %s, %s, 1.0, vcc" % (v(92 + j), v(92 + j)))
    if SASK:
        a("v_mov_b32 v52, 0")
        a("v_mov_b32 v53, v249")
        a("v_mov_b32 v54, 0")
        a("v_mov_b32 v55, v249")
    a("s_mov_b32 s54, %d" % SPIN)
    a("s_waitcnt lgkmcnt(0)")
    if PROG:
        a("""
        v_and_b32 v8, 7, v0
        v_bfe_u32 v6, v0, 3, 2
        v_lshl_add_u32 v8, v6, 5, v8
        s_lshr_b32 s52, s52, 1
        """)
        a("v_lshlrev_b32 v8, %d, v8" % FSH)
        a("s_lshl_b32 s52, s52, %d" % (FSH + 3))
        a("s_add_u32 s52, s52, 0x%x" % WS_FLAG)
        a("s_mov_b32 s32, -1")
        a("s_mov_b32 s33, 0")
        a("s_mov_b32 s48, 0")
        a.label("L_poll1")
        a("s_mov_b64 exec, s[32:33]")
        a("buffer_load_dword v6, v8, s[12:15], s52 offen sc1")
        a("s_waitcnt vmcnt(0)")
        a("v_cmp_ne_u32 vcc, v6, %s" % v(VTAG))
        a("s_mov_b64 exec, -1")
        a("""
        s_mov_b32 s32, vcc_lo
        s_lshr_b32 s34, s32, 1
        s_or_b32 s34, s34, s32
        s_lshr_b32 s35, s34, 2
        s_or_b32 s34, s34, s35
        s_or_b32 s34, s34, s48
        s_andn2_b32 s34, 0x11111111, s34
        s_cbranch_scc0 L_skip7
        s_or_b32 s48, s48, s34
        """)
        for i in range(8):
            a("s_bitcmp1_b32 s34, %d" % (4 * i))
            a("s_cbranch_scc0 L_skip%d" % i)
            inter_load(i // 4, i % 4)
            a.label("L_skip%d" % i)
        a("s_cmp_eq_u32 s32, 0")
        poll_tail(a, "L_poll1")
        stamp(a, 8)
        a("s_mov_b32 s54, %d" % SPIN)
        a("s_branch L_inter_go")
        a.vm = []
    else:
        a("s_cmp_ge_u32 s5, 2")
        a("s_cbranch_scc1 L_poll1_ok")
        a("v_lshlrev_b32 v8, %d, v0" % FSH)
        a("s_mov_b32 s52, 0x%x" % WS_FLAG)
        a.label("L_poll1")
        a("buffer_load_dword v6, v8, s[12:15], s52 offen sc1")
        a("s_waitcnt vmcnt(0)")
        a("v_cmp_ne_u32 vcc, v6, %s" % v(VTAG))
        a("s_and_b64 exec, exec, vcc")
        a("s_cmp_eq_u64 exec, 0")
        poll_tail(a, "L_poll1")
        a("s_mov_b64 exec, -1")
        a("s_mov_b32 s54, %d" % SPIN)
        a("s_barrier")
        stamp(a, 8)
    if PRIO:
        a("s_cmp_lt_u32 s5, 4")
        a("s_cbranch_scc1 L_inter")
        a("s_setprio %d" % PRIO)
    a.label("L_inter")
    for ks in range(2):
        for r in range(4):
            inter_load(ks, r)
    a.label("L_inter_go")
    mod_loads()
    ACC = 96
    for ks in range(2):
        a.wait_vm_for(v(L, 32) if PROG else v(L + 16 * ks, 16))
        if ks == 1 - PROG:
            stamp(a, 9)
        TT = 68 if ks == 0 else 16
        b = L + 16 * ks
        for i in range(4):
            for hp in range(2):
                o = i & 1
                a("v_pk_mov_b32 %s, %s, %s op_sel:[%d,%d]" % (v(TT + 4 * i + 2 * hp, 2), v(b + 8 * hp + (i & 2), 2), v(b + 8 * hp + 4 + (i & 2), 2), o, o))
        for i in range(4):
            acc = v(ACC + 4 * i, 4)
            a("v_mfma_f32_16x16x32_bf16 %s, %s, %s, %s" % (acc, v(SA + 4 * ks, 4), v(TT + 4 * i, 4), "0" if ks == 0 else acc))
    a("""
    v_max3_u32 v6, v68, v69, v70
    v_max3_u32 v8, v71, v16, v17
    v_max3_u32 v6, v6, v18, v19
    v_max_u32 v6, v6, v8
    v_cmp_eq_u32 vcc, -1, v6
    s_waitcnt vmcnt(0)
    s_cmp_eq_u64 vcc, 0
    """)
    poll_tail(a, "L_inter")
    a("s_mov_b32 s54, %d" % SPIN)
    a("s_branch L_modv_chk")
    a.label("L_modv")
    mod_loads()
    a("s_waitcnt vmcnt(0)")
    a.label("L_modv_chk")
    tag_check([49, 51, 53, 55, 65, 67])
    a("v_and_b32 v65, 0xffff0000, v64")
    a("v_and_b32 v67, 0xffff0000, v66")
    a("s_cmp_eq_u64 vcc, 0")
    poll_tail(a, "L_modv")
    a("""
    v_lshlrev_b32 v64, 16, v64
    v_lshlrev_b32 v66, 16, v66
    ds_write_b128 v90, v[64:67]
    s_bitcmp1_b32 s5, 1
    s_cbranch_scc1 L_nop
    v_pk_mul_f32 v[92:93], v[92:93], v[64:65]
    v_pk_mul_f32 v[94:95], v[94:95], v[66:67]
    ds_write_b32 v91, v92
    ds_write_b32 v199, v93 offset:8
    ds_write2_b32 v199, v94, v95 offset0:1 offset1:0
    s_cmp_lt_u32 s5, 2
    s_cbranch_scc1 L_nop
    ds_write_b128 v90, v[92:95] offset:7680
    """)
    a.label("L_nop")
    if SASK:
        widen(48, 4)
        a("v_mov_b32 v53, 0")
        a("s_cmp_lg_u32 s61, 0")
        a("v_mov_b32 v55, 0")
        a("s_cbranch_scc1 L_nobias")
        widen(52, 4)
    else:
        widen(48, 8)
    for i in range(4):
        a("v_mul_f32 %s, v11, %s" % (v(52 + i), v(52 + i)))
    a.label("L_nobias")
    if FINE == 1:
        stamp(a, 1)
    P = 32
    for i in range(4):
        c = ACC + 4 * i
        a("v_fma_f32 %s, %s, %s, %s" % (v(c), v(c), v(48 + i), v(52 + i)))
        a("v_mul_f32 %s, %s, %s" % (v(c + 1), v(c + 1), v(48 + i)))
        a("v_pk_mul_f32 %s, %s, %s op_sel:[0,%d] op_sel_hi:[1,%d]" % (v(c + 2, 2), v(c + 2, 2), v(48 + (i & 2), 2), i & 1, i & 1))
        for tt in range(2):
            a("v_cvt_pk_bf16_f32 %s, %s, %s" % (v(P + 4 * tt + 2 * (i % 2) + i // 2), v(c + 2 * tt), v(c + 2 * tt + 1)))
        if i >= 2:
            for tt in range(2):
                a("ds_write_b64 v9, %s offset:%d" % (v(P + 4 * tt + 2 * (i - 2), 2), tt * 2560 + (i - 2) * 1280))
    a("s_waitcnt lgkmcnt(0)")
    if FINE == 1:
        stamp(a, 2)
    a("s_barrier")
    if FINE == 1:
        stamp(a, 3)
    D = 24
    a("ds_read_b128 %s, v10" % v(D, 4))
    a("ds_read_b128 %s, v10 offset:1280" % v(D + 4, 4))

    def notice():
        a("s_mov_b64 exec, 1")
        a("buffer_store_dword %s, off, s[12:15], s51 sc1" % v(VTAG))
        a("s_mov_b64 exec, -1")
    if PRE == 1:
        notice()
    a("v_mov_b32 v80, s38")
    a("v_mov_b32 v81, s36")
    a("v_lshlrev_b32 v11, 3, v3")
    a("v_add_u32 v11, %d, v11" % LDS_KEY)
    a("v_mov_b32 v13, %d" % LDS_KEY)
    a("s_mov_b32 exec_lo, 0")
    a("v_mov_b32 v80, s39")
    a("v_mov_b32 v81, s37")
    a("v_add_u32 v11, 4, v11")
    a("s_mov_b32 exec_lo, -1")
    BR, BI = 32, 40
    for h in range(2):
        a.wait_lg_for(v(D + 4 * h, 4))
        a("v_mfma_f32_16x16x32_bf16 %s, %s, %s, 0" % (v(BR + 4 * h, 4), v(D + 4 * h, 4), v(FR, 4)))
        a("v_mfma_f32_16x16x32_bf16 %s, %s, %s, 0" % (v(BI + 4 * h, 4), v(D + 4 * h, 4), v(FI, 4)))
    A2 = 16
    Y = 64
    for h in range(2):
        for j in range(0, 4, 2):
            br, bi, tc, ts = v(BR + 4 * h + j, 2), v(BI + 4 * h + j, 2), v(TC + 4 * h + j, 2), v(TS + 4 * h + j, 2)
            a("v_pk_mul_f32 %s, %s, %s" % (v(48 + j, 2), br, tc))
            a("v_pk_mul_f32 %s, %s, %s" % (v(52 + j, 2), bi, tc))
            a("v_pk_fma_f32 %s, %s, %s, %s" % (v(48 + j, 2), bi, ts, v(48 + j, 2)))
            a("v_pk_fma_f32 %s, %s, %s, %s neg_lo:[1,0,0] neg_hi:[1,0,0]" % (v(52 + j, 2), br, ts, v(52 + j, 2)))
        if h == 0:
            vec_read(PP, 5)
            vec_read(GA, 0)
        else:
            vec_read(GAM, 4)
            vec_read(PM, 6)
        for k in range(4):
            a("v_cvt_pk_bf16_f32 %s, %s, %s" % (v(A2 + 4 * h + k), v(48 + k), v(52 + k)))
        for gg in range(2):
            y = v(Y + 4 * gg, 4)
            a("v_mfma_f32_16x16x32_bf16 %s, %s, %s, %s" % (y, v(A2 + 4 * h, 4), v(G + 8 * h + 4 * gg, 4), "0" if h == 0 else y))
    if FINE:
        stamp(a, 4)
    if PRE == 2:
        notice()
    a("v_mov_b32 v57, %s" % v(VTAG))
    a("v_mov_b32 v59, %s" % v(VTAG))
    a("s_lshl_b32 s58, s59, %d" % KSH)
    a("s_add_u32 s58, s58, 0x%x" % WS_KEYS)
    a("s_cmp_eq_u32 s5, 0")
    a("s_cselect_b32 s58, s58, 0x%x" % OOB)
    rows = ((XU, GA, PP, 32), (XM, GAM, PM, 40))
    a.wait_lg_for(v(PP, 8))
    a("v_pk_add_f32 v[38:39], %s, %s" % (v(PP, 2), v(PP + 2, 2)))
    a("v_pk_add_f32 v[46:47], %s, %s" % (v(PP + 4, 2), v(PP + 6, 2)))
    a("v_pk_add_f32 v[38:39], v[38:39], v[46:47]")
    a("v_add_f32 v38, v38, v39")
    a("v_mov_b32 v46, v38")
    for xx, ga, pp, tp in rows:
        a.wait_lg_for(v(ga, 8))
        for e in range(0, 8, 2):
            a("v_pk_fma_f32 %s, %s, %s, %s" % (v(xx + e, 2), v(ga + e, 2), v(Y + e, 2), v(xx + e, 2)))
    XN = 72
    for xx, ga, pp, tp in rows:
        a.wait_lg_for(v(pp, 8))
        a("v_pk_add_f32 %s, %s, %s" % (v(tp, 2), v(xx, 2), v(xx + 2, 2)))
        a("v_pk_mul_f32 %s, %s, %s" % (v(tp + 2, 2), v(xx, 2), v(xx, 2)))
        a("v_pk_mul_f32 %s, %s, %s" % (v(tp + 4, 2), v(xx, 2), v(pp, 2)))
        for e in range(2, 8, 2):
            if e > 2:
                a("v_pk_add_f32 %s, %s, %s" % (v(tp, 2), v(tp, 2), v(xx + e, 2)))
            a("v_pk_fma_f32 %s, %s, %s, %s" % (v(tp + 2, 2), v(xx + e, 2), v(xx + e, 2), v(tp + 2, 2)))
            a("v_pk_fma_f32 %s, %s, %s, %s" % (v(tp + 4, 2), v(xx + e, 2), v(pp + e, 2), v(tp + 4, 2)))
        for k in range(3):
            a("v_add_f32 %s, %s, %s" % (v(tp + 2 * k), v(tp + 2 * k), v(tp + 2 * k + 1)))
    for k in (3, 0, 1, 2):
        a("v_permlane32_swap_b32 %s, %s" % (v(32 + 2 * k), v(40 + 2 * k)))
    for k in (3, 0, 1, 2):
        a("v_add_f32 %s, %s, %s" % (v(32 + 2 * k), v(32 + 2 * k), v(40 + 2 * k)))
    a("v_permlane16_swap_b32 v32, v34")
    a("v_permlane16_swap_b32 v36, v38")
    a("v_add_f32 v32, v32, v34")
    a("v_add_f32 v36, v36, v38")
    if EARLYH == 1:
        extra = []
        for b, a0, a123 in ((XM, "v196", "v178"), (XM + 4, "v177", "v176")):
            extra += ["ds_write_b32 %s, %s" % (a0, v(b)), "ds_write_b32 %s, %s offset:8" % (a123, v(b + 1)), "ds_write2_b32 %s, %s, %s offset0:1 offset1:0" % (a123, v(b + 2), v(b + 3))]
        for k, mod in enumerate(ROR):
            for r in (32, 36):
                a("v_add_f32_dpp %s, %s, %s %s" % (v(r), v(r), v(r), mod))
            for t in extra[(k * 6) // 4:((k + 1) * 6) // 4]:
                a(t)
    else:
        dpp_sum(a, [32, 36], ROR)
    if FINE == 1:
        stamp(a, 5)
    if PRE == 3:
        notice()
    a("v_mov_b32_dpp v33, v32 %s" % BC[0])
    a("v_mov_b32_dpp v37, v36 %s" % BC[0])
    a("v_mul_f32 v33, %s, v33                 ; mean" % f32(1 / 512))
    a("v_mul_f32 v34, v33, v33")
    a("v_sub_f32 v34, %s, v34" % f32(EPS))
    a("v_fmac_f32 v34, %s, v32" % f32(1 / 512))
    a("v_rsq_f32 v34, v34")
    a("""
    v_fma_f32 v36, -v33, v36, v37
    v_mul_f32 v8, v36, v34
    v_ashrrev_i32 v9, 31, v8
    v_or_b32 v9, s63, v9
    v_xor_b32 v8, v8, v9
    v_and_or_b32 v8, v8, v80, v81
    s_mov_b32 exec_lo, 0x80000000
    s_mov_b32 exec_hi, 0x80000000
    ds_write_b32 v11, v8
    s_mov_b64 exec, -1
    v_mul_f32 v35, v33, v34
    s_cmp_lg_u32 s5, 0
    s_cbranch_scc1 L_noprio
    s_setprio 3
    """)
    a.label("L_noprio")
    if EARLYH == 2:
        for b, a0, a123 in ((XM, "v196", "v178"), (XM + 4, "v177", "v176")):
            a("ds_write_b32 %s, %s" % (a0, v(b)))
            a("ds_write_b32 %s, %s offset:8" % (a123, v(b + 1)))
            a("ds_write2_b32 %s, %s, %s offset0:1 offset1:0" % (a123, v(b + 2), v(b + 3)))
        a("s_waitcnt lgkmcnt(6)")
    else:
        a("s_waitcnt lgkmcnt(0)")
    stamp(a, 10)
    a("s_barrier")
    for k in range(4):
        a("ds_read_b128 %s, v13 offset:%d" % (v(16 + 4 * k, 4), 16 * k))
    a("""
    v_readlane_b32 s56, v8, 31
    v_readlane_b32 s57, v8, 63
    v_readlane_b32 s32, v34, 31
    v_readlane_b32 s33, v35, 31
    v_readlane_b32 s34, v34, 63
    v_readlane_b32 s35, v35, 63
    s_waitcnt lgkmcnt(2)
    v_max_u32 v56, v16, v17
    v_min_u32 v58, v16, v17
    """)
    for k in range(18, 30, 4):
        if k == 22:
            a("s_waitcnt lgkmcnt(0)")
        a("v_med3_u32 v60, v56, %s, %s" % (v(k), v(k + 1)))
        a("v_max3_u32 v56, v56, %s, %s" % (v(k), v(k + 1)))
        a("v_med3_u32 v61, v56, %s, %s" % (v(k + 2), v(k + 3)))
        a("v_max3_u32 v56, v56, %s, %s" % (v(k + 2), v(k + 3)))
        a("v_max3_u32 v58, v58, v60, v61")
    a("""
    v_med3_u32 v60, v56, v30, v31
    v_max3_u32 v56, v56, v30, v31
    v_max_u32 v60, v58, v60
    v_or_b32 v58, 1, v60
    s_mov_b64 exec, 1
    buffer_store_dwordx4 v[56:59], off, s[12:15], s58 sc1
    s_mov_b64 exec, -1
    s_setprio 0
    """)
    if FINE:
        stamp(a, 6)
    vec_read(CB, 2)
    vec_read(SB, 1)
    if EARLYH:
        a("ds_read_b128 %s, v14" % v(XN, 4))
        a("ds_read_b128 %s, v14 offset:1280" % v(XN + 4, 4))
        vec_read(GB, 3)
    else:
        vec_read(GB, 3)
        mirror(XN, XM)
    a("v_readfirstlane_b32 s60, v56")
    a("v_readfirstlane_b32 s61, v60")
    H, HM = 32, 88
    OUT, OUTM, HP, HPM = 40, 44, 48, 52
    for ri, (xx, hh, sp, o, hp) in enumerate(((XU, H, 32, OUT, HP), (XN, HM, 34, OUTM, HPM))):
        if ri:
            a("s_waitcnt lgkmcnt(0)")
        a("v_mov_b32 v60, %s" % s(sp + 1))
        for e in range(8):
            a("v_fma_f32 %s, %s, %s, -v60" % (v(hh + e), v(xx + e), s(sp)))
        a.wait_lg_for(v(VEC, 32))
        for e in range(0, 8, 2):
            a("v_pk_fma_f32 %s, %s, %s, %s" % (v(hh + e, 2), v(hh + e, 2), v(CB + e, 2), v(SB + e, 2)))
        for d in range(4):
            a("v_cvt_pk_bf16_f32 %s, %s, %s" % (v(hp + d), v(hh + 2 * d), v(hh + 2 * d + 1)))
        for e in range(0, 8, 2):
            a("v_pk_fma_f32 %s, %s, %s, %s" % (v(xx + e, 2), v(GB + e, 2), v(hh + e, 2), v(xx + e, 2)))
        for d in range(4):
            a("v_cvt_pk_bf16_f32 %s, %s, %s" % (v(o + d), v(xx + 2 * d), v(xx + 2 * d + 1)))
    a("""
    ds_write_b64 v12, v[40:41]
    ds_write_b64 v12, v[42:43] offset:512
    ds_write_b64 v12, v[44:45] offset:1024
    ds_write_b64 v12, v[46:47] offset:1536
    ds_read_b128 v[40:43], v15
    ds_read_b128 v[44:47], v15 offset:1024
    s_max_u32 s61, s61, 1
    """)
    for ri, (key, off, o, hp) in enumerate((("s56", "s49", OUT, HP), ("s57", "s50", OUTM, HPM))):
        a("s_mov_b32 s58, s45")
        a("s_cmp_eq_u32 %s, s60" % key)
        a("s_cbranch_scc1 L_cand%d" % ri)
        a("s_add_u32 s58, s45, 2048")
        a("s_cmp_eq_u32 %s, s61" % key)
        a("s_cselect_b32 s53, 1, 0")
        a("s_or_b32 %s, %s, s53" % (key, key))
        a("s_cmp_eq_u32 s53, 1")
        stc = a.fork()
        a("s_cbranch_scc1 L_cand%d" % ri)
        a("s_mov_b32 %s, 0" % key)
        a("s_waitcnt lgkmcnt(0)")
        a("buffer_store_dwordx4 %s, v250, s[28:31], %s offen%s" % (v(o, 4), off, OUTF))
        a("s_branch L_next%d" % ri)
        a.label("L_cand%d" % ri)
        a.join(stc)
        a("buffer_store_dwordx4 %s, v250, s[12:15], s58 offen sc1" % v(hp, 4))
        a("s_waitcnt lgkmcnt(0)")
        a("buffer_store_dwordx4 %s, v250, s[12:15], s58 offen offset:1024 sc1" % v(o, 4))
        a.label("L_next%d" % ri)
    a.label("L_tail", reset=True)
    a("""
    s_lshl_b32 s59, s5, 8
    s_add_u32 s59, s59, s2
    s_sub_u32 s59, s59, 192
    s_cmp_lt_u32 s59, 64
    s_cselect_b32 s59, 1, 0
    s_or_b32 s60, s59, s56
    s_or_b32 s60, s60, s57
    s_cbranch_scc0 L_done
    s_lshl_b32 s45, s3, 7
    """)
    a("s_add_u32 s45, s45, 0x%x" % WS_SEL)
    a("s_cmp_eq_u32 s59, 0")
    a("s_cbranch_scc1 L_sel_go")
    a("""
    s_lshl3_add_u32 s44, s3, s4
    s_sub_u32 s44, s44, 24
    s_lshr_b32 s48, s44, 2
    s_lshl_b32 s48, s48, 5
    s_and_b32 s46, s44, 3
    s_lshl2_add_u32 s48, s46, s48
    v_and_b32 v4, 3, v0
    v_lshrrev_b32 v5, 1, v2
    v_lshl_add_u32 v5, v5, 4, v4
    v_add_u32 v5, s48, v5
    v_and_b32 v8, 0x103, v5
    v_bfe_u32 v9, v5, 2, 2
    v_lshl_add_u32 v8, v9, 6, v8
    v_bfe_u32 v9, v5, 4, 4
    v_lshl_add_u32 v8, v9, 2, v8
    v_lshlrev_b32 v8, 2, v8
    """)
    a("ds_write_b128 v15, %s" % v(GB, 4))
    a("ds_write_b128 v15, %s offset:1024" % v(GB + 4, 4))
    a("ds_read_b32 v8, v8 offset:%d           ; gb[e]" % LDS_SCR)
    a("v_pk_mul_f32 v[62:63], %s, %s" % (v(SB, 2), v(WU, 2)))
    for e in range(2, 8, 2):
        a("v_pk_fma_f32 v[62:63], %s, %s, v[62:63]" % (v(SB + e, 2), v(WU + e, 2)))
    a("v_add_f32 v62, v62, v63")
    dpp_sum(a, [62], ROR + BC)
    a("v_readlane_b32 s58, v62, 63")
    a("""
    v_bfe_u32 v9, v0, 2, 4
    v_lshlrev_b32 v9, 12, v9
    v_lshl_add_u32 v9, v4, 4, v9
    s_lshl_b32 s40, s44, 6
    v_and_b32 v10, 1, v2
    v_cmp_eq_u32 s[52:53], 1, v10
    v_mov_b32 v36, 0
    v_mov_b32 v37, 0
    v_mov_b32 v38, 0
    v_mov_b32 v39, 0
    """)
    a("s_add_u32 s40, s40, 0x%x" % WS_PART)
    a("s_add_u32 s41, s40, 0x10000")
    a("s_add_u32 s42, s40, 0x20000")
    a("s_add_u32 s43, s40, 0x30000")
    a("s_waitcnt lgkmcnt(0)")
    a.label("L_sel_go")
    a("s_mov_b32 s54, %d" % SPIN)
    a.label("L_poll_sel")
    a("buffer_load_dwordx4 v[16:19], off, s[12:15], s45 sc1")
    a("s_waitcnt vmcnt(0)")
    a("v_cmp_eq_u32 vcc, v17, %s" % v(VTAG))
    a("v_cmp_eq_u32 s[60:61], v19, %s" % v(VTAG))
    a("s_and_b64 vcc, vcc, s[60:61]")
    a("s_cmp_eq_u64 vcc, -1")
    poll_tail(a, "L_poll_sel")
    stamp(a, 11)
    a("""
    v_readfirstlane_b32 s60, v16
    v_readfirstlane_b32 s61, v18
    """)
    if LO:
        for ri, (key, off, o) in enumerate((("s56", "s49", OUT), ("s57", "s50", OUTM))):
            a("s_cmp_eq_u32 %s, 0" % key)
            a("s_cbranch_scc1 L_lo%d" % ri)
            a("s_cmp_eq_u32 %s, s60" % key)
            a("s_cbranch_scc1 L_lo%d" % ri)
            a("s_cmp_eq_u32 %s, s61" % key)
            a("s_cbranch_scc1 L_lo%d" % ri)
            a("buffer_store_dwordx4 %s, v250, s[28:31], %s offen" % (v(o, 4), off))
            a.label("L_lo%d" % ri)
    a("""
    s_cmp_eq_u32 s59, 0
    s_cbranch_scc1 L_late_out
    v_cndmask_b32 v16, v16, v18, s[52:53]
    v_bfe_u32 v17, v16, 5, 8
    v_and_b32 v18, 1, v16
    v_lshlrev_b32 v19, 12, v17
    v_lshl_add_u32 v19, v18, 11, v19
    v_lshl_add_u32 v19, v5, 1, v19
    """)
    a("s_mov_b32 s55, 0x%x" % (WS_CAND + 1024))
    a("s_mov_b32 s54, %d" % SPIN)
    a.label("L_poll_base")
    a("""
    buffer_load_ushort v20, v19, s[12:15], s55 offen sc1
    v_and_b32 v21, 7, v17
    v_bfe_u32 v22, v17, 5, 2
    v_lshl_add_u32 v21, v22, 3, v21       ; slot
    v_bfe_u32 v22, v17, 3, 2
    v_lshl_add_u32 v22, v22, 9, v21
    v_subrev_u32 v23, 992, v22
    v_cmp_eq_u32 vcc, 0, v21
    v_cndmask_b32 v23, v22, v23, vcc
    v_cmp_gt_u32 vcc, 1024, v22
    v_cndmask_b32 v21, v23, v22, vcc
    v_lshrrev_b32 v22, 7, v17
    v_lshl_add_u32 v21, v22, 10, v21
    v_bfe_u32 v22, v16, 2, 3
    v_lshl_add_u32 v21, v22, 6, v21
    v_sub_u32 v22, 2048, v21
    v_and_b32 v23, 2, v16
    v_cmp_eq_u32 vcc, 0, v23
    v_cndmask_b32 v21, v22, v21, vcc
    v_lshlrev_b32 v21, 10, v21
    v_lshl_add_u32 v21, v5, 1, v21
    """)
    if FIN == 2:
        a("buffer_load_ushort v49, v21, s[28:31], 0 offen")
    a("""
    v_and_b32 v22, 0xffffe000, v16
    v_ashrrev_i32 v23, 31, v22
    v_not_b32 v23, v23
    v_or_b32 v23, s63, v23
    v_xor_b32 v22, v22, v23
    v_add_f32 v22, s58, v22
    """)
    a("v_mul_f32 v22, %s, v22" % f32(-LOG2E))
    a("""
    v_exp_f32 v22, v22
    v_add_f32 v22, 1.0, v22
    v_rcp_f32 v22, v22
    v_mul_f32 v22, v22, v8
    s_waitcnt vmcnt(0)
    v_cmp_eq_u32 vcc, 0xffff, v20
    s_cmp_eq_u64 vcc, 0
    """)
    poll_tail(a, "L_poll_base")
    a("s_mov_b32 s54, %d" % SPIN)
    a.label("L_poll_part")
    a("""
    buffer_load_dwordx4 v[24:27], v9, s[12:15], s40 offen sc1
    buffer_load_dwordx4 v[28:31], v9, s[12:15], s41 offen sc1
    buffer_load_dwordx4 v[32:35], v9, s[12:15], s42 offen sc1
    s_mov_b32 exec_hi, 0
    buffer_load_dwordx4 v[36:39], v9, s[12:15], s43 offen sc1
    s_mov_b32 exec_hi, -1
    s_waitcnt vmcnt(0)
    v_max3_u32 v48, v24, v28, v32
    v_max_u32 v48, v48, v36
    v_cmp_eq_u32 vcc, -1, v48
    s_cmp_eq_u64 vcc, 0
    """)
    poll_tail(a, "L_poll_part")
    stamp(a, 12)
    a("""
    v_pk_add_f32 v[24:25], v[24:25], v[28:29]
    v_pk_add_f32 v[26:27], v[26:27], v[30:31]
    v_pk_add_f32 v[32:33], v[32:33], v[36:37]
    v_pk_add_f32 v[34:35], v[34:35], v[38:39]
    v_pk_add_f32 v[24:25], v[24:25], v[32:33]
    v_pk_add_f32 v[26:27], v[26:27], v[34:35]
    v_permlane32_swap_b32 v24, v26
    v_permlane32_swap_b32 v25, v27
    v_pk_add_f32 v[24:25], v[24:25], v[26:27]
    v_permlane16_swap_b32 v24, v25
    v_add_f32 v24, v24, v25
    v_lshlrev_b32 v20, 16, v20
    """)
    dpp_sum(a, [24], ROR[:2])
    a("""
    v_fmac_f32 v20, v24, v22
    v_cvt_pk_bf16_f32 v20, v20, v20
    s_mov_b32 exec_lo, 0x000f000f
    s_mov_b32 exec_hi, 0x000f000f
    buffer_store_short v20, v21, s[28:31], 0 offen OUTF
    s_mov_b64 exec, -1
    s_cmp_lg_u32 s2, 192
    s_cbranch_scc1 L_late_out
    s_mov_b64 exec, 1
    """.replace(" OUTF", " sc1" if FIN == 1 else ""))
    a("s_mov_b32 s55, 0x%x" % WS_GEN)
    a("buffer_store_dword %s, off, s[12:15], s55" % v(VTAG))
    a("s_mov_b64 exec, -1")
    if PROBE >= 0 and not PFFN:
        probe_spin(a)
    a.label("L_late_out", reset=True)
    for ri, (key, off, o) in enumerate((("s56", "s49", OUT), ("s57", "s50", OUTM)) if not LO else ()):
        nxt = "L_late1" if ri == 0 else "L_done"
        a("s_cmp_eq_u32 %s, 0" % key)
        a("s_cbranch_scc1 %s" % nxt)
        a("s_cmp_eq_u32 %s, s60" % key)
        a("s_cbranch_scc1 %s" % nxt)
        a("s_cmp_eq_u32 %s, s61" % key)
        a("s_cbranch_scc1 %s" % nxt)
        a("buffer_store_dwordx4 %s, v250, s[28:31], %s offen%s" % (v(o, 4), off, OUTF))
        if ri == 0:
            a.label("L_late1")
    a("s_branch L_done")
    a.label("L_ffn", reset=True)
    a("s_mov_b32 s58, s4")
    a("""
    s_mul_i32 s6, s3, 7
    s_add_u32 s6, s6, s58
    s_lshl_b32 s46, s6, 12
    """)
    a("s_add_u32 s46, s46, 0x%x               ; partial-sum slab" % WS_PART)
    a("s_add_u32 s45, s46, s62")
    a("s_cmp_lt_u32 s5, 4")
    a("s_cselect_b32 s45, s45, 0x%x" % OOB)
    if EPART:
        a("v_mov_b32 v33, %s" % v(VTAG))
        a("v_mov_b32 v35, %s" % v(VTAG))
        if EPART == 2:
            a("s_waitcnt vmcnt(0)")
        a("s_barrier")
    else:
        a("buffer_store_dwordx4 v[252:255], v250, s[12:15], s45 offen sc1")
        a("v_mov_b32 v33, %s" % v(VTAG))
        a("v_mov_b32 v35, %s" % v(VTAG))
        a("v_mov_b32 v32, 0")
        a("v_mov_b32 v34, 0")
        a("s_lshl_b32 s53, s6, %d" % KSH)
        a("s_add_u32 s53, s53, 0x%x" % (WS_KEYS + (129 << KSH)))
        a("s_cmp_eq_u32 s5, 0")
        a("s_cselect_b32 s53, s53, 0x%x" % OOB)
        a("s_waitcnt vmcnt(0)")
        a("s_barrier")
        a("s_mov_b64 exec, 1")
        a("buffer_store_dwordx4 v[32:35], off, s[12:15], s53 sc1")
        a("s_mov_b64 exec, -1")
    a("s_mov_b64 s[32:33], s[18:19]")
    a("s_mov_b64 s[36:37], s[20:21]")
    a("s_mov_b64 s[40:41], s[22:23]")
    srd(a, 32, 512 * 3584)
    srd(a, 36, 512 * 3584)
    srd(a, 40, 1792 * 1024)
    a("""
    s_and_b32 s44, s5, 1
    s_lshl_b32 s44, s44, 7
    s_lshr_b32 s48, s5, 1
    s_lshl2_add_u32 s44, s48, s44
    v_bfe_u32 v4, v0, 2, 2
    v_lshl_add_u32 v4, v2, 4, v4
    v_add_u32 v4, s44, v4
    v_mul_u32_u24 v4, 3584, v4
    v_and_b32 v5, 3, v0
    SWZA
    v_lshl_add_u32 v4, v5, 4, v4
    s_lshl_b32 s48, s6, 6
    s_mul_i32 s7, s5, 12288
    s_mov_b32 m0, s7
    """.replace("SWZA", "v_and_b32 v6, 1, v2\nv_lshlrev_b32 v6, 1, v6\nv_xor_b32 v5, v5, v6" if SWZ else ""))
    a("s_add_u32 s49, s48, %d" % (64 * 3584))
    a("s_add_u32 s50, s48, %d" % (256 * 3584))
    a("s_add_u32 s51, s48, %d" % (320 * 3584))
    stamp(a, 7)
    for sr in (32, 36):
        for i in range(4):
            a("buffer_load_dwordx4 v4, %s, %s offen lds" % (s(sr, 4), s(48 + i)))
            a("s_add_u32 m0, m0, 1024")
    a("""
    v_bfe_u32 v5, v0, 3, 3
    v_lshlrev_b32 v5, 10, v5
    v_and_b32 v4, 7, v0
    SWZB
    v_lshl_add_u32 v5, v4, 4, v5
    v_lshl_add_u32 v5, v3, 7, v5
    v_xor_b32 v6, SWZC, v5
    s_lshl_b32 s48, s6, 15
    """.replace("SWZB", "v_lshrrev_b32 v6, 3, v0\nv_and_b32 v6, 2, v6\nv_xor_b32 v4, v4, v6" if SWZ else "").replace("SWZC", "64" if SWZ else "0"))
    for i in range(4):
        a("buffer_load_dwordx4 %s, s[40:43], s48 offen lds" % ("v6" if i & 1 else "v5"))
        if i < 3:
            a("s_add_u32 m0, m0, 1024")
            a("s_add_u32 s48, s48, 8192")
    WF, WD = 64, 96
    a("v_lshlrev_b32 v6, %d, v0" % KSH)
    a("""
    v_bfe_u32 v4, v0, 2, 4                ; 4q + r
    v_and_b32 v5, 3, v0
    v_lshlrev_b32 v5, 3, v5
    v_lshl_add_u32 v8, v4, 6, v5
    v_add_u32 v8, s7, v8
    v_bfe_u32 v9, v0, 2, 2
    v_lshl_add_u32 v9, v2, 3, v9
    v_lshl_add_u32 v9, v9, 7, v5
    v_add_u32 v9, s7, v9
    """)
    a("""
    v_and_b32 v10, 1, v0
    v_cmp_eq_u32 s[50:51], 1, v10
    v_lshlrev_b32 v11, 7, v3
    v_lshl_add_u32 v11, v2, 4, v11
    v_lshlrev_b32 v12, 6, v10
    v_lshl_add_u32 v13, v2, 4, v12
    v_lshl_add_u32 v13, v3, 9, v13
    v_and_b32 v14, 30, v0
    v_lshl_add_u32 v14, v14, 1, v12
    v_and_b32 v12, 32, v0
    v_lshl_add_u32 v14, v12, 2, v14
    """)
    a("v_add_u32 v13, %d, v13                 ; partial write address" % LDS_RED)
    a("v_add_u32 v14, %d, v14                 ; partial read address" % LDS_RED)
    a("""
    v_lshlrev_b32 v15, 9, v3
    v_lshl_add_u32 v15, v1, 4, v15
    v_lshlrev_b32 v7, 3, v3
    v_mov_b32 v16, 0
    v_mov_b32 v18, 0
    """)
    a("v_add_u32 v7, %d, v7" % LDS_KEY2)
    a("v_mov_b32 v4, %d" % LDS_KEY2)
    if SWZ:
        a("""
        v_and_b32 v12, 1, v2
        v_lshl_add_u32 v40, v12, 5, v8
        v_xor_b32 v41, 32, v40
        v_lshl_add_u32 v42, v12, 6, v9
        v_and_b32 v12, 8, v0
        v_lshl_add_u32 v42, v12, 2, v42
        v_xor_b32 v43, 32, v42
        v_xor_b32 v44, 64, v42
        v_xor_b32 v45, 0x60, v42
        """)
    a("s_waitcnt vmcnt(0)")
    stamp(a, 8)
    for kk in range(2):
        for mt in range(4):
            for hf in range(2):
                if SWZ:
                    a("ds_read_b64_tr_b16 %s, %s offset:%d" % (v(WF + 16 * kk + 4 * mt + 2 * hf, 2), "v41" if mt % 2 else "v40", (mt // 2) * 4096 + hf * 2048 + kk * 1024))
                else:
                    a("ds_read_b64_tr_b16 %s, v8 offset:%d" % (v(WF + 16 * kk + 4 * mt + 2 * hf, 2), (mt // 2) * 4096 + hf * 2048 + kk * 1024 + (mt % 2) * 32))
    for t in range(4):
        for hf in range(2):
            if SWZ:
                a("ds_read_b64_tr_b16 %s, %s offset:%d" % (v(WD + 4 * t + 2 * hf, 2), v(42 + t), 8192 + hf * 512))
            else:
                a("ds_read_b64_tr_b16 %s, v9 offset:%d" % (v(WD + 4 * t + 2 * hf, 2), 8192 + hf * 512 + t * 32))
    a("s_lshl_b32 s52, s3, 7")
    a("s_add_u32 s55, s52, 0x%x" % WS_PRE)
    a("s_add_u32 s52, s52, 0x%x" % WS_SEL)
    a("s_or_b32 s53, s58, s5")
    a("s_cselect_b32 s52, 0x%x, s52           ; one announcing wave per group" % OOB)
    a("s_cmp_ge_u32 s5, 3")
    a("s_cbranch_scc1 L_keys_done")
    a("s_mov_b32 s54, %d" % SPIN)
    if PRE:
        a.label("L_poll_pre")
        a("buffer_load_dword v17, off, s[12:15], s55 sc1")
        a("s_waitcnt vmcnt(0)")
        a("v_cmp_eq_u32 vcc, v17, %s" % v(VTAG))
        a("s_cmp_eq_u64 vcc, -1")
        poll_tail(a, "L_poll_pre")
        a("s_mov_b32 s54, %d" % SPIN)
    stamp(a, 10)
    a("v_cmp_gt_u32 vcc, 185, v0")
    a("s_mov_b32 s55, 0x%x" % WS_KEYS)
    a("s_mov_b64 exec, vcc")
    a.label("L_poll_keys")
    a("buffer_load_dwordx4 v[16:19], v6, s[12:15], s55 offen sc1")
    a("s_waitcnt vmcnt(0)")
    a("v_cmp_ne_u32 vcc, v17, %s" % v(VTAG))
    a("v_cmp_ne_u32 s[60:61], v19, %s" % v(VTAG))
    a("s_or_b64 vcc, vcc, s[60:61]")
    a("s_and_b64 exec, exec, vcc")
    a("s_cmp_eq_u64 exec, 0")
    poll_tail(a, "L_poll_keys")
    a("s_mov_b64 exec, -1")
    for mod in ROR + BC:
        a("v_min_u32_dpp v19, v16, v16 %s" % mod)
        a("v_max_u32_dpp v18, v18, v18 %s" % mod)
        a("v_max_u32_dpp v16, v16, v16 %s" % mod)
        a("v_max_u32 v18, v18, v19")
    a("""
    s_mov_b32 exec_lo, 0
    s_mov_b32 exec_hi, 0x80000000
    ds_write2_b32 v7, v16, v18 offset0:0 offset1:1
    s_mov_b64 exec, -1
    """)
    a.label("L_keys_done")
    a("s_waitcnt lgkmcnt(0)")
    a("s_barrier")
    stamp(a, 11)
    a("ds_read_b128 v[16:19], v4")
    a("ds_read_b64 v[20:21], v4 offset:16")
    a("s_mov_b32 s55, 0x%x" % WS_CAND)
    a("s_mov_b32 s54, %d" % SPIN)
    a("""
    s_waitcnt lgkmcnt(0)
    v_med3_u32 v36, v16, v18, v20
    v_max3_u32 v32, v16, v18, v20
    v_max3_u32 v34, v17, v19, v21
    v_max_u32 v34, v34, v36
    v_cndmask_b32 v36, v32, v34, s[50:51]
    v_bfe_u32 v37, v36, 5, 8
    v_and_b32 v36, 1, v36
    v_lshl_add_u32 v11, v37, 12, v11
    v_lshl_add_u32 v11, v36, 11, v11
    """)
    a.label("L_poll_h2")
    a("""
    buffer_load_dwordx4 v[16:19], v11, s[12:15], s55 offen sc1
    buffer_load_dwordx4 v[20:23], v11, s[12:15], s55 offen offset:64 sc1
    """)
    C = 48
    for kk in range(2):
        a("s_waitcnt vmcnt(%d)" % (1 - kk))
        if kk:
            stamp(a, 12)
        for mt in range(4):
            c = v(C + 4 * mt, 4)
            a("v_mfma_f32_16x16x32_bf16 %s, %s, %s, %s" % (c, v(WF + 16 * kk + 4 * mt, 4), v(16 + 4 * kk, 4), "0" if kk == 0 else c))
    a("""
    v_max_u32 v36, v16, v20
    v_cmp_eq_u32 vcc, -1, v36
    s_cmp_eq_u64 vcc, 0
    """)
    poll_tail(a, "L_poll_h2")
    a("s_mov_b64 exec, 1")
    a("buffer_store_dwordx4 v[32:35], off, s[12:15], s52 sc1")
    a("s_mov_b32 exec_lo, 0x00030003")
    a("s_mov_b32 exec_hi, 0x00030003")
    for mt in range(4):
        a("ds_write_b128 v13, %s offset:%d" % (v(C + 4 * mt, 4), 128 * mt))
    a("s_mov_b64 exec, -1")
    a("s_waitcnt lgkmcnt(0)")
    a("s_barrier")
    a("""
    ds_read2st64_b32 v[16:17], v14 offset0:0 offset1:2
    ds_read2st64_b32 v[18:19], v14 offset0:4 offset1:6
    ds_read2st64_b32 v[20:21], v14 offset0:8 offset1:10
    ds_read2st64_b32 v[22:23], v14 offset0:12 offset1:14
    ds_read2st64_b32 v[24:25], v14 offset0:1 offset1:3
    ds_read2st64_b32 v[26:27], v14 offset0:5 offset1:7
    ds_read2st64_b32 v[28:29], v14 offset0:9 offset1:11
    ds_read2st64_b32 v[30:31], v14 offset0:13 offset1:15
    s_waitcnt lgkmcnt(4)
    v_pk_add_f32 v[16:17], v[16:17], v[18:19]
    v_pk_add_f32 v[20:21], v[20:21], v[22:23]
    v_pk_add_f32 v[16:17], v[16:17], v[20:21]
    v_add_f32 v16, v16, v17
    """)
    a("v_mul_f32 v17, %s, v16" % f32(-LOG2E))
    a("""
    v_exp_f32 v17, v17
    s_waitcnt lgkmcnt(0)
    v_pk_add_f32 v[24:25], v[24:25], v[26:27]
    v_add_f32 v17, 1.0, v17
    v_pk_add_f32 v[28:29], v[28:29], v[30:31]
    v_rcp_f32 v17, v17
    v_pk_add_f32 v[24:25], v[24:25], v[28:29]
    v_add_f32 v24, v24, v25
    v_mul_f32 v16, v16, v17
    v_mul_f32 v16, v16, v24
    v_mov_b32_dpp v17, v16 row_ror:14 row_mask:0xf bank_mask:0xf
    v_cvt_pk_bf16_f32 v20, v16, v17
    v_mov_b32_dpp v21, v20 row_ror:12 row_mask:0xf bank_mask:0xf
    v_mov_b32_dpp v22, v20 row_ror:8 row_mask:0xf bank_mask:0xf
    v_mov_b32_dpp v23, v20 row_ror:4 row_mask:0xf bank_mask:0xf
    """)
    for t in range(4):
        a("v_mfma_f32_16x16x32_bf16 %s, v[20:23], %s, 0" % (v(C + 4 * t, 4), v(WD + 4 * t, 4)))
    a("""
    s_mov_b64 exec, 0xffff
    v_mov_b32 v50, v52
    v_mov_b32 v51, v53
    buffer_store_dwordx4 v[48:51], v15, s[12:15], s46 offen sc1
    v_mov_b32 v58, v60
    v_mov_b32 v59, v61
    buffer_store_dwordx4 v[56:59], v15, s[12:15], s46 offen offset:256 sc1
    s_mov_b64 exec, -1
    """)
    stamp(a, 9)
    if PROBE >= 0 and PFFN:
        a("s_lshl_b32 s94, s2, 3")
        a("s_or_b32 s94, s94, s5")
        a("s_cmp_lg_u32 s94, %d" % (PFFN - 1))
        a("s_cbranch_scc1 L_done")
        probe_spin(a)
    a.label("L_done", reset=True)
    stamp_end(a)
    a.label("L_end")
    a("s_endpgm")
    desc = """.section .rodata,"a"
.p2align 6
.amdhsa_kernel %s
  .amdhsa_next_free_vgpr 256
  .amdhsa_next_free_sgpr 102
  .amdhsa_accum_offset 256
  .amdhsa_group_segment_fixed_size 0
  .amdhsa_kernarg_size 120
  .amdhsa_user_sgpr_count 2
  .amdhsa_user_sgpr_kernarg_segment_ptr 1
  .amdhsa_system_sgpr_workgroup_id_x 1
.end_amdhsa_kernel
""" % KN
    return HEADER + "; @launch grid=(256,1,1) block=(512,1,1) lds=%d\n" % LDS_TOTAL + DOC + a.text() + desc


if __name__ == "__main__":
    out = sys.argv[1] if len(sys.argv) > 1 and sys.argv[1].endswith(".s") else "v13.s"
    open(out, "w").write(build())
    print("wrote", out)
```

```python
import sys, struct
from asmlib import Asm, Ins, v, s

NAME = "adaLN_cond__spectral_fnet__moe_arch_mod__prompt"
KN = NAME + "_kernel"
HEADER = open("cdna_kernels/%s.s.ref" % NAME).read().split("; Override launch geometry")[0]


def opt(name, default):
    for x in sys.argv:
        if x.startswith("--%s=" % name):
            return int(x.split("=")[1], 0)
    return default


STAMPS = "--stamps" in sys.argv
PROBE = opt("probe", -1)
KSH = opt("ksh", 6)
FSH = opt("fsh", 8)
HELP = opt("help", 1)
POIS = opt("pois", 4)
OUTF = ("", " sc1", " nt", " sc0 sc1", " sc1 nt")[opt("outf", 1)]
EARLYH = opt("earlyh", 2)
MODFIRST = opt("modfirst", 0)
ROWL = opt("rowl", 1)
MH = opt("mh", 9)
PLATE = opt("plate", 0)
OUTL = opt("outl", 0)
FINE = opt("fine", 0)
PROG = opt("prog", 0)
TMIN = opt("tmin", -1)
PFFN = opt("pffn", 0)
FIN = opt("fin", 0)
HF = opt("hf", 1)
LO = opt("lo", 1)
ADEL = opt("adel", 2)
SASK = opt("sask", 0)
CA16 = opt("ca16", 0)
GE = opt("ge", 1)
PRIO = opt("prio", 0)
EPART = opt("epart", 0)
BT2 = opt("bt2", 0)
SWZ = opt("swz", 1)
BDEL = opt("bdel", 0)
BT = opt("bt", 8)
SENT = opt("sent", 0)
FDEL = opt("fdel", 0)
SW = opt("sw", 4)
PRE = opt("pre", 3)
CPOS = opt("cpos", 0)
CPF = opt("cpf", 0)
TOUCH = opt("touch", 1)

WS_MOD = 0x0
WS_GEN = 0x3000
WS_SEL = 0x3400
WS_PRE = 0x3800
WS_FLAG = 0x8000
WS_KEYS = 0x40000
WS_PART = 0x80000
WS_CAND = 0x100000
WS_INTER = 0x200000
WS_SIZE = 0x400000
WS_STAMP = 0x600000
if STAMPS:
    WS_SIZE = 0x800000
EPS = 1e-5
TAGC = 0x9E3779B9
SPIN = 1 << 15
OOB = 0x7fff0000
PITCH = 288
XWG = 120

LDS_U = 20480
LDS_SCR = LDS_U + 20480
LDS_VEC = LDS_SCR + 20480
LDS_KEY = LDS_VEC + 7 * 2560
LDS_TAB = LDS_KEY + 128
LDS_RED = 98304
LDS_KEY2 = LDS_RED + 4096
LDS_TOTAL = LDS_KEY2 + 64

FR, FI, TC, TS, G, SA = 200, 204, 208, 216, 224, 240
VQ4, VTAG, VL16 = 248, 249, 250
LOG2E = 1.4426950408889634


DOC = """; ---------------------------------------------------------------------------------------------
;   y = Re(F_2048 . h . F_512) is evaluated as a factorised DFT (2048 = 64 x 32, 512 = 16 x 32) on bf16 MFMA,
; Workgroups 0..127   : LayerNorm + DFT-64 over rows s = 32*s1 + s2 (128-column slice each) -> d_ws.
; Workgroups 128..175 : mod = silu(c) @ w_mod (64 columns each); 176..255 pull w_mod / expert weights into L2.
; Hand-offs go through d_ws with write-through (sc1) stores and sc1 loads. Every word handed over is validated by
; ---------------------------------------------------------------------------------------------
"""


def f32(x):
    return "0x%08x" % struct.unpack("<I", struct.pack("<f", x))[0]


def srd(a, base, nbytes):
    a("s_mov_b32 %s, 0x%x" % (s(base + 2), nbytes))
    a("s_mov_b32 %s, 0x20000" % s(base + 3))


NST = 14


def stamp(a, i):
    if PROBE >= 0 and i == 0:
        a("s_memrealtime s[96:97]")
    if PROBE == i:
        a("s_memrealtime s[92:93]")
    if not STAMPS:
        return
    if i == 0:
        a("s_memrealtime s[96:97]")
        for k in range(1, NST):
            a("s_mov_b32 %s, 0" % s(64 + 2 * k))
    a("s_memtime %s" % s(64 + 2 * i, 2))


def stamp_end(a):
    if not STAMPS:
        return
    a("s_waitcnt vmcnt(0)")
    a("s_memtime %s" % s(64 + 2 * (NST - 1), 2))
    a("s_memrealtime s[98:99]")
    a("s_mov_b64 exec, 1")
    a("s_lshl_b32 s93, s2, 3")
    a("s_add_u32 s93, s93, s5")
    a("s_lshl_b32 s93, s93, 6")
    a("s_add_u32 s93, s93, 0x%x" % WS_STAMP)
    a("s_waitcnt lgkmcnt(0)")
    a("v_mov_b32 v16, s96")
    a("v_mov_b32 v17, s98")
    for k in range(NST):
        a("v_mov_b32 %s, %s" % (v(18 + k), s(64 + 2 * k)))
    for k in range(4):
        a("buffer_store_dwordx4 %s, off, s[12:15], s93 offset:%d" % (v(16 + 4 * k, 4), 16 * k))


ROR = ["row_ror:%d row_mask:0xf bank_mask:0xf" % r for r in (8, 4, 2, 1)]
BC = ["row_bcast:15 row_mask:0xa bank_mask:0xf", "row_bcast:31 row_mask:0xc bank_mask:0xf"]


def dpp_sum(a, regs_, mods):
    for mod in mods:
        for r in regs_:
            a("v_add_f32_dpp %s, %s, %s %s" % (v(r), v(r), v(r), mod))


def poll_tail(a, label, cnt="s54"):
    a("s_cbranch_scc1 %s_ok" % label)
    a("s_sub_u32 %s, %s, 1" % (cnt, cnt))
    a("s_cbranch_scc0 %s" % label)
    a.label(label + "_ok")


def setup(a):
    a.label("L_setup", reset=True)
    a("""
    s_lshr_b32 s60, s59, 5
    s_lshl3_add_u32 s60, s60, s3
    s_and_b32 s60, s60, 31
    s_bfe_u32 s61, s59, 0x20003
    s_lshl_b32 s61, s61, 9
    s_add_u32 s61, s61, s60
    s_sub_u32 s94, s61, 992
    s_cmp_ge_u32 s61, 1024
    s_cselect_b32 s94, s94, s61
    s_mov_b32 s95, 0xffff0000
    s_cselect_b32 s95, s95, 0x0000ffff
    s_cmp_eq_u32 s60, 0
    s_cselect_b32 s61, s94, s61
    s_cselect_b32 s95, s95, -1
    """)
    a("s_cselect_b32 s94, 0, %s" % f32(-0.25))
    a("""
    s_cmp_eq_u32 s59, 128
    s_cselect_b32 s61, 1024, s61
    v_lshrrev_b32 v160, 1, v1
    v_lshlrev_b32 v160, 6, v160
    v_add_u32 v160, s61, v160
    v_cvt_f32_u32 v160, v160
    v_and_b32 v161, 1, v1
    v_cvt_f32_u32 v161, v161
    """.replace("CANDBASE", "0x%x" % WS_CAND))
    a("v_lshl_add_u32 v162, v3, 2, v2")
    a("v_cvt_f32_u32 v162, v162")
    a("v_mul_f32 v160, %s, v160" % f32(1 / 2048))
    a("v_mul_f32 v161, %s, v161" % f32(0.25))
    a("v_fmac_f32 v161, v160, v162")
    a("""
    v_add_f32 v162, s94, v161
    v_cos_f32 v163, v161
    v_cos_f32 v162, v162
    v_and_b32 v164, 3, v3
    v_lshl_add_u32 v165, v2, 2, v164
    v_mul_u32_u24 v165, v165, v1          ; n*(4q+j)
    v_lshrrev_b32 v166, 2, v3
    v_mul_u32_u24 v167, v166, v1
    v_lshl_add_u32 v167, v167, 4, v165    ; n*(16h+4q+j)
    v_cvt_f32_u32 v165, v165
    v_cvt_f32_u32 v167, v167
    v_cvt_pk_bf16_f32 v163, v163, v162
    s_cmp_lt_u32 s5, 4
    """)
    a("s_mov_b32 s94, %s" % f32(1 / 32))
    a("s_cselect_b32 s94, %s, s94" % f32(1 / 16))
    a("v_mul_f32 v167, %s, v167" % f32(1 / 512))
    a("""
    v_mul_f32 v165, s94, v165
    v_and_b32 v163, s95, v163
    v_cos_f32 v168, v167
    v_sin_f32 v169, v167
    v_cos_f32 v170, v165
    v_sin_f32 v171, v165
    v_lshl_add_u32 v164, v164, 2, v250
    v_lshl_add_u32 v164, v166, 10, v164
    """)
    a("v_add_u32 v164, %d, v164" % LDS_TAB)
    a("""
    ds_write_b32 v164, v163
    ds_write2st64_b32 v164, v168, v169 offset0:8 offset1:16
    v_cvt_pk_bf16_f32 v172, v170, v171
    s_cbranch_scc0 L_setup_g
    v_cvt_pk_bf16_f32 v173, -v171, v170
    ds_write2st64_b32 v164, v172, v173 offset0:24 offset1:28
    s_branch L_setup_end
    """)
    a.label("L_setup_g")
    a("""
    s_bitcmp1_b32 s5, 0
    s_cselect_b32 s94, 0x80008000, 0
    v_lshlrev_b32 v170, 31, v1
    v_lshrrev_b32 v171, 16, v170
    v_xor_b32 v173, s94, v172
    v_bitop3_b32 v174, v172, v170, v171 bitop3:0x96
    ds_write2st64_b32 v164, v172, v173 offset0:28 offset1:32
    v_xor_b32 v175, s94, v174
    ds_write2st64_b32 v164, v174, v175 offset0:36 offset1:40
    """)
    a.label("L_setup_end")
    a("s_waitcnt lgkmcnt(0)")
    if ROWL:
        a("s_sub_u32 s40, s4, 16")
        a("s_cmp_lt_u32 s40, 6")
        a("s_cbranch_scc1 L_setup_ret")
    if BDEL:
        a("s_waitcnt vmcnt(0)")
    a.label("L_rows")
    a("""
    s_lshl_b32 s40, s5, 6
    s_add_u32 s40, s40, s61
    s_sub_u32 s41, 2048, s40
    s_lshl_b32 s40, s40, 10
    s_lshl_b32 s41, s41, 10
    s_mov_b64 s[24:25], s[16:17]
    s_movk_i32 s26, 1024
    s_mov_b32 s27, 0x20000
    buffer_load_dwordx4 v[100:103], v250, s[8:11], s40 offen
    buffer_load_dwordx4 v[104:107], v250, s[8:11], s41 offen
    buffer_load_dwordx4 v[108:111], v250, s[24:27], 0 offen
    s_lshl_b32 s40, s59, 12
    s_add_u32 s40, s40, s62
    s_add_u32 s40, s40, CANDBASE
    s_cmp_lt_u32 s5, 4
    s_cselect_b32 s40, s40, 0x7fff0000
    buffer_store_dwordx4 v[252:255], v250, s[12:15], s40 offen sc1
    """.replace("CANDBASE", "0x%x" % WS_CAND))
    a.label("L_setup_ret")
    a("s_setpc_b64 s[100:101]")


def touch(a, half, dst, first):
    if first:
        a("""
        v_bfe_u32 v4, v0, 3, 3
        v_and_b32 v5, 7, v0
        v_lshlrev_b32 v5, 6, v5
        s_mov_b32 s34, 0x1c0000
        s_mov_b32 s35, 0x20000
        """)
    a("""
    s_and_b32 s46, s44, 31
    s_mul_i32 s48, s3, 448
    s_mul_i32 s49, s46, 57344
    s_add_u32 s48, s48, s49
    s_lshl_b32 s49, s3, 5
    s_add_u32 s49, s49, s46
    s_mul_i32 s49, s49, 7168
    """)
    if half:
        a("s_add_u32 s48, s48, 28672")
        a("s_add_u32 s49, s49, 512")
    a("""
    s_cmp_lt_u32 s44, 32
    s_cselect_b64 s[32:33], s[18:19], s[20:21]
    s_movk_i32 s50, 3584
    s_cmp_ge_u32 s44, 64
    s_cselect_b64 s[32:33], s[22:23], s[32:33]
    s_cselect_b32 s50, 1024, s50
    s_cselect_b32 s48, s49, s48
    v_mad_u32_u24 v6, v4, s50, v5
    """)
    a("buffer_load_dword %s, v6, s[32:35], s48 offen" % v(dst))


def probe_spin(a):
    a("s_waitcnt vmcnt(0)")
    a("s_memrealtime s[98:99]")
    a("s_waitcnt lgkmcnt(0)")
    if PROBE >= 20:
        a("s_mov_b32 s92, 0x70000")
        a("buffer_load_dwordx4 v[60:63], v250, s[12:15], s92 offen sc1")
        a("s_waitcnt vmcnt(0)")
        for r in range(60, 64):
            a("v_subrev_u32 v%d, s96, v%d" % (r, r))
        a("v_min3_i32 v64, v60, v61, v62")
        a("v_min_i32 v64, v64, v63")
        a("v_max3_i32 v65, v60, v61, v62")
        a("v_max_i32 v65, v65, v63")
        for mod in ROR + BC:
            a("v_min_i32_dpp v64, v64, v64 %s" % mod)
            a("v_max_i32_dpp v65, v65, v65 %s" % mod)
        a("v_readlane_b32 s92, v64, 63")
        a("v_readlane_b32 s93, v65, 63")
        if PROBE == 20:
            a("s_sub_u32 s94, s93, s92")
        elif PROBE == 21:
            a("s_sub_u32 s94, 0, s92")
        else:
            a("s_sub_u32 s94, s98, s96")
            a("s_sub_u32 s94, s94, s92")
    else:
        a("s_sub_u32 s94, %s, s96" % ("s98" if PROBE == 13 else "s92"))
    if TMIN >= 0:
        a("s_max_u32 s94, s94, %d" % TMIN)
        a("s_sub_u32 s94, s94, %d" % TMIN)
        a("s_mul_i32 s94, s94, 2622")
        a("s_lshr_b32 s94, s94, 16")
        a("s_min_u32 s95, s94, 12")
        a("s_movk_i32 s94, 2400")
        a.label("L_lvl")
        a("s_sub_u32 s95, s95, 1")
        a("s_cbranch_scc1 L_lvl_done")
        a("s_mul_i32 s94, s94, 11")
        a("s_lshr_b32 s94, s94, 3")
        a("s_branch L_lvl")
        a.label("L_lvl_done")
        a("s_sub_u32 s94, s94, 2200")
    else:
        a("s_mul_i32 s94, s94, 2")
        a("s_min_u32 s94, s94, 8000")
    a.label("L_probe")
    a("s_memrealtime s[96:97]")
    a("s_waitcnt lgkmcnt(0)")
    a("s_sub_u32 s95, s96, s98")
    a("s_cmp_lt_u32 s95, s94")
    a("s_cbranch_scc1 L_probe")


def get_tag(a):
    a("s_waitcnt lgkmcnt(0)")
    if PROBE >= 20:
        a("v_mov_b32 v251, s96")
        a("s_lshl_b32 s92, s2, 2")
        a("s_add_u32 s92, s92, 0x70000")
        a("s_cmp_eq_u32 s5, 0")
        a("s_cselect_b32 s92, s92, 0x%x" % OOB)
        a("s_mov_b64 exec, 1")
        a("buffer_store_dword v251, off, s[12:15], s92 sc1")
        a.vm.pop()
        a("s_mov_b64 exec, -1")
    a("s_add_u32 s47, s47, 0x%x               ; hand-off tag of this launch" % TAGC)
    a("v_mov_b32 %s, s47" % v(VTAG))


def flag_store(a, wave=0):
    a("s_lshl_b32 s53, s2, %d" % FSH)
    a("s_add_u32 s53, s53, 0x%x" % WS_FLAG)
    a("s_cmp_eq_u32 s5, %d" % wave)
    a("s_cselect_b32 s53, s53, 0x%x" % OOB)
    a("s_mov_b64 exec, 1")
    a("buffer_store_dword %s, off, s[12:15], s53 sc1" % v(VTAG))
    a("s_mov_b64 exec, -1")


def build():
    a = Asm()
    a.raw('.amdgcn_target "amdgcn-amd-amdhsa--gfx950"')
    a.raw(".text")
    a.raw(".globl %s" % KN)
    a.raw(".p2align 8")
    a.raw(".type %s,@function" % KN)
    a.label(KN, reset=True)
    a("s_cmp_ge_u32 s2, 256")
    a("s_cbranch_scc1 L_end")
    stamp(a, 0)
    a("s_load_dwordx2 s[8:9], s[0:1], 0")
    a("s_load_dwordx2 s[12:13], s[0:1], 112")
    a("s_load_dwordx16 s[16:31], s[0:1], 48")
    if CPF:
        a("s_getpc_b64 s[60:61]")
        a.label("L_cpf_pc")
        a("v_lshlrev_b32 v192, %d, v0" % (7 if CPF == 1 else 6))
        a("v_cmp_gt_u32 vcc, L_end-L_cpf_pc, v192")
        a("v_mov_b32 v193, 0")
        a("v_lshl_add_u64 v[192:193], v[192:193], 0, s[60:61]")
        a("s_and_saveexec_b64 s[60:61], vcc")
        a("s_cbranch_execz L_cpf")
        n = len(a.vm)
        a("global_load_dword v198, v[192:193], off")
        del a.vm[n:]
        a.label("L_cpf")
        a("s_mov_b64 exec, -1")
    a("""
    v_lshrrev_b32 v3, 6, v0               ; wave
    v_and_b32 v1, 15, v0                  ; n
    v_bfe_u32 v2, v0, 4, 2                ; q
    v_readfirstlane_b32 s5, v3
    s_and_b32 s3, s2, 7                   ; x
    s_lshr_b32 s4, s2, 3                  ; y
    v_and_b32 v250, 63, v0
    v_lshlrev_b32 v250, 4, v250           ; lane*16
    v_mov_b32 v252, -1
    v_mov_b32 v253, -1
    v_mov_b32 v254, -1
    v_mov_b32 v255, -1
    s_mov_b32 s63, 0x80000000
    """)
    a("v_cvt_f32_u32 %s, v2" % v(VQ4))
    srd(a, 8, 2048 * 1024)
    srd(a, 12, WS_SIZE)
    a("v_mul_f32 %s, 4.0, %s" % (v(VQ4), v(VQ4)))
    a("s_lshl_b32 s62, s5, 10")
    a("s_cmp_ge_u32 s4, 16")
    st0 = a.fork()
    a("s_cbranch_scc1 L_notdft")
    a("""
    s_movk_i32 s59, 128
    s_lshr_b32 s6, s4, 2
    s_lshl3_add_u32 s6, s6, s3            ; s2 index
    s_and_b32 s7, s4, 3
    v_lshlrev_b32 v5, 4, v1
    """)

    def store_addr():
        a("""
        v_and_b32 v8, 3, v3                   ; M tile
        v_lshlrev_b32 v13, 1, v2
        v_lshl_add_u32 v13, v8, 3, v13
        v_lshl_add_u32 v13, v13, 16, v5
        s_lshl_b32 s54, s6, 11
        s_lshl_b32 s55, s7, 9
        s_add_u32 s54, s54, s55
        """)
        a("s_add_u32 s54, s54, 0x%x" % WS_INTER)
        a("s_add_u32 s55, s54, 0x10000")
    a("s_lshl_b32 s44, s6, 10")
    for g in range(4):
        a("s_add_u32 s46, s7, %d" % g)
        a("s_and_b32 s46, s46, 3")
        a("s_lshl_b32 s46, s46, 8")
        a("s_add_u32 %s, s46, s44" % s(48 + g))
    a("""
    s_lshl1_add_u32 s46, s7, s5
    s_and_b32 s46, s46, 7
    s_lshl_b32 s46, s46, 3
    v_add_u32 v4, s46, v2
    v_lshl_or_b32 v6, v4, 15, v5
    v_add_u32 v7, 0x20000, v6
    s_waitcnt lgkmcnt(0)
    """)
    if GE:
        a("s_load_dword s47, s[12:13], 0x%x" % WS_GEN)
    stamp(a, 1)
    X = 16
    for i in range(4):
        for g in range(2):
            a("buffer_load_dwordx4 %s, %s, s[8:11], %s offen" % (v(X + 16 * g + 4 * i, 4), v(6 + g), s(48 + i)))
    if not GE:
        a("s_load_dword s47, s[12:13], 0x%x" % WS_GEN)
    a("s_branch L_dft")
    mark = len(a.lines)
    a.label("L_dft")
    store_addr()
    a("v_lshrrev_b32 v12, 8, v0")
    a("v_lshl_add_u32 v13, v12, 8, v13")
    if POIS == 4:
        a("s_barrier")
    if POIS < 5:
        a("buffer_store_dwordx4 v[252:255], v13, s[12:15], s54 offen sc1")
        a("buffer_store_dwordx4 v[252:255], v13, s[12:15], s55 offen sc1")
    if EPART:
        a("""
        s_mul_i32 s56, s3, 7
        s_add_u32 s56, s56, s4
        s_lshl_b32 s57, s56, 12
        s_add_u32 s57, s57, s62
        """)
        a("s_add_u32 s57, s57, 0x%x" % WS_PART)
        a("s_lshl_b32 s58, s56, %d" % KSH)
        a("s_add_u32 s58, s58, 0x%x" % (WS_KEYS + (129 << KSH)))
        a("s_cmp_lt_u32 s5, 4")
        a("s_cselect_b32 s57, s57, 0x%x" % OOB)
        a("s_cmp_lt_u32 s4, 7")
        a("s_cselect_b32 s57, s57, 0x%x" % OOB)
        a("s_cselect_b32 s58, s58, 0x%x" % OOB)
        a("buffer_store_dwordx4 v[252:255], v250, s[12:15], s57 offen sc1")
        a("v_mov_b32 v112, 0")
        a("v_mov_b32 v114, 0")
    WA = 48
    a("""
    v_lshrrev_b32 v9, 1, v1
    v_lshl_add_u32 v9, v8, 3, v9          ; slot
    v_and_b32 v10, 1, v1
    v_lshl_or_b32 v11, v9, 1, v10
    v_cmp_eq_u32 vcc, 1, v11
    v_cvt_f32_u32 v10, v10
    v_lshlrev_b32 v15, 31, v9
    v_cndmask_b32 v11, v9, 32, vcc
    """)
    a("v_mul_f32 v10, %s, v10" % f32(0.25))
    a("v_cvt_f32_u32 v11, v11")
    a("v_cndmask_b32 v10, v10, 0, vcc")
    a("v_mul_f32 v11, %s, v11" % f32(1 / 64))
    a("v_fmac_f32 v10, v11, %s" % v(VQ4))
    a("v_lshrrev_b32 v14, 16, v15")
    a("v_or_b32 v15, v15, v14")
    T = 56
    a("v_cos_f32 %s, v10" % v(T))
    for j in range(1, 8):
        a("v_add_f32 v10, v10, v11" if j != 4 else "v_fmac_f32 v10, %s, v11" % f32(13.0))
        a("v_cos_f32 %s, v10" % v(T + j))
    for j in range(4):
        a("v_cvt_pk_bf16_f32 %s, %s, %s" % (v(WA + j), v(T + 2 * j), v(T + 2 * j + 1)))
    for j in range(4):
        a("v_xor_b32 %s, v15, %s" % (v(WA + 4 + j), v(WA + j)))
    a("""
    v_mul_u32_u24 v10, 288, v4
    v_add_u32 v10, v10, v5
    v_bfe_u32 v11, v0, 2, 4
    v_mul_u32_u24 v11, 288, v11
    v_and_b32 v14, 3, v0
    v_lshl_add_u32 v11, v14, 3, v11
    v_lshl_add_u32 v11, v12, 7, v11
    s_mov_b32 s52, 0x3f803f80
    v_mov_b32 v56, 0
    v_mov_b32 v57, 0
    v_mov_b32 v58, 0
    v_mov_b32 v59, 0
    """)
    stamp(a, 2)
    U = 64
    for i in range(4):
        for g in range(2):
            a.wait_vm_for(v(X + 16 * g + 4 * i, 4))
            if i == 0 and g == 0:
                stamp(a, 3)
            for d in range(4):
                x = v(X + 16 * g + 4 * i + d)
                a("v_dot2c_f32_bf16 %s, s52, %s" % (v(56 + g), x))
                a("v_dot2c_f32_bf16 %s, %s, %s" % (v(58 + g), x, x))
            if i == 0:
                for d in range(4):
                    a("v_lshlrev_b32 %s, 16, %s" % (v(U + 8 * g + 2 * d), v(X + 16 * g + d)))
                    a("v_and_b32 %s, 0xffff0000, %s" % (v(U + 8 * g + 2 * d + 1), v(X + 16 * g + d)))
    stamp(a, 4)
    dpp_sum(a, [56, 57, 58, 59], ROR)
    for g in range(2):
        a("v_mul_f32 %s, %s, %s" % (v(56 + g), f32(1 / 512), v(56 + g)))
    for g in range(2):
        a("v_mul_f32 %s, %s, %s" % (v(60 + 2 * g), v(56 + g), v(56 + g)))
    for g in range(2):
        a("v_sub_f32 %s, %s, %s" % (v(60 + 2 * g), f32(EPS), v(60 + 2 * g)))
    for g in range(2):
        a("v_fmac_f32 %s, %s, %s" % (v(60 + 2 * g), f32(1 / 512), v(58 + g)))
    for g in range(2):
        a("v_rsq_f32 %s, %s" % (v(60 + 2 * g), v(60 + 2 * g)))
    for g in range(2):
        a("v_mul_f32 %s, %s, %s" % (v(61 + 2 * g), v(56 + g), v(60 + 2 * g)))
    for g in range(2):
        p = v(60 + 2 * g, 2)
        for d in range(4):
            u = v(U + 8 * g + 2 * d, 2)
            a("v_pk_fma_f32 %s, %s, %s, %s op_sel:[0,0,1] op_sel_hi:[1,0,1] neg_lo:[0,0,1] neg_hi:[0,0,1]" % (u, u, p, p))
        for d in range(4):
            a("v_cvt_pk_bf16_f32 %s, %s, %s" % (v(X + 16 * g + d), v(U + 8 * g + 2 * d), v(U + 8 * g + 2 * d + 1)))
        a("ds_write_b128 v10, %s offset:%d" % (v(X + 16 * g, 4), 4 * PITCH * g))
    if HF:
        a("s_lshl_b32 s53, s2, %d" % FSH)
        a("s_add_u32 s53, s53, 0x%x" % WS_FLAG)
    a("s_waitcnt vmcnt(0)")
    get_tag(a)
    if HF:
        a("s_cmp_lg_u32 s5, 7")
    a("s_barrier")
    stamp(a, 5)
    if HF:
        a("s_cbranch_scc1 L_nohint")
        a("s_mov_b64 exec, 1")
        a("buffer_store_dword %s, off, s[12:15], s53 sc1" % v(VTAG))
        if EPART:
            a("v_mov_b32 v113, %s" % v(VTAG))
            a("v_mov_b32 v115, %s" % v(VTAG))
            a("buffer_store_dwordx4 v[112:115], off, s[12:15], s58 sc1")
        a("s_mov_b64 exec, -1")
        a.label("L_nohint")
    B = 64
    for ks in range(2):
        for i in range(4):
            for hf in range(2):
                a("ds_read_b64_tr_b16 %s, v11 offset:%d" % (v(B + 16 * ks + 4 * i + 2 * hf, 2), ks * 32 * PITCH + hf * 16 * PITCH + i * 32))
    if not HF:
        flag_store(a)
    ACC = 96
    for ks in range(2):
        for i in range(4):
            a.wait_lg_for(v(B + 16 * ks + 4 * i, 4))
            acc = v(ACC + 4 * i, 4)
            a("v_mfma_f32_16x16x32_bf16 %s, %s, %s, %s" % (acc, v(WA + 4 * ks, 4), v(B + 16 * ks + 4 * i, 4), "0" if ks == 0 else acc))
    O = 16
    for i in range(4):
        for p in range(2):
            a("v_cvt_pk_bf16_f32 %s, %s, %s" % (v(O + 4 * p + i), v(ACC + 4 * i + 2 * p), v(ACC + 4 * i + 2 * p + 1)))
    for p in range(2):
        a("buffer_store_dwordx4 %s, v13, s[12:15], %s offen sc1" % (v(O + 4 * p, 4), s(54 + p)))
    stamp(a, 6)
    a("s_cmp_lg_u32 s2, %d" % XWG)
    a("s_cbranch_scc1 L_notx")
    a("s_call_b64 s[100:101], L_setup")
    a("s_branch L_p2")
    a.label("L_notx")
    a("s_cmp_lt_u32 s4, 7")
    a("s_cbranch_scc1 L_ffn")
    if not TOUCH:
        a("s_branch L_done")
    if ADEL == 2:
        a("s_waitcnt vmcnt(0)")
    a("s_sub_u32 s44, s4, 7")
    a("s_lshl3_add_u32 s44, s44, s5")
    for k in range(2):
        touch(a, 1, 196 + k, k == 0)
        if k == 0:
            a("s_add_u32 s44, s44, 64")
            a("s_cmp_ge_u32 s44, 96")
            a("s_cbranch_scc1 L_done")
    a("s_branch L_done")
    dft_block = a.lines[mark:]
    del a.lines[mark:]
    a.label("L_notdft")
    a.join(st0)
    a("s_sub_u32 s59, s2, 128")
    srd(a, 36, 512 * 6144)
    a("s_cmp_ge_u32 s4, 22")
    st1 = a.fork()
    a("s_cbranch_scc1 L_notmod")
    srd(a, 32, 1024)
    a("""
    s_sub_u32 s6, s2, 128                 ; column block (64 columns)
    s_lshl_b32 s48, s6, 7
    """)
    for i in range(1, 8):
        a("s_add_u32 %s, s48, %d" % (s(48 + i), 6144 * i))
    a("""
    v_lshrrev_b32 v4, 3, v0
    v_and_b32 v5, 7, v0
    v_mul_u32_u24 v6, 0xc000, v4
    v_lshl_add_u32 v6, v5, 4, v6
    v_and_b32 v7, 3, v0
    v_lshlrev_b32 v7, 2, v7
    v_lshl_add_u32 v7, v4, 4, v7
    s_waitcnt lgkmcnt(0)
    s_mov_b64 s[36:37], s[26:27]
    s_mov_b64 s[32:33], s[24:25]
    """)
    if GE:
        a("s_load_dword s47, s[12:13], 0x%x" % WS_GEN)
    stamp(a, 1)
    a("buffer_load_dword v8, v7, s[32:35], 0 offen")
    W = 16
    for i in range(8):
        a("buffer_load_dwordx4 %s, v6, s[36:39], %s offen" % (v(W + 4 * i, 4), s(48 + i)))
    if not GE:
        a("s_load_dword s47, s[12:13], 0x%x" % WS_GEN)
    if MODFIRST == 2:
        a("s_cmp_lt_u32 s5, 4")
        a("s_cbranch_scc1 L_mod")
    if MODFIRST != 1:
        a("s_call_b64 s[100:101], L_setup")
        if not ROWL:
          a.vm += [Ins("buffer_load_dwordx4 %s, v250, s[8:11], 0 offen" % v(r, 4)) for r in (100, 104, 108)] + [Ins("buffer_store_dwordx4 v[252:255], v250, s[12:15], 0 offen")]
    a("s_branch L_mod")
    mark = len(a.lines)
    a.label("L_mod")
    a("""
    s_mov_b32 s44, 0x05040100
    s_mov_b32 s46, 0x07060302
    s_lshr_b32 s48, s6, 3
    s_cmp_eq_u32 s48, 1
    s_cselect_b32 s50, 1.0, 0
    s_cmp_eq_u32 s48, 4
    s_cselect_b32 s50, 1.0, s50
    v_lshlrev_b32 v6, 1, v2
    v_lshl_add_u32 v6, v5, 3, v6
    v_and_b32 v7, 15, v6
    v_lshrrev_b32 v9, 4, v6
    v_lshl_add_u32 v10, v7, 2, v9
    v_and_b32 v7, 3, v6
    v_lshl_add_u32 v7, v9, 2, v7
    v_bfe_u32 v9, v6, 2, 2
    v_lshl_add_u32 v7, v9, 4, v7
    v_lshlrev_b32 v9, 8, v3
    v_lshl_add_u32 v10, v10, 2, v9
    v_lshl_add_u32 v7, v7, 2, v9
    s_lshl_b32 s58, s6, 8
    """)
    for j in range(8):
        a("v_mov_b32 %s, 0" % v(48 + j))
    stamp(a, 2)
    a.wait_vm_for("v8")
    get_tag(a)
    stamp(a, 3)
    a("v_lshlrev_b32 v11, 16, v8")
    a("v_and_b32 v12, 0xffff0000, v8")
    a("v_mul_f32 v13, %s, v11" % f32(-LOG2E))
    a("v_mul_f32 v14, %s, v12" % f32(-LOG2E))
    a("""
    v_exp_f32 v13, v13
    v_exp_f32 v14, v14
    v_add_f32 v13, 1.0, v13
    v_add_f32 v14, 1.0, v14
    v_rcp_f32 v13, v13
    v_rcp_f32 v14, v14
    v_mul_f32 v11, v11, v13
    v_mul_f32 v12, v12, v14
    v_cvt_pk_bf16_f32 v8, v11, v12
    """)
    for p in range(4):
        a("v_mov_b32_dpp %s, v8 quad_perm:[%d,%d,%d,%d] row_mask:0xf bank_mask:0xf" % (v(12 + p), p, p, p, p))
    for p in range(4):
        a.wait_vm_for(v(W + 8 * p, 8))
        if ROWL and p == 3:
            if STAMPS:
                a("s_waitcnt lgkmcnt(0)")
            a("s_call_b64 s[100:101], L_rows")
        for jj in range(4):
            a("v_perm_b32 %s, %s, %s, s44" % (v(56 + 2 * jj), v(W + 8 * p + 4 + jj), v(W + 8 * p + jj)))
            a("v_perm_b32 %s, %s, %s, s46" % (v(57 + 2 * jj), v(W + 8 * p + 4 + jj), v(W + 8 * p + jj)))
        for j in range(8):
            a("v_dot2c_f32_bf16 %s, %s, %s" % (v(48 + j), v(12 + p), v(56 + j)))
    stamp(a, 4)
    if MH == 0:
        flag_store(a, 7)
    for j in range(4):
        a("v_permlane32_swap_b32 %s, %s" % (v(48 + j), v(52 + j)))
    for j in range(4):
        a("v_add_f32 %s, %s, %s" % (v(48 + j), v(48 + j), v(52 + j)))
    for j in range(2):
        a("v_permlane16_swap_b32 %s, %s" % (v(48 + j), v(50 + j)))
    for j in range(2):
        a("v_add_f32 %s, %s, %s" % (v(48 + j), v(48 + j), v(50 + j)))
    dpp_sum(a, [48, 49], ROR[:1])
    a("""
    s_mov_b32 exec_lo, 0x00ff00ff
    s_mov_b32 exec_hi, 0x00ff00ff
    s_cmp_lt_u32 s6, 16
    s_cbranch_scc1 L_mod_w4
    ds_write_b64 v7, v[48:49]
    s_branch L_mod_w
    """)
    a.label("L_mod_w4")
    a("ds_write2_b32 v10, v48, v49 offset0:0 offset1:4")
    a.label("L_mod_w")
    a("s_mov_b64 exec, -1")
    if MODFIRST == 2:
        a("s_cmp_ge_u32 s5, 4")
        a("s_cbranch_scc1 L_mod_b")
        a("s_call_b64 s[100:101], L_setup")
        a.label("L_mod_b")
    a("""
    s_waitcnt lgkmcnt(0)
    s_barrier
    """)
    if MH == 1:
        flag_store(a, 1)
    stamp(a, 5)
    a("""
    s_cmp_lg_u32 s5, 0
    s_cbranch_scc1 L_mod_end
    s_mov_b64 exec, 0xffff
    """)
    for k in range(8):
        a("ds_read_b128 %s, v250 offset:%d" % (v(16 + 4 * k, 4), 256 * k))
    a("v_mov_b32 v49, v249")
    a("v_mov_b32 v51, v249")
    for k in range(0, 8, 2):
        a.wait_lg_for(v(16 + 4 * k, 8))
        a("v_pk_add_f32 %s, %s, %s" % (v(16 + 4 * k, 2), v(16 + 4 * k, 2), v(20 + 4 * k, 2)))
        a("v_pk_add_f32 %s, %s, %s" % (v(18 + 4 * k, 2), v(18 + 4 * k, 2), v(22 + 4 * k, 2)))
    a("""
    v_pk_add_f32 v[16:17], v[16:17], v[24:25]
    v_pk_add_f32 v[18:19], v[18:19], v[26:27]
    v_pk_add_f32 v[32:33], v[32:33], v[40:41]
    v_pk_add_f32 v[34:35], v[34:35], v[42:43]
    v_pk_add_f32 v[16:17], v[16:17], v[32:33]
    v_pk_add_f32 v[18:19], v[18:19], v[34:35]
    v_cvt_pk_bf16_f32 v48, v16, v17
    v_cvt_pk_bf16_f32 v50, v18, v19
    s_cmp_eq_u32 s50, 0
    s_cbranch_scc1 L_mod_st
    v_lshlrev_b32 v16, 16, v48
    v_and_b32 v17, 0xffff0000, v48
    v_lshlrev_b32 v18, 16, v50
    v_and_b32 v19, 0xffff0000, v50
    v_pk_add_f32 v[16:17], v[16:17], 1.0 op_sel_hi:[1,0]
    v_pk_add_f32 v[18:19], v[18:19], 1.0 op_sel_hi:[1,0]
    v_cvt_pk_bf16_f32 v48, v16, v17
    v_cvt_pk_bf16_f32 v50, v18, v19
    """)
    a.label("L_mod_st")
    a("buffer_store_dwordx4 v[48:51], v250, s[12:15], s58 offen sc1")
    a("s_mov_b64 exec, -1")
    if MH == 2:
        flag_store(a)
    a.label("L_mod_end")
    if MODFIRST == 1:
        a("s_call_b64 s[100:101], L_setup")
    mod_block = a.lines[mark:]
    del a.lines[mark:]
    a.label("L_notmod")
    a.join(st1)
    a("""
    s_sub_u32 s58, s4, 22
    s_lshl3_add_u32 s7, s58, s5
    s_mul_i32 s7, s7, 0x6000
    s_lshl_b32 s44, s3, 7
    s_add_u32 s7, s7, s44
    s_add_u32 s7, s7, 0x120000
    s_add_u32 s44, s7, 4096
    v_mul_u32_u24 v4, 6144, v2
    v_bfe_u32 v5, v0, 3, 1
    v_lshl_add_u32 v4, v5, 10, v4
    v_and_b32 v5, 7, v0
    v_lshl_add_u32 v4, v5, 4, v4
    s_waitcnt lgkmcnt(0)
    s_mov_b64 s[36:37], s[26:27]
    """)
    if GE:
        a("s_load_dword s47, s[12:13], 0x%x" % WS_GEN)
    if HELP == 2:
        a("s_cmp_lt_u32 s4, 29")
        a("s_cbranch_scc1 L_nohelp")
    if HELP:
        a("buffer_load_dwordx4 v[180:183], v4, s[36:39], s7 offen")
        a("buffer_load_dwordx4 v[184:187], v4, s[36:39], s7 offen offset:2048")
        a("buffer_load_dwordx4 v[188:191], v4, s[36:39], s44 offen")
    a.label("L_nohelp")
    if not GE:
        a("s_load_dword s47, s[12:13], 0x%x" % WS_GEN)
    a("s_call_b64 s[100:101], L_setup")
    get_tag(a)
    if BT:
        a("s_cmp_ge_u32 s5, %d" % BT)
        a("s_cbranch_scc1 L_p2")
        a("s_mul_i32 s44, s58, %d" % BT)
        a("s_add_u32 s44, s44, s5")
        touch(a, 0, 195, True)
        if BT2:
            a("s_add_u32 s44, s44, 16")
            touch(a, 1, 194, False)
    a("s_branch L_p2")
    setup(a)
    a.lines += dft_block + mod_block
    a.label("L_p2", reset=True)
    a("v_add_u32 v160, %d, v250" % LDS_TAB)
    a("s_barrier")
    for k, r in enumerate((SA, SA + 4, TC, TC + 4, TS, TS + 4, FR, FI, G, G + 4, G + 8, G + 12)):
        a("ds_read_b128 %s, v160 offset:%d" % (v(r, 4), 1024 * k))
    a.vm += [Ins("buffer_load_dwordx2 %s, v7, s[8:11], 0 offen" % v(r, 2)) for r in (100, 102, 104, 106, 108, 110)]
    a("""
    s_lshl_b32 s45, s59, 12
    """)
    a("s_add_u32 s45, s45, 0x%x               ; candidate slots of this workgroup" % WS_CAND)
    srd(a, 28, 2048 * 1024)
    a("""
    s_lshl_b32 s56, s5, 6
    s_add_u32 s56, s56, s61
    s_sub_u32 s57, 2048, s56
    s_lshl_b32 s50, s57, 10
    s_lshl_b32 s49, s56, 10
    v_lshlrev_b32 v7, 5, v1
    v_lshl_add_u32 v7, v2, 3, v7          ; 32n + 8q
    s_lshl1_add_u32 s52, s4, s5
    s_and_b32 s52, s52, 7
    s_lshl_b32 s53, s52, 8
    v_lshlrev_b32 v4, 4, v1
    v_add_u32 v4, s53, v4                 ; cb*256 + n*16
    v_lshl_add_u32 v5, v2, 11, v4
    v_add_u32 v179, 0x8000, v5
    s_lshl_b32 s40, s60, 16
    s_lshl_b32 s53, s52, 3
    """)
    a("s_add_u32 s40, s40, 0x%x" % WS_INTER)
    a("""
    s_add_u32 s41, s40, 0x2000
    s_add_u32 s42, s40, 0x4000
    s_add_u32 s43, s40, 0x6000
    v_mul_u32_u24 v8, 80, v1
    v_mul_u32_u24 v9, 5120, v2
    v_add3_u32 v9, v9, s53, v8
    v_mul_u32_u24 v12, 2560, v3
    v_lshl_add_u32 v10, v2, 4, v8
    v_or_b32 v11, s61, v2
    v_cmp_eq_u32 vcc, 0, v11
    v_mov_b32 v11, 0x45000000
    v_cndmask_b32 v11, 0, v11, vcc
    """)
    a("v_add_u32 v9, %d, v9                   ; U write address" % LDS_U)
    a("v_add_u32 v12, %d, v12                 ; scratch row of this wave" % LDS_SCR)
    a("v_sub_u32 v176, v12, v10")
    a("v_add_u32 v176, %d, v176               ; mirrored position of elements 1..3 (g = 1)" % (15 * 80 + 52))
    a("v_add_u32 v178, 1280, v176")
    a("v_add_u32 v14, v10, v12")
    a("v_add_u32 v10, %d, v14                 ; U read address" % ((LDS_U - LDS_SCR) & 0xffffffff))
    a("v_cmp_eq_u32 vcc, 0, v2")
    a("v_cndmask_b32 v177, 12, 28, vcc")
    a("v_add_u32 v177, v177, v176")
    a("v_add_u32 v196, 1280, v177")
    a("v_cmp_eq_u32 vcc, 0, v250")
    a("v_cndmask_b32 v196, v196, v12, vcc")
    a("v_add_u32 v15, v12, v250")
    a("v_add_u32 v12, v12, v7")
    a("""
    s_lshl_b32 s46, s59, 5
    s_lshl2_add_u32 s46, s5, s46
    s_mov_b32 s38, 0xffffe000
    s_mov_b32 s39, 0xffffe000
    s_cmp_eq_u32 s56, 0
    s_cselect_b32 s39, 0, s39
    s_cmp_lg_u32 s59, 128
    s_cbranch_scc1 L_live
    s_mov_b32 s39, 0
    s_cmp_eq_u32 s5, 0
    s_cselect_b32 s38, s38, 0
    """)
    a.label("L_live")
    a("s_cmp_eq_u32 s38, 0")
    a("s_cselect_b32 s49, 0x%x, s49" % OOB)
    a("s_cselect_b32 s36, 0, s46")
    a("s_add_u32 s37, s46, 2")
    a("s_cmp_eq_u32 s39, 0")
    a("s_cselect_b32 s50, 0x%x, s50" % OOB)
    a("s_cselect_b32 s37, 0, s37")
    a("s_lshl_b32 s51, s3, 7")
    a("s_add_u32 s51, s51, 0x%x" % WS_PRE)
    a("s_xor_b32 s53, s4, 31")
    a("s_or_b32 s53, s53, s5")
    a("s_cselect_b32 s51, 0x%x, s51" % OOB)
    stamp(a, 7)
    L = 16
    XU, WU, XM, GAM, PP, PM = 112, 120, 160, 168, 180, 188
    VEC = 128
    GA, SB, CB, GB = VEC, VEC + 8, VEC + 16, VEC + 24

    def inter_load(ks, r):
        a("buffer_load_dwordx4 %s, %s, s[12:15], %s offen sc1" % (v(L + 16 * ks + 4 * r, 4), "v179" if ks else "v5", s(40 + r)))

    def unpack(dst, src):
        for d in range(4):
            a("v_lshlrev_b32 %s, 16, %s" % (v(dst + 2 * d), v(src + d)))
            a("v_and_b32 %s, 0xffff0000, %s" % (v(dst + 2 * d + 1), v(src + d)))

    def mirror_write(src, a0, a123, off=0):
        a("ds_write_b32 %s, %s offset:%d" % (a0, v(src), off))
        a("ds_write_b32 %s, %s offset:%d" % (a123, v(src + 1), off + 8))
        a("ds_write_b32 %s, %s offset:%d" % (a123, v(src + 2), off + 4))
        a("ds_write_b32 %s, %s offset:%d" % (a123, v(src + 3), off))

    def mirror(dst, src):
        for b, a0, a123 in ((src, "v196", "v178"), (src + 4, "v177", "v176")):
            a("ds_write_b32 %s, %s" % (a0, v(b)))
            a("ds_write_b32 %s, %s offset:8" % (a123, v(b + 1)))
            a("ds_write2_b32 %s, %s, %s offset0:1 offset1:0" % (a123, v(b + 2), v(b + 3)))
        a("ds_read_b128 %s, v14" % v(dst, 4))
        a("ds_read_b128 %s, v14 offset:1280" % v(dst + 4, 4))

    def mod_loads():
        a("buffer_load_dwordx4 v[48:51], v4, s[12:15], 0 offen offset:%d sc1" % (WS_MOD + 2048))
        a("buffer_load_dwordx4 v[64:67], v197, s[12:15], s55 offen sc1")
        if SASK:
            mod_loads.n += 1
            a("s_cmp_lg_u32 s61, 0")
            a("s_cbranch_scc1 L_nosa%d" % mod_loads.n)
        a("buffer_load_dwordx4 v[52:55], v4, s[12:15], 0 offen offset:%d sc1" % WS_MOD)
        if SASK:
            a.vm.pop()
            a.label("L_nosa%d" % mod_loads.n)

    mod_loads.n = 0

    def vec_read(reg, k):
        a("ds_read_b128 %s, v198 offset:%d" % (v(reg, 4), 2560 * k))
        a("ds_read_b128 %s, v198 offset:%d" % (v(reg + 4, 4), 2560 * k + 1280))

    def tag_check(regs_):
        a("v_xor_b32 v88, %s, v249" % v(regs_[0]))
        a("v_xor_b32 v89, %s, v249" % v(regs_[1]))
        for k, r in enumerate(regs_[2:]):
            a("v_bitop3_b32 %s, %s, %s, v249 bitop3:0xf6" % (v(88 + k % 2), v(88 + k % 2), v(r)))
        a("v_or_b32 v88, v88, v89")
        a("v_cmp_ne_u32 vcc, 0, v88")

    def widen(base, n):
        for b in range(base, base + n, 2):
            a("v_and_b32 %s, 0xffff0000, %s" % (v(b + 1), v(b)))
            a("v_lshlrev_b32 %s, 16, %s" % (v(b), v(b)))

    a("s_add_u32 s55, s62, %d" % (WS_MOD + 4096))
    a("""
    v_and_b32 v197, 3, v0
    v_lshlrev_b32 v197, 4, v197
    v_lshl_add_u32 v197, v2, 6, v197
    v_bfe_u32 v68, v0, 2, 2
    v_lshl_add_u32 v197, v68, 8, v197
    v_mul_u32_u24 v68, 80, v1
    v_lshl_add_u32 v198, v2, 4, v68
    """)
    a("v_add_u32 v198, %d, v198               ; vector read address" % LDS_VEC)
    a("""
    s_mul_i32 s53, s5, 1280
    v_add_u32 v90, s53, v198
    s_bitcmp1_b32 s5, 0
    s_cselect_b64 vcc, -1, 0
    v_cndmask_b32 v91, v196, v177, vcc
    v_cndmask_b32 v199, v178, v176, vcc
    s_lshr_b32 s53, s5, 1
    s_sub_u32 s53, s53, s5
    s_mul_i32 s53, s53, 2560
    """)
    a("s_add_u32 s53, s53, %d" % (LDS_VEC + 4 * 2560 - LDS_SCR))
    a("v_add_u32 v91, s53, v91")
    a("v_add_u32 v199, s53, v199")
    a("s_waitcnt vmcnt(0)")
    a("""
    ds_write_b128 v15, v[100:103]
    ds_write_b128 v15, v[104:107] offset:1024
    ds_read_b64 v[56:57], v12
    ds_read_b64 v[58:59], v12 offset:512
    ds_read_b64 v[84:85], v12 offset:1024
    ds_read_b64 v[86:87], v12 offset:1536
    ds_write_b128 v15, v[108:111]
    ds_read_b64 v[60:61], v12
    ds_read_b64 v[62:63], v12 offset:512
    s_waitcnt lgkmcnt(0)
    """)
    unpack(XU, 56)
    unpack(72, 84)
    unpack(WU, 60)
    mirror(XM, 72)
    a("s_bitcmp1_b32 s5, 0")
    a("s_cselect_b64 vcc, -1, 0")
    for j in range(4):
        a("v_cndmask_b32 %s, %s, %s, vcc" % (v(92 + j), v(WU + j), v(WU + 4 + j)))
    a("s_cmp_lt_u32 s5, 2")
    a("s_cselect_b64 vcc, -1, 0")
    for j in range(4):
        a("v_cndmask_b32 %s, %s, 1.0, vcc" % (v(92 + j), v(92 + j)))
    if SASK:
        a("v_mov_b32 v52, 0")
        a("v_mov_b32 v53, v249")
        a("v_mov_b32 v54, 0")
        a("v_mov_b32 v55, v249")
    a("s_mov_b32 s54, %d" % SPIN)
    a("s_waitcnt lgkmcnt(0)")
    if PROG:
        a("""
        v_and_b32 v8, 7, v0
        v_bfe_u32 v6, v0, 3, 2
        v_lshl_add_u32 v8, v6, 5, v8
        s_lshr_b32 s52, s52, 1
        """)
        a("v_lshlrev_b32 v8, %d, v8" % FSH)
        a("s_lshl_b32 s52, s52, %d" % (FSH + 3))
        a("s_add_u32 s52, s52, 0x%x" % WS_FLAG)
        a("s_mov_b32 s32, -1")
        a("s_mov_b32 s33, 0")
        a("s_mov_b32 s48, 0")
        a.label("L_poll1")
        a("s_mov_b64 exec, s[32:33]")
        a("buffer_load_dword v6, v8, s[12:15], s52 offen sc1")
        a("s_waitcnt vmcnt(0)")
        a("v_cmp_ne_u32 vcc, v6, %s" % v(VTAG))
        a("s_mov_b64 exec, -1")
        a("""
        s_mov_b32 s32, vcc_lo
        s_lshr_b32 s34, s32, 1
        s_or_b32 s34, s34, s32
        s_lshr_b32 s35, s34, 2
        s_or_b32 s34, s34, s35
        s_or_b32 s34, s34, s48
        s_andn2_b32 s34, 0x11111111, s34
        s_cbranch_scc0 L_skip7
        s_or_b32 s48, s48, s34
        """)
        for i in range(8):
            a("s_bitcmp1_b32 s34, %d" % (4 * i))
            a("s_cbranch_scc0 L_skip%d" % i)
            inter_load(i // 4, i % 4)
            a.label("L_skip%d" % i)
        a("s_cmp_eq_u32 s32, 0")
        poll_tail(a, "L_poll1")
        stamp(a, 8)
        a("s_mov_b32 s54, %d" % SPIN)
        a("s_branch L_inter_go")
        a.vm = []
    else:
        a("s_cmp_ge_u32 s5, 2")
        a("s_cbranch_scc1 L_poll1_ok")
        a("v_lshlrev_b32 v8, %d, v0" % FSH)
        a("s_mov_b32 s52, 0x%x" % WS_FLAG)
        a.label("L_poll1")
        a("buffer_load_dword v6, v8, s[12:15], s52 offen sc1")
        a("s_waitcnt vmcnt(0)")
        a("v_cmp_ne_u32 vcc, v6, %s" % v(VTAG))
        a("s_and_b64 exec, exec, vcc")
        a("s_cmp_eq_u64 exec, 0")
        poll_tail(a, "L_poll1")
        a("s_mov_b64 exec, -1")
        a("s_mov_b32 s54, %d" % SPIN)
        a("s_barrier")
        stamp(a, 8)
    if PRIO:
        a("s_cmp_lt_u32 s5, 4")
        a("s_cbranch_scc1 L_inter")
        a("s_setprio %d" % PRIO)
    a.label("L_inter")
    for ks in range(2):
        for r in range(4):
            inter_load(ks, r)
    a.label("L_inter_go")
    mod_loads()
    ACC = 96
    for ks in range(2):
        a.wait_vm_for(v(L, 32) if PROG else v(L + 16 * ks, 16))
        if ks == 1 - PROG:
            stamp(a, 9)
        TT = 68 if ks == 0 else 16
        b = L + 16 * ks
        for i in range(4):
            for hp in range(2):
                o = i & 1
                a("v_pk_mov_b32 %s, %s, %s op_sel:[%d,%d]" % (v(TT + 4 * i + 2 * hp, 2), v(b + 8 * hp + (i & 2), 2), v(b + 8 * hp + 4 + (i & 2), 2), o, o))
        for i in range(4):
            acc = v(ACC + 4 * i, 4)
            a("v_mfma_f32_16x16x32_bf16 %s, %s, %s, %s" % (acc, v(SA + 4 * ks, 4), v(TT + 4 * i, 4), "0" if ks == 0 else acc))
    a("""
    v_max3_u32 v6, v68, v69, v70
    v_max3_u32 v8, v71, v16, v17
    v_max3_u32 v6, v6, v18, v19
    v_max_u32 v6, v6, v8
    v_cmp_eq_u32 vcc, -1, v6
    s_waitcnt vmcnt(0)
    s_cmp_eq_u64 vcc, 0
    """)
    poll_tail(a, "L_inter")
    a("s_mov_b32 s54, %d" % SPIN)
    a("s_branch L_modv_chk")
    a.label("L_modv")
    mod_loads()
    a("s_waitcnt vmcnt(0)")
    a.label("L_modv_chk")
    tag_check([49, 51, 53, 55, 65, 67])
    a("v_and_b32 v65, 0xffff0000, v64")
    a("v_and_b32 v67, 0xffff0000, v66")
    a("s_cmp_eq_u64 vcc, 0")
    poll_tail(a, "L_modv")
    a("""
    v_lshlrev_b32 v64, 16, v64
    v_lshlrev_b32 v66, 16, v66
    ds_write_b128 v90, v[64:67]
    s_bitcmp1_b32 s5, 1
    s_cbranch_scc1 L_nop
    v_pk_mul_f32 v[92:93], v[92:93], v[64:65]
    v_pk_mul_f32 v[94:95], v[94:95], v[66:67]
    ds_write_b32 v91, v92
    ds_write_b32 v199, v93 offset:8
    ds_write2_b32 v199, v94, v95 offset0:1 offset1:0
    s_cmp_lt_u32 s5, 2
    s_cbranch_scc1 L_nop
    ds_write_b128 v90, v[92:95] offset:7680
    """)
    a.label("L_nop")
    if SASK:
        widen(48, 4)
        a("v_mov_b32 v53, 0")
        a("s_cmp_lg_u32 s61, 0")
        a("v_mov_b32 v55, 0")
        a("s_cbranch_scc1 L_nobias")
        widen(52, 4)
    else:
        widen(48, 8)
    for i in range(4):
        a("v_mul_f32 %s, v11, %s" % (v(52 + i), v(52 + i)))
    a.label("L_nobias")
    if FINE == 1:
        stamp(a, 1)
    P = 32
    for i in range(4):
        c = ACC + 4 * i
        a("v_fma_f32 %s, %s, %s, %s" % (v(c), v(c), v(48 + i), v(52 + i)))
        a("v_mul_f32 %s, %s, %s" % (v(c + 1), v(c + 1), v(48 + i)))
        a("v_pk_mul_f32 %s, %s, %s op_sel:[0,%d] op_sel_hi:[1,%d]" % (v(c + 2, 2), v(c + 2, 2), v(48 + (i & 2), 2), i & 1, i & 1))
        for tt in range(2):
            a("v_cvt_pk_bf16_f32 %s, %s, %s" % (v(P + 4 * tt + 2 * (i % 2) + i // 2), v(c + 2 * tt), v(c + 2 * tt + 1)))
        if i >= 2:
            for tt in range(2):
                a("ds_write_b64 v9, %s offset:%d" % (v(P + 4 * tt + 2 * (i - 2), 2), tt * 2560 + (i - 2) * 1280))
    a("s_waitcnt lgkmcnt(0)")
    if FINE == 1:
        stamp(a, 2)
    a("s_barrier")
    if FINE == 1:
        stamp(a, 3)
    D = 24
    a("ds_read_b128 %s, v10" % v(D, 4))
    a("ds_read_b128 %s, v10 offset:1280" % v(D + 4, 4))

    def notice():
        a("s_mov_b64 exec, 1")
        a("buffer_store_dword %s, off, s[12:15], s51 sc1" % v(VTAG))
        a("s_mov_b64 exec, -1")
    if PRE == 1:
        notice()
    a("v_mov_b32 v80, s38")
    a("v_mov_b32 v81, s36")
    a("v_lshlrev_b32 v11, 3, v3")
    a("v_add_u32 v11, %d, v11" % LDS_KEY)
    a("v_mov_b32 v13, %d" % LDS_KEY)
    a("s_mov_b32 exec_lo, 0")
    a("v_mov_b32 v80, s39")
    a("v_mov_b32 v81, s37")
    a("v_add_u32 v11, 4, v11")
    a("s_mov_b32 exec_lo, -1")
    BR, BI = 32, 40
    for h in range(2):
        a.wait_lg_for(v(D + 4 * h, 4))
        a("v_mfma_f32_16x16x32_bf16 %s, %s, %s, 0" % (v(BR + 4 * h, 4), v(D + 4 * h, 4), v(FR, 4)))
        a("v_mfma_f32_16x16x32_bf16 %s, %s, %s, 0" % (v(BI + 4 * h, 4), v(D + 4 * h, 4), v(FI, 4)))
    A2 = 16
    Y = 64
    for h in range(2):
        for j in range(0, 4, 2):
            br, bi, tc, ts = v(BR + 4 * h + j, 2), v(BI + 4 * h + j, 2), v(TC + 4 * h + j, 2), v(TS + 4 * h + j, 2)
            a("v_pk_mul_f32 %s, %s, %s" % (v(48 + j, 2), br, tc))
            a("v_pk_mul_f32 %s, %s, %s" % (v(52 + j, 2), bi, tc))
            a("v_pk_fma_f32 %s, %s, %s, %s" % (v(48 + j, 2), bi, ts, v(48 + j, 2)))
            a("v_pk_fma_f32 %s, %s, %s, %s neg_lo:[1,0,0] neg_hi:[1,0,0]" % (v(52 + j, 2), br, ts, v(52 + j, 2)))
        if h == 0:
            vec_read(PP, 5)
            vec_read(GA, 0)
        else:
            vec_read(GAM, 4)
            vec_read(PM, 6)
        for k in range(4):
            a("v_cvt_pk_bf16_f32 %s, %s, %s" % (v(A2 + 4 * h + k), v(48 + k), v(52 + k)))
        for gg in range(2):
            y = v(Y + 4 * gg, 4)
            a("v_mfma_f32_16x16x32_bf16 %s, %s, %s, %s" % (y, v(A2 + 4 * h, 4), v(G + 8 * h + 4 * gg, 4), "0" if h == 0 else y))
    if FINE:
        stamp(a, 4)
    if PRE == 2:
        notice()
    a("v_mov_b32 v57, %s" % v(VTAG))
    a("v_mov_b32 v59, %s" % v(VTAG))
    a("s_lshl_b32 s58, s59, %d" % KSH)
    a("s_add_u32 s58, s58, 0x%x" % WS_KEYS)
    a("s_cmp_eq_u32 s5, 0")
    a("s_cselect_b32 s58, s58, 0x%x" % OOB)
    rows = ((XU, GA, PP, 32), (XM, GAM, PM, 40))
    a.wait_lg_for(v(PP, 8))
    a("v_pk_add_f32 v[38:39], %s, %s" % (v(PP, 2), v(PP + 2, 2)))
    a("v_pk_add_f32 v[46:47], %s, %s" % (v(PP + 4, 2), v(PP + 6, 2)))
    a("v_pk_add_f32 v[38:39], v[38:39], v[46:47]")
    a("v_add_f32 v38, v38, v39")
    a("v_mov_b32 v46, v38")
    for xx, ga, pp, tp in rows:
        a.wait_lg_for(v(ga, 8))
        for e in range(0, 8, 2):
            a("v_pk_fma_f32 %s, %s, %s, %s" % (v(xx + e, 2), v(ga + e, 2), v(Y + e, 2), v(xx + e, 2)))
    XN = 72
    for xx, ga, pp, tp in rows:
        a.wait_lg_for(v(pp, 8))
        a("v_pk_add_f32 %s, %s, %s" % (v(tp, 2), v(xx, 2), v(xx + 2, 2)))
        a("v_pk_mul_f32 %s, %s, %s" % (v(tp + 2, 2), v(xx, 2), v(xx, 2)))
        a("v_pk_mul_f32 %s, %s, %s" % (v(tp + 4, 2), v(xx, 2), v(pp, 2)))
        for e in range(2, 8, 2):
            if e > 2:
                a("v_pk_add_f32 %s, %s, %s" % (v(tp, 2), v(tp, 2), v(xx + e, 2)))
            a("v_pk_fma_f32 %s, %s, %s, %s" % (v(tp + 2, 2), v(xx + e, 2), v(xx + e, 2), v(tp + 2, 2)))
            a("v_pk_fma_f32 %s, %s, %s, %s" % (v(tp + 4, 2), v(xx + e, 2), v(pp + e, 2), v(tp + 4, 2)))
        for k in range(3):
            a("v_add_f32 %s, %s, %s" % (v(tp + 2 * k), v(tp + 2 * k), v(tp + 2 * k + 1)))
    for k in (3, 0, 1, 2):
        a("v_permlane32_swap_b32 %s, %s" % (v(32 + 2 * k), v(40 + 2 * k)))
    for k in (3, 0, 1, 2):
        a("v_add_f32 %s, %s, %s" % (v(32 + 2 * k), v(32 + 2 * k), v(40 + 2 * k)))
    a("v_permlane16_swap_b32 v32, v34")
    a("v_permlane16_swap_b32 v36, v38")
    a("v_add_f32 v32, v32, v34")
    a("v_add_f32 v36, v36, v38")
    if EARLYH == 1:
        extra = []
        for b, a0, a123 in ((XM, "v196", "v178"), (XM + 4, "v177", "v176")):
            extra += ["ds_write_b32 %s, %s" % (a0, v(b)), "ds_write_b32 %s, %s offset:8" % (a123, v(b + 1)), "ds_write2_b32 %s, %s, %s offset0:1 offset1:0" % (a123, v(b + 2), v(b + 3))]
        for k, mod in enumerate(ROR):
            for r in (32, 36):
                a("v_add_f32_dpp %s, %s, %s %s" % (v(r), v(r), v(r), mod))
            for t in extra[(k * 6) // 4:((k + 1) * 6) // 4]:
                a(t)
    else:
        dpp_sum(a, [32, 36], ROR)
    if FINE == 1:
        stamp(a, 5)
    if PRE == 3:
        notice()
    a("v_mov_b32_dpp v33, v32 %s" % BC[0])
    a("v_mov_b32_dpp v37, v36 %s" % BC[0])
    a("v_mul_f32 v33, %s, v33                 ; mean" % f32(1 / 512))
    a("v_mul_f32 v34, v33, v33")
    a("v_sub_f32 v34, %s, v34" % f32(EPS))
    a("v_fmac_f32 v34, %s, v32" % f32(1 / 512))
    a("v_rsq_f32 v34, v34")
    a("""
    v_fma_f32 v36, -v33, v36, v37
    v_mul_f32 v8, v36, v34
    v_ashrrev_i32 v9, 31, v8
    v_or_b32 v9, s63, v9
    v_xor_b32 v8, v8, v9
    v_and_or_b32 v8, v8, v80, v81
    s_mov_b32 exec_lo, 0x80000000
    s_mov_b32 exec_hi, 0x80000000
    ds_write_b32 v11, v8
    s_mov_b64 exec, -1
    v_mul_f32 v35, v33, v34
    s_cmp_lg_u32 s5, 0
    s_cbranch_scc1 L_noprio
    s_setprio 3
    """)
    a.label("L_noprio")
    if EARLYH == 2:
        for b, a0, a123 in ((XM, "v196", "v178"), (XM + 4, "v177", "v176")):
            a("ds_write_b32 %s, %s" % (a0, v(b)))
            a("ds_write_b32 %s, %s offset:8" % (a123, v(b + 1)))
            a("ds_write2_b32 %s, %s, %s offset0:1 offset1:0" % (a123, v(b + 2), v(b + 3)))
        a("s_waitcnt lgkmcnt(6)")
    else:
        a("s_waitcnt lgkmcnt(0)")
    stamp(a, 10)
    a("s_barrier")
    for k in range(4):
        a("ds_read_b128 %s, v13 offset:%d" % (v(16 + 4 * k, 4), 16 * k))
    a("""
    v_readlane_b32 s56, v8, 31
    v_readlane_b32 s57, v8, 63
    v_readlane_b32 s32, v34, 31
    v_readlane_b32 s33, v35, 31
    v_readlane_b32 s34, v34, 63
    v_readlane_b32 s35, v35, 63
    s_waitcnt lgkmcnt(2)
    v_max_u32 v56, v16, v17
    v_min_u32 v58, v16, v17
    """)
    for k in range(18, 30, 4):
        if k == 22:
            a("s_waitcnt lgkmcnt(0)")
        a("v_med3_u32 v60, v56, %s, %s" % (v(k), v(k + 1)))
        a("v_max3_u32 v56, v56, %s, %s" % (v(k), v(k + 1)))
        a("v_med3_u32 v61, v56, %s, %s" % (v(k + 2), v(k + 3)))
        a("v_max3_u32 v56, v56, %s, %s" % (v(k + 2), v(k + 3)))
        a("v_max3_u32 v58, v58, v60, v61")
    a("""
    v_med3_u32 v60, v56, v30, v31
    v_max3_u32 v56, v56, v30, v31
    v_max_u32 v60, v58, v60
    v_or_b32 v58, 1, v60
    s_mov_b64 exec, 1
    buffer_store_dwordx4 v[56:59], off, s[12:15], s58 sc1
    s_mov_b64 exec, -1
    s_setprio 0
    """)
    if FINE:
        stamp(a, 6)
    vec_read(CB, 2)
    vec_read(SB, 1)
    if EARLYH:
        a("ds_read_b128 %s, v14" % v(XN, 4))
        a("ds_read_b128 %s, v14 offset:1280" % v(XN + 4, 4))
        vec_read(GB, 3)
    else:
        vec_read(GB, 3)
        mirror(XN, XM)
    a("v_readfirstlane_b32 s60, v56")
    a("v_readfirstlane_b32 s61, v60")
    H, HM = 32, 88
    OUT, OUTM, HP, HPM = 40, 44, 48, 52
    for ri, (xx, hh, sp, o, hp) in enumerate(((XU, H, 32, OUT, HP), (XN, HM, 34, OUTM, HPM))):
        if ri:
            a("s_waitcnt lgkmcnt(0)")
        a("v_mov_b32 v60, %s" % s(sp + 1))
        for e in range(8):
            a("v_fma_f32 %s, %s, %s, -v60" % (v(hh + e), v(xx + e), s(sp)))
        a.wait_lg_for(v(VEC, 32))
        for e in range(0, 8, 2):
            a("v_pk_fma_f32 %s, %s, %s, %s" % (v(hh + e, 2), v(hh + e, 2), v(CB + e, 2), v(SB + e, 2)))
        for d in range(4):
            a("v_cvt_pk_bf16_f32 %s, %s, %s" % (v(hp + d), v(hh + 2 * d), v(hh + 2 * d + 1)))
        for e in range(0, 8, 2):
            a("v_pk_fma_f32 %s, %s, %s, %s" % (v(xx + e, 2), v(GB + e, 2), v(hh + e, 2), v(xx + e, 2)))
        for d in range(4):
            a("v_cvt_pk_bf16_f32 %s, %s, %s" % (v(o + d), v(xx + 2 * d), v(xx + 2 * d + 1)))
    a("""
    ds_write_b64 v12, v[40:41]
    ds_write_b64 v12, v[42:43] offset:512
    ds_write_b64 v12, v[44:45] offset:1024
    ds_write_b64 v12, v[46:47] offset:1536
    ds_read_b128 v[40:43], v15
    ds_read_b128 v[44:47], v15 offset:1024
    s_max_u32 s61, s61, 1
    """)
    for ri, (key, off, o, hp) in enumerate((("s56", "s49", OUT, HP), ("s57", "s50", OUTM, HPM))):
        a("s_mov_b32 s58, s45")
        a("s_cmp_eq_u32 %s, s60" % key)
        a("s_cbranch_scc1 L_cand%d" % ri)
        a("s_add_u32 s58, s45, 2048")
        a("s_cmp_eq_u32 %s, s61" % key)
        a("s_cselect_b32 s53, 1, 0")
        a("s_or_b32 %s, %s, s53" % (key, key))
        a("s_cmp_eq_u32 s53, 1")
        stc = a.fork()
        a("s_cbranch_scc1 L_cand%d" % ri)
        a("s_mov_b32 %s, 0" % key)
        a("s_waitcnt lgkmcnt(0)")
        a("buffer_store_dwordx4 %s, v250, s[28:31], %s offen%s" % (v(o, 4), off, OUTF))
        a("s_branch L_next%d" % ri)
        a.label("L_cand%d" % ri)
        a.join(stc)
        a("buffer_store_dwordx4 %s, v250, s[12:15], s58 offen sc1" % v(hp, 4))
        a("s_waitcnt lgkmcnt(0)")
        a("buffer_store_dwordx4 %s, v250, s[12:15], s58 offen offset:1024 sc1" % v(o, 4))
        a.label("L_next%d" % ri)
    a.label("L_tail", reset=True)
    a("""
    s_lshl_b32 s59, s5, 8
    s_add_u32 s59, s59, s2
    s_sub_u32 s59, s59, 192
    s_cmp_lt_u32 s59, 64
    s_cselect_b32 s59, 1, 0
    s_or_b32 s60, s59, s56
    s_or_b32 s60, s60, s57
    s_cbranch_scc0 L_done
    s_lshl_b32 s45, s3, 7
    """)
    a("s_add_u32 s45, s45, 0x%x" % WS_SEL)
    a("s_cmp_eq_u32 s59, 0")
    a("s_cbranch_scc1 L_sel_go")
    a("""
    s_lshl3_add_u32 s44, s3, s4
    s_sub_u32 s44, s44, 24
    s_lshr_b32 s48, s44, 2
    s_lshl_b32 s48, s48, 5
    s_and_b32 s46, s44, 3
    s_lshl2_add_u32 s48, s46, s48
    v_and_b32 v4, 3, v0
    v_lshrrev_b32 v5, 1, v2
    v_lshl_add_u32 v5, v5, 4, v4
    v_add_u32 v5, s48, v5
    v_and_b32 v8, 0x103, v5
    v_bfe_u32 v9, v5, 2, 2
    v_lshl_add_u32 v8, v9, 6, v8
    v_bfe_u32 v9, v5, 4, 4
    v_lshl_add_u32 v8, v9, 2, v8
    v_lshlrev_b32 v8, 2, v8
    """)
    a("ds_write_b128 v15, %s" % v(GB, 4))
    a("ds_write_b128 v15, %s offset:1024" % v(GB + 4, 4))
    a("ds_read_b32 v8, v8 offset:%d           ; gb[e]" % LDS_SCR)
    a("v_pk_mul_f32 v[62:63], %s, %s" % (v(SB, 2), v(WU, 2)))
    for e in range(2, 8, 2):
        a("v_pk_fma_f32 v[62:63], %s, %s, v[62:63]" % (v(SB + e, 2), v(WU + e, 2)))
    a("v_add_f32 v62, v62, v63")
    dpp_sum(a, [62], ROR + BC)
    a("v_readlane_b32 s58, v62, 63")
    a("""
    v_bfe_u32 v9, v0, 2, 4
    v_lshlrev_b32 v9, 12, v9
    v_lshl_add_u32 v9, v4, 4, v9
    s_lshl_b32 s40, s44, 6
    v_and_b32 v10, 1, v2
    v_cmp_eq_u32 s[52:53], 1, v10
    v_mov_b32 v36, 0
    v_mov_b32 v37, 0
    v_mov_b32 v38, 0
    v_mov_b32 v39, 0
    """)
    a("s_add_u32 s40, s40, 0x%x" % WS_PART)
    a("s_add_u32 s41, s40, 0x10000")
    a("s_add_u32 s42, s40, 0x20000")
    a("s_add_u32 s43, s40, 0x30000")
    a("s_waitcnt lgkmcnt(0)")
    a.label("L_sel_go")
    a("s_mov_b32 s54, %d" % SPIN)
    a.label("L_poll_sel")
    a("buffer_load_dwordx4 v[16:19], off, s[12:15], s45 sc1")
    a("s_waitcnt vmcnt(0)")
    a("v_cmp_eq_u32 vcc, v17, %s" % v(VTAG))
    a("v_cmp_eq_u32 s[60:61], v19, %s" % v(VTAG))
    a("s_and_b64 vcc, vcc, s[60:61]")
    a("s_cmp_eq_u64 vcc, -1")
    poll_tail(a, "L_poll_sel")
    stamp(a, 11)
    a("""
    v_readfirstlane_b32 s60, v16
    v_readfirstlane_b32 s61, v18
    """)
    if LO:
        for ri, (key, off, o) in enumerate((("s56", "s49", OUT), ("s57", "s50", OUTM))):
            a("s_cmp_eq_u32 %s, 0" % key)
            a("s_cbranch_scc1 L_lo%d" % ri)
            a("s_cmp_eq_u32 %s, s60" % key)
            a("s_cbranch_scc1 L_lo%d" % ri)
            a("s_cmp_eq_u32 %s, s61" % key)
            a("s_cbranch_scc1 L_lo%d" % ri)
            a("buffer_store_dwordx4 %s, v250, s[28:31], %s offen" % (v(o, 4), off))
            a.label("L_lo%d" % ri)
    a("""
    s_cmp_eq_u32 s59, 0
    s_cbranch_scc1 L_late_out
    v_cndmask_b32 v16, v16, v18, s[52:53]
    v_bfe_u32 v17, v16, 5, 8
    v_and_b32 v18, 1, v16
    v_lshlrev_b32 v19, 12, v17
    v_lshl_add_u32 v19, v18, 11, v19
    v_lshl_add_u32 v19, v5, 1, v19
    """)
    a("s_mov_b32 s55, 0x%x" % (WS_CAND + 1024))
    a("s_mov_b32 s54, %d" % SPIN)
    a.label("L_poll_base")
    a("""
    buffer_load_ushort v20, v19, s[12:15], s55 offen sc1
    v_and_b32 v21, 7, v17
    v_bfe_u32 v22, v17, 5, 2
    v_lshl_add_u32 v21, v22, 3, v21       ; slot
    v_bfe_u32 v22, v17, 3, 2
    v_lshl_add_u32 v22, v22, 9, v21
    v_subrev_u32 v23, 992, v22
    v_cmp_eq_u32 vcc, 0, v21
    v_cndmask_b32 v23, v22, v23, vcc
    v_cmp_gt_u32 vcc, 1024, v22
    v_cndmask_b32 v21, v23, v22, vcc
    v_lshrrev_b32 v22, 7, v17
    v_lshl_add_u32 v21, v22, 10, v21
    v_bfe_u32 v22, v16, 2, 3
    v_lshl_add_u32 v21, v22, 6, v21
    v_sub_u32 v22, 2048, v21
    v_and_b32 v23, 2, v16
    v_cmp_eq_u32 vcc, 0, v23
    v_cndmask_b32 v21, v22, v21, vcc
    v_lshlrev_b32 v21, 10, v21
    v_lshl_add_u32 v21, v5, 1, v21
    """)
    if FIN == 2:
        a("buffer_load_ushort v49, v21, s[28:31], 0 offen")
    a("""
    v_and_b32 v22, 0xffffe000, v16
    v_ashrrev_i32 v23, 31, v22
    v_not_b32 v23, v23
    v_or_b32 v23, s63, v23
    v_xor_b32 v22, v22, v23
    v_add_f32 v22, s58, v22
    """)
    a("v_mul_f32 v22, %s, v22" % f32(-LOG2E))
    a("""
    v_exp_f32 v22, v22
    v_add_f32 v22, 1.0, v22
    v_rcp_f32 v22, v22
    v_mul_f32 v22, v22, v8
    s_waitcnt vmcnt(0)
    v_cmp_eq_u32 vcc, 0xffff, v20
    s_cmp_eq_u64 vcc, 0
    """)
    poll_tail(a, "L_poll_base")
    a("s_mov_b32 s54, %d" % SPIN)
    a.label("L_poll_part")
    a("""
    buffer_load_dwordx4 v[24:27], v9, s[12:15], s40 offen sc1
    buffer_load_dwordx4 v[28:31], v9, s[12:15], s41 offen sc1
    buffer_load_dwordx4 v[32:35], v9, s[12:15], s42 offen sc1
    s_mov_b32 exec_hi, 0
    buffer_load_dwordx4 v[36:39], v9, s[12:15], s43 offen sc1
    s_mov_b32 exec_hi, -1
    s_waitcnt vmcnt(0)
    v_max3_u32 v48, v24, v28, v32
    v_max_u32 v48, v48, v36
    v_cmp_eq_u32 vcc, -1, v48
    s_cmp_eq_u64 vcc, 0
    """)
    poll_tail(a, "L_poll_part")
    stamp(a, 12)
    a("""
    v_pk_add_f32 v[24:25], v[24:25], v[28:29]
    v_pk_add_f32 v[26:27], v[26:27], v[30:31]
    v_pk_add_f32 v[32:33], v[32:33], v[36:37]
    v_pk_add_f32 v[34:35], v[34:35], v[38:39]
    v_pk_add_f32 v[24:25], v[24:25], v[32:33]
    v_pk_add_f32 v[26:27], v[26:27], v[34:35]
    v_permlane32_swap_b32 v24, v26
    v_permlane32_swap_b32 v25, v27
    v_pk_add_f32 v[24:25], v[24:25], v[26:27]
    v_permlane16_swap_b32 v24, v25
    v_add_f32 v24, v24, v25
    v_lshlrev_b32 v20, 16, v20
    """)
    dpp_sum(a, [24], ROR[:2])
    a("""
    v_fmac_f32 v20, v24, v22
    v_cvt_pk_bf16_f32 v20, v20, v20
    s_mov_b32 exec_lo, 0x000f000f
    s_mov_b32 exec_hi, 0x000f000f
    buffer_store_short v20, v21, s[28:31], 0 offen OUTF
    s_mov_b64 exec, -1
    s_cmp_lg_u32 s2, 192
    s_cbranch_scc1 L_late_out
    s_mov_b64 exec, 1
    """.replace(" OUTF", " sc1" if FIN == 1 else ""))
    a("s_mov_b32 s55, 0x%x" % WS_GEN)
    a("buffer_store_dword %s, off, s[12:15], s55" % v(VTAG))
    a("s_mov_b64 exec, -1")
    if PROBE >= 0 and not PFFN:
        probe_spin(a)
    a.label("L_late_out", reset=True)
    for ri, (key, off, o) in enumerate((("s56", "s49", OUT), ("s57", "s50", OUTM)) if not LO else ()):
        nxt = "L_late1" if ri == 0 else "L_done"
        a("s_cmp_eq_u32 %s, 0" % key)
        a("s_cbranch_scc1 %s" % nxt)
        a("s_cmp_eq_u32 %s, s60" % key)
        a("s_cbranch_scc1 %s" % nxt)
        a("s_cmp_eq_u32 %s, s61" % key)
        a("s_cbranch_scc1 %s" % nxt)
        a("buffer_store_dwordx4 %s, v250, s[28:31], %s offen%s" % (v(o, 4), off, OUTF))
        if ri == 0:
            a.label("L_late1")
    a("s_branch L_done")
    a.label("L_ffn", reset=True)
    a("s_mov_b32 s58, s4")
    a("""
    s_mul_i32 s6, s3, 7
    s_add_u32 s6, s6, s58
    s_lshl_b32 s46, s6, 12
    """)
    a("s_add_u32 s46, s46, 0x%x               ; partial-sum slab" % WS_PART)
    a("s_add_u32 s45, s46, s62")
    a("s_cmp_lt_u32 s5, 4")
    a("s_cselect_b32 s45, s45, 0x%x" % OOB)
    if EPART:
        a("v_mov_b32 v33, %s" % v(VTAG))
        a("v_mov_b32 v35, %s" % v(VTAG))
        if EPART == 2:
            a("s_waitcnt vmcnt(0)")
        a("s_barrier")
    else:
        a("buffer_store_dwordx4 v[252:255], v250, s[12:15], s45 offen sc1")
        a("v_mov_b32 v33, %s" % v(VTAG))
        a("v_mov_b32 v35, %s" % v(VTAG))
        a("v_mov_b32 v32, 0")
        a("v_mov_b32 v34, 0")
        a("s_lshl_b32 s53, s6, %d" % KSH)
        a("s_add_u32 s53, s53, 0x%x" % (WS_KEYS + (129 << KSH)))
        a("s_cmp_eq_u32 s5, 0")
        a("s_cselect_b32 s53, s53, 0x%x" % OOB)
        a("s_waitcnt vmcnt(0)")
        a("s_barrier")
        a("s_mov_b64 exec, 1")
        a("buffer_store_dwordx4 v[32:35], off, s[12:15], s53 sc1")
        a("s_mov_b64 exec, -1")
    a("s_mov_b64 s[32:33], s[18:19]")
    a("s_mov_b64 s[36:37], s[20:21]")
    a("s_mov_b64 s[40:41], s[22:23]")
    srd(a, 32, 512 * 3584)
    srd(a, 36, 512 * 3584)
    srd(a, 40, 1792 * 1024)
    a("""
    s_and_b32 s44, s5, 1
    s_lshl_b32 s44, s44, 7
    s_lshr_b32 s48, s5, 1
    s_lshl2_add_u32 s44, s48, s44
    v_bfe_u32 v4, v0, 2, 2
    v_lshl_add_u32 v4, v2, 4, v4
    v_add_u32 v4, s44, v4
    v_mul_u32_u24 v4, 3584, v4
    v_and_b32 v5, 3, v0
    SWZA
    v_lshl_add_u32 v4, v5, 4, v4
    s_lshl_b32 s48, s6, 6
    s_mul_i32 s7, s5, 12288
    s_mov_b32 m0, s7
    """.replace("SWZA", "v_and_b32 v6, 1, v2\nv_lshlrev_b32 v6, 1, v6\nv_xor_b32 v5, v5, v6" if SWZ else ""))
    a("s_add_u32 s49, s48, %d" % (64 * 3584))
    a("s_add_u32 s50, s48, %d" % (256 * 3584))
    a("s_add_u32 s51, s48, %d" % (320 * 3584))
    stamp(a, 7)
    for sr in (32, 36):
        for i in range(4):
            a("buffer_load_dwordx4 v4, %s, %s offen lds" % (s(sr, 4), s(48 + i)))
            a("s_add_u32 m0, m0, 1024")
    a("""
    v_bfe_u32 v5, v0, 3, 3
    v_lshlrev_b32 v5, 10, v5
    v_and_b32 v4, 7, v0
    SWZB
    v_lshl_add_u32 v5, v4, 4, v5
    v_lshl_add_u32 v5, v3, 7, v5
    v_xor_b32 v6, SWZC, v5
    s_lshl_b32 s48, s6, 15
    """.replace("SWZB", "v_lshrrev_b32 v6, 3, v0\nv_and_b32 v6, 2, v6\nv_xor_b32 v4, v4, v6" if SWZ else "").replace("SWZC", "64" if SWZ else "0"))
    for i in range(4):
        a("buffer_load_dwordx4 %s, s[40:43], s48 offen lds" % ("v6" if i & 1 else "v5"))
        if i < 3:
            a("s_add_u32 m0, m0, 1024")
            a("s_add_u32 s48, s48, 8192")
    WF, WD = 64, 96
    a("v_lshlrev_b32 v6, %d, v0" % KSH)
    a("""
    v_bfe_u32 v4, v0, 2, 4                ; 4q + r
    v_and_b32 v5, 3, v0
    v_lshlrev_b32 v5, 3, v5
    v_lshl_add_u32 v8, v4, 6, v5
    v_add_u32 v8, s7, v8
    v_bfe_u32 v9, v0, 2, 2
    v_lshl_add_u32 v9, v2, 3, v9
    v_lshl_add_u32 v9, v9, 7, v5
    v_add_u32 v9, s7, v9
    """)
    a("""
    v_and_b32 v10, 1, v0
    v_cmp_eq_u32 s[50:51], 1, v10
    v_lshlrev_b32 v11, 7, v3
    v_lshl_add_u32 v11, v2, 4, v11
    v_lshlrev_b32 v12, 6, v10
    v_lshl_add_u32 v13, v2, 4, v12
    v_lshl_add_u32 v13, v3, 9, v13
    v_and_b32 v14, 30, v0
    v_lshl_add_u32 v14, v14, 1, v12
    v_and_b32 v12, 32, v0
    v_lshl_add_u32 v14, v12, 2, v14
    """)
    a("v_add_u32 v13, %d, v13                 ; partial write address" % LDS_RED)
    a("v_add_u32 v14, %d, v14                 ; partial read address" % LDS_RED)
    a("""
    v_lshlrev_b32 v15, 9, v3
    v_lshl_add_u32 v15, v1, 4, v15
    v_lshlrev_b32 v7, 3, v3
    v_mov_b32 v16, 0
    v_mov_b32 v18, 0
    """)
    a("v_add_u32 v7, %d, v7" % LDS_KEY2)
    a("v_mov_b32 v4, %d" % LDS_KEY2)
    if SWZ:
        a("""
        v_and_b32 v12, 1, v2
        v_lshl_add_u32 v40, v12, 5, v8
        v_xor_b32 v41, 32, v40
        v_lshl_add_u32 v42, v12, 6, v9
        v_and_b32 v12, 8, v0
        v_lshl_add_u32 v42, v12, 2, v42
        v_xor_b32 v43, 32, v42
        v_xor_b32 v44, 64, v42
        v_xor_b32 v45, 0x60, v42
        """)
    a("s_waitcnt vmcnt(0)")
    stamp(a, 8)
    for kk in range(2):
        for mt in range(4):
            for hf in range(2):
                if SWZ:
                    a("ds_read_b64_tr_b16 %s, %s offset:%d" % (v(WF + 16 * kk + 4 * mt + 2 * hf, 2), "v41" if mt % 2 else "v40", (mt // 2) * 4096 + hf * 2048 + kk * 1024))
                else:
                    a("ds_read_b64_tr_b16 %s, v8 offset:%d" % (v(WF + 16 * kk + 4 * mt + 2 * hf, 2), (mt // 2) * 4096 + hf * 2048 + kk * 1024 + (mt % 2) * 32))
    for t in range(4):
        for hf in range(2):
            if SWZ:
                a("ds_read_b64_tr_b16 %s, %s offset:%d" % (v(WD + 4 * t + 2 * hf, 2), v(42 + t), 8192 + hf * 512))
            else:
                a("ds_read_b64_tr_b16 %s, v9 offset:%d" % (v(WD + 4 * t + 2 * hf, 2), 8192 + hf * 512 + t * 32))
    a("s_lshl_b32 s52, s3, 7")
    a("s_add_u32 s55, s52, 0x%x" % WS_PRE)
    a("s_add_u32 s52, s52, 0x%x" % WS_SEL)
    a("s_or_b32 s53, s58, s5")
    a("s_cselect_b32 s52, 0x%x, s52           ; one announcing wave per group" % OOB)
    a("s_cmp_ge_u32 s5, 3")
    a("s_cbranch_scc1 L_keys_done")
    a("s_mov_b32 s54, %d" % SPIN)
    if PRE:
        a.label("L_poll_pre")
        a("buffer_load_dword v17, off, s[12:15], s55 sc1")
        a("s_waitcnt vmcnt(0)")
        a("v_cmp_eq_u32 vcc, v17, %s" % v(VTAG))
        a("s_cmp_eq_u64 vcc, -1")
        poll_tail(a, "L_poll_pre")
        a("s_mov_b32 s54, %d" % SPIN)
    stamp(a, 10)
    a("v_cmp_gt_u32 vcc, 185, v0")
    a("s_mov_b32 s55, 0x%x" % WS_KEYS)
    a("s_mov_b64 exec, vcc")
    a.label("L_poll_keys")
    a("buffer_load_dwordx4 v[16:19], v6, s[12:15], s55 offen sc1")
    a("s_waitcnt vmcnt(0)")
    a("v_cmp_ne_u32 vcc, v17, %s" % v(VTAG))
    a("v_cmp_ne_u32 s[60:61], v19, %s" % v(VTAG))
    a("s_or_b64 vcc, vcc, s[60:61]")
    a("s_and_b64 exec, exec, vcc")
    a("s_cmp_eq_u64 exec, 0")
    poll_tail(a, "L_poll_keys")
    a("s_mov_b64 exec, -1")
    for mod in ROR + BC:
        a("v_min_u32_dpp v19, v16, v16 %s" % mod)
        a("v_max_u32_dpp v18, v18, v18 %s" % mod)
        a("v_max_u32_dpp v16, v16, v16 %s" % mod)
        a("v_max_u32 v18, v18, v19")
    a("""
    s_mov_b32 exec_lo, 0
    s_mov_b32 exec_hi, 0x80000000
    ds_write2_b32 v7, v16, v18 offset0:0 offset1:1
    s_mov_b64 exec, -1
    """)
    a.label("L_keys_done")
    a("s_waitcnt lgkmcnt(0)")
    a("s_barrier")
    stamp(a, 11)
    a("ds_read_b128 v[16:19], v4")
    a("ds_read_b64 v[20:21], v4 offset:16")
    a("s_mov_b32 s55, 0x%x" % WS_CAND)
    a("s_mov_b32 s54, %d" % SPIN)
    a("""
    s_waitcnt lgkmcnt(0)
    v_med3_u32 v36, v16, v18, v20
    v_max3_u32 v32, v16, v18, v20
    v_max3_u32 v34, v17, v19, v21
    v_max_u32 v34, v34, v36
    v_cndmask_b32 v36, v32, v34, s[50:51]
    v_bfe_u32 v37, v36, 5, 8
    v_and_b32 v36, 1, v36
    v_lshl_add_u32 v11, v37, 12, v11
    v_lshl_add_u32 v11, v36, 11, v11
    """)
    a.label("L_poll_h2")
    a("""
    buffer_load_dwordx4 v[16:19], v11, s[12:15], s55 offen sc1
    buffer_load_dwordx4 v[20:23], v11, s[12:15], s55 offen offset:64 sc1
    """)
    C = 48
    for kk in range(2):
        a("s_waitcnt vmcnt(%d)" % (1 - kk))
        if kk:
            stamp(a, 12)
        for mt in range(4):
            c = v(C + 4 * mt, 4)
            a("v_mfma_f32_16x16x32_bf16 %s, %s, %s, %s" % (c, v(WF + 16 * kk + 4 * mt, 4), v(16 + 4 * kk, 4), "0" if kk == 0 else c))
    a("""
    v_max_u32 v36, v16, v20
    v_cmp_eq_u32 vcc, -1, v36
    s_cmp_eq_u64 vcc, 0
    """)
    poll_tail(a, "L_poll_h2")
    a("s_mov_b64 exec, 1")
    a("buffer_store_dwordx4 v[32:35], off, s[12:15], s52 sc1")
    a("s_mov_b32 exec_lo, 0x00030003")
    a("s_mov_b32 exec_hi, 0x00030003")
    for mt in range(4):
        a("ds_write_b128 v13, %s offset:%d" % (v(C + 4 * mt, 4), 128 * mt))
    a("s_mov_b64 exec, -1")
    a("s_waitcnt lgkmcnt(0)")
    a("s_barrier")
    a("""
    ds_read2st64_b32 v[16:17], v14 offset0:0 offset1:2
    ds_read2st64_b32 v[18:19], v14 offset0:4 offset1:6
    ds_read2st64_b32 v[20:21], v14 offset0:8 offset1:10
    ds_read2st64_b32 v[22:23], v14 offset0:12 offset1:14
    ds_read2st64_b32 v[24:25], v14 offset0:1 offset1:3
    ds_read2st64_b32 v[26:27], v14 offset0:5 offset1:7
    ds_read2st64_b32 v[28:29], v14 offset0:9 offset1:11
    ds_read2st64_b32 v[30:31], v14 offset0:13 offset1:15
    s_waitcnt lgkmcnt(4)
    v_pk_add_f32 v[16:17], v[16:17], v[18:19]
    v_pk_add_f32 v[20:21], v[20:21], v[22:23]
    v_pk_add_f32 v[16:17], v[16:17], v[20:21]
    v_add_f32 v16, v16, v17
    """)
    a("v_mul_f32 v17, %s, v16" % f32(-LOG2E))
    a("""
    v_exp_f32 v17, v17
    s_waitcnt lgkmcnt(0)
    v_pk_add_f32 v[24:25], v[24:25], v[26:27]
    v_add_f32 v17, 1.0, v17
    v_pk_add_f32 v[28:29], v[28:29], v[30:31]
    v_rcp_f32 v17, v17
    v_pk_add_f32 v[24:25], v[24:25], v[28:29]
    v_add_f32 v24, v24, v25
    v_mul_f32 v16, v16, v17
    v_mul_f32 v16, v16, v24
    v_mov_b32_dpp v17, v16 row_ror:14 row_mask:0xf bank_mask:0xf
    v_cvt_pk_bf16_f32 v20, v16, v17
    v_mov_b32_dpp v21, v20 row_ror:12 row_mask:0xf bank_mask:0xf
    v_mov_b32_dpp v22, v20 row_ror:8 row_mask:0xf bank_mask:0xf
    v_mov_b32_dpp v23, v20 row_ror:4 row_mask:0xf bank_mask:0xf
    """)
    for t in range(4):
        a("v_mfma_f32_16x16x32_bf16 %s, v[20:23], %s, 0" % (v(C + 4 * t, 4), v(WD + 4 * t, 4)))
    a("""
    s_mov_b64 exec, 0xffff
    v_mov_b32 v50, v52
    v_mov_b32 v51, v53
    buffer_store_dwordx4 v[48:51], v15, s[12:15], s46 offen sc1
    v_mov_b32 v58, v60
    v_mov_b32 v59, v61
    buffer_store_dwordx4 v[56:59], v15, s[12:15], s46 offen offset:256 sc1
    s_mov_b64 exec, -1
    """)
    stamp(a, 9)
    if PROBE >= 0 and PFFN:
        a("s_lshl_b32 s94, s2, 3")
        a("s_or_b32 s94, s94, s5")
        a("s_cmp_lg_u32 s94, %d" % (PFFN - 1))
        a("s_cbranch_scc1 L_done")
        probe_spin(a)
    a.label("L_done", reset=True)
    stamp_end(a)
    a.label("L_end")
    a("s_endpgm")
    desc = """.section .rodata,"a"
.p2align 6
.amdhsa_kernel %s
  .amdhsa_next_free_vgpr 256
  .amdhsa_next_free_sgpr 102
  .amdhsa_accum_offset 256
  .amdhsa_group_segment_fixed_size 0
  .amdhsa_kernarg_size 120
  .amdhsa_user_sgpr_count 2
  .amdhsa_user_sgpr_kernarg_segment_ptr 1
  .amdhsa_system_sgpr_workgroup_id_x 1
.end_amdhsa_kernel
""" % KN
    return HEADER + "; @launch grid=(256,1,1) block=(512,1,1) lds=%d\n" % LDS_TOTAL + DOC + a.text() + desc


if __name__ == "__main__":
    out = sys.argv[1] if len(sys.argv) > 1 and sys.argv[1].endswith(".s") else "v13.s"
    open(out, "w").write(build())
    print("wrote", out)
```
